```python
import torch

def _softmax(x, axis=-1):
    return torch.softmax(x, dim=axis)
def _gelu(x):
    return torch.nn.functional.gelu(x, approximate="tanh")
def _silu(x):
    return torch.nn.functional.silu(x)
def _sigmoid(x):
    return torch.sigmoid(x)
def _layernorm(x, axis=-1, eps=1e-5):
    m = x.mean(dim=axis, keepdim=True)
    v = x.var(dim=axis, keepdim=True, unbiased=False)
    return (x - m) / torch.sqrt(v + eps)
def _scatter_add(tgt, idx, src, axis=0):
    return tgt.clone().index_add_(axis, idx, src)
def _segment_sum(src, seg, n):
    out = torch.zeros((n,) + src.shape[1:], dtype=src.dtype)
    return out.index_add_(0, seg, src)
def _pad(x, pw):
    flat = tuple(v for pair in reversed(pw) for v in pair)
    return torch.nn.functional.pad(x, flat)

kernel_name = 'gated_mix__sliding_local_dilated__dense_activation_gelu__prompt'

def setup_inputs():

    _w = (lambda a: (lambda t: t.to(torch.bfloat16) if t.is_floating_point() else t)(torch.as_tensor(a)))
    def _A_setup():
        B, S, D = 1, 2048, 640
        return {
            "x": _w((lambda *s: torch.randn(*s, dtype=torch.bfloat16) * 0.2)(B, S, D)),
            "wqkv": _w((lambda *s: torch.randn(*s, dtype=torch.bfloat16) * 0.2)(D, 3 * D)),
            "wo": _w((lambda *s: torch.randn(*s, dtype=torch.bfloat16) * 0.2)(D, D)),
        }
    _A_in = _A_setup()

    def _B_setup():
        B, S, D, F = 1, 2048, 640, 1728
        return {
            "x": _w((lambda *s: torch.randn(*s, dtype=torch.bfloat16) * 0.2)(B, S, D)),
            "w1": _w((lambda *s: torch.randn(*s, dtype=torch.bfloat16) * 3.2)(D, F) * (D ** -0.5)),
            "b1": _w((lambda *s: torch.randn(*s, dtype=torch.bfloat16) * 3.2)(F) * 0.01),
            "w2": _w((lambda *s: torch.randn(*s, dtype=torch.bfloat16) * 3.2)(F, D) * (F ** -0.5)),
            "b2": _w((lambda *s: torch.randn(*s, dtype=torch.bfloat16) * 3.2)(D) * 0.01),
        }
    _B_in = _B_setup()

    return {
        "A_x": _A_in["x"],
        "A_wqkv": _A_in["wqkv"],
        "A_wo": _A_in["wo"],
        "B_x": _B_in["x"],
        "B_w1": _B_in["w1"],
        "B_b1": _B_in["b1"],
        "B_w2": _B_in["w2"],
        "B_b2": _B_in["b2"],
        "gate_w": _w((lambda *s: torch.randn(*s, dtype=torch.bfloat16) * 0.2)(640) * 16.0),
    }

def reference(A_x, A_wqkv, A_wo, B_x, B_w1, B_b1, B_w2, B_b2, gate_w):
    def _A_ref(x, wqkv, wo):
        B, S, D = x.shape
        H = 32; Dh = D // H
        W, dil = 8, 2
        qkv = (lambda x, *d: x.permute(*d))((x @ wqkv).reshape(B, S, 3, H, Dh), 2, 0, 3, 1, 4)
        q, k, v = qkv[0], qkv[1], qkv[2]
        scale = Dh ** -0.5
        pos = torch.arange(S)
        off = torch.arange(W) * dil
        idx = pos[:, None] - off[None, :]
        mask = idx >= 0
        idx_c = torch.where(mask, idx, 0).reshape(-1)
        kg = k[:, :, idx_c, :].reshape(B, H, S, W, Dh)
        vg = v[:, :, idx_c, :].reshape(B, H, S, W, Dh)
        logits = torch.einsum("bhsd,bhswd->bhsw", q, kg) * scale
        logits = torch.where(mask[None, None, :, :], logits, -1e9)
        attn = _softmax(logits, axis=-1)
        o = torch.einsum("bhsw,bhswd->bhsd", attn, vg)
        return (lambda x, *d: x.permute(*d))(o, 0, 2, 1, 3).reshape(B, S, D) @ wo

    def _B_ref(x, w1, b1, w2, b2):
        h = torch.einsum("bsd,df->bsf", x, w1) + b1
        h = _gelu(h)
        return torch.einsum("bsf,fd->bsd", h, w2) + b2

    x = A_x
    g = _sigmoid((x * gate_w).sum(-1, keepdims=True))
    a = _A_ref(x, A_wqkv, A_wo)
    b = _B_ref(x, B_w1, B_b1, B_w2, B_b2)
    return g * a + (1 - g) * b
```

```python
import re

REG_RE = re.compile(r'^(-?)(?:abs\()?([vsa])(?:(\d+)|\[(\d+):(\d+)\])\)?$')


def regs_of(op):
    op = op.strip()
    if op in ('vcc', 'exec', 'm0', 'scc'):
        return {(op, 0)}
    if op in ('vcc_lo', 'vcc_hi'):
        return {('vcc', 0)}
    m = REG_RE.match(op)
    if not m:
        return set()
    k = m.group(2)
    if m.group(3) is not None:
        return {(k, int(m.group(3)))}
    return {(k, i) for i in range(int(m.group(4)), int(m.group(5)) + 1)}


TRANS = ('v_exp_f32', 'v_log_f32', 'v_rcp_f32', 'v_rsq_f32', 'v_sqrt_f32', 'v_sin_f32', 'v_cos_f32')


class Ins:
    __slots__ = ('text', 'op', 'cls', 'rd', 'wr', 'ws', 'passes', 'srcc', 'wide_store', 'dpp')

    def __init__(self, text):
        self.text = text
        t = text.split(';')[0].strip()
        self.rd, self.wr = set(), set()
        self.passes = 0
        self.srcc = set()
        self.wide_store = False
        self.dpp = False
        self.ws = 1
        if not t or t.endswith(':') or t.startswith('.'):
            self.op, self.cls, self.ws = '', 'pseudo', 0
            return
        parts = t.split(None, 1)
        op = parts[0]
        self.op = op
        rest = parts[1] if len(parts) > 1 else ''
        ops = [o.strip() for o in rest.split(',')] if rest else []
        mods = ''
        if ops:
            sp = ops[-1].split()
            if len(sp) > 1:
                ops[-1] = sp[0]
                mods = ' '.join(sp[1:])
        R = [regs_of(o) for o in ops]
        allr = lambda xs: set().union(*xs) if xs else set()
        if op == 's_nop':
            self.cls = 'nop'
            self.ws = int(ops[0], 0) + 1
        elif op.startswith('v_mfma'):
            self.cls = 'mfma'
            self.passes = 8 if '32x32' in op else 4
            self.wr = R[0]
            self.rd = allr(R[1:])
            self.srcc = R[3]
        elif op.startswith('v_permlane') and 'swap' in op:
            self.cls = 'permlane'
            self.wr = R[0] | R[1]
            self.rd = R[0] | R[1]
        elif op.startswith('v_cmp'):
            self.cls = 'valu'
            self.wr = R[0]
            self.rd = allr(R[1:])
            if op.startswith('v_cmpx'):
                self.wr |= {('exec', 0)}
        elif op.startswith('v_readfirstlane') or op.startswith('v_readlane'):
            self.cls = 'readlane'
            self.wr = R[0]
            self.rd = allr(R[1:])
        elif op.startswith('v_'):
            self.cls = 'trans' if op.replace('_e32', '').replace('_e64', '') in TRANS else 'valu'
            self.wr = R[0]
            self.rd = allr(R[1:])
            if op.startswith(('v_fmac', 'v_dot2c', 'v_pk_fmac', 'v_mac')):
                self.rd |= R[0]
            if op.startswith(('v_add_co', 'v_sub_co', 'v_addc_co', 'v_subb_co')):
                self.wr = R[0] | R[1]
                self.rd = allr(R[2:])
            if op.startswith('v_cndmask') and len(ops) == 3:
                self.rd |= {('vcc', 0)}
            if 'row_' in mods or 'quad_perm' in mods or '_dpp' in op:
                self.dpp = True
        elif op.startswith('ds_read') or op.startswith('ds_bpermute') or op.startswith('ds_swizzle'):
            self.cls = 'ds'
            self.wr = R[0]
            self.rd = allr(R[1:])
        elif op.startswith('ds_'):
            self.cls = 'ds'
            self.rd = allr(R)
        elif op.startswith('buffer_load') or op.startswith('global_load'):
            self.cls = 'vmem'
            if ' lds' in (' ' + mods) or op.startswith('global_load_lds'):
                self.rd = allr(R) | {('m0', 0)}
            else:
                self.wr = R[0]
                self.rd = allr(R[1:])
        elif op.startswith('buffer_store') or op.startswith('global_store') or op.startswith('buffer_atomic') or op.startswith('global_atomic'):
            self.cls = 'vmem'
            self.rd = allr(R)
            if 'x4' in op or 'x3' in op:
                self.wide_store = True
                self.srcc = R[0] if op.startswith('buffer') else R[1]
        elif op.startswith('s_'):
            self.cls = 'salu'
            if op.startswith(('s_cmp', 's_bitcmp', 's_waitcnt', 's_barrier', 's_branch', 's_cbranch', 's_endpgm', 's_setprio', 's_sleep')):
                self.rd = allr(R)
            else:
                self.wr = R[0] if R else set()
                self.rd = allr(R[1:])
                if 'saveexec' in op:
                    self.wr |= {('exec', 0)}
        else:
            raise ValueError('unknown instruction: ' + text)


def is_v(s):
    return {r for r in s if r[0] in ('v', 'a')}


def is_s(s):
    return {r for r in s if r[0] in ('s', 'vcc')}


def need(p, c):
    n = 0
    pv = is_v(p.wr)
    valu_p = p.cls in ('valu', 'trans', 'permlane', 'readlane')
    if valu_p:
        if pv & c.rd:
            if c.cls == 'mfma':
                n = max(n, 2)
            if c.cls == 'permlane':
                n = max(n, 2)
            if c.dpp:
                n = max(n, 2)
            if c.cls == 'readlane':
                n = max(n, 1)
            if p.cls == 'trans' and c.cls in ('valu', 'permlane', 'readlane', 'mfma', 'ds', 'vmem'):
                n = max(n, 1)
            if p.cls == 'permlane':
                n = max(n, 1)
        ps = is_s(p.wr)
        if ps & c.rd:
            if c.cls == 'vmem':
                n = max(n, 5)
            elif c.cls == 'readlane':
                n = max(n, 4)
            elif c.cls in ('valu', 'trans', 'permlane', 'mfma'):
                n = max(n, 2)
            elif c.cls == 'salu':
                n = max(n, 4)
        if ('exec', 0) in p.wr:
            if c.cls in ('mfma', 'readlane', 'permlane'):
                n = max(n, 4)
            if c.dpp:
                n = max(n, 5)
    if p.cls == 'mfma':
        d = p.wr
        big = {4: 8, 8: 12}[p.passes]
        if c.cls == 'mfma':
            if d & c.srcc:
                if not (d == c.srcc and p.passes == c.passes and p.op == c.op):
                    n = max(n, {4: 6, 8: 10}[p.passes] + (2 if p.op != c.op else 0))
            if d & (c.rd - c.srcc if c.srcc else c.rd):
                n = max(n, big)
            if d & c.wr and not (d == c.wr and d == c.srcc):
                if not (d & c.srcc):
                    n = max(n, big)
        else:
            if d & (c.rd | c.wr):
                n = max(n, big)
        if c.cls in ('valu', 'trans', 'permlane') and (p.srcc & c.wr):
            n = max(n, {4: 3, 8: 7}[p.passes])
    if p.op.startswith('v_dot'):
        if p.wr & (c.rd | c.wr):
            same_c = (c.op == p.op and c.wr == p.wr)
            if not same_c:
                n = max(n, 3)
    if p.wide_store and (p.srcc & c.wr):
        n = max(n, 2)
    if p.cls == 'salu' and ('m0', 0) in p.wr and ('m0', 0) in c.rd:
        n = max(n, 1)
    if p.cls == 'salu' and ('exec', 0) in p.wr and c.dpp:
        n = max(n, 1)
    return n


class Prog:
    def __init__(self):
        self.lines = []

    def __call__(self, text):
        for ln in text.split('\n'):
            ln = ln.strip()
            if ln:
                self.lines.append(ln)
        return self

    def label(self, name):
        self.lines.append(name + ':')

    def raw(self, text):
        self.lines.append('@@RAW ' + text)

    def finish(self, window=24):
        out = []
        hist = []
        nn = 0
        for ln in self.lines:
            if ln.startswith('@@RAW '):
                out.append(ln[6:])
                continue
            ins = Ins(ln)
            if ins.cls == 'pseudo':
                out.append(ln)
                continue
            req = 0
            dist = 0
            for p in reversed(hist[-window:]):
                k = need(p, ins)
                if k > dist:
                    req = max(req, k - dist)
                dist += p.ws
                if dist >= 16:
                    break
            while req > 0:
                k = min(req, 16)
                nop = Ins('s_nop %d' % (k - 1))
                hist.append(nop)
                out.append('    ' + nop.text)
                req -= k
                nn += 1
            hist.append(ins)
            out.append('    ' + ln)
            if ins.op in ('s_branch', 's_endpgm'):
                hist = []
        self.nops_inserted = nn
        return '\n'.join(out) + '\n'


def vr(b, n=1):
    return 'v%d' % b if n == 1 else 'v[%d:%d]' % (b, b + n - 1)


def ar(b, n=1):
    return 'a%d' % b if n == 1 else 'a[%d:%d]' % (b, b + n - 1)


def sr(b, n=1):
    return 's%d' % b if n == 1 else 's[%d:%d]' % (b, b + n - 1)
```

```python
import sys, os, math, struct
sys.path.insert(0, os.path.dirname(os.path.abspath(__file__)))
from asmlib import Prog, vr, ar, sr

NAME = 'gated_mix__sliding_local_dilated__dense_activation_gelu__prompt'

CFG = dict(MAP1='mixed', MAP2='8x4', NBUF=4, PROF=0)
for a in sys.argv[1:]:
    if '=' in a:
        k, v = a.split('=')
        CFG[k] = int(v) if v.lstrip('-').isdigit() else v

H_OFF = 0
OA_OFF = H_OFF + 128 * 54 * 1024
W2_OFF = OA_OFF + 128 * 20 * 1024
WO_OFF = W2_OFF + 8 * 54 * 5120
G_OFF = WO_OFF + 8 * 20 * 5120
WS_USED = G_OFF + 2048 * 8
PROF_OFF = 16 << 20

XREG = 144 * 128
WROW = 480
WREG = 64 * WROW
SLOT = XREG + WREG
SCR = 3 * SLOT
K1_LDS = 163840


def f32(x):
    return struct.unpack('<I', struct.pack('<f', x))[0]


def hexf(x):
    return '0x%08x' % f32(x)


S_AX, S_WQKV, S_WO, S_BX, S_W1, S_B1, S_W2, S_B2, S_GW, S_WS = 4, 6, 8, 10, 12, 14, 16, 18, 20, 22
S_WAVE, S_TYPE, S_RB, S_CG = 24, 25, 26, 27
SRD_X, SRD_W, SRD_I4, SRD_WS, SRD_A, SRD_B = 28, 32, 36, 40, 44, 48


def srd(p, base, ptr, nbytes):
    p(f's_mov_b32 s{base}, s{ptr}')
    p(f's_mov_b32 s{base+1}, s{ptr+1}')
    p(f's_mov_b32 s{base+2}, {nbytes}')
    p(f's_mov_b32 s{base+3}, 0x20000')


def code_prefetch(p, lbl_from, lbl_to, nbytes, vtmp, vdst, s, tag):
    p(f's_getpc_b64 s[{s}:{s+1}]')
    p.label(f'L_pc_{tag}')
    p(f's_add_u32 s{s}, s{s}, {lbl_from}-L_pc_{tag}')
    p(f's_addc_u32 s{s+1}, s{s+1}, 0')
    p(f'v_lshlrev_b32 v{vtmp}, 6, v{vtmp}')
    n = (nbytes + 4095) // 4096
    for j in range(n):
        p(f'v_min_u32 v{vtmp+1}, {lbl_to}-{lbl_from}, v{vtmp}')
        p(f'global_load_dword v{vdst}, v{vtmp+1}, s[{s}:{s+1}]')
        if j + 1 < n:
            p(f'v_add_u32 v{vtmp}, 4096, v{vtmp}')
    return n


def stamp(p, idx, sbase=90):
    if CFG['PROF']:
        p(f's_memtime s[{sbase+2*idx}:{sbase+2*idx+1}]')


def k1_decode(p):
    p('s_and_b32 s52, s2, 7')
    p('s_lshr_b32 s53, s2, 3')
    if CFG['MAP1'] == 'mixed':
        p(f's_lshr_b32 s{S_TYPE}, s53, 4')
        p('s_and_b32 s54, s53, 15')
        p('s_lshr_b32 s55, s52, 1')
        p('s_lshl_b32 s55, s55, 2')
        p('s_lshr_b32 s56, s54, 2')
        p(f's_add_u32 s{S_RB}, s55, s56')
        p('s_and_b32 s55, s52, 1')
        p('s_lshl_b32 s55, s55, 2')
        p('s_and_b32 s56, s54, 3')
        p(f's_add_u32 s{S_CG}, s55, s56')
    else:
        p(f's_lshr_b32 s{S_TYPE}, s52, 2')
        p('s_and_b32 s54, s52, 3')
        p('s_lshr_b32 s55, s54, 1')
        p('s_lshl_b32 s55, s55, 3')
        p('s_lshr_b32 s56, s53, 2')
        p(f's_add_u32 s{S_RB}, s55, s56')
        p('s_and_b32 s55, s54, 1')
        p('s_lshl_b32 s55, s55, 2')
        p('s_and_b32 s56, s53, 3')
        p(f's_add_u32 s{S_CG}, s55, s56')


def k1_loader(p, attn):
    tag = 'A' if attn else 'F'
    rowstride = 3840 if attn else 3456
    VOFF = 10
    VL = 2
    p.label(f'L_loader_{tag}')
    p(f's_sub_u32 s57, s{S_WAVE}, 4')
    p(f'v_lshrrev_b32 v3, 3, v{VL}')
    p('s_lshl_b32 s58, s57, 3')
    p('v_add_u32 v3, s58, v3')
    p(f's_lshl_b32 s59, s{S_RB}, 7')
    if attn:
        p('s_sub_u32 s59, s59, 16')
    p('v_add_u32 v3, s59, v3')
    p('s_and_b32 s58, s57, 1')
    p('s_lshl_b32 s58, s58, 2')
    p(f'v_lshrrev_b32 v4, 4, v{VL}')
    p('v_add_u32 v4, s58, v4')
    p(f'v_and_b32 v5, 7, v{VL}')
    p('v_xor_b32 v4, v4, v5')
    p('v_lshlrev_b32 v4, 4, v4')
    p('s_movk_i32 s58, 1280')
    p('s_movk_i32 s59, 2047')
    for i in range(5):
        p(f'v_add_u32 v5, {32*i}, v3')
        if attn and i == 0:
            p('v_max_i32 v5, 0, v5')
        if (not attn) and i == 4:
            p('v_min_u32 v5, s59, v5')
        p('v_mul_u32_u24 v5, s58, v5')
        p(f'v_add_u32 v{VOFF+i if i < 4 else 6}, v5, v4')
    p('s_lshl_b32 s58, s57, 6')
    p(f'v_add_u32 v7, s58, v{VL}')
    p(f's_mov_b32 s60, {rowstride}')
    if attn:
        p(f's_mul_i32 s61, s{S_CG}, 160')
    else:
        p(f's_mul_i32 s61, s{S_CG}, 448')
    for i in range(4, 12):
        base = 64 * (4 * i - 18)
        dst = VOFF + i if i > 4 else 8
        if base >= 0:
            p(f'v_add_u32 v3, {base}, v7')
        else:
            p(f'v_subrev_u32 v3, {-base}, v7')
            p('v_max_i32 v3, 0, v3')
        p('v_mul_u32_u24 v4, 2185, v3')
        p('v_lshrrev_b32 v4, 16, v4')
        p('v_mul_u32_u24 v5, 30, v4')
        p('v_sub_u32 v5, v3, v5')
        p('v_lshrrev_b32 v3, 1, v4')
        p('v_xor_b32 v3, v3, v4')
        p('v_and_b32 v3, 4, v3')
        p('v_mul_u32_u24 v3, 3, v3')
        p('v_xor_b32 v4, v3, v4')
        p('v_mul_u32_u24 v4, s60, v4')
        if attn:
            p('v_mul_u32_u24 v3, 205, v5')
            p('v_lshrrev_b32 v3, 11, v3')
            p('v_mul_u32_u24 v3, 1120, v3')
            p('v_lshlrev_b32 v5, 4, v5')
            p('v_add3_u32 v5, v5, v3, s61')
        else:
            p('v_lshlrev_b32 v5, 4, v5')
            p('v_add_u32 v5, s61, v5')
            p('v_min_u32 v5, 3440, v5')
        p(f'v_add_u32 v{dst}, v4, v5')
    p('s_cmp_lt_u32 s57, 2')
    p('s_cselect_b64 vcc, -1, 0')
    p(f'v_cndmask_b32 v{VOFF+4}, v8, v6, vcc')
    p('s_lshl_b32 s62, s57, 8')
    p('s_add_u32 s62, s62, s2')
    p('s_cmp_lt_u32 s62, 592')
    p('s_cselect_b32 s63, 1, 0')
    p('s_cmp_lt_u32 s57, 3')
    p('s_cselect_b32 s63, s63, 0')
    p('s_and_b32 s64, s62, 7')
    p('s_lshr_b32 s65, s62, 3')
    p('s_lshl_b32 s66, s65, 5')
    p('s_mov_b32 s67, 16')
    p('s_mov_b32 s68, 4')
    p('s_mul_i32 s69, s64, 54')
    p('s_add_u32 s69, s69, s65')
    p('s_mul_i32 s69, s69, 5120')
    p(f's_add_u32 s69, s69, {W2_OFF}')
    p('s_mov_b32 s70, 0')
    p('s_cmp_lt_u32 s65, 54')
    p(f's_cbranch_scc1 L_unit_done_{tag}')
    p('s_sub_u32 s65, s65, 54')
    p('s_mov_b32 s70, 1')
    p('s_mul_i32 s69, s64, 20')
    p('s_add_u32 s69, s69, s65')
    p('s_mul_i32 s69, s69, 5120')
    p(f's_add_u32 s69, s69, {WO_OFF}')
    p('s_mul_i32 s66, s65, 40')
    p('s_mov_b32 s67, 20')
    p('s_cmp_lt_u32 s65, 16')
    p(f's_cbranch_scc1 L_unit_done_{tag}')
    p('s_sub_u32 s65, s65, 16')
    p('s_mul_i32 s66, s65, 160')
    p('s_add_u32 s66, s66, 16')
    p('s_mov_b32 s67, 80')
    p('s_mov_b32 s68, 20')
    p.label(f'L_unit_done_{tag}')
    p('s_mul_i32 s71, s64, 160')
    p('s_movk_i32 s58, 1280')
    for i in range(5):
        p(f'v_add_u32 v3, {64*i}, v{VL}')
        p('v_mul_u32_u24 v4, 6554, v3')
        p('v_lshrrev_b32 v4, 16, v4')
        p('v_mul_u32_u24 v5, 10, v4')
        p('v_sub_u32 v5, v3, v5')
        p('v_lshlrev_b32 v5, 4, v5')
        p('v_add_u32 v5, s71, v5')
        p('v_lshrrev_b32 v3, 4, v4')
        p('v_mul_u32_u24 v3, s67, v3')
        p('v_bfe_u32 v6, v4, 2, 2')
        p('v_mul_u32_u24 v6, s68, v6')
        p('v_and_b32 v4, 3, v4')
        p('v_add3_u32 v3, v3, v6, v4')
        p('v_add_u32 v3, s66, v3')
        p('v_mul_u32_u24 v3, s58, v3')
        p(f'v_add_u32 v{22+i}, v3, v5')
    p(f'v_lshrrev_b32 v3, 2, v{VL}')
    p('v_mul_u32_u24 v3, 160, v3')
    p('s_mul_i32 s72, s57, 5120')
    p(f's_add_u32 s72, s72, {SCR}')
    p('v_add_u32 v3, s72, v3')
    p(f'v_and_b32 v4, 3, v{VL}')
    p('v_lshl_add_u32 v27, v4, 4, v3')
    p('v_lshl_add_u32 v28, v4, 3, v3')
    p(f'v_lshlrev_b32 v29, 4, v{VL}')
    p('v_add_u32 v30, 4096, v29')
    if attn:
        p(f's_lshl_b32 s58, s{S_RB}, 3')
        p(f's_add_u32 s58, s58, s{S_CG}')
        p('s_lshl_b32 s58, s58, 4')
        p('s_lshl_b32 s59, s57, 2')
        p('s_add_u32 s58, s58, s59')
        p(f'v_lshrrev_b32 v3, 4, v{VL}')
        p('v_add_u32 v31, s58, v3')
        p('s_movk_i32 s58, 1280')
        p('v_mul_u32_u24 v3, s58, v31')
        p(f'v_and_b32 v4, 15, v{VL}')
        p('v_lshlrev_b32 v33, 4, v4')
        p('v_add_u32 v32, v3, v33')
    p('s_waitcnt lgkmcnt(0)')
    if attn:
        srd(p, SRD_X, S_AX, 2048 * 1280)
        srd(p, SRD_W, S_WQKV, 640 * 3840)
    else:
        srd(p, SRD_X, S_AX, 2048 * 1280)
        srd(p, SRD_W, S_W1, 640 * 3456)
    p('s_cmp_lt_u32 s57, 2')
    for k in range(3):
        p(f's_cselect_b32 s{SRD_I4+k}, s{SRD_X+k}, s{SRD_W+k}')
    p(f's_mov_b32 s{SRD_I4+3}, 0x20000')
    p('s_movk_i32 s73, 128')
    p('s_cselect_b32 s73, s73, %d' % (64 * rowstride))
    p('s_mov_b32 s74, 0')
    p('s_mov_b32 s75, 0')
    p('s_mov_b32 s76, 0')
    p('s_lshl_b32 s77, s57, 10')

    def issue_stage(st):
        slot = st % 3
        for i in range(12):
            p(f's_add_u32 m0, s77, {slot*SLOT + i*4096}')
            if i < 4:
                if i == 0:
                    p('s_nop 0')
                p(f'buffer_load_dwordx4 v{VOFF+i}, s[{SRD_X}:{SRD_X+3}], s74 offen lds')
            elif i == 4:
                p(f'buffer_load_dwordx4 v{VOFF+i}, s[{SRD_I4}:{SRD_I4+3}], s76 offen lds')
            else:
                p(f'buffer_load_dwordx4 v{VOFF+i}, s[{SRD_W}:{SRD_W+3}], s75 offen lds')
        p('s_add_u32 s74, s74, 128')
        p(f's_add_u32 s75, s75, {64*rowstride}')
        p('s_add_u32 s76, s76, s73')

    stamp(p, 0)
    for st in range(3):
        issue_stage(st)
    srd(p, SRD_WS, S_WS, WS_USED)
    p('s_cmp_eq_u32 s70, 0')
    p(f's_cselect_b32 s{SRD_A}, s{S_W2}, s{S_WO}')
    p(f's_cselect_b32 s{SRD_A+1}, s{S_W2+1}, s{S_WO+1}')
    p(f's_mov_b32 s{SRD_A+2}, {1728*1280}')
    p(f's_cselect_b32 s{SRD_A+2}, s{SRD_A+2}, {640*1280}')
    p(f's_mov_b32 s{SRD_A+3}, 0x20000')
    p('s_cmp_eq_u32 s63, 0')
    p(f's_cbranch_scc1 L_nounit_ld_{tag}')
    for i in range(5):
        p(f's_add_u32 m0, s72, {i*1024}')
        p('s_nop 0')
        p(f'buffer_load_dwordx4 v{22+i}, s[{SRD_A}:{SRD_A+3}], 0 offen lds')
    p.label(f'L_nounit_ld_{tag}')
    TG = 0
    GX, GW = 40, 60
    if attn:
        srd(p, SRD_B, S_GW, 1280)
        for j in range(5):
            p(f'buffer_load_dwordx4 v[{GX+4*j}:{GX+4*j+3}], v32, s[{SRD_X}:{SRD_X+3}], 0 offen offset:{256*j}')
            p(f'buffer_load_dwordx4 v[{GW+4*j}:{GW+4*j+3}], v33, s[{SRD_B}:{SRD_B+3}], 0 offen offset:{256*j}')
        TG = 10

    def wait_vm(n_nounit, n_unit, uid):
        if n_nounit == n_unit:
            p(f's_waitcnt vmcnt({n_unit})')
            return
        p('s_cmp_eq_u32 s63, 0')
        p(f's_cbranch_scc1 L_w{uid}a_{tag}')
        p(f's_waitcnt vmcnt({n_unit})')
        p(f's_branch L_w{uid}b_{tag}')
        p.label(f'L_w{uid}a_{tag}')
        p(f's_waitcnt vmcnt({n_nounit})')
        p.label(f'L_w{uid}b_{tag}')

    wait_vm(24 + TG, 24 + TG + 5, 'i')
    stamp(p, 1)
    p('s_barrier')
    NST = (1 if attn else 0)
    for j in range(9):
        if j in (0, 1):
            wait_vm(12 + TG, 12 + TG + 5, j)
        elif j in (3, 4):
            wait_vm(12 + NST, 12 + NST + 5, j)
        elif j <= 6:
            p('s_waitcnt vmcnt(12)')
        elif j == 7:
            p('s_waitcnt vmcnt(12)')
        else:
            p('s_waitcnt vmcnt(0)')
        p('s_barrier')
        if j + 3 <= 9:
            issue_stage(j + 3)
        if j == 2:
            p('s_cmp_eq_u32 s63, 0')
            p(f's_cbranch_scc1 L_nounit_{tag}')
            for f in range(5):
                a, off = (27, [0, 8, 64, 72][f]) if f < 4 else (28, 128)
                p(f'ds_read_b64_tr_b16 v[{84+4*f}:{85+4*f}], v{a} offset:{off}')
                p(f'ds_read_b64_tr_b16 v[{86+4*f}:{87+4*f}], v{a} offset:{off+2560}')
            for f in range(5):
                p(f's_waitcnt lgkmcnt({8-2*f})')
                if f < 4:
                    p(f'buffer_store_dwordx4 v[{84+4*f}:{87+4*f}], v29, s[{SRD_WS}:{SRD_WS+3}], s69 offen offset:{1024*f}')
                else:
                    p(f'buffer_store_dwordx4 v[{84+4*f}:{87+4*f}], v30, s[{SRD_WS}:{SRD_WS+3}], s69 offen')
            p.label(f'L_nounit_{tag}')
            if attn:
                gate_job(p, GX, GW)
    stamp(p, 2)
    if CFG['PROF']:
        prof_store(p, 3, 'LD' + tag, SRD_WS)
    p('s_endpgm')


def prof_store(p, n, tag, srdws, sbase=90):
    p('s_waitcnt lgkmcnt(0) vmcnt(0)')
    p(f's_mov_b32 s{srdws+2}, 0x10000000')
    p(f's_lshl_b32 s86, s2, 3')
    p(f's_add_u32 s86, s86, s{S_WAVE}')
    p(f's_lshl_b32 s86, s86, 6')
    p(f's_add_u32 s86, s86, {PROF_OFF + (0 if not tag.startswith("K2") else (1 << 20))}')
    p('v_mov_b32 v1, 0')
    p('v_mov_b32 v0, s88')
    p(f'buffer_store_dword v0, v1, s[{srdws}:{srdws+3}], s86 offen offset:60')
    for i in range(n):
        p(f'v_mov_b32 v0, s{sbase+2*i}')
        p(f'buffer_store_dword v0, v1, s[{srdws}:{srdws+3}], s86 offen offset:{4*i}')
    p('s_waitcnt vmcnt(0)')


def gate_job(p, GX, GW):
    T = 104
    p('v_mov_b32 v34, 0')
    p('v_mov_b32 v35, 0')
    p('v_mov_b32 v36, 0x3f803f80')
    p('s_mov_b32 s78, 0xffff0000')
    for d in range(20):
        x, w = GX + d, GW + d
        t = T + 6 * (d & 1)
        p(f'v_lshlrev_b32 v{t}, 16, v{x}')
        p(f'v_and_b32 v{t+1}, s78, v{x}')
        p(f'v_lshlrev_b32 v{t+2}, 16, v{w}')
        p(f'v_and_b32 v{t+3}, s78, v{w}')
        p(f'v_pk_mul_f32 v[{t}:{t+1}], v[{t}:{t+1}], v[{t+2}:{t+3}]')
        p(f'v_cvt_pk_bf16_f32 v{t+4}, v{t}, v{t+1}')
        acc = 34 + (d & 1)
        p(f'v_dot2_f32_bf16 v{acc}, v{t+4}, v36, v{acc}')
    p('v_add_f32 v34, v34, v35')
    for sh in (8, 4, 2, 1):
        p(f'v_add_f32_dpp v34, v34, v34 row_ror:{sh} row_mask:0xf bank_mask:0xf')
    p('v_cvt_pk_bf16_f32 v35, v34, v34')
    p('v_lshlrev_b32 v35, 16, v35')
    p(f'v_mul_f32 v35, {hexf(-math.log2(math.e))}, v35')
    p('v_exp_f32 v35, v35')
    p('v_add_f32 v35, 1.0, v35')
    p('v_rcp_f32 v35, v35')
    p('v_cvt_pk_bf16_f32 v35, v35, v35')
    p('v_lshlrev_b32 v38, 16, v35')
    p('v_sub_f32 v39, 1.0, v38')
    p('v_cvt_pk_bf16_f32 v39, v39, v39')
    p('v_lshlrev_b32 v39, 16, v39')
    p('v_lshlrev_b32 v37, 3, v31')
    p(f'v_add_u32 v37, {G_OFF}, v37')
    p(f'buffer_store_dwordx2 v[38:39], v37, s[{SRD_WS}:{SRD_WS+3}], 0 offen')


A_QM = lambda h, t: 0 + (h * 4 + t) * 4
A_KM = lambda h, kt: 32 + (h * 5 + kt) * 4
A_QKT = lambda kt: 72 + 4 * kt
A_VM = lambda h, kt: 92 + (h * 5 + kt) * 4
A_VT = lambda kt: 132 + 4 * kt
WF = lambda f: 152 + 4 * f
XF = lambda b, t: 184 + 20 * b + 4 * t
V_X0, V_X1, V_W, V_WA, V_WB = 224, 225, 226, 227, 228
V_BPREV, V_BCUR, V_BFIRST, V_SEL = 232, 236, 240, 244
F_ACC = lambda f, t: (f * 4 + t) * 4


class LgkmTracker:
    def __init__(self, p):
        self.p = p
        self.q = []

    def issue(self, tag):
        self.q.append(tag)

    def need(self, tags):
        idx = -1
        for i, t in enumerate(self.q):
            if t in tags:
                idx = i
        if idx < 0:
            return
        n = len(self.q) - 1 - idx
        self.p(f's_waitcnt lgkmcnt({min(n, 15)})')
        keep = min(n, 15)
        self.q = self.q[len(self.q) - keep:] if keep else []

    def drain(self):
        self.p('s_waitcnt lgkmcnt(0)')
        self.q = []


def consumer_loop(p, attn):
    tag = 'A' if attn else 'F'
    NT = 5 if attn else 4
    if attn:
        tiles = []
        for h in range(2):
            tiles.append([(A_QM(h, t), t + 1, 'F') for t in range(4)])
        for h in range(2):
            tiles.append([(A_KM(h, k), k, 'F') for k in range(5)])
        tiles.append([(A_QKT(k), k, 'F') for k in range(5)])
        for h in range(2):
            tiles.append([(A_VM(h, k), k, 'T') for k in range(5)])
        tiles.append([(A_VT(k), k, 'T') for k in range(5)])
        waddr = [(V_W, 0), (V_W, 40), (V_W, 160), (V_W, 200), (V_WA, 0), (V_W, 320), (V_W, 360), (V_WB, 0)]
    else:
        tiles = [[(F_ACC(f, t), t, 'F') for t in range(4)] for f in range(7)]
        waddr = [(V_W, 32 * f) for f in range(6)] + [(V_WA, 0)]
    NF = len(tiles)

    lg = LgkmTracker(p)

    def rd_w(f, s):
        a, off = waddr[f]
        off += s * 32 * WROW
        p(f'ds_read_b64_tr_b16 v[{WF(f)}:{WF(f)+1}], v{a} offset:{off}')
        lg.issue(('w', f))
        p(f'ds_read_b64_tr_b16 v[{WF(f)+2}:{WF(f)+3}], v{a} offset:{off + 8*WROW}')
        lg.issue(('w', f))

    def rd_x(t, s):
        p(f'ds_read_b128 v[{XF(s,t)}:{XF(s,t)+3}], v{V_X1 if s else V_X0} offset:{2048*t}')
        lg.issue(('x', s, t))

    def xslots(s):
        pos = []
        for f in range(0 if s == 0 else 2, NF):
            for n in (1, 3):
                pos.append((f, n))
        return pos[:NT]

    xs = xslots(1)
    rd_w(0, 0)
    rd_w(1, 0)
    t = 0
    for f in range(2, NF):
        for n in range(len(tiles[f])):
            if (f, n) in xs:
                rd_x(t, 0)
                t += 1
        rd_w(f, 0)
    assert t == NT
    p('s_mov_b32 s52, 0')
    p('s_mov_b32 s53, 0')
    p(f's_mov_b32 s51, {(-2*SLOT) & 0xffffffff}')
    p.label(f'L_loop_{tag}')

    def step(s):
        nxt = 1 - s
        xs = xslots(s)
        t_next = 0
        for f in range(NF):
            lg.need({('w', f)} | ({('x', s, t) for t in range(NT)} if f == 0 else set()))
            for n, (acc, t, o) in enumerate(tiles[f]):
                w, x = f'v[{WF(f)}:{WF(f)+3}]', f'v[{XF(s,t)}:{XF(s,t)+3}]'
                a, b = (w, x) if o == 'F' else (x, w)
                p(f'v_mfma_f32_16x16x32_bf16 v[{acc}:{acc+3}], {a}, {b}, v[{acc}:{acc+3}]')
                if (f, n) in xs:
                    rd_x(t_next, nxt)
                    t_next += 1
            if s == 1 and f == 0:
                p(f's_add_u32 s53, s53, {SLOT}')
                p(f's_cmp_eq_u32 s53, {3*SLOT}')
                p(f's_cselect_b32 s54, s51, {SLOT}')
                p('s_cselect_b32 s53, 0, s53')
            if s == 1 and f == 1:
                lg.drain()
                p('s_barrier')
                for a in ([V_X0, V_X1, V_W, V_WA] + ([V_WB] if attn else [])):
                    p(f'v_add_u32 v{a}, s54, v{a}')
                rd_w(0, 0)
                rd_w(1, 0)
            elif s == 1 and f == 0:
                pass
            else:
                rd_w(f, nxt)
        assert t_next == NT

    n0 = len(p.lines)
    q_head = list(lg.q)
    step(0)
    step(1)
    body1 = p.lines[n0:]
    q_end = list(lg.q)
    assert q_end == q_head, (q_end, q_head)
    p('s_add_u32 s52, s52, 1')
    p('s_cmp_lt_u32 s52, 10')
    p(f's_cbranch_scc1 L_loop_{tag}')
    lg.drain()


def check_loop_waits():
    pass


def attn_prologue(p):
    p(f's_and_b32 s55, s{S_WAVE}, 1')
    p(f's_lshr_b32 s56, s{S_WAVE}, 1')
    p('v_and_b32 v3, 15, v2')
    p('v_lshrrev_b32 v4, 4, v2')
    p('v_lshrrev_b32 v5, 1, v3')
    p('v_xor_b32 v5, v5, v4')
    p('v_lshlrev_b32 v5, 4, v5')
    p('v_lshl_add_u32 v5, v3, 7, v5')
    p('s_lshl_b32 s57, s56, 13')
    p(f'v_add_u32 v{V_X0}, s57, v5')
    p(f'v_xor_b32 v{V_X1}, 64, v{V_X0}')
    p('v_lshrrev_b32 v5, 5, v2')
    p('v_lshlrev_b32 v5, 4, v5')
    p('v_bfe_u32 v6, v2, 4, 1')
    p('v_lshl_add_u32 v5, v6, 2, v5')
    p('v_bfe_u32 v6, v2, 2, 2')
    p('v_add_u32 v5, v5, v6')
    p(f'v_mul_u32_u24 v5, {WROW}, v5')
    p('s_mul_i32 s57, s55, 80')
    p(f's_add_u32 s57, s57, {XREG}')
    p('v_add_u32 v5, s57, v5')
    p('v_and_b32 v6, 3, v2')
    p(f'v_lshl_add_u32 v{V_W}, v6, 3, v5')
    p('v_and_b32 v7, 1, v6')
    p('v_mul_u32_u24 v7, 40, v7')
    p('v_add_u32 v7, v7, v5')
    p('v_lshrrev_b32 v6, 1, v6')
    p('v_mul_u32_u24 v6, 160, v6')
    p(f'v_add3_u32 v{V_WA}, v7, v6, 32')
    p(f'v_add_u32 v{V_WB}, 352, v7')
    p('v_lshlrev_b32 v5, 2, v4')
    p('v_sub_u32 v5, v3, v5')
    p(f's_mov_b32 s58, {hexf(-1e30)}')
    p('v_mov_b32 v8, s58')
    p(f's_or_b32 s59, s{S_RB}, s56')
    p('s_cmp_eq_u32 s59, 0')
    p('s_cselect_b64 s[60:61], -1, 0')
    for r in range(4):
        p(f'v_subrev_u32 v6, {r}, v5')
        p('v_and_b32 v7, 1, v6')
        p('v_cmp_eq_u32 s[62:63], 0, v7')
        p('v_cmp_ge_i32 s[64:65], v6, 0')
        p('s_and_b64 s[66:67], s[62:63], s[64:65]')
        p('s_andn2_b64 s[68:69], s[62:63], s[64:65]')
        p(f'v_cndmask_b32 v{V_BCUR+r}, v8, 0, s[66:67]')
        p(f'v_cndmask_b32 v{V_BPREV+r}, v8, 0, s[68:69]')
        p(f'v_cndmask_b32 v{V_BFIRST+r}, v{V_BPREV+r}, v8, s[60:61]')
    p('v_and_b32 v7, 1, v3')
    p('v_cmp_eq_u32 s[62:63], 0, v7')
    for k, (lo, hi) in enumerate([(0x0c0c0100, 0x01000c0c), (0x0c0c0302, 0x03020c0c)]):
        p(f'v_mov_b32 v6, {hex(hi)}')
        p(f'v_mov_b32 v9, {hex(lo)}')
        p('v_cndmask_b32 v9, v6, v9, s[62:63]')
        p('v_sub_u32 v6, v5, v7')
        if k:
            p('v_subrev_u32 v6, 2, v6')
        p('v_cmp_ge_i32 s[64:65], v6, 0')
        p('v_mov_b32 v6, 0x0c0c0c0c')
        p(f'v_cndmask_b32 v{V_SEL+k}, v9, v6, s[64:65]')
        p(f'v_cndmask_b32 v{V_SEL+2+k}, v6, v9, s[64:65]')
    p('v_lshlrev_b32 v248, 4, v2')
    for r in range(152):
        p(f'v_mov_b32 v{r}, 0')


def attn_epilogue(p):
    cvt = lambda d, a: p(f'v_cvt_pk_bf16_f32 v{d}, v{a}, v{a+1}')
    TQ = 216
    p('s_nop 7')
    for kt in range(5):
        for h in range(2):
            b = A_KM(h, kt)
            cvt(b, b)
            cvt(b + 1, b + 2)
        t = A_QKT(kt)
        cvt(t, t)
        cvt(t + 1, t + 2)
    for kt in range(5):
        t = A_QKT(kt)
        k0 = A_KM(0, kt)
        p(f'v_mov_b32 v{k0+2}, v{t}')
        p(f'v_mov_b32 v{k0+3}, v{t+1}')
    for h in range(2):
        for t in range(4):
            b = A_QM(h, t)
            cvt(b, b)
            cvt(b + 1, b + 2)
    for kt in range(5):
        t = A_QKT(kt)
        k0 = A_KM(0, kt)
        p(f'v_permlane32_swap_b32 v{t}, v{k0+2}')
        p(f'v_permlane32_swap_b32 v{t+1}, v{k0+3}')
    for h in range(2):
        for kt in range(5):
            b = A_VM(h, kt)
            d = A_VM(h, 0) + 2 * kt
            cvt(d, b)
            cvt(d + 1, b + 2)
    for kt in range(5):
        k0, k1 = A_KM(0, kt), A_KM(1, kt)
        p(f'v_mov_b32 v{k1+2}, v{k0+2}')
        p(f'v_mov_b32 v{k1+3}, v{k0+3}')
    p('s_mov_b32 s60, 0x0000ffff')
    p('s_mov_b32 s61, 0')
    p('s_mov_b32 s62, 0xffff0000')
    p('s_mov_b32 s63, 0')
    for t in range(4):
        for h in range(2):
            q, x = A_QM(h, t), A_QKT(t + 1)
            p(f'v_cndmask_b32 v{q+2}, 0, v{x}, s[{60+2*h}:{61+2*h}]')
            p(f'v_cndmask_b32 v{q+3}, 0, v{x+1}, s[{60+2*h}:{61+2*h}]')
    for kt in range(5):
        b = A_VT(kt)
        d = A_VT(0) + 2 * kt
        cvt(d, b)
        cvt(d + 1, b + 2)
    S = lambda t, h: 152 + (t * 2 + h) * 8
    for t in range(4):
        for h in range(2):
            q = A_QM(h, t)
            bp = V_BFIRST if t == 0 else V_BPREV
            kp, kc = A_KM(h, t), A_KM(h, t + 1)
            p(f'v_mfma_f32_16x16x32_bf16 v[{S(t,h)}:{S(t,h)+3}], v[{kp}:{kp+3}], v[{q}:{q+3}], v[{bp}:{bp+3}]')
            p(f'v_mfma_f32_16x16x32_bf16 v[{S(t,h)+4}:{S(t,h)+7}], v[{kc}:{kc+3}], v[{q}:{q+3}], v[{V_BCUR}:{V_BCUR+3}]')
    cs = (20 ** -0.5) * math.log2(math.e)
    p(f's_mov_b32 s64, {hexf(cs)}')
    inst = [(t, h) for t in range(4) for h in range(2)]
    for (t, h) in inst:
        s = S(t, h)
        p(f'v_max3_f32 v{s}, v{s}, v{s+1}, v{s+4}')
        p(f'v_max3_f32 v{s+2}, v{s+2}, v{s+3}, v{s+6}')
    for (t, h) in inst:
        s = S(t, h)
        p(f'v_max_f32 v{s}, v{s}, v{s+5}')
        p(f'v_max_f32 v{s+1}, v{s+2}, v{s+7}')
    for (t, h) in inst:
        s = S(t, h)
        p(f'v_max_f32 v{s+2}, v{s}, v{s+1}')

    def cross(groups, op, mid):
        for (A, B, C, D) in groups:
            p(f'v_permlane32_swap_b32 v{A}, v{B}')
            p(f'v_permlane32_swap_b32 v{C}, v{D}')
        for (A, B, C, D) in groups:
            p(f'{op} v{A}, v{A}, v{B}')
            p(f'{op} v{C}, v{C}, v{D}')
        for (A, B, C, D) in groups:
            p(f'v_permlane16_swap_b32 v{A}, v{C}')
        for (A, B, C, D) in groups:
            p(f'{op} v{A}, v{A}, v{C}')
        for (A, B, C, D) in groups:
            mid(A)
        for (A, B, C, D) in groups:
            p(f'v_mov_b32 v{C}, v{A}')
        for (A, B, C, D) in groups:
            p(f'v_permlane16_swap_b32 v{A}, v{C}')
        for (A, B, C, D) in groups:
            p(f'v_mov_b32 v{B}, v{A}')
            p(f'v_mov_b32 v{D}, v{C}')
        for (A, B, C, D) in groups:
            p(f'v_permlane32_swap_b32 v{A}, v{B}')
            p(f'v_permlane32_swap_b32 v{C}, v{D}')

    grp = lambda o: [tuple(S(t, h) + o for (t, h) in inst[0:4]), tuple(S(t, h) + o for (t, h) in inst[4:8])]
    cross(grp(2), 'v_max_f32', lambda A: p(f'v_mul_f32 v{A}, s64, v{A}'))
    for (t, h) in inst:
        s = S(t, h)
        p(f'v_fma_f32 v{s}, v{s}, s64, -v{s+2}')
        p(f'v_fma_f32 v{s+1}, v{s+1}, s64, -v{s+2}')
    for (t, h) in inst:
        s = S(t, h)
        p(f'v_exp_f32 v{s}, v{s}')
        p(f'v_exp_f32 v{s+1}, v{s+1}')
    for (t, h) in inst:
        s = S(t, h)
        p(f'v_add_f32 v{s+2}, v{s}, v{s+1}')
    cross(grp(2), 'v_add_f32', lambda A: p(f'v_rcp_f32 v{A}, v{A}'))
    for (t, h) in inst:
        s = S(t, h)
        p(f'v_mul_f32 v{s}, v{s}, v{s+2}')
        p(f'v_mul_f32 v{s+1}, v{s+1}, v{s+2}')
    for (t, h) in inst:
        s = S(t, h)
        p(f'v_cvt_pk_bf16_f32 v{s+2}, v{s}, v{s+1}')
    for (t, h) in inst:
        s = S(t, h)
        p(f'v_perm_b32 v{s+4}, v{s+2}, v{s+2}, v{V_SEL}')
        p(f'v_perm_b32 v{s+5}, v{s+2}, v{s+2}, v{V_SEL+1}')
        p(f'v_perm_b32 v{s+6}, v{s+2}, v{s+2}, v{V_SEL+2}')
        p(f'v_perm_b32 v{s+7}, v{s+2}, v{s+2}, v{V_SEL+3}')
    for (t, h) in inst:
        s = S(t, h)
        va = A_VM(h, 0) + 2 * t
        vt = A_VT(0) + 2 * t
        om, ot = A_QM(h, t), A_KM(h, t)
        p(f'v_mfma_f32_16x16x32_bf16 v[{om}:{om+3}], v[{va}:{va+3}], v[{s+4}:{s+7}], 0')
        p(f'v_mfma_f32_16x16x32_bf16 v[{ot}:{ot+3}], v[{vt}:{vt+3}], v[{s+4}:{s+7}], 0')
    p(f's_lshl_b32 s65, s{S_RB}, 3')
    p('s_lshl_b32 s66, s56, 2')
    p('s_add_u32 s65, s65, s66')
    p('s_mul_i32 s66, s65, 20')
    p(f's_lshl_b32 s67, s{S_CG}, 1')
    p('s_add_u32 s67, s67, s55')
    p('s_add_u32 s66, s66, s67')
    p('s_lshl_b32 s66, s66, 10')
    p(f's_add_u32 s66, s66, {OA_OFF}')
    p(f's_and_b32 s67, s{S_CG}, 1')
    p('s_lshl_b32 s67, s67, 1')
    p('s_add_u32 s67, s67, s65')
    p('s_mul_i32 s67, s67, 20')
    p(f's_lshr_b32 s68, s{S_CG}, 1')
    p('s_add_u32 s67, s67, s68')
    p('s_add_u32 s67, s67, 16')
    p('s_lshl_b32 s67, s67, 10')
    p('s_lshl_b32 s68, s55, 9')
    p('s_add_u32 s67, s67, s68')
    p(f's_add_u32 s67, s67, {OA_OFF}')
    for t in range(4):
        for h in range(2):
            o = A_QM(h, t)
            d = S(t, 0) + 2 * h
            p(f'v_cvt_pk_bf16_f32 v{d}, v{o}, v{o+1}')
            p(f'v_cvt_pk_bf16_f32 v{d+1}, v{o+2}, v{o+3}')
        d = S(t, 0)
        p(f'buffer_store_dwordx4 v[{d}:{d+3}], v248, s[{SRD_WS}:{SRD_WS+3}], s66 offen')
        p('s_add_u32 s66, s66, 20480')
    for pr in range(2):
        d = S(2 * pr, 1)
        for u in range(2):
            t = 2 * pr + u
            o0, o1 = A_KM(0, t), A_KM(1, t)
            for rr in range(4):
                p(f'v_cndmask_b32 v{o0+rr}, v{o0+rr}, v{o1+rr}, s[62:63]')
            p(f'v_cvt_pk_bf16_f32 v{d+2*u}, v{o0}, v{o0+1}')
            p(f'v_cvt_pk_bf16_f32 v{d+2*u+1}, v{o0+2}, v{o0+3}')
    p('s_mov_b32 exec_hi, 0')
    for pr in range(2):
        d = S(2 * pr, 1)
        p(f'buffer_store_dwordx4 v[{d}:{d+3}], v248, s[{SRD_WS}:{SRD_WS+3}], s67 offen')
        p('s_add_u32 s67, s67, 20480')
    p('s_mov_b32 exec_hi, -1')


def ffn_prologue(p):
    p(f's_and_b32 s55, s{S_WAVE}, 1')
    p(f's_lshr_b32 s56, s{S_WAVE}, 1')
    p('v_and_b32 v3, 15, v2')
    p('v_lshrrev_b32 v4, 4, v2')
    p('v_lshrrev_b32 v5, 1, v3')
    p('v_xor_b32 v5, v5, v4')
    p('v_lshlrev_b32 v5, 4, v5')
    p('v_lshl_add_u32 v5, v3, 7, v5')
    p('s_lshl_b32 s57, s56, 13')
    p(f'v_add_u32 v{V_X0}, s57, v5')
    p(f'v_xor_b32 v{V_X1}, 64, v{V_X0}')
    p('v_lshrrev_b32 v5, 5, v2')
    p('v_lshlrev_b32 v5, 4, v5')
    p('v_bfe_u32 v6, v2, 4, 1')
    p('v_lshl_add_u32 v5, v6, 2, v5')
    p('v_bfe_u32 v6, v2, 2, 2')
    p('v_add_u32 v5, v5, v6')
    p(f'v_mul_u32_u24 v5, {WROW}, v5')
    p(f'v_add_u32 v5, {XREG}, v5')
    p('v_and_b32 v6, 3, v2')
    p('v_lshl_add_u32 v5, v6, 3, v5')
    p('s_lshl_b32 s57, s55, 8')
    p(f'v_add_u32 v{V_W}, s57, v5')
    p('s_lshl_b32 s57, s55, 5')
    p('s_add_u32 s57, s57, 192')
    p(f'v_add_u32 v{V_WA}, s57, v5')
    p(f's_mul_i32 s57, s{S_CG}, 448')
    p('v_lshlrev_b32 v5, 3, v4')
    p('v_add_u32 v5, s57, v5')
    p('s_lshl_b32 s57, s55, 8')
    p('v_add_u32 v6, s57, v5')
    p('s_lshl_b32 s57, s55, 5')
    p('s_add_u32 s57, s57, 192')
    p('v_add_u32 v7, s57, v5')
    p('v_lshlrev_b32 v248, 4, v2')
    p('s_waitcnt lgkmcnt(0)')
    srd(p, SRD_A, S_B1, 3456)
    for f in range(7):
        if f < 6:
            p(f'buffer_load_dwordx2 v[{200+2*f}:{201+2*f}], v6, s[{SRD_A}:{SRD_A+3}], 0 offen offset:{32*f}')
        else:
            p(f'buffer_load_dwordx2 v[{200+2*f}:{201+2*f}], v7, s[{SRD_A}:{SRD_A+3}], 0 offen')
    p('s_mov_b32 s58, 0xffff0000')
    p('s_waitcnt vmcnt(0)')
    for f in range(7):
        for t in range(4):
            a = F_ACC(f, t)
            p(f'v_lshlrev_b32 v{a}, 16, v{200+2*f}')
            p(f'v_and_b32 v{a+1}, s58, v{200+2*f}')
            p(f'v_lshlrev_b32 v{a+2}, 16, v{201+2*f}')
            p(f'v_and_b32 v{a+3}, s58, v{201+2*f}')


def ffn_epilogue(p):
    k1 = -2.0 * math.sqrt(2.0 / math.pi) * math.log2(math.e)
    k2 = k1 * 0.044715
    C1, C2, ONE = 240, 242, 244
    for r in (0, 1):
        p(f'v_mov_b32 v{C1+r}, {hexf(k1)}')
        p(f'v_mov_b32 v{C2+r}, {hexf(k2)}')
        p(f'v_mov_b32 v{ONE+r}, 1.0')
    p('s_nop 5')
    p(f's_lshl_b32 s65, s{S_RB}, 3')
    p('s_lshl_b32 s66, s56, 2')
    p('s_add_u32 s65, s65, s66')
    p('s_mul_i32 s65, s65, 54')
    p(f's_mul_i32 s66, s{S_CG}, 7')
    p('s_add_u32 s67, s66, 3')
    p('s_lshl_b32 s68, s55, 2')
    p('s_add_u32 s66, s66, s68')
    p('s_add_u32 s69, s65, s67')
    p('s_lshl_b32 s69, s69, 10')
    p('s_lshl_b32 s68, s55, 3')
    p('s_add_u32 s69, s69, s68')
    p('s_add_u32 s68, s65, s66')
    p('s_lshl_b32 s68, s68, 10')

    def gelu(regs, tmp):
        for i, x in enumerate(regs):
            p(f'v_pk_mul_f32 v[{tmp+4*i}:{tmp+4*i+1}], v[{x}:{x+1}], v[{x}:{x+1}]')
        for i, x in enumerate(regs):
            p(f'v_pk_fma_f32 v[{tmp+4*i}:{tmp+4*i+1}], v[{tmp+4*i}:{tmp+4*i+1}], v[{C2}:{C2+1}], v[{C1}:{C1+1}]')
        for i, x in enumerate(regs):
            p(f'v_pk_mul_f32 v[{tmp+4*i}:{tmp+4*i+1}], v[{tmp+4*i}:{tmp+4*i+1}], v[{x}:{x+1}]')
        for i, x in enumerate(regs):
            p(f'v_exp_f32 v{tmp+4*i}, v{tmp+4*i}')
            p(f'v_exp_f32 v{tmp+4*i+1}, v{tmp+4*i+1}')
        for i, x in enumerate(regs):
            p(f'v_pk_add_f32 v[{tmp+4*i}:{tmp+4*i+1}], v[{tmp+4*i}:{tmp+4*i+1}], v[{ONE}:{ONE+1}]')
        for i, x in enumerate(regs):
            p(f'v_rcp_f32 v{tmp+4*i}, v{tmp+4*i}')
            p(f'v_rcp_f32 v{tmp+4*i+1}, v{tmp+4*i+1}')
        for i, x in enumerate(regs):
            p(f'v_pk_mul_f32 v[{x}:{x+1}], v[{tmp+4*i}:{tmp+4*i+1}], v[{x}:{x+1}]')

    OUT = 184
    n = 0
    for pr in range(3):
        p(f's_add_u32 s70, s66, {pr}')
        p('s_cmp_ge_u32 s70, 54')
        p(f's_cbranch_scc1 L_skip_pair{pr}')
        for t in range(4):
            a, b = F_ACC(2 * pr, t), F_ACC(2 * pr + 1, t)
            gelu([a, a + 2, b, b + 2], 152)
            o = OUT + 4 * (n % 4)
            n += 1
            p(f'v_cvt_pk_bf16_f32 v{o}, v{a}, v{a+1}')
            p(f'v_cvt_pk_bf16_f32 v{o+1}, v{a+2}, v{a+3}')
            p(f'v_cvt_pk_bf16_f32 v{o+2}, v{b}, v{b+1}')
            p(f'v_cvt_pk_bf16_f32 v{o+3}, v{b+2}, v{b+3}')
            p(f's_add_u32 s70, s68, {pr*1024 + t*54*1024}')
            p(f'buffer_store_dwordx4 v[{o}:{o+3}], v248, s[{SRD_WS}:{SRD_WS+3}], s70 offen')
        p.label(f'L_skip_pair{pr}')
    for t2 in range(2):
        a, b = F_ACC(6, 2 * t2), F_ACC(6, 2 * t2 + 1)
        gelu([a, a + 2, b, b + 2], 152)
        for u, x in enumerate((a, b)):
            o = OUT + 16 + 2 * ((2 * t2 + u) % 2)
            p(f'v_cvt_pk_bf16_f32 v{o}, v{x}, v{x+1}')
            p(f'v_cvt_pk_bf16_f32 v{o+1}, v{x+2}, v{x+3}')
            p(f's_add_u32 s70, s69, {(2*t2+u)*54*1024}')
            p(f'buffer_store_dwordx2 v[{o}:{o+1}], v248, s[{SRD_WS}:{SRD_WS+3}], s70 offen')


def gen_k1():
    p = Prog()
    p('s_cmp_ge_u32 s2, 256')
    p('s_cbranch_scc1 L_k1_end')
    p('s_load_dwordx4 s[4:7], s[0:1], 0')
    p('s_load_dwordx4 s[8:11], s[0:1], 16')
    p('s_load_dwordx4 s[12:15], s[0:1], 32')
    p('s_load_dwordx4 s[16:19], s[0:1], 48')
    p('s_load_dwordx2 s[20:21], s[0:1], 64')
    p('s_load_dwordx2 s[22:23], s[0:1], 88')
    if CFG['PROF']:
        p('s_memtime s[88:89]')
    p('v_lshrrev_b32 v1, 6, v0')
    p('v_and_b32 v2, 63, v0')
    p(f'v_readfirstlane_b32 s{S_WAVE}, v1')
    k1_decode(p)
    p(f's_cmp_eq_u32 s{S_WAVE}, 0')
    p('s_cbranch_scc0 L_nopf')
    p('v_mov_b32 v10, v2')
    code_prefetch(p, 'L_k1_body', 'L_k1_end', CFG.get('K1_BYTES', 20480), 10, 255, 84, 'k1')
    p.label('L_nopf')
    p.label('L_k1_body')
    p(f's_cmp_ge_u32 s{S_WAVE}, 4')
    p('s_cbranch_scc0 L_consumer')
    p(f's_cmp_eq_u32 s{S_TYPE}, 0')
    p('s_cbranch_scc1 L_loader_A')
    p('s_branch L_loader_F')
    p.label('L_consumer')
    p(f's_cmp_eq_u32 s{S_TYPE}, 0')
    p('s_cbranch_scc0 L_cons_F')
    attn_prologue(p)
    p('s_waitcnt lgkmcnt(0)')
    srd(p, SRD_WS, S_WS, WS_USED)
    stamp(p, 0)
    p('s_barrier')
    stamp(p, 1)
    consumer_loop(p, True)
    stamp(p, 2)
    attn_epilogue(p)
    stamp(p, 3)
    if CFG['PROF']:
        prof_store(p, 4, 'CA', SRD_WS)
    p('s_endpgm')
    p.label('L_cons_F')
    ffn_prologue(p)
    srd(p, SRD_WS, S_WS, WS_USED)
    stamp(p, 0)
    p('s_barrier')
    stamp(p, 1)
    consumer_loop(p, False)
    stamp(p, 2)
    ffn_epilogue(p)
    stamp(p, 3)
    if CFG['PROF']:
        prof_store(p, 4, 'CF', SRD_WS)
    p('s_endpgm')
    k1_loader(p, True)
    k1_loader(p, False)
    p.label('L_k1_end')
    p('s_endpgm')
    return p


def k2_stream(p, wave_a):
    NB = CFG['NBUF']
    tag = 'a' if wave_a else 'b'
    nsteps = 20 if wave_a else 18
    ACC = lambda t, f: K2_ACC + (t * 5 + f) * 4
    BA = lambda b, t: 36 * b + 4 * t
    BW = lambda b, f: 36 * b + 16 + 4 * f

    def ld_w(b, f):
        if f < 4:
            p(f'buffer_load_dwordx4 v[{BW(b,f)}:{BW(b,f)+3}], v{K2_VL}, s[12:15], s21 offen offset:{1024*f}')
        else:
            p(f'buffer_load_dwordx4 v[{BW(b,f)}:{BW(b,f)+3}], v{K2_VL2}, s[12:15], s21 offen')

    def ld_a(b, t):
        p(f'buffer_load_dwordx4 v[{BA(b,t)}:{BA(b,t)+3}], v{K2_VA+t}, s[12:15], s20 offen')

    def adv():
        p('s_add_u32 s20, s20, 1024')
        p('s_add_u32 s21, s21, 5120')

    for s in range(min(NB, nsteps)):
        for f in range(5):
            ld_w(s % NB, f)
        for t in range(4):
            ld_a(s % NB, t)
        adv()
    for r in range(80):
        p(f'v_mov_b32 v{K2_ACC+r}, 0')
    stamp(p, 1)
    for s in range(nsteps):
        b = s % NB
        issued = min(s + NB, nsteps)
        newer = (issued - s - 1) * 9
        p(f's_waitcnt vmcnt({newer})')
        more = s + NB < nsteps
        tail = wave_a and s >= 16
        for f in range(5):
            if not tail:
                for t in range(4):
                    acc = ACC(t, f)
                    p(f'v_mfma_f32_16x16x32_bf16 v[{acc}:{acc+3}], v[{BW(b,f)}:{BW(b,f)+3}], v[{BA(b,t)}:{BA(b,t)+3}], v[{acc}:{acc+3}]')
            else:
                for hgo in range(2):
                    for t in range(4):
                        acc = ACC(t, f)
                        w = BW(b, f) + 2 * hgo
                        a = BA(b, 2 * hgo + (t >> 1)) + 2 * (t & 1)
                        p(f'v_mfma_f32_16x16x16_bf16 v[{acc}:{acc+3}], v[{w}:{w+1}], v[{a}:{a+1}], v[{acc}:{acc+3}]')
            if more:
                ld_w(b, f)
        if more:
            for t in range(4):
                ld_a(b, t)
            adv()
    p('s_branch L_k2_reduce')


K2_ACC = 144
K2_VL, K2_VL2, K2_VA = 224, 225, 226
K2_G, K2_B2 = 230, 232
K2_LDS = 4 * 4 * 5120


def gen_k2():
    global K2_ACC
    NB = CFG['NBUF']
    assert NB * 36 + 80 <= 224
    K2_ACC = NB * 36
    p = Prog()
    p('s_cmp_ge_u32 s2, 256')
    p('s_cbranch_scc1 L_k2_end')
    p('s_load_dwordx2 s[4:5], s[0:1], 88')
    p('s_load_dwordx2 s[6:7], s[0:1], 72')
    p('s_load_dwordx2 s[8:9], s[0:1], 56')
    if CFG['PROF']:
        p('s_memtime s[88:89]')
    p('v_lshrrev_b32 v1, 6, v0')
    p('v_and_b32 v2, 63, v0')
    p(f'v_readfirstlane_b32 s{S_WAVE}, v1')
    p('s_and_b32 s52, s2, 7')
    p('s_lshr_b32 s53, s2, 3')
    if CFG['MAP2'] == '8x4':
        p('s_lshr_b32 s54, s52, 1')
        p('s_lshl_b32 s54, s54, 3')
        p('s_lshr_b32 s55, s53, 2')
        p('s_add_u32 s26, s54, s55')
        p('s_and_b32 s54, s52, 1')
        p('s_lshl_b32 s54, s54, 2')
        p('s_and_b32 s55, s53, 3')
        p('s_add_u32 s27, s54, s55')
    else:
        p('s_lshl_b32 s54, s52, 2')
        p('s_lshr_b32 s55, s53, 3')
        p('s_add_u32 s26, s54, s55')
        p('s_and_b32 s27, s53, 7')
    p(f's_cmp_eq_u32 s{S_WAVE}, 0')
    p('s_cbranch_scc0 L_k2_nopf')
    p('v_mov_b32 v10, v2')
    code_prefetch(p, 'L_k2_body', 'L_k2_end', CFG.get('K2_BYTES', 16384), 10, 255, 84, 'k2')
    p.label('L_k2_nopf')
    p.label('L_k2_body')
    p(f'v_lshlrev_b32 v{K2_VL}, 4, v2')
    p(f'v_add_u32 v{K2_VL2}, 4096, v{K2_VL}')
    p(f's_cmp_eq_u32 s{S_WAVE}, 0')
    p('s_mov_b32 s56, 20480')
    p('s_cselect_b32 s56, s56, 55296')
    p(f's_mov_b32 s57, {OA_OFF}')
    p(f's_cselect_b32 s57, s57, {H_OFF}')
    p(f's_mov_b32 s58, {WO_OFF}')
    p(f's_cselect_b32 s58, s58, {W2_OFF}')
    p('s_cselect_b32 s59, 20, 54')
    p(f's_mul_i32 s60, s{S_WAVE}, 18')
    p('s_cselect_b32 s60, 18, s60')
    p('s_sub_u32 s60, s60, 18')
    p('s_lshl_b32 s61, s26, 2')
    p('s_mul_i32 s61, s61, s56')
    p('s_add_u32 s61, s61, s57')
    p('s_lshl_b32 s62, s60, 10')
    p('s_add_u32 s20, s61, s62')
    p('s_mul_i32 s61, s27, s59')
    p('s_add_u32 s61, s61, s60')
    p('s_mul_i32 s61, s61, 5120')
    p('s_add_u32 s21, s61, s58')
    for t in range(4):
        p(f's_mul_i32 s62, s56, {t}')
        p(f'v_add_u32 v{K2_VA+t}, s62, v{K2_VL}')
    p('v_and_b32 v3, 15, v2')
    p('v_lshrrev_b32 v4, 4, v2')
    p('s_lshl_b32 s62, s26, 6')
    p(f's_lshl_b32 s63, s{S_WAVE}, 4')
    p('s_add_u32 s62, s62, s63')
    p('v_add_u32 v5, s62, v3')
    p('v_lshlrev_b32 v6, 3, v5')
    p(f'v_add_u32 v6, {G_OFF}, v6')
    p('s_mul_i32 s63, s27, 160')
    p('v_lshlrev_b32 v7, 4, v4')
    p('v_add_u32 v7, s63, v7')
    p('v_lshlrev_b32 v8, 3, v4')
    p('v_add_u32 v8, s63, v8')
    p('s_movk_i32 s63, 1280')
    p('v_mul_u32_u24 v5, s63, v5')
    p('v_add_u32 v242, v5, v7')
    p('v_add_u32 v243, v5, v8')
    p('s_waitcnt lgkmcnt(0)')
    srd(p, 12, 4, WS_USED)
    srd(p, 16, 8, 1280)
    srd(p, 28, 6, 2048 * 1280)
    stamp(p, 0)
    p(f'buffer_load_dwordx2 v[{K2_G}:{K2_G+1}], v6, s[12:15], 0 offen')
    p(f'buffer_load_dwordx4 v[{K2_B2}:{K2_B2+3}], v7, s[16:19], 0 offen')
    p(f'buffer_load_dwordx4 v[{K2_B2+4}:{K2_B2+7}], v7, s[16:19], 0 offen offset:64')
    p(f'buffer_load_dwordx2 v[{K2_B2+8}:{K2_B2+9}], v8, s[16:19], 0 offen offset:128')
    p(f's_cmp_eq_u32 s{S_WAVE}, 0')
    p('s_cbranch_scc0 L_k2_b')
    k2_stream(p, True)
    p.label('L_k2_b')
    k2_stream(p, False)
    p.label('L_k2_reduce')
    stamp(p, 2)
    ACC = lambda t, f: K2_ACC + (t * 5 + f) * 4
    p(f's_mul_i32 s62, s{S_WAVE}, 5120')
    p(f'v_add_u32 v3, s62, v{K2_VL}')
    p('s_nop 7')
    p('v_add_u32 v4, 40960, v3')
    for t in range(4):
        for f in range(5):
            p(f'ds_write_b128 v{3 + (t >> 1)}, v[{ACC(t,f)}:{ACC(t,f)+3}] offset:{(t & 1)*20480 + f*1024}')
    p(f's_mul_i32 s62, s{S_WAVE}, 20480')
    p(f'v_add_u32 v250, s62, v{K2_VL}')
    p('s_waitcnt lgkmcnt(0)')
    p('s_barrier')
    R = lambda w, f: (w * 5 + f) * 4
    for f in range(5):
        for w in range(4):
            p(f'ds_read_b128 v[{R(w,f)}:{R(w,f)+3}], v250 offset:{w*5120 + f*1024}')
    p('s_mov_b32 s62, 0xffff0000')
    B = lambda f: 100 + 4 * f
    for pr in range(2):
        for d in range(4):
            src = K2_B2 + 4 * pr + d
            f, r = 2 * pr + (d >> 1), 2 * (d & 1)
            p(f'v_lshlrev_b32 v{B(f)+r}, 16, v{src}')
            p(f'v_and_b32 v{B(f)+r+1}, s62, v{src}')
    for d in range(2):
        src = K2_B2 + 8 + d
        p(f'v_lshlrev_b32 v{B(4)+2*d}, 16, v{src}')
        p(f'v_and_b32 v{B(4)+2*d+1}, s62, v{src}')
    p(f'v_mov_b32 v120, v{K2_G}')
    p(f'v_mov_b32 v121, v{K2_G}')
    p(f'v_mov_b32 v122, v{K2_G+1}')
    p(f'v_mov_b32 v123, v{K2_G+1}')
    for f in range(5):
        p(f's_waitcnt lgkmcnt({min(15, 16-4*f)})' if f < 4 else 's_waitcnt lgkmcnt(0)')
        if f == 0:
            p('s_waitcnt lgkmcnt(15)')
        for r in (0, 2):
            a, b1, b2_, b3 = R(0, f) + r, R(1, f) + r, R(2, f) + r, R(3, f) + r
            p(f'v_pk_add_f32 v[{b1}:{b1+1}], v[{b1}:{b1+1}], v[{b2_}:{b2_+1}]')
            p(f'v_pk_add_f32 v[{b3}:{b3+1}], v[{b3}:{b3+1}], v[{B(f)+r}:{B(f)+r+1}]')
            p(f'v_pk_mul_f32 v[{a}:{a+1}], v[{a}:{a+1}], v[120:121]')
            p(f'v_pk_add_f32 v[{b1}:{b1+1}], v[{b1}:{b1+1}], v[{b3}:{b3+1}]')
            p(f'v_pk_fma_f32 v[{a}:{a+1}], v[{b1}:{b1+1}], v[122:123], v[{a}:{a+1}]')
    O = 124
    for pr in range(2):
        for u in range(2):
            a = R(0, 2 * pr + u)
            p(f'v_cvt_pk_bf16_f32 v{O+4*pr+2*u}, v{a}, v{a+1}')
            p(f'v_cvt_pk_bf16_f32 v{O+4*pr+2*u+1}, v{a+2}, v{a+3}')
        p(f'buffer_store_dwordx4 v[{O+4*pr}:{O+4*pr+3}], v242, s[28:31], 0 offen offset:{64*pr}')
    a = R(0, 4)
    p(f'v_cvt_pk_bf16_f32 v{O+8}, v{a}, v{a+1}')
    p(f'v_cvt_pk_bf16_f32 v{O+9}, v{a+2}, v{a+3}')
    p(f'buffer_store_dwordx2 v[{O+8}:{O+9}], v243, s[28:31], 0 offen offset:128')
    stamp(p, 3)
    if CFG['PROF']:
        prof_store(p, 4, 'K2', 12)
    p.label('L_k2_end')
    p('s_endpgm')
    return p


HEADER = """; Kernarg layout (96 bytes, ptrs only, base s[0:1]):
; @launch kernel=gm_k1_kernel grid=(256,1,1) block=(512,1,1) lds=%d
; @launch kernel=gm_k2_kernel grid=(256,1,1) block=(256,1,1) lds=%d
.amdgcn_target "amdgcn-amd-amdhsa--gfx950"
"""

KD = """.amdhsa_kernel %s
  .amdhsa_next_free_vgpr %d
  .amdhsa_next_free_sgpr 102
  .amdhsa_accum_offset %d
  .amdhsa_group_segment_fixed_size 0
  .amdhsa_kernarg_size 96
  .amdhsa_user_sgpr_count 2
  .amdhsa_user_sgpr_kernarg_segment_ptr 1
  .amdhsa_system_sgpr_workgroup_id_x 1
  .amdhsa_float_denorm_mode_32 3
.end_amdhsa_kernel
"""


def main():
    k1 = gen_k1()
    k2 = gen_k2()
    t1, t2 = k1.finish(), k2.finish()
    s = HEADER % (K1_LDS, K2_LDS)
    s += '.text\n'
    for name, t in (('gm_k1_kernel', t1), ('gm_k2_kernel', t2)):
        s += f'.globl {name}\n.p2align 8\n.type {name},@function\n{name}:\n{t}'
    s += '.p2align 8\n.fill 64, 4, 0xbf800000\n' if False else ''
    s += '.section .rodata,"a"\n.p2align 6\n'
    s += KD % ('gm_k1_kernel', 256, 256)
    s += '.p2align 6\n'
    s += KD % ('gm_k2_kernel', 256, 256)
    out = CFG.get('OUT', f'cdna_kernels/{NAME}.s')
    open(out, 'w').write(s)
    print('written', out, len(s), 'bytes; nops inserted k1', k1.nops_inserted, 'k2', k2.nops_inserted)


if __name__ == '__main__':
    main()
```

```python
import sys, os, math, struct
sys.path.insert(0, os.path.dirname(os.path.abspath(__file__)))
from asmlib import Prog, vr, ar, sr

NAME = 'gated_mix__sliding_local_dilated__dense_activation_gelu__prompt'

CFG = dict(MAP1='m82', MAP2='8x4', NBUF=4, PROF=0, NOMFMA=0, NOLOAD=0, NODS=0, STF='sc1', LDF='', ULDF='nt', PFF='', PF=0, TT=1, ROT=1, ROT2=0, K2TWICE=0, K2LDF='', OUTF='')
for a in sys.argv[1:]:
    if '=' in a:
        k, v = a.split('=')
        CFG[k] = int(v) if v.lstrip('-').isdigit() else v.replace('+', ' ')

H_OFF = 0
OA_OFF = H_OFF + 128 * 54 * 1024
W2_OFF = OA_OFF + 128 * 20 * 1024
WO_OFF = W2_OFF + 8 * 54 * 5120
G_OFF = WO_OFF + 8 * 20 * 5120
WS_USED = G_OFF + 2048 * 8
PROF_OFF = 16 << 20

XREG = 144 * 128
WROW = 480
WREG = 64 * WROW
SLOT = XREG + WREG
SCR = 3 * SLOT
K1_LDS = 163840


def f32(x):
    return struct.unpack('<I', struct.pack('<f', x))[0]


def hexf(x):
    return '0x%08x' % f32(x)


S_AX, S_WQKV, S_WO, S_BX, S_W1, S_B1, S_W2, S_B2, S_GW, S_WS = 4, 6, 8, 10, 12, 14, 16, 18, 20, 22
S_WAVE, S_TYPE, S_RB, S_CG = 24, 25, 26, 27
SRD_X, SRD_W, SRD_I4, SRD_WS, SRD_A, SRD_B = 28, 32, 36, 40, 44, 48


def srd(p, base, ptr, nbytes):
    p(f's_mov_b32 s{base}, s{ptr}')
    p(f's_mov_b32 s{base+1}, s{ptr+1}')
    p(f's_mov_b32 s{base+2}, {nbytes}')
    p(f's_mov_b32 s{base+3}, 0x20000')


def code_prefetch(p, lbl_from, lbl_to, nbytes, vtmp, vdst, s, tag):
    p(f's_getpc_b64 s[{s}:{s+1}]')
    p.label(f'L_pc_{tag}')
    p(f's_add_u32 s{s}, s{s}, {lbl_from}-L_pc_{tag}')
    p(f's_addc_u32 s{s+1}, s{s+1}, 0')
    p(f'v_lshlrev_b32 v{vtmp}, 6, v{vtmp}')
    n = (nbytes + 4095) // 4096
    for j in range(n):
        p(f'v_min_u32 v{vtmp+1}, {lbl_to}-{lbl_from}, v{vtmp}')
        p(f'global_load_dword v{vdst}, v{vtmp+1}, s[{s}:{s+1}]')
        if j + 1 < n:
            p(f'v_add_u32 v{vtmp}, 4096, v{vtmp}')
    return n


def stamp(p, idx, sbase=90):
    if CFG['PROF']:
        p(f'{"s_memtime" if CFG["PROF"] >= 2 else "s_memrealtime"} s[{sbase+2*idx}:{sbase+2*idx+1}]')


def k1_decode(p):
    p('s_and_b32 s52, s2, 7')
    p('s_lshr_b32 s53, s2, 3')
    if CFG['MAP1'] == 'mixed':
        p(f's_lshr_b32 s{S_TYPE}, s53, 4')
        p('s_and_b32 s54, s53, 15')
        p('s_lshr_b32 s55, s52, 1')
        p('s_lshl_b32 s55, s55, 2')
        p('s_lshr_b32 s56, s54, 2')
        p(f's_add_u32 s{S_RB}, s55, s56')
        p('s_and_b32 s55, s52, 1')
        p('s_lshl_b32 s55, s55, 2')
        p('s_and_b32 s56, s54, 3')
        p(f's_add_u32 s{S_CG}, s55, s56')
    elif CFG['MAP1'] == 'm82':
        p(f's_lshr_b32 s{S_TYPE}, s53, 4')
        p('s_lshr_b32 s55, s52, 2')
        p('s_lshl_b32 s55, s55, 3')
        p('s_and_b32 s56, s53, 7')
        p(f's_add_u32 s{S_RB}, s55, s56')
        p('s_and_b32 s55, s52, 3')
        p('s_lshl_b32 s55, s55, 1')
        p('s_bfe_u32 s56, s53, 0x10003')
        p(f's_add_u32 s{S_CG}, s55, s56')
    else:
        p(f's_lshr_b32 s{S_TYPE}, s52, 2')
        p('s_and_b32 s54, s52, 3')
        p('s_lshr_b32 s55, s54, 1')
        p('s_lshl_b32 s55, s55, 3')
        p('s_lshr_b32 s56, s53, 2')
        p(f's_add_u32 s{S_RB}, s55, s56')
        p('s_and_b32 s55, s54, 1')
        p('s_lshl_b32 s55, s55, 2')
        p('s_and_b32 s56, s53, 3')
        p(f's_add_u32 s{S_CG}, s55, s56')


def k1_loader(p, attn):
    tag = 'A' if attn else 'F'
    rowstride = 3840 if attn else 3456
    VOFF = 10
    VL = 2
    p.label(f'L_loader_{tag}')
    p(f's_sub_u32 s57, s{S_WAVE}, 4')
    p(f'v_lshrrev_b32 v3, 3, v{VL}')
    p('s_lshl_b32 s58, s57, 3')
    p('v_add_u32 v3, s58, v3')
    p(f's_lshl_b32 s59, s{S_RB}, 7')
    if attn:
        p('s_sub_u32 s59, s59, 16')
    p('v_add_u32 v3, s59, v3')
    p('s_and_b32 s58, s57, 1')
    p('s_lshl_b32 s58, s58, 2')
    p(f'v_lshrrev_b32 v4, 4, v{VL}')
    p('v_add_u32 v4, s58, v4')
    p(f'v_and_b32 v5, 7, v{VL}')
    p('v_xor_b32 v4, v4, v5')
    p('v_lshlrev_b32 v4, 4, v4')
    p('s_movk_i32 s58, 1280')
    p('s_movk_i32 s59, 2047')
    for i in range(5):
        p(f'v_add_u32 v5, {32*i}, v3')
        if attn and i == 0:
            p('v_max_i32 v5, 0, v5')
        if (not attn) and i == 4:
            p('v_min_u32 v5, s59, v5')
        p('v_mul_u32_u24 v5, s58, v5')
        p(f'v_add_u32 v{VOFF+i if i < 4 else 6}, v5, v4')
    p('s_lshl_b32 s58, s57, 6')
    p(f'v_add_u32 v7, s58, v{VL}')
    p(f's_mov_b32 s60, {rowstride}')
    if attn:
        p(f's_mul_i32 s61, s{S_CG}, 160')
    else:
        p(f's_mul_i32 s61, s{S_CG}, 448')

    def w_offset(i):
        base = 64 * (4 * i - 18)
        dst = VOFF + i if i > 4 else 8
        if base >= 0:
            p(f'v_add_u32 v3, {base}, v7')
        else:
            p(f'v_subrev_u32 v3, {-base}, v7')
            p('v_max_i32 v3, 0, v3')
        p('v_mul_u32_u24 v4, 2185, v3')
        p('v_lshrrev_b32 v4, 16, v4')
        p('v_mul_u32_u24 v5, 30, v4')
        p('v_sub_u32 v5, v3, v5')
        p('v_lshrrev_b32 v3, 1, v4')
        p('v_xor_b32 v3, v3, v4')
        p('v_and_b32 v3, 4, v3')
        p('v_mul_u32_u24 v3, 3, v3')
        p('v_xor_b32 v4, v3, v4')
        p('v_mul_u32_u24 v4, s60, v4')
        if attn:
            p('v_mul_u32_u24 v3, 205, v5')
            p('v_lshrrev_b32 v3, 11, v3')
            p('v_mul_u32_u24 v3, 1120, v3')
            p('v_lshlrev_b32 v5, 4, v5')
            p('v_add3_u32 v5, v5, v3, s61')
        else:
            p('v_lshlrev_b32 v5, 4, v5')
            p('v_add_u32 v5, s61, v5')
            p('v_min_u32 v5, 3440, v5')
        p(f'v_add_u32 v{dst}, v4, v5')
        if i == 4:
            p('s_cmp_lt_u32 s57, 2')
            p('s_cselect_b64 vcc, -1, 0')
            p(f'v_cndmask_b32 v{VOFF+4}, v8, v6, vcc')

    p('s_waitcnt lgkmcnt(0)')
    if attn:
        srd(p, SRD_X, S_AX, 2048 * 1280)
        srd(p, SRD_W, S_WQKV, 640 * 3840)
    else:
        srd(p, SRD_X, S_AX, 2048 * 1280)
        srd(p, SRD_W, S_W1, 640 * 3456)
    p('s_cmp_lt_u32 s57, 2')
    for k in range(3):
        p(f's_cselect_b32 s{SRD_I4+k}, s{SRD_X+k}, s{SRD_W+k}')
    p(f's_mov_b32 s{SRD_I4+3}, 0x20000')
    p('s_movk_i32 s73, 128')
    p('s_cselect_b32 s73, s73, %d' % (64 * rowstride))
    if CFG['ROT']:
        p(f's_and_b32 s79, s{S_RB}, 7')
        p('s_lshr_b32 s80, s79, 2')
        p('s_add_u32 s79, s79, s80')
        p(f's_and_b32 s80, s{S_CG}, 1')
        p(f's_lshl_b32 s81, s{S_TYPE}, 1')
        p('s_add_u32 s80, s80, s81')
        p('s_mul_i32 s80, s80, 5')
        p('s_lshr_b32 s80, s80, 1')
        p('s_add_u32 s79, s79, s80')
        p('s_cmp_ge_u32 s79, 10')
        p('s_cselect_b32 s80, 10, 0')
        p('s_sub_u32 s79, s79, s80')
    else:
        p('s_mov_b32 s79, 0')
    p('s_lshl_b32 s74, s79, 7')
    p(f's_mul_i32 s75, s79, {64*rowstride}')
    p('s_mul_i32 s76, s79, s73')
    p('s_lshl_b32 s77, s57, 10')

    def issue_stage(st, lazy=False):
        slot = st % 3
        for i in range(12):
            if lazy and i >= 4:
                w_offset(i)
            p(f's_add_u32 m0, s77, {slot*SLOT + i*4096}')
            if i < 4:
                if i == 0:
                    p('s_nop 0')
                p(f'buffer_load_dwordx4 v{VOFF+i}, s[{SRD_X}:{SRD_X+3}], s74 offen {CFG["LDF"]} lds')
            elif i == 4:
                p(f'buffer_load_dwordx4 v{VOFF+i}, s[{SRD_I4}:{SRD_I4+3}], s76 offen {CFG["LDF"]} lds')
            else:
                p(f'buffer_load_dwordx4 v{VOFF+i}, s[{SRD_W}:{SRD_W+3}], s75 offen {CFG["LDF"]} lds')
        p('s_add_u32 s74, s74, 128')
        p(f's_add_u32 s75, s75, {64*rowstride}')
        p('s_add_u32 s76, s76, s73')
        if CFG['ROT']:
            p('s_add_u32 s79, s79, 1')
            p('s_cmp_eq_u32 s79, 10')
            for r in (79, 74, 75, 76):
                p(f's_cselect_b32 s{r}, 0, s{r}')

    stamp(p, 0)
    issue_stage(0, lazy=True)
    issue_stage(1)
    p('s_lshl_b32 s62, s57, 8')
    p('s_add_u32 s62, s62, s2')
    p('s_cmp_lt_u32 s62, 592')
    p('s_cselect_b32 s63, 1, 0')
    p('s_cmp_lt_u32 s57, 3')
    p('s_cselect_b32 s63, s63, 0')
    p('s_and_b32 s64, s62, 7')
    p('s_lshr_b32 s65, s62, 3')
    p('s_lshl_b32 s66, s65, 5')
    p('s_mov_b32 s67, 16')
    p('s_mov_b32 s68, 4')
    p('s_mul_i32 s69, s64, 54')
    p('s_add_u32 s69, s69, s65')
    p('s_mul_i32 s69, s69, 5120')
    p(f's_add_u32 s69, s69, {W2_OFF}')
    p('s_mov_b32 s70, 0')
    p('s_cmp_lt_u32 s65, 54')
    p(f's_cbranch_scc1 L_unit_done_{tag}')
    p('s_sub_u32 s65, s65, 54')
    p('s_mov_b32 s70, 1')
    p('s_mul_i32 s69, s64, 20')
    p('s_add_u32 s69, s69, s65')
    p('s_mul_i32 s69, s69, 5120')
    p(f's_add_u32 s69, s69, {WO_OFF}')
    p('s_mul_i32 s66, s65, 40')
    p('s_mov_b32 s67, 20')
    p('s_cmp_lt_u32 s65, 16')
    p(f's_cbranch_scc1 L_unit_done_{tag}')
    p('s_sub_u32 s65, s65, 16')
    p('s_mul_i32 s66, s65, 160')
    p('s_add_u32 s66, s66, 16')
    p('s_mov_b32 s67, 80')
    p('s_mov_b32 s68, 20')
    p.label(f'L_unit_done_{tag}')
    p('s_mul_i32 s71, s64, 160')
    p('s_movk_i32 s58, 1280')
    for i in range(5):
        p(f'v_add_u32 v3, {64*i}, v{VL}')
        p('v_mul_u32_u24 v4, 6554, v3')
        p('v_lshrrev_b32 v4, 16, v4')
        p('v_mul_u32_u24 v5, 10, v4')
        p('v_sub_u32 v5, v3, v5')
        p('v_lshlrev_b32 v5, 4, v5')
        p('v_add_u32 v5, s71, v5')
        p('v_lshrrev_b32 v3, 4, v4')
        p('v_mul_u32_u24 v3, s67, v3')
        p('v_bfe_u32 v6, v4, 2, 2')
        p('v_mul_u32_u24 v6, s68, v6')
        p('v_and_b32 v4, 3, v4')
        p('v_add3_u32 v3, v3, v6, v4')
        p('v_add_u32 v3, s66, v3')
        p('v_mul_u32_u24 v3, s58, v3')
        p(f'v_add_u32 v{22+i}, v3, v5')
    p(f'v_lshrrev_b32 v3, 2, v{VL}')
    p('v_mul_u32_u24 v3, 160, v3')
    p('s_mul_i32 s72, s57, 5120')
    p(f's_add_u32 s72, s72, {SCR}')
    p('v_add_u32 v3, s72, v3')
    p(f'v_and_b32 v4, 3, v{VL}')
    p('v_lshl_add_u32 v27, v4, 4, v3')
    p('v_lshl_add_u32 v28, v4, 3, v3')
    p(f'v_lshlrev_b32 v29, 4, v{VL}')
    p('v_add_u32 v30, 4096, v29')
    if not attn:
        p(f's_lshl_b32 s58, s{S_RB}, 3')
        p(f's_add_u32 s58, s58, s{S_CG}')
        p('s_lshl_b32 s58, s58, 4')
        p('s_lshl_b32 s59, s57, 2')
        p('s_add_u32 s58, s58, s59')
        p(f'v_lshrrev_b32 v3, 4, v{VL}')
        p('v_add_u32 v31, s58, v3')
        p('s_movk_i32 s58, 1280')
        p('v_mul_u32_u24 v3, s58, v31')
        p(f'v_and_b32 v4, 15, v{VL}')
        p('v_lshlrev_b32 v33, 4, v4')
        p('v_add_u32 v32, v3, v33')
    srd(p, SRD_WS, S_WS, WS_USED)
    p('s_cmp_eq_u32 s70, 0')
    p(f's_cselect_b32 s{SRD_A}, s{S_W2}, s{S_WO}')
    p(f's_cselect_b32 s{SRD_A+1}, s{S_W2+1}, s{S_WO+1}')
    p(f's_mov_b32 s{SRD_A+2}, {1728*1280}')
    p(f's_cselect_b32 s{SRD_A+2}, s{SRD_A+2}, {640*1280}')
    p(f's_mov_b32 s{SRD_A+3}, 0x20000')
    GX, GW = 40, 60
    gate = (not attn)
    TG = 10 if gate else 0
    if gate:
        srd(p, SRD_B, S_GW, 1280)

    def tail_loads():
        p('s_cmp_eq_u32 s63, 0')
        p(f's_cbranch_scc1 L_nounit_ld_{tag}')
        for i in range(5):
            p(f's_add_u32 m0, s72, {i*1024}')
            p('s_nop 0')
            p(f'buffer_load_dwordx4 v{22+i}, s[{SRD_A}:{SRD_A+3}], 0 offen {CFG["ULDF"]} lds')
        p.label(f'L_nounit_ld_{tag}')
        if gate:
            for j in range(5):
                p(f'buffer_load_dwordx4 v[{GX+4*j}:{GX+4*j+3}], v32, s[{SRD_X}:{SRD_X+3}], 0 offen offset:{256*j}')
                p(f'buffer_load_dwordx4 v[{GW+4*j}:{GW+4*j+3}], v33, s[{SRD_B}:{SRD_B+3}], 0 offen offset:{256*j}')

    def wait_vm(n_nounit, n_unit, uid):
        if n_nounit == n_unit:
            p(f's_waitcnt vmcnt({n_unit})')
            return
        p('s_cmp_eq_u32 s63, 0')
        p(f's_cbranch_scc1 L_w{uid}a_{tag}')
        p(f's_waitcnt vmcnt({n_unit})')
        p(f's_branch L_w{uid}b_{tag}')
        p.label(f'L_w{uid}a_{tag}')
        p(f's_waitcnt vmcnt({n_nounit})')
        p.label(f'L_w{uid}b_{tag}')

    p('s_waitcnt vmcnt(12)')
    stamp(p, 1)
    p('s_barrier')
    issue_stage(2)
    for j in range(9):
        if j <= 7:
            p('s_waitcnt vmcnt(12)' if j < 7 else 's_waitcnt vmcnt(12)')
        else:
            wait_vm(TG, TG + 5, j)
        p('s_barrier')
        if j + 3 <= 9 and not CFG['NOLOAD']:
            issue_stage(j + 3)
        if j == 7:
            tail_loads()
    stamp(p, 2)
    p('s_waitcnt vmcnt(0)')
    p('s_cmp_eq_u32 s63, 0')
    p(f's_cbranch_scc1 L_nounit_{tag}')
    for f in range(5):
        a, off = (27, [0, 8, 64, 72][f]) if f < 4 else (28, 128)
        p(f'ds_read_b64_tr_b16 v[{84+4*f}:{85+4*f}], v{a} offset:{off}')
        p(f'ds_read_b64_tr_b16 v[{86+4*f}:{87+4*f}], v{a} offset:{off+2560}')
    for f in range(5):
        p(f's_waitcnt lgkmcnt({8-2*f})')
        if f < 4:
            p(f'buffer_store_dwordx4 v[{84+4*f}:{87+4*f}], v29, s[{SRD_WS}:{SRD_WS+3}], s69 offen offset:{1024*f} {CFG["STF"]}')
        else:
            p(f'buffer_store_dwordx4 v[{84+4*f}:{87+4*f}], v30, s[{SRD_WS}:{SRD_WS+3}], s69 offen {CFG["STF"]}')
    p.label(f'L_nounit_{tag}')
    if gate:
        gate_job(p, GX, GW)
    stamp(p, 3)
    if CFG['PROF']:
        prof_store(p, 4, 'LD' + tag, SRD_WS)
    p('s_endpgm')


def prof_store(p, n, tag, srdws, sbase=90):
    p('s_memtime s[80:81]')
    p('s_memrealtime s[78:79]')
    p('s_waitcnt lgkmcnt(0) vmcnt(0)')
    p('s_sub_u32 s80, s80, s82')
    p('s_sub_u32 s78, s78, s88')
    p(f's_mov_b32 s{srdws+2}, 0x10000000')
    p(f's_lshl_b32 s86, s2, 3')
    p(f's_add_u32 s86, s86, s{S_WAVE}')
    p(f's_lshl_b32 s86, s86, 6')
    p(f's_add_u32 s86, s86, {PROF_OFF + (0 if not tag.startswith("K2") else (1 << 20))}')
    if CFG['PROF'] == 3:
        p(f's_lshl_b32 s85, s2, 3')
        p(f's_add_u32 s85, s85, s{S_WAVE}')
        p(f's_lshl_b32 s85, s85, 8')
        p(f's_add_u32 s85, s85, {PROF_OFF + (2 << 20)}')
        p('v_mbcnt_lo_u32_b32 v0, -1, 0')
        p('v_mbcnt_hi_u32_b32 v0, -1, v0')
        p('v_lshlrev_b32 v0, 2, v0')
        if not tag.startswith('K2'):
            p(f'buffer_store_dword v254, v0, s[{srdws}:{srdws+3}], s85 offen')
    p('v_mov_b32 v1, 0')
    p('v_mov_b32 v0, s88')
    p(f'buffer_store_dword v0, v1, s[{srdws}:{srdws+3}], s86 offen offset:60')
    p('v_mov_b32 v0, s80')
    p(f'buffer_store_dword v0, v1, s[{srdws}:{srdws+3}], s86 offen offset:56')
    p('v_mov_b32 v0, s78')
    p(f'buffer_store_dword v0, v1, s[{srdws}:{srdws+3}], s86 offen offset:52')
    for i in range(n):
        p(f'v_mov_b32 v0, s{sbase+2*i}')
        p(f'buffer_store_dword v0, v1, s[{srdws}:{srdws+3}], s86 offen offset:{4*i}')
    p('s_waitcnt vmcnt(0)')


def gate_job(p, GX, GW):
    T = 104
    p('v_mov_b32 v34, 0')
    p('v_mov_b32 v35, 0')
    p('v_mov_b32 v36, 0x3f803f80')
    p('s_mov_b32 s78, 0xffff0000')
    for d in range(20):
        x, w = GX + d, GW + d
        t = T + 6 * (d & 1)
        p(f'v_lshlrev_b32 v{t}, 16, v{x}')
        p(f'v_and_b32 v{t+1}, s78, v{x}')
        p(f'v_lshlrev_b32 v{t+2}, 16, v{w}')
        p(f'v_and_b32 v{t+3}, s78, v{w}')
        p(f'v_pk_mul_f32 v[{t}:{t+1}], v[{t}:{t+1}], v[{t+2}:{t+3}]')
        p(f'v_cvt_pk_bf16_f32 v{t+4}, v{t}, v{t+1}')
        acc = 34 + (d & 1)
        p(f'v_dot2_f32_bf16 v{acc}, v{t+4}, v36, v{acc}')
    p('v_add_f32 v34, v34, v35')
    for sh in (8, 4, 2, 1):
        p(f'v_add_f32_dpp v34, v34, v34 row_ror:{sh} row_mask:0xf bank_mask:0xf')
    p('v_cvt_pk_bf16_f32 v35, v34, v34')
    p('v_lshlrev_b32 v35, 16, v35')
    p(f'v_mul_f32 v35, {hexf(-math.log2(math.e))}, v35')
    p('v_exp_f32 v35, v35')
    p('v_add_f32 v35, 1.0, v35')
    p('v_rcp_f32 v35, v35')
    p('v_cvt_pk_bf16_f32 v35, v35, v35')
    p('v_lshlrev_b32 v38, 16, v35')
    p('v_sub_f32 v39, 1.0, v38')
    p('v_cvt_pk_bf16_f32 v39, v39, v39')
    p('v_lshlrev_b32 v39, 16, v39')
    p('v_lshlrev_b32 v37, 3, v31')
    p(f'v_add_u32 v37, {G_OFF}, v37')
    p(f'buffer_store_dwordx2 v[38:39], v37, s[{SRD_WS}:{SRD_WS+3}], 0 offen {CFG["STF"]}')


A_QM = lambda h, t: 0 + (h * 4 + t) * 4
A_KM = lambda h, kt: 32 + (h * 5 + kt) * 4
A_QKT = lambda kt: 72 + 4 * kt
A_VM = lambda h, kt: 92 + (h * 5 + kt) * 4
A_VT = lambda kt: 132 + 4 * kt
WF = lambda f: 152 + 4 * f
XF = lambda b, t: 184 + 20 * b + 4 * t
V_X0, V_X1, V_W, V_WA, V_WB = 224, 225, 226, 227, 228
V_BPREV, V_BCUR, V_BFIRST, V_SEL = 232, 236, 240, 244
F_ACC = lambda f, t: (f * 4 + t) * 4


class LgkmTracker:
    def __init__(self, p):
        self.p = p
        self.q = []

    def issue(self, tag):
        self.q.append(tag)

    def need(self, tags):
        idx = -1
        for i, t in enumerate(self.q):
            if t in tags:
                idx = i
        if idx < 0:
            return
        n = len(self.q) - 1 - idx
        self.p(f's_waitcnt lgkmcnt({min(n, 15)})')
        keep = min(n, 15)
        self.q = self.q[len(self.q) - keep:] if keep else []

    def drain(self):
        self.p('s_waitcnt lgkmcnt(0)')
        self.q = []


def consumer_loop(p, attn):
    tag = 'A' if attn else 'F'
    NT = 5 if attn else 4
    if attn:
        tiles = []
        for h in range(2):
            tiles.append([(A_QM(h, t), t + 1, 'F') for t in range(4)])
        for h in range(2):
            tiles.append([(A_KM(h, k), k, 'F') for k in range(5)])
        tiles.append([(A_QKT(k), k, 'F') for k in range(5)])
        for h in range(2):
            tiles.append([(A_VM(h, k), k, 'T') for k in range(5)])
        tiles.append([(A_VT(k), k, 'T') for k in range(5)])
        waddr = [(V_W, 0), (V_W, 40), (V_W, 160), (V_W, 200), (V_WA, 0), (V_W, 320), (V_W, 360), (V_WB, 0)]
    else:
        tiles = [[(F_ACC(f, t), t, 'F') for t in range(4)] for f in range(7)]
        waddr = [(V_W, 32 * f) for f in range(6)] + [(V_WA, 0)]
    NF = len(tiles)

    lg = LgkmTracker(p)

    def rd_w(f, s):
        if CFG['NODS']:
            return
        a, off = waddr[f]
        off += s * 32 * WROW
        p(f'ds_read_b64_tr_b16 v[{WF(f)}:{WF(f)+1}], v{a} offset:{off}')
        lg.issue(('w', f))
        p(f'ds_read_b64_tr_b16 v[{WF(f)+2}:{WF(f)+3}], v{a} offset:{off + 8*WROW}')
        lg.issue(('w', f))

    def rd_x(t, s):
        if CFG['NODS']:
            return
        p(f'ds_read_b128 v[{XF(s,t)}:{XF(s,t)+3}], v{V_X1 if s else V_X0} offset:{2048*t}')
        lg.issue(('x', s, t))

    LAST = NF - 1

    def wreads(f, s):
        a, off = waddr[f]
        off += s * 32 * WROW
        return [(f'ds_read_b64_tr_b16 v[{WF(f)}:{WF(f)+1}], v{a} offset:{off}', ('w', f)),
                (f'ds_read_b64_tr_b16 v[{WF(f)+2}:{WF(f)+3}], v{a} offset:{off + 8*WROW}', ('w', f))]

    def xread(t, s):
        return (f'ds_read_b128 v[{XF(s,t)}:{XF(s,t)+3}], v{V_X1 if s else V_X0} offset:{2048*t}', ('x', s, t))

    def emit(item):
        if CFG['NODS']:
            return
        p(item[0])
        lg.issue(item[1])

    order_log = []

    def step(s, dry=False):
        nxt = 1 - s
        q = wreads(LAST, s)
        xq = [xread(t, nxt) for t in range(NT)]
        held = []
        upd = [V_W, V_X0, V_X1, V_WA] + ([V_WB] if attn else [])
        for f in range(NF):
            if not dry:
                lg.need({('w', f)} | ({('x', s, t) for t in range(NT)} if f == 0 else set()))
            for n, (acc, t, o) in enumerate(tiles[f]):
                w, x = f'v[{WF(f)}:{WF(f)+3}]', f'v[{XF(s,t)}:{XF(s,t)+3}]'
                a, b = (w, x) if o == 'F' else (x, w)
                if not CFG['NOMFMA'] and not dry:
                    p(f'v_mfma_f32_16x16x32_bf16 v[{acc}:{acc+3}], {a}, {b}, v[{acc}:{acc+3}]')
                item = None
                if q:
                    item = q.pop(0)
                elif xq and (s == 0 or f >= 2):
                    item = xq.pop(0)
                if item is not None:
                    if dry:
                        order_log.append(item)
                    else:
                        emit(item)
                if not dry and s == 0 and f == LAST and n == 1:
                    p(f's_add_u32 s53, s53, {SLOT}')
                    p(f's_cmp_eq_u32 s53, {3*SLOT}')
                if not dry and s == 0 and f == LAST and n == 2:
                    p(f's_cselect_b32 s54, s51, {SLOT}')
                    p('s_cselect_b32 s53, 0, s53')
                if not dry and s == 1 and item is None and upd and (f, n) >= (0, 2):
                    p(f'v_add_u32 v{upd[0]}, s54, v{upd[0]}')
                    upd.pop(0)
            if f < LAST:
                rs = wreads(f, nxt)
                if s == 1 and f < 1:
                    held += rs
                elif s == 1 and f == 1:
                    assert not q
                    if not dry:
                        assert not upd
                        if CFG['PROF'] == 3:
                            p('s_memtime s[70:71]')
                        lg.drain()
                        if CFG['PROF'] == 3:
                            p('s_lshl_b32 m0, s52, 1')
                            p('s_nop 3')
                            p('v_writelane_b32 v254, s70, m0')
                            p('s_add_u32 s74, m0, 63')
                            p('s_and_b32 m0, s74, 63')
                            p('s_nop 3')
                            p('v_writelane_b32 v254, s72, m0')
                        p('s_cmp_eq_u32 s52, 9')
                        p(f's_cbranch_scc1 L_nobar_{tag}')
                        p('s_barrier')
                        p.label(f'L_nobar_{tag}')
                        if CFG['PROF'] == 3:
                            p('s_memtime s[72:73]')
                    q += held + rs
                    held = []
                else:
                    q += rs
        assert not q and not xq, (q, xq)

    step(1, dry=True)
    for item in order_log[2:]:
        emit(item)
    p('s_mov_b32 s52, 0')
    p('s_mov_b32 s53, 0')
    p(f's_mov_b32 s51, {(-2*SLOT) & 0xffffffff}')
    p.label(f'L_loop_{tag}')
    q_head = list(lg.q)
    step(0)
    step(1)
    q_end = list(lg.q)
    assert q_end == q_head, (q_end, q_head)
    p('s_add_u32 s52, s52, 1')
    p('s_cmp_lt_u32 s52, 10')
    p(f's_cbranch_scc1 L_loop_{tag}')
    lg.drain()


def check_loop_waits():
    pass


def tlb_touch(p, tag):
    if not CFG['TT']:
        return
    p(f's_cmp_eq_u32 s{S_WAVE}, 1')
    p(f's_cbranch_scc0 L_tt1{tag}')
    for i in range(7):
        p(f's_mov_b32 s70, {i << 21}')
        p(f's_load_dword s{71+i}, s[{S_WS}:{S_WS+1}], s70')
    p.label(f'L_tt1{tag}')
    p(f's_cmp_eq_u32 s{S_WAVE}, 2')
    p(f's_cbranch_scc0 L_tt2{tag}')
    p(f's_load_dword s71, s[{S_WO}:{S_WO+1}], 0')
    p(f's_load_dword s72, s[{S_W2}:{S_W2+1}], 0')
    p(f's_mov_b32 s70, {(1 << 21) + 4096}')
    p(f's_load_dword s73, s[{S_W2}:{S_W2+1}], s70')
    p(f's_load_dword s74, s[{S_GW}:{S_GW+1}], 0')
    p(f's_load_dword s75, s[{S_B2}:{S_B2+1}], 0')
    p('s_load_dword s76, s[100:101], 0')
    p('s_load_dword s77, s[100:101], s70')
    p.label(f'L_tt2{tag}')


def prefetch_setup(p, attn):
    rowstride = 3840 if attn else 3456
    p(f's_lshl_b32 s57, s{S_WAVE}, 6')
    p('v_add_u32 v9, s57, v2')
    p(f's_and_b32 s57, s{S_RB}, 7')
    p('s_lshl_b32 s57, s57, 3')
    p('s_add_u32 s57, s57, 128')
    p(f's_mov_b32 s58, {rowstride}')
    if attn:
        p(f's_mul_i32 s59, s{S_CG}, 160')
        p('s_andn2_b32 s59, s59, 127')
        for rnd in range(2):
            p(f'v_add_u32 v3, {256*rnd}, v9')
            p('v_min_u32 v3, 383, v3')
            p('v_mul_u32_u24 v4, 1366, v3')
            p('v_lshrrev_b32 v4, 16, v4')
            p('v_mul_u32_u24 v5, 48, v4')
            p('v_sub_u32 v5, v3, v5')
            p('v_mul_u32_u24 v6, 43, v5')
            p('v_lshrrev_b32 v6, 8, v6')
            p('v_mul_u32_u24 v7, 6, v6')
            p('v_sub_u32 v7, v5, v7')
            p('v_lshl_add_u32 v4, v4, 6, v6')
            p('v_add_u32 v4, s57, v4')
            p('v_mul_u32_u24 v4, s58, v4')
            p('v_lshrrev_b32 v5, 1, v7')
            p('v_mul_u32_u24 v5, 1280, v5')
            p('v_and_b32 v7, 1, v7')
            p('v_lshl_add_u32 v5, v7, 7, v5')
            p(f'v_add3_u32 v{249+rnd}, v4, v5, s59')
    else:
        p(f's_mul_i32 s59, s{S_CG}, 448')
        p('s_andn2_b32 s59, s59, 127')
        p('v_lshrrev_b32 v4, 5, v9')
        p('v_bfe_u32 v6, v9, 2, 3')
        p('v_lshl_add_u32 v4, v4, 6, v6')
        p('v_add_u32 v4, s57, v4')
        p('v_mul_u32_u24 v4, s58, v4')
        p('v_and_b32 v7, 3, v9')
        p('v_lshlrev_b32 v7, 7, v7')
        p('v_add3_u32 v249, v4, v7, s59')
    p(f's_and_b32 s57, s{S_CG}, 1')
    p(f's_lshl_b32 s58, s{S_TYPE}, 1')
    p('s_add_u32 s57, s57, s58')
    p('s_lshl_b32 s57, s57, 5')
    p(f's_lshl_b32 s58, s{S_RB}, 7')
    p('s_add_u32 s57, s57, s58')
    p('v_and_b32 v4, 31, v9')
    p('v_add_u32 v4, s57, v4')
    p('v_mul_u32_u24 v4, 1280, v4')
    p('v_lshrrev_b32 v5, 5, v9')
    p('v_lshlrev_b32 v5, 7, v5')
    p('v_add3_u32 v251, v4, v5, 256' .replace(', 256', ', s99'))


def prefetch_issue(p, attn):
    if not CFG['PF']:
        return
    p(f'buffer_load_dword v255, v251, s[{SRD_X}:{SRD_X+3}], 0 offen {CFG["PFF"]}')
    p(f'buffer_load_dword v255, v249, s[{SRD_W}:{SRD_W+3}], 0 offen {CFG["PFF"]}')
    if attn:
        p(f'buffer_load_dword v255, v250, s[{SRD_W}:{SRD_W+3}], 0 offen {CFG["PFF"]}')


def attn_prologue(p):
    p(f's_and_b32 s55, s{S_WAVE}, 1')
    p(f's_lshr_b32 s56, s{S_WAVE}, 1')
    p('v_and_b32 v3, 15, v2')
    p('v_lshrrev_b32 v4, 4, v2')
    p('v_lshrrev_b32 v5, 1, v3')
    p('v_xor_b32 v5, v5, v4')
    p('v_lshlrev_b32 v5, 4, v5')
    p('v_lshl_add_u32 v5, v3, 7, v5')
    p('s_lshl_b32 s57, s56, 13')
    p(f'v_add_u32 v{V_X0}, s57, v5')
    p(f'v_xor_b32 v{V_X1}, 64, v{V_X0}')
    p('v_lshrrev_b32 v5, 5, v2')
    p('v_lshlrev_b32 v5, 4, v5')
    p('v_bfe_u32 v6, v2, 4, 1')
    p('v_lshl_add_u32 v5, v6, 2, v5')
    p('v_bfe_u32 v6, v2, 2, 2')
    p('v_add_u32 v5, v5, v6')
    p(f'v_mul_u32_u24 v5, {WROW}, v5')
    p('s_mul_i32 s57, s55, 80')
    p(f's_add_u32 s57, s57, {XREG}')
    p('v_add_u32 v5, s57, v5')
    p('v_and_b32 v6, 3, v2')
    p(f'v_lshl_add_u32 v{V_W}, v6, 3, v5')
    p('v_and_b32 v7, 1, v6')
    p('v_mul_u32_u24 v7, 40, v7')
    p('v_add_u32 v7, v7, v5')
    p('v_lshrrev_b32 v6, 1, v6')
    p('v_mul_u32_u24 v6, 160, v6')
    p(f'v_add3_u32 v{V_WA}, v7, v6, 32')
    p(f'v_add_u32 v{V_WB}, 352, v7')
    p('v_lshlrev_b32 v5, 2, v4')
    p('v_sub_u32 v5, v3, v5')
    p(f's_mov_b32 s58, {hexf(-1e30)}')
    p('v_mov_b32 v8, s58')
    p(f's_or_b32 s59, s{S_RB}, s56')
    p('s_cmp_eq_u32 s59, 0')
    p('s_cselect_b64 s[60:61], -1, 0')
    for r in range(4):
        p(f'v_subrev_u32 v6, {r}, v5')
        p('v_and_b32 v7, 1, v6')
        p('v_cmp_eq_u32 s[62:63], 0, v7')
        p('v_cmp_ge_i32 s[64:65], v6, 0')
        p('s_and_b64 s[66:67], s[62:63], s[64:65]')
        p('s_andn2_b64 s[68:69], s[62:63], s[64:65]')
        p(f'v_cndmask_b32 v{V_BCUR+r}, v8, 0, s[66:67]')
        p(f'v_cndmask_b32 v{V_BPREV+r}, v8, 0, s[68:69]')
        p(f'v_cndmask_b32 v{V_BFIRST+r}, v{V_BPREV+r}, v8, s[60:61]')
    p('v_and_b32 v7, 1, v3')
    p('v_cmp_eq_u32 s[62:63], 0, v7')
    for k, (lo, hi) in enumerate([(0x0c0c0100, 0x01000c0c), (0x0c0c0302, 0x03020c0c)]):
        p(f'v_mov_b32 v6, {hex(hi)}')
        p(f'v_mov_b32 v9, {hex(lo)}')
        p('v_cndmask_b32 v9, v6, v9, s[62:63]')
        p('v_sub_u32 v6, v5, v7')
        if k:
            p('v_subrev_u32 v6, 2, v6')
        p('v_cmp_ge_i32 s[64:65], v6, 0')
        p('v_mov_b32 v6, 0x0c0c0c0c')
        p(f'v_cndmask_b32 v{V_SEL+k}, v9, v6, s[64:65]')
        p(f'v_cndmask_b32 v{V_SEL+2+k}, v6, v9, s[64:65]')
    p('v_lshlrev_b32 v248, 4, v2')
    for r in range(152):
        p(f'v_mov_b32 v{r}, 0')


def attn_epilogue(p):
    cvt = lambda d, a: p(f'v_cvt_pk_bf16_f32 v{d}, v{a}, v{a+1}')
    TQ = 216
    p('s_nop 7')
    for kt in range(5):
        for h in range(2):
            b = A_KM(h, kt)
            cvt(b, b)
            cvt(b + 1, b + 2)
        t = A_QKT(kt)
        cvt(t, t)
        cvt(t + 1, t + 2)
    for kt in range(5):
        t = A_QKT(kt)
        k0 = A_KM(0, kt)
        p(f'v_mov_b32 v{k0+2}, v{t}')
        p(f'v_mov_b32 v{k0+3}, v{t+1}')
    for h in range(2):
        for t in range(4):
            b = A_QM(h, t)
            cvt(b, b)
            cvt(b + 1, b + 2)
    for kt in range(5):
        t = A_QKT(kt)
        k0 = A_KM(0, kt)
        p(f'v_permlane32_swap_b32 v{t}, v{k0+2}')
        p(f'v_permlane32_swap_b32 v{t+1}, v{k0+3}')
    for h in range(2):
        for kt in range(5):
            b = A_VM(h, kt)
            d = A_VM(h, 0) + 2 * kt
            cvt(d, b)
            cvt(d + 1, b + 2)
    for kt in range(5):
        k0, k1 = A_KM(0, kt), A_KM(1, kt)
        p(f'v_mov_b32 v{k1+2}, v{k0+2}')
        p(f'v_mov_b32 v{k1+3}, v{k0+3}')
    p('s_mov_b32 s60, 0x0000ffff')
    p('s_mov_b32 s61, 0')
    p('s_mov_b32 s62, 0xffff0000')
    p('s_mov_b32 s63, 0')
    for t in range(4):
        for h in range(2):
            q, x = A_QM(h, t), A_QKT(t + 1)
            p(f'v_cndmask_b32 v{q+2}, 0, v{x}, s[{60+2*h}:{61+2*h}]')
            p(f'v_cndmask_b32 v{q+3}, 0, v{x+1}, s[{60+2*h}:{61+2*h}]')
    for kt in range(5):
        b = A_VT(kt)
        d = A_VT(0) + 2 * kt
        cvt(d, b)
        cvt(d + 1, b + 2)
    S = lambda t, h: 152 + (t * 2 + h) * 8
    for t in range(4):
        for h in range(2):
            q = A_QM(h, t)
            bp = V_BFIRST if t == 0 else V_BPREV
            kp, kc = A_KM(h, t), A_KM(h, t + 1)
            p(f'v_mfma_f32_16x16x32_bf16 v[{S(t,h)}:{S(t,h)+3}], v[{kp}:{kp+3}], v[{q}:{q+3}], v[{bp}:{bp+3}]')
            p(f'v_mfma_f32_16x16x32_bf16 v[{S(t,h)+4}:{S(t,h)+7}], v[{kc}:{kc+3}], v[{q}:{q+3}], v[{V_BCUR}:{V_BCUR+3}]')
    cs = (20 ** -0.5) * math.log2(math.e)
    p(f's_mov_b32 s64, {hexf(cs)}')
    inst = [(t, h) for t in range(4) for h in range(2)]
    for (t, h) in inst:
        s = S(t, h)
        p(f'v_max3_f32 v{s}, v{s}, v{s+1}, v{s+4}')
        p(f'v_max3_f32 v{s+2}, v{s+2}, v{s+3}, v{s+6}')
    for (t, h) in inst:
        s = S(t, h)
        p(f'v_max_f32 v{s}, v{s}, v{s+5}')
        p(f'v_max_f32 v{s+1}, v{s+2}, v{s+7}')
    for (t, h) in inst:
        s = S(t, h)
        p(f'v_max_f32 v{s+2}, v{s}, v{s+1}')

    def cross(groups, op, mid):
        for (A, B, C, D) in groups:
            p(f'v_permlane32_swap_b32 v{A}, v{B}')
            p(f'v_permlane32_swap_b32 v{C}, v{D}')
        for (A, B, C, D) in groups:
            p(f'{op} v{A}, v{A}, v{B}')
            p(f'{op} v{C}, v{C}, v{D}')
        for (A, B, C, D) in groups:
            p(f'v_permlane16_swap_b32 v{A}, v{C}')
        for (A, B, C, D) in groups:
            p(f'{op} v{A}, v{A}, v{C}')
        for (A, B, C, D) in groups:
            mid(A)
        for (A, B, C, D) in groups:
            p(f'v_mov_b32 v{C}, v{A}')
        for (A, B, C, D) in groups:
            p(f'v_permlane16_swap_b32 v{A}, v{C}')
        for (A, B, C, D) in groups:
            p(f'v_mov_b32 v{B}, v{A}')
            p(f'v_mov_b32 v{D}, v{C}')
        for (A, B, C, D) in groups:
            p(f'v_permlane32_swap_b32 v{A}, v{B}')
            p(f'v_permlane32_swap_b32 v{C}, v{D}')

    grp = lambda o: [tuple(S(t, h) + o for (t, h) in inst[0:4]), tuple(S(t, h) + o for (t, h) in inst[4:8])]
    cross(grp(2), 'v_max_f32', lambda A: p(f'v_mul_f32 v{A}, s64, v{A}'))
    for (t, h) in inst:
        s = S(t, h)
        p(f'v_fma_f32 v{s}, v{s}, s64, -v{s+2}')
        p(f'v_fma_f32 v{s+1}, v{s+1}, s64, -v{s+2}')
    for (t, h) in inst:
        s = S(t, h)
        p(f'v_exp_f32 v{s}, v{s}')
        p(f'v_exp_f32 v{s+1}, v{s+1}')
    for (t, h) in inst:
        s = S(t, h)
        p(f'v_add_f32 v{s+2}, v{s}, v{s+1}')
    cross(grp(2), 'v_add_f32', lambda A: p(f'v_rcp_f32 v{A}, v{A}'))
    for (t, h) in inst:
        s = S(t, h)
        p(f'v_mul_f32 v{s}, v{s}, v{s+2}')
        p(f'v_mul_f32 v{s+1}, v{s+1}, v{s+2}')
    for (t, h) in inst:
        s = S(t, h)
        p(f'v_cvt_pk_bf16_f32 v{s+2}, v{s}, v{s+1}')
    for (t, h) in inst:
        s = S(t, h)
        p(f'v_perm_b32 v{s+4}, v{s+2}, v{s+2}, v{V_SEL}')
        p(f'v_perm_b32 v{s+5}, v{s+2}, v{s+2}, v{V_SEL+1}')
        p(f'v_perm_b32 v{s+6}, v{s+2}, v{s+2}, v{V_SEL+2}')
        p(f'v_perm_b32 v{s+7}, v{s+2}, v{s+2}, v{V_SEL+3}')
    for (t, h) in inst:
        s = S(t, h)
        va = A_VM(h, 0) + 2 * t
        vt = A_VT(0) + 2 * t
        om, ot = A_QM(h, t), A_KM(h, t)
        p(f'v_mfma_f32_16x16x32_bf16 v[{om}:{om+3}], v[{va}:{va+3}], v[{s+4}:{s+7}], 0')
        p(f'v_mfma_f32_16x16x32_bf16 v[{ot}:{ot+3}], v[{vt}:{vt+3}], v[{s+4}:{s+7}], 0')
    p(f's_lshl_b32 s65, s{S_RB}, 3')
    p('s_lshl_b32 s66, s56, 2')
    p('s_add_u32 s65, s65, s66')
    p('s_mul_i32 s66, s65, 20')
    p(f's_lshl_b32 s67, s{S_CG}, 1')
    p('s_add_u32 s67, s67, s55')
    p('s_add_u32 s66, s66, s67')
    p('s_lshl_b32 s66, s66, 10')
    p(f's_add_u32 s66, s66, {OA_OFF}')
    p(f's_and_b32 s67, s{S_CG}, 1')
    p('s_lshl_b32 s67, s67, 1')
    p('s_add_u32 s67, s67, s65')
    p('s_mul_i32 s67, s67, 20')
    p(f's_lshr_b32 s68, s{S_CG}, 1')
    p('s_add_u32 s67, s67, s68')
    p('s_add_u32 s67, s67, 16')
    p('s_lshl_b32 s67, s67, 10')
    p('s_lshl_b32 s68, s55, 9')
    p('s_add_u32 s67, s67, s68')
    p(f's_add_u32 s67, s67, {OA_OFF}')
    for t in range(4):
        for h in range(2):
            o = A_QM(h, t)
            d = S(t, 0) + 2 * h
            p(f'v_cvt_pk_bf16_f32 v{d}, v{o}, v{o+1}')
            p(f'v_cvt_pk_bf16_f32 v{d+1}, v{o+2}, v{o+3}')
        d = S(t, 0)
        p(f'buffer_store_dwordx4 v[{d}:{d+3}], v248, s[{SRD_WS}:{SRD_WS+3}], s66 offen {CFG["STF"]}')
        p('s_add_u32 s66, s66, 20480')
    for pr in range(2):
        d = S(2 * pr, 1)
        for u in range(2):
            t = 2 * pr + u
            o0, o1 = A_KM(0, t), A_KM(1, t)
            for rr in range(4):
                p(f'v_cndmask_b32 v{o0+rr}, v{o0+rr}, v{o1+rr}, s[62:63]')
            p(f'v_cvt_pk_bf16_f32 v{d+2*u}, v{o0}, v{o0+1}')
            p(f'v_cvt_pk_bf16_f32 v{d+2*u+1}, v{o0+2}, v{o0+3}')
    p('s_mov_b32 exec_hi, 0')
    for pr in range(2):
        d = S(2 * pr, 1)
        p(f'buffer_store_dwordx4 v[{d}:{d+3}], v248, s[{SRD_WS}:{SRD_WS+3}], s67 offen {CFG["STF"]}')
        p('s_add_u32 s67, s67, 20480')
    p('s_mov_b32 exec_hi, -1')


def ffn_prologue(p):
    p(f's_and_b32 s55, s{S_WAVE}, 1')
    p(f's_lshr_b32 s56, s{S_WAVE}, 1')
    p('v_and_b32 v3, 15, v2')
    p('v_lshrrev_b32 v4, 4, v2')
    p('v_lshrrev_b32 v5, 1, v3')
    p('v_xor_b32 v5, v5, v4')
    p('v_lshlrev_b32 v5, 4, v5')
    p('v_lshl_add_u32 v5, v3, 7, v5')
    p('s_lshl_b32 s57, s56, 13')
    p(f'v_add_u32 v{V_X0}, s57, v5')
    p(f'v_xor_b32 v{V_X1}, 64, v{V_X0}')
    p('v_lshrrev_b32 v5, 5, v2')
    p('v_lshlrev_b32 v5, 4, v5')
    p('v_bfe_u32 v6, v2, 4, 1')
    p('v_lshl_add_u32 v5, v6, 2, v5')
    p('v_bfe_u32 v6, v2, 2, 2')
    p('v_add_u32 v5, v5, v6')
    p(f'v_mul_u32_u24 v5, {WROW}, v5')
    p(f'v_add_u32 v5, {XREG}, v5')
    p('v_and_b32 v6, 3, v2')
    p('v_lshl_add_u32 v5, v6, 3, v5')
    p('s_lshl_b32 s57, s55, 8')
    p(f'v_add_u32 v{V_W}, s57, v5')
    p('s_lshl_b32 s57, s55, 5')
    p('s_add_u32 s57, s57, 192')
    p(f'v_add_u32 v{V_WA}, s57, v5')
    p(f's_mul_i32 s57, s{S_CG}, 448')
    p('v_lshlrev_b32 v5, 3, v4')
    p('v_add_u32 v5, s57, v5')
    p('s_lshl_b32 s57, s55, 8')
    p('v_add_u32 v6, s57, v5')
    p('s_lshl_b32 s57, s55, 5')
    p('s_add_u32 s57, s57, 192')
    p('v_add_u32 v7, s57, v5')
    p('v_lshlrev_b32 v248, 4, v2')
    p('s_waitcnt lgkmcnt(0)')
    srd(p, SRD_A, S_B1, 3456)
    for f in range(7):
        if f < 6:
            p(f'buffer_load_dwordx2 v[{200+2*f}:{201+2*f}], v6, s[{SRD_A}:{SRD_A+3}], 0 offen offset:{32*f}')
        else:
            p(f'buffer_load_dwordx2 v[{200+2*f}:{201+2*f}], v7, s[{SRD_A}:{SRD_A+3}], 0 offen')
    tlb_touch(p, 'F')
    p('s_mov_b32 s58, 0xffff0000')
    p('s_waitcnt vmcnt(0)')
    for f in range(7):
        for t in range(4):
            a = F_ACC(f, t)
            p(f'v_lshlrev_b32 v{a}, 16, v{200+2*f}')
            p(f'v_and_b32 v{a+1}, s58, v{200+2*f}')
            p(f'v_lshlrev_b32 v{a+2}, 16, v{201+2*f}')
            p(f'v_and_b32 v{a+3}, s58, v{201+2*f}')


def ffn_epilogue(p):
    k1 = -2.0 * math.sqrt(2.0 / math.pi) * math.log2(math.e)
    k2 = k1 * 0.044715
    C1, C2, ONE = 240, 242, 244
    for r in (0, 1):
        p(f'v_mov_b32 v{C1+r}, {hexf(k1)}')
        p(f'v_mov_b32 v{C2+r}, {hexf(k2)}')
        p(f'v_mov_b32 v{ONE+r}, 1.0')
    p('s_nop 5')
    p(f's_lshl_b32 s65, s{S_RB}, 3')
    p('s_lshl_b32 s66, s56, 2')
    p('s_add_u32 s65, s65, s66')
    p('s_mul_i32 s65, s65, 54')
    p(f's_mul_i32 s66, s{S_CG}, 7')
    p('s_add_u32 s67, s66, 3')
    p('s_lshl_b32 s68, s55, 2')
    p('s_add_u32 s66, s66, s68')
    p('s_add_u32 s69, s65, s67')
    p('s_lshl_b32 s69, s69, 10')
    p('s_lshl_b32 s68, s55, 3')
    p('s_add_u32 s69, s69, s68')
    p('s_add_u32 s68, s65, s66')
    p('s_lshl_b32 s68, s68, 10')

    def gelu(regs, tmp):
        for i, x in enumerate(regs):
            p(f'v_pk_mul_f32 v[{tmp+4*i}:{tmp+4*i+1}], v[{x}:{x+1}], v[{x}:{x+1}]')
        for i, x in enumerate(regs):
            p(f'v_pk_fma_f32 v[{tmp+4*i}:{tmp+4*i+1}], v[{tmp+4*i}:{tmp+4*i+1}], v[{C2}:{C2+1}], v[{C1}:{C1+1}]')
        for i, x in enumerate(regs):
            p(f'v_pk_mul_f32 v[{tmp+4*i}:{tmp+4*i+1}], v[{tmp+4*i}:{tmp+4*i+1}], v[{x}:{x+1}]')
        for i, x in enumerate(regs):
            p(f'v_exp_f32 v{tmp+4*i}, v{tmp+4*i}')
            p(f'v_exp_f32 v{tmp+4*i+1}, v{tmp+4*i+1}')
        for i, x in enumerate(regs):
            p(f'v_pk_add_f32 v[{tmp+4*i}:{tmp+4*i+1}], v[{tmp+4*i}:{tmp+4*i+1}], v[{ONE}:{ONE+1}]')
        for i, x in enumerate(regs):
            p(f'v_rcp_f32 v{tmp+4*i}, v{tmp+4*i}')
            p(f'v_rcp_f32 v{tmp+4*i+1}, v{tmp+4*i+1}')
        for i, x in enumerate(regs):
            p(f'v_pk_mul_f32 v[{x}:{x+1}], v[{tmp+4*i}:{tmp+4*i+1}], v[{x}:{x+1}]')

    OUT = 184
    n = 0
    for pr in range(3):
        p(f's_add_u32 s70, s66, {pr}')
        p('s_cmp_ge_u32 s70, 54')
        p(f's_cbranch_scc1 L_skip_pair{pr}')
        for t in range(4):
            a, b = F_ACC(2 * pr, t), F_ACC(2 * pr + 1, t)
            gelu([a, a + 2, b, b + 2], 152)
            o = OUT + 4 * (n % 4)
            n += 1
            p(f'v_cvt_pk_bf16_f32 v{o}, v{a}, v{a+1}')
            p(f'v_cvt_pk_bf16_f32 v{o+1}, v{a+2}, v{a+3}')
            p(f'v_cvt_pk_bf16_f32 v{o+2}, v{b}, v{b+1}')
            p(f'v_cvt_pk_bf16_f32 v{o+3}, v{b+2}, v{b+3}')
            p(f's_add_u32 s70, s68, {pr*1024 + t*54*1024}')
            p(f'buffer_store_dwordx4 v[{o}:{o+3}], v248, s[{SRD_WS}:{SRD_WS+3}], s70 offen {CFG["STF"]}')
        p.label(f'L_skip_pair{pr}')
    for t2 in range(2):
        a, b = F_ACC(6, 2 * t2), F_ACC(6, 2 * t2 + 1)
        gelu([a, a + 2, b, b + 2], 152)
        for u, x in enumerate((a, b)):
            o = OUT + 16 + 2 * ((2 * t2 + u) % 2)
            p(f'v_cvt_pk_bf16_f32 v{o}, v{x}, v{x+1}')
            p(f'v_cvt_pk_bf16_f32 v{o+1}, v{x+2}, v{x+3}')
            p(f's_add_u32 s70, s69, {(2*t2+u)*54*1024}')
            p(f'buffer_store_dwordx2 v[{o}:{o+1}], v248, s[{SRD_WS}:{SRD_WS+3}], s70 offen {CFG["STF"]}')


def gen_k1():
    p = Prog()
    p('s_cmp_ge_u32 s2, 256')
    p('s_cbranch_scc1 L_k1_end')
    p('s_load_dwordx4 s[4:7], s[0:1], 0')
    p('s_load_dwordx4 s[8:11], s[0:1], 16')
    p('s_load_dwordx4 s[12:15], s[0:1], 32')
    p('s_load_dwordx4 s[16:19], s[0:1], 48')
    p('s_load_dwordx2 s[20:21], s[0:1], 64')
    p('s_load_dwordx2 s[22:23], s[0:1], 88')
    p('s_load_dwordx2 s[100:101], s[0:1], 72')
    if CFG['PROF']:
        p('s_memrealtime s[88:89]')
        p('s_memtime s[82:83]')
    p('v_lshrrev_b32 v1, 6, v0')
    p('v_and_b32 v2, 63, v0')
    p(f'v_readfirstlane_b32 s{S_WAVE}, v1')
    k1_decode(p)
    p(f's_cmp_eq_u32 s{S_WAVE}, 0')
    p('s_cbranch_scc0 L_nopf')
    p('v_mov_b32 v10, v2')
    code_prefetch(p, 'L_k1_body', 'L_k1_end', CFG.get('K1_BYTES', 20480), 10, 255, 84, 'k1')
    p.label('L_nopf')
    p.label('L_k1_body')
    p(f's_cmp_ge_u32 s{S_WAVE}, 4')
    p('s_cbranch_scc0 L_consumer')
    p(f's_cmp_eq_u32 s{S_TYPE}, 0')
    p('s_cbranch_scc1 L_loader_A')
    p('s_branch L_loader_F')
    p.label('L_consumer')
    p(f's_cmp_eq_u32 s{S_TYPE}, 0')
    p('s_cbranch_scc0 L_cons_F')
    p('s_movk_i32 s99, 256')
    prefetch_setup(p, True)
    p('s_waitcnt lgkmcnt(0)')
    tlb_touch(p, 'A')
    attn_prologue(p)
    srd(p, SRD_WS, S_WS, WS_USED)
    srd(p, SRD_X, S_AX, 2048 * 1280)
    srd(p, SRD_W, S_WQKV, 640 * 3840)
    p('s_waitcnt lgkmcnt(0)')
    stamp(p, 0)
    p('s_barrier')
    stamp(p, 1)
    prefetch_issue(p, True)
    consumer_loop(p, True)
    stamp(p, 2)
    attn_epilogue(p)
    stamp(p, 3)
    if CFG['PROF']:
        prof_store(p, 4, 'CA', SRD_WS)
    p('s_endpgm')
    p.label('L_cons_F')
    p('s_movk_i32 s99, 256')
    prefetch_setup(p, False)
    ffn_prologue(p)
    srd(p, SRD_WS, S_WS, WS_USED)
    srd(p, SRD_X, S_AX, 2048 * 1280)
    srd(p, SRD_W, S_W1, 640 * 3456)
    p('s_waitcnt lgkmcnt(0)')
    stamp(p, 0)
    p('s_barrier')
    stamp(p, 1)
    prefetch_issue(p, False)
    consumer_loop(p, False)
    stamp(p, 2)
    ffn_epilogue(p)
    stamp(p, 3)
    if CFG['PROF']:
        prof_store(p, 4, 'CF', SRD_WS)
    p('s_endpgm')
    k1_loader(p, True)
    k1_loader(p, False)
    p.label('L_k1_end')
    p('s_endpgm')
    return p


def k2_stream(p, wave_a):
    NB = CFG['NBUF']
    tag = 'a' if wave_a else 'b'
    nsteps = 20 if wave_a else 18
    ACC = lambda t, f: K2_ACC + (t * 5 + f) * 4
    BA = lambda b, t: 36 * b + 4 * t
    BW = lambda b, f: 36 * b + 16 + 4 * f

    def ld_w(b, f):
        if f < 4:
            p(f'buffer_load_dwordx4 v[{BW(b,f)}:{BW(b,f)+3}], v{K2_VL}, s[12:15], s21 offen offset:{1024*f} {CFG["K2LDF"]}')
        else:
            p(f'buffer_load_dwordx4 v[{BW(b,f)}:{BW(b,f)+3}], v{K2_VL2}, s[12:15], s21 offen {CFG["K2LDF"]}')

    def ld_a(b, t):
        p(f'buffer_load_dwordx4 v[{BA(b,t)}:{BA(b,t)+3}], v{K2_VA+t}, s[12:15], s20 offen {CFG["K2LDF"]}')

    nrot = 16 if wave_a else 18
    state = {'n': 0}

    def adv():
        state['n'] += 1
        p('s_add_u32 s20, s20, 1024')
        p('s_add_u32 s21, s21, 5120')
        if not CFG['ROT2']:
            return
        if state['n'] < nrot:
            p('s_add_u32 s22, s22, 1')
            p(f's_cmp_eq_u32 s22, {nrot}')
            p(f's_cselect_b32 s23, {nrot*1024}, 0')
            p('s_sub_u32 s20, s20, s23')
            p('s_mul_i32 s23, s23, 5')
            p('s_sub_u32 s21, s21, s23')
        elif state['n'] == nrot and wave_a:
            p('s_mov_b32 s20, s34')
            p('s_mov_b32 s21, s35')

    for s in range(min(NB, nsteps)):
        for f in range(5):
            ld_w(s % NB, f)
        for t in range(4):
            ld_a(s % NB, t)
        adv()
    for r in range(80):
        p(f'v_mov_b32 v{K2_ACC+r}, 0')
    stamp(p, 1)
    for s in range(nsteps):
        b = s % NB
        issued = min(s + NB, nsteps)
        newer = (issued - s - 1) * 9
        p(f's_waitcnt vmcnt({newer})')
        more = s + NB < nsteps
        tail = wave_a and s >= 16
        for f in range(5):
            if not tail:
                for t in range(4):
                    acc = ACC(t, f)
                    p(f'v_mfma_f32_16x16x32_bf16 v[{acc}:{acc+3}], v[{BW(b,f)}:{BW(b,f)+3}], v[{BA(b,t)}:{BA(b,t)+3}], v[{acc}:{acc+3}]')
            else:
                for hgo in range(2):
                    for t in range(4):
                        acc = ACC(t, f)
                        w = BW(b, f) + 2 * hgo
                        a = BA(b, 2 * hgo + (t >> 1)) + 2 * (t & 1)
                        p(f'v_mfma_f32_16x16x16_bf16 v[{acc}:{acc+3}], v[{w}:{w+1}], v[{a}:{a+1}], v[{acc}:{acc+3}]')
            if more:
                ld_w(b, f)
        if more:
            for t in range(4):
                ld_a(b, t)
            adv()
    p('s_branch L_k2_reduce')


K2_ACC = 144
K2_VL, K2_VL2, K2_VA = 224, 225, 226
K2_G, K2_B2 = 230, 232
K2_LDS = 4 * 4 * 5120


def gen_k2():
    global K2_ACC
    NB = CFG['NBUF']
    assert NB * 36 + 80 <= 224
    K2_ACC = NB * 36
    p = Prog()
    p('s_cmp_ge_u32 s2, 256')
    p('s_cbranch_scc1 L_k2_end')
    p('s_load_dwordx2 s[4:5], s[0:1], 88')
    p('s_load_dwordx2 s[6:7], s[0:1], 72')
    p('s_load_dwordx2 s[8:9], s[0:1], 56')
    if CFG['PROF']:
        p('s_memrealtime s[88:89]')
        p('s_memtime s[82:83]')
    p('v_lshrrev_b32 v1, 6, v0')
    p('v_and_b32 v2, 63, v0')
    p(f'v_readfirstlane_b32 s{S_WAVE}, v1')
    p('s_and_b32 s52, s2, 7')
    p('s_lshr_b32 s53, s2, 3')
    if CFG['MAP2'] == '8x4':
        p('s_lshr_b32 s54, s52, 1')
        p('s_lshl_b32 s54, s54, 3')
        p('s_lshr_b32 s55, s53, 2')
        p('s_add_u32 s26, s54, s55')
        p('s_and_b32 s54, s52, 1')
        p('s_lshl_b32 s54, s54, 2')
        p('s_and_b32 s55, s53, 3')
        p('s_add_u32 s27, s54, s55')
    else:
        p('s_lshl_b32 s54, s52, 2')
        p('s_lshr_b32 s55, s53, 3')
        p('s_add_u32 s26, s54, s55')
        p('s_and_b32 s27, s53, 7')
    p(f's_cmp_eq_u32 s{S_WAVE}, 0')
    p('s_cbranch_scc0 L_k2_nopf')
    p('v_mov_b32 v10, v2')
    code_prefetch(p, 'L_k2_body', 'L_k2_end', CFG.get('K2_BYTES', 16384), 10, 255, 84, 'k2')
    p.label('L_k2_nopf')
    p.label('L_k2_body')
    p(f'v_lshlrev_b32 v{K2_VL}, 4, v2')
    p(f'v_add_u32 v{K2_VL2}, 4096, v{K2_VL}')
    p(f's_cmp_eq_u32 s{S_WAVE}, 0')
    p('s_mov_b32 s56, 20480')
    p('s_cselect_b32 s56, s56, 55296')
    p(f's_mov_b32 s57, {OA_OFF}')
    p(f's_cselect_b32 s57, s57, {H_OFF}')
    p(f's_mov_b32 s58, {WO_OFF}')
    p(f's_cselect_b32 s58, s58, {W2_OFF}')
    p('s_cselect_b32 s59, 20, 54')
    p(f's_mul_i32 s60, s{S_WAVE}, 18')
    p('s_cselect_b32 s60, 18, s60')
    p('s_sub_u32 s60, s60, 18')
    p('s_lshl_b32 s61, s26, 2')
    p('s_mul_i32 s61, s61, s56')
    p('s_add_u32 s61, s61, s57')
    p('s_lshl_b32 s62, s60, 10')
    p('s_add_u32 s20, s61, s62')
    p('s_mul_i32 s61, s27, s59')
    p('s_add_u32 s61, s61, s60')
    p('s_mul_i32 s61, s61, 5120')
    p('s_add_u32 s21, s61, s58')
    if CFG['ROT2']:
        p('s_add_u32 s34, s20, 16384')
        p('s_add_u32 s35, s21, 81920')
        if CFG['ROT2'] == 2:
            p('s_xor_b32 s62, s26, s27')
            p('s_and_b32 s62, s62, 1')
            p(f's_cmp_eq_u32 s{S_WAVE}, 0')
            p('s_cselect_b32 s63, 8, 9')
            p('s_mul_i32 s22, s62, s63')
        elif CFG['ROT2'] == 3:
            p('s_add_u32 s62, s26, s27')
            p('s_mul_i32 s63, s62, 43')
            p('s_lshr_b32 s63, s63, 7')
            p('s_mul_i32 s63, s63, 3')
            p('s_sub_u32 s62, s62, s63')
            p(f's_cmp_eq_u32 s{S_WAVE}, 0')
            p('s_cselect_b32 s63, 5, 6')
            p('s_mul_i32 s22, s62, s63')
        else:
            p('s_and_b32 s62, s26, 7')
            p('s_and_b32 s63, s27, 3')
            p('s_lshl_b32 s63, s63, 1')
            p('s_add_u32 s62, s62, s63')
            p(f's_cmp_eq_u32 s{S_WAVE}, 0')
            p('s_cselect_b32 s63, 16, 18')
            p('s_mul_i32 s62, s62, s63')
            p('s_lshr_b32 s22, s62, 3')
            p('s_cmp_ge_u32 s22, s63')
            p('s_cselect_b32 s62, s63, 0')
            p('s_sub_u32 s22, s22, s62')
        p('s_lshl_b32 s62, s22, 10')
        p('s_add_u32 s20, s20, s62')
        p('s_mul_i32 s62, s22, 5120')
        p('s_add_u32 s21, s21, s62')
    for t in range(4):
        p(f's_mul_i32 s62, s56, {t}')
        p(f'v_add_u32 v{K2_VA+t}, s62, v{K2_VL}')
    p('v_and_b32 v3, 15, v2')
    p('v_lshrrev_b32 v4, 4, v2')
    p('s_lshl_b32 s62, s26, 6')
    p(f's_lshl_b32 s63, s{S_WAVE}, 4')
    p('s_add_u32 s62, s62, s63')
    p('v_add_u32 v5, s62, v3')
    p('v_lshlrev_b32 v6, 3, v5')
    p(f'v_add_u32 v6, {G_OFF}, v6')
    p('s_mul_i32 s63, s27, 160')
    p('v_lshlrev_b32 v7, 4, v4')
    p('v_add_u32 v7, s63, v7')
    p('v_lshlrev_b32 v8, 3, v4')
    p('v_add_u32 v8, s63, v8')
    p('s_movk_i32 s63, 1280')
    p('v_mul_u32_u24 v5, s63, v5')
    p('v_add_u32 v242, v5, v7')
    p('v_add_u32 v243, v5, v8')
    p('s_waitcnt lgkmcnt(0)')
    srd(p, 12, 4, WS_USED)
    srd(p, 16, 8, 1280)
    srd(p, 28, 6, 2048 * 1280)
    stamp(p, 0)
    p(f'buffer_load_dwordx2 v[{K2_G}:{K2_G+1}], v6, s[12:15], 0 offen')
    p(f'buffer_load_dwordx4 v[{K2_B2}:{K2_B2+3}], v7, s[16:19], 0 offen')
    p(f'buffer_load_dwordx4 v[{K2_B2+4}:{K2_B2+7}], v7, s[16:19], 0 offen offset:64')
    p(f'buffer_load_dwordx2 v[{K2_B2+8}:{K2_B2+9}], v8, s[16:19], 0 offen offset:128')
    p(f's_cmp_eq_u32 s{S_WAVE}, 0')
    p('s_cbranch_scc0 L_k2_b')
    k2_stream(p, True)
    p.label('L_k2_b')
    k2_stream(p, False)
    p.label('L_k2_reduce')
    stamp(p, 2)
    ACC = lambda t, f: K2_ACC + (t * 5 + f) * 4
    p(f's_mul_i32 s62, s{S_WAVE}, 5120')
    p(f'v_add_u32 v3, s62, v{K2_VL}')
    p('s_nop 7')
    p('v_add_u32 v4, 40960, v3')
    for t in range(4):
        for f in range(5):
            p(f'ds_write_b128 v{3 + (t >> 1)}, v[{ACC(t,f)}:{ACC(t,f)+3}] offset:{(t & 1)*20480 + f*1024}')
    p(f's_mul_i32 s62, s{S_WAVE}, 20480')
    p(f'v_add_u32 v250, s62, v{K2_VL}')
    p('s_waitcnt lgkmcnt(0)')
    p('s_barrier')
    R = lambda w, f: (w * 5 + f) * 4
    for f in range(5):
        for w in range(4):
            p(f'ds_read_b128 v[{R(w,f)}:{R(w,f)+3}], v250 offset:{w*5120 + f*1024}')
    p('s_mov_b32 s62, 0xffff0000')
    B = lambda f: 100 + 4 * f
    for pr in range(2):
        for d in range(4):
            src = K2_B2 + 4 * pr + d
            f, r = 2 * pr + (d >> 1), 2 * (d & 1)
            p(f'v_lshlrev_b32 v{B(f)+r}, 16, v{src}')
            p(f'v_and_b32 v{B(f)+r+1}, s62, v{src}')
    for d in range(2):
        src = K2_B2 + 8 + d
        p(f'v_lshlrev_b32 v{B(4)+2*d}, 16, v{src}')
        p(f'v_and_b32 v{B(4)+2*d+1}, s62, v{src}')
    p(f'v_mov_b32 v120, v{K2_G}')
    p(f'v_mov_b32 v121, v{K2_G}')
    p(f'v_mov_b32 v122, v{K2_G+1}')
    p(f'v_mov_b32 v123, v{K2_G+1}')
    for f in range(5):
        p(f's_waitcnt lgkmcnt({min(15, 16-4*f)})' if f < 4 else 's_waitcnt lgkmcnt(0)')
        if f == 0:
            p('s_waitcnt lgkmcnt(15)')
        for r in (0, 2):
            a, b1, b2_, b3 = R(0, f) + r, R(1, f) + r, R(2, f) + r, R(3, f) + r
            p(f'v_pk_add_f32 v[{b1}:{b1+1}], v[{b1}:{b1+1}], v[{b2_}:{b2_+1}]')
            p(f'v_pk_add_f32 v[{b3}:{b3+1}], v[{b3}:{b3+1}], v[{B(f)+r}:{B(f)+r+1}]')
            p(f'v_pk_mul_f32 v[{a}:{a+1}], v[{a}:{a+1}], v[120:121]')
            p(f'v_pk_add_f32 v[{b1}:{b1+1}], v[{b1}:{b1+1}], v[{b3}:{b3+1}]')
            p(f'v_pk_fma_f32 v[{a}:{a+1}], v[{b1}:{b1+1}], v[122:123], v[{a}:{a+1}]')
    O = 124
    for pr in range(2):
        for u in range(2):
            a = R(0, 2 * pr + u)
            p(f'v_cvt_pk_bf16_f32 v{O+4*pr+2*u}, v{a}, v{a+1}')
            p(f'v_cvt_pk_bf16_f32 v{O+4*pr+2*u+1}, v{a+2}, v{a+3}')
        p(f'buffer_store_dwordx4 v[{O+4*pr}:{O+4*pr+3}], v242, s[28:31], 0 offen offset:{64*pr} {CFG["OUTF"]}')
    a = R(0, 4)
    p(f'v_cvt_pk_bf16_f32 v{O+8}, v{a}, v{a+1}')
    p(f'v_cvt_pk_bf16_f32 v{O+9}, v{a+2}, v{a+3}')
    p(f'buffer_store_dwordx2 v[{O+8}:{O+9}], v243, s[28:31], 0 offen offset:128 {CFG["OUTF"]}')
    stamp(p, 3)
    if CFG['PROF']:
        prof_store(p, 4, 'K2', 12)
    p.label('L_k2_end')
    p('s_endpgm')
    return p


HEADER = """; Kernarg layout (96 bytes, ptrs only, base s[0:1]):
; @launch kernel=gm_k1_kernel grid=(256,1,1) block=(512,1,1) lds=%d
; @launch kernel=gm_k2_kernel grid=(256,1,1) block=(256,1,1) lds=%d
.amdgcn_target "amdgcn-amd-amdhsa--gfx950"
"""

KD = """.amdhsa_kernel %s
  .amdhsa_next_free_vgpr %d
  .amdhsa_next_free_sgpr 102
  .amdhsa_accum_offset %d
  .amdhsa_group_segment_fixed_size 0
  .amdhsa_kernarg_size 96
  .amdhsa_user_sgpr_count 2
  .amdhsa_user_sgpr_kernarg_segment_ptr 1
  .amdhsa_system_sgpr_workgroup_id_x 1
  .amdhsa_float_denorm_mode_32 3
.end_amdhsa_kernel
"""


def main():
    k1 = gen_k1()
    k2 = gen_k2()
    t1, t2 = k1.finish(), k2.finish()
    s = HEADER % (K1_LDS, K2_LDS)
    if CFG['K2TWICE']:
        ln = [l for l in s.split('\n') if 'kernel=gm_k2_kernel' in l][0]
        s = s.replace(ln, ln + '\n' + ln)
    s += '.text\n'
    for name, t in (('gm_k1_kernel', t1), ('gm_k2_kernel', t2)):
        s += f'.globl {name}\n.p2align 8\n.type {name},@function\n{name}:\n{t}'
    s += '.p2align 8\n.fill 64, 4, 0xbf800000\n' if False else ''
    s += '.section .rodata,"a"\n.p2align 6\n'
    s += KD % ('gm_k1_kernel', 256, 256)
    s += '.p2align 6\n'
    s += KD % ('gm_k2_kernel', 256, 256)
    out = CFG.get('OUT', f'cdna_kernels/{NAME}.s')
    open(out, 'w').write(s)
    print('written', out, len(s), 'bytes; nops inserted k1', k1.nops_inserted, 'k2', k2.nops_inserted)


if __name__ == '__main__':
    main()
```

```python
import re

REG_RE = re.compile(r'^(-?)(?:abs\()?([vsa])(?:(\d+)|\[(\d+):(\d+)\])\)?$')


def regs_of(op):
    op = op.strip()
    if op in ('vcc', 'exec', 'm0', 'scc'):
        return {(op, 0)}
    if op in ('vcc_lo', 'vcc_hi'):
        return {('vcc', 0)}
    m = REG_RE.match(op)
    if not m:
        return set()
    k = m.group(2)
    if m.group(3) is not None:
        return {(k, int(m.group(3)))}
    return {(k, i) for i in range(int(m.group(4)), int(m.group(5)) + 1)}


TRANS = ('v_exp_f32', 'v_log_f32', 'v_rcp_f32', 'v_rsq_f32', 'v_sqrt_f32', 'v_sin_f32', 'v_cos_f32')


class Ins:
    __slots__ = ('text', 'op', 'cls', 'rd', 'wr', 'ws', 'passes', 'srcc', 'wide_store', 'dpp')

    def __init__(self, text):
        self.text = text
        t = text.split(';')[0].strip()
        self.rd, self.wr = set(), set()
        self.passes = 0
        self.srcc = set()
        self.wide_store = False
        self.dpp = False
        self.ws = 1
        if not t or t.endswith(':') or t.startswith('.'):
            self.op, self.cls, self.ws = '', 'pseudo', 0
            return
        parts = t.split(None, 1)
        op = parts[0]
        self.op = op
        rest = parts[1] if len(parts) > 1 else ''
        ops = [o.strip() for o in rest.split(',')] if rest else []
        mods = ''
        if ops:
            sp = ops[-1].split()
            if len(sp) > 1:
                ops[-1] = sp[0]
                mods = ' '.join(sp[1:])
        R = [regs_of(o) for o in ops]
        allr = lambda xs: set().union(*xs) if xs else set()
        if op == 's_nop':
            self.cls = 'nop'
            self.ws = int(ops[0], 0) + 1
        elif op.startswith('v_mfma'):
            self.cls = 'mfma'
            self.passes = 8 if '32x32' in op else 4
            self.wr = R[0]
            self.rd = allr(R[1:])
            self.srcc = R[3]
        elif op.startswith('v_permlane') and 'swap' in op:
            self.cls = 'permlane'
            self.wr = R[0] | R[1]
            self.rd = R[0] | R[1]
        elif op.startswith('v_swap'):
            self.cls = 'valu'
            self.wr = R[0] | R[1]
            self.rd = R[0] | R[1]
        elif op.startswith('v_cmp'):
            self.cls = 'valu'
            self.wr = R[0]
            self.rd = allr(R[1:])
            if op.startswith('v_cmpx'):
                self.wr |= {('exec', 0)}
        elif op.startswith('v_readfirstlane') or op.startswith('v_readlane'):
            self.cls = 'readlane'
            self.wr = R[0]
            self.rd = allr(R[1:])
        elif op.startswith('v_'):
            self.cls = 'trans' if op.replace('_e32', '').replace('_e64', '') in TRANS else 'valu'
            self.wr = R[0]
            self.rd = allr(R[1:])
            if op.startswith(('v_fmac', 'v_dot2c', 'v_pk_fmac', 'v_mac')):
                self.rd |= R[0]
            if op.startswith(('v_add_co', 'v_sub_co', 'v_addc_co', 'v_subb_co')):
                self.wr = R[0] | R[1]
                self.rd = allr(R[2:])
            if op.startswith('v_cndmask') and len(ops) == 3:
                self.rd |= {('vcc', 0)}
            if 'row_' in mods or 'quad_perm' in mods or '_dpp' in op:
                self.dpp = True
        elif op.startswith('ds_read') or op.startswith('ds_bpermute') or op.startswith('ds_swizzle'):
            self.cls = 'ds'
            self.wr = R[0]
            self.rd = allr(R[1:])
        elif op.startswith('ds_'):
            self.cls = 'ds'
            self.rd = allr(R)
        elif op.startswith('buffer_load') or op.startswith('global_load'):
            self.cls = 'vmem'
            if ' lds' in (' ' + mods) or op.startswith('global_load_lds'):
                self.rd = allr(R) | {('m0', 0)}
            else:
                self.wr = R[0]
                self.rd = allr(R[1:])
        elif op.startswith('buffer_store') or op.startswith('global_store') or op.startswith('buffer_atomic') or op.startswith('global_atomic'):
            self.cls = 'vmem'
            self.rd = allr(R)
            if 'x4' in op or 'x3' in op:
                self.wide_store = True
                self.srcc = R[0] if op.startswith('buffer') else R[1]
        elif op.startswith('s_'):
            self.cls = 'salu'
            if op.startswith(('s_cmp', 's_bitcmp', 's_waitcnt', 's_barrier', 's_branch', 's_cbranch', 's_endpgm', 's_setprio', 's_sleep')):
                self.rd = allr(R)
            else:
                self.wr = R[0] if R else set()
                self.rd = allr(R[1:])
                if 'saveexec' in op:
                    self.wr |= {('exec', 0)}
        else:
            raise ValueError('unknown instruction: ' + text)


def is_v(s):
    return {r for r in s if r[0] in ('v', 'a')}


def is_s(s):
    return {r for r in s if r[0] in ('s', 'vcc')}


def need(p, c):
    n = 0
    pv = is_v(p.wr)
    valu_p = p.cls in ('valu', 'trans', 'permlane', 'readlane')
    if valu_p:
        if pv & c.rd:
            if c.cls == 'mfma':
                n = max(n, 2)
            if c.cls == 'permlane':
                n = max(n, 2)
            if c.dpp:
                n = max(n, 2)
            if c.cls == 'readlane':
                n = max(n, 1)
            if p.cls == 'trans' and c.cls in ('valu', 'permlane', 'readlane', 'mfma', 'ds', 'vmem'):
                n = max(n, 1)
            if p.cls == 'permlane':
                n = max(n, 1)
        ps = is_s(p.wr)
        if ps & c.rd:
            if c.cls == 'vmem':
                n = max(n, 5)
            elif c.cls == 'readlane':
                n = max(n, 4)
            elif c.cls in ('valu', 'trans', 'permlane', 'mfma'):
                n = max(n, 2)
            elif c.cls == 'salu':
                n = max(n, 4)
        if ('exec', 0) in p.wr:
            if c.cls in ('mfma', 'readlane', 'permlane'):
                n = max(n, 4)
            if c.dpp:
                n = max(n, 5)
    if p.cls == 'mfma':
        d = p.wr
        big = {4: 8, 8: 12}[p.passes]
        if c.cls == 'mfma':
            if d & c.srcc:
                if not (d == c.srcc and p.passes == c.passes and p.op == c.op):
                    n = max(n, {4: 6, 8: 10}[p.passes] + (2 if p.op != c.op else 0))
            if d & (c.rd - c.srcc if c.srcc else c.rd):
                n = max(n, big)
            if d & c.wr and not (d == c.wr and d == c.srcc):
                if not (d & c.srcc):
                    n = max(n, big)
        else:
            if d & (c.rd | c.wr):
                n = max(n, big)
        if c.cls in ('valu', 'trans', 'permlane') and (p.srcc & c.wr):
            n = max(n, {4: 3, 8: 7}[p.passes])
    if p.op.startswith('v_dot'):
        if p.wr & (c.rd | c.wr):
            same_c = (c.op == p.op and c.wr == p.wr)
            if not same_c:
                n = max(n, 3)
    if p.wide_store and (p.srcc & c.wr):
        n = max(n, 2)
    if p.cls == 'salu' and ('m0', 0) in p.wr and ('m0', 0) in c.rd:
        n = max(n, 1)
    if p.cls == 'salu' and ('exec', 0) in p.wr and c.dpp:
        n = max(n, 1)
    return n


class Prog:
    def __init__(self):
        self.lines = []

    def __call__(self, text):
        for ln in text.split('\n'):
            ln = ln.strip()
            if ln:
                self.lines.append(ln)
        return self

    def label(self, name):
        self.lines.append(name + ':')

    def raw(self, text):
        self.lines.append('@@RAW ' + text)

    def finish(self, window=24):
        out = []
        hist = []
        nn = 0
        for ln in self.lines:
            if ln.startswith('@@RAW '):
                out.append(ln[6:])
                continue
            ins = Ins(ln)
            if ins.cls == 'pseudo':
                out.append(ln)
                continue
            req = 0
            dist = 0
            for p in reversed(hist[-window:]):
                k = need(p, ins)
                if k > dist:
                    req = max(req, k - dist)
                dist += p.ws
                if dist >= 16:
                    break
            while req > 0:
                k = min(req, 16)
                nop = Ins('s_nop %d' % (k - 1))
                hist.append(nop)
                out.append('    ' + nop.text)
                req -= k
                nn += 1
            hist.append(ins)
            out.append('    ' + ln)
            if ins.op in ('s_branch', 's_endpgm'):
                hist = []
        self.nops_inserted = nn
        return '\n'.join(out) + '\n'


def vr(b, n=1):
    return 'v%d' % b if n == 1 else 'v[%d:%d]' % (b, b + n - 1)


def ar(b, n=1):
    return 'a%d' % b if n == 1 else 'a[%d:%d]' % (b, b + n - 1)


def sr(b, n=1):
    return 's%d' % b if n == 1 else 's[%d:%d]' % (b, b + n - 1)
```

```python
import sys, os, math, struct
sys.path.insert(0, os.path.dirname(os.path.abspath(__file__)))
from asmlib import Prog, vr, ar, sr

NAME = 'gated_mix__sliding_local_dilated__dense_activation_gelu__prompt'

CFG = dict(MAP1='m82', MAP2='8x4', NBUF=4, PROF=0, NOMFMA=0, NOLOAD=0, NODS=0, STF='sc1', LDF='', ULDF='nt', PFF='', PF=0, TT=1, ROT=1, ROT2=0, K2TWICE=0, K2V=1, M35=1, TEARLY=0, K2PF=1, DA=12, NW=4, INF=32, TMODE='reg', K2NOMFMA=0, K2LDF='', OUTF='')
for a in sys.argv[1:]:
    if '=' in a:
        k, v = a.split('=')
        CFG[k] = int(v) if v.lstrip('-').isdigit() else v.replace('+', ' ')

H_OFF = 0
OA_OFF = H_OFF + 128 * 54 * 1024
W2_OFF = OA_OFF + 128 * 20 * 1024
WO_OFF = W2_OFF + 8 * 54 * 5120
G_OFF = WO_OFF + 8 * 20 * 5120
WS_USED = G_OFF + 2048 * 8
PROF_OFF = 16 << 20

XREG = 144 * 128
WROW = 480
WREG = 64 * WROW
SLOT = XREG + WREG
XFLAG = 3 * 49152 + 15360
SCR = 3 * SLOT
K1_LDS = 163840


def f32(x):
    return struct.unpack('<I', struct.pack('<f', x))[0]


def hexf(x):
    return '0x%08x' % f32(x)


S_AX, S_WQKV, S_WO, S_BX, S_W1, S_B1, S_W2, S_B2, S_GW, S_WS = 4, 6, 8, 10, 12, 14, 16, 18, 20, 22
S_WAVE, S_TYPE, S_RB, S_CG = 24, 25, 26, 27
SRD_X, SRD_W, SRD_I4, SRD_WS, SRD_A, SRD_B = 28, 32, 36, 40, 44, 48


def srd(p, base, ptr, nbytes):
    p(f's_mov_b32 s{base}, s{ptr}')
    p(f's_mov_b32 s{base+1}, s{ptr+1}')
    p(f's_mov_b32 s{base+2}, {nbytes}')
    p(f's_mov_b32 s{base+3}, 0x20000')


def code_prefetch(p, lbl_from, lbl_to, nbytes, vtmp, vdst, s, tag):
    p(f's_getpc_b64 s[{s}:{s+1}]')
    p.label(f'L_pc_{tag}')
    p(f's_add_u32 s{s}, s{s}, {lbl_from}-L_pc_{tag}')
    p(f's_addc_u32 s{s+1}, s{s+1}, 0')
    p(f'v_lshlrev_b32 v{vtmp}, 6, v{vtmp}')
    n = (nbytes + 4095) // 4096
    for j in range(n):
        p(f'v_min_u32 v{vtmp+1}, {lbl_to}-{lbl_from}, v{vtmp}')
        p(f'global_load_dword v{vdst}, v{vtmp+1}, s[{s}:{s+1}]')
        if j + 1 < n:
            p(f'v_add_u32 v{vtmp}, 4096, v{vtmp}')
    return n


def stamp(p, idx, sbase=90):
    if CFG['PROF']:
        p(f'{"s_memtime" if CFG["PROF"] >= 2 else "s_memrealtime"} s[{sbase+2*idx}:{sbase+2*idx+1}]')


def k1_decode(p):
    p('s_and_b32 s52, s2, 7')
    p('s_lshr_b32 s53, s2, 3')
    if CFG['MAP1'] == 'mixed':
        p(f's_lshr_b32 s{S_TYPE}, s53, 4')
        p('s_and_b32 s54, s53, 15')
        p('s_lshr_b32 s55, s52, 1')
        p('s_lshl_b32 s55, s55, 2')
        p('s_lshr_b32 s56, s54, 2')
        p(f's_add_u32 s{S_RB}, s55, s56')
        p('s_and_b32 s55, s52, 1')
        p('s_lshl_b32 s55, s55, 2')
        p('s_and_b32 s56, s54, 3')
        p(f's_add_u32 s{S_CG}, s55, s56')
    elif CFG['MAP1'] == 'm82':
        p(f's_lshr_b32 s{S_TYPE}, s53, 4')
        p('s_lshr_b32 s55, s52, 2')
        p('s_lshl_b32 s55, s55, 3')
        p('s_and_b32 s56, s53, 7')
        p(f's_add_u32 s{S_RB}, s55, s56')
        p('s_and_b32 s55, s52, 3')
        p('s_lshl_b32 s55, s55, 1')
        p('s_bfe_u32 s56, s53, 0x10003')
        p(f's_add_u32 s{S_CG}, s55, s56')
    else:
        p(f's_lshr_b32 s{S_TYPE}, s52, 2')
        p('s_and_b32 s54, s52, 3')
        p('s_lshr_b32 s55, s54, 1')
        p('s_lshl_b32 s55, s55, 3')
        p('s_lshr_b32 s56, s53, 2')
        p(f's_add_u32 s{S_RB}, s55, s56')
        p('s_and_b32 s55, s54, 1')
        p('s_lshl_b32 s55, s55, 2')
        p('s_and_b32 s56, s53, 3')
        p(f's_add_u32 s{S_CG}, s55, s56')


def k1_loader(p, attn):
    tag = 'A' if attn else 'F'
    rowstride = 3840 if attn else 3456
    VOFF = 10
    VL = 2
    p.label(f'L_loader_{tag}')
    p(f's_sub_u32 s57, s{S_WAVE}, 4')
    p(f'v_lshrrev_b32 v3, 3, v{VL}')
    p('s_lshl_b32 s58, s57, 3')
    p('v_add_u32 v3, s58, v3')
    p(f's_lshl_b32 s59, s{S_RB}, 7')
    if attn:
        p('s_sub_u32 s59, s59, 16')
    p('v_add_u32 v3, s59, v3')
    p('s_and_b32 s58, s57, 1')
    p('s_lshl_b32 s58, s58, 2')
    p(f'v_lshrrev_b32 v4, 4, v{VL}')
    p('v_add_u32 v4, s58, v4')
    p(f'v_and_b32 v5, 7, v{VL}')
    p('v_xor_b32 v4, v4, v5')
    p('v_lshlrev_b32 v4, 4, v4')
    p('s_movk_i32 s58, 1280')
    p('s_movk_i32 s59, 2047')
    for i in range(5):
        p(f'v_add_u32 v5, {32*i}, v3')
        if attn and i == 0:
            p('v_max_i32 v5, 0, v5')
        if (not attn) and i == 4:
            p('v_min_u32 v5, s59, v5')
        p('v_mul_u32_u24 v5, s58, v5')
        p(f'v_add_u32 v{VOFF+i if i < 4 else 6}, v5, v4')
    p('s_lshl_b32 s58, s57, 6')
    p(f'v_add_u32 v7, s58, v{VL}')
    p(f's_mov_b32 s60, {rowstride}')
    if attn:
        p(f's_mul_i32 s61, s{S_CG}, 160')
    else:
        p(f's_mul_i32 s61, s{S_CG}, 448')

    def w_offset(i):
        base = 64 * (4 * i - 18)
        dst = VOFF + i if i > 4 else 8
        if base >= 0:
            p(f'v_add_u32 v3, {base}, v7')
        else:
            p(f'v_subrev_u32 v3, {-base}, v7')
            p('v_max_i32 v3, 0, v3')
        p('v_mul_u32_u24 v4, 2185, v3')
        p('v_lshrrev_b32 v4, 16, v4')
        p('v_mul_u32_u24 v5, 30, v4')
        p('v_sub_u32 v5, v3, v5')
        p('v_lshrrev_b32 v3, 1, v4')
        p('v_xor_b32 v3, v3, v4')
        p('v_and_b32 v3, 4, v3')
        p('v_mul_u32_u24 v3, 3, v3')
        p('v_xor_b32 v4, v3, v4')
        p('v_mul_u32_u24 v4, s60, v4')
        if attn:
            p('v_mul_u32_u24 v3, 205, v5')
            p('v_lshrrev_b32 v3, 11, v3')
            p('v_mul_u32_u24 v3, 1120, v3')
            p('v_lshlrev_b32 v5, 4, v5')
            p('v_add3_u32 v5, v5, v3, s61')
        else:
            p('v_lshlrev_b32 v5, 4, v5')
            p('v_add_u32 v5, s61, v5')
            p('v_min_u32 v5, 3440, v5')
        p(f'v_add_u32 v{dst}, v4, v5')
        if i == 4:
            p('s_cmp_lt_u32 s57, 2')
            p('s_cselect_b64 vcc, -1, 0')
            p(f'v_cndmask_b32 v{VOFF+4}, v8, v6, vcc')

    p('s_waitcnt lgkmcnt(0)')
    if attn:
        srd(p, SRD_X, S_AX, 2048 * 1280)
        srd(p, SRD_W, S_WQKV, 640 * 3840)
    else:
        srd(p, SRD_X, S_AX, 2048 * 1280)
        srd(p, SRD_W, S_W1, 640 * 3456)
    p('s_cmp_lt_u32 s57, 2')
    for k in range(3):
        p(f's_cselect_b32 s{SRD_I4+k}, s{SRD_X+k}, s{SRD_W+k}')
    p(f's_mov_b32 s{SRD_I4+3}, 0x20000')
    p('s_movk_i32 s73, 128')
    p('s_cselect_b32 s73, s73, %d' % (64 * rowstride))
    if CFG['ROT']:
        p(f's_and_b32 s79, s{S_RB}, 7')
        p('s_lshr_b32 s80, s79, 2')
        p('s_add_u32 s79, s79, s80')
        p(f's_and_b32 s80, s{S_CG}, 1')
        p(f's_lshl_b32 s81, s{S_TYPE}, 1')
        p('s_add_u32 s80, s80, s81')
        p('s_mul_i32 s80, s80, 5')
        p('s_lshr_b32 s80, s80, 1')
        p('s_add_u32 s79, s79, s80')
        p('s_cmp_ge_u32 s79, 10')
        p('s_cselect_b32 s80, 10, 0')
        p('s_sub_u32 s79, s79, s80')
    else:
        p('s_mov_b32 s79, 0')
    p('s_lshl_b32 s74, s79, 7')
    p(f's_mul_i32 s75, s79, {64*rowstride}')
    p('s_mul_i32 s76, s79, s73')
    p('s_lshl_b32 s77, s57, 10')

    def issue_stage(st, lazy=False):
        slot = st % 3
        for i in range(12):
            if lazy and i >= 4:
                w_offset(i)
            p(f's_add_u32 m0, s77, {slot*SLOT + i*4096}')
            if i < 4:
                if i == 0:
                    p('s_nop 0')
                p(f'buffer_load_dwordx4 v{VOFF+i}, s[{SRD_X}:{SRD_X+3}], s74 offen {CFG["LDF"]} lds')
            elif i == 4:
                p(f'buffer_load_dwordx4 v{VOFF+i}, s[{SRD_I4}:{SRD_I4+3}], s76 offen {CFG["LDF"]} lds')
            else:
                p(f'buffer_load_dwordx4 v{VOFF+i}, s[{SRD_W}:{SRD_W+3}], s75 offen {CFG["LDF"]} lds')
        p('s_add_u32 s74, s74, 128')
        p(f's_add_u32 s75, s75, {64*rowstride}')
        p('s_add_u32 s76, s76, s73')
        if CFG['ROT']:
            p('s_add_u32 s79, s79, 1')
            p('s_cmp_eq_u32 s79, 10')
            for r in (79, 74, 75, 76):
                p(f's_cselect_b32 s{r}, 0, s{r}')

    stamp(p, 0)
    issue_stage(0, lazy=True)
    issue_stage(1)
    p('s_lshl_b32 s62, s57, 8')
    p('s_add_u32 s62, s62, s2')
    p('s_cmp_lt_u32 s62, 592')
    p('s_cselect_b32 s63, 1, 0')
    p('s_cmp_lt_u32 s57, 3')
    p('s_cselect_b32 s63, s63, 0')
    p('s_and_b32 s64, s62, 7')
    p('s_lshr_b32 s65, s62, 3')
    p('s_lshl_b32 s66, s65, 5')
    p('s_mov_b32 s67, 16')
    p('s_mov_b32 s68, 4')
    p('s_mul_i32 s69, s64, 54')
    p('s_add_u32 s69, s69, s65')
    p('s_mul_i32 s69, s69, 5120')
    p(f's_add_u32 s69, s69, {W2_OFF}')
    p('s_mov_b32 s70, 0')
    p('s_cmp_lt_u32 s65, 54')
    p(f's_cbranch_scc1 L_unit_done_{tag}')
    p('s_sub_u32 s65, s65, 54')
    p('s_mov_b32 s70, 1')
    p('s_mul_i32 s69, s64, 20')
    p('s_add_u32 s69, s69, s65')
    p('s_mul_i32 s69, s69, 5120')
    p(f's_add_u32 s69, s69, {WO_OFF}')
    p('s_mul_i32 s66, s65, 40')
    p('s_mov_b32 s67, 20')
    p('s_cmp_lt_u32 s65, 16')
    p(f's_cbranch_scc1 L_unit_done_{tag}')
    p('s_sub_u32 s65, s65, 16')
    p('s_mul_i32 s66, s65, 160')
    p('s_add_u32 s66, s66, 16')
    p('s_mov_b32 s67, 80')
    p('s_mov_b32 s68, 20')
    p.label(f'L_unit_done_{tag}')
    p('s_mul_i32 s71, s64, 160')
    p('s_movk_i32 s58, 1280')
    for i in range(5):
        p(f'v_add_u32 v3, {64*i}, v{VL}')
        p('v_mul_u32_u24 v4, 6554, v3')
        p('v_lshrrev_b32 v4, 16, v4')
        p('v_mul_u32_u24 v5, 10, v4')
        p('v_sub_u32 v5, v3, v5')
        p('v_lshlrev_b32 v5, 4, v5')
        p('v_add_u32 v5, s71, v5')
        p('v_lshrrev_b32 v3, 4, v4')
        p('v_mul_u32_u24 v3, s67, v3')
        p('v_bfe_u32 v6, v4, 2, 2')
        p('v_mul_u32_u24 v6, s68, v6')
        p('v_and_b32 v4, 3, v4')
        p('v_add3_u32 v3, v3, v6, v4')
        p('v_add_u32 v3, s66, v3')
        p('v_mul_u32_u24 v3, s58, v3')
        p(f'v_add_u32 v{22+i}, v3, v5')
    p(f'v_lshrrev_b32 v3, 2, v{VL}')
    p('v_mul_u32_u24 v3, 160, v3')
    p('s_mul_i32 s72, s57, 5120')
    p(f's_add_u32 s72, s72, {SCR}')
    p('v_add_u32 v3, s72, v3')
    p(f'v_and_b32 v4, 3, v{VL}')
    p('v_lshl_add_u32 v27, v4, 4, v3')
    p('v_lshl_add_u32 v28, v4, 3, v3')
    p(f'v_lshlrev_b32 v29, 4, v{VL}')
    p('v_add_u32 v30, 4096, v29')
    if not attn:
        p(f's_lshl_b32 s58, s{S_RB}, 3')
        p(f's_add_u32 s58, s58, s{S_CG}')
        p('s_lshl_b32 s58, s58, 4')
        p('s_lshl_b32 s59, s57, 2')
        p('s_add_u32 s58, s58, s59')
        p(f'v_lshrrev_b32 v3, 4, v{VL}')
        p('v_add_u32 v31, s58, v3')
        p('s_movk_i32 s58, 1280')
        p('v_mul_u32_u24 v3, s58, v31')
        p(f'v_and_b32 v4, 15, v{VL}')
        p('v_lshlrev_b32 v33, 4, v4')
        p('v_add_u32 v32, v3, v33')
    srd(p, SRD_WS, S_WS, WS_USED)
    p('s_cmp_eq_u32 s70, 0')
    p(f's_cselect_b32 s{SRD_A}, s{S_W2}, s{S_WO}')
    p(f's_cselect_b32 s{SRD_A+1}, s{S_W2+1}, s{S_WO+1}')
    p(f's_mov_b32 s{SRD_A+2}, {1728*1280}')
    p(f's_cselect_b32 s{SRD_A+2}, s{SRD_A+2}, {640*1280}')
    p(f's_mov_b32 s{SRD_A+3}, 0x20000')
    GX, GW = 40, 60
    gate = (not attn)
    TG = 10 if gate else 0
    if gate:
        srd(p, SRD_B, S_GW, 1280)

    def tail_loads():
        p('s_cmp_eq_u32 s63, 0')
        p(f's_cbranch_scc1 L_nounit_ld_{tag}')
        for i in range(5):
            p(f's_add_u32 m0, s72, {i*1024}')
            p('s_nop 0')
            p(f'buffer_load_dwordx4 v{22+i}, s[{SRD_A}:{SRD_A+3}], 0 offen {CFG["ULDF"]} lds')
        p.label(f'L_nounit_ld_{tag}')
        if gate:
            for j in range(5):
                p(f'buffer_load_dwordx4 v[{GX+4*j}:{GX+4*j+3}], v32, s[{SRD_X}:{SRD_X+3}], 0 offen offset:{256*j}')
                p(f'buffer_load_dwordx4 v[{GW+4*j}:{GW+4*j+3}], v33, s[{SRD_B}:{SRD_B+3}], 0 offen offset:{256*j}')

    def wait_vm(n_nounit, n_unit, uid):
        if n_nounit == n_unit:
            p(f's_waitcnt vmcnt({n_unit})')
            return
        p('s_cmp_eq_u32 s63, 0')
        p(f's_cbranch_scc1 L_w{uid}a_{tag}')
        p(f's_waitcnt vmcnt({n_unit})')
        p(f's_branch L_w{uid}b_{tag}')
        p.label(f'L_w{uid}a_{tag}')
        p(f's_waitcnt vmcnt({n_nounit})')
        p.label(f'L_w{uid}b_{tag}')

    if CFG['TEARLY']:
        tail_loads()
        wait_vm(12 + TG, 12 + TG + 5, 'i')
    else:
        p('s_waitcnt vmcnt(12)')
    stamp(p, 1)
    p('s_barrier')
    issue_stage(2)
    for j in range(9):
        if CFG['TEARLY']:
            if j == 0:
                wait_vm(12 + TG, 12 + TG + 5, j)
            else:
                p('s_waitcnt vmcnt(%d)' % (12 if j <= 7 else 0))
        elif j <= 7:
            p('s_waitcnt vmcnt(12)')
        else:
            wait_vm(TG, TG + 5, j)
        p('s_barrier')
        if j + 3 <= 9 and not CFG['NOLOAD']:
            issue_stage(j + 3)
        if j == 7 and not CFG['TEARLY']:
            tail_loads()
        if j == 3 and CFG['TEARLY'] and gate:
            gate_job(p, GX, GW, store=False)
    stamp(p, 2)
    if CFG['K2PF']:
        p('s_cmp_eq_u32 s57, 3')
        p(f's_cbranch_scc0 L_nok2pf_{tag}')
        p(f'v_mov_b32 v34, v{VL}')
        code_prefetch(p, 'gm_k2_kernel', 'L_k2_end', 12288, 34, 255, 84, 'k2pf' + tag)
        p.label(f'L_nok2pf_{tag}')
    p('s_waitcnt vmcnt(0)')
    p('s_cmp_eq_u32 s63, 0')
    p(f's_cbranch_scc1 L_nounit_{tag}')
    for f in range(5):
        a, off = (27, [0, 8, 64, 72][f]) if f < 4 else (28, 128)
        p(f'ds_read_b64_tr_b16 v[{84+4*f}:{85+4*f}], v{a} offset:{off}')
        p(f'ds_read_b64_tr_b16 v[{86+4*f}:{87+4*f}], v{a} offset:{off+2560}')
    for f in range(5):
        p(f's_waitcnt lgkmcnt({8-2*f})')
        if f < 4:
            p(f'buffer_store_dwordx4 v[{84+4*f}:{87+4*f}], v29, s[{SRD_WS}:{SRD_WS+3}], s69 offen offset:{1024*f} {CFG["STF"]}')
        else:
            p(f'buffer_store_dwordx4 v[{84+4*f}:{87+4*f}], v30, s[{SRD_WS}:{SRD_WS+3}], s69 offen {CFG["STF"]}')
    p.label(f'L_nounit_{tag}')
    if gate:
        if CFG['TEARLY']:
            gate_store(p)
        else:
            gate_job(p, GX, GW)
    stamp(p, 3)
    if CFG['PROF']:
        prof_store(p, 4, 'LD' + tag, SRD_WS)
    p('s_endpgm')


def prof_store(p, n, tag, srdws, sbase=90):
    p('s_memtime s[80:81]')
    p('s_memrealtime s[78:79]')
    p('s_waitcnt lgkmcnt(0) vmcnt(0)')
    p('s_sub_u32 s80, s80, s82')
    p('s_sub_u32 s78, s78, s88')
    p(f's_mov_b32 s{srdws+2}, 0x10000000')
    p(f's_lshl_b32 s86, s2, 3')
    p(f's_add_u32 s86, s86, s{S_WAVE}')
    p(f's_lshl_b32 s86, s86, 6')
    p(f's_add_u32 s86, s86, {PROF_OFF + (0 if not tag.startswith("K2") else (1 << 20))}')
    if CFG['PROF'] == 3:
        p(f's_lshl_b32 s85, s2, 3')
        p(f's_add_u32 s85, s85, s{S_WAVE}')
        p(f's_lshl_b32 s85, s85, 8')
        p(f's_add_u32 s85, s85, {PROF_OFF + (2 << 20)}')
        p('v_mbcnt_lo_u32_b32 v0, -1, 0')
        p('v_mbcnt_hi_u32_b32 v0, -1, v0')
        p('v_lshlrev_b32 v0, 2, v0')
        if not tag.startswith('K2'):
            p(f'buffer_store_dword v254, v0, s[{srdws}:{srdws+3}], s85 offen')
    p('v_mov_b32 v1, 0')
    p('v_mov_b32 v0, s88')
    p(f'buffer_store_dword v0, v1, s[{srdws}:{srdws+3}], s86 offen offset:60')
    p('v_mov_b32 v0, s80')
    p(f'buffer_store_dword v0, v1, s[{srdws}:{srdws+3}], s86 offen offset:56')
    p('v_mov_b32 v0, s78')
    p(f'buffer_store_dword v0, v1, s[{srdws}:{srdws+3}], s86 offen offset:52')
    for i in range(n):
        p(f'v_mov_b32 v0, s{sbase+2*i}')
        p(f'buffer_store_dword v0, v1, s[{srdws}:{srdws+3}], s86 offen offset:{4*i}')
    p('s_waitcnt vmcnt(0)')


def gate_store(p):
    p(f'buffer_store_dwordx2 v[38:39], v37, s[{SRD_WS}:{SRD_WS+3}], 0 offen {CFG["STF"]}')


def gate_job(p, GX, GW, store=True):
    T = 104
    p('v_mov_b32 v34, 0')
    p('v_mov_b32 v35, 0')
    p('v_mov_b32 v36, 0x3f803f80')
    p('s_mov_b32 s78, 0xffff0000')
    for d in range(20):
        x, w = GX + d, GW + d
        t = T + 6 * (d & 1)
        p(f'v_lshlrev_b32 v{t}, 16, v{x}')
        p(f'v_and_b32 v{t+1}, s78, v{x}')
        p(f'v_lshlrev_b32 v{t+2}, 16, v{w}')
        p(f'v_and_b32 v{t+3}, s78, v{w}')
        p(f'v_pk_mul_f32 v[{t}:{t+1}], v[{t}:{t+1}], v[{t+2}:{t+3}]')
        p(f'v_cvt_pk_bf16_f32 v{t+4}, v{t}, v{t+1}')
        acc = 34 + (d & 1)
        p(f'v_dot2_f32_bf16 v{acc}, v{t+4}, v36, v{acc}')
    p('v_add_f32 v34, v34, v35')
    for sh in (8, 4, 2, 1):
        p(f'v_add_f32_dpp v34, v34, v34 row_ror:{sh} row_mask:0xf bank_mask:0xf')
    p('v_cvt_pk_bf16_f32 v35, v34, v34')
    p('v_lshlrev_b32 v35, 16, v35')
    p(f'v_mul_f32 v35, {hexf(-math.log2(math.e))}, v35')
    p('v_exp_f32 v35, v35')
    p('v_add_f32 v35, 1.0, v35')
    p('v_rcp_f32 v35, v35')
    p('v_cvt_pk_bf16_f32 v35, v35, v35')
    p('v_lshlrev_b32 v38, 16, v35')
    p('v_sub_f32 v39, 1.0, v38')
    p('v_cvt_pk_bf16_f32 v39, v39, v39')
    p('v_lshlrev_b32 v39, 16, v39')
    p('v_lshlrev_b32 v37, 3, v31')
    p(f'v_add_u32 v37, {G_OFF}, v37')
    if store:
        gate_store(p)


A_QM = lambda h, t: 0 + (h * 4 + t) * 4
A_KM = lambda h, kt: 32 + (h * 5 + kt) * 4
A_QKT = lambda kt: 72 + 4 * kt
A_VM = lambda h, kt: 92 + (h * 5 + kt) * 4
A_VT = lambda kt: 132 + 4 * kt
WF = lambda f: 152 + 4 * f
XF = lambda b, t: 184 + 20 * b + 4 * t
V_X0, V_X1, V_W, V_WA, V_WB = 224, 225, 226, 227, 228
V_BPREV, V_BCUR, V_BFIRST, V_SEL = 232, 236, 240, 244
F_ACC = lambda f, t: (f * 4 + t) * 4


class LgkmTracker:
    def __init__(self, p):
        self.p = p
        self.q = []

    def issue(self, tag):
        self.q.append(tag)

    def need(self, tags):
        idx = -1
        for i, t in enumerate(self.q):
            if t in tags:
                idx = i
        if idx < 0:
            return
        n = len(self.q) - 1 - idx
        self.p(f's_waitcnt lgkmcnt({min(n, 15)})')
        keep = min(n, 15)
        self.q = self.q[len(self.q) - keep:] if keep else []

    def drain(self):
        self.p('s_waitcnt lgkmcnt(0)')
        self.q = []


def consumer_loop(p, attn, th=None):
    tag = ('A' if attn else 'F') + ('' if th is None else str(th))
    NT = 5 if attn else 4
    xoff = lambda t: 2048 * t
    if attn:
        kk = range(5) if th in (None, 0) else range(1, 5)
        vk = range(5) if th in (None, 1) else range(1, 5)
        if th == 1:
            xoff = lambda t: 0 if t == 0 else 8192 + 2048 * t
        tiles = []
        for h in range(2):
            tiles.append([(A_QM(h, t), t + 1, 'F') for t in range(4)])
        for h in range(2):
            tiles.append([(A_KM(h, k), k, 'F') for k in kk])
        tiles.append([(A_QKT(k), k, 'F') for k in kk])
        for h in range(2):
            tiles.append([(A_VM(h, k), k, 'T') for k in vk])
        tiles.append([(A_VT(k), k, 'T') for k in vk])
        waddr = [(V_W, 0), (V_W, 40), (V_W, 160), (V_W, 200), (V_WA, 0), (V_W, 320), (V_W, 360), (V_WB, 0)]
    else:
        tiles = [[(F_ACC(f, t), t, 'F') for t in range(4)] for f in range(7)]
        waddr = [(V_W, 32 * f) for f in range(6)] + [(V_WA, 0)]
    NF = len(tiles)

    lg = LgkmTracker(p)

    def rd_w(f, s):
        if CFG['NODS']:
            return
        a, off = waddr[f]
        off += s * 32 * WROW
        p(f'ds_read_b64_tr_b16 v[{WF(f)}:{WF(f)+1}], v{a} offset:{off}')
        lg.issue(('w', f))
        p(f'ds_read_b64_tr_b16 v[{WF(f)+2}:{WF(f)+3}], v{a} offset:{off + 8*WROW}')
        lg.issue(('w', f))

    def rd_x(t, s):
        if CFG['NODS']:
            return
        p(f'ds_read_b128 v[{XF(s,t)}:{XF(s,t)+3}], v{V_X1 if s else V_X0} offset:{2048*t}')
        lg.issue(('x', s, t))

    LAST = NF - 1

    def wreads(f, s):
        a, off = waddr[f]
        off += s * 32 * WROW
        return [(f'ds_read_b64_tr_b16 v[{WF(f)}:{WF(f)+1}], v{a} offset:{off}', ('w', f)),
                (f'ds_read_b64_tr_b16 v[{WF(f)+2}:{WF(f)+3}], v{a} offset:{off + 8*WROW}', ('w', f))]

    def xread(t, s):
        return (f'ds_read_b128 v[{XF(s,t)}:{XF(s,t)+3}], v{V_X1 if s else V_X0} offset:{xoff(t)}', ('x', s, t))

    def emit(item):
        if CFG['NODS']:
            return
        p(item[0])
        lg.issue(item[1])

    order_log = []

    def step(s, dry=False):
        nxt = 1 - s
        q = wreads(LAST, s)
        xq = [xread(t, nxt) for t in range(NT)]
        held = []
        upd = [V_W, V_X0, V_X1, V_WA] + ([V_WB] if attn else [])
        for f in range(NF):
            if not dry:
                lg.need({('w', f)} | ({('x', s, t) for t in range(NT)} if f == 0 else set()))
            for n, (acc, t, o) in enumerate(tiles[f]):
                w, x = f'v[{WF(f)}:{WF(f)+3}]', f'v[{XF(s,t)}:{XF(s,t)+3}]'
                a, b = (w, x) if o == 'F' else (x, w)
                if not CFG['NOMFMA'] and not dry:
                    p(f'v_mfma_f32_16x16x32_bf16 v[{acc}:{acc+3}], {a}, {b}, v[{acc}:{acc+3}]')
                item = None
                if q:
                    item = q.pop(0)
                elif xq and (s == 0 or f >= 2):
                    item = xq.pop(0)
                if item is not None:
                    if dry:
                        order_log.append(item)
                    else:
                        emit(item)
                if not dry and s == 0 and f == LAST and n == 1:
                    p(f's_add_u32 s53, s53, {SLOT}')
                    p(f's_cmp_eq_u32 s53, {3*SLOT}')
                if not dry and s == 0 and f == LAST and n == 2:
                    p(f's_cselect_b32 s54, s51, {SLOT}')
                    p('s_cselect_b32 s53, 0, s53')
                if not dry and s == 1 and item is None and upd and (f, n) >= (0, 2):
                    p(f'v_add_u32 v{upd[0]}, s54, v{upd[0]}')
                    upd.pop(0)
            if f < LAST:
                rs = wreads(f, nxt)
                if s == 1 and f < 1:
                    held += rs
                elif s == 1 and f == 1:
                    assert not q
                    if not dry:
                        assert not upd
                        if CFG['PROF'] == 3:
                            p('s_memtime s[70:71]')
                        lg.drain()
                        if CFG['PROF'] == 3:
                            p('s_lshl_b32 m0, s52, 1')
                            p('s_nop 3')
                            p('v_writelane_b32 v254, s70, m0')
                            p('s_add_u32 s74, m0, 63')
                            p('s_and_b32 m0, s74, 63')
                            p('s_nop 3')
                            p('v_writelane_b32 v254, s72, m0')
                        p('s_cmp_eq_u32 s52, 9')
                        p(f's_cbranch_scc1 L_nobar_{tag}')
                        p('s_barrier')
                        p.label(f'L_nobar_{tag}')
                        if CFG['PROF'] == 3:
                            p('s_memtime s[72:73]')
                    q += held + rs
                    held = []
                else:
                    q += rs
        assert not q and not xq, (q, xq)

    step(1, dry=True)
    for item in order_log[2:]:
        emit(item)
    p('s_mov_b32 s52, 0')
    p('s_mov_b32 s53, 0')
    p(f's_mov_b32 s51, {(-2*SLOT) & 0xffffffff}')
    p.label(f'L_loop_{tag}')
    q_head = list(lg.q)
    step(0)
    step(1)
    q_end = list(lg.q)
    assert q_end == q_head, (q_end, q_head)
    p('s_add_u32 s52, s52, 1')
    p('s_cmp_lt_u32 s52, 10')
    p(f's_cbranch_scc1 L_loop_{tag}')
    lg.drain()


def check_loop_waits():
    pass


def tlb_touch(p, tag):
    if not CFG['TT']:
        return
    p(f's_cmp_eq_u32 s{S_WAVE}, 1')
    p(f's_cbranch_scc0 L_tt1{tag}')
    for i in range(7):
        p(f's_mov_b32 s70, {i << 21}')
        p(f's_load_dword s{71+i}, s[{S_WS}:{S_WS+1}], s70')
    p.label(f'L_tt1{tag}')
    p(f's_cmp_eq_u32 s{S_WAVE}, 2')
    p(f's_cbranch_scc0 L_tt2{tag}')
    p(f's_load_dword s71, s[{S_WO}:{S_WO+1}], 0')
    p(f's_load_dword s72, s[{S_W2}:{S_W2+1}], 0')
    p(f's_mov_b32 s70, {(1 << 21) + 4096}')
    p(f's_load_dword s73, s[{S_W2}:{S_W2+1}], s70')
    p(f's_load_dword s74, s[{S_GW}:{S_GW+1}], 0')
    p(f's_load_dword s75, s[{S_B2}:{S_B2+1}], 0')
    p('s_load_dword s76, s[100:101], 0')
    p('s_load_dword s77, s[100:101], s70')
    p.label(f'L_tt2{tag}')


def prefetch_setup(p, attn):
    rowstride = 3840 if attn else 3456
    p(f's_lshl_b32 s57, s{S_WAVE}, 6')
    p('v_add_u32 v9, s57, v2')
    p(f's_and_b32 s57, s{S_RB}, 7')
    p('s_lshl_b32 s57, s57, 3')
    p('s_add_u32 s57, s57, 128')
    p(f's_mov_b32 s58, {rowstride}')
    if attn:
        p(f's_mul_i32 s59, s{S_CG}, 160')
        p('s_andn2_b32 s59, s59, 127')
        for rnd in range(2):
            p(f'v_add_u32 v3, {256*rnd}, v9')
            p('v_min_u32 v3, 383, v3')
            p('v_mul_u32_u24 v4, 1366, v3')
            p('v_lshrrev_b32 v4, 16, v4')
            p('v_mul_u32_u24 v5, 48, v4')
            p('v_sub_u32 v5, v3, v5')
            p('v_mul_u32_u24 v6, 43, v5')
            p('v_lshrrev_b32 v6, 8, v6')
            p('v_mul_u32_u24 v7, 6, v6')
            p('v_sub_u32 v7, v5, v7')
            p('v_lshl_add_u32 v4, v4, 6, v6')
            p('v_add_u32 v4, s57, v4')
            p('v_mul_u32_u24 v4, s58, v4')
            p('v_lshrrev_b32 v5, 1, v7')
            p('v_mul_u32_u24 v5, 1280, v5')
            p('v_and_b32 v7, 1, v7')
            p('v_lshl_add_u32 v5, v7, 7, v5')
            p(f'v_add3_u32 v{249+rnd}, v4, v5, s59')
    else:
        p(f's_mul_i32 s59, s{S_CG}, 448')
        p('s_andn2_b32 s59, s59, 127')
        p('v_lshrrev_b32 v4, 5, v9')
        p('v_bfe_u32 v6, v9, 2, 3')
        p('v_lshl_add_u32 v4, v4, 6, v6')
        p('v_add_u32 v4, s57, v4')
        p('v_mul_u32_u24 v4, s58, v4')
        p('v_and_b32 v7, 3, v9')
        p('v_lshlrev_b32 v7, 7, v7')
        p('v_add3_u32 v249, v4, v7, s59')
    p(f's_and_b32 s57, s{S_CG}, 1')
    p(f's_lshl_b32 s58, s{S_TYPE}, 1')
    p('s_add_u32 s57, s57, s58')
    p('s_lshl_b32 s57, s57, 5')
    p(f's_lshl_b32 s58, s{S_RB}, 7')
    p('s_add_u32 s57, s57, s58')
    p('v_and_b32 v4, 31, v9')
    p('v_add_u32 v4, s57, v4')
    p('v_mul_u32_u24 v4, 1280, v4')
    p('v_lshrrev_b32 v5, 5, v9')
    p('v_lshlrev_b32 v5, 7, v5')
    p('v_add3_u32 v251, v4, v5, 256' .replace(', 256', ', s99'))


def prefetch_issue(p, attn):
    if not CFG['PF']:
        return
    p(f'buffer_load_dword v255, v251, s[{SRD_X}:{SRD_X+3}], 0 offen {CFG["PFF"]}')
    p(f'buffer_load_dword v255, v249, s[{SRD_W}:{SRD_W+3}], 0 offen {CFG["PFF"]}')
    if attn:
        p(f'buffer_load_dword v255, v250, s[{SRD_W}:{SRD_W+3}], 0 offen {CFG["PFF"]}')


def attn_prologue(p):
    p(f's_and_b32 s55, s{S_WAVE}, 1')
    p(f's_lshr_b32 s56, s{S_WAVE}, 1')
    p('v_and_b32 v3, 15, v2')
    p('v_lshrrev_b32 v4, 4, v2')
    p('v_lshrrev_b32 v5, 1, v3')
    p('v_xor_b32 v5, v5, v4')
    p('v_lshlrev_b32 v5, 4, v5')
    p('v_lshl_add_u32 v5, v3, 7, v5')
    if CFG['M35']:
        p(f'v_mov_b32 v{V_X0}, v5')
    else:
        p('s_lshl_b32 s57, s56, 13')
        p(f'v_add_u32 v{V_X0}, s57, v5')
    p(f'v_xor_b32 v{V_X1}, 64, v{V_X0}')
    p('v_lshrrev_b32 v5, 5, v2')
    p('v_lshlrev_b32 v5, 4, v5')
    p('v_bfe_u32 v6, v2, 4, 1')
    p('v_lshl_add_u32 v5, v6, 2, v5')
    p('v_bfe_u32 v6, v2, 2, 2')
    p('v_add_u32 v5, v5, v6')
    p(f'v_mul_u32_u24 v5, {WROW}, v5')
    p('s_mul_i32 s57, s55, 80')
    p(f's_add_u32 s57, s57, {XREG}')
    p('v_add_u32 v5, s57, v5')
    p('v_and_b32 v6, 3, v2')
    p(f'v_lshl_add_u32 v{V_W}, v6, 3, v5')
    p('v_and_b32 v7, 1, v6')
    p('v_mul_u32_u24 v7, 40, v7')
    p('v_add_u32 v7, v7, v5')
    p('v_lshrrev_b32 v6, 1, v6')
    p('v_mul_u32_u24 v6, 160, v6')
    p(f'v_add3_u32 v{V_WA}, v7, v6, 32')
    p(f'v_add_u32 v{V_WB}, 352, v7')
    p('v_lshlrev_b32 v5, 2, v4')
    p('v_sub_u32 v5, v3, v5')
    p(f's_mov_b32 s58, {hexf(-1e30)}')
    p('v_mov_b32 v8, s58')
    p(f's_or_b32 s59, s{S_RB}, s56')
    p('s_cmp_eq_u32 s59, 0')
    p('s_cselect_b64 s[60:61], -1, 0')
    for r in range(4):
        p(f'v_subrev_u32 v6, {r}, v5')
        p('v_and_b32 v7, 1, v6')
        p('v_cmp_eq_u32 s[62:63], 0, v7')
        p('v_cmp_ge_i32 s[64:65], v6, 0')
        p('s_and_b64 s[66:67], s[62:63], s[64:65]')
        p('s_andn2_b64 s[68:69], s[62:63], s[64:65]')
        p(f'v_cndmask_b32 v{V_BCUR+r}, v8, 0, s[66:67]')
        p(f'v_cndmask_b32 v{V_BPREV+r}, v8, 0, s[68:69]')
        p(f'v_cndmask_b32 v{V_BFIRST+r}, v{V_BPREV+r}, v8, s[60:61]')
    p('v_and_b32 v7, 1, v3')
    p('v_cmp_eq_u32 s[62:63], 0, v7')
    for k, (lo, hi) in enumerate([(0x0c0c0100, 0x01000c0c), (0x0c0c0302, 0x03020c0c)]):
        p(f'v_mov_b32 v6, {hex(hi)}')
        p(f'v_mov_b32 v9, {hex(lo)}')
        p('v_cndmask_b32 v9, v6, v9, s[62:63]')
        p('v_sub_u32 v6, v5, v7')
        if k:
            p('v_subrev_u32 v6, 2, v6')
        p('v_cmp_ge_i32 s[64:65], v6, 0')
        p('v_mov_b32 v6, 0x0c0c0c0c')
        p(f'v_cndmask_b32 v{V_SEL+k}, v9, v6, s[64:65]')
        p(f'v_cndmask_b32 v{V_SEL+2+k}, v6, v9, s[64:65]')
    p('v_lshlrev_b32 v248, 4, v2')
    if CFG['M35']:
        p('s_lshl_b32 s57, s55, 13')
        p(f's_add_u32 s57, s57, {2*SLOT}')
        p('v_add_u32 v249, s57, v248')
        p('v_lshrrev_b32 v250, 1, v248')
        p('v_add_u32 v250, s57, v250')
        p('s_lshl_b32 s57, s55, 3')
        p(f's_add_u32 s57, s57, {XFLAG}')
        p('v_mov_b32 v251, s57')
        p('v_mov_b32 v252, 0')
        p('v_mov_b32 v253, 0')
        p('ds_write_b64 v251, v[252:253]')
    for r in range(152):
        p(f'v_mov_b32 v{r}, 0')


def attn_epilogue(p, th=None):
    cvt = lambda d, a: p(f'v_cvt_pk_bf16_f32 v{d}, v{a}, v{a+1}')
    tg = '' if th is None else str(th)
    kk = list(range(5)) if th in (None, 0) else [1, 2, 3, 4]
    vk = list(range(5)) if th in (None, 1) else [1, 2, 3, 4]
    p('s_nop 7')

    def pack_k(kts):
        for kt in kts:
            for h in range(2):
                b = A_KM(h, kt)
                cvt(b, b)
                cvt(b + 1, b + 2)
            t = A_QKT(kt)
            cvt(t, t)
            cvt(t + 1, t + 2)
        for kt in kts:
            t, k0 = A_QKT(kt), A_KM(0, kt)
            p(f'v_mov_b32 v{k0+2}, v{t}')
            p(f'v_mov_b32 v{k0+3}, v{t+1}')

    def tails_k(kts):
        for kt in kts:
            t, k0 = A_QKT(kt), A_KM(0, kt)
            p(f'v_permlane32_swap_b32 v{t}, v{k0+2}')
            p(f'v_permlane32_swap_b32 v{t+1}, v{k0+3}')

    def copy_k(kts):
        for kt in kts:
            k0, k1 = A_KM(0, kt), A_KM(1, kt)
            p(f'v_mov_b32 v{k1+2}, v{k0+2}')
            p(f'v_mov_b32 v{k1+3}, v{k0+3}')

    def pack_v():
        for kt in vk:
            for base, b in ((A_VM(0, 0), A_VM(0, kt)), (A_VM(1, 0), A_VM(1, kt)), (A_VT(0), A_VT(kt))):
                cvt(base + 2 * kt, b)
                cvt(base + 2 * kt + 1, b + 2)

    vbases = (A_VM(0, 0), A_VM(1, 0), A_VT(0))
    if th == 0:
        pack_k([4])
        pack_v()
        tails_k([4])
        rest = [0, 1, 2, 3]
        pack_k(rest[:1])
        copy_k([4])
        p(f'ds_write_b128 v249, v[{A_KM(0,4)}:{A_KM(0,4)+3}]')
        p(f'ds_write_b128 v249, v[{A_KM(1,4)}:{A_KM(1,4)+3}] offset:1024')
        for i, vb in enumerate(vbases):
            p(f'ds_write_b64 v250, v[{vb+8}:{vb+9}] offset:{2048 + 512*i}')
        pack_k(rest[1:])
        p('s_waitcnt lgkmcnt(0)')
        p('v_mov_b32 v252, 1')
        p('ds_write_b32 v251, v252')
        tails_k(rest)
    elif th == 1:
        pack_v()
        for i, vb in enumerate(vbases):
            p(f'ds_write_b64 v250, v[{vb}:{vb+1}] offset:{4096 + 512*i}')
        rest = [1, 2, 3, 4]
        pack_k(rest)
        p('s_waitcnt lgkmcnt(0)')
        p('v_mov_b32 v252, 1')
        p('ds_write_b32 v251, v252 offset:4')
        tails_k(rest)
    else:
        rest = [0, 1, 2, 3, 4]
        pack_k(rest)
        pack_v()
        tails_k(rest)
    for h in range(2):
        for t in range(4):
            b = A_QM(h, t)
            cvt(b, b)
            cvt(b + 1, b + 2)
    copy_k(rest)
    p('s_mov_b32 s60, 0x0000ffff')
    p('s_mov_b32 s61, 0')
    p('s_mov_b32 s62, 0xffff0000')
    p('s_mov_b32 s63, 0')
    for t in range(4):
        for h in range(2):
            q, x = A_QM(h, t), A_QKT(t + 1)
            p(f'v_cndmask_b32 v{q+2}, 0, v{x}, s[{60+2*h}:{61+2*h}]')
            p(f'v_cndmask_b32 v{q+3}, 0, v{x+1}, s[{60+2*h}:{61+2*h}]')
    S = lambda t, h: 152 + (t * 2 + h) * 8

    def qk(t):
        for h in range(2):
            q = A_QM(h, t)
            bp = V_BFIRST if t == 0 else V_BPREV
            kp, kc = A_KM(h, t), A_KM(h, t + 1)
            p(f'v_mfma_f32_16x16x32_bf16 v[{S(t,h)}:{S(t,h)+3}], v[{kp}:{kp+3}], v[{q}:{q+3}], v[{bp}:{bp+3}]')
            p(f'v_mfma_f32_16x16x32_bf16 v[{S(t,h)+4}:{S(t,h)+7}], v[{kc}:{kc+3}], v[{q}:{q+3}], v[{V_BCUR}:{V_BCUR+3}]')

    for t in (3, 2, 1):
        qk(t)
    if th is not None:
        p.label(f'L_xspin{th}')
        p(f'ds_read_b32 v252, v251 offset:{4 if th == 0 else 0}')
        p('s_waitcnt lgkmcnt(0)')
        p('v_readfirstlane_b32 s70, v252')
        p('s_cmp_eq_u32 s70, 0')
        p(f's_cbranch_scc1 L_xspin{th}')
        if th == 1:
            p(f'ds_read_b128 v[{A_KM(0,0)}:{A_KM(0,0)+3}], v249')
            p(f'ds_read_b128 v[{A_KM(1,0)}:{A_KM(1,0)+3}], v249 offset:1024')
        for i, vb in enumerate(vbases):
            p(f'ds_read_b64 v[{vb}:{vb+1}], v250 offset:{(2048 if th == 1 else 4096) + 512*i}')
        p('s_waitcnt lgkmcnt(0)')
    qk(0)
    cs = (20 ** -0.5) * math.log2(math.e)
    p(f's_mov_b32 s64, {hexf(cs)}')
    inst = [(t, h) for t in range(4) for h in range(2)]
    for (t, h) in inst:
        s = S(t, h)
        p(f'v_max3_f32 v{s}, v{s}, v{s+1}, v{s+4}')
        p(f'v_max3_f32 v{s+2}, v{s+2}, v{s+3}, v{s+6}')
    for (t, h) in inst:
        s = S(t, h)
        p(f'v_max_f32 v{s}, v{s}, v{s+5}')
        p(f'v_max_f32 v{s+1}, v{s+2}, v{s+7}')
    for (t, h) in inst:
        s = S(t, h)
        p(f'v_max_f32 v{s+2}, v{s}, v{s+1}')

    def cross(groups, op, mid):
        for (A, B, C, D) in groups:
            p(f'v_permlane32_swap_b32 v{A}, v{B}')
            p(f'v_permlane32_swap_b32 v{C}, v{D}')
        for (A, B, C, D) in groups:
            p(f'{op} v{A}, v{A}, v{B}')
            p(f'{op} v{C}, v{C}, v{D}')
        for (A, B, C, D) in groups:
            p(f'v_permlane16_swap_b32 v{A}, v{C}')
        for (A, B, C, D) in groups:
            p(f'{op} v{A}, v{A}, v{C}')
        for (A, B, C, D) in groups:
            mid(A)
        for (A, B, C, D) in groups:
            p(f'v_mov_b32 v{C}, v{A}')
        for (A, B, C, D) in groups:
            p(f'v_permlane16_swap_b32 v{A}, v{C}')
        for (A, B, C, D) in groups:
            p(f'v_mov_b32 v{B}, v{A}')
            p(f'v_mov_b32 v{D}, v{C}')
        for (A, B, C, D) in groups:
            p(f'v_permlane32_swap_b32 v{A}, v{B}')
            p(f'v_permlane32_swap_b32 v{C}, v{D}')

    grp = lambda o: [tuple(S(t, h) + o for (t, h) in inst[0:4]), tuple(S(t, h) + o for (t, h) in inst[4:8])]
    cross(grp(2), 'v_max_f32', lambda A: p(f'v_mul_f32 v{A}, s64, v{A}'))
    for (t, h) in inst:
        s = S(t, h)
        p(f'v_fma_f32 v{s}, v{s}, s64, -v{s+2}')
        p(f'v_fma_f32 v{s+1}, v{s+1}, s64, -v{s+2}')
    for (t, h) in inst:
        s = S(t, h)
        p(f'v_exp_f32 v{s}, v{s}')
        p(f'v_exp_f32 v{s+1}, v{s+1}')
    for (t, h) in inst:
        s = S(t, h)
        p(f'v_add_f32 v{s+2}, v{s}, v{s+1}')
    cross(grp(2), 'v_add_f32', lambda A: p(f'v_rcp_f32 v{A}, v{A}'))
    for (t, h) in inst:
        s = S(t, h)
        p(f'v_mul_f32 v{s}, v{s}, v{s+2}')
        p(f'v_mul_f32 v{s+1}, v{s+1}, v{s+2}')
    for (t, h) in inst:
        s = S(t, h)
        p(f'v_cvt_pk_bf16_f32 v{s+2}, v{s}, v{s+1}')
    for (t, h) in inst:
        s = S(t, h)
        p(f'v_perm_b32 v{s+4}, v{s+2}, v{s+2}, v{V_SEL}')
        p(f'v_perm_b32 v{s+5}, v{s+2}, v{s+2}, v{V_SEL+1}')
        p(f'v_perm_b32 v{s+6}, v{s+2}, v{s+2}, v{V_SEL+2}')
        p(f'v_perm_b32 v{s+7}, v{s+2}, v{s+2}, v{V_SEL+3}')
    for (t, h) in inst:
        s = S(t, h)
        va = A_VM(h, 0) + 2 * t
        vt = A_VT(0) + 2 * t
        om, ot = A_QM(h, t), A_KM(h, t)
        p(f'v_mfma_f32_16x16x32_bf16 v[{om}:{om+3}], v[{va}:{va+3}], v[{s+4}:{s+7}], 0')
        p(f'v_mfma_f32_16x16x32_bf16 v[{ot}:{ot+3}], v[{vt}:{vt+3}], v[{s+4}:{s+7}], 0')
    p(f's_lshl_b32 s65, s{S_RB}, 3')
    p('s_lshl_b32 s66, s56, 2')
    p('s_add_u32 s65, s65, s66')
    p('s_mul_i32 s66, s65, 20')
    p(f's_lshl_b32 s67, s{S_CG}, 1')
    p('s_add_u32 s67, s67, s55')
    p('s_add_u32 s66, s66, s67')
    p('s_lshl_b32 s66, s66, 10')
    p(f's_add_u32 s66, s66, {OA_OFF}')
    p(f's_and_b32 s67, s{S_CG}, 1')
    p('s_lshl_b32 s67, s67, 1')
    p('s_add_u32 s67, s67, s65')
    p('s_mul_i32 s67, s67, 20')
    p(f's_lshr_b32 s68, s{S_CG}, 1')
    p('s_add_u32 s67, s67, s68')
    p('s_add_u32 s67, s67, 16')
    p('s_lshl_b32 s67, s67, 10')
    p('s_lshl_b32 s68, s55, 9')
    p('s_add_u32 s67, s67, s68')
    p(f's_add_u32 s67, s67, {OA_OFF}')
    for t in range(4):
        for h in range(2):
            o = A_QM(h, t)
            d = S(t, 0) + 2 * h
            p(f'v_cvt_pk_bf16_f32 v{d}, v{o}, v{o+1}')
            p(f'v_cvt_pk_bf16_f32 v{d+1}, v{o+2}, v{o+3}')
        d = S(t, 0)
        p(f'buffer_store_dwordx4 v[{d}:{d+3}], v248, s[{SRD_WS}:{SRD_WS+3}], s66 offen {CFG["STF"]}')
        p('s_add_u32 s66, s66, 20480')
    for pr in range(2):
        d = S(2 * pr, 1)
        for u in range(2):
            t = 2 * pr + u
            o0, o1 = A_KM(0, t), A_KM(1, t)
            for rr in range(4):
                p(f'v_cndmask_b32 v{o0+rr}, v{o0+rr}, v{o1+rr}, s[62:63]')
            p(f'v_cvt_pk_bf16_f32 v{d+2*u}, v{o0}, v{o0+1}')
            p(f'v_cvt_pk_bf16_f32 v{d+2*u+1}, v{o0+2}, v{o0+3}')
    p('s_mov_b32 exec_hi, 0')
    for pr in range(2):
        d = S(2 * pr, 1)
        p(f'buffer_store_dwordx4 v[{d}:{d+3}], v248, s[{SRD_WS}:{SRD_WS+3}], s67 offen {CFG["STF"]}')
        p('s_add_u32 s67, s67, 20480')
    p('s_mov_b32 exec_hi, -1')


def ffn_prologue(p):
    p(f's_and_b32 s55, s{S_WAVE}, 1')
    p(f's_lshr_b32 s56, s{S_WAVE}, 1')
    p('v_and_b32 v3, 15, v2')
    p('v_lshrrev_b32 v4, 4, v2')
    p('v_lshrrev_b32 v5, 1, v3')
    p('v_xor_b32 v5, v5, v4')
    p('v_lshlrev_b32 v5, 4, v5')
    p('v_lshl_add_u32 v5, v3, 7, v5')
    p('s_lshl_b32 s57, s56, 13')
    p(f'v_add_u32 v{V_X0}, s57, v5')
    p(f'v_xor_b32 v{V_X1}, 64, v{V_X0}')
    p('v_lshrrev_b32 v5, 5, v2')
    p('v_lshlrev_b32 v5, 4, v5')
    p('v_bfe_u32 v6, v2, 4, 1')
    p('v_lshl_add_u32 v5, v6, 2, v5')
    p('v_bfe_u32 v6, v2, 2, 2')
    p('v_add_u32 v5, v5, v6')
    p(f'v_mul_u32_u24 v5, {WROW}, v5')
    p(f'v_add_u32 v5, {XREG}, v5')
    p('v_and_b32 v6, 3, v2')
    p('v_lshl_add_u32 v5, v6, 3, v5')
    p('s_lshl_b32 s57, s55, 8')
    p(f'v_add_u32 v{V_W}, s57, v5')
    p('s_lshl_b32 s57, s55, 5')
    p('s_add_u32 s57, s57, 192')
    p(f'v_add_u32 v{V_WA}, s57, v5')
    p(f's_mul_i32 s57, s{S_CG}, 448')
    p('v_lshlrev_b32 v5, 3, v4')
    p('v_add_u32 v5, s57, v5')
    p('s_lshl_b32 s57, s55, 8')
    p('v_add_u32 v6, s57, v5')
    p('s_lshl_b32 s57, s55, 5')
    p('s_add_u32 s57, s57, 192')
    p('v_add_u32 v7, s57, v5')
    p('v_lshlrev_b32 v248, 4, v2')
    p('s_waitcnt lgkmcnt(0)')
    srd(p, SRD_A, S_B1, 3456)
    for f in range(7):
        if f < 6:
            p(f'buffer_load_dwordx2 v[{200+2*f}:{201+2*f}], v6, s[{SRD_A}:{SRD_A+3}], 0 offen offset:{32*f}')
        else:
            p(f'buffer_load_dwordx2 v[{200+2*f}:{201+2*f}], v7, s[{SRD_A}:{SRD_A+3}], 0 offen')
    tlb_touch(p, 'F')
    p('s_mov_b32 s58, 0xffff0000')
    p('s_waitcnt vmcnt(0)')
    for f in range(7):
        for t in range(4):
            a = F_ACC(f, t)
            p(f'v_lshlrev_b32 v{a}, 16, v{200+2*f}')
            p(f'v_and_b32 v{a+1}, s58, v{200+2*f}')
            p(f'v_lshlrev_b32 v{a+2}, 16, v{201+2*f}')
            p(f'v_and_b32 v{a+3}, s58, v{201+2*f}')


def ffn_epilogue(p):
    k1 = -2.0 * math.sqrt(2.0 / math.pi) * math.log2(math.e)
    k2 = k1 * 0.044715
    C1, C2, ONE = 240, 242, 244
    for r in (0, 1):
        p(f'v_mov_b32 v{C1+r}, {hexf(k1)}')
        p(f'v_mov_b32 v{C2+r}, {hexf(k2)}')
        p(f'v_mov_b32 v{ONE+r}, 1.0')
    p('s_nop 5')
    p(f's_lshl_b32 s65, s{S_RB}, 3')
    p('s_lshl_b32 s66, s56, 2')
    p('s_add_u32 s65, s65, s66')
    p('s_mul_i32 s65, s65, 54')
    p(f's_mul_i32 s66, s{S_CG}, 7')
    p('s_add_u32 s67, s66, 3')
    p('s_lshl_b32 s68, s55, 2')
    p('s_add_u32 s66, s66, s68')
    p('s_add_u32 s69, s65, s67')
    p('s_lshl_b32 s69, s69, 10')
    p('s_lshl_b32 s68, s55, 3')
    p('s_add_u32 s69, s69, s68')
    p('s_add_u32 s68, s65, s66')
    p('s_lshl_b32 s68, s68, 10')

    def gelu(regs, tmp):
        for i, x in enumerate(regs):
            p(f'v_pk_mul_f32 v[{tmp+4*i}:{tmp+4*i+1}], v[{x}:{x+1}], v[{x}:{x+1}]')
        for i, x in enumerate(regs):
            p(f'v_pk_fma_f32 v[{tmp+4*i}:{tmp+4*i+1}], v[{tmp+4*i}:{tmp+4*i+1}], v[{C2}:{C2+1}], v[{C1}:{C1+1}]')
        for i, x in enumerate(regs):
            p(f'v_pk_mul_f32 v[{tmp+4*i}:{tmp+4*i+1}], v[{tmp+4*i}:{tmp+4*i+1}], v[{x}:{x+1}]')
        for i, x in enumerate(regs):
            p(f'v_exp_f32 v{tmp+4*i}, v{tmp+4*i}')
            p(f'v_exp_f32 v{tmp+4*i+1}, v{tmp+4*i+1}')
        for i, x in enumerate(regs):
            p(f'v_pk_add_f32 v[{tmp+4*i}:{tmp+4*i+1}], v[{tmp+4*i}:{tmp+4*i+1}], v[{ONE}:{ONE+1}]')
        for i, x in enumerate(regs):
            p(f'v_rcp_f32 v{tmp+4*i}, v{tmp+4*i}')
            p(f'v_rcp_f32 v{tmp+4*i+1}, v{tmp+4*i+1}')
        for i, x in enumerate(regs):
            p(f'v_pk_mul_f32 v[{x}:{x+1}], v[{tmp+4*i}:{tmp+4*i+1}], v[{x}:{x+1}]')

    OUT = 184
    n = 0
    for pr in range(3):
        p(f's_add_u32 s70, s66, {pr}')
        p('s_cmp_ge_u32 s70, 54')
        p(f's_cbranch_scc1 L_skip_pair{pr}')
        for t in range(4):
            a, b = F_ACC(2 * pr, t), F_ACC(2 * pr + 1, t)
            gelu([a, a + 2, b, b + 2], 152)
            o = OUT + 4 * (n % 4)
            n += 1
            p(f'v_cvt_pk_bf16_f32 v{o}, v{a}, v{a+1}')
            p(f'v_cvt_pk_bf16_f32 v{o+1}, v{a+2}, v{a+3}')
            p(f'v_cvt_pk_bf16_f32 v{o+2}, v{b}, v{b+1}')
            p(f'v_cvt_pk_bf16_f32 v{o+3}, v{b+2}, v{b+3}')
            p(f's_add_u32 s70, s68, {pr*1024 + t*54*1024}')
            p(f'buffer_store_dwordx4 v[{o}:{o+3}], v248, s[{SRD_WS}:{SRD_WS+3}], s70 offen {CFG["STF"]}')
        p.label(f'L_skip_pair{pr}')
    for t2 in range(2):
        a, b = F_ACC(6, 2 * t2), F_ACC(6, 2 * t2 + 1)
        gelu([a, a + 2, b, b + 2], 152)
        for u, x in enumerate((a, b)):
            o = OUT + 16 + 2 * ((2 * t2 + u) % 2)
            p(f'v_cvt_pk_bf16_f32 v{o}, v{x}, v{x+1}')
            p(f'v_cvt_pk_bf16_f32 v{o+1}, v{x+2}, v{x+3}')
            p(f's_add_u32 s70, s69, {(2*t2+u)*54*1024}')
            p(f'buffer_store_dwordx2 v[{o}:{o+1}], v248, s[{SRD_WS}:{SRD_WS+3}], s70 offen {CFG["STF"]}')


def gen_k1():
    p = Prog()
    p('s_cmp_ge_u32 s2, 256')
    p('s_cbranch_scc1 L_k1_end')
    p('s_load_dwordx4 s[4:7], s[0:1], 0')
    p('s_load_dwordx4 s[8:11], s[0:1], 16')
    p('s_load_dwordx4 s[12:15], s[0:1], 32')
    p('s_load_dwordx4 s[16:19], s[0:1], 48')
    p('s_load_dwordx2 s[20:21], s[0:1], 64')
    p('s_load_dwordx2 s[22:23], s[0:1], 88')
    p('s_load_dwordx2 s[100:101], s[0:1], 72')
    if CFG['PROF']:
        p('s_memrealtime s[88:89]')
        p('s_memtime s[82:83]')
    p('v_lshrrev_b32 v1, 6, v0')
    p('v_and_b32 v2, 63, v0')
    p(f'v_readfirstlane_b32 s{S_WAVE}, v1')
    k1_decode(p)
    p(f's_cmp_eq_u32 s{S_WAVE}, 0')
    p('s_cbranch_scc0 L_nopf')
    p('v_mov_b32 v10, v2')
    code_prefetch(p, 'L_k1_body', 'L_k1_end', CFG.get('K1_BYTES', 20480), 10, 255, 84, 'k1')
    p.label('L_nopf')
    p.label('L_k1_body')
    p(f's_cmp_ge_u32 s{S_WAVE}, 4')
    p('s_cbranch_scc0 L_consumer')
    p(f's_cmp_eq_u32 s{S_TYPE}, 0')
    p('s_cbranch_scc1 L_loader_A')
    p('s_branch L_loader_F')
    p.label('L_consumer')
    p(f's_cmp_eq_u32 s{S_TYPE}, 0')
    p('s_cbranch_scc0 L_cons_F')
    p('s_movk_i32 s99, 256')
    prefetch_setup(p, True)
    p('s_waitcnt lgkmcnt(0)')
    tlb_touch(p, 'A')
    attn_prologue(p)
    srd(p, SRD_WS, S_WS, WS_USED)
    srd(p, SRD_X, S_AX, 2048 * 1280)
    srd(p, SRD_W, S_WQKV, 640 * 3840)
    p('s_waitcnt lgkmcnt(0)')
    stamp(p, 0)
    p('s_barrier')
    stamp(p, 1)
    prefetch_issue(p, True)
    if CFG['M35']:
        p('s_cmp_eq_u32 s56, 0')
        p('s_cbranch_scc0 L_attn_th1')
        for th in (0, 1):
            if th:
                p.label('L_attn_th1')
            consumer_loop(p, True, th)
            stamp(p, 2)
            attn_epilogue(p, th)
            stamp(p, 3)
            if CFG['PROF']:
                prof_store(p, 4, 'CA', SRD_WS)
            p('s_endpgm')
    else:
        consumer_loop(p, True)
        stamp(p, 2)
        attn_epilogue(p)
        stamp(p, 3)
        if CFG['PROF']:
            prof_store(p, 4, 'CA', SRD_WS)
        p('s_endpgm')
    p.label('L_cons_F')
    p('s_movk_i32 s99, 256')
    prefetch_setup(p, False)
    ffn_prologue(p)
    srd(p, SRD_WS, S_WS, WS_USED)
    srd(p, SRD_X, S_AX, 2048 * 1280)
    srd(p, SRD_W, S_W1, 640 * 3456)
    p('s_waitcnt lgkmcnt(0)')
    stamp(p, 0)
    p('s_barrier')
    stamp(p, 1)
    prefetch_issue(p, False)
    consumer_loop(p, False)
    stamp(p, 2)
    ffn_epilogue(p)
    stamp(p, 3)
    if CFG['PROF']:
        prof_store(p, 4, 'CF', SRD_WS)
    p('s_endpgm')
    k1_loader(p, True)
    k1_loader(p, False)
    p.label('L_k1_end')
    p('s_endpgm')
    return p


def k2_stream(p, wave_a):
    NB = CFG['NBUF']
    tag = 'a' if wave_a else 'b'
    nsteps = 20 if wave_a else 18
    ACC = lambda t, f: K2_ACC + (t * 5 + f) * 4
    BA = lambda b, t: 36 * b + 4 * t
    BW = lambda b, f: 36 * b + 16 + 4 * f

    def ld_w(b, f):
        if f < 4:
            p(f'buffer_load_dwordx4 v[{BW(b,f)}:{BW(b,f)+3}], v{K2_VL}, s[12:15], s21 offen offset:{1024*f} {CFG["K2LDF"]}')
        else:
            p(f'buffer_load_dwordx4 v[{BW(b,f)}:{BW(b,f)+3}], v{K2_VL2}, s[12:15], s21 offen {CFG["K2LDF"]}')

    def ld_a(b, t):
        p(f'buffer_load_dwordx4 v[{BA(b,t)}:{BA(b,t)+3}], v{K2_VA+t}, s[12:15], s20 offen {CFG["K2LDF"]}')

    nrot = 16 if wave_a else 18
    state = {'n': 0}

    def adv():
        state['n'] += 1
        p('s_add_u32 s20, s20, 1024')
        p('s_add_u32 s21, s21, 5120')
        if not CFG['ROT2']:
            return
        if state['n'] < nrot:
            p('s_add_u32 s22, s22, 1')
            p(f's_cmp_eq_u32 s22, {nrot}')
            p(f's_cselect_b32 s23, {nrot*1024}, 0')
            p('s_sub_u32 s20, s20, s23')
            p('s_mul_i32 s23, s23, 5')
            p('s_sub_u32 s21, s21, s23')
        elif state['n'] == nrot and wave_a:
            p('s_mov_b32 s20, s34')
            p('s_mov_b32 s21, s35')

    for s in range(min(NB, nsteps)):
        for f in range(5):
            ld_w(s % NB, f)
        for t in range(4):
            ld_a(s % NB, t)
        adv()
    for r in range(80):
        p(f'v_mov_b32 v{K2_ACC+r}, 0')
    stamp(p, 1)
    for s in range(nsteps):
        b = s % NB
        issued = min(s + NB, nsteps)
        newer = (issued - s - 1) * 9
        p(f's_waitcnt vmcnt({newer})')
        more = s + NB < nsteps
        tail = wave_a and s >= 16
        amap = [0, 1, 2, 3]
        if tail:
            for (x, y) in ((0, 2), (1, 3)):
                p(f'v_swap_b32 v{BA(b,x)+2}, v{BA(b,y)}')
                p(f'v_swap_b32 v{BA(b,x)+3}, v{BA(b,y)+1}')
            amap = [0, 2, 1, 3]
        for f in range(5):
            for t in range(4):
                acc = ACC(t, f)
                if not CFG['K2NOMFMA']:
                    p(f'v_mfma_f32_16x16x32_bf16 v[{acc}:{acc+3}], v[{BW(b,f)}:{BW(b,f)+3}], v[{BA(b,amap[t])}:{BA(b,amap[t])+3}], v[{acc}:{acc+3}]')
            if more:
                ld_w(b, f)
        if more:
            for t in range(4):
                ld_a(b, t)
            adv()
    p('s_branch L_k2_reduce')


K2_ACC = 144
K2_VL, K2_VL2, K2_VA = 224, 225, 226
K2_G, K2_B2 = 230, 232
K2_LDS = 4 * 4 * 5120


def gen_k2():
    global K2_ACC
    NB = CFG['NBUF']
    assert NB * 36 + 80 <= 224
    K2_ACC = NB * 36
    p = Prog()
    p('s_cmp_ge_u32 s2, 256')
    p('s_cbranch_scc1 L_k2_end')
    p('s_load_dwordx2 s[4:5], s[0:1], 88')
    p('s_load_dwordx2 s[6:7], s[0:1], 72')
    p('s_load_dwordx2 s[8:9], s[0:1], 56')
    if CFG['PROF']:
        p('s_memrealtime s[88:89]')
        p('s_memtime s[82:83]')
    p('v_lshrrev_b32 v1, 6, v0')
    p('v_and_b32 v2, 63, v0')
    p(f'v_readfirstlane_b32 s{S_WAVE}, v1')
    p('s_and_b32 s52, s2, 7')
    p('s_lshr_b32 s53, s2, 3')
    if CFG['MAP2'] == '8x4':
        p('s_lshr_b32 s54, s52, 1')
        p('s_lshl_b32 s54, s54, 3')
        p('s_lshr_b32 s55, s53, 2')
        p('s_add_u32 s26, s54, s55')
        p('s_and_b32 s54, s52, 1')
        p('s_lshl_b32 s54, s54, 2')
        p('s_and_b32 s55, s53, 3')
        p('s_add_u32 s27, s54, s55')
    else:
        p('s_lshl_b32 s54, s52, 2')
        p('s_lshr_b32 s55, s53, 3')
        p('s_add_u32 s26, s54, s55')
        p('s_and_b32 s27, s53, 7')
    p(f's_cmp_eq_u32 s{S_WAVE}, 0')
    p('s_cbranch_scc0 L_k2_nopf')
    p('v_mov_b32 v10, v2')
    code_prefetch(p, 'L_k2_body', 'L_k2_end', CFG.get('K2_BYTES', 16384), 10, 255, 84, 'k2')
    p.label('L_k2_nopf')
    p.label('L_k2_body')
    p(f'v_lshlrev_b32 v{K2_VL}, 4, v2')
    p(f'v_add_u32 v{K2_VL2}, 4096, v{K2_VL}')
    p(f's_cmp_eq_u32 s{S_WAVE}, 0')
    p('s_mov_b32 s56, 20480')
    p('s_cselect_b32 s56, s56, 55296')
    p(f's_mov_b32 s57, {OA_OFF}')
    p(f's_cselect_b32 s57, s57, {H_OFF}')
    p(f's_mov_b32 s58, {WO_OFF}')
    p(f's_cselect_b32 s58, s58, {W2_OFF}')
    p('s_cselect_b32 s59, 20, 54')
    p(f's_mul_i32 s60, s{S_WAVE}, 18')
    p('s_cselect_b32 s60, 18, s60')
    p('s_sub_u32 s60, s60, 18')
    p('s_lshl_b32 s61, s26, 2')
    p('s_mul_i32 s61, s61, s56')
    p('s_add_u32 s61, s61, s57')
    p('s_lshl_b32 s62, s60, 10')
    p('s_add_u32 s20, s61, s62')
    p('s_mul_i32 s61, s27, s59')
    p('s_add_u32 s61, s61, s60')
    p('s_mul_i32 s61, s61, 5120')
    p('s_add_u32 s21, s61, s58')
    if CFG['ROT2']:
        p('s_add_u32 s34, s20, 16384')
        p('s_add_u32 s35, s21, 81920')
        if CFG['ROT2'] == 2:
            p('s_xor_b32 s62, s26, s27')
            p('s_and_b32 s62, s62, 1')
            p(f's_cmp_eq_u32 s{S_WAVE}, 0')
            p('s_cselect_b32 s63, 8, 9')
            p('s_mul_i32 s22, s62, s63')
        elif CFG['ROT2'] == 3:
            p('s_add_u32 s62, s26, s27')
            p('s_mul_i32 s63, s62, 43')
            p('s_lshr_b32 s63, s63, 7')
            p('s_mul_i32 s63, s63, 3')
            p('s_sub_u32 s62, s62, s63')
            p(f's_cmp_eq_u32 s{S_WAVE}, 0')
            p('s_cselect_b32 s63, 5, 6')
            p('s_mul_i32 s22, s62, s63')
        else:
            p('s_and_b32 s62, s26, 7')
            p('s_and_b32 s63, s27, 3')
            p('s_lshl_b32 s63, s63, 1')
            p('s_add_u32 s62, s62, s63')
            p(f's_cmp_eq_u32 s{S_WAVE}, 0')
            p('s_cselect_b32 s63, 16, 18')
            p('s_mul_i32 s62, s62, s63')
            p('s_lshr_b32 s22, s62, 3')
            p('s_cmp_ge_u32 s22, s63')
            p('s_cselect_b32 s62, s63, 0')
            p('s_sub_u32 s22, s22, s62')
        p('s_lshl_b32 s62, s22, 10')
        p('s_add_u32 s20, s20, s62')
        p('s_mul_i32 s62, s22, 5120')
        p('s_add_u32 s21, s21, s62')
    for t in range(4):
        p(f's_mul_i32 s62, s56, {t}')
        p(f'v_add_u32 v{K2_VA+t}, s62, v{K2_VL}')
    p('v_and_b32 v3, 15, v2')
    p('v_lshrrev_b32 v4, 4, v2')
    p('s_lshl_b32 s62, s26, 6')
    p(f's_lshl_b32 s63, s{S_WAVE}, 4')
    p('s_add_u32 s62, s62, s63')
    p('v_add_u32 v5, s62, v3')
    p('v_lshlrev_b32 v6, 3, v5')
    p(f'v_add_u32 v6, {G_OFF}, v6')
    p('s_mul_i32 s63, s27, 160')
    p('v_lshlrev_b32 v7, 4, v4')
    p('v_add_u32 v7, s63, v7')
    p('v_lshlrev_b32 v8, 3, v4')
    p('v_add_u32 v8, s63, v8')
    p('s_movk_i32 s63, 1280')
    p('v_mul_u32_u24 v5, s63, v5')
    p('v_add_u32 v242, v5, v7')
    p('v_add_u32 v243, v5, v8')
    p('s_waitcnt lgkmcnt(0)')
    srd(p, 12, 4, WS_USED)
    srd(p, 16, 8, 1280)
    srd(p, 28, 6, 2048 * 1280)
    stamp(p, 0)
    p(f'buffer_load_dwordx2 v[{K2_G}:{K2_G+1}], v6, s[12:15], 0 offen')
    p(f'buffer_load_dwordx4 v[{K2_B2}:{K2_B2+3}], v7, s[16:19], 0 offen')
    p(f'buffer_load_dwordx4 v[{K2_B2+4}:{K2_B2+7}], v7, s[16:19], 0 offen offset:64')
    p(f'buffer_load_dwordx2 v[{K2_B2+8}:{K2_B2+9}], v8, s[16:19], 0 offen offset:128')
    p(f's_cmp_eq_u32 s{S_WAVE}, 0')
    p('s_cbranch_scc0 L_k2_b')
    k2_stream(p, True)
    p.label('L_k2_b')
    k2_stream(p, False)
    p.label('L_k2_reduce')
    stamp(p, 2)
    ACC = lambda t, f: K2_ACC + (t * 5 + f) * 4
    p(f's_mul_i32 s62, s{S_WAVE}, 5120')
    p(f'v_add_u32 v3, s62, v{K2_VL}')
    p('s_nop 7')
    p('v_add_u32 v4, 40960, v3')
    for t in range(4):
        for f in range(5):
            p(f'ds_write_b128 v{3 + (t >> 1)}, v[{ACC(t,f)}:{ACC(t,f)+3}] offset:{(t & 1)*20480 + f*1024}')
    p(f's_mul_i32 s62, s{S_WAVE}, 20480')
    p(f'v_add_u32 v250, s62, v{K2_VL}')
    p('s_waitcnt lgkmcnt(0)')
    p('s_barrier')
    R = lambda w, f: (w * 5 + f) * 4
    for f in range(5):
        for w in range(4):
            p(f'ds_read_b128 v[{R(w,f)}:{R(w,f)+3}], v250 offset:{w*5120 + f*1024}')
    p('s_mov_b32 s62, 0xffff0000')
    B = lambda f: 100 + 4 * f
    for pr in range(2):
        for d in range(4):
            src = K2_B2 + 4 * pr + d
            f, r = 2 * pr + (d >> 1), 2 * (d & 1)
            p(f'v_lshlrev_b32 v{B(f)+r}, 16, v{src}')
            p(f'v_and_b32 v{B(f)+r+1}, s62, v{src}')
    for d in range(2):
        src = K2_B2 + 8 + d
        p(f'v_lshlrev_b32 v{B(4)+2*d}, 16, v{src}')
        p(f'v_and_b32 v{B(4)+2*d+1}, s62, v{src}')
    p(f'v_mov_b32 v120, v{K2_G}')
    p(f'v_mov_b32 v121, v{K2_G}')
    p(f'v_mov_b32 v122, v{K2_G+1}')
    p(f'v_mov_b32 v123, v{K2_G+1}')
    for f in range(5):
        p(f's_waitcnt lgkmcnt({min(15, 16-4*f)})' if f < 4 else 's_waitcnt lgkmcnt(0)')
        if f == 0:
            p('s_waitcnt lgkmcnt(15)')
        for r in (0, 2):
            a, b1, b2_, b3 = R(0, f) + r, R(1, f) + r, R(2, f) + r, R(3, f) + r
            p(f'v_pk_add_f32 v[{b1}:{b1+1}], v[{b1}:{b1+1}], v[{b2_}:{b2_+1}]')
            p(f'v_pk_add_f32 v[{b3}:{b3+1}], v[{b3}:{b3+1}], v[{B(f)+r}:{B(f)+r+1}]')
            p(f'v_pk_mul_f32 v[{a}:{a+1}], v[{a}:{a+1}], v[120:121]')
            p(f'v_pk_add_f32 v[{b1}:{b1+1}], v[{b1}:{b1+1}], v[{b3}:{b3+1}]')
            p(f'v_pk_fma_f32 v[{a}:{a+1}], v[{b1}:{b1+1}], v[122:123], v[{a}:{a+1}]')
    O = 124
    for pr in range(2):
        for u in range(2):
            a = R(0, 2 * pr + u)
            p(f'v_cvt_pk_bf16_f32 v{O+4*pr+2*u}, v{a}, v{a+1}')
            p(f'v_cvt_pk_bf16_f32 v{O+4*pr+2*u+1}, v{a+2}, v{a+3}')
        p(f'buffer_store_dwordx4 v[{O+4*pr}:{O+4*pr+3}], v242, s[28:31], 0 offen offset:{64*pr} {CFG["OUTF"]}')
    a = R(0, 4)
    p(f'v_cvt_pk_bf16_f32 v{O+8}, v{a}, v{a+1}')
    p(f'v_cvt_pk_bf16_f32 v{O+9}, v{a+2}, v{a+3}')
    p(f'buffer_store_dwordx2 v[{O+8}:{O+9}], v243, s[28:31], 0 offen offset:128 {CFG["OUTF"]}')
    stamp(p, 3)
    if CFG['PROF']:
        prof_store(p, 4, 'K2', 12)
    p.label('L_k2_end')
    p('s_endpgm')
    return p


K2B_R = 4
K2B_STEP = 9216
K2B_SLOT = 4 * K2B_STEP
K2B_LDS = K2B_R * K2B_SLOT


def gen_k2b():
    R, SL, ST = K2B_R, K2B_SLOT, K2B_STEP
    stages = [('a', 4 * i, 4) for i in range(5)] + [('b', 4 * i, 4) for i in range(13)] + [('b', 52, 2)]
    NS = len(stages)
    p = Prog()
    p('s_cmp_ge_u32 s2, 256')
    p('s_cbranch_scc1 L_k2_end')
    p('s_load_dwordx2 s[4:5], s[0:1], 88')
    p('s_load_dwordx2 s[6:7], s[0:1], 72')
    p('s_load_dwordx2 s[8:9], s[0:1], 56')
    if CFG['PROF']:
        p('s_memrealtime s[88:89]')
        p('s_memtime s[82:83]')
    p('v_lshrrev_b32 v1, 6, v0')
    p('v_and_b32 v2, 63, v0')
    p(f'v_readfirstlane_b32 s{S_WAVE}, v1')
    p('s_and_b32 s52, s2, 7')
    p('s_lshr_b32 s53, s2, 3')
    if CFG['MAP2'] == '8x4':
        p('s_lshr_b32 s54, s52, 1')
        p('s_lshl_b32 s54, s54, 3')
        p('s_lshr_b32 s55, s53, 2')
        p('s_add_u32 s26, s54, s55')
        p('s_and_b32 s54, s52, 1')
        p('s_lshl_b32 s54, s54, 2')
        p('s_and_b32 s55, s53, 3')
        p('s_add_u32 s27, s54, s55')
    else:
        p('s_lshl_b32 s54, s52, 2')
        p('s_lshr_b32 s55, s53, 3')
        p('s_add_u32 s26, s54, s55')
        p('s_and_b32 s27, s53, 7')
    p('v_lshlrev_b32 v3, 4, v2')
    p(f's_cmp_ge_u32 s{S_WAVE}, 4')
    p('s_cbranch_scc0 L_k2_consumer')
    p(f's_sub_u32 s57, s{S_WAVE}, 4')
    p('s_mul_i32 s20, s27, 20')
    p('s_add_u32 s20, s20, s57')
    p('s_mul_i32 s20, s20, 5120')
    p(f's_add_u32 s20, s20, {WO_OFF}')
    p('s_mul_i32 s21, s27, 54')
    p('s_add_u32 s21, s21, s57')
    p('s_mul_i32 s21, s21, 5120')
    p(f's_add_u32 s21, s21, {W2_OFF}')
    p('s_lshl_b32 s54, s26, 2')
    p('s_mul_i32 s22, s54, 20')
    p('s_add_u32 s22, s22, s57')
    p('s_lshl_b32 s22, s22, 10')
    p(f's_add_u32 s22, s22, {OA_OFF}')
    p('s_mul_i32 s25, s54, 54')
    p('s_add_u32 s25, s25, s57')
    p('s_lshl_b32 s25, s25, 10')
    if H_OFF:
        p(f's_add_u32 s25, s25, {H_OFF}')
    p(f's_mul_i32 s58, s57, {ST}')
    p('v_add_u32 v4, 4096, v3')
    for u in range(4):
        p(f'v_add_u32 v{10+u}, {20480*u}, v3')
        p(f'v_add_u32 v{14+u}, {55296*u}, v3')
    p('s_waitcnt lgkmcnt(0)')
    srd(p, 12, 4, WS_USED)
    stamp(p, 0)

    def issue(j):
        part, s0, n = stages[j]
        slot = j % R
        if n < 4:
            p(f's_cmp_ge_u32 s57, {n}')
            p(f's_cbranch_scc1 L_k2_skip{j}')
        p(f's_add_u32 s23, s{20 if part == "a" else 21}, {s0*5120}')
        p(f's_add_u32 s24, s{22 if part == "a" else 25}, {s0*1024}') if False else None
        p(f's_add_u32 m0, s58, {slot*SL}')
        p(f's_add_u32 s59, s{22 if part == "a" else 25}, {s0*1024}')
        for f in range(4):
            p(f'buffer_load_dwordx4 v3, s[12:15], s23 offen offset:{1024*f} {CFG["K2LDF"]} lds')
        p(f's_add_u32 m0, s58, {slot*SL + 4096}')
        p('s_nop 0')
        p(f'buffer_load_dwordx4 v4, s[12:15], s23 offen {CFG["K2LDF"]} lds')
        for u in range(4):
            p(f's_add_u32 m0, s58, {slot*SL + 5120 + 1024*u}')
            p('s_nop 0')
            p(f'buffer_load_dwordx4 v{(10 if part == "a" else 14)+u}, s[12:15], s59 offen {CFG["K2LDF"]} lds')
        if n < 4:
            p.label(f'L_k2_skip{j}')

    for j in range(R - 1):
        issue(j)
    stamp(p, 1)
    for j in range(NS):
        hi = min(j + R - 2, NS - 1)
        newer = 9 * (hi - j)
        if hi == NS - 1 and j < NS - 1:
            newer -= 9
        p(f's_waitcnt vmcnt({max(newer, 0)})')
        p('s_barrier')
        if j + R - 1 < NS:
            issue(j + R - 1)
    stamp(p, 2)
    stamp(p, 3)
    if CFG['PROF']:
        prof_store(p, 4, 'K2', 12)
    p('s_endpgm')
    p.label('L_k2_consumer')
    p(f's_cmp_eq_u32 s{S_WAVE}, 0')
    p('s_cbranch_scc0 L_k2_nopf')
    p('v_mov_b32 v10, v2')
    code_prefetch(p, 'L_k2_body', 'L_k2_end', CFG.get('K2_BYTES', 12288), 10, 255, 84, 'k2')
    p.label('L_k2_nopf')
    p.label('L_k2_body')
    ACA, ACB = 0, 20
    WR = lambda q, f: 40 + 20 * q + 4 * f
    AR = lambda q: 120 + 4 * q
    G, B2 = 230, 232
    p('s_lshl_b32 s54, s26, 2')
    p(f's_add_u32 s54, s54, s{S_WAVE}')
    p('v_and_b32 v4, 15, v2')
    p('v_lshrrev_b32 v5, 4, v2')
    p('s_lshl_b32 s55, s54, 4')
    p('v_add_u32 v6, s55, v4')
    p('v_lshlrev_b32 v7, 3, v6')
    p(f'v_add_u32 v7, {G_OFF}, v7')
    p('s_mul_i32 s55, s27, 160')
    p('v_lshlrev_b32 v8, 4, v5')
    p('v_add_u32 v8, s55, v8')
    p('v_lshlrev_b32 v9, 3, v5')
    p('v_add_u32 v9, s55, v9')
    p('v_mul_u32_u24 v6, 1280, v6')
    p('v_add_u32 v242, v6, v8')
    p('v_add_u32 v243, v6, v9')
    p(f's_lshl_b32 s55, s{S_WAVE}, 10')
    p('s_add_u32 s55, s55, 5120')
    for sl in range(R):
        p(f'v_add_u32 v{244+sl}, {sl*SL}, v3')
        p(f'v_add_u32 v{250+sl}, s55, v{244+sl}')
    p(f's_lshr_b32 s55, s{S_WAVE}, 1')
    p('s_lshl_b32 s55, s55, 10')
    p(f's_and_b32 s56, s{S_WAVE}, 1')
    p('s_lshl_b32 s56, s56, 3')
    p('s_add_u32 s55, s55, s56')
    p('s_add_u32 s55, s55, 5120')
    p('v_add_u32 v249, s55, v3')
    p('s_waitcnt lgkmcnt(0)')
    srd(p, 12, 4, WS_USED)
    srd(p, 16, 8, 1280)
    srd(p, 28, 6, 2048 * 1280)
    stamp(p, 0)
    p(f'buffer_load_dwordx2 v[{G}:{G+1}], v7, s[12:15], 0 offen')
    p(f'buffer_load_dwordx4 v[{B2}:{B2+3}], v8, s[16:19], 0 offen')
    p(f'buffer_load_dwordx4 v[{B2+4}:{B2+7}], v8, s[16:19], 0 offen offset:64')
    p(f'buffer_load_dwordx2 v[{B2+8}:{B2+9}], v9, s[16:19], 0 offen offset:128')
    for r in range(40):
        p(f'v_mov_b32 v{r}, 0')
    stamp(p, 1)
    for j, (part, s0, n) in enumerate(stages):
        slot = j % R
        tail = (part == 'a' and s0 == 16)
        assert not tail or slot == 0
        p('s_barrier')
        log = []
        for q in range(n):
            if tail:
                p(f'ds_read_b64 v[{AR(q)}:{AR(q)+1}], v249 offset:{q*ST}')
                p(f'ds_read_b64 v[{AR(q)+2}:{AR(q)+3}], v249 offset:{q*ST + 2048}')
                log += [('a', q), ('a', q)]
            else:
                p(f'ds_read_b128 v[{AR(q)}:{AR(q)+3}], v{250+slot} offset:{q*ST}')
                log.append(('a', q))
            for f in range(5):
                p(f'ds_read_b128 v[{WR(q,f)}:{WR(q,f)+3}], v{244+slot} offset:{q*ST + f*1024}')
                log.append(('w', q, f))
        known = max(0, len(log) - 15) if len(log) > 15 else 0
        done = -1
        for q in range(n):
            acc0 = ACA if part == 'a' else ACB
            for f in range(5):
                idx = log.index(('w', q, f))
                if idx > done:
                    left = len(log) - 1 - idx
                    w = min(left, 15)
                    p(f's_waitcnt lgkmcnt({w})')
                    done = len(log) - 1 - w
                p(f'v_mfma_f32_16x16x32_bf16 v[{acc0+4*f}:{acc0+4*f+3}], v[{WR(q,f)}:{WR(q,f)+3}], v[{AR(q)}:{AR(q)+3}], v[{acc0+4*f}:{acc0+4*f+3}]')
    stamp(p, 2)
    p('s_mov_b32 s62, 0xffff0000')
    p('s_waitcnt vmcnt(0)')
    Bf = lambda f: 100 + 4 * f
    for pr in range(2):
        for d in range(4):
            s_ = B2 + 4 * pr + d
            f, r = 2 * pr + (d >> 1), 2 * (d & 1)
            p(f'v_lshlrev_b32 v{Bf(f)+r}, 16, v{s_}')
            p(f'v_and_b32 v{Bf(f)+r+1}, s62, v{s_}')
    for d in range(2):
        s_ = B2 + 8 + d
        p(f'v_lshlrev_b32 v{Bf(4)+2*d}, 16, v{s_}')
        p(f'v_and_b32 v{Bf(4)+2*d+1}, s62, v{s_}')
    p(f'v_mov_b32 v120, v{G}')
    p(f'v_mov_b32 v121, v{G}')
    p(f'v_mov_b32 v122, v{G+1}')
    p(f'v_mov_b32 v123, v{G+1}')
    for f in range(5):
        for r in (0, 2):
            a, b = ACA + 4 * f + r, ACB + 4 * f + r
            p(f'v_pk_add_f32 v[{b}:{b+1}], v[{b}:{b+1}], v[{Bf(f)+r}:{Bf(f)+r+1}]')
            p(f'v_pk_mul_f32 v[{a}:{a+1}], v[{a}:{a+1}], v[120:121]')
    for f in range(5):
        for r in (0, 2):
            a, b = ACA + 4 * f + r, ACB + 4 * f + r
            p(f'v_pk_fma_f32 v[{a}:{a+1}], v[{b}:{b+1}], v[122:123], v[{a}:{a+1}]')
    O = 124
    for pr in range(2):
        for u in range(2):
            a = ACA + 4 * (2 * pr + u)
            p(f'v_cvt_pk_bf16_f32 v{O+4*pr+2*u}, v{a}, v{a+1}')
            p(f'v_cvt_pk_bf16_f32 v{O+4*pr+2*u+1}, v{a+2}, v{a+3}')
        p(f'buffer_store_dwordx4 v[{O+4*pr}:{O+4*pr+3}], v242, s[28:31], 0 offen offset:{64*pr} {CFG["OUTF"]}')
    a = ACA + 16
    p(f'v_cvt_pk_bf16_f32 v{O+8}, v{a}, v{a+1}')
    p(f'v_cvt_pk_bf16_f32 v{O+9}, v{a+2}, v{a+3}')
    p(f'buffer_store_dwordx2 v[{O+8}:{O+9}], v243, s[28:31], 0 offen offset:128 {CFG["OUTF"]}')
    stamp(p, 3)
    if CFG['PROF']:
        prof_store(p, 4, 'K2', 12)
    p.label('L_k2_end')
    p('s_endpgm')
    return p


def gen_k2t():
    NW, INF, MODE = CFG['NW'], CFG['INF'], CFG['TMODE']
    p = Prog()
    p('s_cmp_ge_u32 s2, 256')
    p('s_cbranch_scc1 L_k2_end')
    p('s_load_dwordx2 s[4:5], s[0:1], 88')
    p('s_memrealtime s[88:89]')
    p('s_memtime s[82:83]')
    p('v_lshrrev_b32 v1, 6, v0')
    p('v_and_b32 v2, 63, v0')
    p(f'v_readfirstlane_b32 s{S_WAVE}, v1')
    p('s_and_b32 s52, s2, 7')
    p('s_lshr_b32 s53, s2, 3')
    p('s_lshr_b32 s54, s52, 1')
    p('s_lshl_b32 s54, s54, 3')
    p('s_lshr_b32 s55, s53, 2')
    p('s_add_u32 s26, s54, s55')
    p('s_and_b32 s54, s52, 1')
    p('s_lshl_b32 s54, s54, 2')
    p('s_and_b32 s55, s53, 3')
    p('s_add_u32 s27, s54, s55')
    p('v_lshlrev_b32 v3, 4, v2')
    p('v_add_u32 v4, 4096, v3')
    nst = 72 // NW
    p(f's_mul_i32 s60, s{S_WAVE}, {nst}')
    p('s_cmp_ge_u32 s60, 54')
    p('s_cselect_b32 s61, 1, 0')
    p('s_cselect_b32 s56, 20480, 0')
    p('s_cselect_b32 s56, s56, 55296')
    p(f's_mov_b32 s57, {OA_OFF}')
    p(f's_cselect_b32 s57, s57, {H_OFF}')
    p(f's_mov_b32 s58, {WO_OFF}')
    p(f's_cselect_b32 s58, s58, {W2_OFF}')
    p('s_cselect_b32 s59, 20, 54')
    p('s_cselect_b32 s62, 54, 0')
    p('s_sub_u32 s60, s60, s62')
    p('s_lshl_b32 s61, s26, 2')
    p('s_mul_i32 s61, s61, s56')
    p('s_add_u32 s61, s61, s57')
    p('s_lshl_b32 s62, s60, 10')
    p('s_add_u32 s20, s61, s62')
    p('s_mul_i32 s61, s27, s59')
    p('s_add_u32 s61, s61, s60')
    p('s_mul_i32 s61, s61, 5120')
    p('s_add_u32 s21, s61, s58')
    for t in range(4):
        p(f's_mul_i32 s62, s56, {t}')
        p(f'v_add_u32 v{10+t}, s62, v3')
    p(f's_mul_i32 s63, s{S_WAVE}, 16384')
    p('s_waitcnt lgkmcnt(0)')
    srd(p, 12, 4, WS_USED)
    stamp(p, 0)
    stamp(p, 1)
    n = 0
    for s in range(nst):
        for f in range(9):
            r = 20 + 4 * (n % 48)
            if MODE == 'dma':
                p(f's_add_u32 m0, s63, {(n % 16) * 1024}')
                p('s_nop 0')
            a, so, off = (3, 's21', 1024 * f) if f < 4 else ((4, 's21', 0) if f == 4 else (10 + f - 5, 's20', 0))
            if MODE == 'dma':
                if f < 4 and f > 0:
                    p(f's_sub_u32 m0, m0, {off}')
                    p('s_nop 0')
                p(f'buffer_load_dwordx4 v{a}, s[12:15], {so} offen offset:{off} lds')
            else:
                p(f'buffer_load_dwordx4 v[{r}:{r+3}], v{a}, s[12:15], {so} offen offset:{off}')
            p(f's_waitcnt vmcnt({INF})')
            n += 1
        p('s_add_u32 s20, s20, 1024')
        p('s_add_u32 s21, s21, 5120')
    p('s_waitcnt vmcnt(0)')
    stamp(p, 2)
    stamp(p, 3)
    prof_store(p, 4, 'K2', 12)
    p.label('L_k2_end')
    p('s_endpgm')
    return p


HEADER = """; Kernarg layout (96 bytes, ptrs only, base s[0:1]):
; @launch kernel=gm_k1_kernel grid=(256,1,1) block=(512,1,1) lds=%d
; @launch kernel=gm_k2_kernel grid=(256,1,1) block=(256,1,1) lds=%d
.amdgcn_target "amdgcn-amd-amdhsa--gfx950"
"""

KD = """.amdhsa_kernel %s
  .amdhsa_next_free_vgpr %d
  .amdhsa_next_free_sgpr 102
  .amdhsa_accum_offset %d
  .amdhsa_group_segment_fixed_size 0
  .amdhsa_kernarg_size 96
  .amdhsa_user_sgpr_count 2
  .amdhsa_user_sgpr_kernarg_segment_ptr 1
  .amdhsa_system_sgpr_workgroup_id_x 1
  .amdhsa_float_denorm_mode_32 3
.end_amdhsa_kernel
"""


def main():
    k1 = gen_k1()
    k2 = gen_k2b() if CFG['K2V'] == 2 else (gen_k2t() if CFG['K2V'] == 3 else gen_k2())
    t1, t2 = k1.finish(), k2.finish()
    s = HEADER % (K1_LDS, K2B_LDS if CFG['K2V'] == 2 else K2_LDS)
    if CFG['K2V'] == 3:
        s = s.replace('kernel=gm_k2_kernel grid=(256,1,1) block=(256,1,1) lds=%d' % K2_LDS, 'kernel=gm_k2_kernel grid=(256,1,1) block=(%d,1,1) lds=131072' % (64 * CFG['NW']))
    if CFG['K2V'] == 2:
        s = s.replace('kernel=gm_k2_kernel grid=(256,1,1) block=(256,1,1)', 'kernel=gm_k2_kernel grid=(256,1,1) block=(512,1,1)')
    if CFG['K2TWICE']:
        ln = [l for l in s.split('\n') if 'kernel=gm_k2_kernel' in l][0]
        s = s.replace(ln, ln + '\n' + ln)
    s += '.text\n'
    for name, t in (('gm_k1_kernel', t1), ('gm_k2_kernel', t2)):
        s += f'.globl {name}\n.p2align 8\n.type {name},@function\n{name}:\n{t}'
    s += '.p2align 8\n.fill 64, 4, 0xbf800000\n' if False else ''
    s += '.section .rodata,"a"\n.p2align 6\n'
    s += KD % ('gm_k1_kernel', 256, 256)
    s += '.p2align 6\n'
    s += KD % ('gm_k2_kernel', 256, 256)
    out = CFG.get('OUT', f'cdna_kernels/{NAME}.s')
    open(out, 'w').write(s)
    print('written', out, len(s), 'bytes; nops inserted k1', k1.nops_inserted, 'k2', k2.nops_inserted)


if __name__ == '__main__':
    main()
```

```python
import sys, os, math, struct
sys.path.insert(0, os.path.dirname(os.path.abspath(__file__)))
from asmlib import Prog, vr, ar, sr

NAME = 'gated_mix__sliding_local_dilated__dense_activation_gelu__prompt'

CFG = dict(MAP1='m82', MAP2='8x4', NBUF=4, PROF=0, NOMFMA=0, NOLOAD=0, NODS=0, STF='sc1', LDF='', ULDF='nt', PFF='', PF=0, TT=1, ROT=1, ROT2=0, K2TWICE=0, K2V=1, M35=1, UNITS_FFN=0, NFU=3, PEEL=1, SWAPW=0, LDFIRST=0, PRIO=0, K2ORD=0, KPF=0, LDF0='nt', NT_ST=0, ZOOB=1, TEARLY=0, K2PF=1, DA=12, NW=4, INF=32, TMODE='reg', K2NOMFMA=0, K2LDF='', OUTF='')
for a in sys.argv[1:]:
    if '=' in a:
        k, v = a.split('=')
        CFG[k] = int(v) if v.lstrip('-').isdigit() else v.replace('+', ' ')

H_OFF = 0
OA_OFF = H_OFF + 128 * 54 * 1024
W2_OFF = OA_OFF + 128 * 20 * 1024
WO_OFF = W2_OFF + 8 * 54 * 5120
G_OFF = WO_OFF + 8 * 20 * 5120
WS_USED = G_OFF + 2048 * 8
PROF_OFF = 16 << 20

XREG = 144 * 128
WROW = 480
WREG = 64 * WROW
SLOT = XREG + WREG
XFLAG = 3 * 49152 + 15360
SCR = 3 * SLOT
K1_LDS = 163840


def f32(x):
    return struct.unpack('<I', struct.pack('<f', x))[0]


def hexf(x):
    return '0x%08x' % f32(x)


S_AX, S_WQKV, S_WO, S_BX, S_W1, S_B1, S_W2, S_B2, S_GW, S_WS = 4, 6, 8, 10, 12, 14, 16, 18, 20, 22
S_WAVE, S_TYPE, S_RB, S_CG = 24, 25, 26, 27
SRD_X, SRD_W, SRD_I4, SRD_WS, SRD_A, SRD_B = 28, 32, 36, 40, 44, 48


def srd(p, base, ptr, nbytes):
    p(f's_mov_b32 s{base}, s{ptr}')
    p(f's_mov_b32 s{base+1}, s{ptr+1}')
    p(f's_mov_b32 s{base+2}, {nbytes}')
    p(f's_mov_b32 s{base+3}, 0x20000')


def code_prefetch(p, lbl_from, lbl_to, nbytes, vtmp, vdst, s, tag):
    p(f's_getpc_b64 s[{s}:{s+1}]')
    p.label(f'L_pc_{tag}')
    p(f's_add_u32 s{s}, s{s}, {lbl_from}-L_pc_{tag}')
    p(f's_addc_u32 s{s+1}, s{s+1}, 0')
    p(f'v_lshlrev_b32 v{vtmp}, 6, v{vtmp}')
    n = (nbytes + 4095) // 4096
    for j in range(n):
        p(f'v_min_u32 v{vtmp+1}, {lbl_to}-{lbl_from}, v{vtmp}')
        p(f'global_load_dword v{vdst}, v{vtmp+1}, s[{s}:{s+1}]')
        if j + 1 < n:
            p(f'v_add_u32 v{vtmp}, 4096, v{vtmp}')
    return n


def stamp(p, idx, sbase=90):
    if CFG['PROF']:
        p(f'{"s_memtime" if CFG["PROF"] >= 2 else "s_memrealtime"} s[{sbase+2*idx}:{sbase+2*idx+1}]')


def k1_decode(p):
    p('s_and_b32 s52, s2, 7')
    p('s_lshr_b32 s53, s2, 3')
    if CFG['MAP1'] == 'mixed':
        p(f's_lshr_b32 s{S_TYPE}, s53, 4')
        p('s_and_b32 s54, s53, 15')
        p('s_lshr_b32 s55, s52, 1')
        p('s_lshl_b32 s55, s55, 2')
        p('s_lshr_b32 s56, s54, 2')
        p(f's_add_u32 s{S_RB}, s55, s56')
        p('s_and_b32 s55, s52, 1')
        p('s_lshl_b32 s55, s55, 2')
        p('s_and_b32 s56, s54, 3')
        p(f's_add_u32 s{S_CG}, s55, s56')
    elif CFG['MAP1'] == 'm82':
        p(f's_lshr_b32 s{S_TYPE}, s53, 4')
        p('s_lshr_b32 s55, s52, 2')
        p('s_lshl_b32 s55, s55, 3')
        p('s_and_b32 s56, s53, 7')
        p(f's_add_u32 s{S_RB}, s55, s56')
        p('s_and_b32 s55, s52, 3')
        p('s_lshl_b32 s55, s55, 1')
        p('s_bfe_u32 s56, s53, 0x10003')
        p(f's_add_u32 s{S_CG}, s55, s56')
    else:
        p(f's_lshr_b32 s{S_TYPE}, s52, 2')
        p('s_and_b32 s54, s52, 3')
        p('s_lshr_b32 s55, s54, 1')
        p('s_lshl_b32 s55, s55, 3')
        p('s_lshr_b32 s56, s53, 2')
        p(f's_add_u32 s{S_RB}, s55, s56')
        p('s_and_b32 s55, s54, 1')
        p('s_lshl_b32 s55, s55, 2')
        p('s_and_b32 s56, s53, 3')
        p(f's_add_u32 s{S_CG}, s55, s56')


def k1_loader(p, attn):
    tag = 'A' if attn else 'F'
    rowstride = 3840 if attn else 3456
    VOFF = 10
    VL = 2
    p.label(f'L_loader_{tag}')
    p(f's_sub_u32 s57, s{S_WAVE}, 4')
    p(f'v_lshrrev_b32 v3, 3, v{VL}')
    p('s_lshl_b32 s58, s57, 3')
    p('v_add_u32 v3, s58, v3')
    p(f's_lshl_b32 s59, s{S_RB}, 7')
    if attn:
        p('s_sub_u32 s59, s59, 16')
    p('v_add_u32 v3, s59, v3')
    p('s_and_b32 s58, s57, 1')
    p('s_lshl_b32 s58, s58, 2')
    p(f'v_lshrrev_b32 v4, 4, v{VL}')
    p('v_add_u32 v4, s58, v4')
    p(f'v_and_b32 v5, 7, v{VL}')
    p('v_xor_b32 v4, v4, v5')
    p('v_lshlrev_b32 v4, 4, v4')
    p('s_movk_i32 s58, 1280')
    p('s_movk_i32 s59, 2047')
    for i in range(5):
        p(f'v_add_u32 v5, {32*i}, v3')
        if attn and i == 0:
            p('v_max_i32 v5, 0, v5')
        if (not attn) and i == 4:
            p('v_min_u32 v5, s59, v5')
        p('v_mul_u32_u24 v5, s58, v5')
        p(f'v_add_u32 v{VOFF+i if i < 4 else 6}, v5, v4')
    p('s_lshl_b32 s58, s57, 6')
    p(f'v_add_u32 v7, s58, v{VL}')
    p(f's_mov_b32 s60, {rowstride}')
    p('v_mov_b32 v9, 0x7ffffff0')
    if attn:
        p(f's_mul_i32 s61, s{S_CG}, 160')
    else:
        p(f's_mul_i32 s61, s{S_CG}, 448')

    def w_offset(i):
        base = 64 * (4 * i - 18)
        dst = VOFF + i if i > 4 else 8
        if base >= 0:
            p(f'v_add_u32 v3, {base}, v7')
        else:
            p(f'v_subrev_u32 v3, {-base}, v7')
            p('v_max_i32 v3, 0, v3')
        p('v_mul_u32_u24 v4, 2185, v3')
        p('v_lshrrev_b32 v4, 16, v4')
        p('v_mul_u32_u24 v5, 30, v4')
        p('v_sub_u32 v5, v3, v5')
        p('v_lshrrev_b32 v3, 1, v4')
        p('v_xor_b32 v3, v3, v4')
        p('v_and_b32 v3, 4, v3')
        p('v_mul_u32_u24 v3, 3, v3')
        p('v_xor_b32 v4, v3, v4')
        p('v_mul_u32_u24 v4, s60, v4')
        if attn:
            p('v_mul_u32_u24 v3, 205, v5')
            p('v_lshrrev_b32 v3, 11, v3')
            p('v_mul_u32_u24 v3, 1120, v3')
            p('v_lshlrev_b32 v5, 4, v5')
            p('v_add3_u32 v5, v5, v3, s61')
        else:
            p('v_lshlrev_b32 v5, 4, v5')
            p('v_add_u32 v5, s61, v5')
            if CFG['ZOOB']:
                p('v_cmp_lt_u32 vcc, 3440, v5')
            else:
                p('v_min_u32 v5, 3440, v5')
        p(f'v_add_u32 v{dst}, v4, v5')
        if (not attn) and CFG['ZOOB']:
            p(f'v_cndmask_b32 v{dst}, v{dst}, v9, vcc')
        if i == 4:
            p('s_cmp_lt_u32 s57, 2')
            p('s_cselect_b64 vcc, -1, 0')
            p(f'v_cndmask_b32 v{VOFF+4}, v8, v6, vcc')

    p('s_waitcnt lgkmcnt(0)')
    if attn:
        srd(p, SRD_X, S_AX, 2048 * 1280)
        srd(p, SRD_W, S_WQKV, 640 * 3840)
    else:
        srd(p, SRD_X, S_AX, 2048 * 1280)
        srd(p, SRD_W, S_W1, 640 * 3456)
    p('s_cmp_lt_u32 s57, 2')
    for k in range(3):
        p(f's_cselect_b32 s{SRD_I4+k}, s{SRD_X+k}, s{SRD_W+k}')
    p(f's_mov_b32 s{SRD_I4+3}, 0x20000')
    p('s_movk_i32 s73, 128')
    p('s_cselect_b32 s73, s73, %d' % (64 * rowstride))
    if CFG['ROT']:
        p(f's_and_b32 s79, s{S_RB}, 7')
        p('s_lshr_b32 s80, s79, 2')
        p('s_add_u32 s79, s79, s80')
        p(f's_and_b32 s80, s{S_CG}, 1')
        p(f's_lshl_b32 s81, s{S_TYPE}, 1')
        p('s_add_u32 s80, s80, s81')
        p('s_mul_i32 s80, s80, 5')
        p('s_lshr_b32 s80, s80, 1')
        p('s_add_u32 s79, s79, s80')
        p('s_cmp_ge_u32 s79, 10')
        p('s_cselect_b32 s80, 10, 0')
        p('s_sub_u32 s79, s79, s80')
    else:
        p('s_mov_b32 s79, 0')
    p('s_lshl_b32 s74, s79, 7')
    p(f's_mul_i32 s75, s79, {64*rowstride}')
    p('s_mul_i32 s76, s79, s73')
    p('s_lshl_b32 s77, s57, 10')

    def issue_stage(st, lazy=False):
        slot = st % 3
        ldf = CFG['LDF0'] if st < CFG['NT_ST'] else CFG['LDF']
        for i in range(12):
            if lazy and i >= 4:
                w_offset(i)
            p(f's_add_u32 m0, s77, {slot*SLOT + i*4096}')
            if i < 4:
                if i == 0:
                    p('s_nop 0')
                p(f'buffer_load_dwordx4 v{VOFF+i}, s[{SRD_X}:{SRD_X+3}], s74 offen {ldf} lds')
            elif i == 4:
                p(f'buffer_load_dwordx4 v{VOFF+i}, s[{SRD_I4}:{SRD_I4+3}], s76 offen {ldf} lds')
            else:
                p(f'buffer_load_dwordx4 v{VOFF+i}, s[{SRD_W}:{SRD_W+3}], s75 offen {ldf} lds')
        p('s_add_u32 s74, s74, 128')
        p(f's_add_u32 s75, s75, {64*rowstride}')
        p('s_add_u32 s76, s76, s73')
        if CFG['ROT']:
            p('s_add_u32 s79, s79, 1')
            p('s_cmp_eq_u32 s79, 10')
            for r in (79, 74, 75, 76):
                p(f's_cselect_b32 s{r}, 0, s{r}')

    stamp(p, 0)
    issue_stage(0, lazy=True)
    issue_stage(1)
    UF = CFG['UNITS_FFN']
    scr_base = SLOT if (UF and not attn) else SCR

    def unit_decode(sfx):
        p('s_and_b32 s64, s62, 7')
        p('s_lshr_b32 s65, s62, 3')
        p('s_lshl_b32 s66, s65, 5')
        p('s_mov_b32 s67, 16')
        p('s_mov_b32 s68, 4')
        p('s_mul_i32 s69, s64, 54')
        p('s_add_u32 s69, s69, s65')
        p('s_mul_i32 s69, s69, 5120')
        p(f's_add_u32 s69, s69, {W2_OFF}')
        p('s_mov_b32 s70, 0')
        p('s_cmp_lt_u32 s65, 54')
        p(f's_cbranch_scc1 L_unit_done_{tag}{sfx}')
        p('s_sub_u32 s65, s65, 54')
        p('s_mov_b32 s70, 1')
        p('s_mul_i32 s69, s64, 20')
        p('s_add_u32 s69, s69, s65')
        p('s_mul_i32 s69, s69, 5120')
        p(f's_add_u32 s69, s69, {WO_OFF}')
        p('s_mul_i32 s66, s65, 40')
        p('s_mov_b32 s67, 20')
        p('s_cmp_lt_u32 s65, 16')
        p(f's_cbranch_scc1 L_unit_done_{tag}{sfx}')
        p('s_sub_u32 s65, s65, 16')
        p('s_mul_i32 s66, s65, 160')
        p('s_add_u32 s66, s66, 16')
        p('s_mov_b32 s67, 80')
        p('s_mov_b32 s68, 20')
        p.label(f'L_unit_done_{tag}{sfx}')
        p('s_mul_i32 s71, s64, 160')
        p('s_movk_i32 s58, 1280')
        for i in range(5):
            p(f'v_add_u32 v3, {64*i}, v{VL}')
            p('v_mul_u32_u24 v4, 6554, v3')
            p('v_lshrrev_b32 v4, 16, v4')
            p('v_mul_u32_u24 v5, 10, v4')
            p('v_sub_u32 v5, v3, v5')
            p('v_lshlrev_b32 v5, 4, v5')
            p('v_add_u32 v5, s71, v5')
            p('v_lshrrev_b32 v3, 4, v4')
            p('v_mul_u32_u24 v3, s67, v3')
            p('v_bfe_u32 v6, v4, 2, 2')
            p('v_mul_u32_u24 v6, s68, v6')
            p('v_and_b32 v4, 3, v4')
            p('v_add3_u32 v3, v3, v6, v4')
            p('v_add_u32 v3, s66, v3')
            p('v_mul_u32_u24 v3, s58, v3')
            p(f'v_add_u32 v{22+i}, v3, v5')

    def unit_srd():
        p('s_cmp_eq_u32 s70, 0')
        p(f's_cselect_b32 s{SRD_A}, s{S_W2}, s{S_WO}')
        p(f's_cselect_b32 s{SRD_A+1}, s{S_W2+1}, s{S_WO+1}')
        p(f's_mov_b32 s{SRD_A+2}, {1728*1280}')
        p(f's_cselect_b32 s{SRD_A+2}, s{SRD_A+2}, {640*1280}')
        p(f's_mov_b32 s{SRD_A+3}, 0x20000')

    do_units = True
    NFU = CFG['NFU']
    always = UF and not attn and NFU == 4
    if UF:
        p(f's_lshl_b32 s62, s{S_RB}, 3')
        p(f's_add_u32 s62, s62, s{S_CG}')
        p('s_lshl_b32 s63, s57, 7')
        p('s_add_u32 s62, s62, s63')
        if not attn:
            p(f's_cmp_lt_u32 s57, {NFU}')
            p('s_cselect_b32 s63, 1, 0')
        else:
            p(f's_add_u32 s62, s62, {128*NFU}')
            p('s_cmp_lt_u32 s62, 592')
            p('s_cselect_b32 s63, 1, 0')
            p('s_cmp_lt_u32 s57, 3')
            p('s_cselect_b32 s63, s63, 0')
    else:
        p('s_lshl_b32 s62, s57, 8')
        p('s_add_u32 s62, s62, s2')
        p('s_cmp_lt_u32 s62, 592')
        p('s_cselect_b32 s63, 1, 0')
        p('s_cmp_lt_u32 s57, 3')
        p('s_cselect_b32 s63, s63, 0')
    if do_units:
        unit_decode('')
        p(f'v_lshrrev_b32 v3, 2, v{VL}')
        p('v_mul_u32_u24 v3, 160, v3')
        p('s_mul_i32 s72, s57, 5120')
        p(f's_add_u32 s72, s72, {scr_base}')
        p('v_add_u32 v3, s72, v3')
        p(f'v_and_b32 v4, 3, v{VL}')
        p('v_lshl_add_u32 v27, v4, 4, v3')
        p('v_lshl_add_u32 v28, v4, 3, v3')
        p(f'v_lshlrev_b32 v29, 4, v{VL}')
        p('v_add_u32 v30, 4096, v29')
    if not attn:
        p(f's_lshl_b32 s58, s{S_RB}, 3')
        p(f's_add_u32 s58, s58, s{S_CG}')
        p('s_lshl_b32 s58, s58, 4')
        p('s_lshl_b32 s59, s57, 2')
        p('s_add_u32 s58, s58, s59')
        p(f'v_lshrrev_b32 v3, 4, v{VL}')
        p('v_add_u32 v31, s58, v3')
        p('s_movk_i32 s58, 1280')
        p('v_mul_u32_u24 v3, s58, v31')
        p(f'v_and_b32 v4, 15, v{VL}')
        p('v_lshlrev_b32 v33, 4, v4')
        p('v_add_u32 v32, v3, v33')
    srd(p, SRD_WS, S_WS, WS_USED)
    if do_units:
        unit_srd()
    GX, GW = 40, 60
    gate = (not attn)
    TG = 10 if gate else 0
    if gate:
        srd(p, SRD_B, S_GW, 1280)

    def unit_loads():
        for i in range(5):
            p(f's_add_u32 m0, s72, {i*1024}')
            p('s_nop 0')
            p(f'buffer_load_dwordx4 v{22+i}, s[{SRD_A}:{SRD_A+3}], 0 offen {CFG["ULDF"]} lds')

    def unit_finish():
        for f in range(5):
            a, off = (27, [0, 8, 64, 72][f]) if f < 4 else (28, 128)
            p(f'ds_read_b64_tr_b16 v[{84+4*f}:{85+4*f}], v{a} offset:{off}')
            p(f'ds_read_b64_tr_b16 v[{86+4*f}:{87+4*f}], v{a} offset:{off+2560}')
        for f in range(5):
            p(f's_waitcnt lgkmcnt({8-2*f})')
            if f < 4:
                p(f'buffer_store_dwordx4 v[{84+4*f}:{87+4*f}], v29, s[{SRD_WS}:{SRD_WS+3}], s69 offen offset:{1024*f} {CFG["STF"]}')
            else:
                p(f'buffer_store_dwordx4 v[{84+4*f}:{87+4*f}], v30, s[{SRD_WS}:{SRD_WS+3}], s69 offen {CFG["STF"]}')

    def tail_loads():
        if not do_units:
            return
        if always:
            unit_loads()
        else:
            p('s_cmp_eq_u32 s63, 0')
            p(f's_cbranch_scc1 L_nounit_ld_{tag}')
            unit_loads()
            p.label(f'L_nounit_ld_{tag}')
        if gate:
            for j in range(5):
                p(f'buffer_load_dwordx4 v[{GX+4*j}:{GX+4*j+3}], v32, s[{SRD_X}:{SRD_X+3}], 0 offen offset:{256*j}')
                p(f'buffer_load_dwordx4 v[{GW+4*j}:{GW+4*j+3}], v33, s[{SRD_B}:{SRD_B+3}], 0 offen offset:{256*j}')

    def wait_vm(n_nounit, n_unit, uid):
        if always:
            n_nounit = n_unit
        if n_nounit == n_unit:
            p(f's_waitcnt vmcnt({n_unit})')
            return
        p('s_cmp_eq_u32 s63, 0')
        p(f's_cbranch_scc1 L_w{uid}a_{tag}')
        p(f's_waitcnt vmcnt({n_unit})')
        p(f's_branch L_w{uid}b_{tag}')
        p.label(f'L_w{uid}a_{tag}')
        p(f's_waitcnt vmcnt({n_nounit})')
        p.label(f'L_w{uid}b_{tag}')

    if CFG['TEARLY']:
        tail_loads()
        wait_vm(12 + TG, 12 + TG + 5, 'i')
    else:
        p('s_waitcnt vmcnt(12)')
    stamp(p, 1)
    p('s_barrier')
    issue_stage(2)
    for j in range(9):
        if CFG['TEARLY']:
            if j == 0:
                wait_vm(12 + TG, 12 + TG + 5, j)
            else:
                p('s_waitcnt vmcnt(%d)' % (12 if j <= 7 else 0))
        elif j <= 7:
            p('s_waitcnt vmcnt(12)')
        else:
            wait_vm(TG, TG + 5, j)
        p('s_barrier')
        if j + 3 <= 9 and not CFG['NOLOAD']:
            issue_stage(j + 3)
        if j == 7 and not CFG['TEARLY']:
            tail_loads()
        if j == 3 and CFG['TEARLY'] and gate:
            gate_job(p, GX, GW, store=False)
    stamp(p, 2)
    if CFG['K2PF']:
        p('s_cmp_eq_u32 s57, 3')
        p(f's_cbranch_scc0 L_nok2pf_{tag}')
        p(f'v_mov_b32 v34, v{VL}')
        code_prefetch(p, 'gm_k2_kernel', 'L_k2_end', 12288, 34, 255, 84, 'k2pf' + tag)
        p.label(f'L_nok2pf_{tag}')
    if do_units:
        p('s_waitcnt vmcnt(0)')
        if always:
            unit_finish()
        else:
            p('s_cmp_eq_u32 s63, 0')
            p(f's_cbranch_scc1 L_nounit_{tag}')
            unit_finish()
            p.label(f'L_nounit_{tag}')
    if gate:
        if CFG['TEARLY']:
            gate_store(p)
        else:
            gate_job(p, GX, GW)
    stamp(p, 3)
    if CFG['PROF']:
        prof_store(p, 4, 'LD' + tag, SRD_WS)
    p('s_endpgm')


def prof_store(p, n, tag, srdws, sbase=90):
    p('s_memtime s[80:81]')
    p('s_memrealtime s[78:79]')
    p('s_waitcnt lgkmcnt(0) vmcnt(0)')
    p('s_sub_u32 s80, s80, s82')
    p('s_sub_u32 s78, s78, s88')
    p(f's_mov_b32 s{srdws+2}, 0x10000000')
    p(f's_lshl_b32 s86, s2, 3')
    p(f's_add_u32 s86, s86, s{S_WAVE}')
    p(f's_lshl_b32 s86, s86, 6')
    p(f's_add_u32 s86, s86, {PROF_OFF + (0 if not tag.startswith("K2") else (1 << 20))}')
    if CFG['PROF'] == 3:
        p(f's_lshl_b32 s85, s2, 3')
        p(f's_add_u32 s85, s85, s{S_WAVE}')
        p(f's_lshl_b32 s85, s85, 8')
        p(f's_add_u32 s85, s85, {PROF_OFF + (2 << 20)}')
        p('v_mbcnt_lo_u32_b32 v0, -1, 0')
        p('v_mbcnt_hi_u32_b32 v0, -1, v0')
        p('v_lshlrev_b32 v0, 2, v0')
        if not tag.startswith('K2'):
            p(f'buffer_store_dword v254, v0, s[{srdws}:{srdws+3}], s85 offen')
    p('v_mov_b32 v1, 0')
    p('v_mov_b32 v0, s88')
    p(f'buffer_store_dword v0, v1, s[{srdws}:{srdws+3}], s86 offen offset:60')
    p('v_mov_b32 v0, s80')
    p(f'buffer_store_dword v0, v1, s[{srdws}:{srdws+3}], s86 offen offset:56')
    p('v_mov_b32 v0, s78')
    p(f'buffer_store_dword v0, v1, s[{srdws}:{srdws+3}], s86 offen offset:52')
    for i in range(n):
        p(f'v_mov_b32 v0, s{sbase+2*i}')
        p(f'buffer_store_dword v0, v1, s[{srdws}:{srdws+3}], s86 offen offset:{4*i}')
    p('s_waitcnt vmcnt(0)')


def gate_store(p):
    p(f'buffer_store_dwordx2 v[38:39], v37, s[{SRD_WS}:{SRD_WS+3}], 0 offen {CFG["STF"]}')


def gate_job(p, GX, GW, store=True):
    T = 104
    p('v_mov_b32 v34, 0')
    p('v_mov_b32 v35, 0')
    p('v_mov_b32 v36, 0x3f803f80')
    p('s_mov_b32 s78, 0xffff0000')
    for d in range(20):
        x, w = GX + d, GW + d
        t = T + 6 * (d & 1)
        p(f'v_lshlrev_b32 v{t}, 16, v{x}')
        p(f'v_and_b32 v{t+1}, s78, v{x}')
        p(f'v_lshlrev_b32 v{t+2}, 16, v{w}')
        p(f'v_and_b32 v{t+3}, s78, v{w}')
        p(f'v_pk_mul_f32 v[{t}:{t+1}], v[{t}:{t+1}], v[{t+2}:{t+3}]')
        p(f'v_cvt_pk_bf16_f32 v{t+4}, v{t}, v{t+1}')
        acc = 34 + (d & 1)
        p(f'v_dot2_f32_bf16 v{acc}, v{t+4}, v36, v{acc}')
    p('v_add_f32 v34, v34, v35')
    for sh in (8, 4, 2, 1):
        p(f'v_add_f32_dpp v34, v34, v34 row_ror:{sh} row_mask:0xf bank_mask:0xf')
    p('v_cvt_pk_bf16_f32 v35, v34, v34')
    p('v_lshlrev_b32 v35, 16, v35')
    p(f'v_mul_f32 v35, {hexf(-math.log2(math.e))}, v35')
    p('v_exp_f32 v35, v35')
    p('v_add_f32 v35, 1.0, v35')
    p('v_rcp_f32 v35, v35')
    p('v_cvt_pk_bf16_f32 v35, v35, v35')
    p('v_lshlrev_b32 v38, 16, v35')
    p('v_sub_f32 v39, 1.0, v38')
    p('v_cvt_pk_bf16_f32 v39, v39, v39')
    p('v_lshlrev_b32 v39, 16, v39')
    p('v_lshlrev_b32 v37, 3, v31')
    p(f'v_add_u32 v37, {G_OFF}, v37')
    if store:
        gate_store(p)


A_QM = lambda h, t: 0 + (h * 4 + t) * 4
A_KM = lambda h, kt: 32 + (h * 5 + kt) * 4
A_QKT = lambda kt: 72 + 4 * kt
A_VM = lambda h, kt: 92 + (h * 5 + kt) * 4
A_VT = lambda kt: 132 + 4 * kt
WF = lambda f: 152 + 4 * f
XF = lambda b, t: 184 + 20 * b + 4 * t
V_X0, V_X1, V_W, V_WA, V_WB = 224, 225, 226, 227, 228
V_BPREV, V_BCUR, V_BFIRST, V_SEL = 232, 236, 240, 244
F_ACC = lambda f, t: (f * 4 + t) * 4


class LgkmTracker:
    def __init__(self, p):
        self.p = p
        self.q = []

    def issue(self, tag):
        self.q.append(tag)

    def need(self, tags):
        idx = -1
        for i, t in enumerate(self.q):
            if t in tags:
                idx = i
        if idx < 0:
            return
        n = len(self.q) - 1 - idx
        self.p(f's_waitcnt lgkmcnt({min(n, 15)})')
        keep = min(n, 15)
        self.q = self.q[len(self.q) - keep:] if keep else []

    def drain(self):
        self.p('s_waitcnt lgkmcnt(0)')
        self.q = []


def consumer_loop(p, attn, th=None):
    tag = ('A' if attn else 'F') + ('' if th is None else str(th))
    NT = 5 if attn else 4
    xoff = lambda t: 2048 * t
    if attn:
        kk = range(5) if th in (None, 0) else range(1, 5)
        vk = range(5) if th in (None, 1) else range(1, 5)
        if th == 1:
            xoff = lambda t: 0 if t == 0 else 8192 + 2048 * t
        tiles = []
        for h in range(2):
            tiles.append([(A_QM(h, t), t + 1, 'F') for t in range(4)])
        for h in range(2):
            tiles.append([(A_KM(h, k), k, 'F') for k in kk])
        tiles.append([(A_QKT(k), k, 'F') for k in kk])
        for h in range(2):
            tiles.append([(A_VM(h, k), k, 'T') for k in vk])
        tiles.append([(A_VT(k), k, 'T') for k in vk])
        waddr = [(V_W, 0), (V_W, 40), (V_W, 160), (V_W, 200), (V_WA, 0), (V_W, 320), (V_W, 360), (V_WB, 0)]
    else:
        tiles = [[(F_ACC(f, t), t, 'F') for t in range(4)] for f in range(7)]
        waddr = [(V_W, 32 * f) for f in range(6)] + [(V_WA, 0)]
    NF = len(tiles)

    lg = LgkmTracker(p)

    def rd_w(f, s):
        if CFG['NODS']:
            return
        a, off = waddr[f]
        off += s * 32 * WROW
        p(f'ds_read_b64_tr_b16 v[{WF(f)}:{WF(f)+1}], v{a} offset:{off}')
        lg.issue(('w', f))
        p(f'ds_read_b64_tr_b16 v[{WF(f)+2}:{WF(f)+3}], v{a} offset:{off + 8*WROW}')
        lg.issue(('w', f))

    def rd_x(t, s):
        if CFG['NODS']:
            return
        p(f'ds_read_b128 v[{XF(s,t)}:{XF(s,t)+3}], v{V_X1 if s else V_X0} offset:{2048*t}')
        lg.issue(('x', s, t))

    LAST = NF - 1

    def wreads(f, s):
        a, off = waddr[f]
        off += s * 32 * WROW
        return [(f'ds_read_b64_tr_b16 v[{WF(f)}:{WF(f)+1}], v{a} offset:{off}', ('w', f)),
                (f'ds_read_b64_tr_b16 v[{WF(f)+2}:{WF(f)+3}], v{a} offset:{off + 8*WROW}', ('w', f))]

    def xread(t, s):
        return (f'ds_read_b128 v[{XF(s,t)}:{XF(s,t)+3}], v{V_X1 if s else V_X0} offset:{xoff(t)}', ('x', s, t))

    def emit(item):
        if CFG['NODS']:
            return
        p(item[0])
        lg.issue(item[1])

    order_log = []

    def packing():
        cv = lambda d, a: f'v_cvt_pk_bf16_f32 v{d}, v{a}, v{a+1}'
        out = []
        for h in range(2):
            for t in range(4):
                b = A_QM(h, t)
                out += [(h, cv(b, b)), (h, cv(b + 1, b + 2))]
        for h in range(2):
            for kt in kk:
                b = A_KM(h, kt)
                out += [(2 + h, cv(b, b)), (2 + h, cv(b + 1, b + 2))]
        for kt in kk:
            t = A_QKT(kt)
            out += [(4, cv(t, t)), (4, cv(t + 1, t + 2))]
        for kt in kk:
            t, k0 = A_QKT(kt), A_KM(0, kt)
            out += [(4, f'v_mov_b32 v{k0+2}, v{t}'), (4, f'v_mov_b32 v{k0+3}, v{t+1}')]
        return out

    def step(s, dry=False, last=False):
        nxt = 1 - s
        q = wreads(LAST, s)
        xq = [xread(t, nxt) for t in range(NT)]
        held = []
        upd = [V_W, V_X0, V_X1, V_WA] + ([V_WB] if attn else [])
        pk = []
        if last:
            xq, upd = [], []
            pk = packing() if attn else []
        for f in range(NF):
            if not dry:
                lg.need({('w', f)} | ({('x', s, t) for t in range(NT)} if f == 0 else set()))
            for n, (acc, t, o) in enumerate(tiles[f]):
                w, x = f'v[{WF(f)}:{WF(f)+3}]', f'v[{XF(s,t)}:{XF(s,t)+3}]'
                a, b = (w, x) if o == 'F' else (x, w)
                if not CFG['NOMFMA'] and not dry:
                    p(f'v_mfma_f32_16x16x32_bf16 v[{acc}:{acc+3}], {a}, {b}, v[{acc}:{acc+3}]')
                item = None
                if q:
                    item = q.pop(0)
                elif xq and (s == 0 or f >= 2):
                    item = xq.pop(0)
                if item is not None:
                    if dry:
                        order_log.append(item)
                    else:
                        emit(item)
                if not dry and s == 0 and f == LAST and n == 1:
                    p(f's_add_u32 s53, s53, {SLOT}')
                    p(f's_cmp_eq_u32 s53, {3*SLOT}')
                if not dry and s == 0 and f == LAST and n == 2:
                    p(f's_cselect_b32 s54, s51, {SLOT}')
                    p('s_cselect_b32 s53, 0, s53')
                if not dry and s == 1 and item is None and upd and (f, n) >= (0, 2):
                    p(f'v_add_u32 v{upd[0]}, s54, v{upd[0]}')
                    upd.pop(0)
                for _ in range(2):
                    if pk and pk[0][0] + 2 <= f:
                        p(pk.pop(0)[1])
            if f < LAST and not last:
                rs = wreads(f, nxt)
                if s == 1 and f < 1:
                    held += rs
                elif s == 1 and f == 1:
                    assert not q
                    if not dry:
                        assert not upd
                        if CFG['PROF'] == 3:
                            p('s_memtime s[70:71]')
                        lg.drain()
                        if CFG['PROF'] == 3:
                            p('s_lshl_b32 m0, s52, 1')
                            p('s_nop 3')
                            p('v_writelane_b32 v254, s70, m0')
                            p('s_add_u32 s74, m0, 63')
                            p('s_and_b32 m0, s74, 63')
                            p('s_nop 3')
                            p('v_writelane_b32 v254, s72, m0')
                        if CFG['PEEL']:
                            p('s_barrier')
                        else:
                            p('s_cmp_eq_u32 s52, 9')
                            p(f's_cbranch_scc1 L_nobar_{tag}')
                            p('s_barrier')
                            p.label(f'L_nobar_{tag}')
                        if CFG['PROF'] == 3:
                            p('s_memtime s[72:73]')
                    q += held + rs
                    held = []
                else:
                    q += rs
        assert not q and not xq, (q, xq)
        for _, ins in pk:
            p(ins)

    step(1, dry=True)
    for item in order_log[2:]:
        emit(item)
    p('s_mov_b32 s52, 0')
    p('s_mov_b32 s53, 0')
    p(f's_mov_b32 s51, {(-2*SLOT) & 0xffffffff}')
    p.label(f'L_loop_{tag}')
    q_head = list(lg.q)
    step(0)
    step(1)
    q_end = list(lg.q)
    assert q_end == q_head, (q_end, q_head)
    p('s_add_u32 s52, s52, 1')
    p(f's_cmp_lt_u32 s52, {9 if CFG["PEEL"] else 10}')
    p(f's_cbranch_scc1 L_loop_{tag}')
    if CFG['PEEL']:
        step(0)
        step(1, last=True)
    lg.drain()


def check_loop_waits():
    pass


def tlb_touch(p, tag):
    if not CFG['TT']:
        return
    p(f's_cmp_eq_u32 s{S_WAVE}, 1')
    p(f's_cbranch_scc0 L_tt1{tag}')
    for i in range(7):
        p(f's_mov_b32 s70, {i << 21}')
        p(f's_load_dword s{71+i}, s[{S_WS}:{S_WS+1}], s70')
    p.label(f'L_tt1{tag}')
    p(f's_cmp_eq_u32 s{S_WAVE}, 2')
    p(f's_cbranch_scc0 L_tt2{tag}')
    p(f's_load_dword s71, s[{S_WO}:{S_WO+1}], 0')
    p(f's_load_dword s72, s[{S_W2}:{S_W2+1}], 0')
    p(f's_mov_b32 s70, {(1 << 21) + 4096}')
    p(f's_load_dword s73, s[{S_W2}:{S_W2+1}], s70')
    p(f's_load_dword s74, s[{S_GW}:{S_GW+1}], 0')
    p(f's_load_dword s75, s[{S_B2}:{S_B2+1}], 0')
    p('s_load_dword s76, s[100:101], 0')
    p('s_load_dword s77, s[100:101], s70')
    p.label(f'L_tt2{tag}')


def prefetch_setup(p, attn):
    rowstride = 3840 if attn else 3456
    p(f's_lshl_b32 s57, s{S_WAVE}, 6')
    p('v_add_u32 v9, s57, v2')
    p(f's_and_b32 s57, s{S_RB}, 7')
    p('s_lshl_b32 s57, s57, 3')
    p('s_add_u32 s57, s57, 128')
    p(f's_mov_b32 s58, {rowstride}')
    if attn:
        p(f's_mul_i32 s59, s{S_CG}, 160')
        p('s_andn2_b32 s59, s59, 127')
        for rnd in range(2):
            p(f'v_add_u32 v3, {256*rnd}, v9')
            p('v_min_u32 v3, 383, v3')
            p('v_mul_u32_u24 v4, 1366, v3')
            p('v_lshrrev_b32 v4, 16, v4')
            p('v_mul_u32_u24 v5, 48, v4')
            p('v_sub_u32 v5, v3, v5')
            p('v_mul_u32_u24 v6, 43, v5')
            p('v_lshrrev_b32 v6, 8, v6')
            p('v_mul_u32_u24 v7, 6, v6')
            p('v_sub_u32 v7, v5, v7')
            p('v_lshl_add_u32 v4, v4, 6, v6')
            p('v_add_u32 v4, s57, v4')
            p('v_mul_u32_u24 v4, s58, v4')
            p('v_lshrrev_b32 v5, 1, v7')
            p('v_mul_u32_u24 v5, 1280, v5')
            p('v_and_b32 v7, 1, v7')
            p('v_lshl_add_u32 v5, v7, 7, v5')
            p(f'v_add3_u32 v{249+rnd}, v4, v5, s59')
    else:
        p(f's_mul_i32 s59, s{S_CG}, 448')
        p('s_andn2_b32 s59, s59, 127')
        p('v_lshrrev_b32 v4, 5, v9')
        p('v_bfe_u32 v6, v9, 2, 3')
        p('v_lshl_add_u32 v4, v4, 6, v6')
        p('v_add_u32 v4, s57, v4')
        p('v_mul_u32_u24 v4, s58, v4')
        p('v_and_b32 v7, 3, v9')
        p('v_lshlrev_b32 v7, 7, v7')
        p('v_add3_u32 v249, v4, v7, s59')
    p(f's_and_b32 s57, s{S_CG}, 1')
    p(f's_lshl_b32 s58, s{S_TYPE}, 1')
    p('s_add_u32 s57, s57, s58')
    p('s_lshl_b32 s57, s57, 5')
    p(f's_lshl_b32 s58, s{S_RB}, 7')
    p('s_add_u32 s57, s57, s58')
    p('v_and_b32 v4, 31, v9')
    p('v_add_u32 v4, s57, v4')
    p('v_mul_u32_u24 v4, 1280, v4')
    p('v_lshrrev_b32 v5, 5, v9')
    p('v_lshlrev_b32 v5, 7, v5')
    p('v_add3_u32 v251, v4, v5, 256' .replace(', 256', ', s99'))


def prefetch_issue(p, attn):
    if not CFG['PF']:
        return
    p(f'buffer_load_dword v255, v251, s[{SRD_X}:{SRD_X+3}], 0 offen {CFG["PFF"]}')
    p(f'buffer_load_dword v255, v249, s[{SRD_W}:{SRD_W+3}], 0 offen {CFG["PFF"]}')
    if attn:
        p(f'buffer_load_dword v255, v250, s[{SRD_W}:{SRD_W+3}], 0 offen {CFG["PFF"]}')


def attn_prologue(p):
    p(f's_and_b32 s55, s{S_WAVE}, 1')
    p(f's_lshr_b32 s56, s{S_WAVE}, 1')
    p('v_and_b32 v3, 15, v2')
    p('v_lshrrev_b32 v4, 4, v2')
    p('v_lshrrev_b32 v5, 1, v3')
    p('v_xor_b32 v5, v5, v4')
    p('v_lshlrev_b32 v5, 4, v5')
    p('v_lshl_add_u32 v5, v3, 7, v5')
    if CFG['M35']:
        p(f'v_mov_b32 v{V_X0}, v5')
    else:
        p('s_lshl_b32 s57, s56, 13')
        p(f'v_add_u32 v{V_X0}, s57, v5')
    p(f'v_xor_b32 v{V_X1}, 64, v{V_X0}')
    p('v_lshrrev_b32 v5, 5, v2')
    p('v_lshlrev_b32 v5, 4, v5')
    p('v_bfe_u32 v6, v2, 4, 1')
    p('v_lshl_add_u32 v5, v6, 2, v5')
    p('v_bfe_u32 v6, v2, 2, 2')
    p('v_add_u32 v5, v5, v6')
    p(f'v_mul_u32_u24 v5, {WROW}, v5')
    p('s_mul_i32 s57, s55, 80')
    p(f's_add_u32 s57, s57, {XREG}')
    p('v_add_u32 v5, s57, v5')
    p('v_and_b32 v6, 3, v2')
    p(f'v_lshl_add_u32 v{V_W}, v6, 3, v5')
    p('v_and_b32 v7, 1, v6')
    p('v_mul_u32_u24 v7, 40, v7')
    p('v_add_u32 v7, v7, v5')
    p('v_lshrrev_b32 v6, 1, v6')
    p('v_mul_u32_u24 v6, 160, v6')
    p(f'v_add3_u32 v{V_WA}, v7, v6, 32')
    p(f'v_add_u32 v{V_WB}, 352, v7')
    p('v_lshlrev_b32 v5, 2, v4')
    p('v_sub_u32 v5, v3, v5')
    p(f's_mov_b32 s58, {hexf(-1e30)}')
    p('v_mov_b32 v8, s58')
    p(f's_or_b32 s59, s{S_RB}, s56')
    p('s_cmp_eq_u32 s59, 0')
    p('s_cselect_b64 s[60:61], -1, 0')
    for r in range(4):
        p(f'v_subrev_u32 v6, {r}, v5')
        p('v_and_b32 v7, 1, v6')
        p('v_cmp_eq_u32 s[62:63], 0, v7')
        p('v_cmp_ge_i32 s[64:65], v6, 0')
        p('s_and_b64 s[66:67], s[62:63], s[64:65]')
        p('s_andn2_b64 s[68:69], s[62:63], s[64:65]')
        p(f'v_cndmask_b32 v{V_BCUR+r}, v8, 0, s[66:67]')
        p(f'v_cndmask_b32 v{V_BPREV+r}, v8, 0, s[68:69]')
        p(f'v_cndmask_b32 v{V_BFIRST+r}, v{V_BPREV+r}, v8, s[60:61]')
    p('v_and_b32 v7, 1, v3')
    p('v_cmp_eq_u32 s[62:63], 0, v7')
    for k, (lo, hi) in enumerate([(0x0c0c0100, 0x01000c0c), (0x0c0c0302, 0x03020c0c)]):
        p(f'v_mov_b32 v6, {hex(hi)}')
        p(f'v_mov_b32 v9, {hex(lo)}')
        p('v_cndmask_b32 v9, v6, v9, s[62:63]')
        p('v_sub_u32 v6, v5, v7')
        if k:
            p('v_subrev_u32 v6, 2, v6')
        p('v_cmp_ge_i32 s[64:65], v6, 0')
        p('v_mov_b32 v6, 0x0c0c0c0c')
        p(f'v_cndmask_b32 v{V_SEL+k}, v9, v6, s[64:65]')
        p(f'v_cndmask_b32 v{V_SEL+2+k}, v6, v9, s[64:65]')
    p('v_lshlrev_b32 v248, 4, v2')
    if CFG['M35']:
        p('s_lshl_b32 s57, s55, 13')
        p(f's_add_u32 s57, s57, {2*SLOT}')
        p('v_add_u32 v249, s57, v248')
        p('v_lshrrev_b32 v250, 1, v248')
        p('v_add_u32 v250, s57, v250')
        p('s_lshl_b32 s57, s55, 3')
        p(f's_add_u32 s57, s57, {XFLAG}')
        p('v_mov_b32 v251, s57')
        p('v_mov_b32 v252, 0')
        p('v_mov_b32 v253, 0')
        p('ds_write_b64 v251, v[252:253]')
    for r in range(152):
        p(f'v_mov_b32 v{r}, 0')


def attn_epilogue(p, th=None):
    cvt = lambda d, a: p(f'v_cvt_pk_bf16_f32 v{d}, v{a}, v{a+1}')
    tg = '' if th is None else str(th)
    kk = list(range(5)) if th in (None, 0) else [1, 2, 3, 4]
    vk = list(range(5)) if th in (None, 1) else [1, 2, 3, 4]
    p('s_nop 7')

    def pack_k(kts):
        if CFG['PEEL']:
            return
        for kt in kts:
            for h in range(2):
                b = A_KM(h, kt)
                cvt(b, b)
                cvt(b + 1, b + 2)
            t = A_QKT(kt)
            cvt(t, t)
            cvt(t + 1, t + 2)
        for kt in kts:
            t, k0 = A_QKT(kt), A_KM(0, kt)
            p(f'v_mov_b32 v{k0+2}, v{t}')
            p(f'v_mov_b32 v{k0+3}, v{t+1}')

    def tails_k(kts):
        for kt in kts:
            t, k0 = A_QKT(kt), A_KM(0, kt)
            p(f'v_permlane32_swap_b32 v{t}, v{k0+2}')
            p(f'v_permlane32_swap_b32 v{t+1}, v{k0+3}')

    def copy_k(kts):
        for kt in kts:
            k0, k1 = A_KM(0, kt), A_KM(1, kt)
            p(f'v_mov_b32 v{k1+2}, v{k0+2}')
            p(f'v_mov_b32 v{k1+3}, v{k0+3}')

    def pack_v():
        for kt in vk:
            for base, b in ((A_VM(0, 0), A_VM(0, kt)), (A_VM(1, 0), A_VM(1, kt)), (A_VT(0), A_VT(kt))):
                cvt(base + 2 * kt, b)
                cvt(base + 2 * kt + 1, b + 2)

    vbases = (A_VM(0, 0), A_VM(1, 0), A_VT(0))
    if th == 0:
        pack_k([4])
        pack_v()
        tails_k([4])
        rest = [0, 1, 2, 3]
        pack_k(rest[:1])
        copy_k([4])
        p(f'ds_write_b128 v249, v[{A_KM(0,4)}:{A_KM(0,4)+3}]')
        p(f'ds_write_b128 v249, v[{A_KM(1,4)}:{A_KM(1,4)+3}] offset:1024')
        for i, vb in enumerate(vbases):
            p(f'ds_write_b64 v250, v[{vb+8}:{vb+9}] offset:{2048 + 512*i}')
        pack_k(rest[1:])
        p('s_waitcnt lgkmcnt(0)')
        p('v_mov_b32 v252, 1')
        p('ds_write_b32 v251, v252')
        tails_k(rest)
    elif th == 1:
        pack_v()
        for i, vb in enumerate(vbases):
            p(f'ds_write_b64 v250, v[{vb}:{vb+1}] offset:{4096 + 512*i}')
        rest = [1, 2, 3, 4]
        pack_k(rest)
        p('s_waitcnt lgkmcnt(0)')
        p('v_mov_b32 v252, 1')
        p('ds_write_b32 v251, v252 offset:4')
        tails_k(rest)
    else:
        rest = [0, 1, 2, 3, 4]
        pack_k(rest)
        pack_v()
        tails_k(rest)
    for h in range(2):
        for t in range(4):
            b = A_QM(h, t)
            if not CFG['PEEL']:
                cvt(b, b)
                cvt(b + 1, b + 2)
    copy_k(rest)
    p('s_mov_b32 s60, 0x0000ffff')
    p('s_mov_b32 s61, 0')
    p('s_mov_b32 s62, 0xffff0000')
    p('s_mov_b32 s63, 0')
    for t in range(4):
        for h in range(2):
            q, x = A_QM(h, t), A_QKT(t + 1)
            p(f'v_cndmask_b32 v{q+2}, 0, v{x}, s[{60+2*h}:{61+2*h}]')
            p(f'v_cndmask_b32 v{q+3}, 0, v{x+1}, s[{60+2*h}:{61+2*h}]')
    S = lambda t, h: 152 + (t * 2 + h) * 8

    def qk(t):
        for h in range(2):
            q = A_QM(h, t)
            bp = V_BFIRST if t == 0 else V_BPREV
            kp, kc = A_KM(h, t), A_KM(h, t + 1)
            p(f'v_mfma_f32_16x16x32_bf16 v[{S(t,h)}:{S(t,h)+3}], v[{kp}:{kp+3}], v[{q}:{q+3}], v[{bp}:{bp+3}]')
            p(f'v_mfma_f32_16x16x32_bf16 v[{S(t,h)+4}:{S(t,h)+7}], v[{kc}:{kc+3}], v[{q}:{q+3}], v[{V_BCUR}:{V_BCUR+3}]')

    for t in (3, 2, 1):
        qk(t)
    if th is not None:
        p.label(f'L_xspin{th}')
        p(f'ds_read_b32 v252, v251 offset:{4 if th == 0 else 0}')
        p('s_waitcnt lgkmcnt(0)')
        p('v_readfirstlane_b32 s70, v252')
        p('s_cmp_eq_u32 s70, 0')
        p(f's_cbranch_scc1 L_xspin{th}')
        if th == 1:
            p(f'ds_read_b128 v[{A_KM(0,0)}:{A_KM(0,0)+3}], v249')
            p(f'ds_read_b128 v[{A_KM(1,0)}:{A_KM(1,0)+3}], v249 offset:1024')
        for i, vb in enumerate(vbases):
            p(f'ds_read_b64 v[{vb}:{vb+1}], v250 offset:{(2048 if th == 1 else 4096) + 512*i}')
        p('s_waitcnt lgkmcnt(0)')
    qk(0)
    cs = (20 ** -0.5) * math.log2(math.e)
    p(f's_mov_b32 s64, {hexf(cs)}')
    inst = [(t, h) for t in range(4) for h in range(2)]
    for (t, h) in inst:
        s = S(t, h)
        p(f'v_max3_f32 v{s}, v{s}, v{s+1}, v{s+4}')
        p(f'v_max3_f32 v{s+2}, v{s+2}, v{s+3}, v{s+6}')
    for (t, h) in inst:
        s = S(t, h)
        p(f'v_max_f32 v{s}, v{s}, v{s+5}')
        p(f'v_max_f32 v{s+1}, v{s+2}, v{s+7}')
    for (t, h) in inst:
        s = S(t, h)
        p(f'v_max_f32 v{s+2}, v{s}, v{s+1}')

    def cross(groups, op, mid):
        for (A, B, C, D) in groups:
            p(f'v_permlane32_swap_b32 v{A}, v{B}')
            p(f'v_permlane32_swap_b32 v{C}, v{D}')
        for (A, B, C, D) in groups:
            p(f'{op} v{A}, v{A}, v{B}')
            p(f'{op} v{C}, v{C}, v{D}')
        for (A, B, C, D) in groups:
            p(f'v_permlane16_swap_b32 v{A}, v{C}')
        for (A, B, C, D) in groups:
            p(f'{op} v{A}, v{A}, v{C}')
        for (A, B, C, D) in groups:
            mid(A)
        for (A, B, C, D) in groups:
            p(f'v_mov_b32 v{C}, v{A}')
        for (A, B, C, D) in groups:
            p(f'v_permlane16_swap_b32 v{A}, v{C}')
        for (A, B, C, D) in groups:
            p(f'v_mov_b32 v{B}, v{A}')
            p(f'v_mov_b32 v{D}, v{C}')
        for (A, B, C, D) in groups:
            p(f'v_permlane32_swap_b32 v{A}, v{B}')
            p(f'v_permlane32_swap_b32 v{C}, v{D}')

    grp = lambda o: [tuple(S(t, h) + o for (t, h) in inst[0:4]), tuple(S(t, h) + o for (t, h) in inst[4:8])]
    cross(grp(2), 'v_max_f32', lambda A: p(f'v_mul_f32 v{A}, s64, v{A}'))
    for (t, h) in inst:
        s = S(t, h)
        p(f'v_fma_f32 v{s}, v{s}, s64, -v{s+2}')
        p(f'v_fma_f32 v{s+1}, v{s+1}, s64, -v{s+2}')
    for (t, h) in inst:
        s = S(t, h)
        p(f'v_exp_f32 v{s}, v{s}')
        p(f'v_exp_f32 v{s+1}, v{s+1}')
    for (t, h) in inst:
        s = S(t, h)
        p(f'v_add_f32 v{s+2}, v{s}, v{s+1}')
    cross(grp(2), 'v_add_f32', lambda A: p(f'v_rcp_f32 v{A}, v{A}'))
    for (t, h) in inst:
        s = S(t, h)
        p(f'v_mul_f32 v{s}, v{s}, v{s+2}')
        p(f'v_mul_f32 v{s+1}, v{s+1}, v{s+2}')
    for (t, h) in inst:
        s = S(t, h)
        p(f'v_cvt_pk_bf16_f32 v{s+2}, v{s}, v{s+1}')
    for (t, h) in inst:
        s = S(t, h)
        p(f'v_perm_b32 v{s+4}, v{s+2}, v{s+2}, v{V_SEL}')
        p(f'v_perm_b32 v{s+5}, v{s+2}, v{s+2}, v{V_SEL+1}')
        p(f'v_perm_b32 v{s+6}, v{s+2}, v{s+2}, v{V_SEL+2}')
        p(f'v_perm_b32 v{s+7}, v{s+2}, v{s+2}, v{V_SEL+3}')
    for (t, h) in inst:
        s = S(t, h)
        va = A_VM(h, 0) + 2 * t
        vt = A_VT(0) + 2 * t
        om, ot = A_QM(h, t), A_KM(h, t)
        p(f'v_mfma_f32_16x16x32_bf16 v[{om}:{om+3}], v[{va}:{va+3}], v[{s+4}:{s+7}], 0')
        p(f'v_mfma_f32_16x16x32_bf16 v[{ot}:{ot+3}], v[{vt}:{vt+3}], v[{s+4}:{s+7}], 0')
    p(f's_lshl_b32 s65, s{S_RB}, 3')
    p('s_lshl_b32 s66, s56, 2')
    p('s_add_u32 s65, s65, s66')
    p('s_mul_i32 s66, s65, 20')
    p(f's_lshl_b32 s67, s{S_CG}, 1')
    p('s_add_u32 s67, s67, s55')
    p('s_add_u32 s66, s66, s67')
    p('s_lshl_b32 s66, s66, 10')
    p(f's_add_u32 s66, s66, {OA_OFF}')
    p(f's_and_b32 s67, s{S_CG}, 1')
    p('s_lshl_b32 s67, s67, 1')
    p('s_add_u32 s67, s67, s65')
    p('s_mul_i32 s67, s67, 20')
    p(f's_lshr_b32 s68, s{S_CG}, 1')
    p('s_add_u32 s67, s67, s68')
    p('s_add_u32 s67, s67, 16')
    p('s_lshl_b32 s67, s67, 10')
    p('s_lshl_b32 s68, s55, 9')
    p('s_add_u32 s67, s67, s68')
    p(f's_add_u32 s67, s67, {OA_OFF}')
    for t in range(4):
        for h in range(2):
            o = A_QM(h, t)
            d = S(t, 0) + 2 * h
            p(f'v_cvt_pk_bf16_f32 v{d}, v{o}, v{o+1}')
            p(f'v_cvt_pk_bf16_f32 v{d+1}, v{o+2}, v{o+3}')
        d = S(t, 0)
        p(f'buffer_store_dwordx4 v[{d}:{d+3}], v248, s[{SRD_WS}:{SRD_WS+3}], s66 offen {CFG["STF"]}')
        p('s_add_u32 s66, s66, 20480')
    for pr in range(2):
        d = S(2 * pr, 1)
        for u in range(2):
            t = 2 * pr + u
            o0, o1 = A_KM(0, t), A_KM(1, t)
            for rr in range(4):
                p(f'v_cndmask_b32 v{o0+rr}, v{o0+rr}, v{o1+rr}, s[62:63]')
            p(f'v_cvt_pk_bf16_f32 v{d+2*u}, v{o0}, v{o0+1}')
            p(f'v_cvt_pk_bf16_f32 v{d+2*u+1}, v{o0+2}, v{o0+3}')
    p('s_mov_b32 exec_hi, 0')
    for pr in range(2):
        d = S(2 * pr, 1)
        p(f'buffer_store_dwordx4 v[{d}:{d+3}], v248, s[{SRD_WS}:{SRD_WS+3}], s67 offen {CFG["STF"]}')
        p('s_add_u32 s67, s67, 20480')
    p('s_mov_b32 exec_hi, -1')


def ffn_prologue(p):
    p(f's_and_b32 s55, s{S_WAVE}, 1')
    p(f's_lshr_b32 s56, s{S_WAVE}, 1')
    p('v_and_b32 v3, 15, v2')
    p('v_lshrrev_b32 v4, 4, v2')
    p('v_lshrrev_b32 v5, 1, v3')
    p('v_xor_b32 v5, v5, v4')
    p('v_lshlrev_b32 v5, 4, v5')
    p('v_lshl_add_u32 v5, v3, 7, v5')
    p('s_lshl_b32 s57, s56, 13')
    p(f'v_add_u32 v{V_X0}, s57, v5')
    p(f'v_xor_b32 v{V_X1}, 64, v{V_X0}')
    p('v_lshrrev_b32 v5, 5, v2')
    p('v_lshlrev_b32 v5, 4, v5')
    p('v_bfe_u32 v6, v2, 4, 1')
    p('v_lshl_add_u32 v5, v6, 2, v5')
    p('v_bfe_u32 v6, v2, 2, 2')
    p('v_add_u32 v5, v5, v6')
    p(f'v_mul_u32_u24 v5, {WROW}, v5')
    p(f'v_add_u32 v5, {XREG}, v5')
    p('v_and_b32 v6, 3, v2')
    p('v_lshl_add_u32 v5, v6, 3, v5')
    p('s_lshl_b32 s57, s55, 8')
    p(f'v_add_u32 v{V_W}, s57, v5')
    p('s_lshl_b32 s57, s55, 5')
    p('s_add_u32 s57, s57, 192')
    p(f'v_add_u32 v{V_WA}, s57, v5')
    p(f's_mul_i32 s57, s{S_CG}, 448')
    p('v_lshlrev_b32 v5, 3, v4')
    p('v_add_u32 v5, s57, v5')
    p('s_lshl_b32 s57, s55, 8')
    p('v_add_u32 v6, s57, v5')
    p('s_lshl_b32 s57, s55, 5')
    p('s_add_u32 s57, s57, 192')
    p('v_add_u32 v7, s57, v5')
    p('v_lshlrev_b32 v248, 4, v2')
    p('s_waitcnt lgkmcnt(0)')
    srd(p, SRD_A, S_B1, 3456)
    for f in range(7):
        if f < 6:
            p(f'buffer_load_dwordx2 v[{200+2*f}:{201+2*f}], v6, s[{SRD_A}:{SRD_A+3}], 0 offen offset:{32*f}')
        else:
            p(f'buffer_load_dwordx2 v[{200+2*f}:{201+2*f}], v7, s[{SRD_A}:{SRD_A+3}], 0 offen')
    tlb_touch(p, 'F')
    p('s_mov_b32 s58, 0xffff0000')
    p('s_waitcnt vmcnt(0)')
    for f in range(7):
        for t in range(4):
            a = F_ACC(f, t)
            p(f'v_lshlrev_b32 v{a}, 16, v{200+2*f}')
            p(f'v_and_b32 v{a+1}, s58, v{200+2*f}')
            p(f'v_lshlrev_b32 v{a+2}, 16, v{201+2*f}')
            p(f'v_and_b32 v{a+3}, s58, v{201+2*f}')


def ffn_epilogue(p):
    k1 = -2.0 * math.sqrt(2.0 / math.pi) * math.log2(math.e)
    k2 = k1 * 0.044715
    C1, C2, ONE = 240, 242, 244
    for r in (0, 1):
        p(f'v_mov_b32 v{C1+r}, {hexf(k1)}')
        p(f'v_mov_b32 v{C2+r}, {hexf(k2)}')
        p(f'v_mov_b32 v{ONE+r}, 1.0')
    p('s_nop 5')
    p(f's_lshl_b32 s65, s{S_RB}, 3')
    p('s_lshl_b32 s66, s56, 2')
    p('s_add_u32 s65, s65, s66')
    p('s_mul_i32 s65, s65, 54')
    p(f's_mul_i32 s66, s{S_CG}, 7')
    p('s_add_u32 s67, s66, 3')
    p('s_lshl_b32 s68, s55, 2')
    p('s_add_u32 s66, s66, s68')
    p('s_add_u32 s69, s65, s67')
    p('s_lshl_b32 s69, s69, 10')
    p('s_lshl_b32 s68, s55, 3')
    p('s_add_u32 s69, s69, s68')
    p('s_add_u32 s68, s65, s66')
    p('s_lshl_b32 s68, s68, 10')

    def gelu(regs, tmp):
        for i, x in enumerate(regs):
            p(f'v_pk_mul_f32 v[{tmp+4*i}:{tmp+4*i+1}], v[{x}:{x+1}], v[{x}:{x+1}]')
        for i, x in enumerate(regs):
            p(f'v_pk_fma_f32 v[{tmp+4*i}:{tmp+4*i+1}], v[{tmp+4*i}:{tmp+4*i+1}], v[{C2}:{C2+1}], v[{C1}:{C1+1}]')
        for i, x in enumerate(regs):
            p(f'v_pk_mul_f32 v[{tmp+4*i}:{tmp+4*i+1}], v[{tmp+4*i}:{tmp+4*i+1}], v[{x}:{x+1}]')
        for i, x in enumerate(regs):
            p(f'v_exp_f32 v{tmp+4*i}, v{tmp+4*i}')
            p(f'v_exp_f32 v{tmp+4*i+1}, v{tmp+4*i+1}')
        for i, x in enumerate(regs):
            p(f'v_pk_add_f32 v[{tmp+4*i}:{tmp+4*i+1}], v[{tmp+4*i}:{tmp+4*i+1}], v[{ONE}:{ONE+1}]')
        for i, x in enumerate(regs):
            p(f'v_rcp_f32 v{tmp+4*i}, v{tmp+4*i}')
            p(f'v_rcp_f32 v{tmp+4*i+1}, v{tmp+4*i+1}')
        for i, x in enumerate(regs):
            p(f'v_pk_mul_f32 v[{x}:{x+1}], v[{tmp+4*i}:{tmp+4*i+1}], v[{x}:{x+1}]')

    OUT = 184
    n = 0
    for pr in range(3):
        p(f's_add_u32 s70, s66, {pr}')
        p('s_cmp_ge_u32 s70, 54')
        p(f's_cbranch_scc1 L_skip_pair{pr}')
        for t in range(4):
            a, b = F_ACC(2 * pr, t), F_ACC(2 * pr + 1, t)
            gelu([a, a + 2, b, b + 2], 152)
            o = OUT + 4 * (n % 4)
            n += 1
            p(f'v_cvt_pk_bf16_f32 v{o}, v{a}, v{a+1}')
            p(f'v_cvt_pk_bf16_f32 v{o+1}, v{a+2}, v{a+3}')
            p(f'v_cvt_pk_bf16_f32 v{o+2}, v{b}, v{b+1}')
            p(f'v_cvt_pk_bf16_f32 v{o+3}, v{b+2}, v{b+3}')
            p(f's_add_u32 s70, s68, {pr*1024 + t*54*1024}')
            p(f'buffer_store_dwordx4 v[{o}:{o+3}], v248, s[{SRD_WS}:{SRD_WS+3}], s70 offen {CFG["STF"]}')
        p.label(f'L_skip_pair{pr}')
    for t2 in range(2):
        a, b = F_ACC(6, 2 * t2), F_ACC(6, 2 * t2 + 1)
        gelu([a, a + 2, b, b + 2], 152)
        for u, x in enumerate((a, b)):
            o = OUT + 16 + 2 * ((2 * t2 + u) % 2)
            p(f'v_cvt_pk_bf16_f32 v{o}, v{x}, v{x+1}')
            p(f'v_cvt_pk_bf16_f32 v{o+1}, v{x+2}, v{x+3}')
            p(f's_add_u32 s70, s69, {(2*t2+u)*54*1024}')
            p(f'buffer_store_dwordx2 v[{o}:{o+1}], v248, s[{SRD_WS}:{SRD_WS+3}], s70 offen {CFG["STF"]}')


def gen_k1():
    p = Prog()
    p('s_cmp_ge_u32 s2, 256')
    p('s_cbranch_scc1 L_k1_end')
    p('s_load_dwordx4 s[4:7], s[0:1], 0')
    p('s_load_dwordx4 s[8:11], s[0:1], 16')
    p('s_load_dwordx4 s[12:15], s[0:1], 32')
    p('s_load_dwordx4 s[16:19], s[0:1], 48')
    p('s_load_dwordx2 s[20:21], s[0:1], 64')
    p('s_load_dwordx2 s[22:23], s[0:1], 88')
    p('s_load_dwordx2 s[100:101], s[0:1], 72')
    if CFG['PROF']:
        p('s_memrealtime s[88:89]')
        p('s_memtime s[82:83]')
    p('v_lshrrev_b32 v1, 6, v0')
    p('v_and_b32 v2, 63, v0')
    p(f'v_readfirstlane_b32 s{S_WAVE}, v1')
    if CFG['SWAPW']:
        p(f's_add_u32 s{S_WAVE}, s{S_WAVE}, 4')
        p(f's_and_b32 s{S_WAVE}, s{S_WAVE}, 7')
    k1_decode(p)
    p(f's_cmp_eq_u32 s{S_WAVE}, 0')
    p('s_cbranch_scc0 L_nopf')
    p('v_mov_b32 v10, v2')
    code_prefetch(p, 'L_k1_body', 'L_k1_end', CFG.get('K1_BYTES', 20480), 10, 255, 84, 'k1')
    p.label('L_nopf')
    p.label('L_k1_body')
    p(f's_cmp_ge_u32 s{S_WAVE}, 4')
    p('s_cbranch_scc0 L_consumer')
    if CFG['LDFIRST']:
        p(f's_cmp_eq_u32 s{S_TYPE}, 0')
        p('s_cbranch_scc0 L_loader_F')
        k1_loader(p, True)
        k1_loader(p, False)
    else:
        p(f's_cmp_eq_u32 s{S_TYPE}, 0')
        p('s_cbranch_scc1 L_loader_A')
        p('s_branch L_loader_F')
    p.label('L_consumer')
    if CFG['PRIO']:
        p(f's_setprio {CFG["PRIO"]}')
    p(f's_cmp_eq_u32 s{S_TYPE}, 0')
    p('s_cbranch_scc0 L_cons_F')
    p('s_movk_i32 s99, 256')
    prefetch_setup(p, True)
    p('s_waitcnt lgkmcnt(0)')
    tlb_touch(p, 'A')
    attn_prologue(p)
    srd(p, SRD_WS, S_WS, WS_USED)
    srd(p, SRD_X, S_AX, 2048 * 1280)
    srd(p, SRD_W, S_WQKV, 640 * 3840)
    p('s_waitcnt lgkmcnt(0)')
    stamp(p, 0)
    p('s_barrier')
    stamp(p, 1)
    prefetch_issue(p, True)
    if CFG['M35']:
        p('s_cmp_eq_u32 s56, 0')
        p('s_cbranch_scc0 L_attn_th1')
        for th in (0, 1):
            if th:
                p.label('L_attn_th1')
            consumer_loop(p, True, th)
            stamp(p, 2)
            attn_epilogue(p, th)
            stamp(p, 3)
            if CFG['PROF']:
                prof_store(p, 4, 'CA', SRD_WS)
            p('s_endpgm')
    else:
        consumer_loop(p, True)
        stamp(p, 2)
        attn_epilogue(p)
        stamp(p, 3)
        if CFG['PROF']:
            prof_store(p, 4, 'CA', SRD_WS)
        p('s_endpgm')
    p.label('L_cons_F')
    p('s_movk_i32 s99, 256')
    prefetch_setup(p, False)
    ffn_prologue(p)
    srd(p, SRD_WS, S_WS, WS_USED)
    srd(p, SRD_X, S_AX, 2048 * 1280)
    srd(p, SRD_W, S_W1, 640 * 3456)
    p('s_waitcnt lgkmcnt(0)')
    stamp(p, 0)
    p('s_barrier')
    stamp(p, 1)
    prefetch_issue(p, False)
    consumer_loop(p, False)
    stamp(p, 2)
    ffn_epilogue(p)
    stamp(p, 3)
    if CFG['PROF']:
        prof_store(p, 4, 'CF', SRD_WS)
    p('s_endpgm')
    if not CFG['LDFIRST']:
        k1_loader(p, True)
        k1_loader(p, False)
    p.label('L_k1_end')
    p('s_endpgm')
    return p


def k2_stream(p, wave_a):
    NB = CFG['NBUF']
    tag = 'a' if wave_a else 'b'
    nsteps = 20 if wave_a else 18
    ACC = lambda t, f: K2_ACC + (t * 5 + f) * 4
    BA = lambda b, t: 36 * b + 4 * t
    BW = lambda b, f: 36 * b + 16 + 4 * f

    def ld_w(b, f):
        if f < 4:
            p(f'buffer_load_dwordx4 v[{BW(b,f)}:{BW(b,f)+3}], v{K2_VL}, s[12:15], s21 offen offset:{1024*f} {CFG["K2LDF"]}')
        else:
            p(f'buffer_load_dwordx4 v[{BW(b,f)}:{BW(b,f)+3}], v{K2_VL2}, s[12:15], s21 offen {CFG["K2LDF"]}')

    def ld_a(b, t):
        p(f'buffer_load_dwordx4 v[{BA(b,t)}:{BA(b,t)+3}], v{K2_VA+t}, s[12:15], s20 offen {CFG["K2LDF"]}')

    nrot = 16 if wave_a else 18
    state = {'n': 0}

    def adv():
        state['n'] += 1
        p('s_add_u32 s20, s20, 1024')
        p('s_add_u32 s21, s21, 5120')
        if not CFG['ROT2']:
            return
        if state['n'] < nrot:
            p('s_add_u32 s22, s22, 1')
            p(f's_cmp_eq_u32 s22, {nrot}')
            p(f's_cselect_b32 s23, {nrot*1024}, 0')
            p('s_sub_u32 s20, s20, s23')
            p('s_mul_i32 s23, s23, 5')
            p('s_sub_u32 s21, s21, s23')
        elif state['n'] == nrot and wave_a:
            p('s_mov_b32 s20, s34')
            p('s_mov_b32 s21, s35')

    for s in range(min(NB, nsteps)):
        for f in range(5):
            ld_w(s % NB, f)
        for t in range(4):
            ld_a(s % NB, t)
        adv()
    for r in range(80):
        p(f'v_mov_b32 v{K2_ACC+r}, 0')
    stamp(p, 1)
    for s in range(nsteps):
        b = s % NB
        issued = min(s + NB, nsteps)
        newer = (issued - s - 1) * 9
        p(f's_waitcnt vmcnt({newer})')
        more = s + NB < nsteps
        tail = wave_a and s >= 16
        amap = [0, 1, 2, 3]
        if tail:
            for (x, y) in ((0, 2), (1, 3)):
                p(f'v_swap_b32 v{BA(b,x)+2}, v{BA(b,y)}')
                p(f'v_swap_b32 v{BA(b,x)+3}, v{BA(b,y)+1}')
            amap = [0, 2, 1, 3]
        for f in range(5):
            for t in range(4):
                acc = ACC(t, f)
                if not CFG['K2NOMFMA']:
                    p(f'v_mfma_f32_16x16x32_bf16 v[{acc}:{acc+3}], v[{BW(b,f)}:{BW(b,f)+3}], v[{BA(b,amap[t])}:{BA(b,amap[t])+3}], v[{acc}:{acc+3}]')
            if more and CFG['K2ORD'] == 0:
                ld_w(b, f)
            if more and CFG['K2ORD'] == 2 and f >= 1:
                ld_w(b, f - 1)
        if more:
            if CFG['K2ORD'] == 1:
                for f in range(5):
                    ld_w(b, f)
            if CFG['K2ORD'] == 2:
                ld_w(b, 4)
            for t in range(4):
                ld_a(b, t)
            adv()
    p('s_branch L_k2_reduce')


K2_ACC = 144
K2_VL, K2_VL2, K2_VA = 224, 225, 226
K2_G, K2_B2 = 230, 232
K2_LDS = 4 * 4 * 5120


def gen_k2():
    global K2_ACC
    NB = CFG['NBUF']
    assert NB * 36 + 80 <= 224
    K2_ACC = NB * 36
    p = Prog()
    p('s_cmp_ge_u32 s2, 256')
    p('s_cbranch_scc1 L_k2_end')
    p('s_load_dwordx2 s[4:5], s[0:1], 88')
    p('s_load_dwordx2 s[6:7], s[0:1], 72')
    p('s_load_dwordx2 s[8:9], s[0:1], 56')
    if CFG['PROF']:
        p('s_memrealtime s[88:89]')
        p('s_memtime s[82:83]')
    p('v_lshrrev_b32 v1, 6, v0')
    p('v_and_b32 v2, 63, v0')
    p(f'v_readfirstlane_b32 s{S_WAVE}, v1')
    p('s_and_b32 s52, s2, 7')
    p('s_lshr_b32 s53, s2, 3')
    if CFG['MAP2'] == '8x4':
        p('s_lshr_b32 s54, s52, 1')
        p('s_lshl_b32 s54, s54, 3')
        p('s_lshr_b32 s55, s53, 2')
        p('s_add_u32 s26, s54, s55')
        p('s_and_b32 s54, s52, 1')
        p('s_lshl_b32 s54, s54, 2')
        p('s_and_b32 s55, s53, 3')
        p('s_add_u32 s27, s54, s55')
    else:
        p('s_lshl_b32 s54, s52, 2')
        p('s_lshr_b32 s55, s53, 3')
        p('s_add_u32 s26, s54, s55')
        p('s_and_b32 s27, s53, 7')
    p(f's_cmp_eq_u32 s{S_WAVE}, 0')
    p('s_cbranch_scc0 L_k2_nopf')
    p('v_mov_b32 v10, v2')
    code_prefetch(p, 'L_k2_body', 'L_k2_end', CFG.get('K2_BYTES', 16384), 10, 255, 84, 'k2')
    p.label('L_k2_nopf')
    p.label('L_k2_body')
    p(f'v_lshlrev_b32 v{K2_VL}, 4, v2')
    p(f'v_add_u32 v{K2_VL2}, 4096, v{K2_VL}')
    p(f's_cmp_eq_u32 s{S_WAVE}, 0')
    p('s_mov_b32 s56, 20480')
    p('s_cselect_b32 s56, s56, 55296')
    p(f's_mov_b32 s57, {OA_OFF}')
    p(f's_cselect_b32 s57, s57, {H_OFF}')
    p(f's_mov_b32 s58, {WO_OFF}')
    p(f's_cselect_b32 s58, s58, {W2_OFF}')
    p('s_cselect_b32 s59, 20, 54')
    p(f's_mul_i32 s60, s{S_WAVE}, 18')
    p('s_cselect_b32 s60, 18, s60')
    p('s_sub_u32 s60, s60, 18')
    p('s_lshl_b32 s61, s26, 2')
    p('s_mul_i32 s61, s61, s56')
    p('s_add_u32 s61, s61, s57')
    p('s_lshl_b32 s62, s60, 10')
    p('s_add_u32 s20, s61, s62')
    p('s_mul_i32 s61, s27, s59')
    p('s_add_u32 s61, s61, s60')
    p('s_mul_i32 s61, s61, 5120')
    p('s_add_u32 s21, s61, s58')
    if CFG['ROT2']:
        p('s_add_u32 s34, s20, 16384')
        p('s_add_u32 s35, s21, 81920')
        if CFG['ROT2'] == 2:
            p('s_xor_b32 s62, s26, s27')
            p('s_and_b32 s62, s62, 1')
            p(f's_cmp_eq_u32 s{S_WAVE}, 0')
            p('s_cselect_b32 s63, 8, 9')
            p('s_mul_i32 s22, s62, s63')
        elif CFG['ROT2'] == 3:
            p('s_add_u32 s62, s26, s27')
            p('s_mul_i32 s63, s62, 43')
            p('s_lshr_b32 s63, s63, 7')
            p('s_mul_i32 s63, s63, 3')
            p('s_sub_u32 s62, s62, s63')
            p(f's_cmp_eq_u32 s{S_WAVE}, 0')
            p('s_cselect_b32 s63, 5, 6')
            p('s_mul_i32 s22, s62, s63')
        else:
            p('s_and_b32 s62, s26, 7')
            p('s_and_b32 s63, s27, 3')
            p('s_lshl_b32 s63, s63, 1')
            p('s_add_u32 s62, s62, s63')
            p(f's_cmp_eq_u32 s{S_WAVE}, 0')
            p('s_cselect_b32 s63, 16, 18')
            p('s_mul_i32 s62, s62, s63')
            p('s_lshr_b32 s22, s62, 3')
            p('s_cmp_ge_u32 s22, s63')
            p('s_cselect_b32 s62, s63, 0')
            p('s_sub_u32 s22, s22, s62')
        p('s_lshl_b32 s62, s22, 10')
        p('s_add_u32 s20, s20, s62')
        p('s_mul_i32 s62, s22, 5120')
        p('s_add_u32 s21, s21, s62')
    for t in range(4):
        p(f's_mul_i32 s62, s56, {t}')
        p(f'v_add_u32 v{K2_VA+t}, s62, v{K2_VL}')
    p('v_and_b32 v3, 15, v2')
    p('v_lshrrev_b32 v4, 4, v2')
    p('s_lshl_b32 s62, s26, 6')
    p(f's_lshl_b32 s63, s{S_WAVE}, 4')
    p('s_add_u32 s62, s62, s63')
    p('v_add_u32 v5, s62, v3')
    p('v_lshlrev_b32 v6, 3, v5')
    p(f'v_add_u32 v6, {G_OFF}, v6')
    p('s_mul_i32 s63, s27, 160')
    p('v_lshlrev_b32 v7, 4, v4')
    p('v_add_u32 v7, s63, v7')
    p('v_lshlrev_b32 v8, 3, v4')
    p('v_add_u32 v8, s63, v8')
    p('s_movk_i32 s63, 1280')
    p('v_mul_u32_u24 v5, s63, v5')
    p('v_add_u32 v242, v5, v7')
    p('v_add_u32 v243, v5, v8')
    p('s_waitcnt lgkmcnt(0)')
    srd(p, 12, 4, WS_USED)
    srd(p, 16, 8, 1280)
    srd(p, 28, 6, 2048 * 1280)
    stamp(p, 0)
    p(f'buffer_load_dwordx2 v[{K2_G}:{K2_G+1}], v6, s[12:15], 0 offen')
    p(f'buffer_load_dwordx4 v[{K2_B2}:{K2_B2+3}], v7, s[16:19], 0 offen')
    p(f'buffer_load_dwordx4 v[{K2_B2+4}:{K2_B2+7}], v7, s[16:19], 0 offen offset:64')
    p(f'buffer_load_dwordx2 v[{K2_B2+8}:{K2_B2+9}], v8, s[16:19], 0 offen offset:128')
    p(f's_cmp_eq_u32 s{S_WAVE}, 0')
    p('s_cbranch_scc0 L_k2_b')
    k2_stream(p, True)
    p.label('L_k2_b')
    k2_stream(p, False)
    p.label('L_k2_reduce')
    stamp(p, 2)
    ACC = lambda t, f: K2_ACC + (t * 5 + f) * 4
    p(f's_mul_i32 s62, s{S_WAVE}, 5120')
    p(f'v_add_u32 v3, s62, v{K2_VL}')
    p('s_nop 7')
    p('v_add_u32 v4, 40960, v3')
    for t in range(4):
        for f in range(5):
            p(f'ds_write_b128 v{3 + (t >> 1)}, v[{ACC(t,f)}:{ACC(t,f)+3}] offset:{(t & 1)*20480 + f*1024}')
    p(f's_mul_i32 s62, s{S_WAVE}, 20480')
    p(f'v_add_u32 v250, s62, v{K2_VL}')
    p('s_waitcnt lgkmcnt(0)')
    p('s_barrier')
    R = lambda w, f: (w * 5 + f) * 4
    for f in range(5):
        for w in range(4):
            p(f'ds_read_b128 v[{R(w,f)}:{R(w,f)+3}], v250 offset:{w*5120 + f*1024}')
    p('s_mov_b32 s62, 0xffff0000')
    B = lambda f: 100 + 4 * f
    for pr in range(2):
        for d in range(4):
            src = K2_B2 + 4 * pr + d
            f, r = 2 * pr + (d >> 1), 2 * (d & 1)
            p(f'v_lshlrev_b32 v{B(f)+r}, 16, v{src}')
            p(f'v_and_b32 v{B(f)+r+1}, s62, v{src}')
    for d in range(2):
        src = K2_B2 + 8 + d
        p(f'v_lshlrev_b32 v{B(4)+2*d}, 16, v{src}')
        p(f'v_and_b32 v{B(4)+2*d+1}, s62, v{src}')
    p(f'v_mov_b32 v120, v{K2_G}')
    p(f'v_mov_b32 v121, v{K2_G}')
    p(f'v_mov_b32 v122, v{K2_G+1}')
    p(f'v_mov_b32 v123, v{K2_G+1}')
    for f in range(5):
        p(f's_waitcnt lgkmcnt({min(15, 16-4*f)})' if f < 4 else 's_waitcnt lgkmcnt(0)')
        if f == 0:
            p('s_waitcnt lgkmcnt(15)')
        for r in (0, 2):
            a, b1, b2_, b3 = R(0, f) + r, R(1, f) + r, R(2, f) + r, R(3, f) + r
            p(f'v_pk_add_f32 v[{b1}:{b1+1}], v[{b1}:{b1+1}], v[{b2_}:{b2_+1}]')
            p(f'v_pk_add_f32 v[{b3}:{b3+1}], v[{b3}:{b3+1}], v[{B(f)+r}:{B(f)+r+1}]')
            p(f'v_pk_mul_f32 v[{a}:{a+1}], v[{a}:{a+1}], v[120:121]')
            p(f'v_pk_add_f32 v[{b1}:{b1+1}], v[{b1}:{b1+1}], v[{b3}:{b3+1}]')
            p(f'v_pk_fma_f32 v[{a}:{a+1}], v[{b1}:{b1+1}], v[122:123], v[{a}:{a+1}]')
    O = 124
    for pr in range(2):
        for u in range(2):
            a = R(0, 2 * pr + u)
            p(f'v_cvt_pk_bf16_f32 v{O+4*pr+2*u}, v{a}, v{a+1}')
            p(f'v_cvt_pk_bf16_f32 v{O+4*pr+2*u+1}, v{a+2}, v{a+3}')
        p(f'buffer_store_dwordx4 v[{O+4*pr}:{O+4*pr+3}], v242, s[28:31], 0 offen offset:{64*pr} {CFG["OUTF"]}')
    a = R(0, 4)
    p(f'v_cvt_pk_bf16_f32 v{O+8}, v{a}, v{a+1}')
    p(f'v_cvt_pk_bf16_f32 v{O+9}, v{a+2}, v{a+3}')
    p(f'buffer_store_dwordx2 v[{O+8}:{O+9}], v243, s[28:31], 0 offen offset:128 {CFG["OUTF"]}')
    stamp(p, 3)
    if CFG['PROF']:
        prof_store(p, 4, 'K2', 12)
    p.label('L_k2_end')
    p('s_endpgm')
    return p


K2B_R = 4
K2B_STEP = 9216
K2B_SLOT = 4 * K2B_STEP
K2B_LDS = K2B_R * K2B_SLOT


def gen_k2b():
    R, SL, ST = K2B_R, K2B_SLOT, K2B_STEP
    stages = [('a', 4 * i, 4) for i in range(5)] + [('b', 4 * i, 4) for i in range(13)] + [('b', 52, 2)]
    NS = len(stages)
    p = Prog()
    p('s_cmp_ge_u32 s2, 256')
    p('s_cbranch_scc1 L_k2_end')
    p('s_load_dwordx2 s[4:5], s[0:1], 88')
    p('s_load_dwordx2 s[6:7], s[0:1], 72')
    p('s_load_dwordx2 s[8:9], s[0:1], 56')
    if CFG['PROF']:
        p('s_memrealtime s[88:89]')
        p('s_memtime s[82:83]')
    p('v_lshrrev_b32 v1, 6, v0')
    p('v_and_b32 v2, 63, v0')
    p(f'v_readfirstlane_b32 s{S_WAVE}, v1')
    p('s_and_b32 s52, s2, 7')
    p('s_lshr_b32 s53, s2, 3')
    if CFG['MAP2'] == '8x4':
        p('s_lshr_b32 s54, s52, 1')
        p('s_lshl_b32 s54, s54, 3')
        p('s_lshr_b32 s55, s53, 2')
        p('s_add_u32 s26, s54, s55')
        p('s_and_b32 s54, s52, 1')
        p('s_lshl_b32 s54, s54, 2')
        p('s_and_b32 s55, s53, 3')
        p('s_add_u32 s27, s54, s55')
    else:
        p('s_lshl_b32 s54, s52, 2')
        p('s_lshr_b32 s55, s53, 3')
        p('s_add_u32 s26, s54, s55')
        p('s_and_b32 s27, s53, 7')
    p('v_lshlrev_b32 v3, 4, v2')
    p(f's_cmp_ge_u32 s{S_WAVE}, 4')
    p('s_cbranch_scc0 L_k2_consumer')
    p(f's_sub_u32 s57, s{S_WAVE}, 4')
    p('s_mul_i32 s20, s27, 20')
    p('s_add_u32 s20, s20, s57')
    p('s_mul_i32 s20, s20, 5120')
    p(f's_add_u32 s20, s20, {WO_OFF}')
    p('s_mul_i32 s21, s27, 54')
    p('s_add_u32 s21, s21, s57')
    p('s_mul_i32 s21, s21, 5120')
    p(f's_add_u32 s21, s21, {W2_OFF}')
    p('s_lshl_b32 s54, s26, 2')
    p('s_mul_i32 s22, s54, 20')
    p('s_add_u32 s22, s22, s57')
    p('s_lshl_b32 s22, s22, 10')
    p(f's_add_u32 s22, s22, {OA_OFF}')
    p('s_mul_i32 s25, s54, 54')
    p('s_add_u32 s25, s25, s57')
    p('s_lshl_b32 s25, s25, 10')
    if H_OFF:
        p(f's_add_u32 s25, s25, {H_OFF}')
    p(f's_mul_i32 s58, s57, {ST}')
    p('v_add_u32 v4, 4096, v3')
    for u in range(4):
        p(f'v_add_u32 v{10+u}, {20480*u}, v3')
        p(f'v_add_u32 v{14+u}, {55296*u}, v3')
    p('s_waitcnt lgkmcnt(0)')
    srd(p, 12, 4, WS_USED)
    stamp(p, 0)

    def issue(j):
        part, s0, n = stages[j]
        slot = j % R
        if n < 4:
            p(f's_cmp_ge_u32 s57, {n}')
            p(f's_cbranch_scc1 L_k2_skip{j}')
        p(f's_add_u32 s23, s{20 if part == "a" else 21}, {s0*5120}')
        p(f's_add_u32 s24, s{22 if part == "a" else 25}, {s0*1024}') if False else None
        p(f's_add_u32 m0, s58, {slot*SL}')
        p(f's_add_u32 s59, s{22 if part == "a" else 25}, {s0*1024}')
        for f in range(4):
            p(f'buffer_load_dwordx4 v3, s[12:15], s23 offen offset:{1024*f} {CFG["K2LDF"]} lds')
        p(f's_add_u32 m0, s58, {slot*SL + 4096}')
        p('s_nop 0')
        p(f'buffer_load_dwordx4 v4, s[12:15], s23 offen {CFG["K2LDF"]} lds')
        for u in range(4):
            p(f's_add_u32 m0, s58, {slot*SL + 5120 + 1024*u}')
            p('s_nop 0')
            p(f'buffer_load_dwordx4 v{(10 if part == "a" else 14)+u}, s[12:15], s59 offen {CFG["K2LDF"]} lds')
        if n < 4:
            p.label(f'L_k2_skip{j}')

    for j in range(R - 1):
        issue(j)
    stamp(p, 1)
    for j in range(NS):
        hi = min(j + R - 2, NS - 1)
        newer = 9 * (hi - j)
        if hi == NS - 1 and j < NS - 1:
            newer -= 9
        p(f's_waitcnt vmcnt({max(newer, 0)})')
        p('s_barrier')
        if j + R - 1 < NS:
            issue(j + R - 1)
    stamp(p, 2)
    stamp(p, 3)
    if CFG['PROF']:
        prof_store(p, 4, 'K2', 12)
    p('s_endpgm')
    p.label('L_k2_consumer')
    p(f's_cmp_eq_u32 s{S_WAVE}, 0')
    p('s_cbranch_scc0 L_k2_nopf')
    p('v_mov_b32 v10, v2')
    code_prefetch(p, 'L_k2_body', 'L_k2_end', CFG.get('K2_BYTES', 12288), 10, 255, 84, 'k2')
    p.label('L_k2_nopf')
    p.label('L_k2_body')
    ACA, ACB = 0, 20
    WR = lambda q, f: 40 + 20 * q + 4 * f
    AR = lambda q: 120 + 4 * q
    G, B2 = 230, 232
    p('s_lshl_b32 s54, s26, 2')
    p(f's_add_u32 s54, s54, s{S_WAVE}')
    p('v_and_b32 v4, 15, v2')
    p('v_lshrrev_b32 v5, 4, v2')
    p('s_lshl_b32 s55, s54, 4')
    p('v_add_u32 v6, s55, v4')
    p('v_lshlrev_b32 v7, 3, v6')
    p(f'v_add_u32 v7, {G_OFF}, v7')
    p('s_mul_i32 s55, s27, 160')
    p('v_lshlrev_b32 v8, 4, v5')
    p('v_add_u32 v8, s55, v8')
    p('v_lshlrev_b32 v9, 3, v5')
    p('v_add_u32 v9, s55, v9')
    p('v_mul_u32_u24 v6, 1280, v6')
    p('v_add_u32 v242, v6, v8')
    p('v_add_u32 v243, v6, v9')
    p(f's_lshl_b32 s55, s{S_WAVE}, 10')
    p('s_add_u32 s55, s55, 5120')
    for sl in range(R):
        p(f'v_add_u32 v{244+sl}, {sl*SL}, v3')
        p(f'v_add_u32 v{250+sl}, s55, v{244+sl}')
    p(f's_lshr_b32 s55, s{S_WAVE}, 1')
    p('s_lshl_b32 s55, s55, 10')
    p(f's_and_b32 s56, s{S_WAVE}, 1')
    p('s_lshl_b32 s56, s56, 3')
    p('s_add_u32 s55, s55, s56')
    p('s_add_u32 s55, s55, 5120')
    p('v_add_u32 v249, s55, v3')
    p('s_waitcnt lgkmcnt(0)')
    srd(p, 12, 4, WS_USED)
    srd(p, 16, 8, 1280)
    srd(p, 28, 6, 2048 * 1280)
    stamp(p, 0)
    p(f'buffer_load_dwordx2 v[{G}:{G+1}], v7, s[12:15], 0 offen')
    p(f'buffer_load_dwordx4 v[{B2}:{B2+3}], v8, s[16:19], 0 offen')
    p(f'buffer_load_dwordx4 v[{B2+4}:{B2+7}], v8, s[16:19], 0 offen offset:64')
    p(f'buffer_load_dwordx2 v[{B2+8}:{B2+9}], v9, s[16:19], 0 offen offset:128')
    for r in range(40):
        p(f'v_mov_b32 v{r}, 0')
    stamp(p, 1)
    for j, (part, s0, n) in enumerate(stages):
        slot = j % R
        tail = (part == 'a' and s0 == 16)
        assert not tail or slot == 0
        p('s_barrier')
        log = []
        for q in range(n):
            if tail:
                p(f'ds_read_b64 v[{AR(q)}:{AR(q)+1}], v249 offset:{q*ST}')
                p(f'ds_read_b64 v[{AR(q)+2}:{AR(q)+3}], v249 offset:{q*ST + 2048}')
                log += [('a', q), ('a', q)]
            else:
                p(f'ds_read_b128 v[{AR(q)}:{AR(q)+3}], v{250+slot} offset:{q*ST}')
                log.append(('a', q))
            for f in range(5):
                p(f'ds_read_b128 v[{WR(q,f)}:{WR(q,f)+3}], v{244+slot} offset:{q*ST + f*1024}')
                log.append(('w', q, f))
        known = max(0, len(log) - 15) if len(log) > 15 else 0
        done = -1
        for q in range(n):
            acc0 = ACA if part == 'a' else ACB
            for f in range(5):
                idx = log.index(('w', q, f))
                if idx > done:
                    left = len(log) - 1 - idx
                    w = min(left, 15)
                    p(f's_waitcnt lgkmcnt({w})')
                    done = len(log) - 1 - w
                p(f'v_mfma_f32_16x16x32_bf16 v[{acc0+4*f}:{acc0+4*f+3}], v[{WR(q,f)}:{WR(q,f)+3}], v[{AR(q)}:{AR(q)+3}], v[{acc0+4*f}:{acc0+4*f+3}]')
    stamp(p, 2)
    p('s_mov_b32 s62, 0xffff0000')
    p('s_waitcnt vmcnt(0)')
    Bf = lambda f: 100 + 4 * f
    for pr in range(2):
        for d in range(4):
            s_ = B2 + 4 * pr + d
            f, r = 2 * pr + (d >> 1), 2 * (d & 1)
            p(f'v_lshlrev_b32 v{Bf(f)+r}, 16, v{s_}')
            p(f'v_and_b32 v{Bf(f)+r+1}, s62, v{s_}')
    for d in range(2):
        s_ = B2 + 8 + d
        p(f'v_lshlrev_b32 v{Bf(4)+2*d}, 16, v{s_}')
        p(f'v_and_b32 v{Bf(4)+2*d+1}, s62, v{s_}')
    p(f'v_mov_b32 v120, v{G}')
    p(f'v_mov_b32 v121, v{G}')
    p(f'v_mov_b32 v122, v{G+1}')
    p(f'v_mov_b32 v123, v{G+1}')
    for f in range(5):
        for r in (0, 2):
            a, b = ACA + 4 * f + r, ACB + 4 * f + r
            p(f'v_pk_add_f32 v[{b}:{b+1}], v[{b}:{b+1}], v[{Bf(f)+r}:{Bf(f)+r+1}]')
            p(f'v_pk_mul_f32 v[{a}:{a+1}], v[{a}:{a+1}], v[120:121]')
    for f in range(5):
        for r in (0, 2):
            a, b = ACA + 4 * f + r, ACB + 4 * f + r
            p(f'v_pk_fma_f32 v[{a}:{a+1}], v[{b}:{b+1}], v[122:123], v[{a}:{a+1}]')
    O = 124
    for pr in range(2):
        for u in range(2):
            a = ACA + 4 * (2 * pr + u)
            p(f'v_cvt_pk_bf16_f32 v{O+4*pr+2*u}, v{a}, v{a+1}')
            p(f'v_cvt_pk_bf16_f32 v{O+4*pr+2*u+1}, v{a+2}, v{a+3}')
        p(f'buffer_store_dwordx4 v[{O+4*pr}:{O+4*pr+3}], v242, s[28:31], 0 offen offset:{64*pr} {CFG["OUTF"]}')
    a = ACA + 16
    p(f'v_cvt_pk_bf16_f32 v{O+8}, v{a}, v{a+1}')
    p(f'v_cvt_pk_bf16_f32 v{O+9}, v{a+2}, v{a+3}')
    p(f'buffer_store_dwordx2 v[{O+8}:{O+9}], v243, s[28:31], 0 offen offset:128 {CFG["OUTF"]}')
    stamp(p, 3)
    if CFG['PROF']:
        prof_store(p, 4, 'K2', 12)
    p.label('L_k2_end')
    p('s_endpgm')
    return p


def gen_k2t():
    NW, INF, MODE = CFG['NW'], CFG['INF'], CFG['TMODE']
    p = Prog()
    p('s_cmp_ge_u32 s2, 256')
    p('s_cbranch_scc1 L_k2_end')
    p('s_load_dwordx2 s[4:5], s[0:1], 88')
    p('s_memrealtime s[88:89]')
    p('s_memtime s[82:83]')
    p('v_lshrrev_b32 v1, 6, v0')
    p('v_and_b32 v2, 63, v0')
    p(f'v_readfirstlane_b32 s{S_WAVE}, v1')
    p('s_and_b32 s52, s2, 7')
    p('s_lshr_b32 s53, s2, 3')
    p('s_lshr_b32 s54, s52, 1')
    p('s_lshl_b32 s54, s54, 3')
    p('s_lshr_b32 s55, s53, 2')
    p('s_add_u32 s26, s54, s55')
    p('s_and_b32 s54, s52, 1')
    p('s_lshl_b32 s54, s54, 2')
    p('s_and_b32 s55, s53, 3')
    p('s_add_u32 s27, s54, s55')
    p('v_lshlrev_b32 v3, 4, v2')
    p('v_add_u32 v4, 4096, v3')
    nst = 72 // NW
    p(f's_mul_i32 s60, s{S_WAVE}, {nst}')
    p('s_cmp_ge_u32 s60, 54')
    p('s_cselect_b32 s61, 1, 0')
    p('s_cselect_b32 s56, 20480, 0')
    p('s_cselect_b32 s56, s56, 55296')
    p(f's_mov_b32 s57, {OA_OFF}')
    p(f's_cselect_b32 s57, s57, {H_OFF}')
    p(f's_mov_b32 s58, {WO_OFF}')
    p(f's_cselect_b32 s58, s58, {W2_OFF}')
    p('s_cselect_b32 s59, 20, 54')
    p('s_cselect_b32 s62, 54, 0')
    p('s_sub_u32 s60, s60, s62')
    p('s_lshl_b32 s61, s26, 2')
    p('s_mul_i32 s61, s61, s56')
    p('s_add_u32 s61, s61, s57')
    p('s_lshl_b32 s62, s60, 10')
    p('s_add_u32 s20, s61, s62')
    p('s_mul_i32 s61, s27, s59')
    p('s_add_u32 s61, s61, s60')
    p('s_mul_i32 s61, s61, 5120')
    p('s_add_u32 s21, s61, s58')
    for t in range(4):
        p(f's_mul_i32 s62, s56, {t}')
        p(f'v_add_u32 v{10+t}, s62, v3')
    p(f's_mul_i32 s63, s{S_WAVE}, 16384')
    p('s_waitcnt lgkmcnt(0)')
    srd(p, 12, 4, WS_USED)
    stamp(p, 0)
    stamp(p, 1)
    n = 0
    for s in range(nst):
        for f in range(9):
            r = 20 + 4 * (n % 48)
            if MODE == 'dma':
                p(f's_add_u32 m0, s63, {(n % 16) * 1024}')
                p('s_nop 0')
            a, so, off = (3, 's21', 1024 * f) if f < 4 else ((4, 's21', 0) if f == 4 else (10 + f - 5, 's20', 0))
            if MODE == 'dma':
                if f < 4 and f > 0:
                    p(f's_sub_u32 m0, m0, {off}')
                    p('s_nop 0')
                p(f'buffer_load_dwordx4 v{a}, s[12:15], {so} offen offset:{off} lds')
            else:
                p(f'buffer_load_dwordx4 v[{r}:{r+3}], v{a}, s[12:15], {so} offen offset:{off}')
            p(f's_waitcnt vmcnt({INF})')
            n += 1
        p('s_add_u32 s20, s20, 1024')
        p('s_add_u32 s21, s21, 5120')
    p('s_waitcnt vmcnt(0)')
    stamp(p, 2)
    stamp(p, 3)
    prof_store(p, 4, 'K2', 12)
    p.label('L_k2_end')
    p('s_endpgm')
    return p


def gen_kpf():
    p = Prog()
    p('s_cmp_ge_u32 s2, 256')
    p('s_cbranch_scc1 L_kpf_end')
    p('s_load_dwordx2 s[4:5], s[0:1], 88')
    p('v_and_b32 v2, 63, v0')
    p('v_lshrrev_b32 v1, 6, v0')
    p('s_and_b32 s52, s2, 7')
    p('s_lshr_b32 s53, s2, 3')
    p('v_lshlrev_b32 v3, 7, v0')
    p('s_waitcnt lgkmcnt(0)')
    srd(p, 12, 4, WS_USED)
    if CFG['KPF'] == 1:
        p('s_and_b32 s54, s52, 1')
        p(f's_mul_i32 s55, s54, {4*54*5120}')
        p(f's_add_u32 s55, s55, {W2_OFF}')
        p('s_lshl_b32 s56, s53, 15')
        p('s_add_u32 s57, s55, s56')
        p('buffer_load_dword v10, v3, s[12:15], s57 offen')
        p('s_add_u32 s57, s57, 57344')
        p('buffer_load_dword v10, v3, s[12:15], s57 offen')
        p(f's_mul_i32 s55, s54, {4*20*5120}')
        p(f's_add_u32 s55, s55, {WO_OFF}')
        p('s_mul_i32 s56, s53, 12800')
        p('s_add_u32 s57, s55, s56')
        p('buffer_load_dword v10, v3, s[12:15], s57 offen')
    else:
        p('s_lshr_b32 s54, s52, 1')
        p(f's_mul_i32 s55, s54, {32*55296}')
        p('s_mul_i32 s56, s53, 55296')
        p('s_add_u32 s57, s55, s56')
        p('buffer_load_dword v10, v3, s[12:15], s57 offen')
        p('s_add_u32 s57, s57, 22528')
        p('buffer_load_dword v10, v3, s[12:15], s57 offen')
        p(f's_mul_i32 s55, s54, {32*20480}')
        p(f's_add_u32 s55, s55, {OA_OFF}')
        p('s_mul_i32 s56, s53, 20480')
        p('s_add_u32 s57, s55, s56')
        p('buffer_load_dword v10, v3, s[12:15], s57 offen')
    p('s_waitcnt vmcnt(0)')
    p.label('L_kpf_end')
    p('s_endpgm')
    return p


HEADER = """; Kernarg layout (96 bytes, ptrs only, base s[0:1]):
; @launch kernel=gm_k1_kernel grid=(256,1,1) block=(512,1,1) lds=%d
; @launch kernel=gm_k2_kernel grid=(256,1,1) block=(256,1,1) lds=%d
.amdgcn_target "amdgcn-amd-amdhsa--gfx950"
"""

KD = """.amdhsa_kernel %s
  .amdhsa_next_free_vgpr %d
  .amdhsa_next_free_sgpr 102
  .amdhsa_accum_offset %d
  .amdhsa_group_segment_fixed_size 0
  .amdhsa_kernarg_size 96
  .amdhsa_user_sgpr_count 2
  .amdhsa_user_sgpr_kernarg_segment_ptr 1
  .amdhsa_system_sgpr_workgroup_id_x 1
  .amdhsa_float_denorm_mode_32 3
.end_amdhsa_kernel
"""


def main():
    k1 = gen_k1()
    k2 = gen_k2b() if CFG['K2V'] == 2 else (gen_k2t() if CFG['K2V'] == 3 else gen_k2())
    t1, t2 = k1.finish(), k2.finish()
    s = HEADER % (K1_LDS, K2B_LDS if CFG['K2V'] == 2 else K2_LDS)
    if CFG['K2V'] == 3:
        s = s.replace('kernel=gm_k2_kernel grid=(256,1,1) block=(256,1,1) lds=%d' % K2_LDS, 'kernel=gm_k2_kernel grid=(256,1,1) block=(%d,1,1) lds=131072' % (64 * CFG['NW']))
    if CFG['K2V'] == 2:
        s = s.replace('kernel=gm_k2_kernel grid=(256,1,1) block=(256,1,1)', 'kernel=gm_k2_kernel grid=(256,1,1) block=(512,1,1)')
    if CFG['K2TWICE']:
        ln = [l for l in s.split('\n') if 'kernel=gm_k2_kernel' in l][0]
        s = s.replace(ln, ln + '\n' + ln)
    s += '.text\n'
    for name, t in (('gm_k1_kernel', t1), ('gm_k2_kernel', t2)):
        s += f'.globl {name}\n.p2align 8\n.type {name},@function\n{name}:\n{t}'
    s += '.p2align 8\n.fill 64, 4, 0xbf800000\n' if False else ''
    if CFG['KPF']:
        s += '.globl gm_pf_kernel\n.p2align 8\n.type gm_pf_kernel,@function\ngm_pf_kernel:\n' + gen_kpf().finish()
        ln = [l for l in s.split('\n') if 'kernel=gm_k2_kernel' in l][0]
        s = s.replace(ln, '; @launch kernel=gm_pf_kernel grid=(256,1,1) block=(256,1,1) lds=0\n' + ln)
    s += '.section .rodata,"a"\n.p2align 6\n'
    s += KD % ('gm_k1_kernel', 256, 256)
    s += '.p2align 6\n'
    s += KD % ('gm_k2_kernel', 256, 256)
    if CFG['KPF']:
        s += '.p2align 6\n' + KD % ('gm_pf_kernel', 64, 64)
    out = CFG.get('OUT', f'cdna_kernels/{NAME}.s')
    open(out, 'w').write(s)
    print('written', out, len(s), 'bytes; nops inserted k1', k1.nops_inserted, 'k2', k2.nops_inserted)


if __name__ == '__main__':
    main()
```

```python
import sys, os, math, struct
sys.path.insert(0, os.path.dirname(os.path.abspath(__file__)))
from asmlib import Prog, vr, ar, sr

NAME = 'gated_mix__sliding_local_dilated__dense_activation_gelu__prompt'

CFG = dict(MAP1='m82', MAP2='8x4', NBUF=4, PROF=0, NOMFMA=0, NOLOAD=0, NODS=0, STF='sc1', LDF='', ULDF='nt', PFF='', PF=0, TT=1, ROT=1, ROT2=0, K2TWICE=0, K2V=1, M35=1, UNITS_FFN=0, NFU=3, PEEL=1, SWAPW=0, LDFIRST=0, PRIO=0, K2ORD=0, KPF=0, LDF0='nt', NT_ST=0, ZOOB=1, TEARLY=0, K2PF=1, DA=12, NW=4, INF=32, TMODE='reg', K2NOMFMA=0, K2LDF='', OUTF='')
for a in sys.argv[1:]:
    if '=' in a:
        k, v = a.split('=')
        CFG[k] = int(v) if v.lstrip('-').isdigit() else v.replace('+', ' ')

H_OFF = 0
OA_OFF = H_OFF + 128 * 54 * 1024
W2_OFF = OA_OFF + 128 * 20 * 1024
WO_OFF = W2_OFF + 8 * 54 * 5120
G_OFF = WO_OFF + 8 * 20 * 5120
WS_USED = G_OFF + 2048 * 8
PROF_OFF = 16 << 20

XREG = 144 * 128
WROW = 480
WREG = 64 * WROW
SLOT = XREG + WREG
XFLAG = 3 * 49152 + 15360
SCR = 3 * SLOT
K1_LDS = 163840


def f32(x):
    return struct.unpack('<I', struct.pack('<f', x))[0]


def hexf(x):
    return '0x%08x' % f32(x)


S_AX, S_WQKV, S_WO, S_BX, S_W1, S_B1, S_W2, S_B2, S_GW, S_WS = 4, 6, 8, 10, 12, 14, 16, 18, 20, 22
S_WAVE, S_TYPE, S_RB, S_CG = 24, 25, 26, 27
SRD_X, SRD_W, SRD_I4, SRD_WS, SRD_A, SRD_B = 28, 32, 36, 40, 44, 48


def srd(p, base, ptr, nbytes):
    p(f's_mov_b32 s{base}, s{ptr}')
    p(f's_mov_b32 s{base+1}, s{ptr+1}')
    p(f's_mov_b32 s{base+2}, {nbytes}')
    p(f's_mov_b32 s{base+3}, 0x20000')


def code_prefetch(p, lbl_from, lbl_to, nbytes, vtmp, vdst, s, tag):
    p(f's_getpc_b64 s[{s}:{s+1}]')
    p.label(f'L_pc_{tag}')
    p(f's_add_u32 s{s}, s{s}, {lbl_from}-L_pc_{tag}')
    p(f's_addc_u32 s{s+1}, s{s+1}, 0')
    p(f'v_lshlrev_b32 v{vtmp}, 6, v{vtmp}')
    n = (nbytes + 4095) // 4096
    for j in range(n):
        p(f'v_min_u32 v{vtmp+1}, {lbl_to}-{lbl_from}, v{vtmp}')
        p(f'global_load_dword v{vdst}, v{vtmp+1}, s[{s}:{s+1}]')
        if j + 1 < n:
            p(f'v_add_u32 v{vtmp}, 4096, v{vtmp}')
    return n


def stamp(p, idx, sbase=90):
    if CFG['PROF']:
        p(f'{"s_memtime" if CFG["PROF"] in (2, 3) else "s_memrealtime"} s[{sbase+2*idx}:{sbase+2*idx+1}]')


def k1_decode(p):
    p('s_and_b32 s52, s2, 7')
    p('s_lshr_b32 s53, s2, 3')
    if CFG['MAP1'] == 'mixed':
        p(f's_lshr_b32 s{S_TYPE}, s53, 4')
        p('s_and_b32 s54, s53, 15')
        p('s_lshr_b32 s55, s52, 1')
        p('s_lshl_b32 s55, s55, 2')
        p('s_lshr_b32 s56, s54, 2')
        p(f's_add_u32 s{S_RB}, s55, s56')
        p('s_and_b32 s55, s52, 1')
        p('s_lshl_b32 s55, s55, 2')
        p('s_and_b32 s56, s54, 3')
        p(f's_add_u32 s{S_CG}, s55, s56')
    elif CFG['MAP1'] == 'm82':
        p(f's_lshr_b32 s{S_TYPE}, s53, 4')
        p('s_lshr_b32 s55, s52, 2')
        p('s_lshl_b32 s55, s55, 3')
        p('s_and_b32 s56, s53, 7')
        p(f's_add_u32 s{S_RB}, s55, s56')
        p('s_and_b32 s55, s52, 3')
        p('s_lshl_b32 s55, s55, 1')
        p('s_bfe_u32 s56, s53, 0x10003')
        p(f's_add_u32 s{S_CG}, s55, s56')
    else:
        p(f's_lshr_b32 s{S_TYPE}, s52, 2')
        p('s_and_b32 s54, s52, 3')
        p('s_lshr_b32 s55, s54, 1')
        p('s_lshl_b32 s55, s55, 3')
        p('s_lshr_b32 s56, s53, 2')
        p(f's_add_u32 s{S_RB}, s55, s56')
        p('s_and_b32 s55, s54, 1')
        p('s_lshl_b32 s55, s55, 2')
        p('s_and_b32 s56, s53, 3')
        p(f's_add_u32 s{S_CG}, s55, s56')


def k1_loader(p, attn):
    tag = 'A' if attn else 'F'
    rowstride = 3840 if attn else 3456
    VOFF = 10
    VL = 2
    p.label(f'L_loader_{tag}')
    p(f's_sub_u32 s57, s{S_WAVE}, 4')
    p(f'v_lshrrev_b32 v3, 3, v{VL}')
    p('s_lshl_b32 s58, s57, 3')
    p('v_add_u32 v3, s58, v3')
    p(f's_lshl_b32 s59, s{S_RB}, 7')
    if attn:
        p('s_sub_u32 s59, s59, 16')
    p('v_add_u32 v3, s59, v3')
    p('s_and_b32 s58, s57, 1')
    p('s_lshl_b32 s58, s58, 2')
    p(f'v_lshrrev_b32 v4, 4, v{VL}')
    p('v_add_u32 v4, s58, v4')
    p(f'v_and_b32 v5, 7, v{VL}')
    p('v_xor_b32 v4, v4, v5')
    p('v_lshlrev_b32 v4, 4, v4')
    p('s_movk_i32 s58, 1280')
    p('s_movk_i32 s59, 2047')
    for i in range(5):
        p(f'v_add_u32 v5, {32*i}, v3')
        if attn and i == 0:
            p('v_max_i32 v5, 0, v5')
        if (not attn) and i == 4:
            p('v_min_u32 v5, s59, v5')
        p('v_mul_u32_u24 v5, s58, v5')
        p(f'v_add_u32 v{VOFF+i if i < 4 else 6}, v5, v4')
    p('s_lshl_b32 s58, s57, 6')
    p(f'v_add_u32 v7, s58, v{VL}')
    p(f's_mov_b32 s60, {rowstride}')
    p('v_mov_b32 v9, 0x7ffffff0')
    if attn:
        p(f's_mul_i32 s61, s{S_CG}, 160')
    else:
        p(f's_mul_i32 s61, s{S_CG}, 448')

    def w_offset(i):
        base = 64 * (4 * i - 18)
        dst = VOFF + i if i > 4 else 8
        if base >= 0:
            p(f'v_add_u32 v3, {base}, v7')
        else:
            p(f'v_subrev_u32 v3, {-base}, v7')
            p('v_max_i32 v3, 0, v3')
        p('v_mul_u32_u24 v4, 2185, v3')
        p('v_lshrrev_b32 v4, 16, v4')
        p('v_mul_u32_u24 v5, 30, v4')
        p('v_sub_u32 v5, v3, v5')
        p('v_lshrrev_b32 v3, 1, v4')
        p('v_xor_b32 v3, v3, v4')
        p('v_and_b32 v3, 4, v3')
        p('v_mul_u32_u24 v3, 3, v3')
        p('v_xor_b32 v4, v3, v4')
        p('v_mul_u32_u24 v4, s60, v4')
        if attn:
            p('v_mul_u32_u24 v3, 205, v5')
            p('v_lshrrev_b32 v3, 11, v3')
            p('v_mul_u32_u24 v3, 1120, v3')
            p('v_lshlrev_b32 v5, 4, v5')
            p('v_add3_u32 v5, v5, v3, s61')
        else:
            p('v_lshlrev_b32 v5, 4, v5')
            p('v_add_u32 v5, s61, v5')
            if CFG['ZOOB']:
                p('v_cmp_lt_u32 vcc, 3440, v5')
            else:
                p('v_min_u32 v5, 3440, v5')
        p(f'v_add_u32 v{dst}, v4, v5')
        if (not attn) and CFG['ZOOB']:
            p(f'v_cndmask_b32 v{dst}, v{dst}, v9, vcc')
        if i == 4:
            p('s_cmp_lt_u32 s57, 2')
            p('s_cselect_b64 vcc, -1, 0')
            p(f'v_cndmask_b32 v{VOFF+4}, v8, v6, vcc')

    p('s_waitcnt lgkmcnt(0)')
    if attn:
        srd(p, SRD_X, S_AX, 2048 * 1280)
        srd(p, SRD_W, S_WQKV, 640 * 3840)
    else:
        srd(p, SRD_X, S_AX, 2048 * 1280)
        srd(p, SRD_W, S_W1, 640 * 3456)
    p('s_cmp_lt_u32 s57, 2')
    for k in range(3):
        p(f's_cselect_b32 s{SRD_I4+k}, s{SRD_X+k}, s{SRD_W+k}')
    p(f's_mov_b32 s{SRD_I4+3}, 0x20000')
    p('s_movk_i32 s73, 128')
    p('s_cselect_b32 s73, s73, %d' % (64 * rowstride))
    if CFG['ROT']:
        p(f's_and_b32 s79, s{S_RB}, 7')
        p('s_lshr_b32 s80, s79, 2')
        p('s_add_u32 s79, s79, s80')
        p(f's_and_b32 s80, s{S_CG}, 1')
        p(f's_lshl_b32 s81, s{S_TYPE}, 1')
        p('s_add_u32 s80, s80, s81')
        p('s_mul_i32 s80, s80, 5')
        p('s_lshr_b32 s80, s80, 1')
        p('s_add_u32 s79, s79, s80')
        p('s_cmp_ge_u32 s79, 10')
        p('s_cselect_b32 s80, 10, 0')
        p('s_sub_u32 s79, s79, s80')
    else:
        p('s_mov_b32 s79, 0')
    p('s_lshl_b32 s74, s79, 7')
    p(f's_mul_i32 s75, s79, {64*rowstride}')
    p('s_mul_i32 s76, s79, s73')
    p('s_lshl_b32 s77, s57, 10')

    def issue_stage(st, lazy=False):
        slot = st % 3
        ldf = CFG['LDF0'] if st < CFG['NT_ST'] else CFG['LDF']
        for i in range(12):
            if lazy and i >= 4:
                w_offset(i)
            p(f's_add_u32 m0, s77, {slot*SLOT + i*4096}')
            if i < 4:
                if i == 0:
                    p('s_nop 0')
                p(f'buffer_load_dwordx4 v{VOFF+i}, s[{SRD_X}:{SRD_X+3}], s74 offen {ldf} lds')
            elif i == 4:
                p(f'buffer_load_dwordx4 v{VOFF+i}, s[{SRD_I4}:{SRD_I4+3}], s76 offen {ldf} lds')
            else:
                p(f'buffer_load_dwordx4 v{VOFF+i}, s[{SRD_W}:{SRD_W+3}], s75 offen {ldf} lds')
        p('s_add_u32 s74, s74, 128')
        p(f's_add_u32 s75, s75, {64*rowstride}')
        p('s_add_u32 s76, s76, s73')
        if CFG['ROT']:
            p('s_add_u32 s79, s79, 1')
            p('s_cmp_eq_u32 s79, 10')
            for r in (79, 74, 75, 76):
                p(f's_cselect_b32 s{r}, 0, s{r}')

    stamp(p, 0)
    issue_stage(0, lazy=True)
    issue_stage(1)
    UF = CFG['UNITS_FFN']
    scr_base = SLOT if (UF and not attn) else SCR

    def unit_decode(sfx):
        p('s_and_b32 s64, s62, 7')
        p('s_lshr_b32 s65, s62, 3')
        p('s_lshl_b32 s66, s65, 5')
        p('s_mov_b32 s67, 16')
        p('s_mov_b32 s68, 4')
        p('s_mul_i32 s69, s64, 54')
        p('s_add_u32 s69, s69, s65')
        p('s_mul_i32 s69, s69, 5120')
        p(f's_add_u32 s69, s69, {W2_OFF}')
        p('s_mov_b32 s70, 0')
        p('s_cmp_lt_u32 s65, 54')
        p(f's_cbranch_scc1 L_unit_done_{tag}{sfx}')
        p('s_sub_u32 s65, s65, 54')
        p('s_mov_b32 s70, 1')
        p('s_mul_i32 s69, s64, 20')
        p('s_add_u32 s69, s69, s65')
        p('s_mul_i32 s69, s69, 5120')
        p(f's_add_u32 s69, s69, {WO_OFF}')
        p('s_mul_i32 s66, s65, 40')
        p('s_mov_b32 s67, 20')
        p('s_cmp_lt_u32 s65, 16')
        p(f's_cbranch_scc1 L_unit_done_{tag}{sfx}')
        p('s_sub_u32 s65, s65, 16')
        p('s_mul_i32 s66, s65, 160')
        p('s_add_u32 s66, s66, 16')
        p('s_mov_b32 s67, 80')
        p('s_mov_b32 s68, 20')
        p.label(f'L_unit_done_{tag}{sfx}')
        p('s_mul_i32 s71, s64, 160')
        p('s_movk_i32 s58, 1280')
        for i in range(5):
            p(f'v_add_u32 v3, {64*i}, v{VL}')
            p('v_mul_u32_u24 v4, 6554, v3')
            p('v_lshrrev_b32 v4, 16, v4')
            p('v_mul_u32_u24 v5, 10, v4')
            p('v_sub_u32 v5, v3, v5')
            p('v_lshlrev_b32 v5, 4, v5')
            p('v_add_u32 v5, s71, v5')
            p('v_lshrrev_b32 v3, 4, v4')
            p('v_mul_u32_u24 v3, s67, v3')
            p('v_bfe_u32 v6, v4, 2, 2')
            p('v_mul_u32_u24 v6, s68, v6')
            p('v_and_b32 v4, 3, v4')
            p('v_add3_u32 v3, v3, v6, v4')
            p('v_add_u32 v3, s66, v3')
            p('v_mul_u32_u24 v3, s58, v3')
            p(f'v_add_u32 v{22+i}, v3, v5')

    def unit_srd():
        p('s_cmp_eq_u32 s70, 0')
        p(f's_cselect_b32 s{SRD_A}, s{S_W2}, s{S_WO}')
        p(f's_cselect_b32 s{SRD_A+1}, s{S_W2+1}, s{S_WO+1}')
        p(f's_mov_b32 s{SRD_A+2}, {1728*1280}')
        p(f's_cselect_b32 s{SRD_A+2}, s{SRD_A+2}, {640*1280}')
        p(f's_mov_b32 s{SRD_A+3}, 0x20000')

    do_units = True
    NFU = CFG['NFU']
    always = UF and not attn and NFU == 4
    if UF:
        p(f's_lshl_b32 s62, s{S_RB}, 3')
        p(f's_add_u32 s62, s62, s{S_CG}')
        p('s_lshl_b32 s63, s57, 7')
        p('s_add_u32 s62, s62, s63')
        if not attn:
            p(f's_cmp_lt_u32 s57, {NFU}')
            p('s_cselect_b32 s63, 1, 0')
        else:
            p(f's_add_u32 s62, s62, {128*NFU}')
            p('s_cmp_lt_u32 s62, 592')
            p('s_cselect_b32 s63, 1, 0')
            p('s_cmp_lt_u32 s57, 3')
            p('s_cselect_b32 s63, s63, 0')
    else:
        p('s_lshl_b32 s62, s57, 8')
        p('s_add_u32 s62, s62, s2')
        p('s_cmp_lt_u32 s62, 592')
        p('s_cselect_b32 s63, 1, 0')
        p('s_cmp_lt_u32 s57, 3')
        p('s_cselect_b32 s63, s63, 0')
    if do_units:
        unit_decode('')
        p(f'v_lshrrev_b32 v3, 2, v{VL}')
        p('v_mul_u32_u24 v3, 160, v3')
        p('s_mul_i32 s72, s57, 5120')
        p(f's_add_u32 s72, s72, {scr_base}')
        p('v_add_u32 v3, s72, v3')
        p(f'v_and_b32 v4, 3, v{VL}')
        p('v_lshl_add_u32 v27, v4, 4, v3')
        p('v_lshl_add_u32 v28, v4, 3, v3')
        p(f'v_lshlrev_b32 v29, 4, v{VL}')
        p('v_add_u32 v30, 4096, v29')
    if not attn:
        p(f's_lshl_b32 s58, s{S_RB}, 3')
        p(f's_add_u32 s58, s58, s{S_CG}')
        p('s_lshl_b32 s58, s58, 4')
        p('s_lshl_b32 s59, s57, 2')
        p('s_add_u32 s58, s58, s59')
        p(f'v_lshrrev_b32 v3, 4, v{VL}')
        p('v_add_u32 v31, s58, v3')
        p('s_movk_i32 s58, 1280')
        p('v_mul_u32_u24 v3, s58, v31')
        p(f'v_and_b32 v4, 15, v{VL}')
        p('v_lshlrev_b32 v33, 4, v4')
        p('v_add_u32 v32, v3, v33')
    srd(p, SRD_WS, S_WS, WS_USED)
    if do_units:
        unit_srd()
    GX, GW = 40, 60
    gate = (not attn)
    TG = 10 if gate else 0
    if gate:
        srd(p, SRD_B, S_GW, 1280)

    def unit_loads():
        for i in range(5):
            p(f's_add_u32 m0, s72, {i*1024}')
            p('s_nop 0')
            p(f'buffer_load_dwordx4 v{22+i}, s[{SRD_A}:{SRD_A+3}], 0 offen {CFG["ULDF"]} lds')

    def unit_finish():
        for f in range(5):
            a, off = (27, [0, 8, 64, 72][f]) if f < 4 else (28, 128)
            p(f'ds_read_b64_tr_b16 v[{84+4*f}:{85+4*f}], v{a} offset:{off}')
            p(f'ds_read_b64_tr_b16 v[{86+4*f}:{87+4*f}], v{a} offset:{off+2560}')
        for f in range(5):
            p(f's_waitcnt lgkmcnt({8-2*f})')
            if f < 4:
                p(f'buffer_store_dwordx4 v[{84+4*f}:{87+4*f}], v29, s[{SRD_WS}:{SRD_WS+3}], s69 offen offset:{1024*f} {CFG["STF"]}')
            else:
                p(f'buffer_store_dwordx4 v[{84+4*f}:{87+4*f}], v30, s[{SRD_WS}:{SRD_WS+3}], s69 offen {CFG["STF"]}')

    def tail_loads():
        if not do_units:
            return
        if always:
            unit_loads()
        else:
            p('s_cmp_eq_u32 s63, 0')
            p(f's_cbranch_scc1 L_nounit_ld_{tag}')
            unit_loads()
            p.label(f'L_nounit_ld_{tag}')
        if gate:
            for j in range(5):
                p(f'buffer_load_dwordx4 v[{GX+4*j}:{GX+4*j+3}], v32, s[{SRD_X}:{SRD_X+3}], 0 offen offset:{256*j}')
                p(f'buffer_load_dwordx4 v[{GW+4*j}:{GW+4*j+3}], v33, s[{SRD_B}:{SRD_B+3}], 0 offen offset:{256*j}')

    def wait_vm(n_nounit, n_unit, uid):
        if always:
            n_nounit = n_unit
        if n_nounit == n_unit:
            p(f's_waitcnt vmcnt({n_unit})')
            return
        p('s_cmp_eq_u32 s63, 0')
        p(f's_cbranch_scc1 L_w{uid}a_{tag}')
        p(f's_waitcnt vmcnt({n_unit})')
        p(f's_branch L_w{uid}b_{tag}')
        p.label(f'L_w{uid}a_{tag}')
        p(f's_waitcnt vmcnt({n_nounit})')
        p.label(f'L_w{uid}b_{tag}')

    if CFG['TEARLY']:
        tail_loads()
        wait_vm(12 + TG, 12 + TG + 5, 'i')
    else:
        p('s_waitcnt vmcnt(12)')
    stamp(p, 1)
    p('s_barrier')
    issue_stage(2)
    for j in range(9):
        if CFG['TEARLY']:
            if j == 0:
                wait_vm(12 + TG, 12 + TG + 5, j)
            else:
                p('s_waitcnt vmcnt(%d)' % (12 if j <= 7 else 0))
        elif j <= 7:
            p('s_waitcnt vmcnt(12)')
        else:
            wait_vm(TG, TG + 5, j)
        p('s_barrier')
        if j + 3 <= 9 and not CFG['NOLOAD']:
            issue_stage(j + 3)
        if j == 7 and not CFG['TEARLY']:
            tail_loads()
        if j == 3 and CFG['TEARLY'] and gate:
            gate_job(p, GX, GW, store=False)
    stamp(p, 2)
    if CFG['K2PF']:
        p('s_cmp_eq_u32 s57, 3')
        p(f's_cbranch_scc0 L_nok2pf_{tag}')
        p(f'v_mov_b32 v34, v{VL}')
        code_prefetch(p, 'gm_k2_kernel', 'L_k2_end', 12288, 34, 255, 84, 'k2pf' + tag)
        p.label(f'L_nok2pf_{tag}')
    if do_units:
        p('s_waitcnt vmcnt(0)')
        if always:
            unit_finish()
        else:
            p('s_cmp_eq_u32 s63, 0')
            p(f's_cbranch_scc1 L_nounit_{tag}')
            unit_finish()
            p.label(f'L_nounit_{tag}')
    if gate:
        if CFG['TEARLY']:
            gate_store(p)
        else:
            gate_job(p, GX, GW)
    stamp(p, 3)
    if CFG['PROF']:
        prof_store(p, 4, 'LD' + tag, SRD_WS)
    p('s_endpgm')


def prof_debug(p, n, tag, sbase=90):
    p('s_waitcnt lgkmcnt(0) vmcnt(0)')
    p('s_and_b32 s86, s2, 127')
    p('s_cmp_eq_u32 s86, 0')
    p(f's_cbranch_scc0 L_pd_{tag}')
    p(f's_and_b32 s86, s{S_WAVE}, 3')
    p('s_cmp_eq_u32 s86, 0')
    p(f's_cbranch_scc0 L_pd_{tag}')
    p('s_load_dwordx2 s[76:77], s[0:1], 80')
    p('s_waitcnt lgkmcnt(0)')
    p('s_mov_b32 s78, 256')
    p('s_mov_b32 s79, 0x20000')
    p('s_lshr_b32 s86, s2, 7')
    p('s_lshl_b32 s86, s86, 1')
    p(f's_lshr_b32 s85, s{S_WAVE}, 2')
    p('s_add_u32 s86, s86, s85')
    p('s_lshl_b32 s86, s86, 4')
    p('v_mov_b32 v1, 0')
    for i in range(n):
        p(f's_sub_u32 s85, s{sbase+2*i}, s88')
        p('v_mov_b32 v0, s85')
        p(f'buffer_store_dword v0, v1, s[76:79], s86 offen offset:{4*i}')
    p('s_waitcnt vmcnt(0)')
    p.label(f'L_pd_{tag}')


_pd = [0]


def prof_store(p, n, tag, srdws, sbase=90):
    if CFG['PROF'] == 4:
        _pd[0] += 1
        return prof_debug(p, n, tag + str(_pd[0]), sbase)
    return prof_store_ws(p, n, tag, srdws, sbase)


def prof_store_ws(p, n, tag, srdws, sbase=90):
    p('s_memtime s[80:81]')
    p('s_memrealtime s[78:79]')
    p('s_waitcnt lgkmcnt(0) vmcnt(0)')
    p('s_sub_u32 s80, s80, s82')
    p('s_sub_u32 s78, s78, s88')
    p(f's_mov_b32 s{srdws+2}, 0x10000000')
    p(f's_lshl_b32 s86, s2, 3')
    p(f's_add_u32 s86, s86, s{S_WAVE}')
    p(f's_lshl_b32 s86, s86, 6')
    p(f's_add_u32 s86, s86, {PROF_OFF + (0 if not tag.startswith("K2") else (1 << 20))}')
    if CFG['PROF'] == 3:
        p(f's_lshl_b32 s85, s2, 3')
        p(f's_add_u32 s85, s85, s{S_WAVE}')
        p(f's_lshl_b32 s85, s85, 8')
        p(f's_add_u32 s85, s85, {PROF_OFF + (2 << 20)}')
        p('v_mbcnt_lo_u32_b32 v0, -1, 0')
        p('v_mbcnt_hi_u32_b32 v0, -1, v0')
        p('v_lshlrev_b32 v0, 2, v0')
        if not tag.startswith('K2'):
            p(f'buffer_store_dword v254, v0, s[{srdws}:{srdws+3}], s85 offen')
    p('v_mov_b32 v1, 0')
    p('v_mov_b32 v0, s88')
    p(f'buffer_store_dword v0, v1, s[{srdws}:{srdws+3}], s86 offen offset:60')
    p('v_mov_b32 v0, s80')
    p(f'buffer_store_dword v0, v1, s[{srdws}:{srdws+3}], s86 offen offset:56')
    p('v_mov_b32 v0, s78')
    p(f'buffer_store_dword v0, v1, s[{srdws}:{srdws+3}], s86 offen offset:52')
    for i in range(n):
        p(f'v_mov_b32 v0, s{sbase+2*i}')
        p(f'buffer_store_dword v0, v1, s[{srdws}:{srdws+3}], s86 offen offset:{4*i}')
    p('s_waitcnt vmcnt(0)')


def gate_store(p):
    p(f'buffer_store_dwordx2 v[38:39], v37, s[{SRD_WS}:{SRD_WS+3}], 0 offen {CFG["STF"]}')


def gate_job(p, GX, GW, store=True):
    T = 104
    p('v_mov_b32 v34, 0')
    p('v_mov_b32 v35, 0')
    p('v_mov_b32 v36, 0x3f803f80')
    p('s_mov_b32 s78, 0xffff0000')
    for d in range(20):
        x, w = GX + d, GW + d
        t = T + 6 * (d & 1)
        p(f'v_lshlrev_b32 v{t}, 16, v{x}')
        p(f'v_and_b32 v{t+1}, s78, v{x}')
        p(f'v_lshlrev_b32 v{t+2}, 16, v{w}')
        p(f'v_and_b32 v{t+3}, s78, v{w}')
        p(f'v_pk_mul_f32 v[{t}:{t+1}], v[{t}:{t+1}], v[{t+2}:{t+3}]')
        p(f'v_cvt_pk_bf16_f32 v{t+4}, v{t}, v{t+1}')
        acc = 34 + (d & 1)
        p(f'v_dot2_f32_bf16 v{acc}, v{t+4}, v36, v{acc}')
    p('v_add_f32 v34, v34, v35')
    for sh in (8, 4, 2, 1):
        p(f'v_add_f32_dpp v34, v34, v34 row_ror:{sh} row_mask:0xf bank_mask:0xf')
    p('v_cvt_pk_bf16_f32 v35, v34, v34')
    p('v_lshlrev_b32 v35, 16, v35')
    p(f'v_mul_f32 v35, {hexf(-math.log2(math.e))}, v35')
    p('v_exp_f32 v35, v35')
    p('v_add_f32 v35, 1.0, v35')
    p('v_rcp_f32 v35, v35')
    p('v_cvt_pk_bf16_f32 v35, v35, v35')
    p('v_lshlrev_b32 v38, 16, v35')
    p('v_sub_f32 v39, 1.0, v38')
    p('v_cvt_pk_bf16_f32 v39, v39, v39')
    p('v_lshlrev_b32 v39, 16, v39')
    p('v_lshlrev_b32 v37, 3, v31')
    p(f'v_add_u32 v37, {G_OFF}, v37')
    if store:
        gate_store(p)


A_QM = lambda h, t: 0 + (h * 4 + t) * 4
A_KM = lambda h, kt: 32 + (h * 5 + kt) * 4
A_QKT = lambda kt: 72 + 4 * kt
A_VM = lambda h, kt: 92 + (h * 5 + kt) * 4
A_VT = lambda kt: 132 + 4 * kt
WF = lambda f: 152 + 4 * f
XF = lambda b, t: 184 + 20 * b + 4 * t
V_X0, V_X1, V_W, V_WA, V_WB = 224, 225, 226, 227, 228
V_BPREV, V_BCUR, V_BFIRST, V_SEL = 232, 236, 240, 244
F_ACC = lambda f, t: (f * 4 + t) * 4


class LgkmTracker:
    def __init__(self, p):
        self.p = p
        self.q = []

    def issue(self, tag):
        self.q.append(tag)

    def need(self, tags):
        idx = -1
        for i, t in enumerate(self.q):
            if t in tags:
                idx = i
        if idx < 0:
            return
        n = len(self.q) - 1 - idx
        self.p(f's_waitcnt lgkmcnt({min(n, 15)})')
        keep = min(n, 15)
        self.q = self.q[len(self.q) - keep:] if keep else []

    def drain(self):
        self.p('s_waitcnt lgkmcnt(0)')
        self.q = []


def consumer_loop(p, attn, th=None):
    tag = ('A' if attn else 'F') + ('' if th is None else str(th))
    NT = 5 if attn else 4
    xoff = lambda t: 2048 * t
    if attn:
        kk = range(5) if th in (None, 0) else range(1, 5)
        vk = range(5) if th in (None, 1) else range(1, 5)
        if th == 1:
            xoff = lambda t: 0 if t == 0 else 8192 + 2048 * t
        tiles = []
        for h in range(2):
            tiles.append([(A_QM(h, t), t + 1, 'F') for t in range(4)])
        for h in range(2):
            tiles.append([(A_KM(h, k), k, 'F') for k in kk])
        tiles.append([(A_QKT(k), k, 'F') for k in kk])
        for h in range(2):
            tiles.append([(A_VM(h, k), k, 'T') for k in vk])
        tiles.append([(A_VT(k), k, 'T') for k in vk])
        waddr = [(V_W, 0), (V_W, 40), (V_W, 160), (V_W, 200), (V_WA, 0), (V_W, 320), (V_W, 360), (V_WB, 0)]
    else:
        tiles = [[(F_ACC(f, t), t, 'F') for t in range(4)] for f in range(7)]
        waddr = [(V_W, 32 * f) for f in range(6)] + [(V_WA, 0)]
    NF = len(tiles)

    lg = LgkmTracker(p)

    def rd_w(f, s):
        if CFG['NODS']:
            return
        a, off = waddr[f]
        off += s * 32 * WROW
        p(f'ds_read_b64_tr_b16 v[{WF(f)}:{WF(f)+1}], v{a} offset:{off}')
        lg.issue(('w', f))
        p(f'ds_read_b64_tr_b16 v[{WF(f)+2}:{WF(f)+3}], v{a} offset:{off + 8*WROW}')
        lg.issue(('w', f))

    def rd_x(t, s):
        if CFG['NODS']:
            return
        p(f'ds_read_b128 v[{XF(s,t)}:{XF(s,t)+3}], v{V_X1 if s else V_X0} offset:{2048*t}')
        lg.issue(('x', s, t))

    LAST = NF - 1

    def wreads(f, s):
        a, off = waddr[f]
        off += s * 32 * WROW
        return [(f'ds_read_b64_tr_b16 v[{WF(f)}:{WF(f)+1}], v{a} offset:{off}', ('w', f)),
                (f'ds_read_b64_tr_b16 v[{WF(f)+2}:{WF(f)+3}], v{a} offset:{off + 8*WROW}', ('w', f))]

    def xread(t, s):
        return (f'ds_read_b128 v[{XF(s,t)}:{XF(s,t)+3}], v{V_X1 if s else V_X0} offset:{xoff(t)}', ('x', s, t))

    def emit(item):
        if CFG['NODS']:
            return
        p(item[0])
        lg.issue(item[1])

    order_log = []

    def packing():
        cv = lambda d, a: f'v_cvt_pk_bf16_f32 v{d}, v{a}, v{a+1}'
        out = []
        for h in range(2):
            for t in range(4):
                b = A_QM(h, t)
                out += [(h, cv(b, b)), (h, cv(b + 1, b + 2))]
        for h in range(2):
            for kt in kk:
                b = A_KM(h, kt)
                out += [(2 + h, cv(b, b)), (2 + h, cv(b + 1, b + 2))]
        for kt in kk:
            t = A_QKT(kt)
            out += [(4, cv(t, t)), (4, cv(t + 1, t + 2))]
        for kt in kk:
            t, k0 = A_QKT(kt), A_KM(0, kt)
            out += [(4, f'v_mov_b32 v{k0+2}, v{t}'), (4, f'v_mov_b32 v{k0+3}, v{t+1}')]
        return out

    def step(s, dry=False, last=False):
        nxt = 1 - s
        q = wreads(LAST, s)
        xq = [xread(t, nxt) for t in range(NT)]
        held = []
        upd = [V_W, V_X0, V_X1, V_WA] + ([V_WB] if attn else [])
        pk = []
        if last:
            xq, upd = [], []
            pk = packing() if attn else []
        for f in range(NF):
            if not dry:
                lg.need({('w', f)} | ({('x', s, t) for t in range(NT)} if f == 0 else set()))
            for n, (acc, t, o) in enumerate(tiles[f]):
                w, x = f'v[{WF(f)}:{WF(f)+3}]', f'v[{XF(s,t)}:{XF(s,t)+3}]'
                a, b = (w, x) if o == 'F' else (x, w)
                if not CFG['NOMFMA'] and not dry:
                    p(f'v_mfma_f32_16x16x32_bf16 v[{acc}:{acc+3}], {a}, {b}, v[{acc}:{acc+3}]')
                item = None
                if q:
                    item = q.pop(0)
                elif xq and (s == 0 or f >= 2):
                    item = xq.pop(0)
                if item is not None:
                    if dry:
                        order_log.append(item)
                    else:
                        emit(item)
                if not dry and s == 0 and f == LAST and n == 1:
                    p(f's_add_u32 s53, s53, {SLOT}')
                    p(f's_cmp_eq_u32 s53, {3*SLOT}')
                if not dry and s == 0 and f == LAST and n == 2:
                    p(f's_cselect_b32 s54, s51, {SLOT}')
                    p('s_cselect_b32 s53, 0, s53')
                if not dry and s == 1 and item is None and upd and (f, n) >= (0, 2):
                    p(f'v_add_u32 v{upd[0]}, s54, v{upd[0]}')
                    upd.pop(0)
                for _ in range(2):
                    if pk and pk[0][0] + 2 <= f:
                        p(pk.pop(0)[1])
            if f < LAST and not last:
                rs = wreads(f, nxt)
                if s == 1 and f < 1:
                    held += rs
                elif s == 1 and f == 1:
                    assert not q
                    if not dry:
                        assert not upd
                        if CFG['PROF'] == 3:
                            p('s_memtime s[70:71]')
                        lg.drain()
                        if CFG['PROF'] == 3:
                            p('s_lshl_b32 m0, s52, 1')
                            p('s_nop 3')
                            p('v_writelane_b32 v254, s70, m0')
                            p('s_add_u32 s74, m0, 63')
                            p('s_and_b32 m0, s74, 63')
                            p('s_nop 3')
                            p('v_writelane_b32 v254, s72, m0')
                        if CFG['PEEL']:
                            p('s_barrier')
                        else:
                            p('s_cmp_eq_u32 s52, 9')
                            p(f's_cbranch_scc1 L_nobar_{tag}')
                            p('s_barrier')
                            p.label(f'L_nobar_{tag}')
                        if CFG['PROF'] == 3:
                            p('s_memtime s[72:73]')
                    q += held + rs
                    held = []
                else:
                    q += rs
        assert not q and not xq, (q, xq)
        for _, ins in pk:
            p(ins)

    step(1, dry=True)
    for item in order_log[2:]:
        emit(item)
    p('s_mov_b32 s52, 0')
    p('s_mov_b32 s53, 0')
    p(f's_mov_b32 s51, {(-2*SLOT) & 0xffffffff}')
    p.label(f'L_loop_{tag}')
    q_head = list(lg.q)
    step(0)
    step(1)
    q_end = list(lg.q)
    assert q_end == q_head, (q_end, q_head)
    p('s_add_u32 s52, s52, 1')
    p(f's_cmp_lt_u32 s52, {9 if CFG["PEEL"] else 10}')
    p(f's_cbranch_scc1 L_loop_{tag}')
    if CFG['PEEL']:
        step(0)
        step(1, last=True)
    lg.drain()


def check_loop_waits():
    pass


def tlb_touch(p, tag):
    if not CFG['TT']:
        return
    p(f's_cmp_eq_u32 s{S_WAVE}, 1')
    p(f's_cbranch_scc0 L_tt1{tag}')
    for i in range(7):
        p(f's_mov_b32 s70, {i << 21}')
        p(f's_load_dword s{71+i}, s[{S_WS}:{S_WS+1}], s70')
    p.label(f'L_tt1{tag}')
    p(f's_cmp_eq_u32 s{S_WAVE}, 2')
    p(f's_cbranch_scc0 L_tt2{tag}')
    p(f's_load_dword s71, s[{S_WO}:{S_WO+1}], 0')
    p(f's_load_dword s72, s[{S_W2}:{S_W2+1}], 0')
    p(f's_mov_b32 s70, {(1 << 21) + 4096}')
    p(f's_load_dword s73, s[{S_W2}:{S_W2+1}], s70')
    p(f's_load_dword s74, s[{S_GW}:{S_GW+1}], 0')
    p(f's_load_dword s75, s[{S_B2}:{S_B2+1}], 0')
    p('s_load_dword s76, s[100:101], 0')
    p('s_load_dword s77, s[100:101], s70')
    p.label(f'L_tt2{tag}')


def prefetch_setup(p, attn):
    rowstride = 3840 if attn else 3456
    p(f's_lshl_b32 s57, s{S_WAVE}, 6')
    p('v_add_u32 v9, s57, v2')
    p(f's_and_b32 s57, s{S_RB}, 7')
    p('s_lshl_b32 s57, s57, 3')
    p('s_add_u32 s57, s57, 128')
    p(f's_mov_b32 s58, {rowstride}')
    if attn:
        p(f's_mul_i32 s59, s{S_CG}, 160')
        p('s_andn2_b32 s59, s59, 127')
        for rnd in range(2):
            p(f'v_add_u32 v3, {256*rnd}, v9')
            p('v_min_u32 v3, 383, v3')
            p('v_mul_u32_u24 v4, 1366, v3')
            p('v_lshrrev_b32 v4, 16, v4')
            p('v_mul_u32_u24 v5, 48, v4')
            p('v_sub_u32 v5, v3, v5')
            p('v_mul_u32_u24 v6, 43, v5')
            p('v_lshrrev_b32 v6, 8, v6')
            p('v_mul_u32_u24 v7, 6, v6')
            p('v_sub_u32 v7, v5, v7')
            p('v_lshl_add_u32 v4, v4, 6, v6')
            p('v_add_u32 v4, s57, v4')
            p('v_mul_u32_u24 v4, s58, v4')
            p('v_lshrrev_b32 v5, 1, v7')
            p('v_mul_u32_u24 v5, 1280, v5')
            p('v_and_b32 v7, 1, v7')
            p('v_lshl_add_u32 v5, v7, 7, v5')
            p(f'v_add3_u32 v{249+rnd}, v4, v5, s59')
    else:
        p(f's_mul_i32 s59, s{S_CG}, 448')
        p('s_andn2_b32 s59, s59, 127')
        p('v_lshrrev_b32 v4, 5, v9')
        p('v_bfe_u32 v6, v9, 2, 3')
        p('v_lshl_add_u32 v4, v4, 6, v6')
        p('v_add_u32 v4, s57, v4')
        p('v_mul_u32_u24 v4, s58, v4')
        p('v_and_b32 v7, 3, v9')
        p('v_lshlrev_b32 v7, 7, v7')
        p('v_add3_u32 v249, v4, v7, s59')
    p(f's_and_b32 s57, s{S_CG}, 1')
    p(f's_lshl_b32 s58, s{S_TYPE}, 1')
    p('s_add_u32 s57, s57, s58')
    p('s_lshl_b32 s57, s57, 5')
    p(f's_lshl_b32 s58, s{S_RB}, 7')
    p('s_add_u32 s57, s57, s58')
    p('v_and_b32 v4, 31, v9')
    p('v_add_u32 v4, s57, v4')
    p('v_mul_u32_u24 v4, 1280, v4')
    p('v_lshrrev_b32 v5, 5, v9')
    p('v_lshlrev_b32 v5, 7, v5')
    p('v_add3_u32 v251, v4, v5, 256' .replace(', 256', ', s99'))


def prefetch_issue(p, attn):
    if not CFG['PF']:
        return
    p(f'buffer_load_dword v255, v251, s[{SRD_X}:{SRD_X+3}], 0 offen {CFG["PFF"]}')
    p(f'buffer_load_dword v255, v249, s[{SRD_W}:{SRD_W+3}], 0 offen {CFG["PFF"]}')
    if attn:
        p(f'buffer_load_dword v255, v250, s[{SRD_W}:{SRD_W+3}], 0 offen {CFG["PFF"]}')


def attn_prologue(p):
    p(f's_and_b32 s55, s{S_WAVE}, 1')
    p(f's_lshr_b32 s56, s{S_WAVE}, 1')
    p('v_and_b32 v3, 15, v2')
    p('v_lshrrev_b32 v4, 4, v2')
    p('v_lshrrev_b32 v5, 1, v3')
    p('v_xor_b32 v5, v5, v4')
    p('v_lshlrev_b32 v5, 4, v5')
    p('v_lshl_add_u32 v5, v3, 7, v5')
    if CFG['M35']:
        p(f'v_mov_b32 v{V_X0}, v5')
    else:
        p('s_lshl_b32 s57, s56, 13')
        p(f'v_add_u32 v{V_X0}, s57, v5')
    p(f'v_xor_b32 v{V_X1}, 64, v{V_X0}')
    p('v_lshrrev_b32 v5, 5, v2')
    p('v_lshlrev_b32 v5, 4, v5')
    p('v_bfe_u32 v6, v2, 4, 1')
    p('v_lshl_add_u32 v5, v6, 2, v5')
    p('v_bfe_u32 v6, v2, 2, 2')
    p('v_add_u32 v5, v5, v6')
    p(f'v_mul_u32_u24 v5, {WROW}, v5')
    p('s_mul_i32 s57, s55, 80')
    p(f's_add_u32 s57, s57, {XREG}')
    p('v_add_u32 v5, s57, v5')
    p('v_and_b32 v6, 3, v2')
    p(f'v_lshl_add_u32 v{V_W}, v6, 3, v5')
    p('v_and_b32 v7, 1, v6')
    p('v_mul_u32_u24 v7, 40, v7')
    p('v_add_u32 v7, v7, v5')
    p('v_lshrrev_b32 v6, 1, v6')
    p('v_mul_u32_u24 v6, 160, v6')
    p(f'v_add3_u32 v{V_WA}, v7, v6, 32')
    p(f'v_add_u32 v{V_WB}, 352, v7')
    p('v_lshlrev_b32 v5, 2, v4')
    p('v_sub_u32 v5, v3, v5')
    p(f's_mov_b32 s58, {hexf(-1e30)}')
    p('v_mov_b32 v8, s58')
    p(f's_or_b32 s59, s{S_RB}, s56')
    p('s_cmp_eq_u32 s59, 0')
    p('s_cselect_b64 s[60:61], -1, 0')
    for r in range(4):
        p(f'v_subrev_u32 v6, {r}, v5')
        p('v_and_b32 v7, 1, v6')
        p('v_cmp_eq_u32 s[62:63], 0, v7')
        p('v_cmp_ge_i32 s[64:65], v6, 0')
        p('s_and_b64 s[66:67], s[62:63], s[64:65]')
        p('s_andn2_b64 s[68:69], s[62:63], s[64:65]')
        p(f'v_cndmask_b32 v{V_BCUR+r}, v8, 0, s[66:67]')
        p(f'v_cndmask_b32 v{V_BPREV+r}, v8, 0, s[68:69]')
        p(f'v_cndmask_b32 v{V_BFIRST+r}, v{V_BPREV+r}, v8, s[60:61]')
    p('v_and_b32 v7, 1, v3')
    p('v_cmp_eq_u32 s[62:63], 0, v7')
    for k, (lo, hi) in enumerate([(0x0c0c0100, 0x01000c0c), (0x0c0c0302, 0x03020c0c)]):
        p(f'v_mov_b32 v6, {hex(hi)}')
        p(f'v_mov_b32 v9, {hex(lo)}')
        p('v_cndmask_b32 v9, v6, v9, s[62:63]')
        p('v_sub_u32 v6, v5, v7')
        if k:
            p('v_subrev_u32 v6, 2, v6')
        p('v_cmp_ge_i32 s[64:65], v6, 0')
        p('v_mov_b32 v6, 0x0c0c0c0c')
        p(f'v_cndmask_b32 v{V_SEL+k}, v9, v6, s[64:65]')
        p(f'v_cndmask_b32 v{V_SEL+2+k}, v6, v9, s[64:65]')
    p('v_lshlrev_b32 v248, 4, v2')
    if CFG['M35']:
        p('s_lshl_b32 s57, s55, 13')
        p(f's_add_u32 s57, s57, {2*SLOT}')
        p('v_add_u32 v249, s57, v248')
        p('v_lshrrev_b32 v250, 1, v248')
        p('v_add_u32 v250, s57, v250')
        p('s_lshl_b32 s57, s55, 3')
        p(f's_add_u32 s57, s57, {XFLAG}')
        p('v_mov_b32 v251, s57')
        p('v_mov_b32 v252, 0')
        p('v_mov_b32 v253, 0')
        p('ds_write_b64 v251, v[252:253]')
    for r in range(152):
        p(f'v_mov_b32 v{r}, 0')


def attn_epilogue(p, th=None):
    cvt = lambda d, a: p(f'v_cvt_pk_bf16_f32 v{d}, v{a}, v{a+1}')
    tg = '' if th is None else str(th)
    kk = list(range(5)) if th in (None, 0) else [1, 2, 3, 4]
    vk = list(range(5)) if th in (None, 1) else [1, 2, 3, 4]
    p('s_nop 7')

    def pack_k(kts):
        if CFG['PEEL']:
            return
        for kt in kts:
            for h in range(2):
                b = A_KM(h, kt)
                cvt(b, b)
                cvt(b + 1, b + 2)
            t = A_QKT(kt)
            cvt(t, t)
            cvt(t + 1, t + 2)
        for kt in kts:
            t, k0 = A_QKT(kt), A_KM(0, kt)
            p(f'v_mov_b32 v{k0+2}, v{t}')
            p(f'v_mov_b32 v{k0+3}, v{t+1}')

    def tails_k(kts):
        for kt in kts:
            t, k0 = A_QKT(kt), A_KM(0, kt)
            p(f'v_permlane32_swap_b32 v{t}, v{k0+2}')
            p(f'v_permlane32_swap_b32 v{t+1}, v{k0+3}')

    def copy_k(kts):
        for kt in kts:
            k0, k1 = A_KM(0, kt), A_KM(1, kt)
            p(f'v_mov_b32 v{k1+2}, v{k0+2}')
            p(f'v_mov_b32 v{k1+3}, v{k0+3}')

    def pack_v():
        for kt in vk:
            for base, b in ((A_VM(0, 0), A_VM(0, kt)), (A_VM(1, 0), A_VM(1, kt)), (A_VT(0), A_VT(kt))):
                cvt(base + 2 * kt, b)
                cvt(base + 2 * kt + 1, b + 2)

    vbases = (A_VM(0, 0), A_VM(1, 0), A_VT(0))
    if th == 0:
        pack_k([4])
        pack_v()
        tails_k([4])
        rest = [0, 1, 2, 3]
        pack_k(rest[:1])
        copy_k([4])
        p(f'ds_write_b128 v249, v[{A_KM(0,4)}:{A_KM(0,4)+3}]')
        p(f'ds_write_b128 v249, v[{A_KM(1,4)}:{A_KM(1,4)+3}] offset:1024')
        for i, vb in enumerate(vbases):
            p(f'ds_write_b64 v250, v[{vb+8}:{vb+9}] offset:{2048 + 512*i}')
        pack_k(rest[1:])
        p('s_waitcnt lgkmcnt(0)')
        p('v_mov_b32 v252, 1')
        p('ds_write_b32 v251, v252')
        tails_k(rest)
    elif th == 1:
        pack_v()
        for i, vb in enumerate(vbases):
            p(f'ds_write_b64 v250, v[{vb}:{vb+1}] offset:{4096 + 512*i}')
        rest = [1, 2, 3, 4]
        pack_k(rest)
        p('s_waitcnt lgkmcnt(0)')
        p('v_mov_b32 v252, 1')
        p('ds_write_b32 v251, v252 offset:4')
        tails_k(rest)
    else:
        rest = [0, 1, 2, 3, 4]
        pack_k(rest)
        pack_v()
        tails_k(rest)
    for h in range(2):
        for t in range(4):
            b = A_QM(h, t)
            if not CFG['PEEL']:
                cvt(b, b)
                cvt(b + 1, b + 2)
    copy_k(rest)
    p('s_mov_b32 s60, 0x0000ffff')
    p('s_mov_b32 s61, 0')
    p('s_mov_b32 s62, 0xffff0000')
    p('s_mov_b32 s63, 0')
    for t in range(4):
        for h in range(2):
            q, x = A_QM(h, t), A_QKT(t + 1)
            p(f'v_cndmask_b32 v{q+2}, 0, v{x}, s[{60+2*h}:{61+2*h}]')
            p(f'v_cndmask_b32 v{q+3}, 0, v{x+1}, s[{60+2*h}:{61+2*h}]')
    S = lambda t, h: 152 + (t * 2 + h) * 8

    def qk(t):
        for h in range(2):
            q = A_QM(h, t)
            bp = V_BFIRST if t == 0 else V_BPREV
            kp, kc = A_KM(h, t), A_KM(h, t + 1)
            p(f'v_mfma_f32_16x16x32_bf16 v[{S(t,h)}:{S(t,h)+3}], v[{kp}:{kp+3}], v[{q}:{q+3}], v[{bp}:{bp+3}]')
            p(f'v_mfma_f32_16x16x32_bf16 v[{S(t,h)+4}:{S(t,h)+7}], v[{kc}:{kc+3}], v[{q}:{q+3}], v[{V_BCUR}:{V_BCUR+3}]')

    for t in (3, 2, 1):
        qk(t)
    if th is not None:
        p.label(f'L_xspin{th}')
        p(f'ds_read_b32 v252, v251 offset:{4 if th == 0 else 0}')
        p('s_waitcnt lgkmcnt(0)')
        p('v_readfirstlane_b32 s70, v252')
        p('s_cmp_eq_u32 s70, 0')
        p(f's_cbranch_scc1 L_xspin{th}')
        if th == 1:
            p(f'ds_read_b128 v[{A_KM(0,0)}:{A_KM(0,0)+3}], v249')
            p(f'ds_read_b128 v[{A_KM(1,0)}:{A_KM(1,0)+3}], v249 offset:1024')
        for i, vb in enumerate(vbases):
            p(f'ds_read_b64 v[{vb}:{vb+1}], v250 offset:{(2048 if th == 1 else 4096) + 512*i}')
        p('s_waitcnt lgkmcnt(0)')
    qk(0)
    cs = (20 ** -0.5) * math.log2(math.e)
    p(f's_mov_b32 s64, {hexf(cs)}')
    inst = [(t, h) for t in range(4) for h in range(2)]
    for (t, h) in inst:
        s = S(t, h)
        p(f'v_max3_f32 v{s}, v{s}, v{s+1}, v{s+4}')
        p(f'v_max3_f32 v{s+2}, v{s+2}, v{s+3}, v{s+6}')
    for (t, h) in inst:
        s = S(t, h)
        p(f'v_max_f32 v{s}, v{s}, v{s+5}')
        p(f'v_max_f32 v{s+1}, v{s+2}, v{s+7}')
    for (t, h) in inst:
        s = S(t, h)
        p(f'v_max_f32 v{s+2}, v{s}, v{s+1}')

    def cross(groups, op, mid):
        for (A, B, C, D) in groups:
            p(f'v_permlane32_swap_b32 v{A}, v{B}')
            p(f'v_permlane32_swap_b32 v{C}, v{D}')
        for (A, B, C, D) in groups:
            p(f'{op} v{A}, v{A}, v{B}')
            p(f'{op} v{C}, v{C}, v{D}')
        for (A, B, C, D) in groups:
            p(f'v_permlane16_swap_b32 v{A}, v{C}')
        for (A, B, C, D) in groups:
            p(f'{op} v{A}, v{A}, v{C}')
        for (A, B, C, D) in groups:
            mid(A)
        for (A, B, C, D) in groups:
            p(f'v_mov_b32 v{C}, v{A}')
        for (A, B, C, D) in groups:
            p(f'v_permlane16_swap_b32 v{A}, v{C}')
        for (A, B, C, D) in groups:
            p(f'v_mov_b32 v{B}, v{A}')
            p(f'v_mov_b32 v{D}, v{C}')
        for (A, B, C, D) in groups:
            p(f'v_permlane32_swap_b32 v{A}, v{B}')
            p(f'v_permlane32_swap_b32 v{C}, v{D}')

    grp = lambda o: [tuple(S(t, h) + o for (t, h) in inst[0:4]), tuple(S(t, h) + o for (t, h) in inst[4:8])]
    cross(grp(2), 'v_max_f32', lambda A: p(f'v_mul_f32 v{A}, s64, v{A}'))
    for (t, h) in inst:
        s = S(t, h)
        p(f'v_fma_f32 v{s}, v{s}, s64, -v{s+2}')
        p(f'v_fma_f32 v{s+1}, v{s+1}, s64, -v{s+2}')
    for (t, h) in inst:
        s = S(t, h)
        p(f'v_exp_f32 v{s}, v{s}')
        p(f'v_exp_f32 v{s+1}, v{s+1}')
    for (t, h) in inst:
        s = S(t, h)
        p(f'v_add_f32 v{s+2}, v{s}, v{s+1}')
    cross(grp(2), 'v_add_f32', lambda A: p(f'v_rcp_f32 v{A}, v{A}'))
    for (t, h) in inst:
        s = S(t, h)
        p(f'v_mul_f32 v{s}, v{s}, v{s+2}')
        p(f'v_mul_f32 v{s+1}, v{s+1}, v{s+2}')
    for (t, h) in inst:
        s = S(t, h)
        p(f'v_cvt_pk_bf16_f32 v{s+2}, v{s}, v{s+1}')
    for (t, h) in inst:
        s = S(t, h)
        p(f'v_perm_b32 v{s+4}, v{s+2}, v{s+2}, v{V_SEL}')
        p(f'v_perm_b32 v{s+5}, v{s+2}, v{s+2}, v{V_SEL+1}')
        p(f'v_perm_b32 v{s+6}, v{s+2}, v{s+2}, v{V_SEL+2}')
        p(f'v_perm_b32 v{s+7}, v{s+2}, v{s+2}, v{V_SEL+3}')
    for (t, h) in inst:
        s = S(t, h)
        va = A_VM(h, 0) + 2 * t
        vt = A_VT(0) + 2 * t
        om, ot = A_QM(h, t), A_KM(h, t)
        p(f'v_mfma_f32_16x16x32_bf16 v[{om}:{om+3}], v[{va}:{va+3}], v[{s+4}:{s+7}], 0')
        p(f'v_mfma_f32_16x16x32_bf16 v[{ot}:{ot+3}], v[{vt}:{vt+3}], v[{s+4}:{s+7}], 0')
    p(f's_lshl_b32 s65, s{S_RB}, 3')
    p('s_lshl_b32 s66, s56, 2')
    p('s_add_u32 s65, s65, s66')
    p('s_mul_i32 s66, s65, 20')
    p(f's_lshl_b32 s67, s{S_CG}, 1')
    p('s_add_u32 s67, s67, s55')
    p('s_add_u32 s66, s66, s67')
    p('s_lshl_b32 s66, s66, 10')
    p(f's_add_u32 s66, s66, {OA_OFF}')
    p(f's_and_b32 s67, s{S_CG}, 1')
    p('s_lshl_b32 s67, s67, 1')
    p('s_add_u32 s67, s67, s65')
    p('s_mul_i32 s67, s67, 20')
    p(f's_lshr_b32 s68, s{S_CG}, 1')
    p('s_add_u32 s67, s67, s68')
    p('s_add_u32 s67, s67, 16')
    p('s_lshl_b32 s67, s67, 10')
    p('s_lshl_b32 s68, s55, 9')
    p('s_add_u32 s67, s67, s68')
    p(f's_add_u32 s67, s67, {OA_OFF}')
    for t in range(4):
        for h in range(2):
            o = A_QM(h, t)
            d = S(t, 0) + 2 * h
            p(f'v_cvt_pk_bf16_f32 v{d}, v{o}, v{o+1}')
            p(f'v_cvt_pk_bf16_f32 v{d+1}, v{o+2}, v{o+3}')
        d = S(t, 0)
        p(f'buffer_store_dwordx4 v[{d}:{d+3}], v248, s[{SRD_WS}:{SRD_WS+3}], s66 offen {CFG["STF"]}')
        p('s_add_u32 s66, s66, 20480')
    for pr in range(2):
        d = S(2 * pr, 1)
        for u in range(2):
            t = 2 * pr + u
            o0, o1 = A_KM(0, t), A_KM(1, t)
            for rr in range(4):
                p(f'v_cndmask_b32 v{o0+rr}, v{o0+rr}, v{o1+rr}, s[62:63]')
            p(f'v_cvt_pk_bf16_f32 v{d+2*u}, v{o0}, v{o0+1}')
            p(f'v_cvt_pk_bf16_f32 v{d+2*u+1}, v{o0+2}, v{o0+3}')
    p('s_mov_b32 exec_hi, 0')
    for pr in range(2):
        d = S(2 * pr, 1)
        p(f'buffer_store_dwordx4 v[{d}:{d+3}], v248, s[{SRD_WS}:{SRD_WS+3}], s67 offen {CFG["STF"]}')
        p('s_add_u32 s67, s67, 20480')
    p('s_mov_b32 exec_hi, -1')


def ffn_prologue(p):
    p(f's_and_b32 s55, s{S_WAVE}, 1')
    p(f's_lshr_b32 s56, s{S_WAVE}, 1')
    p('v_and_b32 v3, 15, v2')
    p('v_lshrrev_b32 v4, 4, v2')
    p('v_lshrrev_b32 v5, 1, v3')
    p('v_xor_b32 v5, v5, v4')
    p('v_lshlrev_b32 v5, 4, v5')
    p('v_lshl_add_u32 v5, v3, 7, v5')
    p('s_lshl_b32 s57, s56, 13')
    p(f'v_add_u32 v{V_X0}, s57, v5')
    p(f'v_xor_b32 v{V_X1}, 64, v{V_X0}')
    p('v_lshrrev_b32 v5, 5, v2')
    p('v_lshlrev_b32 v5, 4, v5')
    p('v_bfe_u32 v6, v2, 4, 1')
    p('v_lshl_add_u32 v5, v6, 2, v5')
    p('v_bfe_u32 v6, v2, 2, 2')
    p('v_add_u32 v5, v5, v6')
    p(f'v_mul_u32_u24 v5, {WROW}, v5')
    p(f'v_add_u32 v5, {XREG}, v5')
    p('v_and_b32 v6, 3, v2')
    p('v_lshl_add_u32 v5, v6, 3, v5')
    p('s_lshl_b32 s57, s55, 8')
    p(f'v_add_u32 v{V_W}, s57, v5')
    p('s_lshl_b32 s57, s55, 5')
    p('s_add_u32 s57, s57, 192')
    p(f'v_add_u32 v{V_WA}, s57, v5')
    p(f's_mul_i32 s57, s{S_CG}, 448')
    p('v_lshlrev_b32 v5, 3, v4')
    p('v_add_u32 v5, s57, v5')
    p('s_lshl_b32 s57, s55, 8')
    p('v_add_u32 v6, s57, v5')
    p('s_lshl_b32 s57, s55, 5')
    p('s_add_u32 s57, s57, 192')
    p('v_add_u32 v7, s57, v5')
    p('v_lshlrev_b32 v248, 4, v2')
    p('s_waitcnt lgkmcnt(0)')
    srd(p, SRD_A, S_B1, 3456)
    for f in range(7):
        if f < 6:
            p(f'buffer_load_dwordx2 v[{200+2*f}:{201+2*f}], v6, s[{SRD_A}:{SRD_A+3}], 0 offen offset:{32*f}')
        else:
            p(f'buffer_load_dwordx2 v[{200+2*f}:{201+2*f}], v7, s[{SRD_A}:{SRD_A+3}], 0 offen')
    tlb_touch(p, 'F')
    p('s_mov_b32 s58, 0xffff0000')
    p('s_waitcnt vmcnt(0)')
    for f in range(7):
        for t in range(4):
            a = F_ACC(f, t)
            p(f'v_lshlrev_b32 v{a}, 16, v{200+2*f}')
            p(f'v_and_b32 v{a+1}, s58, v{200+2*f}')
            p(f'v_lshlrev_b32 v{a+2}, 16, v{201+2*f}')
            p(f'v_and_b32 v{a+3}, s58, v{201+2*f}')


def ffn_epilogue(p):
    k1 = -2.0 * math.sqrt(2.0 / math.pi) * math.log2(math.e)
    k2 = k1 * 0.044715
    C1, C2, ONE = 240, 242, 244
    for r in (0, 1):
        p(f'v_mov_b32 v{C1+r}, {hexf(k1)}')
        p(f'v_mov_b32 v{C2+r}, {hexf(k2)}')
        p(f'v_mov_b32 v{ONE+r}, 1.0')
    p('s_nop 5')
    p(f's_lshl_b32 s65, s{S_RB}, 3')
    p('s_lshl_b32 s66, s56, 2')
    p('s_add_u32 s65, s65, s66')
    p('s_mul_i32 s65, s65, 54')
    p(f's_mul_i32 s66, s{S_CG}, 7')
    p('s_add_u32 s67, s66, 3')
    p('s_lshl_b32 s68, s55, 2')
    p('s_add_u32 s66, s66, s68')
    p('s_add_u32 s69, s65, s67')
    p('s_lshl_b32 s69, s69, 10')
    p('s_lshl_b32 s68, s55, 3')
    p('s_add_u32 s69, s69, s68')
    p('s_add_u32 s68, s65, s66')
    p('s_lshl_b32 s68, s68, 10')

    def gelu(regs, tmp):
        for i, x in enumerate(regs):
            p(f'v_pk_mul_f32 v[{tmp+4*i}:{tmp+4*i+1}], v[{x}:{x+1}], v[{x}:{x+1}]')
        for i, x in enumerate(regs):
            p(f'v_pk_fma_f32 v[{tmp+4*i}:{tmp+4*i+1}], v[{tmp+4*i}:{tmp+4*i+1}], v[{C2}:{C2+1}], v[{C1}:{C1+1}]')
        for i, x in enumerate(regs):
            p(f'v_pk_mul_f32 v[{tmp+4*i}:{tmp+4*i+1}], v[{tmp+4*i}:{tmp+4*i+1}], v[{x}:{x+1}]')
        for i, x in enumerate(regs):
            p(f'v_exp_f32 v{tmp+4*i}, v{tmp+4*i}')
            p(f'v_exp_f32 v{tmp+4*i+1}, v{tmp+4*i+1}')
        for i, x in enumerate(regs):
            p(f'v_pk_add_f32 v[{tmp+4*i}:{tmp+4*i+1}], v[{tmp+4*i}:{tmp+4*i+1}], v[{ONE}:{ONE+1}]')
        for i, x in enumerate(regs):
            p(f'v_rcp_f32 v{tmp+4*i}, v{tmp+4*i}')
            p(f'v_rcp_f32 v{tmp+4*i+1}, v{tmp+4*i+1}')
        for i, x in enumerate(regs):
            p(f'v_pk_mul_f32 v[{x}:{x+1}], v[{tmp+4*i}:{tmp+4*i+1}], v[{x}:{x+1}]')

    OUT = 184
    n = 0
    for pr in range(3):
        p(f's_add_u32 s70, s66, {pr}')
        p('s_cmp_ge_u32 s70, 54')
        p(f's_cbranch_scc1 L_skip_pair{pr}')
        for t in range(4):
            a, b = F_ACC(2 * pr, t), F_ACC(2 * pr + 1, t)
            gelu([a, a + 2, b, b + 2], 152)
            o = OUT + 4 * (n % 4)
            n += 1
            p(f'v_cvt_pk_bf16_f32 v{o}, v{a}, v{a+1}')
            p(f'v_cvt_pk_bf16_f32 v{o+1}, v{a+2}, v{a+3}')
            p(f'v_cvt_pk_bf16_f32 v{o+2}, v{b}, v{b+1}')
            p(f'v_cvt_pk_bf16_f32 v{o+3}, v{b+2}, v{b+3}')
            p(f's_add_u32 s70, s68, {pr*1024 + t*54*1024}')
            p(f'buffer_store_dwordx4 v[{o}:{o+3}], v248, s[{SRD_WS}:{SRD_WS+3}], s70 offen {CFG["STF"]}')
        p.label(f'L_skip_pair{pr}')
    for t2 in range(2):
        a, b = F_ACC(6, 2 * t2), F_ACC(6, 2 * t2 + 1)
        gelu([a, a + 2, b, b + 2], 152)
        for u, x in enumerate((a, b)):
            o = OUT + 16 + 2 * ((2 * t2 + u) % 2)
            p(f'v_cvt_pk_bf16_f32 v{o}, v{x}, v{x+1}')
            p(f'v_cvt_pk_bf16_f32 v{o+1}, v{x+2}, v{x+3}')
            p(f's_add_u32 s70, s69, {(2*t2+u)*54*1024}')
            p(f'buffer_store_dwordx2 v[{o}:{o+1}], v248, s[{SRD_WS}:{SRD_WS+3}], s70 offen {CFG["STF"]}')


def gen_k1():
    p = Prog()
    p('s_cmp_ge_u32 s2, 256')
    p('s_cbranch_scc1 L_k1_end')
    p('s_load_dwordx4 s[4:7], s[0:1], 0')
    p('s_load_dwordx4 s[8:11], s[0:1], 16')
    p('s_load_dwordx4 s[12:15], s[0:1], 32')
    p('s_load_dwordx4 s[16:19], s[0:1], 48')
    p('s_load_dwordx2 s[20:21], s[0:1], 64')
    p('s_load_dwordx2 s[22:23], s[0:1], 88')
    p('s_load_dwordx2 s[100:101], s[0:1], 72')
    if CFG['PROF']:
        p('s_memrealtime s[88:89]')
        p('s_memtime s[82:83]')
    p('v_lshrrev_b32 v1, 6, v0')
    p('v_and_b32 v2, 63, v0')
    p(f'v_readfirstlane_b32 s{S_WAVE}, v1')
    if CFG['SWAPW']:
        p(f's_add_u32 s{S_WAVE}, s{S_WAVE}, 4')
        p(f's_and_b32 s{S_WAVE}, s{S_WAVE}, 7')
    k1_decode(p)
    p(f's_cmp_eq_u32 s{S_WAVE}, 0')
    p('s_cbranch_scc0 L_nopf')
    p('v_mov_b32 v10, v2')
    code_prefetch(p, 'L_k1_body', 'L_k1_end', CFG.get('K1_BYTES', 20480), 10, 255, 84, 'k1')
    p.label('L_nopf')
    p.label('L_k1_body')
    p(f's_cmp_ge_u32 s{S_WAVE}, 4')
    p('s_cbranch_scc0 L_consumer')
    if CFG['LDFIRST']:
        p(f's_cmp_eq_u32 s{S_TYPE}, 0')
        p('s_cbranch_scc0 L_loader_F')
        k1_loader(p, True)
        k1_loader(p, False)
    else:
        p(f's_cmp_eq_u32 s{S_TYPE}, 0')
        p('s_cbranch_scc1 L_loader_A')
        p('s_branch L_loader_F')
    p.label('L_consumer')
    if CFG['PRIO']:
        p(f's_setprio {CFG["PRIO"]}')
    p(f's_cmp_eq_u32 s{S_TYPE}, 0')
    p('s_cbranch_scc0 L_cons_F')
    p('s_movk_i32 s99, 256')
    prefetch_setup(p, True)
    p('s_waitcnt lgkmcnt(0)')
    tlb_touch(p, 'A')
    attn_prologue(p)
    srd(p, SRD_WS, S_WS, WS_USED)
    srd(p, SRD_X, S_AX, 2048 * 1280)
    srd(p, SRD_W, S_WQKV, 640 * 3840)
    p('s_waitcnt lgkmcnt(0)')
    stamp(p, 0)
    p('s_barrier')
    stamp(p, 1)
    prefetch_issue(p, True)
    if CFG['M35']:
        p('s_cmp_eq_u32 s56, 0')
        p('s_cbranch_scc0 L_attn_th1')
        for th in (0, 1):
            if th:
                p.label('L_attn_th1')
            consumer_loop(p, True, th)
            stamp(p, 2)
            attn_epilogue(p, th)
            stamp(p, 3)
            if CFG['PROF']:
                prof_store(p, 4, 'CA', SRD_WS)
            p('s_endpgm')
    else:
        consumer_loop(p, True)
        stamp(p, 2)
        attn_epilogue(p)
        stamp(p, 3)
        if CFG['PROF']:
            prof_store(p, 4, 'CA', SRD_WS)
        p('s_endpgm')
    p.label('L_cons_F')
    p('s_movk_i32 s99, 256')
    prefetch_setup(p, False)
    ffn_prologue(p)
    srd(p, SRD_WS, S_WS, WS_USED)
    srd(p, SRD_X, S_AX, 2048 * 1280)
    srd(p, SRD_W, S_W1, 640 * 3456)
    p('s_waitcnt lgkmcnt(0)')
    stamp(p, 0)
    p('s_barrier')
    stamp(p, 1)
    prefetch_issue(p, False)
    consumer_loop(p, False)
    stamp(p, 2)
    ffn_epilogue(p)
    stamp(p, 3)
    if CFG['PROF']:
        prof_store(p, 4, 'CF', SRD_WS)
    p('s_endpgm')
    if not CFG['LDFIRST']:
        k1_loader(p, True)
        k1_loader(p, False)
    p.label('L_k1_end')
    p('s_endpgm')
    return p


def k2_stream(p, wave_a):
    NB = CFG['NBUF']
    tag = 'a' if wave_a else 'b'
    nsteps = 20 if wave_a else 18
    ACC = lambda t, f: K2_ACC + (t * 5 + f) * 4
    BA = lambda b, t: 36 * b + 4 * t
    BW = lambda b, f: 36 * b + 16 + 4 * f

    def ld_w(b, f):
        if f < 4:
            p(f'buffer_load_dwordx4 v[{BW(b,f)}:{BW(b,f)+3}], v{K2_VL}, s[12:15], s21 offen offset:{1024*f} {CFG["K2LDF"]}')
        else:
            p(f'buffer_load_dwordx4 v[{BW(b,f)}:{BW(b,f)+3}], v{K2_VL2}, s[12:15], s21 offen {CFG["K2LDF"]}')

    def ld_a(b, t):
        p(f'buffer_load_dwordx4 v[{BA(b,t)}:{BA(b,t)+3}], v{K2_VA+t}, s[12:15], s20 offen {CFG["K2LDF"]}')

    nrot = 16 if wave_a else 18
    state = {'n': 0}

    def adv():
        state['n'] += 1
        p('s_add_u32 s20, s20, 1024')
        p('s_add_u32 s21, s21, 5120')
        if not CFG['ROT2']:
            return
        if state['n'] < nrot:
            p('s_add_u32 s22, s22, 1')
            p(f's_cmp_eq_u32 s22, {nrot}')
            p(f's_cselect_b32 s23, {nrot*1024}, 0')
            p('s_sub_u32 s20, s20, s23')
            p('s_mul_i32 s23, s23, 5')
            p('s_sub_u32 s21, s21, s23')
        elif state['n'] == nrot and wave_a:
            p('s_mov_b32 s20, s34')
            p('s_mov_b32 s21, s35')

    for s in range(min(NB, nsteps)):
        for f in range(5):
            ld_w(s % NB, f)
        for t in range(4):
            ld_a(s % NB, t)
        adv()
    for r in range(80):
        p(f'v_mov_b32 v{K2_ACC+r}, 0')
    stamp(p, 1)
    for s in range(nsteps):
        b = s % NB
        issued = min(s + NB, nsteps)
        newer = (issued - s - 1) * 9
        p(f's_waitcnt vmcnt({newer})')
        more = s + NB < nsteps
        tail = wave_a and s >= 16
        amap = [0, 1, 2, 3]
        if tail:
            for (x, y) in ((0, 2), (1, 3)):
                p(f'v_swap_b32 v{BA(b,x)+2}, v{BA(b,y)}')
                p(f'v_swap_b32 v{BA(b,x)+3}, v{BA(b,y)+1}')
            amap = [0, 2, 1, 3]
        for f in range(5):
            for t in range(4):
                acc = ACC(t, f)
                if not CFG['K2NOMFMA']:
                    p(f'v_mfma_f32_16x16x32_bf16 v[{acc}:{acc+3}], v[{BW(b,f)}:{BW(b,f)+3}], v[{BA(b,amap[t])}:{BA(b,amap[t])+3}], v[{acc}:{acc+3}]')
            if more and CFG['K2ORD'] == 0:
                ld_w(b, f)
            if more and CFG['K2ORD'] == 2 and f >= 1:
                ld_w(b, f - 1)
        if more:
            if CFG['K2ORD'] == 1:
                for f in range(5):
                    ld_w(b, f)
            if CFG['K2ORD'] == 2:
                ld_w(b, 4)
            for t in range(4):
                ld_a(b, t)
            adv()
    p('s_branch L_k2_reduce')


K2_ACC = 144
K2_VL, K2_VL2, K2_VA = 224, 225, 226
K2_G, K2_B2 = 230, 232
K2_LDS = 4 * 4 * 5120


def gen_k2():
    global K2_ACC
    NB = CFG['NBUF']
    assert NB * 36 + 80 <= 224
    K2_ACC = NB * 36
    p = Prog()
    p('s_cmp_ge_u32 s2, 256')
    p('s_cbranch_scc1 L_k2_end')
    p('s_load_dwordx2 s[4:5], s[0:1], 88')
    p('s_load_dwordx2 s[6:7], s[0:1], 72')
    p('s_load_dwordx2 s[8:9], s[0:1], 56')
    if CFG['PROF']:
        p('s_memrealtime s[88:89]')
        p('s_memtime s[82:83]')
    p('v_lshrrev_b32 v1, 6, v0')
    p('v_and_b32 v2, 63, v0')
    p(f'v_readfirstlane_b32 s{S_WAVE}, v1')
    p('s_and_b32 s52, s2, 7')
    p('s_lshr_b32 s53, s2, 3')
    if CFG['MAP2'] == '8x4':
        p('s_lshr_b32 s54, s52, 1')
        p('s_lshl_b32 s54, s54, 3')
        p('s_lshr_b32 s55, s53, 2')
        p('s_add_u32 s26, s54, s55')
        p('s_and_b32 s54, s52, 1')
        p('s_lshl_b32 s54, s54, 2')
        p('s_and_b32 s55, s53, 3')
        p('s_add_u32 s27, s54, s55')
    else:
        p('s_lshl_b32 s54, s52, 2')
        p('s_lshr_b32 s55, s53, 3')
        p('s_add_u32 s26, s54, s55')
        p('s_and_b32 s27, s53, 7')
    p(f's_cmp_eq_u32 s{S_WAVE}, 0')
    p('s_cbranch_scc0 L_k2_nopf')
    p('v_mov_b32 v10, v2')
    code_prefetch(p, 'L_k2_body', 'L_k2_end', CFG.get('K2_BYTES', 16384), 10, 255, 84, 'k2')
    p.label('L_k2_nopf')
    p.label('L_k2_body')
    p(f'v_lshlrev_b32 v{K2_VL}, 4, v2')
    p(f'v_add_u32 v{K2_VL2}, 4096, v{K2_VL}')
    p(f's_cmp_eq_u32 s{S_WAVE}, 0')
    p('s_mov_b32 s56, 20480')
    p('s_cselect_b32 s56, s56, 55296')
    p(f's_mov_b32 s57, {OA_OFF}')
    p(f's_cselect_b32 s57, s57, {H_OFF}')
    p(f's_mov_b32 s58, {WO_OFF}')
    p(f's_cselect_b32 s58, s58, {W2_OFF}')
    p('s_cselect_b32 s59, 20, 54')
    p(f's_mul_i32 s60, s{S_WAVE}, 18')
    p('s_cselect_b32 s60, 18, s60')
    p('s_sub_u32 s60, s60, 18')
    p('s_lshl_b32 s61, s26, 2')
    p('s_mul_i32 s61, s61, s56')
    p('s_add_u32 s61, s61, s57')
    p('s_lshl_b32 s62, s60, 10')
    p('s_add_u32 s20, s61, s62')
    p('s_mul_i32 s61, s27, s59')
    p('s_add_u32 s61, s61, s60')
    p('s_mul_i32 s61, s61, 5120')
    p('s_add_u32 s21, s61, s58')
    if CFG['ROT2']:
        p('s_add_u32 s34, s20, 16384')
        p('s_add_u32 s35, s21, 81920')
        if CFG['ROT2'] == 2:
            p('s_xor_b32 s62, s26, s27')
            p('s_and_b32 s62, s62, 1')
            p(f's_cmp_eq_u32 s{S_WAVE}, 0')
            p('s_cselect_b32 s63, 8, 9')
            p('s_mul_i32 s22, s62, s63')
        elif CFG['ROT2'] == 3:
            p('s_add_u32 s62, s26, s27')
            p('s_mul_i32 s63, s62, 43')
            p('s_lshr_b32 s63, s63, 7')
            p('s_mul_i32 s63, s63, 3')
            p('s_sub_u32 s62, s62, s63')
            p(f's_cmp_eq_u32 s{S_WAVE}, 0')
            p('s_cselect_b32 s63, 5, 6')
            p('s_mul_i32 s22, s62, s63')
        else:
            p('s_and_b32 s62, s26, 7')
            p('s_and_b32 s63, s27, 3')
            p('s_lshl_b32 s63, s63, 1')
            p('s_add_u32 s62, s62, s63')
            p(f's_cmp_eq_u32 s{S_WAVE}, 0')
            p('s_cselect_b32 s63, 16, 18')
            p('s_mul_i32 s62, s62, s63')
            p('s_lshr_b32 s22, s62, 3')
            p('s_cmp_ge_u32 s22, s63')
            p('s_cselect_b32 s62, s63, 0')
            p('s_sub_u32 s22, s22, s62')
        p('s_lshl_b32 s62, s22, 10')
        p('s_add_u32 s20, s20, s62')
        p('s_mul_i32 s62, s22, 5120')
        p('s_add_u32 s21, s21, s62')
    for t in range(4):
        p(f's_mul_i32 s62, s56, {t}')
        p(f'v_add_u32 v{K2_VA+t}, s62, v{K2_VL}')
    p('v_and_b32 v3, 15, v2')
    p('v_lshrrev_b32 v4, 4, v2')
    p('s_lshl_b32 s62, s26, 6')
    p(f's_lshl_b32 s63, s{S_WAVE}, 4')
    p('s_add_u32 s62, s62, s63')
    p('v_add_u32 v5, s62, v3')
    p('v_lshlrev_b32 v6, 3, v5')
    p(f'v_add_u32 v6, {G_OFF}, v6')
    p('s_mul_i32 s63, s27, 160')
    p('v_lshlrev_b32 v7, 4, v4')
    p('v_add_u32 v7, s63, v7')
    p('v_lshlrev_b32 v8, 3, v4')
    p('v_add_u32 v8, s63, v8')
    p('s_movk_i32 s63, 1280')
    p('v_mul_u32_u24 v5, s63, v5')
    p('v_add_u32 v242, v5, v7')
    p('v_add_u32 v243, v5, v8')
    p('s_waitcnt lgkmcnt(0)')
    srd(p, 12, 4, WS_USED)
    srd(p, 16, 8, 1280)
    srd(p, 28, 6, 2048 * 1280)
    stamp(p, 0)
    p(f'buffer_load_dwordx2 v[{K2_G}:{K2_G+1}], v6, s[12:15], 0 offen')
    p(f'buffer_load_dwordx4 v[{K2_B2}:{K2_B2+3}], v7, s[16:19], 0 offen')
    p(f'buffer_load_dwordx4 v[{K2_B2+4}:{K2_B2+7}], v7, s[16:19], 0 offen offset:64')
    p(f'buffer_load_dwordx2 v[{K2_B2+8}:{K2_B2+9}], v8, s[16:19], 0 offen offset:128')
    p(f's_cmp_eq_u32 s{S_WAVE}, 0')
    p('s_cbranch_scc0 L_k2_b')
    k2_stream(p, True)
    p.label('L_k2_b')
    k2_stream(p, False)
    p.label('L_k2_reduce')
    stamp(p, 2)
    ACC = lambda t, f: K2_ACC + (t * 5 + f) * 4
    p(f's_mul_i32 s62, s{S_WAVE}, 5120')
    p(f'v_add_u32 v3, s62, v{K2_VL}')
    p('s_nop 7')
    p('v_add_u32 v4, 40960, v3')
    for t in range(4):
        for f in range(5):
            p(f'ds_write_b128 v{3 + (t >> 1)}, v[{ACC(t,f)}:{ACC(t,f)+3}] offset:{(t & 1)*20480 + f*1024}')
    p(f's_mul_i32 s62, s{S_WAVE}, 20480')
    p(f'v_add_u32 v250, s62, v{K2_VL}')
    p('s_waitcnt lgkmcnt(0)')
    p('s_barrier')
    R = lambda w, f: (w * 5 + f) * 4
    for f in range(5):
        for w in range(4):
            p(f'ds_read_b128 v[{R(w,f)}:{R(w,f)+3}], v250 offset:{w*5120 + f*1024}')
    p('s_mov_b32 s62, 0xffff0000')
    B = lambda f: 100 + 4 * f
    for pr in range(2):
        for d in range(4):
            src = K2_B2 + 4 * pr + d
            f, r = 2 * pr + (d >> 1), 2 * (d & 1)
            p(f'v_lshlrev_b32 v{B(f)+r}, 16, v{src}')
            p(f'v_and_b32 v{B(f)+r+1}, s62, v{src}')
    for d in range(2):
        src = K2_B2 + 8 + d
        p(f'v_lshlrev_b32 v{B(4)+2*d}, 16, v{src}')
        p(f'v_and_b32 v{B(4)+2*d+1}, s62, v{src}')
    p(f'v_mov_b32 v120, v{K2_G}')
    p(f'v_mov_b32 v121, v{K2_G}')
    p(f'v_mov_b32 v122, v{K2_G+1}')
    p(f'v_mov_b32 v123, v{K2_G+1}')
    for f in range(5):
        p(f's_waitcnt lgkmcnt({min(15, 16-4*f)})' if f < 4 else 's_waitcnt lgkmcnt(0)')
        if f == 0:
            p('s_waitcnt lgkmcnt(15)')
        for r in (0, 2):
            a, b1, b2_, b3 = R(0, f) + r, R(1, f) + r, R(2, f) + r, R(3, f) + r
            p(f'v_pk_add_f32 v[{b1}:{b1+1}], v[{b1}:{b1+1}], v[{b2_}:{b2_+1}]')
            p(f'v_pk_add_f32 v[{b3}:{b3+1}], v[{b3}:{b3+1}], v[{B(f)+r}:{B(f)+r+1}]')
            p(f'v_pk_mul_f32 v[{a}:{a+1}], v[{a}:{a+1}], v[120:121]')
            p(f'v_pk_add_f32 v[{b1}:{b1+1}], v[{b1}:{b1+1}], v[{b3}:{b3+1}]')
            p(f'v_pk_fma_f32 v[{a}:{a+1}], v[{b1}:{b1+1}], v[122:123], v[{a}:{a+1}]')
    O = 124
    for pr in range(2):
        for u in range(2):
            a = R(0, 2 * pr + u)
            p(f'v_cvt_pk_bf16_f32 v{O+4*pr+2*u}, v{a}, v{a+1}')
            p(f'v_cvt_pk_bf16_f32 v{O+4*pr+2*u+1}, v{a+2}, v{a+3}')
        p(f'buffer_store_dwordx4 v[{O+4*pr}:{O+4*pr+3}], v242, s[28:31], 0 offen offset:{64*pr} {CFG["OUTF"]}')
    a = R(0, 4)
    p(f'v_cvt_pk_bf16_f32 v{O+8}, v{a}, v{a+1}')
    p(f'v_cvt_pk_bf16_f32 v{O+9}, v{a+2}, v{a+3}')
    p(f'buffer_store_dwordx2 v[{O+8}:{O+9}], v243, s[28:31], 0 offen offset:128 {CFG["OUTF"]}')
    stamp(p, 3)
    if CFG['PROF']:
        prof_store(p, 4, 'K2', 12)
    p.label('L_k2_end')
    p('s_endpgm')
    return p


K2B_R = 4
K2B_STEP = 9216
K2B_SLOT = 4 * K2B_STEP
K2B_LDS = K2B_R * K2B_SLOT


def gen_k2b():
    R, SL, ST = K2B_R, K2B_SLOT, K2B_STEP
    stages = [('a', 4 * i, 4) for i in range(5)] + [('b', 4 * i, 4) for i in range(13)] + [('b', 52, 2)]
    NS = len(stages)
    p = Prog()
    p('s_cmp_ge_u32 s2, 256')
    p('s_cbranch_scc1 L_k2_end')
    p('s_load_dwordx2 s[4:5], s[0:1], 88')
    p('s_load_dwordx2 s[6:7], s[0:1], 72')
    p('s_load_dwordx2 s[8:9], s[0:1], 56')
    if CFG['PROF']:
        p('s_memrealtime s[88:89]')
        p('s_memtime s[82:83]')
    p('v_lshrrev_b32 v1, 6, v0')
    p('v_and_b32 v2, 63, v0')
    p(f'v_readfirstlane_b32 s{S_WAVE}, v1')
    p('s_and_b32 s52, s2, 7')
    p('s_lshr_b32 s53, s2, 3')
    if CFG['MAP2'] == '8x4':
        p('s_lshr_b32 s54, s52, 1')
        p('s_lshl_b32 s54, s54, 3')
        p('s_lshr_b32 s55, s53, 2')
        p('s_add_u32 s26, s54, s55')
        p('s_and_b32 s54, s52, 1')
        p('s_lshl_b32 s54, s54, 2')
        p('s_and_b32 s55, s53, 3')
        p('s_add_u32 s27, s54, s55')
    else:
        p('s_lshl_b32 s54, s52, 2')
        p('s_lshr_b32 s55, s53, 3')
        p('s_add_u32 s26, s54, s55')
        p('s_and_b32 s27, s53, 7')
    p('v_lshlrev_b32 v3, 4, v2')
    p(f's_cmp_ge_u32 s{S_WAVE}, 4')
    p('s_cbranch_scc0 L_k2_consumer')
    p(f's_sub_u32 s57, s{S_WAVE}, 4')
    p('s_mul_i32 s20, s27, 20')
    p('s_add_u32 s20, s20, s57')
    p('s_mul_i32 s20, s20, 5120')
    p(f's_add_u32 s20, s20, {WO_OFF}')
    p('s_mul_i32 s21, s27, 54')
    p('s_add_u32 s21, s21, s57')
    p('s_mul_i32 s21, s21, 5120')
    p(f's_add_u32 s21, s21, {W2_OFF}')
    p('s_lshl_b32 s54, s26, 2')
    p('s_mul_i32 s22, s54, 20')
    p('s_add_u32 s22, s22, s57')
    p('s_lshl_b32 s22, s22, 10')
    p(f's_add_u32 s22, s22, {OA_OFF}')
    p('s_mul_i32 s25, s54, 54')
    p('s_add_u32 s25, s25, s57')
    p('s_lshl_b32 s25, s25, 10')
    if H_OFF:
        p(f's_add_u32 s25, s25, {H_OFF}')
    p(f's_mul_i32 s58, s57, {ST}')
    p('v_add_u32 v4, 4096, v3')
    for u in range(4):
        p(f'v_add_u32 v{10+u}, {20480*u}, v3')
        p(f'v_add_u32 v{14+u}, {55296*u}, v3')
    p('s_waitcnt lgkmcnt(0)')
    srd(p, 12, 4, WS_USED)
    stamp(p, 0)

    def issue(j):
        part, s0, n = stages[j]
        slot = j % R
        if n < 4:
            p(f's_cmp_ge_u32 s57, {n}')
            p(f's_cbranch_scc1 L_k2_skip{j}')
        p(f's_add_u32 s23, s{20 if part == "a" else 21}, {s0*5120}')
        p(f's_add_u32 s24, s{22 if part == "a" else 25}, {s0*1024}') if False else None
        p(f's_add_u32 m0, s58, {slot*SL}')
        p(f's_add_u32 s59, s{22 if part == "a" else 25}, {s0*1024}')
        for f in range(4):
            p(f'buffer_load_dwordx4 v3, s[12:15], s23 offen offset:{1024*f} {CFG["K2LDF"]} lds')
        p(f's_add_u32 m0, s58, {slot*SL + 4096}')
        p('s_nop 0')
        p(f'buffer_load_dwordx4 v4, s[12:15], s23 offen {CFG["K2LDF"]} lds')
        for u in range(4):
            p(f's_add_u32 m0, s58, {slot*SL + 5120 + 1024*u}')
            p('s_nop 0')
            p(f'buffer_load_dwordx4 v{(10 if part == "a" else 14)+u}, s[12:15], s59 offen {CFG["K2LDF"]} lds')
        if n < 4:
            p.label(f'L_k2_skip{j}')

    for j in range(R - 1):
        issue(j)
    stamp(p, 1)
    for j in range(NS):
        hi = min(j + R - 2, NS - 1)
        newer = 9 * (hi - j)
        if hi == NS - 1 and j < NS - 1:
            newer -= 9
        p(f's_waitcnt vmcnt({max(newer, 0)})')
        p('s_barrier')
        if j + R - 1 < NS:
            issue(j + R - 1)
    stamp(p, 2)
    stamp(p, 3)
    if CFG['PROF']:
        prof_store(p, 4, 'K2', 12)
    p('s_endpgm')
    p.label('L_k2_consumer')
    p(f's_cmp_eq_u32 s{S_WAVE}, 0')
    p('s_cbranch_scc0 L_k2_nopf')
    p('v_mov_b32 v10, v2')
    code_prefetch(p, 'L_k2_body', 'L_k2_end', CFG.get('K2_BYTES', 12288), 10, 255, 84, 'k2')
    p.label('L_k2_nopf')
    p.label('L_k2_body')
    ACA, ACB = 0, 20
    WR = lambda q, f: 40 + 20 * q + 4 * f
    AR = lambda q: 120 + 4 * q
    G, B2 = 230, 232
    p('s_lshl_b32 s54, s26, 2')
    p(f's_add_u32 s54, s54, s{S_WAVE}')
    p('v_and_b32 v4, 15, v2')
    p('v_lshrrev_b32 v5, 4, v2')
    p('s_lshl_b32 s55, s54, 4')
    p('v_add_u32 v6, s55, v4')
    p('v_lshlrev_b32 v7, 3, v6')
    p(f'v_add_u32 v7, {G_OFF}, v7')
    p('s_mul_i32 s55, s27, 160')
    p('v_lshlrev_b32 v8, 4, v5')
    p('v_add_u32 v8, s55, v8')
    p('v_lshlrev_b32 v9, 3, v5')
    p('v_add_u32 v9, s55, v9')
    p('v_mul_u32_u24 v6, 1280, v6')
    p('v_add_u32 v242, v6, v8')
    p('v_add_u32 v243, v6, v9')
    p(f's_lshl_b32 s55, s{S_WAVE}, 10')
    p('s_add_u32 s55, s55, 5120')
    for sl in range(R):
        p(f'v_add_u32 v{244+sl}, {sl*SL}, v3')
        p(f'v_add_u32 v{250+sl}, s55, v{244+sl}')
    p(f's_lshr_b32 s55, s{S_WAVE}, 1')
    p('s_lshl_b32 s55, s55, 10')
    p(f's_and_b32 s56, s{S_WAVE}, 1')
    p('s_lshl_b32 s56, s56, 3')
    p('s_add_u32 s55, s55, s56')
    p('s_add_u32 s55, s55, 5120')
    p('v_add_u32 v249, s55, v3')
    p('s_waitcnt lgkmcnt(0)')
    srd(p, 12, 4, WS_USED)
    srd(p, 16, 8, 1280)
    srd(p, 28, 6, 2048 * 1280)
    stamp(p, 0)
    p(f'buffer_load_dwordx2 v[{G}:{G+1}], v7, s[12:15], 0 offen')
    p(f'buffer_load_dwordx4 v[{B2}:{B2+3}], v8, s[16:19], 0 offen')
    p(f'buffer_load_dwordx4 v[{B2+4}:{B2+7}], v8, s[16:19], 0 offen offset:64')
    p(f'buffer_load_dwordx2 v[{B2+8}:{B2+9}], v9, s[16:19], 0 offen offset:128')
    for r in range(40):
        p(f'v_mov_b32 v{r}, 0')
    stamp(p, 1)
    for j, (part, s0, n) in enumerate(stages):
        slot = j % R
        tail = (part == 'a' and s0 == 16)
        assert not tail or slot == 0
        p('s_barrier')
        log = []
        for q in range(n):
            if tail:
                p(f'ds_read_b64 v[{AR(q)}:{AR(q)+1}], v249 offset:{q*ST}')
                p(f'ds_read_b64 v[{AR(q)+2}:{AR(q)+3}], v249 offset:{q*ST + 2048}')
                log += [('a', q), ('a', q)]
            else:
                p(f'ds_read_b128 v[{AR(q)}:{AR(q)+3}], v{250+slot} offset:{q*ST}')
                log.append(('a', q))
            for f in range(5):
                p(f'ds_read_b128 v[{WR(q,f)}:{WR(q,f)+3}], v{244+slot} offset:{q*ST + f*1024}')
                log.append(('w', q, f))
        known = max(0, len(log) - 15) if len(log) > 15 else 0
        done = -1
        for q in range(n):
            acc0 = ACA if part == 'a' else ACB
            for f in range(5):
                idx = log.index(('w', q, f))
                if idx > done:
                    left = len(log) - 1 - idx
                    w = min(left, 15)
                    p(f's_waitcnt lgkmcnt({w})')
                    done = len(log) - 1 - w
                p(f'v_mfma_f32_16x16x32_bf16 v[{acc0+4*f}:{acc0+4*f+3}], v[{WR(q,f)}:{WR(q,f)+3}], v[{AR(q)}:{AR(q)+3}], v[{acc0+4*f}:{acc0+4*f+3}]')
    stamp(p, 2)
    p('s_mov_b32 s62, 0xffff0000')
    p('s_waitcnt vmcnt(0)')
    Bf = lambda f: 100 + 4 * f
    for pr in range(2):
        for d in range(4):
            s_ = B2 + 4 * pr + d
            f, r = 2 * pr + (d >> 1), 2 * (d & 1)
            p(f'v_lshlrev_b32 v{Bf(f)+r}, 16, v{s_}')
            p(f'v_and_b32 v{Bf(f)+r+1}, s62, v{s_}')
    for d in range(2):
        s_ = B2 + 8 + d
        p(f'v_lshlrev_b32 v{Bf(4)+2*d}, 16, v{s_}')
        p(f'v_and_b32 v{Bf(4)+2*d+1}, s62, v{s_}')
    p(f'v_mov_b32 v120, v{G}')
    p(f'v_mov_b32 v121, v{G}')
    p(f'v_mov_b32 v122, v{G+1}')
    p(f'v_mov_b32 v123, v{G+1}')
    for f in range(5):
        for r in (0, 2):
            a, b = ACA + 4 * f + r, ACB + 4 * f + r
            p(f'v_pk_add_f32 v[{b}:{b+1}], v[{b}:{b+1}], v[{Bf(f)+r}:{Bf(f)+r+1}]')
            p(f'v_pk_mul_f32 v[{a}:{a+1}], v[{a}:{a+1}], v[120:121]')
    for f in range(5):
        for r in (0, 2):
            a, b = ACA + 4 * f + r, ACB + 4 * f + r
            p(f'v_pk_fma_f32 v[{a}:{a+1}], v[{b}:{b+1}], v[122:123], v[{a}:{a+1}]')
    O = 124
    for pr in range(2):
        for u in range(2):
            a = ACA + 4 * (2 * pr + u)
            p(f'v_cvt_pk_bf16_f32 v{O+4*pr+2*u}, v{a}, v{a+1}')
            p(f'v_cvt_pk_bf16_f32 v{O+4*pr+2*u+1}, v{a+2}, v{a+3}')
        p(f'buffer_store_dwordx4 v[{O+4*pr}:{O+4*pr+3}], v242, s[28:31], 0 offen offset:{64*pr} {CFG["OUTF"]}')
    a = ACA + 16
    p(f'v_cvt_pk_bf16_f32 v{O+8}, v{a}, v{a+1}')
    p(f'v_cvt_pk_bf16_f32 v{O+9}, v{a+2}, v{a+3}')
    p(f'buffer_store_dwordx2 v[{O+8}:{O+9}], v243, s[28:31], 0 offen offset:128 {CFG["OUTF"]}')
    stamp(p, 3)
    if CFG['PROF']:
        prof_store(p, 4, 'K2', 12)
    p.label('L_k2_end')
    p('s_endpgm')
    return p


def gen_k2t():
    NW, INF, MODE = CFG['NW'], CFG['INF'], CFG['TMODE']
    p = Prog()
    p('s_cmp_ge_u32 s2, 256')
    p('s_cbranch_scc1 L_k2_end')
    p('s_load_dwordx2 s[4:5], s[0:1], 88')
    p('s_memrealtime s[88:89]')
    p('s_memtime s[82:83]')
    p('v_lshrrev_b32 v1, 6, v0')
    p('v_and_b32 v2, 63, v0')
    p(f'v_readfirstlane_b32 s{S_WAVE}, v1')
    p('s_and_b32 s52, s2, 7')
    p('s_lshr_b32 s53, s2, 3')
    p('s_lshr_b32 s54, s52, 1')
    p('s_lshl_b32 s54, s54, 3')
    p('s_lshr_b32 s55, s53, 2')
    p('s_add_u32 s26, s54, s55')
    p('s_and_b32 s54, s52, 1')
    p('s_lshl_b32 s54, s54, 2')
    p('s_and_b32 s55, s53, 3')
    p('s_add_u32 s27, s54, s55')
    p('v_lshlrev_b32 v3, 4, v2')
    p('v_add_u32 v4, 4096, v3')
    nst = 72 // NW
    p(f's_mul_i32 s60, s{S_WAVE}, {nst}')
    p('s_cmp_ge_u32 s60, 54')
    p('s_cselect_b32 s61, 1, 0')
    p('s_cselect_b32 s56, 20480, 0')
    p('s_cselect_b32 s56, s56, 55296')
    p(f's_mov_b32 s57, {OA_OFF}')
    p(f's_cselect_b32 s57, s57, {H_OFF}')
    p(f's_mov_b32 s58, {WO_OFF}')
    p(f's_cselect_b32 s58, s58, {W2_OFF}')
    p('s_cselect_b32 s59, 20, 54')
    p('s_cselect_b32 s62, 54, 0')
    p('s_sub_u32 s60, s60, s62')
    p('s_lshl_b32 s61, s26, 2')
    p('s_mul_i32 s61, s61, s56')
    p('s_add_u32 s61, s61, s57')
    p('s_lshl_b32 s62, s60, 10')
    p('s_add_u32 s20, s61, s62')
    p('s_mul_i32 s61, s27, s59')
    p('s_add_u32 s61, s61, s60')
    p('s_mul_i32 s61, s61, 5120')
    p('s_add_u32 s21, s61, s58')
    for t in range(4):
        p(f's_mul_i32 s62, s56, {t}')
        p(f'v_add_u32 v{10+t}, s62, v3')
    p(f's_mul_i32 s63, s{S_WAVE}, 16384')
    p('s_waitcnt lgkmcnt(0)')
    srd(p, 12, 4, WS_USED)
    stamp(p, 0)
    stamp(p, 1)
    n = 0
    for s in range(nst):
        for f in range(9):
            r = 20 + 4 * (n % 48)
            if MODE == 'dma':
                p(f's_add_u32 m0, s63, {(n % 16) * 1024}')
                p('s_nop 0')
            a, so, off = (3, 's21', 1024 * f) if f < 4 else ((4, 's21', 0) if f == 4 else (10 + f - 5, 's20', 0))
            if MODE == 'dma':
                if f < 4 and f > 0:
                    p(f's_sub_u32 m0, m0, {off}')
                    p('s_nop 0')
                p(f'buffer_load_dwordx4 v{a}, s[12:15], {so} offen offset:{off} lds')
            else:
                p(f'buffer_load_dwordx4 v[{r}:{r+3}], v{a}, s[12:15], {so} offen offset:{off}')
            p(f's_waitcnt vmcnt({INF})')
            n += 1
        p('s_add_u32 s20, s20, 1024')
        p('s_add_u32 s21, s21, 5120')
    p('s_waitcnt vmcnt(0)')
    stamp(p, 2)
    stamp(p, 3)
    prof_store(p, 4, 'K2', 12)
    p.label('L_k2_end')
    p('s_endpgm')
    return p


def gen_kpf():
    p = Prog()
    p('s_cmp_ge_u32 s2, 256')
    p('s_cbranch_scc1 L_kpf_end')
    p('s_load_dwordx2 s[4:5], s[0:1], 88')
    p('v_and_b32 v2, 63, v0')
    p('v_lshrrev_b32 v1, 6, v0')
    p('s_and_b32 s52, s2, 7')
    p('s_lshr_b32 s53, s2, 3')
    p('v_lshlrev_b32 v3, 7, v0')
    p('s_waitcnt lgkmcnt(0)')
    srd(p, 12, 4, WS_USED)
    if CFG['KPF'] == 1:
        p('s_and_b32 s54, s52, 1')
        p(f's_mul_i32 s55, s54, {4*54*5120}')
        p(f's_add_u32 s55, s55, {W2_OFF}')
        p('s_lshl_b32 s56, s53, 15')
        p('s_add_u32 s57, s55, s56')
        p('buffer_load_dword v10, v3, s[12:15], s57 offen')
        p('s_add_u32 s57, s57, 57344')
        p('buffer_load_dword v10, v3, s[12:15], s57 offen')
        p(f's_mul_i32 s55, s54, {4*20*5120}')
        p(f's_add_u32 s55, s55, {WO_OFF}')
        p('s_mul_i32 s56, s53, 12800')
        p('s_add_u32 s57, s55, s56')
        p('buffer_load_dword v10, v3, s[12:15], s57 offen')
    else:
        p('s_lshr_b32 s54, s52, 1')
        p(f's_mul_i32 s55, s54, {32*55296}')
        p('s_mul_i32 s56, s53, 55296')
        p('s_add_u32 s57, s55, s56')
        p('buffer_load_dword v10, v3, s[12:15], s57 offen')
        p('s_add_u32 s57, s57, 22528')
        p('buffer_load_dword v10, v3, s[12:15], s57 offen')
        p(f's_mul_i32 s55, s54, {32*20480}')
        p(f's_add_u32 s55, s55, {OA_OFF}')
        p('s_mul_i32 s56, s53, 20480')
        p('s_add_u32 s57, s55, s56')
        p('buffer_load_dword v10, v3, s[12:15], s57 offen')
    p('s_waitcnt vmcnt(0)')
    p.label('L_kpf_end')
    p('s_endpgm')
    return p


HEADER = """; Kernarg layout (96 bytes, ptrs only, base s[0:1]):
; @launch kernel=gm_k1_kernel grid=(256,1,1) block=(512,1,1) lds=%d
; @launch kernel=gm_k2_kernel grid=(256,1,1) block=(256,1,1) lds=%d
.amdgcn_target "amdgcn-amd-amdhsa--gfx950"
"""

KD = """.amdhsa_kernel %s
  .amdhsa_next_free_vgpr %d
  .amdhsa_next_free_sgpr 102
  .amdhsa_accum_offset %d
  .amdhsa_group_segment_fixed_size 0
  .amdhsa_kernarg_size 96
  .amdhsa_user_sgpr_count 2
  .amdhsa_user_sgpr_kernarg_segment_ptr 1
  .amdhsa_system_sgpr_workgroup_id_x 1
  .amdhsa_float_denorm_mode_32 3
.end_amdhsa_kernel
"""


def main():
    k1 = gen_k1()
    k2 = gen_k2b() if CFG['K2V'] == 2 else (gen_k2t() if CFG['K2V'] == 3 else gen_k2())
    t1, t2 = k1.finish(), k2.finish()
    s = HEADER % (K1_LDS, K2B_LDS if CFG['K2V'] == 2 else K2_LDS)
    if CFG['K2V'] == 3:
        s = s.replace('kernel=gm_k2_kernel grid=(256,1,1) block=(256,1,1) lds=%d' % K2_LDS, 'kernel=gm_k2_kernel grid=(256,1,1) block=(%d,1,1) lds=131072' % (64 * CFG['NW']))
    if CFG['K2V'] == 2:
        s = s.replace('kernel=gm_k2_kernel grid=(256,1,1) block=(256,1,1)', 'kernel=gm_k2_kernel grid=(256,1,1) block=(512,1,1)')
    if CFG['K2TWICE']:
        ln = [l for l in s.split('\n') if 'kernel=gm_k2_kernel' in l][0]
        s = s.replace(ln, ln + '\n' + ln)
    s += '.text\n'
    for name, t in (('gm_k1_kernel', t1), ('gm_k2_kernel', t2)):
        s += f'.globl {name}\n.p2align 8\n.type {name},@function\n{name}:\n{t}'
    s += '.p2align 8\n.fill 64, 4, 0xbf800000\n' if False else ''
    if CFG['KPF']:
        s += '.globl gm_pf_kernel\n.p2align 8\n.type gm_pf_kernel,@function\ngm_pf_kernel:\n' + gen_kpf().finish()
        ln = [l for l in s.split('\n') if 'kernel=gm_k2_kernel' in l][0]
        s = s.replace(ln, '; @launch kernel=gm_pf_kernel grid=(256,1,1) block=(256,1,1) lds=0\n' + ln)
    s += '.section .rodata,"a"\n.p2align 6\n'
    s += KD % ('gm_k1_kernel', 256, 256)
    s += '.p2align 6\n'
    s += KD % ('gm_k2_kernel', 256, 256)
    if CFG['KPF']:
        s += '.p2align 6\n' + KD % ('gm_pf_kernel', 64, 64)
    out = CFG.get('OUT', f'cdna_kernels/{NAME}.s')
    open(out, 'w').write(s)
    print('written', out, len(s), 'bytes; nops inserted k1', k1.nops_inserted, 'k2', k2.nops_inserted)


if __name__ == '__main__':
    main()
```

```python
import sys, os, math, struct
sys.path.insert(0, os.path.dirname(os.path.abspath(__file__)))
from asmlib import Prog, vr, ar, sr

NAME = 'gated_mix__sliding_local_dilated__dense_activation_gelu__prompt'

CFG = dict(MAP1='m82', MAP2='8x4', NBUF=4, PROF=0, NOMFMA=0, NOLOAD=0, NODS=0, STF='sc1', LDF='', ULDF='nt', PFF='', PF=0, TT=1, ROT=1, ROT2=0, K2TWICE=0, K2V=1, M35=1, UNITS_FFN=0, NFU=3, PEEL=1, SWAPW=0, LDFIRST=0, PRIO=0, K2ORD=0, KPF=0, LDF0='nt', NT_ST=0, ZOOB=1, TEARLY=0, K2PF=1, DA=12, NW=4, INF=32, TMODE='reg', K2NOMFMA=0, K2LDF='', OUTF='')
for a in sys.argv[1:]:
    if '=' in a:
        k, v = a.split('=')
        CFG[k] = int(v) if v.lstrip('-').isdigit() else v.replace('+', ' ')

H_OFF = 0
OA_OFF = H_OFF + 128 * 54 * 1024
W2_OFF = OA_OFF + 128 * 20 * 1024
WO_OFF = W2_OFF + 8 * 54 * 5120
G_OFF = WO_OFF + 8 * 20 * 5120
WS_USED = G_OFF + 2048 * 8
PROF_OFF = 16 << 20

XREG = 144 * 128
WROW = 480
WREG = 64 * WROW
SLOT = XREG + WREG
XFLAG = 3 * 49152 + 15360
SCR = 3 * SLOT
K1_LDS = 163840


def f32(x):
    return struct.unpack('<I', struct.pack('<f', x))[0]


def hexf(x):
    return '0x%08x' % f32(x)


S_AX, S_WQKV, S_WO, S_BX, S_W1, S_B1, S_W2, S_B2, S_GW, S_WS = 4, 6, 8, 10, 12, 14, 16, 18, 20, 22
S_WAVE, S_TYPE, S_RB, S_CG = 24, 25, 26, 27
SRD_X, SRD_W, SRD_I4, SRD_WS, SRD_A, SRD_B = 28, 32, 36, 40, 44, 48


def srd(p, base, ptr, nbytes):
    p(f's_mov_b32 s{base}, s{ptr}')
    p(f's_mov_b32 s{base+1}, s{ptr+1}')
    p(f's_mov_b32 s{base+2}, {nbytes}')
    p(f's_mov_b32 s{base+3}, 0x20000')


def code_prefetch(p, lbl_from, lbl_to, nbytes, vtmp, vdst, s, tag):
    p(f's_getpc_b64 s[{s}:{s+1}]')
    p.label(f'L_pc_{tag}')
    p(f's_add_u32 s{s}, s{s}, {lbl_from}-L_pc_{tag}')
    p(f's_addc_u32 s{s+1}, s{s+1}, 0')
    p(f'v_lshlrev_b32 v{vtmp}, 6, v{vtmp}')
    n = (nbytes + 4095) // 4096
    for j in range(n):
        p(f'v_min_u32 v{vtmp+1}, {lbl_to}-{lbl_from}, v{vtmp}')
        p(f'global_load_dword v{vdst}, v{vtmp+1}, s[{s}:{s+1}]')
        if j + 1 < n:
            p(f'v_add_u32 v{vtmp}, 4096, v{vtmp}')
    return n


def stamp(p, idx, sbase=90):
    if CFG['PROF']:
        p(f'{"s_memtime" if CFG["PROF"] in (2, 3) else "s_memrealtime"} s[{sbase+2*idx}:{sbase+2*idx+1}]')


def k1_decode(p):
    p('s_and_b32 s52, s2, 7')
    p('s_lshr_b32 s53, s2, 3')
    if CFG['MAP1'] == 'mixed':
        p(f's_lshr_b32 s{S_TYPE}, s53, 4')
        p('s_and_b32 s54, s53, 15')
        p('s_lshr_b32 s55, s52, 1')
        p('s_lshl_b32 s55, s55, 2')
        p('s_lshr_b32 s56, s54, 2')
        p(f's_add_u32 s{S_RB}, s55, s56')
        p('s_and_b32 s55, s52, 1')
        p('s_lshl_b32 s55, s55, 2')
        p('s_and_b32 s56, s54, 3')
        p(f's_add_u32 s{S_CG}, s55, s56')
    elif CFG['MAP1'] == 'm82':
        p(f's_lshr_b32 s{S_TYPE}, s53, 4')
        p('s_lshr_b32 s55, s52, 2')
        p('s_lshl_b32 s55, s55, 3')
        p('s_and_b32 s56, s53, 7')
        p(f's_add_u32 s{S_RB}, s55, s56')
        p('s_and_b32 s55, s52, 3')
        p('s_lshl_b32 s55, s55, 1')
        p('s_bfe_u32 s56, s53, 0x10003')
        p(f's_add_u32 s{S_CG}, s55, s56')
    else:
        p(f's_lshr_b32 s{S_TYPE}, s52, 2')
        p('s_and_b32 s54, s52, 3')
        p('s_lshr_b32 s55, s54, 1')
        p('s_lshl_b32 s55, s55, 3')
        p('s_lshr_b32 s56, s53, 2')
        p(f's_add_u32 s{S_RB}, s55, s56')
        p('s_and_b32 s55, s54, 1')
        p('s_lshl_b32 s55, s55, 2')
        p('s_and_b32 s56, s53, 3')
        p(f's_add_u32 s{S_CG}, s55, s56')


def k1_loader(p, attn):
    tag = 'A' if attn else 'F'
    rowstride = 3840 if attn else 3456
    VOFF = 10
    VL = 2
    p.label(f'L_loader_{tag}')
    p(f's_sub_u32 s57, s{S_WAVE}, 4')
    p(f'v_lshrrev_b32 v3, 3, v{VL}')
    p('s_lshl_b32 s58, s57, 3')
    p('v_add_u32 v3, s58, v3')
    p(f's_lshl_b32 s59, s{S_RB}, 7')
    if attn:
        p('s_sub_u32 s59, s59, 16')
    p('v_add_u32 v3, s59, v3')
    p('s_and_b32 s58, s57, 1')
    p('s_lshl_b32 s58, s58, 2')
    p(f'v_lshrrev_b32 v4, 4, v{VL}')
    p('v_add_u32 v4, s58, v4')
    p(f'v_and_b32 v5, 7, v{VL}')
    p('v_xor_b32 v4, v4, v5')
    p('v_lshlrev_b32 v4, 4, v4')
    p('s_movk_i32 s58, 1280')
    p('s_movk_i32 s59, 2047')
    for i in range(5):
        p(f'v_add_u32 v5, {32*i}, v3')
        if attn and i == 0:
            p('v_max_i32 v5, 0, v5')
        if (not attn) and i == 4:
            p('v_min_u32 v5, s59, v5')
        p('v_mul_u32_u24 v5, s58, v5')
        p(f'v_add_u32 v{VOFF+i if i < 4 else 6}, v5, v4')
    p('s_lshl_b32 s58, s57, 6')
    p(f'v_add_u32 v7, s58, v{VL}')
    p(f's_mov_b32 s60, {rowstride}')
    p('v_mov_b32 v9, 0x7ffffff0')
    if attn:
        p(f's_mul_i32 s61, s{S_CG}, 160')
    else:
        p(f's_mul_i32 s61, s{S_CG}, 448')

    def w_offset(i):
        base = 64 * (4 * i - 18)
        dst = VOFF + i if i > 4 else 8
        if base >= 0:
            p(f'v_add_u32 v3, {base}, v7')
        else:
            p(f'v_subrev_u32 v3, {-base}, v7')
            p('v_max_i32 v3, 0, v3')
        p('v_mul_u32_u24 v4, 2185, v3')
        p('v_lshrrev_b32 v4, 16, v4')
        p('v_mul_u32_u24 v5, 30, v4')
        p('v_sub_u32 v5, v3, v5')
        p('v_lshrrev_b32 v3, 1, v4')
        p('v_xor_b32 v3, v3, v4')
        p('v_and_b32 v3, 4, v3')
        p('v_mul_u32_u24 v3, 3, v3')
        p('v_xor_b32 v4, v3, v4')
        p('v_mul_u32_u24 v4, s60, v4')
        if attn:
            p('v_mul_u32_u24 v3, 205, v5')
            p('v_lshrrev_b32 v3, 11, v3')
            p('v_mul_u32_u24 v3, 1120, v3')
            p('v_lshlrev_b32 v5, 4, v5')
            p('v_add3_u32 v5, v5, v3, s61')
        else:
            p('v_lshlrev_b32 v5, 4, v5')
            p('v_add_u32 v5, s61, v5')
            if CFG['ZOOB']:
                p('v_cmp_lt_u32 vcc, 3440, v5')
            else:
                p('v_min_u32 v5, 3440, v5')
        p(f'v_add_u32 v{dst}, v4, v5')
        if (not attn) and CFG['ZOOB']:
            p(f'v_cndmask_b32 v{dst}, v{dst}, v9, vcc')
        if i == 4:
            p('s_cmp_lt_u32 s57, 2')
            p('s_cselect_b64 vcc, -1, 0')
            p(f'v_cndmask_b32 v{VOFF+4}, v8, v6, vcc')

    p('s_waitcnt lgkmcnt(0)')
    if attn:
        srd(p, SRD_X, S_AX, 2048 * 1280)
        srd(p, SRD_W, S_WQKV, 640 * 3840)
    else:
        srd(p, SRD_X, S_AX, 2048 * 1280)
        srd(p, SRD_W, S_W1, 640 * 3456)
    p('s_cmp_lt_u32 s57, 2')
    for k in range(3):
        p(f's_cselect_b32 s{SRD_I4+k}, s{SRD_X+k}, s{SRD_W+k}')
    p(f's_mov_b32 s{SRD_I4+3}, 0x20000')
    p('s_movk_i32 s73, 128')
    p('s_cselect_b32 s73, s73, %d' % (64 * rowstride))
    if CFG['ROT']:
        p(f's_and_b32 s79, s{S_RB}, 7')
        p('s_lshr_b32 s80, s79, 2')
        p('s_add_u32 s79, s79, s80')
        p(f's_and_b32 s80, s{S_CG}, 1')
        p(f's_lshl_b32 s81, s{S_TYPE}, 1')
        p('s_add_u32 s80, s80, s81')
        p('s_mul_i32 s80, s80, 5')
        p('s_lshr_b32 s80, s80, 1')
        p('s_add_u32 s79, s79, s80')
        p('s_cmp_ge_u32 s79, 10')
        p('s_cselect_b32 s80, 10, 0')
        p('s_sub_u32 s79, s79, s80')
    else:
        p('s_mov_b32 s79, 0')
    p('s_lshl_b32 s74, s79, 7')
    p(f's_mul_i32 s75, s79, {64*rowstride}')
    p('s_mul_i32 s76, s79, s73')
    p('s_lshl_b32 s77, s57, 10')

    def issue_stage(st, lazy=False):
        slot = st % 3
        ldf = CFG['LDF0'] if st < CFG['NT_ST'] else CFG['LDF']
        for i in range(12):
            if lazy and i >= 4:
                w_offset(i)
            p(f's_add_u32 m0, s77, {slot*SLOT + i*4096}')
            if i < 4:
                if i == 0:
                    p('s_nop 0')
                p(f'buffer_load_dwordx4 v{VOFF+i}, s[{SRD_X}:{SRD_X+3}], s74 offen {ldf} lds')
            elif i == 4:
                p(f'buffer_load_dwordx4 v{VOFF+i}, s[{SRD_I4}:{SRD_I4+3}], s76 offen {ldf} lds')
            else:
                p(f'buffer_load_dwordx4 v{VOFF+i}, s[{SRD_W}:{SRD_W+3}], s75 offen {ldf} lds')
        p('s_add_u32 s74, s74, 128')
        p(f's_add_u32 s75, s75, {64*rowstride}')
        p('s_add_u32 s76, s76, s73')
        if CFG['ROT']:
            p('s_add_u32 s79, s79, 1')
            p('s_cmp_eq_u32 s79, 10')
            for r in (79, 74, 75, 76):
                p(f's_cselect_b32 s{r}, 0, s{r}')

    stamp(p, 0)
    issue_stage(0, lazy=True)
    issue_stage(1)
    UF = CFG['UNITS_FFN']
    scr_base = SLOT if (UF and not attn) else SCR

    def unit_decode(sfx):
        p('s_and_b32 s64, s62, 7')
        p('s_lshr_b32 s65, s62, 3')
        p('s_lshl_b32 s66, s65, 5')
        p('s_mov_b32 s67, 16')
        p('s_mov_b32 s68, 4')
        p('s_mul_i32 s69, s64, 54')
        p('s_add_u32 s69, s69, s65')
        p('s_mul_i32 s69, s69, 5120')
        p(f's_add_u32 s69, s69, {W2_OFF}')
        p('s_mov_b32 s70, 0')
        p('s_cmp_lt_u32 s65, 54')
        p(f's_cbranch_scc1 L_unit_done_{tag}{sfx}')
        p('s_sub_u32 s65, s65, 54')
        p('s_mov_b32 s70, 1')
        p('s_mul_i32 s69, s64, 20')
        p('s_add_u32 s69, s69, s65')
        p('s_mul_i32 s69, s69, 5120')
        p(f's_add_u32 s69, s69, {WO_OFF}')
        p('s_mul_i32 s66, s65, 40')
        p('s_mov_b32 s67, 20')
        p('s_cmp_lt_u32 s65, 16')
        p(f's_cbranch_scc1 L_unit_done_{tag}{sfx}')
        p('s_sub_u32 s65, s65, 16')
        p('s_mul_i32 s66, s65, 160')
        p('s_add_u32 s66, s66, 16')
        p('s_mov_b32 s67, 80')
        p('s_mov_b32 s68, 20')
        p.label(f'L_unit_done_{tag}{sfx}')
        p('s_mul_i32 s71, s64, 160')
        p('s_movk_i32 s58, 1280')
        for i in range(5):
            p(f'v_add_u32 v3, {64*i}, v{VL}')
            p('v_mul_u32_u24 v4, 6554, v3')
            p('v_lshrrev_b32 v4, 16, v4')
            p('v_mul_u32_u24 v5, 10, v4')
            p('v_sub_u32 v5, v3, v5')
            p('v_lshlrev_b32 v5, 4, v5')
            p('v_add_u32 v5, s71, v5')
            p('v_lshrrev_b32 v3, 4, v4')
            p('v_mul_u32_u24 v3, s67, v3')
            p('v_bfe_u32 v6, v4, 2, 2')
            p('v_mul_u32_u24 v6, s68, v6')
            p('v_and_b32 v4, 3, v4')
            p('v_add3_u32 v3, v3, v6, v4')
            p('v_add_u32 v3, s66, v3')
            p('v_mul_u32_u24 v3, s58, v3')
            p(f'v_add_u32 v{22+i}, v3, v5')

    def unit_srd():
        p('s_cmp_eq_u32 s70, 0')
        p(f's_cselect_b32 s{SRD_A}, s{S_W2}, s{S_WO}')
        p(f's_cselect_b32 s{SRD_A+1}, s{S_W2+1}, s{S_WO+1}')
        p(f's_mov_b32 s{SRD_A+2}, {1728*1280}')
        p(f's_cselect_b32 s{SRD_A+2}, s{SRD_A+2}, {640*1280}')
        p(f's_mov_b32 s{SRD_A+3}, 0x20000')

    do_units = True
    NFU = CFG['NFU']
    always = UF and not attn and NFU == 4
    if UF:
        p(f's_lshl_b32 s62, s{S_RB}, 3')
        p(f's_add_u32 s62, s62, s{S_CG}')
        p('s_lshl_b32 s63, s57, 7')
        p('s_add_u32 s62, s62, s63')
        if not attn:
            p(f's_cmp_lt_u32 s57, {NFU}')
            p('s_cselect_b32 s63, 1, 0')
        else:
            p(f's_add_u32 s62, s62, {128*NFU}')
            p('s_cmp_lt_u32 s62, 592')
            p('s_cselect_b32 s63, 1, 0')
            p('s_cmp_lt_u32 s57, 3')
            p('s_cselect_b32 s63, s63, 0')
    else:
        p('s_lshl_b32 s62, s57, 8')
        p('s_add_u32 s62, s62, s2')
        p('s_cmp_lt_u32 s62, 592')
        p('s_cselect_b32 s63, 1, 0')
        p('s_cmp_lt_u32 s57, 3')
        p('s_cselect_b32 s63, s63, 0')
    if do_units:
        unit_decode('')
        p(f'v_lshrrev_b32 v3, 2, v{VL}')
        p('v_mul_u32_u24 v3, 160, v3')
        p('s_mul_i32 s72, s57, 5120')
        p(f's_add_u32 s72, s72, {scr_base}')
        p('v_add_u32 v3, s72, v3')
        p(f'v_and_b32 v4, 3, v{VL}')
        p('v_lshl_add_u32 v27, v4, 4, v3')
        p('v_lshl_add_u32 v28, v4, 3, v3')
        p(f'v_lshlrev_b32 v29, 4, v{VL}')
        p('v_add_u32 v30, 4096, v29')
    if not attn:
        p(f's_lshl_b32 s58, s{S_RB}, 3')
        p(f's_add_u32 s58, s58, s{S_CG}')
        p('s_lshl_b32 s58, s58, 4')
        p('s_lshl_b32 s59, s57, 2')
        p('s_add_u32 s58, s58, s59')
        p(f'v_lshrrev_b32 v3, 4, v{VL}')
        p('v_add_u32 v31, s58, v3')
        p('s_movk_i32 s58, 1280')
        p('v_mul_u32_u24 v3, s58, v31')
        p(f'v_and_b32 v4, 15, v{VL}')
        p('v_lshlrev_b32 v33, 4, v4')
        p('v_add_u32 v32, v3, v33')
    srd(p, SRD_WS, S_WS, WS_USED)
    if do_units:
        unit_srd()
    GX, GW = 40, 60
    gate = (not attn)
    TG = 10 if gate else 0
    if gate:
        srd(p, SRD_B, S_GW, 1280)

    def unit_loads():
        for i in range(5):
            p(f's_add_u32 m0, s72, {i*1024}')
            p('s_nop 0')
            p(f'buffer_load_dwordx4 v{22+i}, s[{SRD_A}:{SRD_A+3}], 0 offen {CFG["ULDF"]} lds')

    def unit_finish():
        for f in range(5):
            a, off = (27, [0, 8, 64, 72][f]) if f < 4 else (28, 128)
            p(f'ds_read_b64_tr_b16 v[{84+4*f}:{85+4*f}], v{a} offset:{off}')
            p(f'ds_read_b64_tr_b16 v[{86+4*f}:{87+4*f}], v{a} offset:{off+2560}')
        for f in range(5):
            p(f's_waitcnt lgkmcnt({8-2*f})')
            if f < 4:
                p(f'buffer_store_dwordx4 v[{84+4*f}:{87+4*f}], v29, s[{SRD_WS}:{SRD_WS+3}], s69 offen offset:{1024*f} {CFG["STF"]}')
            else:
                p(f'buffer_store_dwordx4 v[{84+4*f}:{87+4*f}], v30, s[{SRD_WS}:{SRD_WS+3}], s69 offen {CFG["STF"]}')

    def tail_loads():
        if not do_units:
            return
        if always:
            unit_loads()
        else:
            p('s_cmp_eq_u32 s63, 0')
            p(f's_cbranch_scc1 L_nounit_ld_{tag}')
            unit_loads()
            p.label(f'L_nounit_ld_{tag}')
        if gate:
            for j in range(5):
                p(f'buffer_load_dwordx4 v[{GX+4*j}:{GX+4*j+3}], v32, s[{SRD_X}:{SRD_X+3}], 0 offen offset:{256*j}')
                p(f'buffer_load_dwordx4 v[{GW+4*j}:{GW+4*j+3}], v33, s[{SRD_B}:{SRD_B+3}], 0 offen offset:{256*j}')

    def wait_vm(n_nounit, n_unit, uid):
        if always:
            n_nounit = n_unit
        if n_nounit == n_unit:
            p(f's_waitcnt vmcnt({n_unit})')
            return
        p('s_cmp_eq_u32 s63, 0')
        p(f's_cbranch_scc1 L_w{uid}a_{tag}')
        p(f's_waitcnt vmcnt({n_unit})')
        p(f's_branch L_w{uid}b_{tag}')
        p.label(f'L_w{uid}a_{tag}')
        p(f's_waitcnt vmcnt({n_nounit})')
        p.label(f'L_w{uid}b_{tag}')

    if CFG['TEARLY']:
        tail_loads()
        wait_vm(12 + TG, 12 + TG + 5, 'i')
    else:
        p('s_waitcnt vmcnt(12)')
    stamp(p, 1)
    p('s_barrier')
    issue_stage(2)
    for j in range(9):
        if CFG['TEARLY']:
            if j == 0:
                wait_vm(12 + TG, 12 + TG + 5, j)
            else:
                p('s_waitcnt vmcnt(%d)' % (12 if j <= 7 else 0))
        elif j <= 7:
            p('s_waitcnt vmcnt(12)')
        else:
            wait_vm(TG, TG + 5, j)
        p('s_barrier')
        if j + 3 <= 9 and not CFG['NOLOAD']:
            issue_stage(j + 3)
        if j == 7 and not CFG['TEARLY']:
            tail_loads()
        if j == 3 and CFG['TEARLY'] and gate:
            gate_job(p, GX, GW, store=False)
    stamp(p, 2)
    if CFG['K2PF']:
        p('s_cmp_eq_u32 s57, 3')
        p(f's_cbranch_scc0 L_nok2pf_{tag}')
        p(f'v_mov_b32 v34, v{VL}')
        code_prefetch(p, 'gm_k2_kernel', 'L_k2_end', 12288, 34, 255, 84, 'k2pf' + tag)
        p.label(f'L_nok2pf_{tag}')
    if do_units:
        p('s_waitcnt vmcnt(0)')
        if always:
            unit_finish()
        else:
            p('s_cmp_eq_u32 s63, 0')
            p(f's_cbranch_scc1 L_nounit_{tag}')
            unit_finish()
            p.label(f'L_nounit_{tag}')
    if gate:
        if CFG['TEARLY']:
            gate_store(p)
        else:
            gate_job(p, GX, GW)
    stamp(p, 3)
    if CFG['PROF']:
        prof_store(p, 4, 'LD' + tag, SRD_WS)
    p('s_endpgm')


def prof_debug(p, n, tag, sbase=90):
    p('s_waitcnt lgkmcnt(0) vmcnt(0)')
    p('s_and_b32 s86, s2, 127')
    p('s_cmp_eq_u32 s86, 0')
    p(f's_cbranch_scc0 L_pd_{tag}')
    p(f's_and_b32 s86, s{S_WAVE}, 3')
    p('s_cmp_eq_u32 s86, 0')
    p(f's_cbranch_scc0 L_pd_{tag}')
    p('s_load_dwordx2 s[76:77], s[0:1], 80')
    p('s_waitcnt lgkmcnt(0)')
    p('s_mov_b32 s78, 256')
    p('s_mov_b32 s79, 0x20000')
    p('s_lshr_b32 s86, s2, 7')
    p('s_lshl_b32 s86, s86, 1')
    p(f's_lshr_b32 s85, s{S_WAVE}, 2')
    p('s_add_u32 s86, s86, s85')
    p('s_lshl_b32 s86, s86, 4')
    p('v_mov_b32 v1, 0')
    for i in range(n):
        p(f's_sub_u32 s85, s{sbase+2*i}, s88')
        p('v_mov_b32 v0, s85')
        p(f'buffer_store_dword v0, v1, s[76:79], s86 offen offset:{4*i}')
    p('s_waitcnt vmcnt(0)')
    p.label(f'L_pd_{tag}')


_pd = [0]


def prof_collect(p, srdws):
    p('s_waitcnt lgkmcnt(0) vmcnt(0)')
    p(f's_or_b32 s86, s2, s{S_WAVE}')
    p('s_cmp_eq_u32 s86, 0')
    p('s_cbranch_scc0 L_pc5')
    p('s_load_dwordx2 s[76:77], s[0:1], 80')
    p(f's_mov_b32 s{srdws+2}, 0x10000000')
    p('v_mbcnt_lo_u32_b32 v0, -1, 0')
    p('v_mbcnt_hi_u32_b32 v0, -1, v0')
    p('v_lshrrev_b32 v1, 2, v0')
    p('v_and_b32 v2, 3, v0')
    p('v_lshlrev_b32 v2, 2, v2')
    p('v_cmp_eq_u32 vcc, 1, v1')
    p('v_mov_b32 v3, 0')
    p('v_mov_b32 v4, 256')
    p('v_cndmask_b32 v3, v3, v4, vcc')
    p('v_cmp_eq_u32 vcc, 2, v1')
    p(f'v_mov_b32 v4, {128*8*64}')
    p('v_cndmask_b32 v3, v3, v4, vcc')
    p('v_add_u32 v3, v3, v2')
    p(f'v_add_u32 v3, {PROF_OFF}, v3')
    p(f'buffer_load_dword v5, v3, s[{srdws}:{srdws+3}], 0 offen')
    p(f'v_mov_b32 v6, {PROF_OFF + 60}')
    p(f'buffer_load_dword v7, v6, s[{srdws}:{srdws+3}], 0 offen')
    p('s_waitcnt vmcnt(0) lgkmcnt(0)')
    p('s_mov_b32 s78, 256')
    p('s_mov_b32 s79, 0x20000')
    p('v_sub_u32 v5, v5, v7')
    for ln, sr_ in ((12, 88), (13, 90), (14, 94), (15, 96)):
        p(f'v_mov_b32 v8, s{sr_}')
        p('v_sub_u32 v8, v8, v7')
        p(f'v_cmp_eq_u32 vcc, {ln}, v0')
        p('v_cndmask_b32 v5, v5, v8, vcc')
    p('v_lshlrev_b32 v0, 2, v0')
    p('v_cmp_gt_u32 vcc, 64, v0')
    p('s_and_saveexec_b64 s[84:85], vcc')
    p('buffer_store_dword v5, v0, s[76:79], 0 offen')
    p('s_waitcnt vmcnt(0)')
    p.label('L_pc5')


def prof_store(p, n, tag, srdws, sbase=90):
    if CFG['PROF'] == 5 and tag.startswith('K2'):
        return prof_collect(p, srdws)
    if CFG['PROF'] == 4:
        _pd[0] += 1
        return prof_debug(p, n, tag + str(_pd[0]), sbase)
    return prof_store_ws(p, n, tag, srdws, sbase)


def prof_store_ws(p, n, tag, srdws, sbase=90):
    p('s_memtime s[80:81]')
    p('s_memrealtime s[78:79]')
    p('s_waitcnt lgkmcnt(0) vmcnt(0)')
    p('s_sub_u32 s80, s80, s82')
    p('s_sub_u32 s78, s78, s88')
    p(f's_mov_b32 s{srdws+2}, 0x10000000')
    p(f's_lshl_b32 s86, s2, 3')
    p(f's_add_u32 s86, s86, s{S_WAVE}')
    p(f's_lshl_b32 s86, s86, 6')
    p(f's_add_u32 s86, s86, {PROF_OFF + (0 if not tag.startswith("K2") else (1 << 20))}')
    if CFG['PROF'] == 3:
        p(f's_lshl_b32 s85, s2, 3')
        p(f's_add_u32 s85, s85, s{S_WAVE}')
        p(f's_lshl_b32 s85, s85, 8')
        p(f's_add_u32 s85, s85, {PROF_OFF + (2 << 20)}')
        p('v_mbcnt_lo_u32_b32 v0, -1, 0')
        p('v_mbcnt_hi_u32_b32 v0, -1, v0')
        p('v_lshlrev_b32 v0, 2, v0')
        if not tag.startswith('K2'):
            p(f'buffer_store_dword v254, v0, s[{srdws}:{srdws+3}], s85 offen')
    p('v_mov_b32 v1, 0')
    p('v_mov_b32 v0, s88')
    p(f'buffer_store_dword v0, v1, s[{srdws}:{srdws+3}], s86 offen offset:60')
    p('v_mov_b32 v0, s80')
    p(f'buffer_store_dword v0, v1, s[{srdws}:{srdws+3}], s86 offen offset:56')
    p('v_mov_b32 v0, s78')
    p(f'buffer_store_dword v0, v1, s[{srdws}:{srdws+3}], s86 offen offset:52')
    for i in range(n):
        p(f'v_mov_b32 v0, s{sbase+2*i}')
        p(f'buffer_store_dword v0, v1, s[{srdws}:{srdws+3}], s86 offen offset:{4*i}')
    p('s_waitcnt vmcnt(0)')


def gate_store(p):
    p(f'buffer_store_dwordx2 v[38:39], v37, s[{SRD_WS}:{SRD_WS+3}], 0 offen {CFG["STF"]}')


def gate_job(p, GX, GW, store=True):
    T = 104
    p('v_mov_b32 v34, 0')
    p('v_mov_b32 v35, 0')
    p('v_mov_b32 v36, 0x3f803f80')
    p('s_mov_b32 s78, 0xffff0000')
    for d in range(20):
        x, w = GX + d, GW + d
        t = T + 6 * (d & 1)
        p(f'v_lshlrev_b32 v{t}, 16, v{x}')
        p(f'v_and_b32 v{t+1}, s78, v{x}')
        p(f'v_lshlrev_b32 v{t+2}, 16, v{w}')
        p(f'v_and_b32 v{t+3}, s78, v{w}')
        p(f'v_pk_mul_f32 v[{t}:{t+1}], v[{t}:{t+1}], v[{t+2}:{t+3}]')
        p(f'v_cvt_pk_bf16_f32 v{t+4}, v{t}, v{t+1}')
        acc = 34 + (d & 1)
        p(f'v_dot2_f32_bf16 v{acc}, v{t+4}, v36, v{acc}')
    p('v_add_f32 v34, v34, v35')
    for sh in (8, 4, 2, 1):
        p(f'v_add_f32_dpp v34, v34, v34 row_ror:{sh} row_mask:0xf bank_mask:0xf')
    p('v_cvt_pk_bf16_f32 v35, v34, v34')
    p('v_lshlrev_b32 v35, 16, v35')
    p(f'v_mul_f32 v35, {hexf(-math.log2(math.e))}, v35')
    p('v_exp_f32 v35, v35')
    p('v_add_f32 v35, 1.0, v35')
    p('v_rcp_f32 v35, v35')
    p('v_cvt_pk_bf16_f32 v35, v35, v35')
    p('v_lshlrev_b32 v38, 16, v35')
    p('v_sub_f32 v39, 1.0, v38')
    p('v_cvt_pk_bf16_f32 v39, v39, v39')
    p('v_lshlrev_b32 v39, 16, v39')
    p('v_lshlrev_b32 v37, 3, v31')
    p(f'v_add_u32 v37, {G_OFF}, v37')
    if store:
        gate_store(p)


A_QM = lambda h, t: 0 + (h * 4 + t) * 4
A_KM = lambda h, kt: 32 + (h * 5 + kt) * 4
A_QKT = lambda kt: 72 + 4 * kt
A_VM = lambda h, kt: 92 + (h * 5 + kt) * 4
A_VT = lambda kt: 132 + 4 * kt
WF = lambda f: 152 + 4 * f
XF = lambda b, t: 184 + 20 * b + 4 * t
V_X0, V_X1, V_W, V_WA, V_WB = 224, 225, 226, 227, 228
V_BPREV, V_BCUR, V_BFIRST, V_SEL = 232, 236, 240, 244
F_ACC = lambda f, t: (f * 4 + t) * 4


class LgkmTracker:
    def __init__(self, p):
        self.p = p
        self.q = []

    def issue(self, tag):
        self.q.append(tag)

    def need(self, tags):
        idx = -1
        for i, t in enumerate(self.q):
            if t in tags:
                idx = i
        if idx < 0:
            return
        n = len(self.q) - 1 - idx
        self.p(f's_waitcnt lgkmcnt({min(n, 15)})')
        keep = min(n, 15)
        self.q = self.q[len(self.q) - keep:] if keep else []

    def drain(self):
        self.p('s_waitcnt lgkmcnt(0)')
        self.q = []


def consumer_loop(p, attn, th=None):
    tag = ('A' if attn else 'F') + ('' if th is None else str(th))
    NT = 5 if attn else 4
    xoff = lambda t: 2048 * t
    if attn:
        kk = range(5) if th in (None, 0) else range(1, 5)
        vk = range(5) if th in (None, 1) else range(1, 5)
        if th == 1:
            xoff = lambda t: 0 if t == 0 else 8192 + 2048 * t
        tiles = []
        for h in range(2):
            tiles.append([(A_QM(h, t), t + 1, 'F') for t in range(4)])
        for h in range(2):
            tiles.append([(A_KM(h, k), k, 'F') for k in kk])
        tiles.append([(A_QKT(k), k, 'F') for k in kk])
        for h in range(2):
            tiles.append([(A_VM(h, k), k, 'T') for k in vk])
        tiles.append([(A_VT(k), k, 'T') for k in vk])
        waddr = [(V_W, 0), (V_W, 40), (V_W, 160), (V_W, 200), (V_WA, 0), (V_W, 320), (V_W, 360), (V_WB, 0)]
    else:
        tiles = [[(F_ACC(f, t), t, 'F') for t in range(4)] for f in range(7)]
        waddr = [(V_W, 32 * f) for f in range(6)] + [(V_WA, 0)]
    NF = len(tiles)

    lg = LgkmTracker(p)

    def rd_w(f, s):
        if CFG['NODS']:
            return
        a, off = waddr[f]
        off += s * 32 * WROW
        p(f'ds_read_b64_tr_b16 v[{WF(f)}:{WF(f)+1}], v{a} offset:{off}')
        lg.issue(('w', f))
        p(f'ds_read_b64_tr_b16 v[{WF(f)+2}:{WF(f)+3}], v{a} offset:{off + 8*WROW}')
        lg.issue(('w', f))

    def rd_x(t, s):
        if CFG['NODS']:
            return
        p(f'ds_read_b128 v[{XF(s,t)}:{XF(s,t)+3}], v{V_X1 if s else V_X0} offset:{2048*t}')
        lg.issue(('x', s, t))

    LAST = NF - 1

    def wreads(f, s):
        a, off = waddr[f]
        off += s * 32 * WROW
        return [(f'ds_read_b64_tr_b16 v[{WF(f)}:{WF(f)+1}], v{a} offset:{off}', ('w', f)),
                (f'ds_read_b64_tr_b16 v[{WF(f)+2}:{WF(f)+3}], v{a} offset:{off + 8*WROW}', ('w', f))]

    def xread(t, s):
        return (f'ds_read_b128 v[{XF(s,t)}:{XF(s,t)+3}], v{V_X1 if s else V_X0} offset:{xoff(t)}', ('x', s, t))

    def emit(item):
        if CFG['NODS']:
            return
        p(item[0])
        lg.issue(item[1])

    order_log = []

    def packing():
        cv = lambda d, a: f'v_cvt_pk_bf16_f32 v{d}, v{a}, v{a+1}'
        out = []
        for h in range(2):
            for t in range(4):
                b = A_QM(h, t)
                out += [(h, cv(b, b)), (h, cv(b + 1, b + 2))]
        for h in range(2):
            for kt in kk:
                b = A_KM(h, kt)
                out += [(2 + h, cv(b, b)), (2 + h, cv(b + 1, b + 2))]
        for kt in kk:
            t = A_QKT(kt)
            out += [(4, cv(t, t)), (4, cv(t + 1, t + 2))]
        for kt in kk:
            t, k0 = A_QKT(kt), A_KM(0, kt)
            out += [(4, f'v_mov_b32 v{k0+2}, v{t}'), (4, f'v_mov_b32 v{k0+3}, v{t+1}')]
        return out

    def step(s, dry=False, last=False):
        nxt = 1 - s
        q = wreads(LAST, s)
        xq = [xread(t, nxt) for t in range(NT)]
        held = []
        upd = [V_W, V_X0, V_X1, V_WA] + ([V_WB] if attn else [])
        pk = []
        if last:
            xq, upd = [], []
            pk = packing() if attn else []
        for f in range(NF):
            if not dry:
                lg.need({('w', f)} | ({('x', s, t) for t in range(NT)} if f == 0 else set()))
            for n, (acc, t, o) in enumerate(tiles[f]):
                w, x = f'v[{WF(f)}:{WF(f)+3}]', f'v[{XF(s,t)}:{XF(s,t)+3}]'
                a, b = (w, x) if o == 'F' else (x, w)
                if not CFG['NOMFMA'] and not dry:
                    p(f'v_mfma_f32_16x16x32_bf16 v[{acc}:{acc+3}], {a}, {b}, v[{acc}:{acc+3}]')
                item = None
                if q:
                    item = q.pop(0)
                elif xq and (s == 0 or f >= 2):
                    item = xq.pop(0)
                if item is not None:
                    if dry:
                        order_log.append(item)
                    else:
                        emit(item)
                if not dry and s == 0 and f == LAST and n == 1:
                    p(f's_add_u32 s53, s53, {SLOT}')
                    p(f's_cmp_eq_u32 s53, {3*SLOT}')
                if not dry and s == 0 and f == LAST and n == 2:
                    p(f's_cselect_b32 s54, s51, {SLOT}')
                    p('s_cselect_b32 s53, 0, s53')
                if not dry and s == 1 and item is None and upd and (f, n) >= (0, 2):
                    p(f'v_add_u32 v{upd[0]}, s54, v{upd[0]}')
                    upd.pop(0)
                for _ in range(2):
                    if pk and pk[0][0] + 2 <= f:
                        p(pk.pop(0)[1])
            if f < LAST and not last:
                rs = wreads(f, nxt)
                if s == 1 and f < 1:
                    held += rs
                elif s == 1 and f == 1:
                    assert not q
                    if not dry:
                        assert not upd
                        if CFG['PROF'] == 3:
                            p('s_memtime s[70:71]')
                        lg.drain()
                        if CFG['PROF'] == 3:
                            p('s_lshl_b32 m0, s52, 1')
                            p('s_nop 3')
                            p('v_writelane_b32 v254, s70, m0')
                            p('s_add_u32 s74, m0, 63')
                            p('s_and_b32 m0, s74, 63')
                            p('s_nop 3')
                            p('v_writelane_b32 v254, s72, m0')
                        if CFG['PEEL']:
                            p('s_barrier')
                        else:
                            p('s_cmp_eq_u32 s52, 9')
                            p(f's_cbranch_scc1 L_nobar_{tag}')
                            p('s_barrier')
                            p.label(f'L_nobar_{tag}')
                        if CFG['PROF'] == 3:
                            p('s_memtime s[72:73]')
                    q += held + rs
                    held = []
                else:
                    q += rs
        assert not q and not xq, (q, xq)
        for _, ins in pk:
            p(ins)

    step(1, dry=True)
    for item in order_log[2:]:
        emit(item)
    p('s_mov_b32 s52, 0')
    p('s_mov_b32 s53, 0')
    p(f's_mov_b32 s51, {(-2*SLOT) & 0xffffffff}')
    p.label(f'L_loop_{tag}')
    q_head = list(lg.q)
    step(0)
    step(1)
    q_end = list(lg.q)
    assert q_end == q_head, (q_end, q_head)
    p('s_add_u32 s52, s52, 1')
    p(f's_cmp_lt_u32 s52, {9 if CFG["PEEL"] else 10}')
    p(f's_cbranch_scc1 L_loop_{tag}')
    if CFG['PEEL']:
        step(0)
        step(1, last=True)
    lg.drain()


def check_loop_waits():
    pass


def tlb_touch(p, tag):
    if not CFG['TT']:
        return
    p(f's_cmp_eq_u32 s{S_WAVE}, 1')
    p(f's_cbranch_scc0 L_tt1{tag}')
    for i in range(7):
        p(f's_mov_b32 s70, {i << 21}')
        p(f's_load_dword s{71+i}, s[{S_WS}:{S_WS+1}], s70')
    p.label(f'L_tt1{tag}')
    p(f's_cmp_eq_u32 s{S_WAVE}, 2')
    p(f's_cbranch_scc0 L_tt2{tag}')
    p(f's_load_dword s71, s[{S_WO}:{S_WO+1}], 0')
    p(f's_load_dword s72, s[{S_W2}:{S_W2+1}], 0')
    p(f's_mov_b32 s70, {(1 << 21) + 4096}')
    p(f's_load_dword s73, s[{S_W2}:{S_W2+1}], s70')
    p(f's_load_dword s74, s[{S_GW}:{S_GW+1}], 0')
    p(f's_load_dword s75, s[{S_B2}:{S_B2+1}], 0')
    p('s_load_dword s76, s[100:101], 0')
    p('s_load_dword s77, s[100:101], s70')
    p.label(f'L_tt2{tag}')


def prefetch_setup(p, attn):
    rowstride = 3840 if attn else 3456
    p(f's_lshl_b32 s57, s{S_WAVE}, 6')
    p('v_add_u32 v9, s57, v2')
    p(f's_and_b32 s57, s{S_RB}, 7')
    p('s_lshl_b32 s57, s57, 3')
    p('s_add_u32 s57, s57, 128')
    p(f's_mov_b32 s58, {rowstride}')
    if attn:
        p(f's_mul_i32 s59, s{S_CG}, 160')
        p('s_andn2_b32 s59, s59, 127')
        for rnd in range(2):
            p(f'v_add_u32 v3, {256*rnd}, v9')
            p('v_min_u32 v3, 383, v3')
            p('v_mul_u32_u24 v4, 1366, v3')
            p('v_lshrrev_b32 v4, 16, v4')
            p('v_mul_u32_u24 v5, 48, v4')
            p('v_sub_u32 v5, v3, v5')
            p('v_mul_u32_u24 v6, 43, v5')
            p('v_lshrrev_b32 v6, 8, v6')
            p('v_mul_u32_u24 v7, 6, v6')
            p('v_sub_u32 v7, v5, v7')
            p('v_lshl_add_u32 v4, v4, 6, v6')
            p('v_add_u32 v4, s57, v4')
            p('v_mul_u32_u24 v4, s58, v4')
            p('v_lshrrev_b32 v5, 1, v7')
            p('v_mul_u32_u24 v5, 1280, v5')
            p('v_and_b32 v7, 1, v7')
            p('v_lshl_add_u32 v5, v7, 7, v5')
            p(f'v_add3_u32 v{249+rnd}, v4, v5, s59')
    else:
        p(f's_mul_i32 s59, s{S_CG}, 448')
        p('s_andn2_b32 s59, s59, 127')
        p('v_lshrrev_b32 v4, 5, v9')
        p('v_bfe_u32 v6, v9, 2, 3')
        p('v_lshl_add_u32 v4, v4, 6, v6')
        p('v_add_u32 v4, s57, v4')
        p('v_mul_u32_u24 v4, s58, v4')
        p('v_and_b32 v7, 3, v9')
        p('v_lshlrev_b32 v7, 7, v7')
        p('v_add3_u32 v249, v4, v7, s59')
    p(f's_and_b32 s57, s{S_CG}, 1')
    p(f's_lshl_b32 s58, s{S_TYPE}, 1')
    p('s_add_u32 s57, s57, s58')
    p('s_lshl_b32 s57, s57, 5')
    p(f's_lshl_b32 s58, s{S_RB}, 7')
    p('s_add_u32 s57, s57, s58')
    p('v_and_b32 v4, 31, v9')
    p('v_add_u32 v4, s57, v4')
    p('v_mul_u32_u24 v4, 1280, v4')
    p('v_lshrrev_b32 v5, 5, v9')
    p('v_lshlrev_b32 v5, 7, v5')
    p('v_add3_u32 v251, v4, v5, 256' .replace(', 256', ', s99'))


def prefetch_issue(p, attn):
    if not CFG['PF']:
        return
    p(f'buffer_load_dword v255, v251, s[{SRD_X}:{SRD_X+3}], 0 offen {CFG["PFF"]}')
    p(f'buffer_load_dword v255, v249, s[{SRD_W}:{SRD_W+3}], 0 offen {CFG["PFF"]}')
    if attn:
        p(f'buffer_load_dword v255, v250, s[{SRD_W}:{SRD_W+3}], 0 offen {CFG["PFF"]}')


def attn_prologue(p):
    p(f's_and_b32 s55, s{S_WAVE}, 1')
    p(f's_lshr_b32 s56, s{S_WAVE}, 1')
    p('v_and_b32 v3, 15, v2')
    p('v_lshrrev_b32 v4, 4, v2')
    p('v_lshrrev_b32 v5, 1, v3')
    p('v_xor_b32 v5, v5, v4')
    p('v_lshlrev_b32 v5, 4, v5')
    p('v_lshl_add_u32 v5, v3, 7, v5')
    if CFG['M35']:
        p(f'v_mov_b32 v{V_X0}, v5')
    else:
        p('s_lshl_b32 s57, s56, 13')
        p(f'v_add_u32 v{V_X0}, s57, v5')
    p(f'v_xor_b32 v{V_X1}, 64, v{V_X0}')
    p('v_lshrrev_b32 v5, 5, v2')
    p('v_lshlrev_b32 v5, 4, v5')
    p('v_bfe_u32 v6, v2, 4, 1')
    p('v_lshl_add_u32 v5, v6, 2, v5')
    p('v_bfe_u32 v6, v2, 2, 2')
    p('v_add_u32 v5, v5, v6')
    p(f'v_mul_u32_u24 v5, {WROW}, v5')
    p('s_mul_i32 s57, s55, 80')
    p(f's_add_u32 s57, s57, {XREG}')
    p('v_add_u32 v5, s57, v5')
    p('v_and_b32 v6, 3, v2')
    p(f'v_lshl_add_u32 v{V_W}, v6, 3, v5')
    p('v_and_b32 v7, 1, v6')
    p('v_mul_u32_u24 v7, 40, v7')
    p('v_add_u32 v7, v7, v5')
    p('v_lshrrev_b32 v6, 1, v6')
    p('v_mul_u32_u24 v6, 160, v6')
    p(f'v_add3_u32 v{V_WA}, v7, v6, 32')
    p(f'v_add_u32 v{V_WB}, 352, v7')
    p('v_lshlrev_b32 v5, 2, v4')
    p('v_sub_u32 v5, v3, v5')
    p(f's_mov_b32 s58, {hexf(-1e30)}')
    p('v_mov_b32 v8, s58')
    p(f's_or_b32 s59, s{S_RB}, s56')
    p('s_cmp_eq_u32 s59, 0')
    p('s_cselect_b64 s[60:61], -1, 0')
    for r in range(4):
        p(f'v_subrev_u32 v6, {r}, v5')
        p('v_and_b32 v7, 1, v6')
        p('v_cmp_eq_u32 s[62:63], 0, v7')
        p('v_cmp_ge_i32 s[64:65], v6, 0')
        p('s_and_b64 s[66:67], s[62:63], s[64:65]')
        p('s_andn2_b64 s[68:69], s[62:63], s[64:65]')
        p(f'v_cndmask_b32 v{V_BCUR+r}, v8, 0, s[66:67]')
        p(f'v_cndmask_b32 v{V_BPREV+r}, v8, 0, s[68:69]')
        p(f'v_cndmask_b32 v{V_BFIRST+r}, v{V_BPREV+r}, v8, s[60:61]')
    p('v_and_b32 v7, 1, v3')
    p('v_cmp_eq_u32 s[62:63], 0, v7')
    for k, (lo, hi) in enumerate([(0x0c0c0100, 0x01000c0c), (0x0c0c0302, 0x03020c0c)]):
        p(f'v_mov_b32 v6, {hex(hi)}')
        p(f'v_mov_b32 v9, {hex(lo)}')
        p('v_cndmask_b32 v9, v6, v9, s[62:63]')
        p('v_sub_u32 v6, v5, v7')
        if k:
            p('v_subrev_u32 v6, 2, v6')
        p('v_cmp_ge_i32 s[64:65], v6, 0')
        p('v_mov_b32 v6, 0x0c0c0c0c')
        p(f'v_cndmask_b32 v{V_SEL+k}, v9, v6, s[64:65]')
        p(f'v_cndmask_b32 v{V_SEL+2+k}, v6, v9, s[64:65]')
    p('v_lshlrev_b32 v248, 4, v2')
    if CFG['M35']:
        p('s_lshl_b32 s57, s55, 13')
        p(f's_add_u32 s57, s57, {2*SLOT}')
        p('v_add_u32 v249, s57, v248')
        p('v_lshrrev_b32 v250, 1, v248')
        p('v_add_u32 v250, s57, v250')
        p('s_lshl_b32 s57, s55, 3')
        p(f's_add_u32 s57, s57, {XFLAG}')
        p('v_mov_b32 v251, s57')
        p('v_mov_b32 v252, 0')
        p('v_mov_b32 v253, 0')
        p('ds_write_b64 v251, v[252:253]')
    for r in range(152):
        p(f'v_mov_b32 v{r}, 0')


def attn_epilogue(p, th=None):
    cvt = lambda d, a: p(f'v_cvt_pk_bf16_f32 v{d}, v{a}, v{a+1}')
    tg = '' if th is None else str(th)
    kk = list(range(5)) if th in (None, 0) else [1, 2, 3, 4]
    vk = list(range(5)) if th in (None, 1) else [1, 2, 3, 4]
    p('s_nop 7')

    def pack_k(kts):
        if CFG['PEEL']:
            return
        for kt in kts:
            for h in range(2):
                b = A_KM(h, kt)
                cvt(b, b)
                cvt(b + 1, b + 2)
            t = A_QKT(kt)
            cvt(t, t)
            cvt(t + 1, t + 2)
        for kt in kts:
            t, k0 = A_QKT(kt), A_KM(0, kt)
            p(f'v_mov_b32 v{k0+2}, v{t}')
            p(f'v_mov_b32 v{k0+3}, v{t+1}')

    def tails_k(kts):
        for kt in kts:
            t, k0 = A_QKT(kt), A_KM(0, kt)
            p(f'v_permlane32_swap_b32 v{t}, v{k0+2}')
            p(f'v_permlane32_swap_b32 v{t+1}, v{k0+3}')

    def copy_k(kts):
        for kt in kts:
            k0, k1 = A_KM(0, kt), A_KM(1, kt)
            p(f'v_mov_b32 v{k1+2}, v{k0+2}')
            p(f'v_mov_b32 v{k1+3}, v{k0+3}')

    def pack_v():
        for kt in vk:
            for base, b in ((A_VM(0, 0), A_VM(0, kt)), (A_VM(1, 0), A_VM(1, kt)), (A_VT(0), A_VT(kt))):
                cvt(base + 2 * kt, b)
                cvt(base + 2 * kt + 1, b + 2)

    vbases = (A_VM(0, 0), A_VM(1, 0), A_VT(0))
    if th == 0:
        pack_k([4])
        pack_v()
        tails_k([4])
        rest = [0, 1, 2, 3]
        pack_k(rest[:1])
        copy_k([4])
        p(f'ds_write_b128 v249, v[{A_KM(0,4)}:{A_KM(0,4)+3}]')
        p(f'ds_write_b128 v249, v[{A_KM(1,4)}:{A_KM(1,4)+3}] offset:1024')
        for i, vb in enumerate(vbases):
            p(f'ds_write_b64 v250, v[{vb+8}:{vb+9}] offset:{2048 + 512*i}')
        pack_k(rest[1:])
        p('s_waitcnt lgkmcnt(0)')
        p('v_mov_b32 v252, 1')
        p('ds_write_b32 v251, v252')
        tails_k(rest)
    elif th == 1:
        pack_v()
        for i, vb in enumerate(vbases):
            p(f'ds_write_b64 v250, v[{vb}:{vb+1}] offset:{4096 + 512*i}')
        rest = [1, 2, 3, 4]
        pack_k(rest)
        p('s_waitcnt lgkmcnt(0)')
        p('v_mov_b32 v252, 1')
        p('ds_write_b32 v251, v252 offset:4')
        tails_k(rest)
    else:
        rest = [0, 1, 2, 3, 4]
        pack_k(rest)
        pack_v()
        tails_k(rest)
    for h in range(2):
        for t in range(4):
            b = A_QM(h, t)
            if not CFG['PEEL']:
                cvt(b, b)
                cvt(b + 1, b + 2)
    copy_k(rest)
    p('s_mov_b32 s60, 0x0000ffff')
    p('s_mov_b32 s61, 0')
    p('s_mov_b32 s62, 0xffff0000')
    p('s_mov_b32 s63, 0')
    for t in range(4):
        for h in range(2):
            q, x = A_QM(h, t), A_QKT(t + 1)
            p(f'v_cndmask_b32 v{q+2}, 0, v{x}, s[{60+2*h}:{61+2*h}]')
            p(f'v_cndmask_b32 v{q+3}, 0, v{x+1}, s[{60+2*h}:{61+2*h}]')
    S = lambda t, h: 152 + (t * 2 + h) * 8

    def qk(t):
        for h in range(2):
            q = A_QM(h, t)
            bp = V_BFIRST if t == 0 else V_BPREV
            kp, kc = A_KM(h, t), A_KM(h, t + 1)
            p(f'v_mfma_f32_16x16x32_bf16 v[{S(t,h)}:{S(t,h)+3}], v[{kp}:{kp+3}], v[{q}:{q+3}], v[{bp}:{bp+3}]')
            p(f'v_mfma_f32_16x16x32_bf16 v[{S(t,h)+4}:{S(t,h)+7}], v[{kc}:{kc+3}], v[{q}:{q+3}], v[{V_BCUR}:{V_BCUR+3}]')

    for t in (3, 2, 1):
        qk(t)
    if th is not None:
        p.label(f'L_xspin{th}')
        p(f'ds_read_b32 v252, v251 offset:{4 if th == 0 else 0}')
        p('s_waitcnt lgkmcnt(0)')
        p('v_readfirstlane_b32 s70, v252')
        p('s_cmp_eq_u32 s70, 0')
        p(f's_cbranch_scc1 L_xspin{th}')
        if th == 1:
            p(f'ds_read_b128 v[{A_KM(0,0)}:{A_KM(0,0)+3}], v249')
            p(f'ds_read_b128 v[{A_KM(1,0)}:{A_KM(1,0)+3}], v249 offset:1024')
        for i, vb in enumerate(vbases):
            p(f'ds_read_b64 v[{vb}:{vb+1}], v250 offset:{(2048 if th == 1 else 4096) + 512*i}')
        p('s_waitcnt lgkmcnt(0)')
    qk(0)
    cs = (20 ** -0.5) * math.log2(math.e)
    p(f's_mov_b32 s64, {hexf(cs)}')
    inst = [(t, h) for t in range(4) for h in range(2)]
    for (t, h) in inst:
        s = S(t, h)
        p(f'v_max3_f32 v{s}, v{s}, v{s+1}, v{s+4}')
        p(f'v_max3_f32 v{s+2}, v{s+2}, v{s+3}, v{s+6}')
    for (t, h) in inst:
        s = S(t, h)
        p(f'v_max_f32 v{s}, v{s}, v{s+5}')
        p(f'v_max_f32 v{s+1}, v{s+2}, v{s+7}')
    for (t, h) in inst:
        s = S(t, h)
        p(f'v_max_f32 v{s+2}, v{s}, v{s+1}')

    def cross(groups, op, mid):
        for (A, B, C, D) in groups:
            p(f'v_permlane32_swap_b32 v{A}, v{B}')
            p(f'v_permlane32_swap_b32 v{C}, v{D}')
        for (A, B, C, D) in groups:
            p(f'{op} v{A}, v{A}, v{B}')
            p(f'{op} v{C}, v{C}, v{D}')
        for (A, B, C, D) in groups:
            p(f'v_permlane16_swap_b32 v{A}, v{C}')
        for (A, B, C, D) in groups:
            p(f'{op} v{A}, v{A}, v{C}')
        for (A, B, C, D) in groups:
            mid(A)
        for (A, B, C, D) in groups:
            p(f'v_mov_b32 v{C}, v{A}')
        for (A, B, C, D) in groups:
            p(f'v_permlane16_swap_b32 v{A}, v{C}')
        for (A, B, C, D) in groups:
            p(f'v_mov_b32 v{B}, v{A}')
            p(f'v_mov_b32 v{D}, v{C}')
        for (A, B, C, D) in groups:
            p(f'v_permlane32_swap_b32 v{A}, v{B}')
            p(f'v_permlane32_swap_b32 v{C}, v{D}')

    grp = lambda o: [tuple(S(t, h) + o for (t, h) in inst[0:4]), tuple(S(t, h) + o for (t, h) in inst[4:8])]
    cross(grp(2), 'v_max_f32', lambda A: p(f'v_mul_f32 v{A}, s64, v{A}'))
    for (t, h) in inst:
        s = S(t, h)
        p(f'v_fma_f32 v{s}, v{s}, s64, -v{s+2}')
        p(f'v_fma_f32 v{s+1}, v{s+1}, s64, -v{s+2}')
    for (t, h) in inst:
        s = S(t, h)
        p(f'v_exp_f32 v{s}, v{s}')
        p(f'v_exp_f32 v{s+1}, v{s+1}')
    for (t, h) in inst:
        s = S(t, h)
        p(f'v_add_f32 v{s+2}, v{s}, v{s+1}')
    cross(grp(2), 'v_add_f32', lambda A: p(f'v_rcp_f32 v{A}, v{A}'))
    for (t, h) in inst:
        s = S(t, h)
        p(f'v_mul_f32 v{s}, v{s}, v{s+2}')
        p(f'v_mul_f32 v{s+1}, v{s+1}, v{s+2}')
    for (t, h) in inst:
        s = S(t, h)
        p(f'v_cvt_pk_bf16_f32 v{s+2}, v{s}, v{s+1}')
    for (t, h) in inst:
        s = S(t, h)
        p(f'v_perm_b32 v{s+4}, v{s+2}, v{s+2}, v{V_SEL}')
        p(f'v_perm_b32 v{s+5}, v{s+2}, v{s+2}, v{V_SEL+1}')
        p(f'v_perm_b32 v{s+6}, v{s+2}, v{s+2}, v{V_SEL+2}')
        p(f'v_perm_b32 v{s+7}, v{s+2}, v{s+2}, v{V_SEL+3}')
    for (t, h) in inst:
        s = S(t, h)
        va = A_VM(h, 0) + 2 * t
        vt = A_VT(0) + 2 * t
        om, ot = A_QM(h, t), A_KM(h, t)
        p(f'v_mfma_f32_16x16x32_bf16 v[{om}:{om+3}], v[{va}:{va+3}], v[{s+4}:{s+7}], 0')
        p(f'v_mfma_f32_16x16x32_bf16 v[{ot}:{ot+3}], v[{vt}:{vt+3}], v[{s+4}:{s+7}], 0')
    p(f's_lshl_b32 s65, s{S_RB}, 3')
    p('s_lshl_b32 s66, s56, 2')
    p('s_add_u32 s65, s65, s66')
    p('s_mul_i32 s66, s65, 20')
    p(f's_lshl_b32 s67, s{S_CG}, 1')
    p('s_add_u32 s67, s67, s55')
    p('s_add_u32 s66, s66, s67')
    p('s_lshl_b32 s66, s66, 10')
    p(f's_add_u32 s66, s66, {OA_OFF}')
    p(f's_and_b32 s67, s{S_CG}, 1')
    p('s_lshl_b32 s67, s67, 1')
    p('s_add_u32 s67, s67, s65')
    p('s_mul_i32 s67, s67, 20')
    p(f's_lshr_b32 s68, s{S_CG}, 1')
    p('s_add_u32 s67, s67, s68')
    p('s_add_u32 s67, s67, 16')
    p('s_lshl_b32 s67, s67, 10')
    p('s_lshl_b32 s68, s55, 9')
    p('s_add_u32 s67, s67, s68')
    p(f's_add_u32 s67, s67, {OA_OFF}')
    for t in range(4):
        for h in range(2):
            o = A_QM(h, t)
            d = S(t, 0) + 2 * h
            p(f'v_cvt_pk_bf16_f32 v{d}, v{o}, v{o+1}')
            p(f'v_cvt_pk_bf16_f32 v{d+1}, v{o+2}, v{o+3}')
        d = S(t, 0)
        p(f'buffer_store_dwordx4 v[{d}:{d+3}], v248, s[{SRD_WS}:{SRD_WS+3}], s66 offen {CFG["STF"]}')
        p('s_add_u32 s66, s66, 20480')
    for pr in range(2):
        d = S(2 * pr, 1)
        for u in range(2):
            t = 2 * pr + u
            o0, o1 = A_KM(0, t), A_KM(1, t)
            for rr in range(4):
                p(f'v_cndmask_b32 v{o0+rr}, v{o0+rr}, v{o1+rr}, s[62:63]')
            p(f'v_cvt_pk_bf16_f32 v{d+2*u}, v{o0}, v{o0+1}')
            p(f'v_cvt_pk_bf16_f32 v{d+2*u+1}, v{o0+2}, v{o0+3}')
    p('s_mov_b32 exec_hi, 0')
    for pr in range(2):
        d = S(2 * pr, 1)
        p(f'buffer_store_dwordx4 v[{d}:{d+3}], v248, s[{SRD_WS}:{SRD_WS+3}], s67 offen {CFG["STF"]}')
        p('s_add_u32 s67, s67, 20480')
    p('s_mov_b32 exec_hi, -1')


def ffn_prologue(p):
    p(f's_and_b32 s55, s{S_WAVE}, 1')
    p(f's_lshr_b32 s56, s{S_WAVE}, 1')
    p('v_and_b32 v3, 15, v2')
    p('v_lshrrev_b32 v4, 4, v2')
    p('v_lshrrev_b32 v5, 1, v3')
    p('v_xor_b32 v5, v5, v4')
    p('v_lshlrev_b32 v5, 4, v5')
    p('v_lshl_add_u32 v5, v3, 7, v5')
    p('s_lshl_b32 s57, s56, 13')
    p(f'v_add_u32 v{V_X0}, s57, v5')
    p(f'v_xor_b32 v{V_X1}, 64, v{V_X0}')
    p('v_lshrrev_b32 v5, 5, v2')
    p('v_lshlrev_b32 v5, 4, v5')
    p('v_bfe_u32 v6, v2, 4, 1')
    p('v_lshl_add_u32 v5, v6, 2, v5')
    p('v_bfe_u32 v6, v2, 2, 2')
    p('v_add_u32 v5, v5, v6')
    p(f'v_mul_u32_u24 v5, {WROW}, v5')
    p(f'v_add_u32 v5, {XREG}, v5')
    p('v_and_b32 v6, 3, v2')
    p('v_lshl_add_u32 v5, v6, 3, v5')
    p('s_lshl_b32 s57, s55, 8')
    p(f'v_add_u32 v{V_W}, s57, v5')
    p('s_lshl_b32 s57, s55, 5')
    p('s_add_u32 s57, s57, 192')
    p(f'v_add_u32 v{V_WA}, s57, v5')
    p(f's_mul_i32 s57, s{S_CG}, 448')
    p('v_lshlrev_b32 v5, 3, v4')
    p('v_add_u32 v5, s57, v5')
    p('s_lshl_b32 s57, s55, 8')
    p('v_add_u32 v6, s57, v5')
    p('s_lshl_b32 s57, s55, 5')
    p('s_add_u32 s57, s57, 192')
    p('v_add_u32 v7, s57, v5')
    p('v_lshlrev_b32 v248, 4, v2')
    p('s_waitcnt lgkmcnt(0)')
    srd(p, SRD_A, S_B1, 3456)
    for f in range(7):
        if f < 6:
            p(f'buffer_load_dwordx2 v[{200+2*f}:{201+2*f}], v6, s[{SRD_A}:{SRD_A+3}], 0 offen offset:{32*f}')
        else:
            p(f'buffer_load_dwordx2 v[{200+2*f}:{201+2*f}], v7, s[{SRD_A}:{SRD_A+3}], 0 offen')
    tlb_touch(p, 'F')
    p('s_mov_b32 s58, 0xffff0000')
    p('s_waitcnt vmcnt(0)')
    for f in range(7):
        for t in range(4):
            a = F_ACC(f, t)
            p(f'v_lshlrev_b32 v{a}, 16, v{200+2*f}')
            p(f'v_and_b32 v{a+1}, s58, v{200+2*f}')
            p(f'v_lshlrev_b32 v{a+2}, 16, v{201+2*f}')
            p(f'v_and_b32 v{a+3}, s58, v{201+2*f}')


def ffn_epilogue(p):
    k1 = -2.0 * math.sqrt(2.0 / math.pi) * math.log2(math.e)
    k2 = k1 * 0.044715
    C1, C2, ONE = 240, 242, 244
    for r in (0, 1):
        p(f'v_mov_b32 v{C1+r}, {hexf(k1)}')
        p(f'v_mov_b32 v{C2+r}, {hexf(k2)}')
        p(f'v_mov_b32 v{ONE+r}, 1.0')
    p('s_nop 5')
    p(f's_lshl_b32 s65, s{S_RB}, 3')
    p('s_lshl_b32 s66, s56, 2')
    p('s_add_u32 s65, s65, s66')
    p('s_mul_i32 s65, s65, 54')
    p(f's_mul_i32 s66, s{S_CG}, 7')
    p('s_add_u32 s67, s66, 3')
    p('s_lshl_b32 s68, s55, 2')
    p('s_add_u32 s66, s66, s68')
    p('s_add_u32 s69, s65, s67')
    p('s_lshl_b32 s69, s69, 10')
    p('s_lshl_b32 s68, s55, 3')
    p('s_add_u32 s69, s69, s68')
    p('s_add_u32 s68, s65, s66')
    p('s_lshl_b32 s68, s68, 10')

    def gelu(regs, tmp):
        for i, x in enumerate(regs):
            p(f'v_pk_mul_f32 v[{tmp+4*i}:{tmp+4*i+1}], v[{x}:{x+1}], v[{x}:{x+1}]')
        for i, x in enumerate(regs):
            p(f'v_pk_fma_f32 v[{tmp+4*i}:{tmp+4*i+1}], v[{tmp+4*i}:{tmp+4*i+1}], v[{C2}:{C2+1}], v[{C1}:{C1+1}]')
        for i, x in enumerate(regs):
            p(f'v_pk_mul_f32 v[{tmp+4*i}:{tmp+4*i+1}], v[{tmp+4*i}:{tmp+4*i+1}], v[{x}:{x+1}]')
        for i, x in enumerate(regs):
            p(f'v_exp_f32 v{tmp+4*i}, v{tmp+4*i}')
            p(f'v_exp_f32 v{tmp+4*i+1}, v{tmp+4*i+1}')
        for i, x in enumerate(regs):
            p(f'v_pk_add_f32 v[{tmp+4*i}:{tmp+4*i+1}], v[{tmp+4*i}:{tmp+4*i+1}], v[{ONE}:{ONE+1}]')
        for i, x in enumerate(regs):
            p(f'v_rcp_f32 v{tmp+4*i}, v{tmp+4*i}')
            p(f'v_rcp_f32 v{tmp+4*i+1}, v{tmp+4*i+1}')
        for i, x in enumerate(regs):
            p(f'v_pk_mul_f32 v[{x}:{x+1}], v[{tmp+4*i}:{tmp+4*i+1}], v[{x}:{x+1}]')

    OUT = 184
    n = 0
    for pr in range(3):
        p(f's_add_u32 s70, s66, {pr}')
        p('s_cmp_ge_u32 s70, 54')
        p(f's_cbranch_scc1 L_skip_pair{pr}')
        for t in range(4):
            a, b = F_ACC(2 * pr, t), F_ACC(2 * pr + 1, t)
            gelu([a, a + 2, b, b + 2], 152)
            o = OUT + 4 * (n % 4)
            n += 1
            p(f'v_cvt_pk_bf16_f32 v{o}, v{a}, v{a+1}')
            p(f'v_cvt_pk_bf16_f32 v{o+1}, v{a+2}, v{a+3}')
            p(f'v_cvt_pk_bf16_f32 v{o+2}, v{b}, v{b+1}')
            p(f'v_cvt_pk_bf16_f32 v{o+3}, v{b+2}, v{b+3}')
            p(f's_add_u32 s70, s68, {pr*1024 + t*54*1024}')
            p(f'buffer_store_dwordx4 v[{o}:{o+3}], v248, s[{SRD_WS}:{SRD_WS+3}], s70 offen {CFG["STF"]}')
        p.label(f'L_skip_pair{pr}')
    for t2 in range(2):
        a, b = F_ACC(6, 2 * t2), F_ACC(6, 2 * t2 + 1)
        gelu([a, a + 2, b, b + 2], 152)
        for u, x in enumerate((a, b)):
            o = OUT + 16 + 2 * ((2 * t2 + u) % 2)
            p(f'v_cvt_pk_bf16_f32 v{o}, v{x}, v{x+1}')
            p(f'v_cvt_pk_bf16_f32 v{o+1}, v{x+2}, v{x+3}')
            p(f's_add_u32 s70, s69, {(2*t2+u)*54*1024}')
            p(f'buffer_store_dwordx2 v[{o}:{o+1}], v248, s[{SRD_WS}:{SRD_WS+3}], s70 offen {CFG["STF"]}')


def gen_k1():
    p = Prog()
    p('s_cmp_ge_u32 s2, 256')
    p('s_cbranch_scc1 L_k1_end')
    p('s_load_dwordx4 s[4:7], s[0:1], 0')
    p('s_load_dwordx4 s[8:11], s[0:1], 16')
    p('s_load_dwordx4 s[12:15], s[0:1], 32')
    p('s_load_dwordx4 s[16:19], s[0:1], 48')
    p('s_load_dwordx2 s[20:21], s[0:1], 64')
    p('s_load_dwordx2 s[22:23], s[0:1], 88')
    p('s_load_dwordx2 s[100:101], s[0:1], 72')
    if CFG['PROF']:
        p('s_memrealtime s[88:89]')
        p('s_memtime s[82:83]')
    p('v_lshrrev_b32 v1, 6, v0')
    p('v_and_b32 v2, 63, v0')
    p(f'v_readfirstlane_b32 s{S_WAVE}, v1')
    if CFG['SWAPW']:
        p(f's_add_u32 s{S_WAVE}, s{S_WAVE}, 4')
        p(f's_and_b32 s{S_WAVE}, s{S_WAVE}, 7')
    k1_decode(p)
    p(f's_cmp_eq_u32 s{S_WAVE}, 0')
    p('s_cbranch_scc0 L_nopf')
    p('v_mov_b32 v10, v2')
    code_prefetch(p, 'L_k1_body', 'L_k1_end', CFG.get('K1_BYTES', 20480), 10, 255, 84, 'k1')
    p.label('L_nopf')
    p.label('L_k1_body')
    p(f's_cmp_ge_u32 s{S_WAVE}, 4')
    p('s_cbranch_scc0 L_consumer')
    if CFG['LDFIRST']:
        p(f's_cmp_eq_u32 s{S_TYPE}, 0')
        p('s_cbranch_scc0 L_loader_F')
        k1_loader(p, True)
        k1_loader(p, False)
    else:
        p(f's_cmp_eq_u32 s{S_TYPE}, 0')
        p('s_cbranch_scc1 L_loader_A')
        p('s_branch L_loader_F')
    p.label('L_consumer')
    if CFG['PRIO']:
        p(f's_setprio {CFG["PRIO"]}')
    p(f's_cmp_eq_u32 s{S_TYPE}, 0')
    p('s_cbranch_scc0 L_cons_F')
    p('s_movk_i32 s99, 256')
    prefetch_setup(p, True)
    p('s_waitcnt lgkmcnt(0)')
    tlb_touch(p, 'A')
    attn_prologue(p)
    srd(p, SRD_WS, S_WS, WS_USED)
    srd(p, SRD_X, S_AX, 2048 * 1280)
    srd(p, SRD_W, S_WQKV, 640 * 3840)
    p('s_waitcnt lgkmcnt(0)')
    stamp(p, 0)
    p('s_barrier')
    stamp(p, 1)
    prefetch_issue(p, True)
    if CFG['M35']:
        p('s_cmp_eq_u32 s56, 0')
        p('s_cbranch_scc0 L_attn_th1')
        for th in (0, 1):
            if th:
                p.label('L_attn_th1')
            consumer_loop(p, True, th)
            stamp(p, 2)
            attn_epilogue(p, th)
            stamp(p, 3)
            if CFG['PROF']:
                prof_store(p, 4, 'CA', SRD_WS)
            p('s_endpgm')
    else:
        consumer_loop(p, True)
        stamp(p, 2)
        attn_epilogue(p)
        stamp(p, 3)
        if CFG['PROF']:
            prof_store(p, 4, 'CA', SRD_WS)
        p('s_endpgm')
    p.label('L_cons_F')
    p('s_movk_i32 s99, 256')
    prefetch_setup(p, False)
    ffn_prologue(p)
    srd(p, SRD_WS, S_WS, WS_USED)
    srd(p, SRD_X, S_AX, 2048 * 1280)
    srd(p, SRD_W, S_W1, 640 * 3456)
    p('s_waitcnt lgkmcnt(0)')
    stamp(p, 0)
    p('s_barrier')
    stamp(p, 1)
    prefetch_issue(p, False)
    consumer_loop(p, False)
    stamp(p, 2)
    ffn_epilogue(p)
    stamp(p, 3)
    if CFG['PROF']:
        prof_store(p, 4, 'CF', SRD_WS)
    p('s_endpgm')
    if not CFG['LDFIRST']:
        k1_loader(p, True)
        k1_loader(p, False)
    p.label('L_k1_end')
    p('s_endpgm')
    return p


def k2_stream(p, wave_a):
    NB = CFG['NBUF']
    tag = 'a' if wave_a else 'b'
    nsteps = 20 if wave_a else 18
    ACC = lambda t, f: K2_ACC + (t * 5 + f) * 4
    BA = lambda b, t: 36 * b + 4 * t
    BW = lambda b, f: 36 * b + 16 + 4 * f

    def ld_w(b, f):
        if f < 4:
            p(f'buffer_load_dwordx4 v[{BW(b,f)}:{BW(b,f)+3}], v{K2_VL}, s[12:15], s21 offen offset:{1024*f} {CFG["K2LDF"]}')
        else:
            p(f'buffer_load_dwordx4 v[{BW(b,f)}:{BW(b,f)+3}], v{K2_VL2}, s[12:15], s21 offen {CFG["K2LDF"]}')

    def ld_a(b, t):
        p(f'buffer_load_dwordx4 v[{BA(b,t)}:{BA(b,t)+3}], v{K2_VA+t}, s[12:15], s20 offen {CFG["K2LDF"]}')

    nrot = 16 if wave_a else 18
    state = {'n': 0}

    def adv():
        state['n'] += 1
        p('s_add_u32 s20, s20, 1024')
        p('s_add_u32 s21, s21, 5120')
        if not CFG['ROT2']:
            return
        if state['n'] < nrot:
            p('s_add_u32 s22, s22, 1')
            p(f's_cmp_eq_u32 s22, {nrot}')
            p(f's_cselect_b32 s23, {nrot*1024}, 0')
            p('s_sub_u32 s20, s20, s23')
            p('s_mul_i32 s23, s23, 5')
            p('s_sub_u32 s21, s21, s23')
        elif state['n'] == nrot and wave_a:
            p('s_mov_b32 s20, s34')
            p('s_mov_b32 s21, s35')

    for s in range(min(NB, nsteps)):
        for f in range(5):
            ld_w(s % NB, f)
        for t in range(4):
            ld_a(s % NB, t)
        adv()
    for r in range(80):
        p(f'v_mov_b32 v{K2_ACC+r}, 0')
    stamp(p, 1)
    for s in range(nsteps):
        b = s % NB
        issued = min(s + NB, nsteps)
        newer = (issued - s - 1) * 9
        p(f's_waitcnt vmcnt({newer})')
        more = s + NB < nsteps
        tail = wave_a and s >= 16
        amap = [0, 1, 2, 3]
        if tail:
            for (x, y) in ((0, 2), (1, 3)):
                p(f'v_swap_b32 v{BA(b,x)+2}, v{BA(b,y)}')
                p(f'v_swap_b32 v{BA(b,x)+3}, v{BA(b,y)+1}')
            amap = [0, 2, 1, 3]
        for f in range(5):
            for t in range(4):
                acc = ACC(t, f)
                if not CFG['K2NOMFMA']:
                    p(f'v_mfma_f32_16x16x32_bf16 v[{acc}:{acc+3}], v[{BW(b,f)}:{BW(b,f)+3}], v[{BA(b,amap[t])}:{BA(b,amap[t])+3}], v[{acc}:{acc+3}]')
            if more and CFG['K2ORD'] == 0:
                ld_w(b, f)
            if more and CFG['K2ORD'] == 2 and f >= 1:
                ld_w(b, f - 1)
        if more:
            if CFG['K2ORD'] == 1:
                for f in range(5):
                    ld_w(b, f)
            if CFG['K2ORD'] == 2:
                ld_w(b, 4)
            for t in range(4):
                ld_a(b, t)
            adv()
    p('s_branch L_k2_reduce')


K2_ACC = 144
K2_VL, K2_VL2, K2_VA = 224, 225, 226
K2_G, K2_B2 = 230, 232
K2_LDS = 4 * 4 * 5120


def gen_k2():
    global K2_ACC
    NB = CFG['NBUF']
    assert NB * 36 + 80 <= 224
    K2_ACC = NB * 36
    p = Prog()
    p('s_cmp_ge_u32 s2, 256')
    p('s_cbranch_scc1 L_k2_end')
    p('s_load_dwordx2 s[4:5], s[0:1], 88')
    p('s_load_dwordx2 s[6:7], s[0:1], 72')
    p('s_load_dwordx2 s[8:9], s[0:1], 56')
    if CFG['PROF']:
        p('s_memrealtime s[88:89]')
        p('s_memtime s[82:83]')
    p('v_lshrrev_b32 v1, 6, v0')
    p('v_and_b32 v2, 63, v0')
    p(f'v_readfirstlane_b32 s{S_WAVE}, v1')
    p('s_and_b32 s52, s2, 7')
    p('s_lshr_b32 s53, s2, 3')
    if CFG['MAP2'] == '8x4':
        p('s_lshr_b32 s54, s52, 1')
        p('s_lshl_b32 s54, s54, 3')
        p('s_lshr_b32 s55, s53, 2')
        p('s_add_u32 s26, s54, s55')
        p('s_and_b32 s54, s52, 1')
        p('s_lshl_b32 s54, s54, 2')
        p('s_and_b32 s55, s53, 3')
        p('s_add_u32 s27, s54, s55')
    else:
        p('s_lshl_b32 s54, s52, 2')
        p('s_lshr_b32 s55, s53, 3')
        p('s_add_u32 s26, s54, s55')
        p('s_and_b32 s27, s53, 7')
    p(f's_cmp_eq_u32 s{S_WAVE}, 0')
    p('s_cbranch_scc0 L_k2_nopf')
    p('v_mov_b32 v10, v2')
    code_prefetch(p, 'L_k2_body', 'L_k2_end', CFG.get('K2_BYTES', 16384), 10, 255, 84, 'k2')
    p.label('L_k2_nopf')
    p.label('L_k2_body')
    p(f'v_lshlrev_b32 v{K2_VL}, 4, v2')
    p(f'v_add_u32 v{K2_VL2}, 4096, v{K2_VL}')
    p(f's_cmp_eq_u32 s{S_WAVE}, 0')
    p('s_mov_b32 s56, 20480')
    p('s_cselect_b32 s56, s56, 55296')
    p(f's_mov_b32 s57, {OA_OFF}')
    p(f's_cselect_b32 s57, s57, {H_OFF}')
    p(f's_mov_b32 s58, {WO_OFF}')
    p(f's_cselect_b32 s58, s58, {W2_OFF}')
    p('s_cselect_b32 s59, 20, 54')
    p(f's_mul_i32 s60, s{S_WAVE}, 18')
    p('s_cselect_b32 s60, 18, s60')
    p('s_sub_u32 s60, s60, 18')
    p('s_lshl_b32 s61, s26, 2')
    p('s_mul_i32 s61, s61, s56')
    p('s_add_u32 s61, s61, s57')
    p('s_lshl_b32 s62, s60, 10')
    p('s_add_u32 s20, s61, s62')
    p('s_mul_i32 s61, s27, s59')
    p('s_add_u32 s61, s61, s60')
    p('s_mul_i32 s61, s61, 5120')
    p('s_add_u32 s21, s61, s58')
    if CFG['ROT2']:
        p('s_add_u32 s34, s20, 16384')
        p('s_add_u32 s35, s21, 81920')
        if CFG['ROT2'] == 2:
            p('s_xor_b32 s62, s26, s27')
            p('s_and_b32 s62, s62, 1')
            p(f's_cmp_eq_u32 s{S_WAVE}, 0')
            p('s_cselect_b32 s63, 8, 9')
            p('s_mul_i32 s22, s62, s63')
        elif CFG['ROT2'] == 3:
            p('s_add_u32 s62, s26, s27')
            p('s_mul_i32 s63, s62, 43')
            p('s_lshr_b32 s63, s63, 7')
            p('s_mul_i32 s63, s63, 3')
            p('s_sub_u32 s62, s62, s63')
            p(f's_cmp_eq_u32 s{S_WAVE}, 0')
            p('s_cselect_b32 s63, 5, 6')
            p('s_mul_i32 s22, s62, s63')
        else:
            p('s_and_b32 s62, s26, 7')
            p('s_and_b32 s63, s27, 3')
            p('s_lshl_b32 s63, s63, 1')
            p('s_add_u32 s62, s62, s63')
            p(f's_cmp_eq_u32 s{S_WAVE}, 0')
            p('s_cselect_b32 s63, 16, 18')
            p('s_mul_i32 s62, s62, s63')
            p('s_lshr_b32 s22, s62, 3')
            p('s_cmp_ge_u32 s22, s63')
            p('s_cselect_b32 s62, s63, 0')
            p('s_sub_u32 s22, s22, s62')
        p('s_lshl_b32 s62, s22, 10')
        p('s_add_u32 s20, s20, s62')
        p('s_mul_i32 s62, s22, 5120')
        p('s_add_u32 s21, s21, s62')
    for t in range(4):
        p(f's_mul_i32 s62, s56, {t}')
        p(f'v_add_u32 v{K2_VA+t}, s62, v{K2_VL}')
    p('v_and_b32 v3, 15, v2')
    p('v_lshrrev_b32 v4, 4, v2')
    p('s_lshl_b32 s62, s26, 6')
    p(f's_lshl_b32 s63, s{S_WAVE}, 4')
    p('s_add_u32 s62, s62, s63')
    p('v_add_u32 v5, s62, v3')
    p('v_lshlrev_b32 v6, 3, v5')
    p(f'v_add_u32 v6, {G_OFF}, v6')
    p('s_mul_i32 s63, s27, 160')
    p('v_lshlrev_b32 v7, 4, v4')
    p('v_add_u32 v7, s63, v7')
    p('v_lshlrev_b32 v8, 3, v4')
    p('v_add_u32 v8, s63, v8')
    p('s_movk_i32 s63, 1280')
    p('v_mul_u32_u24 v5, s63, v5')
    p('v_add_u32 v242, v5, v7')
    p('v_add_u32 v243, v5, v8')
    p('s_waitcnt lgkmcnt(0)')
    srd(p, 12, 4, WS_USED)
    srd(p, 16, 8, 1280)
    srd(p, 28, 6, 2048 * 1280)
    stamp(p, 0)
    p(f'buffer_load_dwordx2 v[{K2_G}:{K2_G+1}], v6, s[12:15], 0 offen')
    p(f'buffer_load_dwordx4 v[{K2_B2}:{K2_B2+3}], v7, s[16:19], 0 offen')
    p(f'buffer_load_dwordx4 v[{K2_B2+4}:{K2_B2+7}], v7, s[16:19], 0 offen offset:64')
    p(f'buffer_load_dwordx2 v[{K2_B2+8}:{K2_B2+9}], v8, s[16:19], 0 offen offset:128')
    p(f's_cmp_eq_u32 s{S_WAVE}, 0')
    p('s_cbranch_scc0 L_k2_b')
    k2_stream(p, True)
    p.label('L_k2_b')
    k2_stream(p, False)
    p.label('L_k2_reduce')
    stamp(p, 2)
    ACC = lambda t, f: K2_ACC + (t * 5 + f) * 4
    p(f's_mul_i32 s62, s{S_WAVE}, 5120')
    p(f'v_add_u32 v3, s62, v{K2_VL}')
    p('s_nop 7')
    p('v_add_u32 v4, 40960, v3')
    for t in range(4):
        for f in range(5):
            p(f'ds_write_b128 v{3 + (t >> 1)}, v[{ACC(t,f)}:{ACC(t,f)+3}] offset:{(t & 1)*20480 + f*1024}')
    p(f's_mul_i32 s62, s{S_WAVE}, 20480')
    p(f'v_add_u32 v250, s62, v{K2_VL}')
    p('s_waitcnt lgkmcnt(0)')
    p('s_barrier')
    R = lambda w, f: (w * 5 + f) * 4
    for f in range(5):
        for w in range(4):
            p(f'ds_read_b128 v[{R(w,f)}:{R(w,f)+3}], v250 offset:{w*5120 + f*1024}')
    p('s_mov_b32 s62, 0xffff0000')
    B = lambda f: 100 + 4 * f
    for pr in range(2):
        for d in range(4):
            src = K2_B2 + 4 * pr + d
            f, r = 2 * pr + (d >> 1), 2 * (d & 1)
            p(f'v_lshlrev_b32 v{B(f)+r}, 16, v{src}')
            p(f'v_and_b32 v{B(f)+r+1}, s62, v{src}')
    for d in range(2):
        src = K2_B2 + 8 + d
        p(f'v_lshlrev_b32 v{B(4)+2*d}, 16, v{src}')
        p(f'v_and_b32 v{B(4)+2*d+1}, s62, v{src}')
    p(f'v_mov_b32 v120, v{K2_G}')
    p(f'v_mov_b32 v121, v{K2_G}')
    p(f'v_mov_b32 v122, v{K2_G+1}')
    p(f'v_mov_b32 v123, v{K2_G+1}')
    for f in range(5):
        p(f's_waitcnt lgkmcnt({min(15, 16-4*f)})' if f < 4 else 's_waitcnt lgkmcnt(0)')
        if f == 0:
            p('s_waitcnt lgkmcnt(15)')
        for r in (0, 2):
            a, b1, b2_, b3 = R(0, f) + r, R(1, f) + r, R(2, f) + r, R(3, f) + r
            p(f'v_pk_add_f32 v[{b1}:{b1+1}], v[{b1}:{b1+1}], v[{b2_}:{b2_+1}]')
            p(f'v_pk_add_f32 v[{b3}:{b3+1}], v[{b3}:{b3+1}], v[{B(f)+r}:{B(f)+r+1}]')
            p(f'v_pk_mul_f32 v[{a}:{a+1}], v[{a}:{a+1}], v[120:121]')
            p(f'v_pk_add_f32 v[{b1}:{b1+1}], v[{b1}:{b1+1}], v[{b3}:{b3+1}]')
            p(f'v_pk_fma_f32 v[{a}:{a+1}], v[{b1}:{b1+1}], v[122:123], v[{a}:{a+1}]')
    O = 124
    for pr in range(2):
        for u in range(2):
            a = R(0, 2 * pr + u)
            p(f'v_cvt_pk_bf16_f32 v{O+4*pr+2*u}, v{a}, v{a+1}')
            p(f'v_cvt_pk_bf16_f32 v{O+4*pr+2*u+1}, v{a+2}, v{a+3}')
        p(f'buffer_store_dwordx4 v[{O+4*pr}:{O+4*pr+3}], v242, s[28:31], 0 offen offset:{64*pr} {CFG["OUTF"]}')
    a = R(0, 4)
    p(f'v_cvt_pk_bf16_f32 v{O+8}, v{a}, v{a+1}')
    p(f'v_cvt_pk_bf16_f32 v{O+9}, v{a+2}, v{a+3}')
    p(f'buffer_store_dwordx2 v[{O+8}:{O+9}], v243, s[28:31], 0 offen offset:128 {CFG["OUTF"]}')
    stamp(p, 3)
    if CFG['PROF']:
        prof_store(p, 4, 'K2', 12)
    p.label('L_k2_end')
    p('s_endpgm')
    return p


K2B_R = 4
K2B_STEP = 9216
K2B_SLOT = 4 * K2B_STEP
K2B_LDS = K2B_R * K2B_SLOT


def gen_k2b():
    R, SL, ST = K2B_R, K2B_SLOT, K2B_STEP
    stages = [('a', 4 * i, 4) for i in range(5)] + [('b', 4 * i, 4) for i in range(13)] + [('b', 52, 2)]
    NS = len(stages)
    p = Prog()
    p('s_cmp_ge_u32 s2, 256')
    p('s_cbranch_scc1 L_k2_end')
    p('s_load_dwordx2 s[4:5], s[0:1], 88')
    p('s_load_dwordx2 s[6:7], s[0:1], 72')
    p('s_load_dwordx2 s[8:9], s[0:1], 56')
    if CFG['PROF']:
        p('s_memrealtime s[88:89]')
        p('s_memtime s[82:83]')
    p('v_lshrrev_b32 v1, 6, v0')
    p('v_and_b32 v2, 63, v0')
    p(f'v_readfirstlane_b32 s{S_WAVE}, v1')
    p('s_and_b32 s52, s2, 7')
    p('s_lshr_b32 s53, s2, 3')
    if CFG['MAP2'] == '8x4':
        p('s_lshr_b32 s54, s52, 1')
        p('s_lshl_b32 s54, s54, 3')
        p('s_lshr_b32 s55, s53, 2')
        p('s_add_u32 s26, s54, s55')
        p('s_and_b32 s54, s52, 1')
        p('s_lshl_b32 s54, s54, 2')
        p('s_and_b32 s55, s53, 3')
        p('s_add_u32 s27, s54, s55')
    else:
        p('s_lshl_b32 s54, s52, 2')
        p('s_lshr_b32 s55, s53, 3')
        p('s_add_u32 s26, s54, s55')
        p('s_and_b32 s27, s53, 7')
    p('v_lshlrev_b32 v3, 4, v2')
    p(f's_cmp_ge_u32 s{S_WAVE}, 4')
    p('s_cbranch_scc0 L_k2_consumer')
    p(f's_sub_u32 s57, s{S_WAVE}, 4')
    p('s_mul_i32 s20, s27, 20')
    p('s_add_u32 s20, s20, s57')
    p('s_mul_i32 s20, s20, 5120')
    p(f's_add_u32 s20, s20, {WO_OFF}')
    p('s_mul_i32 s21, s27, 54')
    p('s_add_u32 s21, s21, s57')
    p('s_mul_i32 s21, s21, 5120')
    p(f's_add_u32 s21, s21, {W2_OFF}')
    p('s_lshl_b32 s54, s26, 2')
    p('s_mul_i32 s22, s54, 20')
    p('s_add_u32 s22, s22, s57')
    p('s_lshl_b32 s22, s22, 10')
    p(f's_add_u32 s22, s22, {OA_OFF}')
    p('s_mul_i32 s25, s54, 54')
    p('s_add_u32 s25, s25, s57')
    p('s_lshl_b32 s25, s25, 10')
    if H_OFF:
        p(f's_add_u32 s25, s25, {H_OFF}')
    p(f's_mul_i32 s58, s57, {ST}')
    p('v_add_u32 v4, 4096, v3')
    for u in range(4):
        p(f'v_add_u32 v{10+u}, {20480*u}, v3')
        p(f'v_add_u32 v{14+u}, {55296*u}, v3')
    p('s_waitcnt lgkmcnt(0)')
    srd(p, 12, 4, WS_USED)
    stamp(p, 0)

    def issue(j):
        part, s0, n = stages[j]
        slot = j % R
        if n < 4:
            p(f's_cmp_ge_u32 s57, {n}')
            p(f's_cbranch_scc1 L_k2_skip{j}')
        p(f's_add_u32 s23, s{20 if part == "a" else 21}, {s0*5120}')
        p(f's_add_u32 s24, s{22 if part == "a" else 25}, {s0*1024}') if False else None
        p(f's_add_u32 m0, s58, {slot*SL}')
        p(f's_add_u32 s59, s{22 if part == "a" else 25}, {s0*1024}')
        for f in range(4):
            p(f'buffer_load_dwordx4 v3, s[12:15], s23 offen offset:{1024*f} {CFG["K2LDF"]} lds')
        p(f's_add_u32 m0, s58, {slot*SL + 4096}')
        p('s_nop 0')
        p(f'buffer_load_dwordx4 v4, s[12:15], s23 offen {CFG["K2LDF"]} lds')
        for u in range(4):
            p(f's_add_u32 m0, s58, {slot*SL + 5120 + 1024*u}')
            p('s_nop 0')
            p(f'buffer_load_dwordx4 v{(10 if part == "a" else 14)+u}, s[12:15], s59 offen {CFG["K2LDF"]} lds')
        if n < 4:
            p.label(f'L_k2_skip{j}')

    for j in range(R - 1):
        issue(j)
    stamp(p, 1)
    for j in range(NS):
        hi = min(j + R - 2, NS - 1)
        newer = 9 * (hi - j)
        if hi == NS - 1 and j < NS - 1:
            newer -= 9
        p(f's_waitcnt vmcnt({max(newer, 0)})')
        p('s_barrier')
        if j + R - 1 < NS:
            issue(j + R - 1)
    stamp(p, 2)
    stamp(p, 3)
    if CFG['PROF']:
        prof_store(p, 4, 'K2', 12)
    p('s_endpgm')
    p.label('L_k2_consumer')
    p(f's_cmp_eq_u32 s{S_WAVE}, 0')
    p('s_cbranch_scc0 L_k2_nopf')
    p('v_mov_b32 v10, v2')
    code_prefetch(p, 'L_k2_body', 'L_k2_end', CFG.get('K2_BYTES', 12288), 10, 255, 84, 'k2')
    p.label('L_k2_nopf')
    p.label('L_k2_body')
    ACA, ACB = 0, 20
    WR = lambda q, f: 40 + 20 * q + 4 * f
    AR = lambda q: 120 + 4 * q
    G, B2 = 230, 232
    p('s_lshl_b32 s54, s26, 2')
    p(f's_add_u32 s54, s54, s{S_WAVE}')
    p('v_and_b32 v4, 15, v2')
    p('v_lshrrev_b32 v5, 4, v2')
    p('s_lshl_b32 s55, s54, 4')
    p('v_add_u32 v6, s55, v4')
    p('v_lshlrev_b32 v7, 3, v6')
    p(f'v_add_u32 v7, {G_OFF}, v7')
    p('s_mul_i32 s55, s27, 160')
    p('v_lshlrev_b32 v8, 4, v5')
    p('v_add_u32 v8, s55, v8')
    p('v_lshlrev_b32 v9, 3, v5')
    p('v_add_u32 v9, s55, v9')
    p('v_mul_u32_u24 v6, 1280, v6')
    p('v_add_u32 v242, v6, v8')
    p('v_add_u32 v243, v6, v9')
    p(f's_lshl_b32 s55, s{S_WAVE}, 10')
    p('s_add_u32 s55, s55, 5120')
    for sl in range(R):
        p(f'v_add_u32 v{244+sl}, {sl*SL}, v3')
        p(f'v_add_u32 v{250+sl}, s55, v{244+sl}')
    p(f's_lshr_b32 s55, s{S_WAVE}, 1')
    p('s_lshl_b32 s55, s55, 10')
    p(f's_and_b32 s56, s{S_WAVE}, 1')
    p('s_lshl_b32 s56, s56, 3')
    p('s_add_u32 s55, s55, s56')
    p('s_add_u32 s55, s55, 5120')
    p('v_add_u32 v249, s55, v3')
    p('s_waitcnt lgkmcnt(0)')
    srd(p, 12, 4, WS_USED)
    srd(p, 16, 8, 1280)
    srd(p, 28, 6, 2048 * 1280)
    stamp(p, 0)
    p(f'buffer_load_dwordx2 v[{G}:{G+1}], v7, s[12:15], 0 offen')
    p(f'buffer_load_dwordx4 v[{B2}:{B2+3}], v8, s[16:19], 0 offen')
    p(f'buffer_load_dwordx4 v[{B2+4}:{B2+7}], v8, s[16:19], 0 offen offset:64')
    p(f'buffer_load_dwordx2 v[{B2+8}:{B2+9}], v9, s[16:19], 0 offen offset:128')
    for r in range(40):
        p(f'v_mov_b32 v{r}, 0')
    stamp(p, 1)
    for j, (part, s0, n) in enumerate(stages):
        slot = j % R
        tail = (part == 'a' and s0 == 16)
        assert not tail or slot == 0
        p('s_barrier')
        log = []
        for q in range(n):
            if tail:
                p(f'ds_read_b64 v[{AR(q)}:{AR(q)+1}], v249 offset:{q*ST}')
                p(f'ds_read_b64 v[{AR(q)+2}:{AR(q)+3}], v249 offset:{q*ST + 2048}')
                log += [('a', q), ('a', q)]
            else:
                p(f'ds_read_b128 v[{AR(q)}:{AR(q)+3}], v{250+slot} offset:{q*ST}')
                log.append(('a', q))
            for f in range(5):
                p(f'ds_read_b128 v[{WR(q,f)}:{WR(q,f)+3}], v{244+slot} offset:{q*ST + f*1024}')
                log.append(('w', q, f))
        known = max(0, len(log) - 15) if len(log) > 15 else 0
        done = -1
        for q in range(n):
            acc0 = ACA if part == 'a' else ACB
            for f in range(5):
                idx = log.index(('w', q, f))
                if idx > done:
                    left = len(log) - 1 - idx
                    w = min(left, 15)
                    p(f's_waitcnt lgkmcnt({w})')
                    done = len(log) - 1 - w
                p(f'v_mfma_f32_16x16x32_bf16 v[{acc0+4*f}:{acc0+4*f+3}], v[{WR(q,f)}:{WR(q,f)+3}], v[{AR(q)}:{AR(q)+3}], v[{acc0+4*f}:{acc0+4*f+3}]')
    stamp(p, 2)
    p('s_mov_b32 s62, 0xffff0000')
    p('s_waitcnt vmcnt(0)')
    Bf = lambda f: 100 + 4 * f
    for pr in range(2):
        for d in range(4):
            s_ = B2 + 4 * pr + d
            f, r = 2 * pr + (d >> 1), 2 * (d & 1)
            p(f'v_lshlrev_b32 v{Bf(f)+r}, 16, v{s_}')
            p(f'v_and_b32 v{Bf(f)+r+1}, s62, v{s_}')
    for d in range(2):
        s_ = B2 + 8 + d
        p(f'v_lshlrev_b32 v{Bf(4)+2*d}, 16, v{s_}')
        p(f'v_and_b32 v{Bf(4)+2*d+1}, s62, v{s_}')
    p(f'v_mov_b32 v120, v{G}')
    p(f'v_mov_b32 v121, v{G}')
    p(f'v_mov_b32 v122, v{G+1}')
    p(f'v_mov_b32 v123, v{G+1}')
    for f in range(5):
        for r in (0, 2):
            a, b = ACA + 4 * f + r, ACB + 4 * f + r
            p(f'v_pk_add_f32 v[{b}:{b+1}], v[{b}:{b+1}], v[{Bf(f)+r}:{Bf(f)+r+1}]')
            p(f'v_pk_mul_f32 v[{a}:{a+1}], v[{a}:{a+1}], v[120:121]')
    for f in range(5):
        for r in (0, 2):
            a, b = ACA + 4 * f + r, ACB + 4 * f + r
            p(f'v_pk_fma_f32 v[{a}:{a+1}], v[{b}:{b+1}], v[122:123], v[{a}:{a+1}]')
    O = 124
    for pr in range(2):
        for u in range(2):
            a = ACA + 4 * (2 * pr + u)
            p(f'v_cvt_pk_bf16_f32 v{O+4*pr+2*u}, v{a}, v{a+1}')
            p(f'v_cvt_pk_bf16_f32 v{O+4*pr+2*u+1}, v{a+2}, v{a+3}')
        p(f'buffer_store_dwordx4 v[{O+4*pr}:{O+4*pr+3}], v242, s[28:31], 0 offen offset:{64*pr} {CFG["OUTF"]}')
    a = ACA + 16
    p(f'v_cvt_pk_bf16_f32 v{O+8}, v{a}, v{a+1}')
    p(f'v_cvt_pk_bf16_f32 v{O+9}, v{a+2}, v{a+3}')
    p(f'buffer_store_dwordx2 v[{O+8}:{O+9}], v243, s[28:31], 0 offen offset:128 {CFG["OUTF"]}')
    stamp(p, 3)
    if CFG['PROF']:
        prof_store(p, 4, 'K2', 12)
    p.label('L_k2_end')
    p('s_endpgm')
    return p


def gen_k2t():
    NW, INF, MODE = CFG['NW'], CFG['INF'], CFG['TMODE']
    p = Prog()
    p('s_cmp_ge_u32 s2, 256')
    p('s_cbranch_scc1 L_k2_end')
    p('s_load_dwordx2 s[4:5], s[0:1], 88')
    p('s_memrealtime s[88:89]')
    p('s_memtime s[82:83]')
    p('v_lshrrev_b32 v1, 6, v0')
    p('v_and_b32 v2, 63, v0')
    p(f'v_readfirstlane_b32 s{S_WAVE}, v1')
    p('s_and_b32 s52, s2, 7')
    p('s_lshr_b32 s53, s2, 3')
    p('s_lshr_b32 s54, s52, 1')
    p('s_lshl_b32 s54, s54, 3')
    p('s_lshr_b32 s55, s53, 2')
    p('s_add_u32 s26, s54, s55')
    p('s_and_b32 s54, s52, 1')
    p('s_lshl_b32 s54, s54, 2')
    p('s_and_b32 s55, s53, 3')
    p('s_add_u32 s27, s54, s55')
    p('v_lshlrev_b32 v3, 4, v2')
    p('v_add_u32 v4, 4096, v3')
    nst = 72 // NW
    p(f's_mul_i32 s60, s{S_WAVE}, {nst}')
    p('s_cmp_ge_u32 s60, 54')
    p('s_cselect_b32 s61, 1, 0')
    p('s_cselect_b32 s56, 20480, 0')
    p('s_cselect_b32 s56, s56, 55296')
    p(f's_mov_b32 s57, {OA_OFF}')
    p(f's_cselect_b32 s57, s57, {H_OFF}')
    p(f's_mov_b32 s58, {WO_OFF}')
    p(f's_cselect_b32 s58, s58, {W2_OFF}')
    p('s_cselect_b32 s59, 20, 54')
    p('s_cselect_b32 s62, 54, 0')
    p('s_sub_u32 s60, s60, s62')
    p('s_lshl_b32 s61, s26, 2')
    p('s_mul_i32 s61, s61, s56')
    p('s_add_u32 s61, s61, s57')
    p('s_lshl_b32 s62, s60, 10')
    p('s_add_u32 s20, s61, s62')
    p('s_mul_i32 s61, s27, s59')
    p('s_add_u32 s61, s61, s60')
    p('s_mul_i32 s61, s61, 5120')
    p('s_add_u32 s21, s61, s58')
    for t in range(4):
        p(f's_mul_i32 s62, s56, {t}')
        p(f'v_add_u32 v{10+t}, s62, v3')
    p(f's_mul_i32 s63, s{S_WAVE}, 16384')
    p('s_waitcnt lgkmcnt(0)')
    srd(p, 12, 4, WS_USED)
    stamp(p, 0)
    stamp(p, 1)
    n = 0
    for s in range(nst):
        for f in range(9):
            r = 20 + 4 * (n % 48)
            if MODE == 'dma':
                p(f's_add_u32 m0, s63, {(n % 16) * 1024}')
                p('s_nop 0')
            a, so, off = (3, 's21', 1024 * f) if f < 4 else ((4, 's21', 0) if f == 4 else (10 + f - 5, 's20', 0))
            if MODE == 'dma':
                if f < 4 and f > 0:
                    p(f's_sub_u32 m0, m0, {off}')
                    p('s_nop 0')
                p(f'buffer_load_dwordx4 v{a}, s[12:15], {so} offen offset:{off} lds')
            else:
                p(f'buffer_load_dwordx4 v[{r}:{r+3}], v{a}, s[12:15], {so} offen offset:{off}')
            p(f's_waitcnt vmcnt({INF})')
            n += 1
        p('s_add_u32 s20, s20, 1024')
        p('s_add_u32 s21, s21, 5120')
    p('s_waitcnt vmcnt(0)')
    stamp(p, 2)
    stamp(p, 3)
    prof_store(p, 4, 'K2', 12)
    p.label('L_k2_end')
    p('s_endpgm')
    return p


def gen_kpf():
    p = Prog()
    p('s_cmp_ge_u32 s2, 256')
    p('s_cbranch_scc1 L_kpf_end')
    p('s_load_dwordx2 s[4:5], s[0:1], 88')
    p('v_and_b32 v2, 63, v0')
    p('v_lshrrev_b32 v1, 6, v0')
    p('s_and_b32 s52, s2, 7')
    p('s_lshr_b32 s53, s2, 3')
    p('v_lshlrev_b32 v3, 7, v0')
    p('s_waitcnt lgkmcnt(0)')
    srd(p, 12, 4, WS_USED)
    if CFG['KPF'] == 1:
        p('s_and_b32 s54, s52, 1')
        p(f's_mul_i32 s55, s54, {4*54*5120}')
        p(f's_add_u32 s55, s55, {W2_OFF}')
        p('s_lshl_b32 s56, s53, 15')
        p('s_add_u32 s57, s55, s56')
        p('buffer_load_dword v10, v3, s[12:15], s57 offen')
        p('s_add_u32 s57, s57, 57344')
        p('buffer_load_dword v10, v3, s[12:15], s57 offen')
        p(f's_mul_i32 s55, s54, {4*20*5120}')
        p(f's_add_u32 s55, s55, {WO_OFF}')
        p('s_mul_i32 s56, s53, 12800')
        p('s_add_u32 s57, s55, s56')
        p('buffer_load_dword v10, v3, s[12:15], s57 offen')
    else:
        p('s_lshr_b32 s54, s52, 1')
        p(f's_mul_i32 s55, s54, {32*55296}')
        p('s_mul_i32 s56, s53, 55296')
        p('s_add_u32 s57, s55, s56')
        p('buffer_load_dword v10, v3, s[12:15], s57 offen')
        p('s_add_u32 s57, s57, 22528')
        p('buffer_load_dword v10, v3, s[12:15], s57 offen')
        p(f's_mul_i32 s55, s54, {32*20480}')
        p(f's_add_u32 s55, s55, {OA_OFF}')
        p('s_mul_i32 s56, s53, 20480')
        p('s_add_u32 s57, s55, s56')
        p('buffer_load_dword v10, v3, s[12:15], s57 offen')
    p('s_waitcnt vmcnt(0)')
    p.label('L_kpf_end')
    p('s_endpgm')
    return p


HEADER = """; Kernarg layout (96 bytes, ptrs only, base s[0:1]):
; @launch kernel=gm_k1_kernel grid=(256,1,1) block=(512,1,1) lds=%d
; @launch kernel=gm_k2_kernel grid=(256,1,1) block=(256,1,1) lds=%d
.amdgcn_target "amdgcn-amd-amdhsa--gfx950"
"""

KD = """.amdhsa_kernel %s
  .amdhsa_next_free_vgpr %d
  .amdhsa_next_free_sgpr 102
  .amdhsa_accum_offset %d
  .amdhsa_group_segment_fixed_size 0
  .amdhsa_kernarg_size 96
  .amdhsa_user_sgpr_count 2
  .amdhsa_user_sgpr_kernarg_segment_ptr 1
  .amdhsa_system_sgpr_workgroup_id_x 1
  .amdhsa_float_denorm_mode_32 3
.end_amdhsa_kernel
"""


def main():
    k1 = gen_k1()
    k2 = gen_k2b() if CFG['K2V'] == 2 else (gen_k2t() if CFG['K2V'] == 3 else gen_k2())
    t1, t2 = k1.finish(), k2.finish()
    s = HEADER % (K1_LDS, K2B_LDS if CFG['K2V'] == 2 else K2_LDS)
    if CFG['K2V'] == 3:
        s = s.replace('kernel=gm_k2_kernel grid=(256,1,1) block=(256,1,1) lds=%d' % K2_LDS, 'kernel=gm_k2_kernel grid=(256,1,1) block=(%d,1,1) lds=131072' % (64 * CFG['NW']))
    if CFG['K2V'] == 2:
        s = s.replace('kernel=gm_k2_kernel grid=(256,1,1) block=(256,1,1)', 'kernel=gm_k2_kernel grid=(256,1,1) block=(512,1,1)')
    if CFG['K2TWICE']:
        ln = [l for l in s.split('\n') if 'kernel=gm_k2_kernel' in l][0]
        s = s.replace(ln, ln + '\n' + ln)
    s += '.text\n'
    for name, t in (('gm_k1_kernel', t1), ('gm_k2_kernel', t2)):
        s += f'.globl {name}\n.p2align 8\n.type {name},@function\n{name}:\n{t}'
    s += '.p2align 8\n.fill 64, 4, 0xbf800000\n' if False else ''
    if CFG['KPF']:
        s += '.globl gm_pf_kernel\n.p2align 8\n.type gm_pf_kernel,@function\ngm_pf_kernel:\n' + gen_kpf().finish()
        ln = [l for l in s.split('\n') if 'kernel=gm_k2_kernel' in l][0]
        s = s.replace(ln, '; @launch kernel=gm_pf_kernel grid=(256,1,1) block=(256,1,1) lds=0\n' + ln)
    s += '.section .rodata,"a"\n.p2align 6\n'
    s += KD % ('gm_k1_kernel', 256, 256)
    s += '.p2align 6\n'
    s += KD % ('gm_k2_kernel', 256, 256)
    if CFG['KPF']:
        s += '.p2align 6\n' + KD % ('gm_pf_kernel', 64, 64)
    out = CFG.get('OUT', f'cdna_kernels/{NAME}.s')
    open(out, 'w').write(s)
    print('written', out, len(s), 'bytes; nops inserted k1', k1.nops_inserted, 'k2', k2.nops_inserted)


if __name__ == '__main__':
    main()
```

```python
import sys, os, math, struct
sys.path.insert(0, os.path.dirname(os.path.abspath(__file__)))
from asmlib import Prog, vr, ar, sr

NAME = 'gated_mix__sliding_local_dilated__dense_activation_gelu__prompt'

CFG = dict(MAP1='m82', MAP2='8x4', NBUF=4, PROF=0, NOMFMA=0, NOLOAD=0, NODS=0, STF='sc1', LDF='', ULDF='nt', PFF='', PF=0, TT=1, ROT=1, ROT2=0, K2TWICE=0, K2V=1, M35=1, UNITS_FFN=0, NFU=3, PEEL=1, SWAPW=0, LDFIRST=0, PRIO=0, K2ORD=0, KPF=0, LDF0='nt', NT_ST=0, ZOOB=1, TEARLY=0, K2PF=1, DA=12, NW=4, INF=32, TMODE='reg', K2NOMFMA=0, K2LDF='', OUTF='')
for a in sys.argv[1:]:
    if '=' in a:
        k, v = a.split('=')
        CFG[k] = int(v) if v.lstrip('-').isdigit() else v.replace('+', ' ')

H_OFF = 0
OA_OFF = H_OFF + 128 * 54 * 1024
W2_OFF = OA_OFF + 128 * 20 * 1024
WO_OFF = W2_OFF + 8 * 54 * 5120
G_OFF = WO_OFF + 8 * 20 * 5120
WS_USED = G_OFF + 2048 * 8
PROF_OFF = 16 << 20

XREG = 144 * 128
WROW = 480
WREG = 64 * WROW
SLOT = XREG + WREG
XFLAG = 3 * 49152 + 15360
SCR = 3 * SLOT
K1_LDS = 163840


def f32(x):
    return struct.unpack('<I', struct.pack('<f', x))[0]


def hexf(x):
    return '0x%08x' % f32(x)


S_AX, S_WQKV, S_WO, S_BX, S_W1, S_B1, S_W2, S_B2, S_GW, S_WS = 4, 6, 8, 10, 12, 14, 16, 18, 20, 22
S_WAVE, S_TYPE, S_RB, S_CG = 24, 25, 26, 27
SRD_X, SRD_W, SRD_I4, SRD_WS, SRD_A, SRD_B = 28, 32, 36, 40, 44, 48


def srd(p, base, ptr, nbytes):
    p(f's_mov_b32 s{base}, s{ptr}')
    p(f's_mov_b32 s{base+1}, s{ptr+1}')
    p(f's_mov_b32 s{base+2}, {nbytes}')
    p(f's_mov_b32 s{base+3}, 0x20000')


def code_prefetch(p, lbl_from, lbl_to, nbytes, vtmp, vdst, s, tag):
    p(f's_getpc_b64 s[{s}:{s+1}]')
    p.label(f'L_pc_{tag}')
    p(f's_add_u32 s{s}, s{s}, {lbl_from}-L_pc_{tag}')
    p(f's_addc_u32 s{s+1}, s{s+1}, 0')
    p(f'v_lshlrev_b32 v{vtmp}, 6, v{vtmp}')
    n = (nbytes + 4095) // 4096
    for j in range(n):
        p(f'v_min_u32 v{vtmp+1}, {lbl_to}-{lbl_from}, v{vtmp}')
        p(f'global_load_dword v{vdst}, v{vtmp+1}, s[{s}:{s+1}]')
        if j + 1 < n:
            p(f'v_add_u32 v{vtmp}, 4096, v{vtmp}')
    return n


def stamp(p, idx, sbase=90):
    if CFG['PROF']:
        p(f'{"s_memtime" if CFG["PROF"] in (2, 3) else "s_memrealtime"} s[{sbase+2*idx}:{sbase+2*idx+1}]')


def k1_decode(p):
    p('s_and_b32 s52, s2, 7')
    p('s_lshr_b32 s53, s2, 3')
    if CFG['MAP1'] == 'mixed':
        p(f's_lshr_b32 s{S_TYPE}, s53, 4')
        p('s_and_b32 s54, s53, 15')
        p('s_lshr_b32 s55, s52, 1')
        p('s_lshl_b32 s55, s55, 2')
        p('s_lshr_b32 s56, s54, 2')
        p(f's_add_u32 s{S_RB}, s55, s56')
        p('s_and_b32 s55, s52, 1')
        p('s_lshl_b32 s55, s55, 2')
        p('s_and_b32 s56, s54, 3')
        p(f's_add_u32 s{S_CG}, s55, s56')
    elif CFG['MAP1'] == 'm82':
        p(f's_lshr_b32 s{S_TYPE}, s53, 4')
        p('s_lshr_b32 s55, s52, 2')
        p('s_lshl_b32 s55, s55, 3')
        p('s_and_b32 s56, s53, 7')
        p(f's_add_u32 s{S_RB}, s55, s56')
        p('s_and_b32 s55, s52, 3')
        p('s_lshl_b32 s55, s55, 1')
        p('s_bfe_u32 s56, s53, 0x10003')
        p(f's_add_u32 s{S_CG}, s55, s56')
    else:
        p(f's_lshr_b32 s{S_TYPE}, s52, 2')
        p('s_and_b32 s54, s52, 3')
        p('s_lshr_b32 s55, s54, 1')
        p('s_lshl_b32 s55, s55, 3')
        p('s_lshr_b32 s56, s53, 2')
        p(f's_add_u32 s{S_RB}, s55, s56')
        p('s_and_b32 s55, s54, 1')
        p('s_lshl_b32 s55, s55, 2')
        p('s_and_b32 s56, s53, 3')
        p(f's_add_u32 s{S_CG}, s55, s56')


def k1_loader(p, attn):
    tag = 'A' if attn else 'F'
    rowstride = 3840 if attn else 3456
    VOFF = 10
    VL = 2
    p.label(f'L_loader_{tag}')
    p(f's_sub_u32 s57, s{S_WAVE}, 4')
    p(f'v_lshrrev_b32 v3, 3, v{VL}')
    p('s_lshl_b32 s58, s57, 3')
    p('v_add_u32 v3, s58, v3')
    p(f's_lshl_b32 s59, s{S_RB}, 7')
    if attn:
        p('s_sub_u32 s59, s59, 16')
    p('v_add_u32 v3, s59, v3')
    p('s_and_b32 s58, s57, 1')
    p('s_lshl_b32 s58, s58, 2')
    p(f'v_lshrrev_b32 v4, 4, v{VL}')
    p('v_add_u32 v4, s58, v4')
    p(f'v_and_b32 v5, 7, v{VL}')
    p('v_xor_b32 v4, v4, v5')
    p('v_lshlrev_b32 v4, 4, v4')
    p('s_movk_i32 s58, 1280')
    p('s_movk_i32 s59, 2047')
    for i in range(5):
        p(f'v_add_u32 v5, {32*i}, v3')
        if attn and i == 0:
            p('v_max_i32 v5, 0, v5')
        if (not attn) and i == 4:
            p('v_min_u32 v5, s59, v5')
        p('v_mul_u32_u24 v5, s58, v5')
        p(f'v_add_u32 v{VOFF+i if i < 4 else 6}, v5, v4')
    p('s_lshl_b32 s58, s57, 6')
    p(f'v_add_u32 v7, s58, v{VL}')
    p(f's_mov_b32 s60, {rowstride}')
    p('v_mov_b32 v9, 0x7ffffff0')
    if attn:
        p(f's_mul_i32 s61, s{S_CG}, 160')
    else:
        p(f's_mul_i32 s61, s{S_CG}, 448')

    def w_offset(i):
        base = 64 * (4 * i - 18)
        dst = VOFF + i if i > 4 else 8
        if base >= 0:
            p(f'v_add_u32 v3, {base}, v7')
        else:
            p(f'v_subrev_u32 v3, {-base}, v7')
            p('v_max_i32 v3, 0, v3')
        p('v_mul_u32_u24 v4, 2185, v3')
        p('v_lshrrev_b32 v4, 16, v4')
        p('v_mul_u32_u24 v5, 30, v4')
        p('v_sub_u32 v5, v3, v5')
        p('v_lshrrev_b32 v3, 1, v4')
        p('v_xor_b32 v3, v3, v4')
        p('v_and_b32 v3, 4, v3')
        p('v_mul_u32_u24 v3, 3, v3')
        p('v_xor_b32 v4, v3, v4')
        p('v_mul_u32_u24 v4, s60, v4')
        if attn:
            p('v_mul_u32_u24 v3, 205, v5')
            p('v_lshrrev_b32 v3, 11, v3')
            p('v_mul_u32_u24 v3, 1120, v3')
            p('v_lshlrev_b32 v5, 4, v5')
            p('v_add3_u32 v5, v5, v3, s61')
        else:
            p('v_lshlrev_b32 v5, 4, v5')
            p('v_add_u32 v5, s61, v5')
            if CFG['ZOOB']:
                p('v_cmp_lt_u32 vcc, 3440, v5')
            else:
                p('v_min_u32 v5, 3440, v5')
        p(f'v_add_u32 v{dst}, v4, v5')
        if (not attn) and CFG['ZOOB']:
            p(f'v_cndmask_b32 v{dst}, v{dst}, v9, vcc')
        if i == 4:
            p('s_cmp_lt_u32 s57, 2')
            p('s_cselect_b64 vcc, -1, 0')
            p(f'v_cndmask_b32 v{VOFF+4}, v8, v6, vcc')

    p('s_waitcnt lgkmcnt(0)')
    if attn:
        srd(p, SRD_X, S_AX, 2048 * 1280)
        srd(p, SRD_W, S_WQKV, 640 * 3840)
    else:
        srd(p, SRD_X, S_AX, 2048 * 1280)
        srd(p, SRD_W, S_W1, 640 * 3456)
    p('s_cmp_lt_u32 s57, 2')
    for k in range(3):
        p(f's_cselect_b32 s{SRD_I4+k}, s{SRD_X+k}, s{SRD_W+k}')
    p(f's_mov_b32 s{SRD_I4+3}, 0x20000')
    p('s_movk_i32 s73, 128')
    p('s_cselect_b32 s73, s73, %d' % (64 * rowstride))
    if CFG['ROT']:
        p(f's_and_b32 s79, s{S_RB}, 7')
        p('s_lshr_b32 s80, s79, 2')
        p('s_add_u32 s79, s79, s80')
        if CFG['MAP1'] == 'spec':
            p(f's_and_b32 s80, s{S_CG}, 3')
        else:
            p(f's_and_b32 s80, s{S_CG}, 1')
            p(f's_lshl_b32 s81, s{S_TYPE}, 1')
            p('s_add_u32 s80, s80, s81')
        p('s_mul_i32 s80, s80, 5')
        p('s_lshr_b32 s80, s80, 1')
        p('s_add_u32 s79, s79, s80')
        p('s_cmp_ge_u32 s79, 10')
        p('s_cselect_b32 s80, 10, 0')
        p('s_sub_u32 s79, s79, s80')
    else:
        p('s_mov_b32 s79, 0')
    p('s_lshl_b32 s74, s79, 7')
    p(f's_mul_i32 s75, s79, {64*rowstride}')
    p('s_mul_i32 s76, s79, s73')
    p('s_lshl_b32 s77, s57, 10')

    def issue_stage(st, lazy=False):
        slot = st % 3
        ldf = CFG['LDF0'] if st < CFG['NT_ST'] else CFG['LDF']
        for i in range(12):
            if lazy and i >= 4:
                w_offset(i)
            p(f's_add_u32 m0, s77, {slot*SLOT + i*4096}')
            if i < 4:
                if i == 0:
                    p('s_nop 0')
                p(f'buffer_load_dwordx4 v{VOFF+i}, s[{SRD_X}:{SRD_X+3}], s74 offen {ldf} lds')
            elif i == 4:
                p(f'buffer_load_dwordx4 v{VOFF+i}, s[{SRD_I4}:{SRD_I4+3}], s76 offen {ldf} lds')
            else:
                p(f'buffer_load_dwordx4 v{VOFF+i}, s[{SRD_W}:{SRD_W+3}], s75 offen {ldf} lds')
        p('s_add_u32 s74, s74, 128')
        p(f's_add_u32 s75, s75, {64*rowstride}')
        p('s_add_u32 s76, s76, s73')
        if CFG['ROT']:
            p('s_add_u32 s79, s79, 1')
            p('s_cmp_eq_u32 s79, 10')
            for r in (79, 74, 75, 76):
                p(f's_cselect_b32 s{r}, 0, s{r}')

    stamp(p, 0)
    issue_stage(0, lazy=True)
    issue_stage(1)
    UF = CFG['UNITS_FFN']
    scr_base = SLOT if (UF and not attn) else SCR

    def unit_decode(sfx):
        p('s_and_b32 s64, s62, 7')
        p('s_lshr_b32 s65, s62, 3')
        p('s_lshl_b32 s66, s65, 5')
        p('s_mov_b32 s67, 16')
        p('s_mov_b32 s68, 4')
        p('s_mul_i32 s69, s64, 54')
        p('s_add_u32 s69, s69, s65')
        p('s_mul_i32 s69, s69, 5120')
        p(f's_add_u32 s69, s69, {W2_OFF}')
        p('s_mov_b32 s70, 0')
        p('s_cmp_lt_u32 s65, 54')
        p(f's_cbranch_scc1 L_unit_done_{tag}{sfx}')
        p('s_sub_u32 s65, s65, 54')
        p('s_mov_b32 s70, 1')
        p('s_mul_i32 s69, s64, 20')
        p('s_add_u32 s69, s69, s65')
        p('s_mul_i32 s69, s69, 5120')
        p(f's_add_u32 s69, s69, {WO_OFF}')
        p('s_mul_i32 s66, s65, 40')
        p('s_mov_b32 s67, 20')
        p('s_cmp_lt_u32 s65, 16')
        p(f's_cbranch_scc1 L_unit_done_{tag}{sfx}')
        p('s_sub_u32 s65, s65, 16')
        p('s_mul_i32 s66, s65, 160')
        p('s_add_u32 s66, s66, 16')
        p('s_mov_b32 s67, 80')
        p('s_mov_b32 s68, 20')
        p.label(f'L_unit_done_{tag}{sfx}')
        p('s_mul_i32 s71, s64, 160')
        p('s_movk_i32 s58, 1280')
        for i in range(5):
            p(f'v_add_u32 v3, {64*i}, v{VL}')
            p('v_mul_u32_u24 v4, 6554, v3')
            p('v_lshrrev_b32 v4, 16, v4')
            p('v_mul_u32_u24 v5, 10, v4')
            p('v_sub_u32 v5, v3, v5')
            p('v_lshlrev_b32 v5, 4, v5')
            p('v_add_u32 v5, s71, v5')
            p('v_lshrrev_b32 v3, 4, v4')
            p('v_mul_u32_u24 v3, s67, v3')
            p('v_bfe_u32 v6, v4, 2, 2')
            p('v_mul_u32_u24 v6, s68, v6')
            p('v_and_b32 v4, 3, v4')
            p('v_add3_u32 v3, v3, v6, v4')
            p('v_add_u32 v3, s66, v3')
            p('v_mul_u32_u24 v3, s58, v3')
            p(f'v_add_u32 v{22+i}, v3, v5')

    def unit_srd():
        p('s_cmp_eq_u32 s70, 0')
        p(f's_cselect_b32 s{SRD_A}, s{S_W2}, s{S_WO}')
        p(f's_cselect_b32 s{SRD_A+1}, s{S_W2+1}, s{S_WO+1}')
        p(f's_mov_b32 s{SRD_A+2}, {1728*1280}')
        p(f's_cselect_b32 s{SRD_A+2}, s{SRD_A+2}, {640*1280}')
        p(f's_mov_b32 s{SRD_A+3}, 0x20000')

    do_units = True
    NFU = CFG['NFU']
    always = UF and not attn and NFU == 4
    if UF:
        p(f's_lshl_b32 s62, s{S_RB}, 3')
        p(f's_add_u32 s62, s62, s{S_CG}')
        p('s_lshl_b32 s63, s57, 7')
        p('s_add_u32 s62, s62, s63')
        if not attn:
            p(f's_cmp_lt_u32 s57, {NFU}')
            p('s_cselect_b32 s63, 1, 0')
        else:
            p(f's_add_u32 s62, s62, {128*NFU}')
            p('s_cmp_lt_u32 s62, 592')
            p('s_cselect_b32 s63, 1, 0')
            p('s_cmp_lt_u32 s57, 3')
            p('s_cselect_b32 s63, s63, 0')
    else:
        p('s_lshl_b32 s62, s57, 8')
        p('s_add_u32 s62, s62, s2')
        p('s_cmp_lt_u32 s62, 592')
        p('s_cselect_b32 s63, 1, 0')
        p('s_cmp_lt_u32 s57, 3')
        p('s_cselect_b32 s63, s63, 0')
    if do_units:
        unit_decode('')
        p(f'v_lshrrev_b32 v3, 2, v{VL}')
        p('v_mul_u32_u24 v3, 160, v3')
        p('s_mul_i32 s72, s57, 5120')
        p(f's_add_u32 s72, s72, {scr_base}')
        p('v_add_u32 v3, s72, v3')
        p(f'v_and_b32 v4, 3, v{VL}')
        p('v_lshl_add_u32 v27, v4, 4, v3')
        p('v_lshl_add_u32 v28, v4, 3, v3')
        p(f'v_lshlrev_b32 v29, 4, v{VL}')
        p('v_add_u32 v30, 4096, v29')
    if not attn:
        p(f's_lshl_b32 s58, s{S_RB}, 3')
        p(f's_add_u32 s58, s58, s{S_CG}')
        p('s_lshl_b32 s58, s58, 4')
        p('s_lshl_b32 s59, s57, 2')
        p('s_add_u32 s58, s58, s59')
        p(f'v_lshrrev_b32 v3, 4, v{VL}')
        p('v_add_u32 v31, s58, v3')
        p('s_movk_i32 s58, 1280')
        p('v_mul_u32_u24 v3, s58, v31')
        p(f'v_and_b32 v4, 15, v{VL}')
        p('v_lshlrev_b32 v33, 4, v4')
        p('v_add_u32 v32, v3, v33')
    srd(p, SRD_WS, S_WS, WS_USED)
    if do_units:
        unit_srd()
    GX, GW = 40, 60
    gate = (not attn)
    TG = 10 if gate else 0
    if gate:
        srd(p, SRD_B, S_GW, 1280)

    def unit_loads():
        for i in range(5):
            p(f's_add_u32 m0, s72, {i*1024}')
            p('s_nop 0')
            p(f'buffer_load_dwordx4 v{22+i}, s[{SRD_A}:{SRD_A+3}], 0 offen {CFG["ULDF"]} lds')

    def unit_finish():
        for f in range(5):
            a, off = (27, [0, 8, 64, 72][f]) if f < 4 else (28, 128)
            p(f'ds_read_b64_tr_b16 v[{84+4*f}:{85+4*f}], v{a} offset:{off}')
            p(f'ds_read_b64_tr_b16 v[{86+4*f}:{87+4*f}], v{a} offset:{off+2560}')
        for f in range(5):
            p(f's_waitcnt lgkmcnt({8-2*f})')
            if f < 4:
                p(f'buffer_store_dwordx4 v[{84+4*f}:{87+4*f}], v29, s[{SRD_WS}:{SRD_WS+3}], s69 offen offset:{1024*f} {CFG["STF"]}')
            else:
                p(f'buffer_store_dwordx4 v[{84+4*f}:{87+4*f}], v30, s[{SRD_WS}:{SRD_WS+3}], s69 offen {CFG["STF"]}')

    def tail_loads():
        if not do_units:
            return
        if always:
            unit_loads()
        else:
            p('s_cmp_eq_u32 s63, 0')
            p(f's_cbranch_scc1 L_nounit_ld_{tag}')
            unit_loads()
            p.label(f'L_nounit_ld_{tag}')
        if gate:
            for j in range(5):
                p(f'buffer_load_dwordx4 v[{GX+4*j}:{GX+4*j+3}], v32, s[{SRD_X}:{SRD_X+3}], 0 offen offset:{256*j}')
                p(f'buffer_load_dwordx4 v[{GW+4*j}:{GW+4*j+3}], v33, s[{SRD_B}:{SRD_B+3}], 0 offen offset:{256*j}')

    def wait_vm(n_nounit, n_unit, uid):
        if always:
            n_nounit = n_unit
        if n_nounit == n_unit:
            p(f's_waitcnt vmcnt({n_unit})')
            return
        p('s_cmp_eq_u32 s63, 0')
        p(f's_cbranch_scc1 L_w{uid}a_{tag}')
        p(f's_waitcnt vmcnt({n_unit})')
        p(f's_branch L_w{uid}b_{tag}')
        p.label(f'L_w{uid}a_{tag}')
        p(f's_waitcnt vmcnt({n_nounit})')
        p.label(f'L_w{uid}b_{tag}')

    if CFG['TEARLY']:
        tail_loads()
        wait_vm(12 + TG, 12 + TG + 5, 'i')
    else:
        p('s_waitcnt vmcnt(12)')
    stamp(p, 1)
    p('s_barrier')
    issue_stage(2)
    for j in range(9):
        if CFG['TEARLY']:
            if j == 0:
                wait_vm(12 + TG, 12 + TG + 5, j)
            else:
                p('s_waitcnt vmcnt(%d)' % (12 if j <= 7 else 0))
        elif j <= 7:
            p('s_waitcnt vmcnt(12)')
        else:
            wait_vm(TG, TG + 5, j)
        p('s_barrier')
        if j + 3 <= 9 and not CFG['NOLOAD']:
            issue_stage(j + 3)
        if j == 7 and not CFG['TEARLY']:
            tail_loads()
        if j == 3 and CFG['TEARLY'] and gate:
            gate_job(p, GX, GW, store=False)
    stamp(p, 2)
    if CFG['K2PF']:
        p('s_cmp_eq_u32 s57, 3')
        p(f's_cbranch_scc0 L_nok2pf_{tag}')
        p(f'v_mov_b32 v34, v{VL}')
        code_prefetch(p, 'gm_k2_kernel', 'L_k2_end', 12288, 34, 255, 84, 'k2pf' + tag)
        p.label(f'L_nok2pf_{tag}')
    if do_units:
        p('s_waitcnt vmcnt(0)')
        if always:
            unit_finish()
        else:
            p('s_cmp_eq_u32 s63, 0')
            p(f's_cbranch_scc1 L_nounit_{tag}')
            unit_finish()
            p.label(f'L_nounit_{tag}')
    if gate:
        if CFG['TEARLY']:
            gate_store(p)
        else:
            gate_job(p, GX, GW)
    stamp(p, 3)
    if CFG['PROF']:
        prof_store(p, 4, 'LD' + tag, SRD_WS)
    p('s_endpgm')


def prof_debug(p, n, tag, sbase=90):
    p('s_waitcnt lgkmcnt(0) vmcnt(0)')
    p('s_and_b32 s86, s2, 127')
    p('s_cmp_eq_u32 s86, 0')
    p(f's_cbranch_scc0 L_pd_{tag}')
    p(f's_and_b32 s86, s{S_WAVE}, 3')
    p('s_cmp_eq_u32 s86, 0')
    p(f's_cbranch_scc0 L_pd_{tag}')
    p('s_load_dwordx2 s[76:77], s[0:1], 80')
    p('s_waitcnt lgkmcnt(0)')
    p('s_mov_b32 s78, 256')
    p('s_mov_b32 s79, 0x20000')
    p('s_lshr_b32 s86, s2, 7')
    p('s_lshl_b32 s86, s86, 1')
    p(f's_lshr_b32 s85, s{S_WAVE}, 2')
    p('s_add_u32 s86, s86, s85')
    p('s_lshl_b32 s86, s86, 4')
    p('v_mov_b32 v1, 0')
    for i in range(n):
        p(f's_sub_u32 s85, s{sbase+2*i}, s88')
        p('v_mov_b32 v0, s85')
        p(f'buffer_store_dword v0, v1, s[76:79], s86 offen offset:{4*i}')
    p('s_waitcnt vmcnt(0)')
    p.label(f'L_pd_{tag}')


_pd = [0]


def prof_collect(p, srdws):
    p('s_waitcnt lgkmcnt(0) vmcnt(0)')
    p(f's_or_b32 s86, s2, s{S_WAVE}')
    p('s_cmp_eq_u32 s86, 0')
    p('s_cbranch_scc0 L_pc5')
    p('s_load_dwordx2 s[76:77], s[0:1], 80')
    p(f's_mov_b32 s{srdws+2}, 0x10000000')
    p('v_mbcnt_lo_u32_b32 v0, -1, 0')
    p('v_mbcnt_hi_u32_b32 v0, -1, v0')
    p('v_lshrrev_b32 v1, 2, v0')
    p('v_and_b32 v2, 3, v0')
    p('v_lshlrev_b32 v2, 2, v2')
    p('v_cmp_eq_u32 vcc, 1, v1')
    p('v_mov_b32 v3, 0')
    p('v_mov_b32 v4, 256')
    p('v_cndmask_b32 v3, v3, v4, vcc')
    p('v_cmp_eq_u32 vcc, 2, v1')
    p(f'v_mov_b32 v4, {128*8*64}')
    p('v_cndmask_b32 v3, v3, v4, vcc')
    p('v_add_u32 v3, v3, v2')
    p(f'v_add_u32 v3, {PROF_OFF}, v3')
    p(f'buffer_load_dword v5, v3, s[{srdws}:{srdws+3}], 0 offen')
    p(f'v_mov_b32 v6, {PROF_OFF + 60}')
    p(f'buffer_load_dword v7, v6, s[{srdws}:{srdws+3}], 0 offen')
    p('s_waitcnt vmcnt(0) lgkmcnt(0)')
    p('s_mov_b32 s78, 256')
    p('s_mov_b32 s79, 0x20000')
    p('v_sub_u32 v5, v5, v7')
    for ln, sr_ in ((12, 88), (13, 90), (14, 94), (15, 96)):
        p(f'v_mov_b32 v8, s{sr_}')
        p('v_sub_u32 v8, v8, v7')
        p(f'v_cmp_eq_u32 vcc, {ln}, v0')
        p('v_cndmask_b32 v5, v5, v8, vcc')
    p('v_lshlrev_b32 v0, 2, v0')
    p('v_cmp_gt_u32 vcc, 64, v0')
    p('s_and_saveexec_b64 s[84:85], vcc')
    p('buffer_store_dword v5, v0, s[76:79], 0 offen')
    p('s_waitcnt vmcnt(0)')
    p.label('L_pc5')


def prof_store(p, n, tag, srdws, sbase=90):
    if CFG['PROF'] == 5 and tag.startswith('K2'):
        return prof_collect(p, srdws)
    if CFG['PROF'] == 4:
        _pd[0] += 1
        return prof_debug(p, n, tag + str(_pd[0]), sbase)
    return prof_store_ws(p, n, tag, srdws, sbase)


def prof_store_ws(p, n, tag, srdws, sbase=90):
    p('s_memtime s[80:81]')
    p('s_memrealtime s[78:79]')
    p('s_waitcnt lgkmcnt(0) vmcnt(0)')
    p('s_sub_u32 s80, s80, s82')
    p('s_sub_u32 s78, s78, s88')
    p(f's_mov_b32 s{srdws+2}, 0x10000000')
    p(f's_lshl_b32 s86, s2, 3')
    p(f's_add_u32 s86, s86, s{S_WAVE}')
    p(f's_lshl_b32 s86, s86, 6')
    p(f's_add_u32 s86, s86, {PROF_OFF + (0 if not tag.startswith("K2") else (1 << 20))}')
    if CFG['PROF'] == 3:
        p(f's_lshl_b32 s85, s2, 3')
        p(f's_add_u32 s85, s85, s{S_WAVE}')
        p(f's_lshl_b32 s85, s85, 8')
        p(f's_add_u32 s85, s85, {PROF_OFF + (2 << 20)}')
        p('v_mbcnt_lo_u32_b32 v0, -1, 0')
        p('v_mbcnt_hi_u32_b32 v0, -1, v0')
        p('v_lshlrev_b32 v0, 2, v0')
        if not tag.startswith('K2'):
            p(f'buffer_store_dword v254, v0, s[{srdws}:{srdws+3}], s85 offen')
    p('v_mov_b32 v1, 0')
    p('v_mov_b32 v0, s88')
    p(f'buffer_store_dword v0, v1, s[{srdws}:{srdws+3}], s86 offen offset:60')
    p('v_mov_b32 v0, s80')
    p(f'buffer_store_dword v0, v1, s[{srdws}:{srdws+3}], s86 offen offset:56')
    p('v_mov_b32 v0, s78')
    p(f'buffer_store_dword v0, v1, s[{srdws}:{srdws+3}], s86 offen offset:52')
    for i in range(n):
        p(f'v_mov_b32 v0, s{sbase+2*i}')
        p(f'buffer_store_dword v0, v1, s[{srdws}:{srdws+3}], s86 offen offset:{4*i}')
    p('s_waitcnt vmcnt(0)')


def gate_store(p):
    p(f'buffer_store_dwordx2 v[38:39], v37, s[{SRD_WS}:{SRD_WS+3}], 0 offen {CFG["STF"]}')


def gate_job(p, GX, GW, store=True):
    T = 104
    p('v_mov_b32 v34, 0')
    p('v_mov_b32 v35, 0')
    p('v_mov_b32 v36, 0x3f803f80')
    p('s_mov_b32 s78, 0xffff0000')
    for d in range(20):
        x, w = GX + d, GW + d
        t = T + 6 * (d & 1)
        p(f'v_lshlrev_b32 v{t}, 16, v{x}')
        p(f'v_and_b32 v{t+1}, s78, v{x}')
        p(f'v_lshlrev_b32 v{t+2}, 16, v{w}')
        p(f'v_and_b32 v{t+3}, s78, v{w}')
        p(f'v_pk_mul_f32 v[{t}:{t+1}], v[{t}:{t+1}], v[{t+2}:{t+3}]')
        p(f'v_cvt_pk_bf16_f32 v{t+4}, v{t}, v{t+1}')
        acc = 34 + (d & 1)
        p(f'v_dot2_f32_bf16 v{acc}, v{t+4}, v36, v{acc}')
    p('v_add_f32 v34, v34, v35')
    for sh in (8, 4, 2, 1):
        p(f'v_add_f32_dpp v34, v34, v34 row_ror:{sh} row_mask:0xf bank_mask:0xf')
    p('v_cvt_pk_bf16_f32 v35, v34, v34')
    p('v_lshlrev_b32 v35, 16, v35')
    p(f'v_mul_f32 v35, {hexf(-math.log2(math.e))}, v35')
    p('v_exp_f32 v35, v35')
    p('v_add_f32 v35, 1.0, v35')
    p('v_rcp_f32 v35, v35')
    p('v_cvt_pk_bf16_f32 v35, v35, v35')
    p('v_lshlrev_b32 v38, 16, v35')
    p('v_sub_f32 v39, 1.0, v38')
    p('v_cvt_pk_bf16_f32 v39, v39, v39')
    p('v_lshlrev_b32 v39, 16, v39')
    p('v_lshlrev_b32 v37, 3, v31')
    p(f'v_add_u32 v37, {G_OFF}, v37')
    if store:
        gate_store(p)


A_QM = lambda h, t: 0 + (h * 4 + t) * 4
A_KM = lambda h, kt: 32 + (h * 5 + kt) * 4
A_QKT = lambda kt: 72 + 4 * kt
A_VM = lambda h, kt: 92 + (h * 5 + kt) * 4
A_VT = lambda kt: 132 + 4 * kt
WF = lambda f: 152 + 4 * f
XF = lambda b, t: 184 + 20 * b + 4 * t
V_X0, V_X1, V_W, V_WA, V_WB = 224, 225, 226, 227, 228
V_BPREV, V_BCUR, V_BFIRST, V_SEL = 232, 236, 240, 244
F_ACC = lambda f, t: (f * 4 + t) * 4


class LgkmTracker:
    def __init__(self, p):
        self.p = p
        self.q = []

    def issue(self, tag):
        self.q.append(tag)

    def need(self, tags):
        idx = -1
        for i, t in enumerate(self.q):
            if t in tags:
                idx = i
        if idx < 0:
            return
        n = len(self.q) - 1 - idx
        self.p(f's_waitcnt lgkmcnt({min(n, 15)})')
        keep = min(n, 15)
        self.q = self.q[len(self.q) - keep:] if keep else []

    def drain(self):
        self.p('s_waitcnt lgkmcnt(0)')
        self.q = []


def consumer_loop(p, attn, th=None):
    tag = ('A' if attn else 'F') + ('' if th is None else str(th))
    NT = 5 if attn else 4
    xoff = lambda t: 2048 * t
    if attn:
        kk = range(5) if th in (None, 0) else range(1, 5)
        vk = range(5) if th in (None, 1) else range(1, 5)
        if th == 1:
            xoff = lambda t: 0 if t == 0 else 8192 + 2048 * t
        tiles = []
        for h in range(2):
            tiles.append([(A_QM(h, t), t + 1, 'F') for t in range(4)])
        for h in range(2):
            tiles.append([(A_KM(h, k), k, 'F') for k in kk])
        tiles.append([(A_QKT(k), k, 'F') for k in kk])
        for h in range(2):
            tiles.append([(A_VM(h, k), k, 'T') for k in vk])
        tiles.append([(A_VT(k), k, 'T') for k in vk])
        waddr = [(V_W, 0), (V_W, 40), (V_W, 160), (V_W, 200), (V_WA, 0), (V_W, 320), (V_W, 360), (V_WB, 0)]
    else:
        tiles = [[(F_ACC(f, t), t, 'F') for t in range(4)] for f in range(7)]
        waddr = [(V_W, 32 * f) for f in range(6)] + [(V_WA, 0)]
    NF = len(tiles)

    lg = LgkmTracker(p)

    def rd_w(f, s):
        if CFG['NODS']:
            return
        a, off = waddr[f]
        off += s * 32 * WROW
        p(f'ds_read_b64_tr_b16 v[{WF(f)}:{WF(f)+1}], v{a} offset:{off}')
        lg.issue(('w', f))
        p(f'ds_read_b64_tr_b16 v[{WF(f)+2}:{WF(f)+3}], v{a} offset:{off + 8*WROW}')
        lg.issue(('w', f))

    def rd_x(t, s):
        if CFG['NODS']:
            return
        p(f'ds_read_b128 v[{XF(s,t)}:{XF(s,t)+3}], v{V_X1 if s else V_X0} offset:{2048*t}')
        lg.issue(('x', s, t))

    LAST = NF - 1

    def wreads(f, s):
        a, off = waddr[f]
        off += s * 32 * WROW
        return [(f'ds_read_b64_tr_b16 v[{WF(f)}:{WF(f)+1}], v{a} offset:{off}', ('w', f)),
                (f'ds_read_b64_tr_b16 v[{WF(f)+2}:{WF(f)+3}], v{a} offset:{off + 8*WROW}', ('w', f))]

    def xread(t, s):
        return (f'ds_read_b128 v[{XF(s,t)}:{XF(s,t)+3}], v{V_X1 if s else V_X0} offset:{xoff(t)}', ('x', s, t))

    def emit(item):
        if CFG['NODS']:
            return
        p(item[0])
        lg.issue(item[1])

    order_log = []

    def packing():
        cv = lambda d, a: f'v_cvt_pk_bf16_f32 v{d}, v{a}, v{a+1}'
        out = []
        for h in range(2):
            for t in range(4):
                b = A_QM(h, t)
                out += [(h, cv(b, b)), (h, cv(b + 1, b + 2))]
        for h in range(2):
            for kt in kk:
                b = A_KM(h, kt)
                out += [(2 + h, cv(b, b)), (2 + h, cv(b + 1, b + 2))]
        for kt in kk:
            t = A_QKT(kt)
            out += [(4, cv(t, t)), (4, cv(t + 1, t + 2))]
        for kt in kk:
            t, k0 = A_QKT(kt), A_KM(0, kt)
            out += [(4, f'v_mov_b32 v{k0+2}, v{t}'), (4, f'v_mov_b32 v{k0+3}, v{t+1}')]
        return out

    def step(s, dry=False, last=False):
        nxt = 1 - s
        q = wreads(LAST, s)
        xq = [xread(t, nxt) for t in range(NT)]
        held = []
        upd = [V_W, V_X0, V_X1, V_WA] + ([V_WB] if attn else [])
        pk = []
        if last:
            xq, upd = [], []
            pk = packing() if attn else []
        for f in range(NF):
            if not dry:
                lg.need({('w', f)} | ({('x', s, t) for t in range(NT)} if f == 0 else set()))
            for n, (acc, t, o) in enumerate(tiles[f]):
                w, x = f'v[{WF(f)}:{WF(f)+3}]', f'v[{XF(s,t)}:{XF(s,t)+3}]'
                a, b = (w, x) if o == 'F' else (x, w)
                if not CFG['NOMFMA'] and not dry:
                    p(f'v_mfma_f32_16x16x32_bf16 v[{acc}:{acc+3}], {a}, {b}, v[{acc}:{acc+3}]')
                item = None
                if q:
                    item = q.pop(0)
                elif xq and (s == 0 or f >= 2):
                    item = xq.pop(0)
                if item is not None:
                    if dry:
                        order_log.append(item)
                    else:
                        emit(item)
                if not dry and s == 0 and f == LAST and n == 1:
                    p(f's_add_u32 s53, s53, {SLOT}')
                    p(f's_cmp_eq_u32 s53, {3*SLOT}')
                if not dry and s == 0 and f == LAST and n == 2:
                    p(f's_cselect_b32 s54, s51, {SLOT}')
                    p('s_cselect_b32 s53, 0, s53')
                if not dry and s == 1 and item is None and upd and (f, n) >= (0, 2):
                    p(f'v_add_u32 v{upd[0]}, s54, v{upd[0]}')
                    upd.pop(0)
                for _ in range(2):
                    if pk and pk[0][0] + 2 <= f:
                        p(pk.pop(0)[1])
            if f < LAST and not last:
                rs = wreads(f, nxt)
                if s == 1 and f < 1:
                    held += rs
                elif s == 1 and f == 1:
                    assert not q
                    if not dry:
                        assert not upd
                        if CFG['PROF'] == 3:
                            p('s_memtime s[70:71]')
                        lg.drain()
                        if CFG['PROF'] == 3:
                            p('s_lshl_b32 m0, s52, 1')
                            p('s_nop 3')
                            p('v_writelane_b32 v254, s70, m0')
                            p('s_add_u32 s74, m0, 63')
                            p('s_and_b32 m0, s74, 63')
                            p('s_nop 3')
                            p('v_writelane_b32 v254, s72, m0')
                        if CFG['PEEL']:
                            p('s_barrier')
                        else:
                            p('s_cmp_eq_u32 s52, 9')
                            p(f's_cbranch_scc1 L_nobar_{tag}')
                            p('s_barrier')
                            p.label(f'L_nobar_{tag}')
                        if CFG['PROF'] == 3:
                            p('s_memtime s[72:73]')
                    q += held + rs
                    held = []
                else:
                    q += rs
        assert not q and not xq, (q, xq)
        for _, ins in pk:
            p(ins)

    step(1, dry=True)
    for item in order_log[2:]:
        emit(item)
    p('s_mov_b32 s52, 0')
    p('s_mov_b32 s53, 0')
    p(f's_mov_b32 s51, {(-2*SLOT) & 0xffffffff}')
    p.label(f'L_loop_{tag}')
    q_head = list(lg.q)
    step(0)
    step(1)
    q_end = list(lg.q)
    assert q_end == q_head, (q_end, q_head)
    p('s_add_u32 s52, s52, 1')
    p(f's_cmp_lt_u32 s52, {9 if CFG["PEEL"] else 10}')
    p(f's_cbranch_scc1 L_loop_{tag}')
    if CFG['PEEL']:
        step(0)
        step(1, last=True)
    lg.drain()


def check_loop_waits():
    pass


def tlb_touch(p, tag):
    if not CFG['TT']:
        return
    p(f's_cmp_eq_u32 s{S_WAVE}, 1')
    p(f's_cbranch_scc0 L_tt1{tag}')
    for i in range(7):
        p(f's_mov_b32 s70, {i << 21}')
        p(f's_load_dword s{71+i}, s[{S_WS}:{S_WS+1}], s70')
    p.label(f'L_tt1{tag}')
    p(f's_cmp_eq_u32 s{S_WAVE}, 2')
    p(f's_cbranch_scc0 L_tt2{tag}')
    p(f's_load_dword s71, s[{S_WO}:{S_WO+1}], 0')
    p(f's_load_dword s72, s[{S_W2}:{S_W2+1}], 0')
    p(f's_mov_b32 s70, {(1 << 21) + 4096}')
    p(f's_load_dword s73, s[{S_W2}:{S_W2+1}], s70')
    p(f's_load_dword s74, s[{S_GW}:{S_GW+1}], 0')
    p(f's_load_dword s75, s[{S_B2}:{S_B2+1}], 0')
    p('s_load_dword s76, s[100:101], 0')
    p('s_load_dword s77, s[100:101], s70')
    p.label(f'L_tt2{tag}')


def prefetch_setup(p, attn):
    rowstride = 3840 if attn else 3456
    p(f's_lshl_b32 s57, s{S_WAVE}, 6')
    p('v_add_u32 v9, s57, v2')
    p(f's_and_b32 s57, s{S_RB}, 7')
    p('s_lshl_b32 s57, s57, 3')
    p('s_add_u32 s57, s57, 128')
    p(f's_mov_b32 s58, {rowstride}')
    if attn:
        p(f's_mul_i32 s59, s{S_CG}, 160')
        p('s_andn2_b32 s59, s59, 127')
        for rnd in range(2):
            p(f'v_add_u32 v3, {256*rnd}, v9')
            p('v_min_u32 v3, 383, v3')
            p('v_mul_u32_u24 v4, 1366, v3')
            p('v_lshrrev_b32 v4, 16, v4')
            p('v_mul_u32_u24 v5, 48, v4')
            p('v_sub_u32 v5, v3, v5')
            p('v_mul_u32_u24 v6, 43, v5')
            p('v_lshrrev_b32 v6, 8, v6')
            p('v_mul_u32_u24 v7, 6, v6')
            p('v_sub_u32 v7, v5, v7')
            p('v_lshl_add_u32 v4, v4, 6, v6')
            p('v_add_u32 v4, s57, v4')
            p('v_mul_u32_u24 v4, s58, v4')
            p('v_lshrrev_b32 v5, 1, v7')
            p('v_mul_u32_u24 v5, 1280, v5')
            p('v_and_b32 v7, 1, v7')
            p('v_lshl_add_u32 v5, v7, 7, v5')
            p(f'v_add3_u32 v{249+rnd}, v4, v5, s59')
    else:
        p(f's_mul_i32 s59, s{S_CG}, 448')
        p('s_andn2_b32 s59, s59, 127')
        p('v_lshrrev_b32 v4, 5, v9')
        p('v_bfe_u32 v6, v9, 2, 3')
        p('v_lshl_add_u32 v4, v4, 6, v6')
        p('v_add_u32 v4, s57, v4')
        p('v_mul_u32_u24 v4, s58, v4')
        p('v_and_b32 v7, 3, v9')
        p('v_lshlrev_b32 v7, 7, v7')
        p('v_add3_u32 v249, v4, v7, s59')
    p(f's_and_b32 s57, s{S_CG}, 1')
    p(f's_lshl_b32 s58, s{S_TYPE}, 1')
    p('s_add_u32 s57, s57, s58')
    p('s_lshl_b32 s57, s57, 5')
    p(f's_lshl_b32 s58, s{S_RB}, 7')
    p('s_add_u32 s57, s57, s58')
    p('v_and_b32 v4, 31, v9')
    p('v_add_u32 v4, s57, v4')
    p('v_mul_u32_u24 v4, 1280, v4')
    p('v_lshrrev_b32 v5, 5, v9')
    p('v_lshlrev_b32 v5, 7, v5')
    p('v_add3_u32 v251, v4, v5, 256' .replace(', 256', ', s99'))


def prefetch_issue(p, attn):
    if not CFG['PF']:
        return
    p(f'buffer_load_dword v255, v251, s[{SRD_X}:{SRD_X+3}], 0 offen {CFG["PFF"]}')
    p(f'buffer_load_dword v255, v249, s[{SRD_W}:{SRD_W+3}], 0 offen {CFG["PFF"]}')
    if attn:
        p(f'buffer_load_dword v255, v250, s[{SRD_W}:{SRD_W+3}], 0 offen {CFG["PFF"]}')


def attn_prologue(p):
    p(f's_and_b32 s55, s{S_WAVE}, 1')
    p(f's_lshr_b32 s56, s{S_WAVE}, 1')
    p('v_and_b32 v3, 15, v2')
    p('v_lshrrev_b32 v4, 4, v2')
    p('v_lshrrev_b32 v5, 1, v3')
    p('v_xor_b32 v5, v5, v4')
    p('v_lshlrev_b32 v5, 4, v5')
    p('v_lshl_add_u32 v5, v3, 7, v5')
    if CFG['M35']:
        p(f'v_mov_b32 v{V_X0}, v5')
    else:
        p('s_lshl_b32 s57, s56, 13')
        p(f'v_add_u32 v{V_X0}, s57, v5')
    p(f'v_xor_b32 v{V_X1}, 64, v{V_X0}')
    p('v_lshrrev_b32 v5, 5, v2')
    p('v_lshlrev_b32 v5, 4, v5')
    p('v_bfe_u32 v6, v2, 4, 1')
    p('v_lshl_add_u32 v5, v6, 2, v5')
    p('v_bfe_u32 v6, v2, 2, 2')
    p('v_add_u32 v5, v5, v6')
    p(f'v_mul_u32_u24 v5, {WROW}, v5')
    p('s_mul_i32 s57, s55, 80')
    p(f's_add_u32 s57, s57, {XREG}')
    p('v_add_u32 v5, s57, v5')
    p('v_and_b32 v6, 3, v2')
    p(f'v_lshl_add_u32 v{V_W}, v6, 3, v5')
    p('v_and_b32 v7, 1, v6')
    p('v_mul_u32_u24 v7, 40, v7')
    p('v_add_u32 v7, v7, v5')
    p('v_lshrrev_b32 v6, 1, v6')
    p('v_mul_u32_u24 v6, 160, v6')
    p(f'v_add3_u32 v{V_WA}, v7, v6, 32')
    p(f'v_add_u32 v{V_WB}, 352, v7')
    p('v_lshlrev_b32 v5, 2, v4')
    p('v_sub_u32 v5, v3, v5')
    p(f's_mov_b32 s58, {hexf(-1e30)}')
    p('v_mov_b32 v8, s58')
    p(f's_or_b32 s59, s{S_RB}, s56')
    p('s_cmp_eq_u32 s59, 0')
    p('s_cselect_b64 s[60:61], -1, 0')
    for r in range(4):
        p(f'v_subrev_u32 v6, {r}, v5')
        p('v_and_b32 v7, 1, v6')
        p('v_cmp_eq_u32 s[62:63], 0, v7')
        p('v_cmp_ge_i32 s[64:65], v6, 0')
        p('s_and_b64 s[66:67], s[62:63], s[64:65]')
        p('s_andn2_b64 s[68:69], s[62:63], s[64:65]')
        p(f'v_cndmask_b32 v{V_BCUR+r}, v8, 0, s[66:67]')
        p(f'v_cndmask_b32 v{V_BPREV+r}, v8, 0, s[68:69]')
        p(f'v_cndmask_b32 v{V_BFIRST+r}, v{V_BPREV+r}, v8, s[60:61]')
    p('v_and_b32 v7, 1, v3')
    p('v_cmp_eq_u32 s[62:63], 0, v7')
    for k, (lo, hi) in enumerate([(0x0c0c0100, 0x01000c0c), (0x0c0c0302, 0x03020c0c)]):
        p(f'v_mov_b32 v6, {hex(hi)}')
        p(f'v_mov_b32 v9, {hex(lo)}')
        p('v_cndmask_b32 v9, v6, v9, s[62:63]')
        p('v_sub_u32 v6, v5, v7')
        if k:
            p('v_subrev_u32 v6, 2, v6')
        p('v_cmp_ge_i32 s[64:65], v6, 0')
        p('v_mov_b32 v6, 0x0c0c0c0c')
        p(f'v_cndmask_b32 v{V_SEL+k}, v9, v6, s[64:65]')
        p(f'v_cndmask_b32 v{V_SEL+2+k}, v6, v9, s[64:65]')
    p('v_lshlrev_b32 v248, 4, v2')
    if CFG['M35']:
        p('s_lshl_b32 s57, s55, 13')
        p(f's_add_u32 s57, s57, {2*SLOT}')
        p('v_add_u32 v249, s57, v248')
        p('v_lshrrev_b32 v250, 1, v248')
        p('v_add_u32 v250, s57, v250')
        p('s_lshl_b32 s57, s55, 3')
        p(f's_add_u32 s57, s57, {XFLAG}')
        p('v_mov_b32 v251, s57')
        p('v_mov_b32 v252, 0')
        p('v_mov_b32 v253, 0')
        p('ds_write_b64 v251, v[252:253]')
    for r in range(152):
        p(f'v_mov_b32 v{r}, 0')


def attn_epilogue(p, th=None):
    cvt = lambda d, a: p(f'v_cvt_pk_bf16_f32 v{d}, v{a}, v{a+1}')
    tg = '' if th is None else str(th)
    kk = list(range(5)) if th in (None, 0) else [1, 2, 3, 4]
    vk = list(range(5)) if th in (None, 1) else [1, 2, 3, 4]
    p('s_nop 7')

    def pack_k(kts):
        if CFG['PEEL']:
            return
        for kt in kts:
            for h in range(2):
                b = A_KM(h, kt)
                cvt(b, b)
                cvt(b + 1, b + 2)
            t = A_QKT(kt)
            cvt(t, t)
            cvt(t + 1, t + 2)
        for kt in kts:
            t, k0 = A_QKT(kt), A_KM(0, kt)
            p(f'v_mov_b32 v{k0+2}, v{t}')
            p(f'v_mov_b32 v{k0+3}, v{t+1}')

    def tails_k(kts):
        for kt in kts:
            t, k0 = A_QKT(kt), A_KM(0, kt)
            p(f'v_permlane32_swap_b32 v{t}, v{k0+2}')
            p(f'v_permlane32_swap_b32 v{t+1}, v{k0+3}')

    def copy_k(kts):
        for kt in kts:
            k0, k1 = A_KM(0, kt), A_KM(1, kt)
            p(f'v_mov_b32 v{k1+2}, v{k0+2}')
            p(f'v_mov_b32 v{k1+3}, v{k0+3}')

    def pack_v():
        for kt in vk:
            for base, b in ((A_VM(0, 0), A_VM(0, kt)), (A_VM(1, 0), A_VM(1, kt)), (A_VT(0), A_VT(kt))):
                cvt(base + 2 * kt, b)
                cvt(base + 2 * kt + 1, b + 2)

    vbases = (A_VM(0, 0), A_VM(1, 0), A_VT(0))
    if th == 0:
        pack_k([4])
        pack_v()
        tails_k([4])
        rest = [0, 1, 2, 3]
        pack_k(rest[:1])
        copy_k([4])
        p(f'ds_write_b128 v249, v[{A_KM(0,4)}:{A_KM(0,4)+3}]')
        p(f'ds_write_b128 v249, v[{A_KM(1,4)}:{A_KM(1,4)+3}] offset:1024')
        for i, vb in enumerate(vbases):
            p(f'ds_write_b64 v250, v[{vb+8}:{vb+9}] offset:{2048 + 512*i}')
        pack_k(rest[1:])
        p('s_waitcnt lgkmcnt(0)')
        p('v_mov_b32 v252, 1')
        p('ds_write_b32 v251, v252')
        tails_k(rest)
    elif th == 1:
        pack_v()
        for i, vb in enumerate(vbases):
            p(f'ds_write_b64 v250, v[{vb}:{vb+1}] offset:{4096 + 512*i}')
        rest = [1, 2, 3, 4]
        pack_k(rest)
        p('s_waitcnt lgkmcnt(0)')
        p('v_mov_b32 v252, 1')
        p('ds_write_b32 v251, v252 offset:4')
        tails_k(rest)
    else:
        rest = [0, 1, 2, 3, 4]
        pack_k(rest)
        pack_v()
        tails_k(rest)
    for h in range(2):
        for t in range(4):
            b = A_QM(h, t)
            if not CFG['PEEL']:
                cvt(b, b)
                cvt(b + 1, b + 2)
    copy_k(rest)
    p('s_mov_b32 s60, 0x0000ffff')
    p('s_mov_b32 s61, 0')
    p('s_mov_b32 s62, 0xffff0000')
    p('s_mov_b32 s63, 0')
    for t in range(4):
        for h in range(2):
            q, x = A_QM(h, t), A_QKT(t + 1)
            p(f'v_cndmask_b32 v{q+2}, 0, v{x}, s[{60+2*h}:{61+2*h}]')
            p(f'v_cndmask_b32 v{q+3}, 0, v{x+1}, s[{60+2*h}:{61+2*h}]')
    S = lambda t, h: 152 + (t * 2 + h) * 8

    def qk(t):
        for h in range(2):
            q = A_QM(h, t)
            bp = V_BFIRST if t == 0 else V_BPREV
            kp, kc = A_KM(h, t), A_KM(h, t + 1)
            p(f'v_mfma_f32_16x16x32_bf16 v[{S(t,h)}:{S(t,h)+3}], v[{kp}:{kp+3}], v[{q}:{q+3}], v[{bp}:{bp+3}]')
            p(f'v_mfma_f32_16x16x32_bf16 v[{S(t,h)+4}:{S(t,h)+7}], v[{kc}:{kc+3}], v[{q}:{q+3}], v[{V_BCUR}:{V_BCUR+3}]')

    for t in (3, 2, 1):
        qk(t)
    if th is not None:
        p.label(f'L_xspin{th}')
        p(f'ds_read_b32 v252, v251 offset:{4 if th == 0 else 0}')
        p('s_waitcnt lgkmcnt(0)')
        p('v_readfirstlane_b32 s70, v252')
        p('s_cmp_eq_u32 s70, 0')
        p(f's_cbranch_scc1 L_xspin{th}')
        if th == 1:
            p(f'ds_read_b128 v[{A_KM(0,0)}:{A_KM(0,0)+3}], v249')
            p(f'ds_read_b128 v[{A_KM(1,0)}:{A_KM(1,0)+3}], v249 offset:1024')
        for i, vb in enumerate(vbases):
            p(f'ds_read_b64 v[{vb}:{vb+1}], v250 offset:{(2048 if th == 1 else 4096) + 512*i}')
        p('s_waitcnt lgkmcnt(0)')
    qk(0)
    cs = (20 ** -0.5) * math.log2(math.e)
    p(f's_mov_b32 s64, {hexf(cs)}')
    inst = [(t, h) for t in range(4) for h in range(2)]
    for (t, h) in inst:
        s = S(t, h)
        p(f'v_max3_f32 v{s}, v{s}, v{s+1}, v{s+4}')
        p(f'v_max3_f32 v{s+2}, v{s+2}, v{s+3}, v{s+6}')
    for (t, h) in inst:
        s = S(t, h)
        p(f'v_max_f32 v{s}, v{s}, v{s+5}')
        p(f'v_max_f32 v{s+1}, v{s+2}, v{s+7}')
    for (t, h) in inst:
        s = S(t, h)
        p(f'v_max_f32 v{s+2}, v{s}, v{s+1}')

    def cross(groups, op, mid):
        for (A, B, C, D) in groups:
            p(f'v_permlane32_swap_b32 v{A}, v{B}')
            p(f'v_permlane32_swap_b32 v{C}, v{D}')
        for (A, B, C, D) in groups:
            p(f'{op} v{A}, v{A}, v{B}')
            p(f'{op} v{C}, v{C}, v{D}')
        for (A, B, C, D) in groups:
            p(f'v_permlane16_swap_b32 v{A}, v{C}')
        for (A, B, C, D) in groups:
            p(f'{op} v{A}, v{A}, v{C}')
        for (A, B, C, D) in groups:
            mid(A)
        for (A, B, C, D) in groups:
            p(f'v_mov_b32 v{C}, v{A}')
        for (A, B, C, D) in groups:
            p(f'v_permlane16_swap_b32 v{A}, v{C}')
        for (A, B, C, D) in groups:
            p(f'v_mov_b32 v{B}, v{A}')
            p(f'v_mov_b32 v{D}, v{C}')
        for (A, B, C, D) in groups:
            p(f'v_permlane32_swap_b32 v{A}, v{B}')
            p(f'v_permlane32_swap_b32 v{C}, v{D}')

    grp = lambda o: [tuple(S(t, h) + o for (t, h) in inst[0:4]), tuple(S(t, h) + o for (t, h) in inst[4:8])]
    cross(grp(2), 'v_max_f32', lambda A: p(f'v_mul_f32 v{A}, s64, v{A}'))
    for (t, h) in inst:
        s = S(t, h)
        p(f'v_fma_f32 v{s}, v{s}, s64, -v{s+2}')
        p(f'v_fma_f32 v{s+1}, v{s+1}, s64, -v{s+2}')
    for (t, h) in inst:
        s = S(t, h)
        p(f'v_exp_f32 v{s}, v{s}')
        p(f'v_exp_f32 v{s+1}, v{s+1}')
    for (t, h) in inst:
        s = S(t, h)
        p(f'v_add_f32 v{s+2}, v{s}, v{s+1}')
    cross(grp(2), 'v_add_f32', lambda A: p(f'v_rcp_f32 v{A}, v{A}'))
    for (t, h) in inst:
        s = S(t, h)
        p(f'v_mul_f32 v{s}, v{s}, v{s+2}')
        p(f'v_mul_f32 v{s+1}, v{s+1}, v{s+2}')
    for (t, h) in inst:
        s = S(t, h)
        p(f'v_cvt_pk_bf16_f32 v{s+2}, v{s}, v{s+1}')
    for (t, h) in inst:
        s = S(t, h)
        p(f'v_perm_b32 v{s+4}, v{s+2}, v{s+2}, v{V_SEL}')
        p(f'v_perm_b32 v{s+5}, v{s+2}, v{s+2}, v{V_SEL+1}')
        p(f'v_perm_b32 v{s+6}, v{s+2}, v{s+2}, v{V_SEL+2}')
        p(f'v_perm_b32 v{s+7}, v{s+2}, v{s+2}, v{V_SEL+3}')
    for (t, h) in inst:
        s = S(t, h)
        va = A_VM(h, 0) + 2 * t
        vt = A_VT(0) + 2 * t
        om, ot = A_QM(h, t), A_KM(h, t)
        p(f'v_mfma_f32_16x16x32_bf16 v[{om}:{om+3}], v[{va}:{va+3}], v[{s+4}:{s+7}], 0')
        p(f'v_mfma_f32_16x16x32_bf16 v[{ot}:{ot+3}], v[{vt}:{vt+3}], v[{s+4}:{s+7}], 0')
    p(f's_lshl_b32 s65, s{S_RB}, 3')
    p('s_lshl_b32 s66, s56, 2')
    p('s_add_u32 s65, s65, s66')
    p('s_mul_i32 s66, s65, 20')
    p(f's_lshl_b32 s67, s{S_CG}, 1')
    p('s_add_u32 s67, s67, s55')
    p('s_add_u32 s66, s66, s67')
    p('s_lshl_b32 s66, s66, 10')
    p(f's_add_u32 s66, s66, {OA_OFF}')
    p(f's_and_b32 s67, s{S_CG}, 1')
    p('s_lshl_b32 s67, s67, 1')
    p('s_add_u32 s67, s67, s65')
    p('s_mul_i32 s67, s67, 20')
    p(f's_lshr_b32 s68, s{S_CG}, 1')
    p('s_add_u32 s67, s67, s68')
    p('s_add_u32 s67, s67, 16')
    p('s_lshl_b32 s67, s67, 10')
    p('s_lshl_b32 s68, s55, 9')
    p('s_add_u32 s67, s67, s68')
    p(f's_add_u32 s67, s67, {OA_OFF}')
    for t in range(4):
        for h in range(2):
            o = A_QM(h, t)
            d = S(t, 0) + 2 * h
            p(f'v_cvt_pk_bf16_f32 v{d}, v{o}, v{o+1}')
            p(f'v_cvt_pk_bf16_f32 v{d+1}, v{o+2}, v{o+3}')
        d = S(t, 0)
        p(f'buffer_store_dwordx4 v[{d}:{d+3}], v248, s[{SRD_WS}:{SRD_WS+3}], s66 offen {CFG["STF"]}')
        p('s_add_u32 s66, s66, 20480')
    for pr in range(2):
        d = S(2 * pr, 1)
        for u in range(2):
            t = 2 * pr + u
            o0, o1 = A_KM(0, t), A_KM(1, t)
            for rr in range(4):
                p(f'v_cndmask_b32 v{o0+rr}, v{o0+rr}, v{o1+rr}, s[62:63]')
            p(f'v_cvt_pk_bf16_f32 v{d+2*u}, v{o0}, v{o0+1}')
            p(f'v_cvt_pk_bf16_f32 v{d+2*u+1}, v{o0+2}, v{o0+3}')
    p('s_mov_b32 exec_hi, 0')
    for pr in range(2):
        d = S(2 * pr, 1)
        p(f'buffer_store_dwordx4 v[{d}:{d+3}], v248, s[{SRD_WS}:{SRD_WS+3}], s67 offen {CFG["STF"]}')
        p('s_add_u32 s67, s67, 20480')
    p('s_mov_b32 exec_hi, -1')


def ffn_prologue(p):
    p(f's_and_b32 s55, s{S_WAVE}, 1')
    p(f's_lshr_b32 s56, s{S_WAVE}, 1')
    p('v_and_b32 v3, 15, v2')
    p('v_lshrrev_b32 v4, 4, v2')
    p('v_lshrrev_b32 v5, 1, v3')
    p('v_xor_b32 v5, v5, v4')
    p('v_lshlrev_b32 v5, 4, v5')
    p('v_lshl_add_u32 v5, v3, 7, v5')
    p('s_lshl_b32 s57, s56, 13')
    p(f'v_add_u32 v{V_X0}, s57, v5')
    p(f'v_xor_b32 v{V_X1}, 64, v{V_X0}')
    p('v_lshrrev_b32 v5, 5, v2')
    p('v_lshlrev_b32 v5, 4, v5')
    p('v_bfe_u32 v6, v2, 4, 1')
    p('v_lshl_add_u32 v5, v6, 2, v5')
    p('v_bfe_u32 v6, v2, 2, 2')
    p('v_add_u32 v5, v5, v6')
    p(f'v_mul_u32_u24 v5, {WROW}, v5')
    p(f'v_add_u32 v5, {XREG}, v5')
    p('v_and_b32 v6, 3, v2')
    p('v_lshl_add_u32 v5, v6, 3, v5')
    p('s_lshl_b32 s57, s55, 8')
    p(f'v_add_u32 v{V_W}, s57, v5')
    p('s_lshl_b32 s57, s55, 5')
    p('s_add_u32 s57, s57, 192')
    p(f'v_add_u32 v{V_WA}, s57, v5')
    p(f's_mul_i32 s57, s{S_CG}, 448')
    p('v_lshlrev_b32 v5, 3, v4')
    p('v_add_u32 v5, s57, v5')
    p('s_lshl_b32 s57, s55, 8')
    p('v_add_u32 v6, s57, v5')
    p('s_lshl_b32 s57, s55, 5')
    p('s_add_u32 s57, s57, 192')
    p('v_add_u32 v7, s57, v5')
    p('v_lshlrev_b32 v248, 4, v2')
    p('s_waitcnt lgkmcnt(0)')
    srd(p, SRD_A, S_B1, 3456)
    for f in range(7):
        if f < 6:
            p(f'buffer_load_dwordx2 v[{200+2*f}:{201+2*f}], v6, s[{SRD_A}:{SRD_A+3}], 0 offen offset:{32*f}')
        else:
            p(f'buffer_load_dwordx2 v[{200+2*f}:{201+2*f}], v7, s[{SRD_A}:{SRD_A+3}], 0 offen')
    tlb_touch(p, 'F')
    p('s_mov_b32 s58, 0xffff0000')
    p('s_waitcnt vmcnt(0)')
    for f in range(7):
        for t in range(4):
            a = F_ACC(f, t)
            p(f'v_lshlrev_b32 v{a}, 16, v{200+2*f}')
            p(f'v_and_b32 v{a+1}, s58, v{200+2*f}')
            p(f'v_lshlrev_b32 v{a+2}, 16, v{201+2*f}')
            p(f'v_and_b32 v{a+3}, s58, v{201+2*f}')


def ffn_epilogue(p):
    k1 = -2.0 * math.sqrt(2.0 / math.pi) * math.log2(math.e)
    k2 = k1 * 0.044715
    C1, C2, ONE = 240, 242, 244
    for r in (0, 1):
        p(f'v_mov_b32 v{C1+r}, {hexf(k1)}')
        p(f'v_mov_b32 v{C2+r}, {hexf(k2)}')
        p(f'v_mov_b32 v{ONE+r}, 1.0')
    p('s_nop 5')
    p(f's_lshl_b32 s65, s{S_RB}, 3')
    p('s_lshl_b32 s66, s56, 2')
    p('s_add_u32 s65, s65, s66')
    p('s_mul_i32 s65, s65, 54')
    p(f's_mul_i32 s66, s{S_CG}, 7')
    p('s_add_u32 s67, s66, 3')
    p('s_lshl_b32 s68, s55, 2')
    p('s_add_u32 s66, s66, s68')
    p('s_add_u32 s69, s65, s67')
    p('s_lshl_b32 s69, s69, 10')
    p('s_lshl_b32 s68, s55, 3')
    p('s_add_u32 s69, s69, s68')
    p('s_add_u32 s68, s65, s66')
    p('s_lshl_b32 s68, s68, 10')

    def gelu(regs, tmp):
        for i, x in enumerate(regs):
            p(f'v_pk_mul_f32 v[{tmp+4*i}:{tmp+4*i+1}], v[{x}:{x+1}], v[{x}:{x+1}]')
        for i, x in enumerate(regs):
            p(f'v_pk_fma_f32 v[{tmp+4*i}:{tmp+4*i+1}], v[{tmp+4*i}:{tmp+4*i+1}], v[{C2}:{C2+1}], v[{C1}:{C1+1}]')
        for i, x in enumerate(regs):
            p(f'v_pk_mul_f32 v[{tmp+4*i}:{tmp+4*i+1}], v[{tmp+4*i}:{tmp+4*i+1}], v[{x}:{x+1}]')
        for i, x in enumerate(regs):
            p(f'v_exp_f32 v{tmp+4*i}, v{tmp+4*i}')
            p(f'v_exp_f32 v{tmp+4*i+1}, v{tmp+4*i+1}')
        for i, x in enumerate(regs):
            p(f'v_pk_add_f32 v[{tmp+4*i}:{tmp+4*i+1}], v[{tmp+4*i}:{tmp+4*i+1}], v[{ONE}:{ONE+1}]')
        for i, x in enumerate(regs):
            p(f'v_rcp_f32 v{tmp+4*i}, v{tmp+4*i}')
            p(f'v_rcp_f32 v{tmp+4*i+1}, v{tmp+4*i+1}')
        for i, x in enumerate(regs):
            p(f'v_pk_mul_f32 v[{x}:{x+1}], v[{tmp+4*i}:{tmp+4*i+1}], v[{x}:{x+1}]')

    OUT = 184
    n = 0
    for pr in range(3):
        p(f's_add_u32 s70, s66, {pr}')
        p('s_cmp_ge_u32 s70, 54')
        p(f's_cbranch_scc1 L_skip_pair{pr}')
        for t in range(4):
            a, b = F_ACC(2 * pr, t), F_ACC(2 * pr + 1, t)
            gelu([a, a + 2, b, b + 2], 152)
            o = OUT + 4 * (n % 4)
            n += 1
            p(f'v_cvt_pk_bf16_f32 v{o}, v{a}, v{a+1}')
            p(f'v_cvt_pk_bf16_f32 v{o+1}, v{a+2}, v{a+3}')
            p(f'v_cvt_pk_bf16_f32 v{o+2}, v{b}, v{b+1}')
            p(f'v_cvt_pk_bf16_f32 v{o+3}, v{b+2}, v{b+3}')
            p(f's_add_u32 s70, s68, {pr*1024 + t*54*1024}')
            p(f'buffer_store_dwordx4 v[{o}:{o+3}], v248, s[{SRD_WS}:{SRD_WS+3}], s70 offen {CFG["STF"]}')
        p.label(f'L_skip_pair{pr}')
    for t2 in range(2):
        a, b = F_ACC(6, 2 * t2), F_ACC(6, 2 * t2 + 1)
        gelu([a, a + 2, b, b + 2], 152)
        for u, x in enumerate((a, b)):
            o = OUT + 16 + 2 * ((2 * t2 + u) % 2)
            p(f'v_cvt_pk_bf16_f32 v{o}, v{x}, v{x+1}')
            p(f'v_cvt_pk_bf16_f32 v{o+1}, v{x+2}, v{x+3}')
            p(f's_add_u32 s70, s69, {(2*t2+u)*54*1024}')
            p(f'buffer_store_dwordx2 v[{o}:{o+1}], v248, s[{SRD_WS}:{SRD_WS+3}], s70 offen {CFG["STF"]}')


def gen_k1():
    p = Prog()
    p('s_cmp_ge_u32 s2, 256')
    p('s_cbranch_scc1 L_k1_end')
    p('s_load_dwordx4 s[4:7], s[0:1], 0')
    p('s_load_dwordx4 s[8:11], s[0:1], 16')
    p('s_load_dwordx4 s[12:15], s[0:1], 32')
    p('s_load_dwordx4 s[16:19], s[0:1], 48')
    p('s_load_dwordx2 s[20:21], s[0:1], 64')
    p('s_load_dwordx2 s[22:23], s[0:1], 88')
    p('s_load_dwordx2 s[100:101], s[0:1], 72')
    if CFG['PROF']:
        p('s_memrealtime s[88:89]')
        p('s_memtime s[82:83]')
    p('v_lshrrev_b32 v1, 6, v0')
    p('v_and_b32 v2, 63, v0')
    p(f'v_readfirstlane_b32 s{S_WAVE}, v1')
    if CFG['SWAPW']:
        p(f's_add_u32 s{S_WAVE}, s{S_WAVE}, 4')
        p(f's_and_b32 s{S_WAVE}, s{S_WAVE}, 7')
    k1_decode(p)
    p(f's_cmp_eq_u32 s{S_WAVE}, 0')
    p('s_cbranch_scc0 L_nopf')
    p('v_mov_b32 v10, v2')
    code_prefetch(p, 'L_k1_body', 'L_k1_end', CFG.get('K1_BYTES', 20480), 10, 255, 84, 'k1')
    p.label('L_nopf')
    p.label('L_k1_body')
    p(f's_cmp_ge_u32 s{S_WAVE}, 4')
    p('s_cbranch_scc0 L_consumer')
    if CFG['LDFIRST']:
        p(f's_cmp_eq_u32 s{S_TYPE}, 0')
        p('s_cbranch_scc0 L_loader_F')
        k1_loader(p, True)
        k1_loader(p, False)
    else:
        p(f's_cmp_eq_u32 s{S_TYPE}, 0')
        p('s_cbranch_scc1 L_loader_A')
        p('s_branch L_loader_F')
    p.label('L_consumer')
    if CFG['PRIO']:
        p(f's_setprio {CFG["PRIO"]}')
    p(f's_cmp_eq_u32 s{S_TYPE}, 0')
    p('s_cbranch_scc0 L_cons_F')
    p('s_movk_i32 s99, 256')
    prefetch_setup(p, True)
    p('s_waitcnt lgkmcnt(0)')
    tlb_touch(p, 'A')
    attn_prologue(p)
    srd(p, SRD_WS, S_WS, WS_USED)
    srd(p, SRD_X, S_AX, 2048 * 1280)
    srd(p, SRD_W, S_WQKV, 640 * 3840)
    p('s_waitcnt lgkmcnt(0)')
    stamp(p, 0)
    p('s_barrier')
    stamp(p, 1)
    prefetch_issue(p, True)
    if CFG['M35']:
        p('s_cmp_eq_u32 s56, 0')
        p('s_cbranch_scc0 L_attn_th1')
        for th in (0, 1):
            if th:
                p.label('L_attn_th1')
            consumer_loop(p, True, th)
            stamp(p, 2)
            attn_epilogue(p, th)
            stamp(p, 3)
            if CFG['PROF']:
                prof_store(p, 4, 'CA', SRD_WS)
            p('s_endpgm')
    else:
        consumer_loop(p, True)
        stamp(p, 2)
        attn_epilogue(p)
        stamp(p, 3)
        if CFG['PROF']:
            prof_store(p, 4, 'CA', SRD_WS)
        p('s_endpgm')
    p.label('L_cons_F')
    p('s_movk_i32 s99, 256')
    prefetch_setup(p, False)
    ffn_prologue(p)
    srd(p, SRD_WS, S_WS, WS_USED)
    srd(p, SRD_X, S_AX, 2048 * 1280)
    srd(p, SRD_W, S_W1, 640 * 3456)
    p('s_waitcnt lgkmcnt(0)')
    stamp(p, 0)
    p('s_barrier')
    stamp(p, 1)
    prefetch_issue(p, False)
    consumer_loop(p, False)
    stamp(p, 2)
    ffn_epilogue(p)
    stamp(p, 3)
    if CFG['PROF']:
        prof_store(p, 4, 'CF', SRD_WS)
    p('s_endpgm')
    if not CFG['LDFIRST']:
        k1_loader(p, True)
        k1_loader(p, False)
    p.label('L_k1_end')
    p('s_endpgm')
    return p


def k2_stream(p, wave_a):
    NB = CFG['NBUF']
    tag = 'a' if wave_a else 'b'
    nsteps = 20 if wave_a else 18
    ACC = lambda t, f: K2_ACC + (t * 5 + f) * 4
    BA = lambda b, t: 36 * b + 4 * t
    BW = lambda b, f: 36 * b + 16 + 4 * f

    def ld_w(b, f):
        if f < 4:
            p(f'buffer_load_dwordx4 v[{BW(b,f)}:{BW(b,f)+3}], v{K2_VL}, s[12:15], s21 offen offset:{1024*f} {CFG["K2LDF"]}')
        else:
            p(f'buffer_load_dwordx4 v[{BW(b,f)}:{BW(b,f)+3}], v{K2_VL2}, s[12:15], s21 offen {CFG["K2LDF"]}')

    def ld_a(b, t):
        p(f'buffer_load_dwordx4 v[{BA(b,t)}:{BA(b,t)+3}], v{K2_VA+t}, s[12:15], s20 offen {CFG["K2LDF"]}')

    nrot = 16 if wave_a else 18
    state = {'n': 0}

    def adv():
        state['n'] += 1
        p('s_add_u32 s20, s20, 1024')
        p('s_add_u32 s21, s21, 5120')
        if not CFG['ROT2']:
            return
        if state['n'] < nrot:
            p('s_add_u32 s22, s22, 1')
            p(f's_cmp_eq_u32 s22, {nrot}')
            p(f's_cselect_b32 s23, {nrot*1024}, 0')
            p('s_sub_u32 s20, s20, s23')
            p('s_mul_i32 s23, s23, 5')
            p('s_sub_u32 s21, s21, s23')
        elif state['n'] == nrot and wave_a:
            p('s_mov_b32 s20, s34')
            p('s_mov_b32 s21, s35')

    for s in range(min(NB, nsteps)):
        for f in range(5):
            ld_w(s % NB, f)
        for t in range(4):
            ld_a(s % NB, t)
        adv()
    for r in range(80):
        p(f'v_mov_b32 v{K2_ACC+r}, 0')
    stamp(p, 1)
    for s in range(nsteps):
        b = s % NB
        issued = min(s + NB, nsteps)
        newer = (issued - s - 1) * 9
        p(f's_waitcnt vmcnt({newer})')
        more = s + NB < nsteps
        tail = wave_a and s >= 16
        amap = [0, 1, 2, 3]
        if tail:
            for (x, y) in ((0, 2), (1, 3)):
                p(f'v_swap_b32 v{BA(b,x)+2}, v{BA(b,y)}')
                p(f'v_swap_b32 v{BA(b,x)+3}, v{BA(b,y)+1}')
            amap = [0, 2, 1, 3]
        for f in range(5):
            for t in range(4):
                acc = ACC(t, f)
                if not CFG['K2NOMFMA']:
                    p(f'v_mfma_f32_16x16x32_bf16 v[{acc}:{acc+3}], v[{BW(b,f)}:{BW(b,f)+3}], v[{BA(b,amap[t])}:{BA(b,amap[t])+3}], v[{acc}:{acc+3}]')
            if more and CFG['K2ORD'] == 0:
                ld_w(b, f)
            if more and CFG['K2ORD'] == 2 and f >= 1:
                ld_w(b, f - 1)
        if more:
            if CFG['K2ORD'] == 1:
                for f in range(5):
                    ld_w(b, f)
            if CFG['K2ORD'] == 2:
                ld_w(b, 4)
            for t in range(4):
                ld_a(b, t)
            adv()
    p('s_branch L_k2_reduce')


K2_ACC = 144
K2_VL, K2_VL2, K2_VA = 224, 225, 226
K2_G, K2_B2 = 230, 232
K2_LDS = 4 * 4 * 5120


def gen_k2():
    global K2_ACC
    NB = CFG['NBUF']
    assert NB * 36 + 80 <= 224
    K2_ACC = NB * 36
    p = Prog()
    p('s_cmp_ge_u32 s2, 256')
    p('s_cbranch_scc1 L_k2_end')
    p('s_load_dwordx2 s[4:5], s[0:1], 88')
    p('s_load_dwordx2 s[6:7], s[0:1], 72')
    p('s_load_dwordx2 s[8:9], s[0:1], 56')
    if CFG['PROF']:
        p('s_memrealtime s[88:89]')
        p('s_memtime s[82:83]')
    p('v_lshrrev_b32 v1, 6, v0')
    p('v_and_b32 v2, 63, v0')
    p(f'v_readfirstlane_b32 s{S_WAVE}, v1')
    p('s_and_b32 s52, s2, 7')
    p('s_lshr_b32 s53, s2, 3')
    if CFG['MAP2'] == '8x4':
        p('s_lshr_b32 s54, s52, 1')
        p('s_lshl_b32 s54, s54, 3')
        p('s_lshr_b32 s55, s53, 2')
        p('s_add_u32 s26, s54, s55')
        p('s_and_b32 s54, s52, 1')
        p('s_lshl_b32 s54, s54, 2')
        p('s_and_b32 s55, s53, 3')
        p('s_add_u32 s27, s54, s55')
    else:
        p('s_lshl_b32 s54, s52, 2')
        p('s_lshr_b32 s55, s53, 3')
        p('s_add_u32 s26, s54, s55')
        p('s_and_b32 s27, s53, 7')
    p(f's_cmp_eq_u32 s{S_WAVE}, 0')
    p('s_cbranch_scc0 L_k2_nopf')
    p('v_mov_b32 v10, v2')
    code_prefetch(p, 'L_k2_body', 'L_k2_end', CFG.get('K2_BYTES', 16384), 10, 255, 84, 'k2')
    p.label('L_k2_nopf')
    p.label('L_k2_body')
    p(f'v_lshlrev_b32 v{K2_VL}, 4, v2')
    p(f'v_add_u32 v{K2_VL2}, 4096, v{K2_VL}')
    p(f's_cmp_eq_u32 s{S_WAVE}, 0')
    p('s_mov_b32 s56, 20480')
    p('s_cselect_b32 s56, s56, 55296')
    p(f's_mov_b32 s57, {OA_OFF}')
    p(f's_cselect_b32 s57, s57, {H_OFF}')
    p(f's_mov_b32 s58, {WO_OFF}')
    p(f's_cselect_b32 s58, s58, {W2_OFF}')
    p('s_cselect_b32 s59, 20, 54')
    p(f's_mul_i32 s60, s{S_WAVE}, 18')
    p('s_cselect_b32 s60, 18, s60')
    p('s_sub_u32 s60, s60, 18')
    p('s_lshl_b32 s61, s26, 2')
    p('s_mul_i32 s61, s61, s56')
    p('s_add_u32 s61, s61, s57')
    p('s_lshl_b32 s62, s60, 10')
    p('s_add_u32 s20, s61, s62')
    p('s_mul_i32 s61, s27, s59')
    p('s_add_u32 s61, s61, s60')
    p('s_mul_i32 s61, s61, 5120')
    p('s_add_u32 s21, s61, s58')
    if CFG['ROT2']:
        p('s_add_u32 s34, s20, 16384')
        p('s_add_u32 s35, s21, 81920')
        if CFG['ROT2'] == 2:
            p('s_xor_b32 s62, s26, s27')
            p('s_and_b32 s62, s62, 1')
            p(f's_cmp_eq_u32 s{S_WAVE}, 0')
            p('s_cselect_b32 s63, 8, 9')
            p('s_mul_i32 s22, s62, s63')
        elif CFG['ROT2'] == 3:
            p('s_add_u32 s62, s26, s27')
            p('s_mul_i32 s63, s62, 43')
            p('s_lshr_b32 s63, s63, 7')
            p('s_mul_i32 s63, s63, 3')
            p('s_sub_u32 s62, s62, s63')
            p(f's_cmp_eq_u32 s{S_WAVE}, 0')
            p('s_cselect_b32 s63, 5, 6')
            p('s_mul_i32 s22, s62, s63')
        else:
            p('s_and_b32 s62, s26, 7')
            p('s_and_b32 s63, s27, 3')
            p('s_lshl_b32 s63, s63, 1')
            p('s_add_u32 s62, s62, s63')
            p(f's_cmp_eq_u32 s{S_WAVE}, 0')
            p('s_cselect_b32 s63, 16, 18')
            p('s_mul_i32 s62, s62, s63')
            p('s_lshr_b32 s22, s62, 3')
            p('s_cmp_ge_u32 s22, s63')
            p('s_cselect_b32 s62, s63, 0')
            p('s_sub_u32 s22, s22, s62')
        p('s_lshl_b32 s62, s22, 10')
        p('s_add_u32 s20, s20, s62')
        p('s_mul_i32 s62, s22, 5120')
        p('s_add_u32 s21, s21, s62')
    for t in range(4):
        p(f's_mul_i32 s62, s56, {t}')
        p(f'v_add_u32 v{K2_VA+t}, s62, v{K2_VL}')
    p('v_and_b32 v3, 15, v2')
    p('v_lshrrev_b32 v4, 4, v2')
    p('s_lshl_b32 s62, s26, 6')
    p(f's_lshl_b32 s63, s{S_WAVE}, 4')
    p('s_add_u32 s62, s62, s63')
    p('v_add_u32 v5, s62, v3')
    p('v_lshlrev_b32 v6, 3, v5')
    p(f'v_add_u32 v6, {G_OFF}, v6')
    p('s_mul_i32 s63, s27, 160')
    p('v_lshlrev_b32 v7, 4, v4')
    p('v_add_u32 v7, s63, v7')
    p('v_lshlrev_b32 v8, 3, v4')
    p('v_add_u32 v8, s63, v8')
    p('s_movk_i32 s63, 1280')
    p('v_mul_u32_u24 v5, s63, v5')
    p('v_add_u32 v242, v5, v7')
    p('v_add_u32 v243, v5, v8')
    p('s_waitcnt lgkmcnt(0)')
    srd(p, 12, 4, WS_USED)
    srd(p, 16, 8, 1280)
    srd(p, 28, 6, 2048 * 1280)
    stamp(p, 0)
    p(f'buffer_load_dwordx2 v[{K2_G}:{K2_G+1}], v6, s[12:15], 0 offen')
    p(f'buffer_load_dwordx4 v[{K2_B2}:{K2_B2+3}], v7, s[16:19], 0 offen')
    p(f'buffer_load_dwordx4 v[{K2_B2+4}:{K2_B2+7}], v7, s[16:19], 0 offen offset:64')
    p(f'buffer_load_dwordx2 v[{K2_B2+8}:{K2_B2+9}], v8, s[16:19], 0 offen offset:128')
    p(f's_cmp_eq_u32 s{S_WAVE}, 0')
    p('s_cbranch_scc0 L_k2_b')
    k2_stream(p, True)
    p.label('L_k2_b')
    k2_stream(p, False)
    p.label('L_k2_reduce')
    stamp(p, 2)
    ACC = lambda t, f: K2_ACC + (t * 5 + f) * 4
    p(f's_mul_i32 s62, s{S_WAVE}, 5120')
    p(f'v_add_u32 v3, s62, v{K2_VL}')
    p('s_nop 7')
    p('v_add_u32 v4, 40960, v3')
    for t in range(4):
        for f in range(5):
            p(f'ds_write_b128 v{3 + (t >> 1)}, v[{ACC(t,f)}:{ACC(t,f)+3}] offset:{(t & 1)*20480 + f*1024}')
    p(f's_mul_i32 s62, s{S_WAVE}, 20480')
    p(f'v_add_u32 v250, s62, v{K2_VL}')
    p('s_waitcnt lgkmcnt(0)')
    p('s_barrier')
    R = lambda w, f: (w * 5 + f) * 4
    for f in range(5):
        for w in range(4):
            p(f'ds_read_b128 v[{R(w,f)}:{R(w,f)+3}], v250 offset:{w*5120 + f*1024}')
    p('s_mov_b32 s62, 0xffff0000')
    B = lambda f: 100 + 4 * f
    for pr in range(2):
        for d in range(4):
            src = K2_B2 + 4 * pr + d
            f, r = 2 * pr + (d >> 1), 2 * (d & 1)
            p(f'v_lshlrev_b32 v{B(f)+r}, 16, v{src}')
            p(f'v_and_b32 v{B(f)+r+1}, s62, v{src}')
    for d in range(2):
        src = K2_B2 + 8 + d
        p(f'v_lshlrev_b32 v{B(4)+2*d}, 16, v{src}')
        p(f'v_and_b32 v{B(4)+2*d+1}, s62, v{src}')
    p(f'v_mov_b32 v120, v{K2_G}')
    p(f'v_mov_b32 v121, v{K2_G}')
    p(f'v_mov_b32 v122, v{K2_G+1}')
    p(f'v_mov_b32 v123, v{K2_G+1}')
    for f in range(5):
        p(f's_waitcnt lgkmcnt({min(15, 16-4*f)})' if f < 4 else 's_waitcnt lgkmcnt(0)')
        if f == 0:
            p('s_waitcnt lgkmcnt(15)')
        for r in (0, 2):
            a, b1, b2_, b3 = R(0, f) + r, R(1, f) + r, R(2, f) + r, R(3, f) + r
            p(f'v_pk_add_f32 v[{b1}:{b1+1}], v[{b1}:{b1+1}], v[{b2_}:{b2_+1}]')
            p(f'v_pk_add_f32 v[{b3}:{b3+1}], v[{b3}:{b3+1}], v[{B(f)+r}:{B(f)+r+1}]')
            p(f'v_pk_mul_f32 v[{a}:{a+1}], v[{a}:{a+1}], v[120:121]')
            p(f'v_pk_add_f32 v[{b1}:{b1+1}], v[{b1}:{b1+1}], v[{b3}:{b3+1}]')
            p(f'v_pk_fma_f32 v[{a}:{a+1}], v[{b1}:{b1+1}], v[122:123], v[{a}:{a+1}]')
    O = 124
    for pr in range(2):
        for u in range(2):
            a = R(0, 2 * pr + u)
            p(f'v_cvt_pk_bf16_f32 v{O+4*pr+2*u}, v{a}, v{a+1}')
            p(f'v_cvt_pk_bf16_f32 v{O+4*pr+2*u+1}, v{a+2}, v{a+3}')
        p(f'buffer_store_dwordx4 v[{O+4*pr}:{O+4*pr+3}], v242, s[28:31], 0 offen offset:{64*pr} {CFG["OUTF"]}')
    a = R(0, 4)
    p(f'v_cvt_pk_bf16_f32 v{O+8}, v{a}, v{a+1}')
    p(f'v_cvt_pk_bf16_f32 v{O+9}, v{a+2}, v{a+3}')
    p(f'buffer_store_dwordx2 v[{O+8}:{O+9}], v243, s[28:31], 0 offen offset:128 {CFG["OUTF"]}')
    stamp(p, 3)
    if CFG['PROF']:
        prof_store(p, 4, 'K2', 12)
    p.label('L_k2_end')
    p('s_endpgm')
    return p


K2B_R = 4
K2B_STEP = 9216
K2B_SLOT = 4 * K2B_STEP
K2B_LDS = K2B_R * K2B_SLOT


def gen_k2b():
    R, SL, ST = K2B_R, K2B_SLOT, K2B_STEP
    stages = [('a', 4 * i, 4) for i in range(5)] + [('b', 4 * i, 4) for i in range(13)] + [('b', 52, 2)]
    NS = len(stages)
    p = Prog()
    p('s_cmp_ge_u32 s2, 256')
    p('s_cbranch_scc1 L_k2_end')
    p('s_load_dwordx2 s[4:5], s[0:1], 88')
    p('s_load_dwordx2 s[6:7], s[0:1], 72')
    p('s_load_dwordx2 s[8:9], s[0:1], 56')
    if CFG['PROF']:
        p('s_memrealtime s[88:89]')
        p('s_memtime s[82:83]')
    p('v_lshrrev_b32 v1, 6, v0')
    p('v_and_b32 v2, 63, v0')
    p(f'v_readfirstlane_b32 s{S_WAVE}, v1')
    p('s_and_b32 s52, s2, 7')
    p('s_lshr_b32 s53, s2, 3')
    if CFG['MAP2'] == '8x4':
        p('s_lshr_b32 s54, s52, 1')
        p('s_lshl_b32 s54, s54, 3')
        p('s_lshr_b32 s55, s53, 2')
        p('s_add_u32 s26, s54, s55')
        p('s_and_b32 s54, s52, 1')
        p('s_lshl_b32 s54, s54, 2')
        p('s_and_b32 s55, s53, 3')
        p('s_add_u32 s27, s54, s55')
    else:
        p('s_lshl_b32 s54, s52, 2')
        p('s_lshr_b32 s55, s53, 3')
        p('s_add_u32 s26, s54, s55')
        p('s_and_b32 s27, s53, 7')
    p('v_lshlrev_b32 v3, 4, v2')
    p(f's_cmp_ge_u32 s{S_WAVE}, 4')
    p('s_cbranch_scc0 L_k2_consumer')
    p(f's_sub_u32 s57, s{S_WAVE}, 4')
    p('s_mul_i32 s20, s27, 20')
    p('s_add_u32 s20, s20, s57')
    p('s_mul_i32 s20, s20, 5120')
    p(f's_add_u32 s20, s20, {WO_OFF}')
    p('s_mul_i32 s21, s27, 54')
    p('s_add_u32 s21, s21, s57')
    p('s_mul_i32 s21, s21, 5120')
    p(f's_add_u32 s21, s21, {W2_OFF}')
    p('s_lshl_b32 s54, s26, 2')
    p('s_mul_i32 s22, s54, 20')
    p('s_add_u32 s22, s22, s57')
    p('s_lshl_b32 s22, s22, 10')
    p(f's_add_u32 s22, s22, {OA_OFF}')
    p('s_mul_i32 s25, s54, 54')
    p('s_add_u32 s25, s25, s57')
    p('s_lshl_b32 s25, s25, 10')
    if H_OFF:
        p(f's_add_u32 s25, s25, {H_OFF}')
    p(f's_mul_i32 s58, s57, {ST}')
    p('v_add_u32 v4, 4096, v3')
    for u in range(4):
        p(f'v_add_u32 v{10+u}, {20480*u}, v3')
        p(f'v_add_u32 v{14+u}, {55296*u}, v3')
    p('s_waitcnt lgkmcnt(0)')
    srd(p, 12, 4, WS_USED)
    stamp(p, 0)

    def issue(j):
        part, s0, n = stages[j]
        slot = j % R
        if n < 4:
            p(f's_cmp_ge_u32 s57, {n}')
            p(f's_cbranch_scc1 L_k2_skip{j}')
        p(f's_add_u32 s23, s{20 if part == "a" else 21}, {s0*5120}')
        p(f's_add_u32 s24, s{22 if part == "a" else 25}, {s0*1024}') if False else None
        p(f's_add_u32 m0, s58, {slot*SL}')
        p(f's_add_u32 s59, s{22 if part == "a" else 25}, {s0*1024}')
        for f in range(4):
            p(f'buffer_load_dwordx4 v3, s[12:15], s23 offen offset:{1024*f} {CFG["K2LDF"]} lds')
        p(f's_add_u32 m0, s58, {slot*SL + 4096}')
        p('s_nop 0')
        p(f'buffer_load_dwordx4 v4, s[12:15], s23 offen {CFG["K2LDF"]} lds')
        for u in range(4):
            p(f's_add_u32 m0, s58, {slot*SL + 5120 + 1024*u}')
            p('s_nop 0')
            p(f'buffer_load_dwordx4 v{(10 if part == "a" else 14)+u}, s[12:15], s59 offen {CFG["K2LDF"]} lds')
        if n < 4:
            p.label(f'L_k2_skip{j}')

    for j in range(R - 1):
        issue(j)
    stamp(p, 1)
    for j in range(NS):
        hi = min(j + R - 2, NS - 1)
        newer = 9 * (hi - j)
        if hi == NS - 1 and j < NS - 1:
            newer -= 9
        p(f's_waitcnt vmcnt({max(newer, 0)})')
        p('s_barrier')
        if j + R - 1 < NS:
            issue(j + R - 1)
    stamp(p, 2)
    stamp(p, 3)
    if CFG['PROF']:
        prof_store(p, 4, 'K2', 12)
    p('s_endpgm')
    p.label('L_k2_consumer')
    p(f's_cmp_eq_u32 s{S_WAVE}, 0')
    p('s_cbranch_scc0 L_k2_nopf')
    p('v_mov_b32 v10, v2')
    code_prefetch(p, 'L_k2_body', 'L_k2_end', CFG.get('K2_BYTES', 12288), 10, 255, 84, 'k2')
    p.label('L_k2_nopf')
    p.label('L_k2_body')
    ACA, ACB = 0, 20
    WR = lambda q, f: 40 + 20 * q + 4 * f
    AR = lambda q: 120 + 4 * q
    G, B2 = 230, 232
    p('s_lshl_b32 s54, s26, 2')
    p(f's_add_u32 s54, s54, s{S_WAVE}')
    p('v_and_b32 v4, 15, v2')
    p('v_lshrrev_b32 v5, 4, v2')
    p('s_lshl_b32 s55, s54, 4')
    p('v_add_u32 v6, s55, v4')
    p('v_lshlrev_b32 v7, 3, v6')
    p(f'v_add_u32 v7, {G_OFF}, v7')
    p('s_mul_i32 s55, s27, 160')
    p('v_lshlrev_b32 v8, 4, v5')
    p('v_add_u32 v8, s55, v8')
    p('v_lshlrev_b32 v9, 3, v5')
    p('v_add_u32 v9, s55, v9')
    p('v_mul_u32_u24 v6, 1280, v6')
    p('v_add_u32 v242, v6, v8')
    p('v_add_u32 v243, v6, v9')
    p(f's_lshl_b32 s55, s{S_WAVE}, 10')
    p('s_add_u32 s55, s55, 5120')
    for sl in range(R):
        p(f'v_add_u32 v{244+sl}, {sl*SL}, v3')
        p(f'v_add_u32 v{250+sl}, s55, v{244+sl}')
    p(f's_lshr_b32 s55, s{S_WAVE}, 1')
    p('s_lshl_b32 s55, s55, 10')
    p(f's_and_b32 s56, s{S_WAVE}, 1')
    p('s_lshl_b32 s56, s56, 3')
    p('s_add_u32 s55, s55, s56')
    p('s_add_u32 s55, s55, 5120')
    p('v_add_u32 v249, s55, v3')
    p('s_waitcnt lgkmcnt(0)')
    srd(p, 12, 4, WS_USED)
    srd(p, 16, 8, 1280)
    srd(p, 28, 6, 2048 * 1280)
    stamp(p, 0)
    p(f'buffer_load_dwordx2 v[{G}:{G+1}], v7, s[12:15], 0 offen')
    p(f'buffer_load_dwordx4 v[{B2}:{B2+3}], v8, s[16:19], 0 offen')
    p(f'buffer_load_dwordx4 v[{B2+4}:{B2+7}], v8, s[16:19], 0 offen offset:64')
    p(f'buffer_load_dwordx2 v[{B2+8}:{B2+9}], v9, s[16:19], 0 offen offset:128')
    for r in range(40):
        p(f'v_mov_b32 v{r}, 0')
    stamp(p, 1)
    for j, (part, s0, n) in enumerate(stages):
        slot = j % R
        tail = (part == 'a' and s0 == 16)
        assert not tail or slot == 0
        p('s_barrier')
        log = []
        for q in range(n):
            if tail:
                p(f'ds_read_b64 v[{AR(q)}:{AR(q)+1}], v249 offset:{q*ST}')
                p(f'ds_read_b64 v[{AR(q)+2}:{AR(q)+3}], v249 offset:{q*ST + 2048}')
                log += [('a', q), ('a', q)]
            else:
                p(f'ds_read_b128 v[{AR(q)}:{AR(q)+3}], v{250+slot} offset:{q*ST}')
                log.append(('a', q))
            for f in range(5):
                p(f'ds_read_b128 v[{WR(q,f)}:{WR(q,f)+3}], v{244+slot} offset:{q*ST + f*1024}')
                log.append(('w', q, f))
        known = max(0, len(log) - 15) if len(log) > 15 else 0
        done = -1
        for q in range(n):
            acc0 = ACA if part == 'a' else ACB
            for f in range(5):
                idx = log.index(('w', q, f))
                if idx > done:
                    left = len(log) - 1 - idx
                    w = min(left, 15)
                    p(f's_waitcnt lgkmcnt({w})')
                    done = len(log) - 1 - w
                p(f'v_mfma_f32_16x16x32_bf16 v[{acc0+4*f}:{acc0+4*f+3}], v[{WR(q,f)}:{WR(q,f)+3}], v[{AR(q)}:{AR(q)+3}], v[{acc0+4*f}:{acc0+4*f+3}]')
    stamp(p, 2)
    p('s_mov_b32 s62, 0xffff0000')
    p('s_waitcnt vmcnt(0)')
    Bf = lambda f: 100 + 4 * f
    for pr in range(2):
        for d in range(4):
            s_ = B2 + 4 * pr + d
            f, r = 2 * pr + (d >> 1), 2 * (d & 1)
            p(f'v_lshlrev_b32 v{Bf(f)+r}, 16, v{s_}')
            p(f'v_and_b32 v{Bf(f)+r+1}, s62, v{s_}')
    for d in range(2):
        s_ = B2 + 8 + d
        p(f'v_lshlrev_b32 v{Bf(4)+2*d}, 16, v{s_}')
        p(f'v_and_b32 v{Bf(4)+2*d+1}, s62, v{s_}')
    p(f'v_mov_b32 v120, v{G}')
    p(f'v_mov_b32 v121, v{G}')
    p(f'v_mov_b32 v122, v{G+1}')
    p(f'v_mov_b32 v123, v{G+1}')
    for f in range(5):
        for r in (0, 2):
            a, b = ACA + 4 * f + r, ACB + 4 * f + r
            p(f'v_pk_add_f32 v[{b}:{b+1}], v[{b}:{b+1}], v[{Bf(f)+r}:{Bf(f)+r+1}]')
            p(f'v_pk_mul_f32 v[{a}:{a+1}], v[{a}:{a+1}], v[120:121]')
    for f in range(5):
        for r in (0, 2):
            a, b = ACA + 4 * f + r, ACB + 4 * f + r
            p(f'v_pk_fma_f32 v[{a}:{a+1}], v[{b}:{b+1}], v[122:123], v[{a}:{a+1}]')
    O = 124
    for pr in range(2):
        for u in range(2):
            a = ACA + 4 * (2 * pr + u)
            p(f'v_cvt_pk_bf16_f32 v{O+4*pr+2*u}, v{a}, v{a+1}')
            p(f'v_cvt_pk_bf16_f32 v{O+4*pr+2*u+1}, v{a+2}, v{a+3}')
        p(f'buffer_store_dwordx4 v[{O+4*pr}:{O+4*pr+3}], v242, s[28:31], 0 offen offset:{64*pr} {CFG["OUTF"]}')
    a = ACA + 16
    p(f'v_cvt_pk_bf16_f32 v{O+8}, v{a}, v{a+1}')
    p(f'v_cvt_pk_bf16_f32 v{O+9}, v{a+2}, v{a+3}')
    p(f'buffer_store_dwordx2 v[{O+8}:{O+9}], v243, s[28:31], 0 offen offset:128 {CFG["OUTF"]}')
    stamp(p, 3)
    if CFG['PROF']:
        prof_store(p, 4, 'K2', 12)
    p.label('L_k2_end')
    p('s_endpgm')
    return p


def gen_k2t():
    NW, INF, MODE = CFG['NW'], CFG['INF'], CFG['TMODE']
    p = Prog()
    p('s_cmp_ge_u32 s2, 256')
    p('s_cbranch_scc1 L_k2_end')
    p('s_load_dwordx2 s[4:5], s[0:1], 88')
    p('s_memrealtime s[88:89]')
    p('s_memtime s[82:83]')
    p('v_lshrrev_b32 v1, 6, v0')
    p('v_and_b32 v2, 63, v0')
    p(f'v_readfirstlane_b32 s{S_WAVE}, v1')
    p('s_and_b32 s52, s2, 7')
    p('s_lshr_b32 s53, s2, 3')
    p('s_lshr_b32 s54, s52, 1')
    p('s_lshl_b32 s54, s54, 3')
    p('s_lshr_b32 s55, s53, 2')
    p('s_add_u32 s26, s54, s55')
    p('s_and_b32 s54, s52, 1')
    p('s_lshl_b32 s54, s54, 2')
    p('s_and_b32 s55, s53, 3')
    p('s_add_u32 s27, s54, s55')
    p('v_lshlrev_b32 v3, 4, v2')
    p('v_add_u32 v4, 4096, v3')
    nst = 72 // NW
    p(f's_mul_i32 s60, s{S_WAVE}, {nst}')
    p('s_cmp_ge_u32 s60, 54')
    p('s_cselect_b32 s61, 1, 0')
    p('s_cselect_b32 s56, 20480, 0')
    p('s_cselect_b32 s56, s56, 55296')
    p(f's_mov_b32 s57, {OA_OFF}')
    p(f's_cselect_b32 s57, s57, {H_OFF}')
    p(f's_mov_b32 s58, {WO_OFF}')
    p(f's_cselect_b32 s58, s58, {W2_OFF}')
    p('s_cselect_b32 s59, 20, 54')
    p('s_cselect_b32 s62, 54, 0')
    p('s_sub_u32 s60, s60, s62')
    p('s_lshl_b32 s61, s26, 2')
    p('s_mul_i32 s61, s61, s56')
    p('s_add_u32 s61, s61, s57')
    p('s_lshl_b32 s62, s60, 10')
    p('s_add_u32 s20, s61, s62')
    p('s_mul_i32 s61, s27, s59')
    p('s_add_u32 s61, s61, s60')
    p('s_mul_i32 s61, s61, 5120')
    p('s_add_u32 s21, s61, s58')
    for t in range(4):
        p(f's_mul_i32 s62, s56, {t}')
        p(f'v_add_u32 v{10+t}, s62, v3')
    p(f's_mul_i32 s63, s{S_WAVE}, 16384')
    p('s_waitcnt lgkmcnt(0)')
    srd(p, 12, 4, WS_USED)
    stamp(p, 0)
    stamp(p, 1)
    n = 0
    for s in range(nst):
        for f in range(9):
            r = 20 + 4 * (n % 48)
            if MODE == 'dma':
                p(f's_add_u32 m0, s63, {(n % 16) * 1024}')
                p('s_nop 0')
            a, so, off = (3, 's21', 1024 * f) if f < 4 else ((4, 's21', 0) if f == 4 else (10 + f - 5, 's20', 0))
            if MODE == 'dma':
                if f < 4 and f > 0:
                    p(f's_sub_u32 m0, m0, {off}')
                    p('s_nop 0')
                p(f'buffer_load_dwordx4 v{a}, s[12:15], {so} offen offset:{off} lds')
            else:
                p(f'buffer_load_dwordx4 v[{r}:{r+3}], v{a}, s[12:15], {so} offen offset:{off}')
            p(f's_waitcnt vmcnt({INF})')
            n += 1
        p('s_add_u32 s20, s20, 1024')
        p('s_add_u32 s21, s21, 5120')
    p('s_waitcnt vmcnt(0)')
    stamp(p, 2)
    stamp(p, 3)
    prof_store(p, 4, 'K2', 12)
    p.label('L_k2_end')
    p('s_endpgm')
    return p


def gen_kpf():
    p = Prog()
    p('s_cmp_ge_u32 s2, 256')
    p('s_cbranch_scc1 L_kpf_end')
    p('s_load_dwordx2 s[4:5], s[0:1], 88')
    p('v_and_b32 v2, 63, v0')
    p('v_lshrrev_b32 v1, 6, v0')
    p('s_and_b32 s52, s2, 7')
    p('s_lshr_b32 s53, s2, 3')
    p('v_lshlrev_b32 v3, 7, v0')
    p('s_waitcnt lgkmcnt(0)')
    srd(p, 12, 4, WS_USED)
    if CFG['KPF'] == 1:
        p('s_and_b32 s54, s52, 1')
        p(f's_mul_i32 s55, s54, {4*54*5120}')
        p(f's_add_u32 s55, s55, {W2_OFF}')
        p('s_lshl_b32 s56, s53, 15')
        p('s_add_u32 s57, s55, s56')
        p('buffer_load_dword v10, v3, s[12:15], s57 offen')
        p('s_add_u32 s57, s57, 57344')
        p('buffer_load_dword v10, v3, s[12:15], s57 offen')
        p(f's_mul_i32 s55, s54, {4*20*5120}')
        p(f's_add_u32 s55, s55, {WO_OFF}')
        p('s_mul_i32 s56, s53, 12800')
        p('s_add_u32 s57, s55, s56')
        p('buffer_load_dword v10, v3, s[12:15], s57 offen')
    else:
        p('s_lshr_b32 s54, s52, 1')
        p(f's_mul_i32 s55, s54, {32*55296}')
        p('s_mul_i32 s56, s53, 55296')
        p('s_add_u32 s57, s55, s56')
        p('buffer_load_dword v10, v3, s[12:15], s57 offen')
        p('s_add_u32 s57, s57, 22528')
        p('buffer_load_dword v10, v3, s[12:15], s57 offen')
        p(f's_mul_i32 s55, s54, {32*20480}')
        p(f's_add_u32 s55, s55, {OA_OFF}')
        p('s_mul_i32 s56, s53, 20480')
        p('s_add_u32 s57, s55, s56')
        p('buffer_load_dword v10, v3, s[12:15], s57 offen')
    p('s_waitcnt vmcnt(0)')
    p.label('L_kpf_end')
    p('s_endpgm')
    return p


HEADER = """; Kernarg layout (96 bytes, ptrs only, base s[0:1]):
; @launch kernel=gm_k1_kernel grid=(256,1,1) block=(512,1,1) lds=%d
; @launch kernel=gm_k2_kernel grid=(256,1,1) block=(256,1,1) lds=%d
.amdgcn_target "amdgcn-amd-amdhsa--gfx950"
"""

KD = """.amdhsa_kernel %s
  .amdhsa_next_free_vgpr %d
  .amdhsa_next_free_sgpr 102
  .amdhsa_accum_offset %d
  .amdhsa_group_segment_fixed_size 0
  .amdhsa_kernarg_size 96
  .amdhsa_user_sgpr_count 2
  .amdhsa_user_sgpr_kernarg_segment_ptr 1
  .amdhsa_system_sgpr_workgroup_id_x 1
  .amdhsa_float_denorm_mode_32 3
.end_amdhsa_kernel
"""


def main():
    k1 = gen_k1()
    k2 = gen_k2b() if CFG['K2V'] == 2 else (gen_k2t() if CFG['K2V'] == 3 else gen_k2())
    t1, t2 = k1.finish(), k2.finish()
    s = HEADER % (K1_LDS, K2B_LDS if CFG['K2V'] == 2 else K2_LDS)
    if CFG['K2V'] == 3:
        s = s.replace('kernel=gm_k2_kernel grid=(256,1,1) block=(256,1,1) lds=%d' % K2_LDS, 'kernel=gm_k2_kernel grid=(256,1,1) block=(%d,1,1) lds=131072' % (64 * CFG['NW']))
    if CFG['K2V'] == 2:
        s = s.replace('kernel=gm_k2_kernel grid=(256,1,1) block=(256,1,1)', 'kernel=gm_k2_kernel grid=(256,1,1) block=(512,1,1)')
    if CFG['K2TWICE']:
        ln = [l for l in s.split('\n') if 'kernel=gm_k2_kernel' in l][0]
        s = s.replace(ln, ln + '\n' + ln)
    s += '.text\n'
    for name, t in (('gm_k1_kernel', t1), ('gm_k2_kernel', t2)):
        s += f'.globl {name}\n.p2align 8\n.type {name},@function\n{name}:\n{t}'
    s += '.p2align 8\n.fill 64, 4, 0xbf800000\n' if False else ''
    if CFG['KPF']:
        s += '.globl gm_pf_kernel\n.p2align 8\n.type gm_pf_kernel,@function\ngm_pf_kernel:\n' + gen_kpf().finish()
        ln = [l for l in s.split('\n') if 'kernel=gm_k2_kernel' in l][0]
        s = s.replace(ln, '; @launch kernel=gm_pf_kernel grid=(256,1,1) block=(256,1,1) lds=0\n' + ln)
    s += '.section .rodata,"a"\n.p2align 6\n'
    s += KD % ('gm_k1_kernel', 256, 256)
    s += '.p2align 6\n'
    s += KD % ('gm_k2_kernel', 256, 256)
    if CFG['KPF']:
        s += '.p2align 6\n' + KD % ('gm_pf_kernel', 64, 64)
    out = CFG.get('OUT', f'cdna_kernels/{NAME}.s')
    open(out, 'w').write(s)
    print('written', out, len(s), 'bytes; nops inserted k1', k1.nops_inserted, 'k2', k2.nops_inserted)


if __name__ == '__main__':
    main()
```

```python
import sys, os, math, struct
sys.path.insert(0, os.path.dirname(os.path.abspath(__file__)))
from asmlib import Prog, vr, ar, sr

NAME = 'gated_mix__sliding_local_dilated__dense_activation_gelu__prompt'

CFG = dict(MAP1='m82', MAP2='8x4', NBUF=4, PROF=0, NOMFMA=0, NOLOAD=0, NODS=0, STF='sc1', LDF='', ULDF='', PFF='', PF=0, TT=1, ROT=1, ROT2=0, K2TWICE=0, K2V=1, M35=1, K2RED=2, K2PRIO=0, USPF=0, TJ=7, TL=0, GLATE=0, STFO='', STFH='sc1', ALIGN=0, UNITS_FFN=0, NFU=3, PEEL=1, SWAPW=0, LDFIRST=0, PRIO=0, K2ORD=0, KPF=0, LDF0='nt', NT_ST=0, ZOOB=1, TEARLY=0, K2PF=1, DA=12, NW=4, INF=32, TMODE='reg', K2NOMFMA=0, K2LDF='', OUTF='')
for a in sys.argv[1:]:
    if '=' in a:
        k, v = a.split('=')
        CFG[k] = int(v) if v.lstrip('-').isdigit() else v.replace('+', ' ')

H_OFF = 0
OA_OFF = H_OFF + 128 * 54 * 1024
W2_OFF = OA_OFF + 128 * 20 * 1024
WO_OFF = W2_OFF + 8 * 54 * 5120
G_OFF = WO_OFF + 8 * 20 * 5120
WS_USED = G_OFF + 2048 * 8
PROF_OFF = 16 << 20

XREG = 144 * 128
WROW = 480
WREG = 64 * WROW
SLOT = XREG + WREG
XFLAG = 3 * 49152 + 15360
SCR = 3 * SLOT
K1_LDS = 163840


def f32(x):
    return struct.unpack('<I', struct.pack('<f', x))[0]


def hexf(x):
    return '0x%08x' % f32(x)


S_AX, S_WQKV, S_WO, S_BX, S_W1, S_B1, S_W2, S_B2, S_GW, S_WS = 4, 6, 8, 10, 12, 14, 16, 18, 20, 22
S_WAVE, S_TYPE, S_RB, S_CG = 24, 25, 26, 27
SRD_X, SRD_W, SRD_I4, SRD_WS, SRD_A, SRD_B = 28, 32, 36, 40, 44, 48


def srd(p, base, ptr, nbytes):
    p(f's_mov_b32 s{base}, s{ptr}')
    p(f's_mov_b32 s{base+1}, s{ptr+1}')
    p(f's_mov_b32 s{base+2}, {nbytes}')
    p(f's_mov_b32 s{base+3}, 0x20000')


def code_prefetch(p, lbl_from, lbl_to, nbytes, vtmp, vdst, s, tag):
    p(f's_getpc_b64 s[{s}:{s+1}]')
    p.label(f'L_pc_{tag}')
    p(f's_add_u32 s{s}, s{s}, {lbl_from}-L_pc_{tag}')
    p(f's_addc_u32 s{s+1}, s{s+1}, 0')
    p(f'v_lshlrev_b32 v{vtmp}, 6, v{vtmp}')
    n = (nbytes + 4095) // 4096
    for j in range(n):
        p(f'v_min_u32 v{vtmp+1}, {lbl_to}-{lbl_from}, v{vtmp}')
        p(f'global_load_dword v{vdst}, v{vtmp+1}, s[{s}:{s+1}]')
        if j + 1 < n:
            p(f'v_add_u32 v{vtmp}, 4096, v{vtmp}')
    return n


def stamp(p, idx, sbase=90):
    if CFG['PROF']:
        p(f'{"s_memtime" if CFG["PROF"] in (2, 3, 6) else "s_memrealtime"} s[{sbase+2*idx}:{sbase+2*idx+1}]')


def k1_decode(p):
    p('s_and_b32 s52, s2, 7')
    p('s_lshr_b32 s53, s2, 3')
    if CFG['MAP1'] == 'mixed':
        p(f's_lshr_b32 s{S_TYPE}, s53, 4')
        p('s_and_b32 s54, s53, 15')
        p('s_lshr_b32 s55, s52, 1')
        p('s_lshl_b32 s55, s55, 2')
        p('s_lshr_b32 s56, s54, 2')
        p(f's_add_u32 s{S_RB}, s55, s56')
        p('s_and_b32 s55, s52, 1')
        p('s_lshl_b32 s55, s55, 2')
        p('s_and_b32 s56, s54, 3')
        p(f's_add_u32 s{S_CG}, s55, s56')
    elif CFG['MAP1'] == 'm82':
        p(f's_lshr_b32 s{S_TYPE}, s53, 4')
        p('s_lshr_b32 s55, s52, 2')
        p('s_lshl_b32 s55, s55, 3')
        p('s_and_b32 s56, s53, 7')
        p(f's_add_u32 s{S_RB}, s55, s56')
        p('s_and_b32 s55, s52, 3')
        p('s_lshl_b32 s55, s55, 1')
        p('s_bfe_u32 s56, s53, 0x10003')
        p(f's_add_u32 s{S_CG}, s55, s56')
    else:
        p(f's_lshr_b32 s{S_TYPE}, s52, 2')
        p('s_and_b32 s54, s52, 3')
        p('s_lshr_b32 s55, s54, 1')
        p('s_lshl_b32 s55, s55, 3')
        p('s_lshr_b32 s56, s53, 2')
        p(f's_add_u32 s{S_RB}, s55, s56')
        p('s_and_b32 s55, s54, 1')
        p('s_lshl_b32 s55, s55, 2')
        p('s_and_b32 s56, s53, 3')
        p(f's_add_u32 s{S_CG}, s55, s56')


def k1_loader(p, attn):
    tag = 'A' if attn else 'F'
    rowstride = 3840 if attn else 3456
    VOFF = 10
    VL = 2
    p.label(f'L_loader_{tag}')
    p(f's_sub_u32 s57, s{S_WAVE}, 4')
    p(f'v_lshrrev_b32 v3, 3, v{VL}')
    p('s_lshl_b32 s58, s57, 3')
    p('v_add_u32 v3, s58, v3')
    p(f's_lshl_b32 s59, s{S_RB}, 7')
    if attn:
        p('s_sub_u32 s59, s59, 16')
    p('v_add_u32 v3, s59, v3')
    p('s_and_b32 s58, s57, 1')
    p('s_lshl_b32 s58, s58, 2')
    p(f'v_lshrrev_b32 v4, 4, v{VL}')
    p('v_add_u32 v4, s58, v4')
    p(f'v_and_b32 v5, 7, v{VL}')
    p('v_xor_b32 v4, v4, v5')
    p('v_lshlrev_b32 v4, 4, v4')
    p('s_movk_i32 s58, 1280')
    p('s_movk_i32 s59, 2047')
    for i in range(5):
        p(f'v_add_u32 v5, {32*i}, v3')
        if attn and i == 0:
            p('v_max_i32 v5, 0, v5')
        if (not attn) and i == 4:
            p('v_min_u32 v5, s59, v5')
        p('v_mul_u32_u24 v5, s58, v5')
        p(f'v_add_u32 v{VOFF+i if i < 4 else 6}, v5, v4')
    p('s_lshl_b32 s58, s57, 6')
    p(f'v_add_u32 v7, s58, v{VL}')
    p(f's_mov_b32 s60, {rowstride}')
    p('v_mov_b32 v9, 0x7ffffff0')
    if attn:
        p(f's_mul_i32 s61, s{S_CG}, 160')
    else:
        p(f's_mul_i32 s61, s{S_CG}, 448')

    def w_offset(i):
        base = 64 * (4 * i - 18)
        dst = VOFF + i if i > 4 else 8
        if base >= 0:
            p(f'v_add_u32 v3, {base}, v7')
        else:
            p(f'v_subrev_u32 v3, {-base}, v7')
            p('v_max_i32 v3, 0, v3')
        p('v_mul_u32_u24 v4, 2185, v3')
        p('v_lshrrev_b32 v4, 16, v4')
        p('v_mul_u32_u24 v5, 30, v4')
        p('v_sub_u32 v5, v3, v5')
        p('v_lshrrev_b32 v3, 1, v4')
        p('v_xor_b32 v3, v3, v4')
        p('v_and_b32 v3, 4, v3')
        p('v_mul_u32_u24 v3, 3, v3')
        p('v_xor_b32 v4, v3, v4')
        p('v_mul_u32_u24 v4, s60, v4')
        if attn:
            p('v_mul_u32_u24 v3, 205, v5')
            p('v_lshrrev_b32 v3, 11, v3')
            p('v_mul_u32_u24 v3, 1120, v3')
            p('v_lshlrev_b32 v5, 4, v5')
            p('v_add3_u32 v5, v5, v3, s61')
        else:
            p('v_lshlrev_b32 v5, 4, v5')
            p('v_add_u32 v5, s61, v5')
            if CFG['ZOOB']:
                p('v_cmp_lt_u32 vcc, 3440, v5')
            else:
                p('v_min_u32 v5, 3440, v5')
        p(f'v_add_u32 v{dst}, v4, v5')
        if (not attn) and CFG['ZOOB']:
            p(f'v_cndmask_b32 v{dst}, v{dst}, v9, vcc')
        if i == 4:
            p('s_cmp_lt_u32 s57, 2')
            p('s_cselect_b64 vcc, -1, 0')
            p(f'v_cndmask_b32 v{VOFF+4}, v8, v6, vcc')

    p('s_waitcnt lgkmcnt(0)')
    if attn:
        srd(p, SRD_X, S_AX, 2048 * 1280)
        srd(p, SRD_W, S_WQKV, 640 * 3840)
    else:
        srd(p, SRD_X, S_AX, 2048 * 1280)
        srd(p, SRD_W, S_W1, 640 * 3456)
    p('s_cmp_lt_u32 s57, 2')
    for k in range(3):
        p(f's_cselect_b32 s{SRD_I4+k}, s{SRD_X+k}, s{SRD_W+k}')
    p(f's_mov_b32 s{SRD_I4+3}, 0x20000')
    p('s_movk_i32 s73, 128')
    p('s_cselect_b32 s73, s73, %d' % (64 * rowstride))
    if CFG['ROT']:
        p(f's_and_b32 s79, s{S_RB}, 7')
        p('s_lshr_b32 s80, s79, 2')
        p('s_add_u32 s79, s79, s80')
        if CFG['MAP1'] == 'spec':
            p(f's_and_b32 s80, s{S_CG}, 3')
        else:
            p(f's_and_b32 s80, s{S_CG}, 1')
            p(f's_lshl_b32 s81, s{S_TYPE}, 1')
            p('s_add_u32 s80, s80, s81')
        p('s_mul_i32 s80, s80, 5')
        p('s_lshr_b32 s80, s80, 1')
        p('s_add_u32 s79, s79, s80')
        p('s_cmp_ge_u32 s79, 10')
        p('s_cselect_b32 s80, 10, 0')
        p('s_sub_u32 s79, s79, s80')
    else:
        p('s_mov_b32 s79, 0')
    p('s_lshl_b32 s74, s79, 7')
    p(f's_mul_i32 s75, s79, {64*rowstride}')
    p('s_mul_i32 s76, s79, s73')
    p('s_lshl_b32 s77, s57, 10')

    def issue_stage(st, lazy=False):
        slot = st % 3
        ldf = CFG['LDF0'] if st < CFG['NT_ST'] else CFG['LDF']
        for i in range(12):
            if lazy and i >= 4:
                w_offset(i)
            p(f's_add_u32 m0, s77, {slot*SLOT + i*4096}')
            if i < 4:
                if i == 0:
                    p('s_nop 0')
                p(f'buffer_load_dwordx4 v{VOFF+i}, s[{SRD_X}:{SRD_X+3}], s74 offen {ldf} lds')
            elif i == 4:
                p(f'buffer_load_dwordx4 v{VOFF+i}, s[{SRD_I4}:{SRD_I4+3}], s76 offen {ldf} lds')
            else:
                p(f'buffer_load_dwordx4 v{VOFF+i}, s[{SRD_W}:{SRD_W+3}], s75 offen {ldf} lds')
        p('s_add_u32 s74, s74, 128')
        p(f's_add_u32 s75, s75, {64*rowstride}')
        p('s_add_u32 s76, s76, s73')
        if CFG['ROT']:
            p('s_add_u32 s79, s79, 1')
            p('s_cmp_eq_u32 s79, 10')
            for r in (79, 74, 75, 76):
                p(f's_cselect_b32 s{r}, 0, s{r}')

    stamp(p, 0)
    issue_stage(0, lazy=True)
    issue_stage(1)
    UF = CFG['UNITS_FFN']
    scr_base = SLOT if (UF and not attn) else SCR

    def unit_decode(sfx):
        p('s_and_b32 s64, s62, 7')
        p('s_lshr_b32 s65, s62, 3')
        p('s_lshl_b32 s66, s65, 5')
        p('s_mov_b32 s67, 16')
        p('s_mov_b32 s68, 4')
        p('s_mul_i32 s69, s64, 54')
        p('s_add_u32 s69, s69, s65')
        p('s_mul_i32 s69, s69, 5120')
        p(f's_add_u32 s69, s69, {W2_OFF}')
        p('s_mov_b32 s70, 0')
        p('s_cmp_lt_u32 s65, 54')
        p(f's_cbranch_scc1 L_unit_done_{tag}{sfx}')
        p('s_sub_u32 s65, s65, 54')
        p('s_mov_b32 s70, 1')
        p('s_mul_i32 s69, s64, 20')
        p('s_add_u32 s69, s69, s65')
        p('s_mul_i32 s69, s69, 5120')
        p(f's_add_u32 s69, s69, {WO_OFF}')
        p('s_mul_i32 s66, s65, 40')
        p('s_mov_b32 s67, 20')
        p('s_cmp_lt_u32 s65, 16')
        p(f's_cbranch_scc1 L_unit_done_{tag}{sfx}')
        p('s_sub_u32 s65, s65, 16')
        p('s_mul_i32 s66, s65, 160')
        p('s_add_u32 s66, s66, 16')
        p('s_mov_b32 s67, 80')
        p('s_mov_b32 s68, 20')
        p.label(f'L_unit_done_{tag}{sfx}')
        p('s_mul_i32 s71, s64, 160')
        p('s_movk_i32 s58, 1280')
        for i in range(5):
            p(f'v_add_u32 v3, {64*i}, v{VL}')
            p('v_mul_u32_u24 v4, 6554, v3')
            p('v_lshrrev_b32 v4, 16, v4')
            p('v_mul_u32_u24 v5, 10, v4')
            p('v_sub_u32 v5, v3, v5')
            p('v_lshlrev_b32 v5, 4, v5')
            p('v_add_u32 v5, s71, v5')
            p('v_lshrrev_b32 v3, 4, v4')
            p('v_mul_u32_u24 v3, s67, v3')
            p('v_bfe_u32 v6, v4, 2, 2')
            p('v_mul_u32_u24 v6, s68, v6')
            p('v_and_b32 v4, 3, v4')
            p('v_add3_u32 v3, v3, v6, v4')
            p('v_add_u32 v3, s66, v3')
            p('v_mul_u32_u24 v3, s58, v3')
            p(f'v_add_u32 v{22+i}, v3, v5')

    def unit_srd():
        p('s_cmp_eq_u32 s70, 0')
        p(f's_cselect_b32 s{SRD_A}, s{S_W2}, s{S_WO}')
        p(f's_cselect_b32 s{SRD_A+1}, s{S_W2+1}, s{S_WO+1}')
        p(f's_mov_b32 s{SRD_A+2}, {1728*1280}')
        p(f's_cselect_b32 s{SRD_A+2}, s{SRD_A+2}, {640*1280}')
        p(f's_mov_b32 s{SRD_A+3}, 0x20000')

    do_units = True
    NFU = CFG['NFU']
    always = UF and not attn and NFU == 4
    if UF:
        p(f's_lshl_b32 s62, s{S_RB}, 3')
        p(f's_add_u32 s62, s62, s{S_CG}')
        p('s_lshl_b32 s63, s57, 7')
        p('s_add_u32 s62, s62, s63')
        if not attn:
            p(f's_cmp_lt_u32 s57, {NFU}')
            p('s_cselect_b32 s63, 1, 0')
        else:
            p(f's_add_u32 s62, s62, {128*NFU}')
            p('s_cmp_lt_u32 s62, 592')
            p('s_cselect_b32 s63, 1, 0')
            p('s_cmp_lt_u32 s57, 3')
            p('s_cselect_b32 s63, s63, 0')
    else:
        p('s_lshl_b32 s62, s57, 8')
        p('s_add_u32 s62, s62, s2')
        p('s_cmp_lt_u32 s62, 592')
        p('s_cselect_b32 s63, 1, 0')
        p('s_cmp_lt_u32 s57, 3')
        p('s_cselect_b32 s63, s63, 0')
    if do_units:
        unit_decode('')
        p(f'v_lshrrev_b32 v3, 2, v{VL}')
        p('v_mul_u32_u24 v3, 160, v3')
        p('s_mul_i32 s72, s57, 5120')
        p(f's_add_u32 s72, s72, {scr_base}')
        p('v_add_u32 v3, s72, v3')
        p(f'v_and_b32 v4, 3, v{VL}')
        p('v_lshl_add_u32 v27, v4, 4, v3')
        p('v_lshl_add_u32 v28, v4, 3, v3')
        p(f'v_lshlrev_b32 v29, 4, v{VL}')
        p('v_add_u32 v30, 4096, v29')
    if not attn:
        p(f's_lshl_b32 s58, s{S_RB}, 3')
        p(f's_add_u32 s58, s58, s{S_CG}')
        p('s_lshl_b32 s58, s58, 4')
        p('s_lshl_b32 s59, s57, 2')
        p('s_add_u32 s58, s58, s59')
        p(f'v_lshrrev_b32 v3, 4, v{VL}')
        p('v_add_u32 v31, s58, v3')
        p('s_movk_i32 s58, 1280')
        p('v_mul_u32_u24 v3, s58, v31')
        p(f'v_and_b32 v4, 15, v{VL}')
        p('v_lshlrev_b32 v33, 4, v4')
        p('v_add_u32 v32, v3, v33')
    srd(p, SRD_WS, S_WS, WS_USED)
    if do_units:
        unit_srd()
    GX, GW = 40, 60
    gate = (not attn)
    TG = 10 if gate else 0
    if gate:
        srd(p, SRD_B, S_GW, 1280)

    def unit_loads():
        for i in range(5):
            p(f's_add_u32 m0, s72, {i*1024}')
            p('s_nop 0')
            p(f'buffer_load_dwordx4 v{22+i}, s[{SRD_A}:{SRD_A+3}], 0 offen {CFG["ULDF"]} lds')

    def unit_finish():
        for f in range(5):
            a, off = (27, [0, 8, 64, 72][f]) if f < 4 else (28, 128)
            p(f'ds_read_b64_tr_b16 v[{84+4*f}:{85+4*f}], v{a} offset:{off}')
            p(f'ds_read_b64_tr_b16 v[{86+4*f}:{87+4*f}], v{a} offset:{off+2560}')
        for f in range(5):
            p(f's_waitcnt lgkmcnt({8-2*f})')
            if f < 4:
                p(f'buffer_store_dwordx4 v[{84+4*f}:{87+4*f}], v29, s[{SRD_WS}:{SRD_WS+3}], s69 offen offset:{1024*f} {CFG["STF"]}')
            else:
                p(f'buffer_store_dwordx4 v[{84+4*f}:{87+4*f}], v30, s[{SRD_WS}:{SRD_WS+3}], s69 offen {CFG["STF"]}')

    def tail_loads():
        if not do_units:
            return
        if always:
            unit_loads()
        else:
            p('s_cmp_eq_u32 s63, 0')
            p(f's_cbranch_scc1 L_nounit_ld_{tag}')
            unit_loads()
            p.label(f'L_nounit_ld_{tag}')
        if gate:
            for j in range(5):
                p(f'buffer_load_dwordx4 v[{GX+4*j}:{GX+4*j+3}], v32, s[{SRD_X}:{SRD_X+3}], 0 offen offset:{256*j}')
                p(f'buffer_load_dwordx4 v[{GW+4*j}:{GW+4*j+3}], v33, s[{SRD_B}:{SRD_B+3}], 0 offen offset:{256*j}')

    def unit_prefetch(grp):
        if not (CFG['USPF'] and do_units):
            return
        hi, mid = grp >> 2, grp & 3
        p('s_cmp_eq_u32 s63, 0')
        p(f's_cbranch_scc1 L_uspf{grp}_{tag}')
        p(f's_mul_i32 s99, s67, {hi}')
        p(f's_mul_i32 s98, s68, {mid}')
        p('s_add_u32 s99, s99, s98')
        p('s_add_u32 s99, s99, s66')
        p('s_mul_i32 s99, s99, 1280')
        p('s_add_u32 s99, s99, s71')
        for r in range(4):
            p(f's_load_dword s56, s[{SRD_A}:{SRD_A+1}], s99 offset:{1280*r}')
            p(f's_load_dword s56, s[{SRD_A}:{SRD_A+1}], s99 offset:{1280*r + 156}')
        p.label(f'L_uspf{grp}_{tag}')

    def wait_vm(n_nounit, n_unit, uid):
        if always:
            n_nounit = n_unit
        if n_nounit == n_unit:
            p(f's_waitcnt vmcnt({n_unit})')
            return
        p('s_cmp_eq_u32 s63, 0')
        p(f's_cbranch_scc1 L_w{uid}a_{tag}')
        p(f's_waitcnt vmcnt({n_unit})')
        p(f's_branch L_w{uid}b_{tag}')
        p.label(f'L_w{uid}a_{tag}')
        p(f's_waitcnt vmcnt({n_nounit})')
        p.label(f'L_w{uid}b_{tag}')

    if CFG['TEARLY']:
        tail_loads()
        wait_vm(12 + TG, 12 + TG + 5, 'i')
    else:
        p('s_waitcnt vmcnt(12)')
    stamp(p, 1)
    TJ = CFG['TJ'] if attn else 7
    p('s_barrier')
    issue_stage(2)
    unit_prefetch(0)
    for j in range(9):
        if CFG['TEARLY']:
            if j == 0:
                wait_vm(12 + TG, 12 + TG + 5, j)
            else:
                p('s_waitcnt vmcnt(%d)' % (12 if j <= 7 else 0))
        elif j <= TJ:
            p('s_waitcnt vmcnt(12)')
        elif j == 7:
            wait_vm(12 + TG, 12 + TG + 5, j)
        else:
            wait_vm(TG, TG + 5, j)
        p('s_barrier')
        if j + 3 <= 9 and not CFG['NOLOAD']:
            issue_stage(j + 3)
        if j <= 6:
            unit_prefetch(j + 1)
        if j == TJ and not CFG['TEARLY']:
            tail_loads()
        if j == 3 and CFG['TEARLY'] and gate:
            gate_job(p, GX, GW, store=False)
    stamp(p, 2)
    if CFG['K2PF']:
        p('s_cmp_eq_u32 s57, 3')
        p(f's_cbranch_scc0 L_nok2pf_{tag}')
        p(f'v_mov_b32 v34, v{VL}')
        code_prefetch(p, 'gm_k2_kernel', 'L_k2_end', 12288, 34, 255, 84, 'k2pf' + tag)
        p.label(f'L_nok2pf_{tag}')
    if do_units:
        p('s_waitcnt vmcnt(0) lgkmcnt(0)')
        if always:
            unit_finish()
        else:
            p('s_cmp_eq_u32 s63, 0')
            p(f's_cbranch_scc1 L_nounit_{tag}')
            unit_finish()
            p.label(f'L_nounit_{tag}')
    if gate:
        if CFG['TEARLY']:
            gate_store(p)
        else:
            gate_job(p, GX, GW)
    stamp(p, 3)
    if CFG['PROF']:
        prof_store(p, 4, 'LD' + tag, SRD_WS)
    p('s_endpgm')


def prof_debug(p, n, tag, sbase=90):
    p('s_waitcnt lgkmcnt(0) vmcnt(0)')
    p('s_and_b32 s86, s2, 127')
    p('s_cmp_eq_u32 s86, 0')
    p(f's_cbranch_scc0 L_pd_{tag}')
    p(f's_and_b32 s86, s{S_WAVE}, 3')
    p('s_cmp_eq_u32 s86, 0')
    p(f's_cbranch_scc0 L_pd_{tag}')
    p('s_load_dwordx2 s[76:77], s[0:1], 80')
    p('s_waitcnt lgkmcnt(0)')
    p('s_mov_b32 s78, 256')
    p('s_mov_b32 s79, 0x20000')
    p('s_lshr_b32 s86, s2, 7')
    p('s_lshl_b32 s86, s86, 1')
    p(f's_lshr_b32 s85, s{S_WAVE}, 2')
    p('s_add_u32 s86, s86, s85')
    p('s_lshl_b32 s86, s86, 4')
    p('v_mov_b32 v1, 0')
    for i in range(n):
        p(f's_sub_u32 s85, s{sbase+2*i}, s88')
        p('v_mov_b32 v0, s85')
        p(f'buffer_store_dword v0, v1, s[76:79], s86 offen offset:{4*i}')
    p('s_waitcnt vmcnt(0)')
    p.label(f'L_pd_{tag}')


_pd = [0]


def prof_collect(p, srdws):
    p('s_waitcnt lgkmcnt(0) vmcnt(0)')
    p(f's_or_b32 s86, s2, s{S_WAVE}')
    p('s_cmp_eq_u32 s86, 0')
    p('s_cbranch_scc0 L_pc5')
    p('s_load_dwordx2 s[76:77], s[0:1], 80')
    p(f's_mov_b32 s{srdws+2}, 0x10000000')
    p('v_mbcnt_lo_u32_b32 v0, -1, 0')
    p('v_mbcnt_hi_u32_b32 v0, -1, v0')
    p('v_lshrrev_b32 v1, 2, v0')
    p('v_and_b32 v2, 3, v0')
    p('v_lshlrev_b32 v2, 2, v2')
    p('v_cmp_eq_u32 vcc, 1, v1')
    p('v_mov_b32 v3, 0')
    p('v_mov_b32 v4, 256')
    p('v_cndmask_b32 v3, v3, v4, vcc')
    p('v_cmp_eq_u32 vcc, 2, v1')
    p(f'v_mov_b32 v4, {128*8*64}')
    p('v_cndmask_b32 v3, v3, v4, vcc')
    p('v_add_u32 v3, v3, v2')
    p(f'v_add_u32 v3, {PROF_OFF}, v3')
    p(f'buffer_load_dword v5, v3, s[{srdws}:{srdws+3}], 0 offen')
    p(f'v_mov_b32 v6, {PROF_OFF + 60}')
    p(f'buffer_load_dword v7, v6, s[{srdws}:{srdws+3}], 0 offen')
    p('s_waitcnt vmcnt(0) lgkmcnt(0)')
    p('s_mov_b32 s78, 256')
    p('s_mov_b32 s79, 0x20000')
    p('v_sub_u32 v5, v5, v7')
    for ln, sr_ in ((12, 88), (13, 90), (14, 94), (15, 96)):
        p(f'v_mov_b32 v8, s{sr_}')
        p('v_sub_u32 v8, v8, v7')
        p(f'v_cmp_eq_u32 vcc, {ln}, v0')
        p('v_cndmask_b32 v5, v5, v8, vcc')
    p('v_lshlrev_b32 v0, 2, v0')
    p('v_cmp_gt_u32 vcc, 64, v0')
    p('s_and_saveexec_b64 s[84:85], vcc')
    p('buffer_store_dword v5, v0, s[76:79], 0 offen')
    p('s_waitcnt vmcnt(0)')
    p.label('L_pc5')


def prof_store(p, n, tag, srdws, sbase=90):
    if CFG['PROF'] == 5 and tag.startswith('K2'):
        return prof_collect(p, srdws)
    if CFG['PROF'] == 4:
        _pd[0] += 1
        return prof_debug(p, n, tag + str(_pd[0]), sbase)
    return prof_store_ws(p, n, tag, srdws, sbase)


def prof_store_ws(p, n, tag, srdws, sbase=90):
    p('s_memtime s[80:81]')
    p('s_memrealtime s[78:79]')
    p('s_waitcnt lgkmcnt(0) vmcnt(0)')
    p('s_sub_u32 s80, s80, s82')
    p('s_sub_u32 s78, s78, s88')
    p(f's_mov_b32 s{srdws+2}, 0x10000000')
    p(f's_lshl_b32 s86, s2, 3')
    p(f's_add_u32 s86, s86, s{S_WAVE}')
    p(f's_lshl_b32 s86, s86, 6')
    p(f's_add_u32 s86, s86, {PROF_OFF + (0 if not tag.startswith("K2") else (1 << 20))}')
    if CFG['PROF'] == 3:
        p(f's_lshl_b32 s85, s2, 3')
        p(f's_add_u32 s85, s85, s{S_WAVE}')
        p(f's_lshl_b32 s85, s85, 8')
        p(f's_add_u32 s85, s85, {PROF_OFF + (2 << 20)}')
        p('v_mbcnt_lo_u32_b32 v0, -1, 0')
        p('v_mbcnt_hi_u32_b32 v0, -1, v0')
        p('v_lshlrev_b32 v0, 2, v0')
        if not tag.startswith('K2'):
            p(f'buffer_store_dword v254, v0, s[{srdws}:{srdws+3}], s85 offen')
    p('v_mov_b32 v1, 0')
    p('v_mov_b32 v0, s88')
    p(f'buffer_store_dword v0, v1, s[{srdws}:{srdws+3}], s86 offen offset:60')
    p('v_mov_b32 v0, s80')
    p(f'buffer_store_dword v0, v1, s[{srdws}:{srdws+3}], s86 offen offset:56')
    p('v_mov_b32 v0, s78')
    p(f'buffer_store_dword v0, v1, s[{srdws}:{srdws+3}], s86 offen offset:52')
    for i in range(n):
        p(f'v_mov_b32 v0, s{sbase+2*i}')
        p(f'buffer_store_dword v0, v1, s[{srdws}:{srdws+3}], s86 offen offset:{4*i}')
    if CFG['PROF'] == 6 and tag == 'CA':
        for i, r in enumerate((72, 74, 76)):
            p(f'v_mov_b32 v0, s{r}')
            p(f'buffer_store_dword v0, v1, s[{srdws}:{srdws+3}], s86 offen offset:{16+4*i}')
    p('s_waitcnt vmcnt(0)')


def gate_store(p):
    p(f'buffer_store_dwordx2 v[38:39], v37, s[{SRD_WS}:{SRD_WS+3}], 0 offen {CFG["STF"]}')


def gate_job(p, GX, GW, store=True):
    T = 104
    p('v_mov_b32 v34, 0')
    p('v_mov_b32 v35, 0')
    p('v_mov_b32 v36, 0x3f803f80')
    p('s_mov_b32 s78, 0xffff0000')
    for d in range(20):
        x, w = GX + d, GW + d
        t = T + 6 * (d & 1)
        p(f'v_lshlrev_b32 v{t}, 16, v{x}')
        p(f'v_and_b32 v{t+1}, s78, v{x}')
        p(f'v_lshlrev_b32 v{t+2}, 16, v{w}')
        p(f'v_and_b32 v{t+3}, s78, v{w}')
        p(f'v_pk_mul_f32 v[{t}:{t+1}], v[{t}:{t+1}], v[{t+2}:{t+3}]')
        p(f'v_cvt_pk_bf16_f32 v{t+4}, v{t}, v{t+1}')
        acc = 34 + (d & 1)
        p(f'v_dot2_f32_bf16 v{acc}, v{t+4}, v36, v{acc}')
    p('v_add_f32 v34, v34, v35')
    for sh in (8, 4, 2, 1):
        p(f'v_add_f32_dpp v34, v34, v34 row_ror:{sh} row_mask:0xf bank_mask:0xf')
    p('v_cvt_pk_bf16_f32 v35, v34, v34')
    p('v_lshlrev_b32 v35, 16, v35')
    p(f'v_mul_f32 v35, {hexf(-math.log2(math.e))}, v35')
    p('v_exp_f32 v35, v35')
    p('v_add_f32 v35, 1.0, v35')
    p('v_rcp_f32 v35, v35')
    p('v_cvt_pk_bf16_f32 v35, v35, v35')
    p('v_lshlrev_b32 v38, 16, v35')
    p('v_sub_f32 v39, 1.0, v38')
    p('v_cvt_pk_bf16_f32 v39, v39, v39')
    p('v_lshlrev_b32 v39, 16, v39')
    p('v_lshlrev_b32 v37, 3, v31')
    p(f'v_add_u32 v37, {G_OFF}, v37')
    if store:
        gate_store(p)


A_QM = lambda h, t: 0 + (h * 4 + t) * 4
A_KM = lambda h, kt: 32 + (h * 5 + kt) * 4
A_QKT = lambda kt: 72 + 4 * kt
A_VM = lambda h, kt: 92 + (h * 5 + kt) * 4
A_VT = lambda kt: 132 + 4 * kt
WF = lambda f: 152 + 4 * f
XF = lambda b, t: 184 + 20 * b + 4 * t
V_X0, V_X1, V_W, V_WA, V_WB = 224, 225, 226, 227, 228
V_BPREV, V_BCUR, V_BFIRST, V_SEL = 232, 236, 240, 244
F_ACC = lambda f, t: (f * 4 + t) * 4


class LgkmTracker:
    def __init__(self, p):
        self.p = p
        self.q = []

    def issue(self, tag):
        self.q.append(tag)

    def need(self, tags):
        idx = -1
        for i, t in enumerate(self.q):
            if t in tags:
                idx = i
        if idx < 0:
            return
        n = len(self.q) - 1 - idx
        self.p(f's_waitcnt lgkmcnt({min(n, 15)})')
        keep = min(n, 15)
        self.q = self.q[len(self.q) - keep:] if keep else []

    def drain(self):
        self.p('s_waitcnt lgkmcnt(0)')
        self.q = []


def consumer_loop(p, attn, th=None):
    tag = ('A' if attn else 'F') + ('' if th is None else str(th))
    NT = 5 if attn else 4
    xoff = lambda t: 2048 * t
    if attn:
        kk = range(5) if th in (None, 0) else range(1, 5)
        vk = range(5) if th in (None, 1) else range(1, 5)
        if th == 1:
            xoff = lambda t: 0 if t == 0 else 8192 + 2048 * t
        tiles = []
        for h in range(2):
            tiles.append([(A_QM(h, t), t + 1, 'F') for t in range(4)])
        for h in range(2):
            tiles.append([(A_KM(h, k), k, 'F') for k in kk])
        tiles.append([(A_QKT(k), k, 'F') for k in kk])
        for h in range(2):
            tiles.append([(A_VM(h, k), k, 'T') for k in vk])
        tiles.append([(A_VT(k), k, 'T') for k in vk])
        waddr = [(V_W, 0), (V_W, 40), (V_W, 160), (V_W, 200), (V_WA, 0), (V_W, 320), (V_W, 360), (V_WB, 0)]
    else:
        tiles = [[(F_ACC(f, t), t, 'F') for t in range(4)] for f in range(7)]
        waddr = [(V_W, 32 * f) for f in range(6)] + [(V_WA, 0)]
    NF = len(tiles)

    lg = LgkmTracker(p)

    def rd_w(f, s):
        if CFG['NODS']:
            return
        a, off = waddr[f]
        off += s * 32 * WROW
        p(f'ds_read_b64_tr_b16 v[{WF(f)}:{WF(f)+1}], v{a} offset:{off}')
        lg.issue(('w', f))
        p(f'ds_read_b64_tr_b16 v[{WF(f)+2}:{WF(f)+3}], v{a} offset:{off + 8*WROW}')
        lg.issue(('w', f))

    def rd_x(t, s):
        if CFG['NODS']:
            return
        p(f'ds_read_b128 v[{XF(s,t)}:{XF(s,t)+3}], v{V_X1 if s else V_X0} offset:{2048*t}')
        lg.issue(('x', s, t))

    LAST = NF - 1

    def wreads(f, s):
        a, off = waddr[f]
        off += s * 32 * WROW
        return [(f'ds_read_b64_tr_b16 v[{WF(f)}:{WF(f)+1}], v{a} offset:{off}', ('w', f)),
                (f'ds_read_b64_tr_b16 v[{WF(f)+2}:{WF(f)+3}], v{a} offset:{off + 8*WROW}', ('w', f))]

    def xread(t, s):
        return (f'ds_read_b128 v[{XF(s,t)}:{XF(s,t)+3}], v{V_X1 if s else V_X0} offset:{xoff(t)}', ('x', s, t))

    def emit(item):
        if CFG['NODS']:
            return
        p(item[0])
        lg.issue(item[1])

    order_log = []

    def packing():
        cv = lambda d, a: f'v_cvt_pk_bf16_f32 v{d}, v{a}, v{a+1}'
        out = []
        for h in range(2):
            for t in range(4):
                b = A_QM(h, t)
                out += [(h, cv(b, b)), (h, cv(b + 1, b + 2))]
        for h in range(2):
            for kt in kk:
                b = A_KM(h, kt)
                out += [(2 + h, cv(b, b)), (2 + h, cv(b + 1, b + 2))]
        for kt in kk:
            t = A_QKT(kt)
            out += [(4, cv(t, t)), (4, cv(t + 1, t + 2))]
        for kt in kk:
            t, k0 = A_QKT(kt), A_KM(0, kt)
            out += [(4, f'v_mov_b32 v{k0+2}, v{t}'), (4, f'v_mov_b32 v{k0+3}, v{t+1}')]
        return out

    def step(s, dry=False, last=False):
        nxt = 1 - s
        q = wreads(LAST, s)
        xq = [xread(t, nxt) for t in range(NT)]
        held = []
        upd = [V_W, V_X0, V_X1, V_WA] + ([V_WB] if attn else [])
        pk = []
        if last:
            xq, upd = [], []
            pk = packing() if attn else []
        for f in range(NF):
            if not dry:
                lg.need({('w', f)} | ({('x', s, t) for t in range(NT)} if f == 0 else set()))
            for n, (acc, t, o) in enumerate(tiles[f]):
                w, x = f'v[{WF(f)}:{WF(f)+3}]', f'v[{XF(s,t)}:{XF(s,t)+3}]'
                a, b = (w, x) if o == 'F' else (x, w)
                if not CFG['NOMFMA'] and not dry:
                    p(f'v_mfma_f32_16x16x32_bf16 v[{acc}:{acc+3}], {a}, {b}, v[{acc}:{acc+3}]')
                item = None
                if q:
                    item = q.pop(0)
                elif xq and (s == 0 or f >= 2):
                    item = xq.pop(0)
                if item is not None:
                    if dry:
                        order_log.append(item)
                    else:
                        emit(item)
                if not dry and s == 0 and f == LAST and n == 1:
                    p(f's_add_u32 s53, s53, {SLOT}')
                    p(f's_cmp_eq_u32 s53, {3*SLOT}')
                if not dry and s == 0 and f == LAST and n == 2:
                    p(f's_cselect_b32 s54, s51, {SLOT}')
                    p('s_cselect_b32 s53, 0, s53')
                if not dry and s == 1 and item is None and upd and (f, n) >= (0, 2):
                    p(f'v_add_u32 v{upd[0]}, s54, v{upd[0]}')
                    upd.pop(0)
                for _ in range(2):
                    if pk and pk[0][0] + 2 <= f:
                        p(pk.pop(0)[1])
            if f < LAST and not last:
                rs = wreads(f, nxt)
                if s == 1 and f < 1:
                    held += rs
                elif s == 1 and f == 1:
                    assert not q
                    if not dry:
                        assert not upd
                        if CFG['PROF'] == 3:
                            p('s_memtime s[70:71]')
                        lg.drain()
                        if CFG['PROF'] == 3:
                            p('s_lshl_b32 m0, s52, 1')
                            p('s_nop 3')
                            p('v_writelane_b32 v254, s70, m0')
                            p('s_add_u32 s74, m0, 63')
                            p('s_and_b32 m0, s74, 63')
                            p('s_nop 3')
                            p('v_writelane_b32 v254, s72, m0')
                        if CFG['PEEL']:
                            p('s_barrier')
                        else:
                            p('s_cmp_eq_u32 s52, 9')
                            p(f's_cbranch_scc1 L_nobar_{tag}')
                            p('s_barrier')
                            p.label(f'L_nobar_{tag}')
                        if CFG['PROF'] == 3:
                            p('s_memtime s[72:73]')
                    q += held + rs
                    held = []
                else:
                    q += rs
        assert not q and not xq, (q, xq)
        for _, ins in pk:
            p(ins)

    step(1, dry=True)
    for item in order_log[2:]:
        emit(item)
    p('s_mov_b32 s52, 0')
    p('s_mov_b32 s53, 0')
    p(f's_mov_b32 s51, {(-2*SLOT) & 0xffffffff}')
    if CFG['ALIGN']:
        p(f'.p2align {CFG["ALIGN"]}')
    p.label(f'L_loop_{tag}')
    q_head = list(lg.q)
    step(0)
    step(1)
    q_end = list(lg.q)
    assert q_end == q_head, (q_end, q_head)
    p('s_add_u32 s52, s52, 1')
    p(f's_cmp_lt_u32 s52, {9 if CFG["PEEL"] else 10}')
    p(f's_cbranch_scc1 L_loop_{tag}')
    if CFG['PEEL']:
        step(0)
        step(1, last=True)
    lg.drain()


def check_loop_waits():
    pass


def tlb_touch(p, tag):
    if not CFG['TT']:
        return
    p(f's_cmp_eq_u32 s{S_WAVE}, 1')
    p(f's_cbranch_scc0 L_tt1{tag}')
    for i in range(7):
        p(f's_mov_b32 s70, {i << 21}')
        p(f's_load_dword s{71+i}, s[{S_WS}:{S_WS+1}], s70')
    p.label(f'L_tt1{tag}')
    p(f's_cmp_eq_u32 s{S_WAVE}, 2')
    p(f's_cbranch_scc0 L_tt2{tag}')
    p(f's_load_dword s71, s[{S_WO}:{S_WO+1}], 0')
    p(f's_load_dword s72, s[{S_W2}:{S_W2+1}], 0')
    p(f's_mov_b32 s70, {(1 << 21) + 4096}')
    p(f's_load_dword s73, s[{S_W2}:{S_W2+1}], s70')
    p(f's_load_dword s74, s[{S_GW}:{S_GW+1}], 0')
    p(f's_load_dword s75, s[{S_B2}:{S_B2+1}], 0')
    p('s_load_dword s76, s[100:101], 0')
    p('s_load_dword s77, s[100:101], s70')
    p.label(f'L_tt2{tag}')
    if CFG['TL']:
        p(f's_cmp_eq_u32 s{S_WAVE}, 3')
        p(f's_cbranch_scc0 L_tt3{tag}')
        for i in range(1, 10):
            p(f's_load_dword s{70+(i%8)}, s[{S_B2}:{S_B2+1}], {128*i}')
        for i in range(1, 10):
            p(f's_load_dword s{70+(i%8)}, s[{S_GW}:{S_GW+1}], {128*i}')
        p.label(f'L_tt3{tag}')


def prefetch_setup(p, attn):
    rowstride = 3840 if attn else 3456
    p(f's_lshl_b32 s57, s{S_WAVE}, 6')
    p('v_add_u32 v9, s57, v2')
    p(f's_and_b32 s57, s{S_RB}, 7')
    p('s_lshl_b32 s57, s57, 3')
    p('s_add_u32 s57, s57, 128')
    p(f's_mov_b32 s58, {rowstride}')
    if attn:
        p(f's_mul_i32 s59, s{S_CG}, 160')
        p('s_andn2_b32 s59, s59, 127')
        for rnd in range(2):
            p(f'v_add_u32 v3, {256*rnd}, v9')
            p('v_min_u32 v3, 383, v3')
            p('v_mul_u32_u24 v4, 1366, v3')
            p('v_lshrrev_b32 v4, 16, v4')
            p('v_mul_u32_u24 v5, 48, v4')
            p('v_sub_u32 v5, v3, v5')
            p('v_mul_u32_u24 v6, 43, v5')
            p('v_lshrrev_b32 v6, 8, v6')
            p('v_mul_u32_u24 v7, 6, v6')
            p('v_sub_u32 v7, v5, v7')
            p('v_lshl_add_u32 v4, v4, 6, v6')
            p('v_add_u32 v4, s57, v4')
            p('v_mul_u32_u24 v4, s58, v4')
            p('v_lshrrev_b32 v5, 1, v7')
            p('v_mul_u32_u24 v5, 1280, v5')
            p('v_and_b32 v7, 1, v7')
            p('v_lshl_add_u32 v5, v7, 7, v5')
            p(f'v_add3_u32 v{249+rnd}, v4, v5, s59')
    else:
        p(f's_mul_i32 s59, s{S_CG}, 448')
        p('s_andn2_b32 s59, s59, 127')
        p('v_lshrrev_b32 v4, 5, v9')
        p('v_bfe_u32 v6, v9, 2, 3')
        p('v_lshl_add_u32 v4, v4, 6, v6')
        p('v_add_u32 v4, s57, v4')
        p('v_mul_u32_u24 v4, s58, v4')
        p('v_and_b32 v7, 3, v9')
        p('v_lshlrev_b32 v7, 7, v7')
        p('v_add3_u32 v249, v4, v7, s59')
    p(f's_and_b32 s57, s{S_CG}, 1')
    p(f's_lshl_b32 s58, s{S_TYPE}, 1')
    p('s_add_u32 s57, s57, s58')
    p('s_lshl_b32 s57, s57, 5')
    p(f's_lshl_b32 s58, s{S_RB}, 7')
    p('s_add_u32 s57, s57, s58')
    p('v_and_b32 v4, 31, v9')
    p('v_add_u32 v4, s57, v4')
    p('v_mul_u32_u24 v4, 1280, v4')
    p('v_lshrrev_b32 v5, 5, v9')
    p('v_lshlrev_b32 v5, 7, v5')
    p('v_add3_u32 v251, v4, v5, 256' .replace(', 256', ', s99'))


def prefetch_issue(p, attn):
    if not CFG['PF']:
        return
    p(f'buffer_load_dword v255, v251, s[{SRD_X}:{SRD_X+3}], 0 offen {CFG["PFF"]}')
    p(f'buffer_load_dword v255, v249, s[{SRD_W}:{SRD_W+3}], 0 offen {CFG["PFF"]}')
    if attn:
        p(f'buffer_load_dword v255, v250, s[{SRD_W}:{SRD_W+3}], 0 offen {CFG["PFF"]}')


def attn_prologue(p):
    p(f's_and_b32 s55, s{S_WAVE}, 1')
    p(f's_lshr_b32 s56, s{S_WAVE}, 1')
    p('v_and_b32 v3, 15, v2')
    p('v_lshrrev_b32 v4, 4, v2')
    p('v_lshrrev_b32 v5, 1, v3')
    p('v_xor_b32 v5, v5, v4')
    p('v_lshlrev_b32 v5, 4, v5')
    p('v_lshl_add_u32 v5, v3, 7, v5')
    if CFG['M35']:
        p(f'v_mov_b32 v{V_X0}, v5')
    else:
        p('s_lshl_b32 s57, s56, 13')
        p(f'v_add_u32 v{V_X0}, s57, v5')
    p(f'v_xor_b32 v{V_X1}, 64, v{V_X0}')
    p('v_lshrrev_b32 v5, 5, v2')
    p('v_lshlrev_b32 v5, 4, v5')
    p('v_bfe_u32 v6, v2, 4, 1')
    p('v_lshl_add_u32 v5, v6, 2, v5')
    p('v_bfe_u32 v6, v2, 2, 2')
    p('v_add_u32 v5, v5, v6')
    p(f'v_mul_u32_u24 v5, {WROW}, v5')
    p('s_mul_i32 s57, s55, 80')
    p(f's_add_u32 s57, s57, {XREG}')
    p('v_add_u32 v5, s57, v5')
    p('v_and_b32 v6, 3, v2')
    p(f'v_lshl_add_u32 v{V_W}, v6, 3, v5')
    p('v_and_b32 v7, 1, v6')
    p('v_mul_u32_u24 v7, 40, v7')
    p('v_add_u32 v7, v7, v5')
    p('v_lshrrev_b32 v6, 1, v6')
    p('v_mul_u32_u24 v6, 160, v6')
    p(f'v_add3_u32 v{V_WA}, v7, v6, 32')
    p(f'v_add_u32 v{V_WB}, 352, v7')
    p('v_lshlrev_b32 v5, 2, v4')
    p('v_sub_u32 v5, v3, v5')
    p(f's_mov_b32 s58, {hexf(-1e30)}')
    p('v_mov_b32 v8, s58')
    p(f's_or_b32 s59, s{S_RB}, s56')
    p('s_cmp_eq_u32 s59, 0')
    p('s_cselect_b64 s[60:61], -1, 0')
    for r in range(4):
        p(f'v_subrev_u32 v6, {r}, v5')
        p('v_and_b32 v7, 1, v6')
        p('v_cmp_eq_u32 s[62:63], 0, v7')
        p('v_cmp_ge_i32 s[64:65], v6, 0')
        p('s_and_b64 s[66:67], s[62:63], s[64:65]')
        p('s_andn2_b64 s[68:69], s[62:63], s[64:65]')
        p(f'v_cndmask_b32 v{V_BCUR+r}, v8, 0, s[66:67]')
        p(f'v_cndmask_b32 v{V_BPREV+r}, v8, 0, s[68:69]')
        p(f'v_cndmask_b32 v{V_BFIRST+r}, v{V_BPREV+r}, v8, s[60:61]')
    p('v_and_b32 v7, 1, v3')
    p('v_cmp_eq_u32 s[62:63], 0, v7')
    for k, (lo, hi) in enumerate([(0x0c0c0100, 0x01000c0c), (0x0c0c0302, 0x03020c0c)]):
        p(f'v_mov_b32 v6, {hex(hi)}')
        p(f'v_mov_b32 v9, {hex(lo)}')
        p('v_cndmask_b32 v9, v6, v9, s[62:63]')
        p('v_sub_u32 v6, v5, v7')
        if k:
            p('v_subrev_u32 v6, 2, v6')
        p('v_cmp_ge_i32 s[64:65], v6, 0')
        p('v_mov_b32 v6, 0x0c0c0c0c')
        p(f'v_cndmask_b32 v{V_SEL+k}, v9, v6, s[64:65]')
        p(f'v_cndmask_b32 v{V_SEL+2+k}, v6, v9, s[64:65]')
    p('v_lshlrev_b32 v248, 4, v2')
    if CFG['M35']:
        p('s_lshl_b32 s57, s55, 13')
        p(f's_add_u32 s57, s57, {2*SLOT}')
        p('v_add_u32 v249, s57, v248')
        p('v_lshrrev_b32 v250, 1, v248')
        p('v_add_u32 v250, s57, v250')
        p('s_lshl_b32 s57, s55, 3')
        p(f's_add_u32 s57, s57, {XFLAG}')
        p('v_mov_b32 v251, s57')
        p('v_mov_b32 v252, 0')
        p('v_mov_b32 v253, 0')
        p('ds_write_b64 v251, v[252:253]')
    for r in range(152):
        p(f'v_mov_b32 v{r}, 0')


def attn_epilogue(p, th=None):
    cvt = lambda d, a: p(f'v_cvt_pk_bf16_f32 v{d}, v{a}, v{a+1}')
    tg = '' if th is None else str(th)
    kk = list(range(5)) if th in (None, 0) else [1, 2, 3, 4]
    vk = list(range(5)) if th in (None, 1) else [1, 2, 3, 4]
    p('s_nop 7')

    def pack_k(kts):
        if CFG['PEEL']:
            return
        for kt in kts:
            for h in range(2):
                b = A_KM(h, kt)
                cvt(b, b)
                cvt(b + 1, b + 2)
            t = A_QKT(kt)
            cvt(t, t)
            cvt(t + 1, t + 2)
        for kt in kts:
            t, k0 = A_QKT(kt), A_KM(0, kt)
            p(f'v_mov_b32 v{k0+2}, v{t}')
            p(f'v_mov_b32 v{k0+3}, v{t+1}')

    def tails_k(kts):
        for kt in kts:
            t, k0 = A_QKT(kt), A_KM(0, kt)
            p(f'v_permlane32_swap_b32 v{t}, v{k0+2}')
            p(f'v_permlane32_swap_b32 v{t+1}, v{k0+3}')

    def copy_k(kts):
        for kt in kts:
            k0, k1 = A_KM(0, kt), A_KM(1, kt)
            p(f'v_mov_b32 v{k1+2}, v{k0+2}')
            p(f'v_mov_b32 v{k1+3}, v{k0+3}')

    def pack_v():
        for kt in vk:
            for base, b in ((A_VM(0, 0), A_VM(0, kt)), (A_VM(1, 0), A_VM(1, kt)), (A_VT(0), A_VT(kt))):
                cvt(base + 2 * kt, b)
                cvt(base + 2 * kt + 1, b + 2)

    vbases = (A_VM(0, 0), A_VM(1, 0), A_VT(0))
    if th == 0:
        pack_k([4])
        pack_v()
        tails_k([4])
        rest = [0, 1, 2, 3]
        pack_k(rest[:1])
        copy_k([4])
        p(f'ds_write_b128 v249, v[{A_KM(0,4)}:{A_KM(0,4)+3}]')
        p(f'ds_write_b128 v249, v[{A_KM(1,4)}:{A_KM(1,4)+3}] offset:1024')
        for i, vb in enumerate(vbases):
            p(f'ds_write_b64 v250, v[{vb+8}:{vb+9}] offset:{2048 + 512*i}')
        pack_k(rest[1:])
        p('s_waitcnt lgkmcnt(0)')
        p('v_mov_b32 v252, 1')
        p('ds_write_b32 v251, v252')
        tails_k(rest)
    elif th == 1:
        pack_v()
        for i, vb in enumerate(vbases):
            p(f'ds_write_b64 v250, v[{vb}:{vb+1}] offset:{4096 + 512*i}')
        rest = [1, 2, 3, 4]
        pack_k(rest)
        p('s_waitcnt lgkmcnt(0)')
        p('v_mov_b32 v252, 1')
        p('ds_write_b32 v251, v252 offset:4')
        tails_k(rest)
    else:
        rest = [0, 1, 2, 3, 4]
        pack_k(rest)
        pack_v()
        tails_k(rest)
    for h in range(2):
        for t in range(4):
            b = A_QM(h, t)
            if not CFG['PEEL']:
                cvt(b, b)
                cvt(b + 1, b + 2)
    copy_k(rest)
    p('s_mov_b32 s60, 0x0000ffff')
    p('s_mov_b32 s61, 0')
    p('s_mov_b32 s62, 0xffff0000')
    p('s_mov_b32 s63, 0')
    for t in range(4):
        for h in range(2):
            q, x = A_QM(h, t), A_QKT(t + 1)
            p(f'v_cndmask_b32 v{q+2}, 0, v{x}, s[{60+2*h}:{61+2*h}]')
            p(f'v_cndmask_b32 v{q+3}, 0, v{x+1}, s[{60+2*h}:{61+2*h}]')
    S = lambda t, h: 152 + (t * 2 + h) * 8

    def qk(t):
        for h in range(2):
            q = A_QM(h, t)
            bp = V_BFIRST if t == 0 else V_BPREV
            kp, kc = A_KM(h, t), A_KM(h, t + 1)
            p(f'v_mfma_f32_16x16x32_bf16 v[{S(t,h)}:{S(t,h)+3}], v[{kp}:{kp+3}], v[{q}:{q+3}], v[{bp}:{bp+3}]')
            p(f'v_mfma_f32_16x16x32_bf16 v[{S(t,h)+4}:{S(t,h)+7}], v[{kc}:{kc+3}], v[{q}:{q+3}], v[{V_BCUR}:{V_BCUR+3}]')

    for t in (3, 2, 1):
        qk(t)
    if CFG['PROF'] == 6:
        p('s_memtime s[72:73]')
    if th is not None:
        p.label(f'L_xspin{th}')
        p(f'ds_read_b32 v252, v251 offset:{4 if th == 0 else 0}')
        p('s_waitcnt lgkmcnt(0)')
        p('v_readfirstlane_b32 s70, v252')
        p('s_cmp_eq_u32 s70, 0')
        p(f's_cbranch_scc1 L_xspin{th}')
        if th == 1:
            p(f'ds_read_b128 v[{A_KM(0,0)}:{A_KM(0,0)+3}], v249')
            p(f'ds_read_b128 v[{A_KM(1,0)}:{A_KM(1,0)+3}], v249 offset:1024')
        for i, vb in enumerate(vbases):
            p(f'ds_read_b64 v[{vb}:{vb+1}], v250 offset:{(2048 if th == 1 else 4096) + 512*i}')
        p('s_waitcnt lgkmcnt(0)')
    qk(0)
    if CFG['PROF'] == 6:
        p('s_memtime s[74:75]')
    cs = (20 ** -0.5) * math.log2(math.e)
    p(f's_mov_b32 s64, {hexf(cs)}')
    p(f's_mov_b32 s65, {hexf(cs)}')
    inst = [(t, h) for t in (3, 2, 1, 0) for h in range(2)]
    for (t, h) in inst:
        s = S(t, h)
        p(f'v_max3_f32 v{s}, v{s}, v{s+1}, v{s+4}')
        p(f'v_max3_f32 v{s+2}, v{s+2}, v{s+3}, v{s+6}')
    for (t, h) in inst:
        s = S(t, h)
        p(f'v_max_f32 v{s}, v{s}, v{s+5}')
        p(f'v_max_f32 v{s+1}, v{s+2}, v{s+7}')
    for (t, h) in inst:
        s = S(t, h)
        p(f'v_max_f32 v{s+2}, v{s}, v{s+1}')

    def cross(groups, op, mid):
        for (A, B, C, D) in groups:
            p(f'v_permlane32_swap_b32 v{A}, v{B}')
            p(f'v_permlane32_swap_b32 v{C}, v{D}')
        for (A, B, C, D) in groups:
            p(f'{op} v{A}, v{A}, v{B}')
            p(f'{op} v{C}, v{C}, v{D}')
        for (A, B, C, D) in groups:
            p(f'v_permlane16_swap_b32 v{A}, v{C}')
        for (A, B, C, D) in groups:
            p(f'{op} v{A}, v{A}, v{C}')
        for (A, B, C, D) in groups:
            mid(A)
        for (A, B, C, D) in groups:
            p(f'v_mov_b32 v{C}, v{A}')
        for (A, B, C, D) in groups:
            p(f'v_permlane16_swap_b32 v{A}, v{C}')
        for (A, B, C, D) in groups:
            p(f'v_mov_b32 v{B}, v{A}')
            p(f'v_mov_b32 v{D}, v{C}')
        for (A, B, C, D) in groups:
            p(f'v_permlane32_swap_b32 v{A}, v{B}')
            p(f'v_permlane32_swap_b32 v{C}, v{D}')

    grp = lambda o: [tuple(S(t, h) + o for (t, h) in inst[0:4]), tuple(S(t, h) + o for (t, h) in inst[4:8])]
    cross(grp(2), 'v_max_f32', lambda A: p(f'v_mul_f32 v{A}, s64, v{A}'))
    for (t, h) in inst:
        s = S(t, h)
        p(f'v_pk_fma_f32 v[{s}:{s+1}], v[{s}:{s+1}], s[64:65], v[{s+2}:{s+3}] op_sel_hi:[1,1,0] neg_lo:[0,0,1] neg_hi:[0,0,1]')
    for (t, h) in inst:
        s = S(t, h)
        p(f'v_exp_f32 v{s}, v{s}')
        p(f'v_exp_f32 v{s+1}, v{s+1}')
    for (t, h) in inst:
        s = S(t, h)
        p(f'v_add_f32 v{s+2}, v{s}, v{s+1}')
    cross(grp(2), 'v_add_f32', lambda A: p(f'v_rcp_f32 v{A}, v{A}'))
    for (t, h) in inst:
        s = S(t, h)
        p(f'v_pk_mul_f32 v[{s}:{s+1}], v[{s}:{s+1}], v[{s+2}:{s+3}] op_sel_hi:[1,0]')
    for (t, h) in inst:
        s = S(t, h)
        p(f'v_cvt_pk_bf16_f32 v{s+2}, v{s}, v{s+1}')
    if CFG['PROF'] == 6:
        p('s_memtime s[76:77]')

    def perm(i):
        s = S(*inst[i])
        for k in range(4):
            p(f'v_perm_b32 v{s+4+k}, v{s+2}, v{s+2}, v{V_SEL+k}')

    def pv(i):
        t, h = inst[i]
        s = S(t, h)
        va, vt = A_VM(h, 0) + 2 * t, A_VT(0) + 2 * t
        om, ot = A_QM(h, t), A_KM(h, t)
        p(f'v_mfma_f32_16x16x32_bf16 v[{om}:{om+3}], v[{va}:{va+3}], v[{s+4}:{s+7}], 0')
        p(f'v_mfma_f32_16x16x32_bf16 v[{ot}:{ot+3}], v[{vt}:{vt+3}], v[{s+4}:{s+7}], 0')

    def pack_main(t):
        for h in range(2):
            o = A_QM(h, t)
            d = S(t, 0) + 2 * h
            p(f'v_cvt_pk_bf16_f32 v{d}, v{o}, v{o+1}')
            p(f'v_cvt_pk_bf16_f32 v{d+1}, v{o+2}, v{o+3}')
        d = S(t, 0)
        p(f's_add_u32 s68, s66, {t*20480}')
        p(f'buffer_store_dwordx4 v[{d}:{d+3}], v248, s[{SRD_WS}:{SRD_WS+3}], s68 offen {CFG["STFO"]}')

    def pack_tail(t):
        d = S(t & 2, 1) + 2 * (t & 1)
        o0, o1 = A_KM(0, t), A_KM(1, t)
        for rr in range(4):
            p(f'v_cndmask_b32 v{o0+rr}, v{o0+rr}, v{o1+rr}, s[62:63]')
        p(f'v_cvt_pk_bf16_f32 v{d}, v{o0}, v{o0+1}')
        p(f'v_cvt_pk_bf16_f32 v{d+1}, v{o0+2}, v{o0+3}')

    perm(0)
    perm(1)
    for i in range(8):
        pv(i)
        if i + 2 < 8:
            perm(i + 2)
        if i in (5, 7):
            pass
    for t in (3, 2):
        pack_main(t)
    for t in (3, 2):
        pack_tail(t)
    pack_main(1)
    pack_tail(1)
    pack_main(0)
    pack_tail(0)
    p('s_mov_b32 exec_hi, 0')
    for pr in range(2):
        d = S(2 * pr, 1)
        p(f's_add_u32 s68, s67, {pr*20480}')
        p(f'buffer_store_dwordx4 v[{d}:{d+3}], v248, s[{SRD_WS}:{SRD_WS+3}], s68 offen {CFG["STFO"]}')
    p('s_mov_b32 exec_hi, -1')


def attn_out_addr(p):
    p(f's_lshl_b32 s65, s{S_RB}, 3')
    p('s_lshl_b32 s66, s56, 2')
    p('s_add_u32 s65, s65, s66')
    p('s_mul_i32 s66, s65, 20')
    p(f's_lshl_b32 s67, s{S_CG}, 1')
    p('s_add_u32 s67, s67, s55')
    p('s_add_u32 s66, s66, s67')
    p('s_lshl_b32 s66, s66, 10')
    p(f's_add_u32 s66, s66, {OA_OFF}')
    p(f's_and_b32 s67, s{S_CG}, 1')
    p('s_lshl_b32 s67, s67, 1')
    p('s_add_u32 s67, s67, s65')
    p('s_mul_i32 s67, s67, 20')
    p(f's_lshr_b32 s68, s{S_CG}, 1')
    p('s_add_u32 s67, s67, s68')
    p('s_add_u32 s67, s67, 16')
    p('s_lshl_b32 s67, s67, 10')
    p('s_lshl_b32 s68, s55, 9')
    p('s_add_u32 s67, s67, s68')
    p(f's_add_u32 s67, s67, {OA_OFF}')


def ffn_prologue(p):
    p(f's_and_b32 s55, s{S_WAVE}, 1')
    p(f's_lshr_b32 s56, s{S_WAVE}, 1')
    p('v_and_b32 v3, 15, v2')
    p('v_lshrrev_b32 v4, 4, v2')
    p('v_lshrrev_b32 v5, 1, v3')
    p('v_xor_b32 v5, v5, v4')
    p('v_lshlrev_b32 v5, 4, v5')
    p('v_lshl_add_u32 v5, v3, 7, v5')
    p('s_lshl_b32 s57, s56, 13')
    p(f'v_add_u32 v{V_X0}, s57, v5')
    p(f'v_xor_b32 v{V_X1}, 64, v{V_X0}')
    p('v_lshrrev_b32 v5, 5, v2')
    p('v_lshlrev_b32 v5, 4, v5')
    p('v_bfe_u32 v6, v2, 4, 1')
    p('v_lshl_add_u32 v5, v6, 2, v5')
    p('v_bfe_u32 v6, v2, 2, 2')
    p('v_add_u32 v5, v5, v6')
    p(f'v_mul_u32_u24 v5, {WROW}, v5')
    p(f'v_add_u32 v5, {XREG}, v5')
    p('v_and_b32 v6, 3, v2')
    p('v_lshl_add_u32 v5, v6, 3, v5')
    p('s_lshl_b32 s57, s55, 8')
    p(f'v_add_u32 v{V_W}, s57, v5')
    p('s_lshl_b32 s57, s55, 5')
    p('s_add_u32 s57, s57, 192')
    p(f'v_add_u32 v{V_WA}, s57, v5')
    p(f's_mul_i32 s57, s{S_CG}, 448')
    p('v_lshlrev_b32 v5, 3, v4')
    p('v_add_u32 v5, s57, v5')
    p('s_lshl_b32 s57, s55, 8')
    p('v_add_u32 v6, s57, v5')
    p('s_lshl_b32 s57, s55, 5')
    p('s_add_u32 s57, s57, 192')
    p('v_add_u32 v7, s57, v5')
    p('v_lshlrev_b32 v248, 4, v2')
    p('s_waitcnt lgkmcnt(0)')
    srd(p, SRD_A, S_B1, 3456)
    for f in range(7):
        if f < 6:
            p(f'buffer_load_dwordx2 v[{200+2*f}:{201+2*f}], v6, s[{SRD_A}:{SRD_A+3}], 0 offen offset:{32*f}')
        else:
            p(f'buffer_load_dwordx2 v[{200+2*f}:{201+2*f}], v7, s[{SRD_A}:{SRD_A+3}], 0 offen')
    tlb_touch(p, 'F')
    p('s_mov_b32 s58, 0xffff0000')
    p('s_waitcnt vmcnt(0)')
    for f in range(7):
        for t in range(4):
            a = F_ACC(f, t)
            p(f'v_lshlrev_b32 v{a}, 16, v{200+2*f}')
            p(f'v_and_b32 v{a+1}, s58, v{200+2*f}')
            p(f'v_lshlrev_b32 v{a+2}, 16, v{201+2*f}')
            p(f'v_and_b32 v{a+3}, s58, v{201+2*f}')


def ffn_epilogue(p):
    k1 = -2.0 * math.sqrt(2.0 / math.pi) * math.log2(math.e)
    k2 = k1 * 0.044715
    C1, C2, ONE = 240, 242, 244
    for r in (0, 1):
        p(f'v_mov_b32 v{C1+r}, {hexf(k1)}')
        p(f'v_mov_b32 v{C2+r}, {hexf(k2)}')
        p(f'v_mov_b32 v{ONE+r}, 1.0')
    p('s_nop 5')
    p(f's_lshl_b32 s65, s{S_RB}, 3')
    p('s_lshl_b32 s66, s56, 2')
    p('s_add_u32 s65, s65, s66')
    p('s_mul_i32 s65, s65, 54')
    p(f's_mul_i32 s66, s{S_CG}, 7')
    p('s_add_u32 s67, s66, 3')
    p('s_lshl_b32 s68, s55, 2')
    p('s_add_u32 s66, s66, s68')
    p('s_add_u32 s69, s65, s67')
    p('s_lshl_b32 s69, s69, 10')
    p('s_lshl_b32 s68, s55, 3')
    p('s_add_u32 s69, s69, s68')
    p('s_add_u32 s68, s65, s66')
    p('s_lshl_b32 s68, s68, 10')

    def gelu(regs, tmp):
        for i, x in enumerate(regs):
            p(f'v_pk_mul_f32 v[{tmp+4*i}:{tmp+4*i+1}], v[{x}:{x+1}], v[{x}:{x+1}]')
        for i, x in enumerate(regs):
            p(f'v_pk_fma_f32 v[{tmp+4*i}:{tmp+4*i+1}], v[{tmp+4*i}:{tmp+4*i+1}], v[{C2}:{C2+1}], v[{C1}:{C1+1}]')
        for i, x in enumerate(regs):
            p(f'v_pk_mul_f32 v[{tmp+4*i}:{tmp+4*i+1}], v[{tmp+4*i}:{tmp+4*i+1}], v[{x}:{x+1}]')
        for i, x in enumerate(regs):
            p(f'v_exp_f32 v{tmp+4*i}, v{tmp+4*i}')
            p(f'v_exp_f32 v{tmp+4*i+1}, v{tmp+4*i+1}')
        for i, x in enumerate(regs):
            p(f'v_pk_add_f32 v[{tmp+4*i}:{tmp+4*i+1}], v[{tmp+4*i}:{tmp+4*i+1}], v[{ONE}:{ONE+1}]')
        for i, x in enumerate(regs):
            p(f'v_rcp_f32 v{tmp+4*i}, v{tmp+4*i}')
            p(f'v_rcp_f32 v{tmp+4*i+1}, v{tmp+4*i+1}')
        for i, x in enumerate(regs):
            p(f'v_pk_mul_f32 v[{x}:{x+1}], v[{tmp+4*i}:{tmp+4*i+1}], v[{x}:{x+1}]')

    OUT = 184
    n = 0
    for pr in range(3):
        p(f's_add_u32 s70, s66, {pr}')
        p('s_cmp_ge_u32 s70, 54')
        p(f's_cbranch_scc1 L_skip_pair{pr}')
        for t in range(4):
            a, b = F_ACC(2 * pr, t), F_ACC(2 * pr + 1, t)
            gelu([a, a + 2, b, b + 2], 152)
            o = OUT + 4 * (n % 4)
            n += 1
            p(f'v_cvt_pk_bf16_f32 v{o}, v{a}, v{a+1}')
            p(f'v_cvt_pk_bf16_f32 v{o+1}, v{a+2}, v{a+3}')
            p(f'v_cvt_pk_bf16_f32 v{o+2}, v{b}, v{b+1}')
            p(f'v_cvt_pk_bf16_f32 v{o+3}, v{b+2}, v{b+3}')
            p(f's_add_u32 s70, s68, {pr*1024 + t*54*1024}')
            p(f'buffer_store_dwordx4 v[{o}:{o+3}], v248, s[{SRD_WS}:{SRD_WS+3}], s70 offen {CFG["STFH"]}')
        p.label(f'L_skip_pair{pr}')
    for t2 in range(2):
        a, b = F_ACC(6, 2 * t2), F_ACC(6, 2 * t2 + 1)
        gelu([a, a + 2, b, b + 2], 152)
        for u, x in enumerate((a, b)):
            o = OUT + 16 + 2 * ((2 * t2 + u) % 2)
            p(f'v_cvt_pk_bf16_f32 v{o}, v{x}, v{x+1}')
            p(f'v_cvt_pk_bf16_f32 v{o+1}, v{x+2}, v{x+3}')
            p(f's_add_u32 s70, s69, {(2*t2+u)*54*1024}')
            p(f'buffer_store_dwordx2 v[{o}:{o+1}], v248, s[{SRD_WS}:{SRD_WS+3}], s70 offen {CFG["STFH"]}')


def gen_k1():
    p = Prog()
    p('s_cmp_ge_u32 s2, 256')
    p('s_cbranch_scc1 L_k1_end')
    p('s_load_dwordx4 s[4:7], s[0:1], 0')
    p('s_load_dwordx4 s[8:11], s[0:1], 16')
    p('s_load_dwordx4 s[12:15], s[0:1], 32')
    p('s_load_dwordx4 s[16:19], s[0:1], 48')
    p('s_load_dwordx2 s[20:21], s[0:1], 64')
    p('s_load_dwordx2 s[22:23], s[0:1], 88')
    p('s_load_dwordx2 s[100:101], s[0:1], 72')
    if CFG['PROF']:
        p('s_memrealtime s[88:89]')
        p('s_memtime s[82:83]')
    p('v_lshrrev_b32 v1, 6, v0')
    p('v_and_b32 v2, 63, v0')
    p(f'v_readfirstlane_b32 s{S_WAVE}, v1')
    if CFG['SWAPW']:
        p(f's_add_u32 s{S_WAVE}, s{S_WAVE}, 4')
        p(f's_and_b32 s{S_WAVE}, s{S_WAVE}, 7')
    k1_decode(p)
    p(f's_cmp_eq_u32 s{S_WAVE}, 0')
    p('s_cbranch_scc0 L_nopf')
    p('v_mov_b32 v10, v2')
    code_prefetch(p, 'L_k1_body', 'L_k1_end', CFG.get('K1_BYTES', 20480), 10, 255, 84, 'k1')
    p.label('L_nopf')
    p.label('L_k1_body')
    p(f's_cmp_ge_u32 s{S_WAVE}, 4')
    p('s_cbranch_scc0 L_consumer')
    if CFG['LDFIRST']:
        p(f's_cmp_eq_u32 s{S_TYPE}, 0')
        p('s_cbranch_scc0 L_loader_F')
        k1_loader(p, True)
        k1_loader(p, False)
    else:
        p(f's_cmp_eq_u32 s{S_TYPE}, 0')
        p('s_cbranch_scc1 L_loader_A')
        p('s_branch L_loader_F')
    p.label('L_consumer')
    if CFG['PRIO']:
        p(f's_setprio {CFG["PRIO"]}')
    p(f's_cmp_eq_u32 s{S_TYPE}, 0')
    p('s_cbranch_scc0 L_cons_F')
    p('s_movk_i32 s99, 256')
    prefetch_setup(p, True)
    p('s_waitcnt lgkmcnt(0)')
    tlb_touch(p, 'A')
    attn_prologue(p)
    attn_out_addr(p)
    srd(p, SRD_WS, S_WS, WS_USED)
    srd(p, SRD_X, S_AX, 2048 * 1280)
    srd(p, SRD_W, S_WQKV, 640 * 3840)
    p('s_waitcnt lgkmcnt(0)')
    stamp(p, 0)
    p('s_barrier')
    stamp(p, 1)
    prefetch_issue(p, True)
    if CFG['M35']:
        p('s_cmp_eq_u32 s56, 0')
        p('s_cbranch_scc0 L_attn_th1')
        for th in (0, 1):
            if th:
                p.label('L_attn_th1')
            consumer_loop(p, True, th)
            stamp(p, 2)
            attn_epilogue(p, th)
            stamp(p, 3)
            if CFG['PROF']:
                prof_store(p, 4, 'CA', SRD_WS)
            p('s_endpgm')
    else:
        consumer_loop(p, True)
        stamp(p, 2)
        attn_epilogue(p)
        stamp(p, 3)
        if CFG['PROF']:
            prof_store(p, 4, 'CA', SRD_WS)
        p('s_endpgm')
    p.label('L_cons_F')
    p('s_movk_i32 s99, 256')
    prefetch_setup(p, False)
    ffn_prologue(p)
    srd(p, SRD_WS, S_WS, WS_USED)
    srd(p, SRD_X, S_AX, 2048 * 1280)
    srd(p, SRD_W, S_W1, 640 * 3456)
    p('s_waitcnt lgkmcnt(0)')
    stamp(p, 0)
    p('s_barrier')
    stamp(p, 1)
    prefetch_issue(p, False)
    consumer_loop(p, False)
    stamp(p, 2)
    ffn_epilogue(p)
    stamp(p, 3)
    if CFG['PROF']:
        prof_store(p, 4, 'CF', SRD_WS)
    p('s_endpgm')
    if not CFG['LDFIRST']:
        k1_loader(p, True)
        k1_loader(p, False)
    p.label('L_k1_end')
    p('s_endpgm')
    return p


K2_LAST = {}


def k2_small_loads(p, vg, vb, vb2):
    p(f'buffer_load_dwordx2 v[{K2_G}:{K2_G+1}], v{vg}, s[12:15], 0 offen')
    p(f'buffer_load_dwordx4 v[{K2_B2}:{K2_B2+3}], v{vb}, s[16:19], 0 offen')
    p(f'buffer_load_dwordx4 v[{K2_B2+4}:{K2_B2+7}], v{vb}, s[16:19], 0 offen offset:64')
    p(f'buffer_load_dwordx2 v[{K2_B2+8}:{K2_B2+9}], v{vb2}, s[16:19], 0 offen offset:128')


def k2_stream(p, wave_a):
    NB = CFG['NBUF']
    tag = 'a' if wave_a else 'b'
    nsteps = 20 if wave_a else 18
    ACC = lambda t, f: K2_ACC + (t * 5 + f) * 4
    BA = lambda b, t: 36 * b + 4 * t
    BW = lambda b, f: 36 * b + 16 + 4 * f

    def ld_w(b, f):
        if f < 4:
            p(f'buffer_load_dwordx4 v[{BW(b,f)}:{BW(b,f)+3}], v{K2_VL}, s[12:15], s21 offen offset:{1024*f} {CFG["K2LDF"]}')
        else:
            p(f'buffer_load_dwordx4 v[{BW(b,f)}:{BW(b,f)+3}], v{K2_VL2}, s[12:15], s21 offen {CFG["K2LDF"]}')

    def ld_a(b, t):
        p(f'buffer_load_dwordx4 v[{BA(b,t)}:{BA(b,t)+3}], v{K2_VA+t}, s[12:15], s20 offen {CFG["K2LDF"]}')

    nrot = 16 if wave_a else 18
    state = {'n': 0}

    def adv():
        state['n'] += 1
        p('s_add_u32 s20, s20, 1024')
        p('s_add_u32 s21, s21, 5120')
        if not CFG['ROT2']:
            return
        if state['n'] < nrot:
            p('s_add_u32 s22, s22, 1')
            p(f's_cmp_eq_u32 s22, {nrot}')
            p(f's_cselect_b32 s23, {nrot*1024}, 0')
            p('s_sub_u32 s20, s20, s23')
            p('s_mul_i32 s23, s23, 5')
            p('s_sub_u32 s21, s21, s23')
        elif state['n'] == nrot and wave_a:
            p('s_mov_b32 s20, s34')
            p('s_mov_b32 s21, s35')

    for s in range(min(NB, nsteps)):
        for f in range(5):
            ld_w(s % NB, f)
        for t in range(4):
            ld_a(s % NB, t)
        adv()
    if CFG['GLATE']:
        k2_small_loads(p, 246, 247, 248)
    for r in range(80):
        p(f'v_mov_b32 v{K2_ACC+r}, 0')
    stamp(p, 1)
    for s in range(nsteps):
        b = s % NB
        issued = min(s + NB, nsteps)
        newer = (issued - s - 1) * 9
        if CFG['GLATE'] and s < NB:
            newer += 4
        p(f's_waitcnt vmcnt({newer})')
        more = s + NB < nsteps
        tail = wave_a and s >= 16
        amap = [0, 1, 2, 3]
        if tail:
            for (x, y) in ((0, 2), (1, 3)):
                p(f'v_swap_b32 v{BA(b,x)+2}, v{BA(b,y)}')
                p(f'v_swap_b32 v{BA(b,x)+3}, v{BA(b,y)+1}')
            amap = [0, 2, 1, 3]
        if CFG['K2RED'] == 2 and s == nsteps - 1:
            def last_step(w, b=b, amap=amap):
                p(f'v_add_u32 v220, {w*5120}, v{K2_VL}')
                p(f'v_add_u32 v221, {w*5120 + 40960}, v{K2_VL}')
                order = [t for t in range(4) if t != w] + [w]
                if w != 0:
                    order = [0] + [t for t in (1, 2, 3) if t != w] + [w]
                pend = []
                for k, t in enumerate(order):
                    for f in range(5):
                        acc = ACC(t, f)
                        p(f'v_mfma_f32_16x16x32_bf16 v[{acc}:{acc+3}], v[{BW(b,f)}:{BW(b,f)+3}], v[{BA(b,amap[t])}:{BA(b,amap[t])+3}], v[{acc}:{acc+3}]')
                        if pend and k >= 2:
                            p(pend.pop(0))
                    if t != w:
                        pend += [f'ds_write_b128 v{220 + (t >> 1)}, v[{ACC(t,f)}:{ACC(t,f)+3}] offset:{(t & 1)*20480 + f*1024}' for f in range(5)]
                for ins in pend:
                    p(ins)
            if wave_a:
                last_step(0)
            else:
                K2_LAST['b'] = last_step
            continue
        for f in range(5):
            for t in range(4):
                acc = ACC(t, f)
                if not CFG['K2NOMFMA']:
                    p(f'v_mfma_f32_16x16x32_bf16 v[{acc}:{acc+3}], v[{BW(b,f)}:{BW(b,f)+3}], v[{BA(b,amap[t])}:{BA(b,amap[t])+3}], v[{acc}:{acc+3}]')
            if more and CFG['K2ORD'] == 0:
                ld_w(b, f)
            if more and CFG['K2ORD'] == 2 and f >= 1:
                ld_w(b, f - 1)
        if more:
            if CFG['K2ORD'] == 1:
                for f in range(5):
                    ld_w(b, f)
            if CFG['K2ORD'] == 2:
                ld_w(b, 4)
            for t in range(4):
                ld_a(b, t)
            adv()
    if CFG['K2RED'] == 2:
        p('s_branch L_k2_red_a' if wave_a else 's_branch L_k2_red_b')
    else:
        p('s_branch L_k2_reduce')


K2_ACC = 144
K2_VL, K2_VL2, K2_VA = 224, 225, 226
K2_G, K2_B2 = 230, 232
K2_LDS = 4 * 4 * 5120 + 64


def k2_reduce2(p):
    assert CFG['NBUF'] == 3
    ACC = lambda t, f: K2_ACC + (t * 5 + f) * 4
    R1 = lambda f: 4 * f
    R2 = lambda f: 20 + 4 * f
    R3 = lambda j: 40 + 4 * j
    R4 = lambda j: 48 + 4 * j
    AR = lambda f: 56 + 4 * f
    B = lambda f: 188 + 4 * f
    GP, OP, O0 = 208, 210, 212
    FL, ONE, FA, WA, WB, RB = 214, 218, 219, 220, 221, 222
    O = 80
    FOFF = 81920

    def common(w):
        stamp(p, 2)
        p(f'v_add_u32 v{WA}, {w*5120}, v{K2_VL}')
        p(f'v_add_u32 v{WB}, {w*5120 + 40960}, v{K2_VL}')
        p(f'v_add_u32 v{RB}, {w*20480}, v{K2_VL}')
        p(f'v_mov_b32 v{FA}, {FOFF}')
        p(f'v_mov_b32 v{ONE}, 1')
        p('s_nop 7')

    def write_tiles(tiles):
        for t in tiles:
            for f in range(5):
                p(f'ds_write_b128 v{WA + (t >> 1)}, v[{ACC(t,f)}:{ACC(t,f)+3}] offset:{(t & 1)*20480 + f*1024}')

    def set_flag(i):
        p('s_waitcnt lgkmcnt(0)')
        p(f'ds_write_b32 v{FA}, v{ONE} offset:{4*i}')

    def spin(base, idxs, lbl):
        p.label(lbl)
        p(f'ds_read_b128 v[{FL}:{FL+3}], v{FA} offset:{base}')
        p('s_waitcnt lgkmcnt(0)')
        r = FL + idxs[0]
        for k in idxs[1:]:
            p(f'v_and_b32 v{FL+idxs[0]}, v{r}, v{FL+k}')
        p(f'v_readfirstlane_b32 s62, v{FL+idxs[0]}')
        p('s_cmp_eq_u32 s62, 0')
        p(f's_cbranch_scc1 {lbl}')

    def unpack():
        p('s_mov_b32 s63, 0xffff0000')
        for pr in range(2):
            for d in range(4):
                src = K2_B2 + 4 * pr + d
                f, r = 2 * pr + (d >> 1), 2 * (d & 1)
                p(f'v_lshlrev_b32 v{B(f)+r}, 16, v{src}')
                p(f'v_and_b32 v{B(f)+r+1}, s63, v{src}')
        for d in range(2):
            src = K2_B2 + 8 + d
            p(f'v_lshlrev_b32 v{B(4)+2*d}, 16, v{src}')
            p(f'v_and_b32 v{B(4)+2*d+1}, s63, v{src}')

    def pairs(lo_hi):
        for dst, src in lo_hi:
            p(f'v_mov_b32 v{dst}, v{src}')
            p(f'v_mov_b32 v{dst+1}, v{src}')

    def store(res):
        for pr in range(2):
            for u in range(2):
                a = res(2 * pr + u)
                p(f'v_cvt_pk_bf16_f32 v{O+4*pr+2*u}, v{a}, v{a+1}')
                p(f'v_cvt_pk_bf16_f32 v{O+4*pr+2*u+1}, v{a+2}, v{a+3}')
            p(f'buffer_store_dwordx4 v[{O+4*pr}:{O+4*pr+3}], v242, s[28:31], 0 offen offset:{64*pr} {CFG["OUTF"]}')
        a = res(4)
        p(f'v_cvt_pk_bf16_f32 v{O+8}, v{a}, v{a+1}')
        p(f'v_cvt_pk_bf16_f32 v{O+9}, v{a+2}, v{a+3}')
        p(f'buffer_store_dwordx2 v[{O+8}:{O+9}], v243, s[28:31], 0 offen offset:128 {CFG["OUTF"]}')

    def finish():
        stamp(p, 3)
        if CFG['PROF']:
            prof_store(p, 4, 'K2', 12)
        p('s_endpgm')

    p.label('L_k2_red_a')
    common(0)
    set_flag(0)
    pairs([(GP, K2_G)])
    spin(16, [1, 2, 3], 'L_k2_spin_a')
    for f in range(5):
        p(f'ds_read_b128 v[{R1(f)}:{R1(f)+3}], v{K2_VL} offset:{f*1024}')
    for f in range(5):
        p(f's_waitcnt lgkmcnt({4-f})')
        for r in (0, 2):
            a = ACC(0, f) + r
            p(f'v_pk_fma_f32 v[{a}:{a+1}], v[{a}:{a+1}], v[{GP}:{GP+1}], v[{R1(f)+r}:{R1(f)+r+1}]')
    store(lambda f: ACC(0, f))
    finish()
    p.label('L_k2_red_b')
    for w in (1, 2, 3):
        if w < 3:
            p(f's_cmp_eq_u32 s{S_WAVE}, {w}')
            p(f's_cbranch_scc0 L_k2_red_b{w+1}')
        K2_LAST['b'](w)
        common(w)
        set_flag(w)
        unpack()
        pairs([(GP, K2_G), (OP, K2_G + 1), (O0, 245)])
        o1, o2 = [x for x in (1, 2, 3) if x != w]
        spin(0, [o1, o2], f'L_k2_spin_b{w}')
        sub = {1: [0, 1], 2: [2, 3], 3: [4]}[w]
        for j, f in enumerate(sub):
            p(f'ds_read_b128 v[{R3(j)}:{R3(j)+3}], v{K2_VL} offset:{o1*5120 + f*1024}')
            p(f'ds_read_b128 v[{R4(j)}:{R4(j)+3}], v{K2_VL} offset:{o2*5120 + f*1024}')
        for f in range(5):
            p(f'ds_read_b128 v[{R1(f)}:{R1(f)+3}], v{RB} offset:{o1*5120 + f*1024}')
            p(f'ds_read_b128 v[{R2(f)}:{R2(f)+3}], v{RB} offset:{o2*5120 + f*1024}')
        p('s_waitcnt lgkmcnt(10)')
        for j, f in enumerate(sub):
            for r in (0, 2):
                a = ACC(0, f) + r
                p(f'v_pk_add_f32 v[{R3(j)+r}:{R3(j)+r+1}], v[{R3(j)+r}:{R3(j)+r+1}], v[{R4(j)+r}:{R4(j)+r+1}]')
                p(f'v_pk_add_f32 v[{a}:{a+1}], v[{a}:{a+1}], v[{B(f)+r}:{B(f)+r+1}]')
            for r in (0, 2):
                a = ACC(0, f) + r
                p(f'v_pk_add_f32 v[{a}:{a+1}], v[{a}:{a+1}], v[{R3(j)+r}:{R3(j)+r+1}]')
                p(f'v_pk_mul_f32 v[{a}:{a+1}], v[{a}:{a+1}], v[{O0}:{O0+1}]')
        for j, f in enumerate(sub):
            p(f'ds_write_b128 v{K2_VL}, v[{ACC(0,f)}:{ACC(0,f)+3}] offset:{f*1024}')
        set_flag(4 + w)
        for f in range(5):
            for r in (0, 2):
                a = ACC(w, f) + r
                p(f'v_pk_add_f32 v[{R1(f)+r}:{R1(f)+r+1}], v[{R1(f)+r}:{R1(f)+r+1}], v[{R2(f)+r}:{R2(f)+r+1}]')
                p(f'v_pk_add_f32 v[{a}:{a+1}], v[{a}:{a+1}], v[{B(f)+r}:{B(f)+r+1}]')
            for r in (0, 2):
                a = ACC(w, f) + r
                p(f'v_pk_add_f32 v[{a}:{a+1}], v[{a}:{a+1}], v[{R1(f)+r}:{R1(f)+r+1}]')
                p(f'v_pk_mul_f32 v[{a}:{a+1}], v[{a}:{a+1}], v[{OP}:{OP+1}]')
        spin(0, [0], f'L_k2_spin_c{w}')
        for f in range(5):
            p(f'ds_read_b128 v[{AR(f)}:{AR(f)+3}], v{RB} offset:{f*1024}')
        for f in range(5):
            p(f's_waitcnt lgkmcnt({4-f})')
            for r in (0, 2):
                a = ACC(w, f) + r
                p(f'v_pk_fma_f32 v[{a}:{a+1}], v[{AR(f)+r}:{AR(f)+r+1}], v[{GP}:{GP+1}], v[{a}:{a+1}]')
        store(lambda f: ACC(w, f))
        finish()
        if w < 3:
            p.label(f'L_k2_red_b{w+1}')


def gen_k2():
    global K2_ACC
    NB = CFG['NBUF']
    assert NB * 36 + 80 <= 224
    K2_ACC = NB * 36
    p = Prog()
    p('s_cmp_ge_u32 s2, 256')
    p('s_cbranch_scc1 L_k2_end')
    p('s_load_dwordx2 s[4:5], s[0:1], 88')
    p('s_load_dwordx2 s[6:7], s[0:1], 72')
    p('s_load_dwordx2 s[8:9], s[0:1], 56')
    if CFG['PROF']:
        p('s_memrealtime s[88:89]')
        p('s_memtime s[82:83]')
    p('v_lshrrev_b32 v1, 6, v0')
    p('v_and_b32 v2, 63, v0')
    p(f'v_readfirstlane_b32 s{S_WAVE}, v1')
    p('s_and_b32 s52, s2, 7')
    p('s_lshr_b32 s53, s2, 3')
    if CFG['MAP2'] == '8x4':
        p('s_lshr_b32 s54, s52, 1')
        p('s_lshl_b32 s54, s54, 3')
        p('s_lshr_b32 s55, s53, 2')
        p('s_add_u32 s26, s54, s55')
        p('s_and_b32 s54, s52, 1')
        p('s_lshl_b32 s54, s54, 2')
        p('s_and_b32 s55, s53, 3')
        p('s_add_u32 s27, s54, s55')
    else:
        p('s_lshl_b32 s54, s52, 2')
        p('s_lshr_b32 s55, s53, 3')
        p('s_add_u32 s26, s54, s55')
        p('s_and_b32 s27, s53, 7')
    p(f's_cmp_eq_u32 s{S_WAVE}, 0')
    p('s_cbranch_scc0 L_k2_nopf')
    p('v_mov_b32 v10, v2')
    code_prefetch(p, 'L_k2_body', 'L_k2_end', CFG.get('K2_BYTES', 16384), 10, 255, 84, 'k2')
    p.label('L_k2_nopf')
    p.label('L_k2_body')
    p(f'v_lshlrev_b32 v{K2_VL}, 4, v2')
    p(f'v_add_u32 v{K2_VL2}, 4096, v{K2_VL}')
    p(f's_cmp_eq_u32 s{S_WAVE}, 0')
    p('s_mov_b32 s56, 20480')
    p('s_cselect_b32 s56, s56, 55296')
    p(f's_mov_b32 s57, {OA_OFF}')
    p(f's_cselect_b32 s57, s57, {H_OFF}')
    p(f's_mov_b32 s58, {WO_OFF}')
    p(f's_cselect_b32 s58, s58, {W2_OFF}')
    p('s_cselect_b32 s59, 20, 54')
    p(f's_mul_i32 s60, s{S_WAVE}, 18')
    p('s_cselect_b32 s60, 18, s60')
    p('s_sub_u32 s60, s60, 18')
    p('s_lshl_b32 s61, s26, 2')
    p('s_mul_i32 s61, s61, s56')
    p('s_add_u32 s61, s61, s57')
    p('s_lshl_b32 s62, s60, 10')
    p('s_add_u32 s20, s61, s62')
    p('s_mul_i32 s61, s27, s59')
    p('s_add_u32 s61, s61, s60')
    p('s_mul_i32 s61, s61, 5120')
    p('s_add_u32 s21, s61, s58')
    if CFG['ROT2']:
        p('s_add_u32 s34, s20, 16384')
        p('s_add_u32 s35, s21, 81920')
        if CFG['ROT2'] == 2:
            p('s_xor_b32 s62, s26, s27')
            p('s_and_b32 s62, s62, 1')
            p(f's_cmp_eq_u32 s{S_WAVE}, 0')
            p('s_cselect_b32 s63, 8, 9')
            p('s_mul_i32 s22, s62, s63')
        elif CFG['ROT2'] == 3:
            p('s_add_u32 s62, s26, s27')
            p('s_mul_i32 s63, s62, 43')
            p('s_lshr_b32 s63, s63, 7')
            p('s_mul_i32 s63, s63, 3')
            p('s_sub_u32 s62, s62, s63')
            p(f's_cmp_eq_u32 s{S_WAVE}, 0')
            p('s_cselect_b32 s63, 5, 6')
            p('s_mul_i32 s22, s62, s63')
        else:
            p('s_and_b32 s62, s26, 7')
            p('s_and_b32 s63, s27, 3')
            p('s_lshl_b32 s63, s63, 1')
            p('s_add_u32 s62, s62, s63')
            p(f's_cmp_eq_u32 s{S_WAVE}, 0')
            p('s_cselect_b32 s63, 16, 18')
            p('s_mul_i32 s62, s62, s63')
            p('s_lshr_b32 s22, s62, 3')
            p('s_cmp_ge_u32 s22, s63')
            p('s_cselect_b32 s62, s63, 0')
            p('s_sub_u32 s22, s22, s62')
        p('s_lshl_b32 s62, s22, 10')
        p('s_add_u32 s20, s20, s62')
        p('s_mul_i32 s62, s22, 5120')
        p('s_add_u32 s21, s21, s62')
    for t in range(4):
        p(f's_mul_i32 s62, s56, {t}')
        p(f'v_add_u32 v{K2_VA+t}, s62, v{K2_VL}')
    p('v_and_b32 v3, 15, v2')
    p('v_lshrrev_b32 v4, 4, v2')
    p('s_lshl_b32 s62, s26, 6')
    p(f's_lshl_b32 s63, s{S_WAVE}, 4')
    p('s_add_u32 s62, s62, s63')
    p('v_add_u32 v5, s62, v3')
    p('v_lshlrev_b32 v6, 3, v5')
    p(f'v_add_u32 v6, {G_OFF}, v6')
    p('s_mul_i32 s63, s27, 160')
    p('v_lshlrev_b32 v7, 4, v4')
    p('v_add_u32 v7, s63, v7')
    p('v_lshlrev_b32 v8, 3, v4')
    p('v_add_u32 v8, s63, v8')
    p('s_movk_i32 s63, 1280')
    p('v_mul_u32_u24 v5, s63, v5')
    p('v_add_u32 v242, v5, v7')
    p('v_add_u32 v243, v5, v8')
    if CFG['K2RED'] == 2:
        for r in range(4):
            p(f'v_mov_b32 v{214+r}, 0')
        p('v_mov_b32 v219, 81920')
        p('ds_write_b128 v219, v[214:217]')
        p('ds_write_b128 v219, v[214:217] offset:16')
    p('s_waitcnt lgkmcnt(0)')
    if CFG['K2RED'] == 2:
        p('s_barrier')
    srd(p, 12, 4, WS_USED)
    srd(p, 16, 8, 1280)
    srd(p, 28, 6, 2048 * 1280)
    stamp(p, 0)
    if CFG['K2RED'] == 2:
        p('s_lshl_b32 s62, s26, 6')
        p('v_add_u32 v9, s62, v3')
        p('v_lshlrev_b32 v9, 3, v9')
        p(f'v_add_u32 v9, {G_OFF}, v9')
        p('buffer_load_dwordx2 v[244:245], v9, s[12:15], 0 offen')
    if not CFG['GLATE']:
        k2_small_loads(p, 6, 7, 8)
    else:
        p('v_mov_b32 v246, v6')
        p('v_mov_b32 v247, v7')
        p('v_mov_b32 v248, v8')
    p(f's_cmp_eq_u32 s{S_WAVE}, 0')
    p('s_cbranch_scc0 L_k2_b')
    if CFG['K2PRIO']:
        p(f's_setprio {CFG["K2PRIO"]}')
    k2_stream(p, True)
    p.label('L_k2_b')
    k2_stream(p, False)
    if CFG['K2RED'] == 2:
        k2_reduce2(p)
        p.label('L_k2_end')
        p('s_endpgm')
        return p
    p.label('L_k2_reduce')
    stamp(p, 2)
    ACC = lambda t, f: K2_ACC + (t * 5 + f) * 4
    p(f's_mul_i32 s62, s{S_WAVE}, 5120')
    p(f'v_add_u32 v3, s62, v{K2_VL}')
    p('s_nop 7')
    p('v_add_u32 v4, 40960, v3')
    for t in range(4):
        for f in range(5):
            p(f'ds_write_b128 v{3 + (t >> 1)}, v[{ACC(t,f)}:{ACC(t,f)+3}] offset:{(t & 1)*20480 + f*1024}')
    p(f's_mul_i32 s62, s{S_WAVE}, 20480')
    p(f'v_add_u32 v250, s62, v{K2_VL}')
    p('s_waitcnt lgkmcnt(0)')
    p('s_barrier')
    R = lambda w, f: (w * 5 + f) * 4
    for f in range(5):
        for w in range(4):
            p(f'ds_read_b128 v[{R(w,f)}:{R(w,f)+3}], v250 offset:{w*5120 + f*1024}')
    p('s_mov_b32 s62, 0xffff0000')
    B = lambda f: 100 + 4 * f
    for pr in range(2):
        for d in range(4):
            src = K2_B2 + 4 * pr + d
            f, r = 2 * pr + (d >> 1), 2 * (d & 1)
            p(f'v_lshlrev_b32 v{B(f)+r}, 16, v{src}')
            p(f'v_and_b32 v{B(f)+r+1}, s62, v{src}')
    for d in range(2):
        src = K2_B2 + 8 + d
        p(f'v_lshlrev_b32 v{B(4)+2*d}, 16, v{src}')
        p(f'v_and_b32 v{B(4)+2*d+1}, s62, v{src}')
    p(f'v_mov_b32 v120, v{K2_G}')
    p(f'v_mov_b32 v121, v{K2_G}')
    p(f'v_mov_b32 v122, v{K2_G+1}')
    p(f'v_mov_b32 v123, v{K2_G+1}')
    for f in range(5):
        p(f's_waitcnt lgkmcnt({min(15, 16-4*f)})' if f < 4 else 's_waitcnt lgkmcnt(0)')
        if f == 0:
            p('s_waitcnt lgkmcnt(15)')
        for r in (0, 2):
            a, b1, b2_, b3 = R(0, f) + r, R(1, f) + r, R(2, f) + r, R(3, f) + r
            p(f'v_pk_add_f32 v[{b1}:{b1+1}], v[{b1}:{b1+1}], v[{b2_}:{b2_+1}]')
            p(f'v_pk_add_f32 v[{b3}:{b3+1}], v[{b3}:{b3+1}], v[{B(f)+r}:{B(f)+r+1}]')
            p(f'v_pk_mul_f32 v[{a}:{a+1}], v[{a}:{a+1}], v[120:121]')
            p(f'v_pk_add_f32 v[{b1}:{b1+1}], v[{b1}:{b1+1}], v[{b3}:{b3+1}]')
            p(f'v_pk_fma_f32 v[{a}:{a+1}], v[{b1}:{b1+1}], v[122:123], v[{a}:{a+1}]')
    O = 124
    for pr in range(2):
        for u in range(2):
            a = R(0, 2 * pr + u)
            p(f'v_cvt_pk_bf16_f32 v{O+4*pr+2*u}, v{a}, v{a+1}')
            p(f'v_cvt_pk_bf16_f32 v{O+4*pr+2*u+1}, v{a+2}, v{a+3}')
        p(f'buffer_store_dwordx4 v[{O+4*pr}:{O+4*pr+3}], v242, s[28:31], 0 offen offset:{64*pr} {CFG["OUTF"]}')
    a = R(0, 4)
    p(f'v_cvt_pk_bf16_f32 v{O+8}, v{a}, v{a+1}')
    p(f'v_cvt_pk_bf16_f32 v{O+9}, v{a+2}, v{a+3}')
    p(f'buffer_store_dwordx2 v[{O+8}:{O+9}], v243, s[28:31], 0 offen offset:128 {CFG["OUTF"]}')
    stamp(p, 3)
    if CFG['PROF']:
        prof_store(p, 4, 'K2', 12)
    p.label('L_k2_end')
    p('s_endpgm')
    return p


K2B_R = 4
K2B_STEP = 9216
K2B_SLOT = 4 * K2B_STEP
K2B_LDS = K2B_R * K2B_SLOT


def gen_k2b():
    R, SL, ST = K2B_R, K2B_SLOT, K2B_STEP
    stages = [('a', 4 * i, 4) for i in range(5)] + [('b', 4 * i, 4) for i in range(13)] + [('b', 52, 2)]
    NS = len(stages)
    p = Prog()
    p('s_cmp_ge_u32 s2, 256')
    p('s_cbranch_scc1 L_k2_end')
    p('s_load_dwordx2 s[4:5], s[0:1], 88')
    p('s_load_dwordx2 s[6:7], s[0:1], 72')
    p('s_load_dwordx2 s[8:9], s[0:1], 56')
    if CFG['PROF']:
        p('s_memrealtime s[88:89]')
        p('s_memtime s[82:83]')
    p('v_lshrrev_b32 v1, 6, v0')
    p('v_and_b32 v2, 63, v0')
    p(f'v_readfirstlane_b32 s{S_WAVE}, v1')
    p('s_and_b32 s52, s2, 7')
    p('s_lshr_b32 s53, s2, 3')
    if CFG['MAP2'] == '8x4':
        p('s_lshr_b32 s54, s52, 1')
        p('s_lshl_b32 s54, s54, 3')
        p('s_lshr_b32 s55, s53, 2')
        p('s_add_u32 s26, s54, s55')
        p('s_and_b32 s54, s52, 1')
        p('s_lshl_b32 s54, s54, 2')
        p('s_and_b32 s55, s53, 3')
        p('s_add_u32 s27, s54, s55')
    else:
        p('s_lshl_b32 s54, s52, 2')
        p('s_lshr_b32 s55, s53, 3')
        p('s_add_u32 s26, s54, s55')
        p('s_and_b32 s27, s53, 7')
    p('v_lshlrev_b32 v3, 4, v2')
    p(f's_cmp_ge_u32 s{S_WAVE}, 4')
    p('s_cbranch_scc0 L_k2_consumer')
    p(f's_sub_u32 s57, s{S_WAVE}, 4')
    p('s_mul_i32 s20, s27, 20')
    p('s_add_u32 s20, s20, s57')
    p('s_mul_i32 s20, s20, 5120')
    p(f's_add_u32 s20, s20, {WO_OFF}')
    p('s_mul_i32 s21, s27, 54')
    p('s_add_u32 s21, s21, s57')
    p('s_mul_i32 s21, s21, 5120')
    p(f's_add_u32 s21, s21, {W2_OFF}')
    p('s_lshl_b32 s54, s26, 2')
    p('s_mul_i32 s22, s54, 20')
    p('s_add_u32 s22, s22, s57')
    p('s_lshl_b32 s22, s22, 10')
    p(f's_add_u32 s22, s22, {OA_OFF}')
    p('s_mul_i32 s25, s54, 54')
    p('s_add_u32 s25, s25, s57')
    p('s_lshl_b32 s25, s25, 10')
    if H_OFF:
        p(f's_add_u32 s25, s25, {H_OFF}')
    p(f's_mul_i32 s58, s57, {ST}')
    p('v_add_u32 v4, 4096, v3')
    for u in range(4):
        p(f'v_add_u32 v{10+u}, {20480*u}, v3')
        p(f'v_add_u32 v{14+u}, {55296*u}, v3')
    p('s_waitcnt lgkmcnt(0)')
    srd(p, 12, 4, WS_USED)
    stamp(p, 0)

    def issue(j):
        part, s0, n = stages[j]
        slot = j % R
        if n < 4:
            p(f's_cmp_ge_u32 s57, {n}')
            p(f's_cbranch_scc1 L_k2_skip{j}')
        p(f's_add_u32 s23, s{20 if part == "a" else 21}, {s0*5120}')
        p(f's_add_u32 s24, s{22 if part == "a" else 25}, {s0*1024}') if False else None
        p(f's_add_u32 m0, s58, {slot*SL}')
        p(f's_add_u32 s59, s{22 if part == "a" else 25}, {s0*1024}')
        for f in range(4):
            p(f'buffer_load_dwordx4 v3, s[12:15], s23 offen offset:{1024*f} {CFG["K2LDF"]} lds')
        p(f's_add_u32 m0, s58, {slot*SL + 4096}')
        p('s_nop 0')
        p(f'buffer_load_dwordx4 v4, s[12:15], s23 offen {CFG["K2LDF"]} lds')
        for u in range(4):
            p(f's_add_u32 m0, s58, {slot*SL + 5120 + 1024*u}')
            p('s_nop 0')
            p(f'buffer_load_dwordx4 v{(10 if part == "a" else 14)+u}, s[12:15], s59 offen {CFG["K2LDF"]} lds')
        if n < 4:
            p.label(f'L_k2_skip{j}')

    for j in range(R - 1):
        issue(j)
    stamp(p, 1)
    for j in range(NS):
        hi = min(j + R - 2, NS - 1)
        newer = 9 * (hi - j)
        if hi == NS - 1 and j < NS - 1:
            newer -= 9
        p(f's_waitcnt vmcnt({max(newer, 0)})')
        p('s_barrier')
        if j + R - 1 < NS:
            issue(j + R - 1)
    stamp(p, 2)
    stamp(p, 3)
    if CFG['PROF']:
        prof_store(p, 4, 'K2', 12)
    p('s_endpgm')
    p.label('L_k2_consumer')
    p(f's_cmp_eq_u32 s{S_WAVE}, 0')
    p('s_cbranch_scc0 L_k2_nopf')
    p('v_mov_b32 v10, v2')
    code_prefetch(p, 'L_k2_body', 'L_k2_end', CFG.get('K2_BYTES', 12288), 10, 255, 84, 'k2')
    p.label('L_k2_nopf')
    p.label('L_k2_body')
    ACA, ACB = 0, 20
    WR = lambda q, f: 40 + 20 * q + 4 * f
    AR = lambda q: 120 + 4 * q
    G, B2 = 230, 232
    p('s_lshl_b32 s54, s26, 2')
    p(f's_add_u32 s54, s54, s{S_WAVE}')
    p('v_and_b32 v4, 15, v2')
    p('v_lshrrev_b32 v5, 4, v2')
    p('s_lshl_b32 s55, s54, 4')
    p('v_add_u32 v6, s55, v4')
    p('v_lshlrev_b32 v7, 3, v6')
    p(f'v_add_u32 v7, {G_OFF}, v7')
    p('s_mul_i32 s55, s27, 160')
    p('v_lshlrev_b32 v8, 4, v5')
    p('v_add_u32 v8, s55, v8')
    p('v_lshlrev_b32 v9, 3, v5')
    p('v_add_u32 v9, s55, v9')
    p('v_mul_u32_u24 v6, 1280, v6')
    p('v_add_u32 v242, v6, v8')
    p('v_add_u32 v243, v6, v9')
    p(f's_lshl_b32 s55, s{S_WAVE}, 10')
    p('s_add_u32 s55, s55, 5120')
    for sl in range(R):
        p(f'v_add_u32 v{244+sl}, {sl*SL}, v3')
        p(f'v_add_u32 v{250+sl}, s55, v{244+sl}')
    p(f's_lshr_b32 s55, s{S_WAVE}, 1')
    p('s_lshl_b32 s55, s55, 10')
    p(f's_and_b32 s56, s{S_WAVE}, 1')
    p('s_lshl_b32 s56, s56, 3')
    p('s_add_u32 s55, s55, s56')
    p('s_add_u32 s55, s55, 5120')
    p('v_add_u32 v249, s55, v3')
    p('s_waitcnt lgkmcnt(0)')
    srd(p, 12, 4, WS_USED)
    srd(p, 16, 8, 1280)
    srd(p, 28, 6, 2048 * 1280)
    stamp(p, 0)
    p(f'buffer_load_dwordx2 v[{G}:{G+1}], v7, s[12:15], 0 offen')
    p(f'buffer_load_dwordx4 v[{B2}:{B2+3}], v8, s[16:19], 0 offen')
    p(f'buffer_load_dwordx4 v[{B2+4}:{B2+7}], v8, s[16:19], 0 offen offset:64')
    p(f'buffer_load_dwordx2 v[{B2+8}:{B2+9}], v9, s[16:19], 0 offen offset:128')
    for r in range(40):
        p(f'v_mov_b32 v{r}, 0')
    stamp(p, 1)
    for j, (part, s0, n) in enumerate(stages):
        slot = j % R
        tail = (part == 'a' and s0 == 16)
        assert not tail or slot == 0
        p('s_barrier')
        log = []
        for q in range(n):
            if tail:
                p(f'ds_read_b64 v[{AR(q)}:{AR(q)+1}], v249 offset:{q*ST}')
                p(f'ds_read_b64 v[{AR(q)+2}:{AR(q)+3}], v249 offset:{q*ST + 2048}')
                log += [('a', q), ('a', q)]
            else:
                p(f'ds_read_b128 v[{AR(q)}:{AR(q)+3}], v{250+slot} offset:{q*ST}')
                log.append(('a', q))
            for f in range(5):
                p(f'ds_read_b128 v[{WR(q,f)}:{WR(q,f)+3}], v{244+slot} offset:{q*ST + f*1024}')
                log.append(('w', q, f))
        known = max(0, len(log) - 15) if len(log) > 15 else 0
        done = -1
        for q in range(n):
            acc0 = ACA if part == 'a' else ACB
            for f in range(5):
                idx = log.index(('w', q, f))
                if idx > done:
                    left = len(log) - 1 - idx
                    w = min(left, 15)
                    p(f's_waitcnt lgkmcnt({w})')
                    done = len(log) - 1 - w
                p(f'v_mfma_f32_16x16x32_bf16 v[{acc0+4*f}:{acc0+4*f+3}], v[{WR(q,f)}:{WR(q,f)+3}], v[{AR(q)}:{AR(q)+3}], v[{acc0+4*f}:{acc0+4*f+3}]')
    stamp(p, 2)
    p('s_mov_b32 s62, 0xffff0000')
    p('s_waitcnt vmcnt(0)')
    Bf = lambda f: 100 + 4 * f
    for pr in range(2):
        for d in range(4):
            s_ = B2 + 4 * pr + d
            f, r = 2 * pr + (d >> 1), 2 * (d & 1)
            p(f'v_lshlrev_b32 v{Bf(f)+r}, 16, v{s_}')
            p(f'v_and_b32 v{Bf(f)+r+1}, s62, v{s_}')
    for d in range(2):
        s_ = B2 + 8 + d
        p(f'v_lshlrev_b32 v{Bf(4)+2*d}, 16, v{s_}')
        p(f'v_and_b32 v{Bf(4)+2*d+1}, s62, v{s_}')
    p(f'v_mov_b32 v120, v{G}')
    p(f'v_mov_b32 v121, v{G}')
    p(f'v_mov_b32 v122, v{G+1}')
    p(f'v_mov_b32 v123, v{G+1}')
    for f in range(5):
        for r in (0, 2):
            a, b = ACA + 4 * f + r, ACB + 4 * f + r
            p(f'v_pk_add_f32 v[{b}:{b+1}], v[{b}:{b+1}], v[{Bf(f)+r}:{Bf(f)+r+1}]')
            p(f'v_pk_mul_f32 v[{a}:{a+1}], v[{a}:{a+1}], v[120:121]')
    for f in range(5):
        for r in (0, 2):
            a, b = ACA + 4 * f + r, ACB + 4 * f + r
            p(f'v_pk_fma_f32 v[{a}:{a+1}], v[{b}:{b+1}], v[122:123], v[{a}:{a+1}]')
    O = 124
    for pr in range(2):
        for u in range(2):
            a = ACA + 4 * (2 * pr + u)
            p(f'v_cvt_pk_bf16_f32 v{O+4*pr+2*u}, v{a}, v{a+1}')
            p(f'v_cvt_pk_bf16_f32 v{O+4*pr+2*u+1}, v{a+2}, v{a+3}')
        p(f'buffer_store_dwordx4 v[{O+4*pr}:{O+4*pr+3}], v242, s[28:31], 0 offen offset:{64*pr} {CFG["OUTF"]}')
    a = ACA + 16
    p(f'v_cvt_pk_bf16_f32 v{O+8}, v{a}, v{a+1}')
    p(f'v_cvt_pk_bf16_f32 v{O+9}, v{a+2}, v{a+3}')
    p(f'buffer_store_dwordx2 v[{O+8}:{O+9}], v243, s[28:31], 0 offen offset:128 {CFG["OUTF"]}')
    stamp(p, 3)
    if CFG['PROF']:
        prof_store(p, 4, 'K2', 12)
    p.label('L_k2_end')
    p('s_endpgm')
    return p


def gen_k2t():
    NW, INF, MODE = CFG['NW'], CFG['INF'], CFG['TMODE']
    p = Prog()
    p('s_cmp_ge_u32 s2, 256')
    p('s_cbranch_scc1 L_k2_end')
    p('s_load_dwordx2 s[4:5], s[0:1], 88')
    p('s_memrealtime s[88:89]')
    p('s_memtime s[82:83]')
    p('v_lshrrev_b32 v1, 6, v0')
    p('v_and_b32 v2, 63, v0')
    p(f'v_readfirstlane_b32 s{S_WAVE}, v1')
    p('s_and_b32 s52, s2, 7')
    p('s_lshr_b32 s53, s2, 3')
    p('s_lshr_b32 s54, s52, 1')
    p('s_lshl_b32 s54, s54, 3')
    p('s_lshr_b32 s55, s53, 2')
    p('s_add_u32 s26, s54, s55')
    p('s_and_b32 s54, s52, 1')
    p('s_lshl_b32 s54, s54, 2')
    p('s_and_b32 s55, s53, 3')
    p('s_add_u32 s27, s54, s55')
    p('v_lshlrev_b32 v3, 4, v2')
    p('v_add_u32 v4, 4096, v3')
    nst = 72 // NW
    p(f's_mul_i32 s60, s{S_WAVE}, {nst}')
    p('s_cmp_ge_u32 s60, 54')
    p('s_cselect_b32 s61, 1, 0')
    p('s_cselect_b32 s56, 20480, 0')
    p('s_cselect_b32 s56, s56, 55296')
    p(f's_mov_b32 s57, {OA_OFF}')
    p(f's_cselect_b32 s57, s57, {H_OFF}')
    p(f's_mov_b32 s58, {WO_OFF}')
    p(f's_cselect_b32 s58, s58, {W2_OFF}')
    p('s_cselect_b32 s59, 20, 54')
    p('s_cselect_b32 s62, 54, 0')
    p('s_sub_u32 s60, s60, s62')
    p('s_lshl_b32 s61, s26, 2')
    p('s_mul_i32 s61, s61, s56')
    p('s_add_u32 s61, s61, s57')
    p('s_lshl_b32 s62, s60, 10')
    p('s_add_u32 s20, s61, s62')
    p('s_mul_i32 s61, s27, s59')
    p('s_add_u32 s61, s61, s60')
    p('s_mul_i32 s61, s61, 5120')
    p('s_add_u32 s21, s61, s58')
    for t in range(4):
        p(f's_mul_i32 s62, s56, {t}')
        p(f'v_add_u32 v{10+t}, s62, v3')
    p(f's_mul_i32 s63, s{S_WAVE}, 16384')
    p('s_waitcnt lgkmcnt(0)')
    srd(p, 12, 4, WS_USED)
    stamp(p, 0)
    stamp(p, 1)
    n = 0
    for s in range(nst):
        for f in range(9):
            r = 20 + 4 * (n % 48)
            if MODE == 'dma':
                p(f's_add_u32 m0, s63, {(n % 16) * 1024}')
                p('s_nop 0')
            a, so, off = (3, 's21', 1024 * f) if f < 4 else ((4, 's21', 0) if f == 4 else (10 + f - 5, 's20', 0))
            if MODE == 'dma':
                if f < 4 and f > 0:
                    p(f's_sub_u32 m0, m0, {off}')
                    p('s_nop 0')
                p(f'buffer_load_dwordx4 v{a}, s[12:15], {so} offen offset:{off} lds')
            else:
                p(f'buffer_load_dwordx4 v[{r}:{r+3}], v{a}, s[12:15], {so} offen offset:{off}')
            p(f's_waitcnt vmcnt({INF})')
            n += 1
        p('s_add_u32 s20, s20, 1024')
        p('s_add_u32 s21, s21, 5120')
    p('s_waitcnt vmcnt(0)')
    stamp(p, 2)
    stamp(p, 3)
    prof_store(p, 4, 'K2', 12)
    p.label('L_k2_end')
    p('s_endpgm')
    return p


def gen_kpf():
    p = Prog()
    p('s_cmp_ge_u32 s2, 256')
    p('s_cbranch_scc1 L_kpf_end')
    p('s_load_dwordx2 s[4:5], s[0:1], 88')
    p('v_and_b32 v2, 63, v0')
    p('v_lshrrev_b32 v1, 6, v0')
    p('s_and_b32 s52, s2, 7')
    p('s_lshr_b32 s53, s2, 3')
    p('v_lshlrev_b32 v3, 7, v0')
    p('s_waitcnt lgkmcnt(0)')
    srd(p, 12, 4, WS_USED)
    if CFG['KPF'] == 1:
        p('s_and_b32 s54, s52, 1')
        p(f's_mul_i32 s55, s54, {4*54*5120}')
        p(f's_add_u32 s55, s55, {W2_OFF}')
        p('s_lshl_b32 s56, s53, 15')
        p('s_add_u32 s57, s55, s56')
        p('buffer_load_dword v10, v3, s[12:15], s57 offen')
        p('s_add_u32 s57, s57, 57344')
        p('buffer_load_dword v10, v3, s[12:15], s57 offen')
        p(f's_mul_i32 s55, s54, {4*20*5120}')
        p(f's_add_u32 s55, s55, {WO_OFF}')
        p('s_mul_i32 s56, s53, 12800')
        p('s_add_u32 s57, s55, s56')
        p('buffer_load_dword v10, v3, s[12:15], s57 offen')
    else:
        p('s_lshr_b32 s54, s52, 1')
        p(f's_mul_i32 s55, s54, {32*55296}')
        p('s_mul_i32 s56, s53, 55296')
        p('s_add_u32 s57, s55, s56')
        p('buffer_load_dword v10, v3, s[12:15], s57 offen')
        p('s_add_u32 s57, s57, 22528')
        p('buffer_load_dword v10, v3, s[12:15], s57 offen')
        p(f's_mul_i32 s55, s54, {32*20480}')
        p(f's_add_u32 s55, s55, {OA_OFF}')
        p('s_mul_i32 s56, s53, 20480')
        p('s_add_u32 s57, s55, s56')
        p('buffer_load_dword v10, v3, s[12:15], s57 offen')
    p('s_waitcnt vmcnt(0)')
    p.label('L_kpf_end')
    p('s_endpgm')
    return p


HEADER = """; Kernarg layout (96 bytes, ptrs only, base s[0:1]):
; @launch kernel=gm_k1_kernel grid=(256,1,1) block=(512,1,1) lds=%d
; @launch kernel=gm_k2_kernel grid=(256,1,1) block=(256,1,1) lds=%d
.amdgcn_target "amdgcn-amd-amdhsa--gfx950"
"""

KD = """.amdhsa_kernel %s
  .amdhsa_next_free_vgpr %d
  .amdhsa_next_free_sgpr 102
  .amdhsa_accum_offset %d
  .amdhsa_group_segment_fixed_size 0
  .amdhsa_kernarg_size 96
  .amdhsa_user_sgpr_count 2
  .amdhsa_user_sgpr_kernarg_segment_ptr 1
  .amdhsa_system_sgpr_workgroup_id_x 1
  .amdhsa_float_denorm_mode_32 3
.end_amdhsa_kernel
"""


def main():
    k1 = gen_k1()
    k2 = gen_k2b() if CFG['K2V'] == 2 else (gen_k2t() if CFG['K2V'] == 3 else gen_k2())
    t1, t2 = k1.finish(), k2.finish()
    s = HEADER % (K1_LDS, K2B_LDS if CFG['K2V'] == 2 else K2_LDS)
    if CFG['K2V'] == 3:
        s = s.replace('kernel=gm_k2_kernel grid=(256,1,1) block=(256,1,1) lds=%d' % K2_LDS, 'kernel=gm_k2_kernel grid=(256,1,1) block=(%d,1,1) lds=131072' % (64 * CFG['NW']))
    if CFG['K2V'] == 2:
        s = s.replace('kernel=gm_k2_kernel grid=(256,1,1) block=(256,1,1)', 'kernel=gm_k2_kernel grid=(256,1,1) block=(512,1,1)')
    if CFG['K2TWICE']:
        ln = [l for l in s.split('\n') if 'kernel=gm_k2_kernel' in l][0]
        s = s.replace(ln, ln + '\n' + ln)
    s += '.text\n'
    for name, t in (('gm_k1_kernel', t1), ('gm_k2_kernel', t2)):
        s += f'.globl {name}\n.p2align 8\n.type {name},@function\n{name}:\n{t}'
    s += '.p2align 8\n.fill 64, 4, 0xbf800000\n' if False else ''
    if CFG['KPF']:
        s += '.globl gm_pf_kernel\n.p2align 8\n.type gm_pf_kernel,@function\ngm_pf_kernel:\n' + gen_kpf().finish()
        ln = [l for l in s.split('\n') if 'kernel=gm_k2_kernel' in l][0]
        s = s.replace(ln, '; @launch kernel=gm_pf_kernel grid=(256,1,1) block=(256,1,1) lds=0\n' + ln)
    s += '.section .rodata,"a"\n.p2align 6\n'
    s += KD % ('gm_k1_kernel', 256, 256)
    s += '.p2align 6\n'
    s += KD % ('gm_k2_kernel', 256, 256)
    if CFG['KPF']:
        s += '.p2align 6\n' + KD % ('gm_pf_kernel', 64, 64)
    out = CFG.get('OUT', f'cdna_kernels/{NAME}.s')
    open(out, 'w').write(s)
    print('written', out, len(s), 'bytes; nops inserted k1', k1.nops_inserted, 'k2', k2.nops_inserted)


if __name__ == '__main__':
    main()
```

```python
import sys, os, math, struct
sys.path.insert(0, os.path.dirname(os.path.abspath(__file__)))
from asmlib import Prog, vr, ar, sr

NAME = 'gated_mix__sliding_local_dilated__dense_activation_gelu__prompt'

CFG = dict(MAP1='m82', MAP2='8x4', NBUF=3, PROF=0, NOMFMA=0, NOLOAD=0, NODS=0, STF='sc1', LDF='', ULDF='nt', PFF='', PF=0, TT=0, ROT=1, ROT2=0, K2TWICE=0, K2V=1, M35=1, DEDUP=1, K2RED=2, K2PRIO=0, USPF=0, TJ=7, TL=0, GLATE=0, STFO='sc1', STFH='sc1', ALIGN=0, UNITS_FFN=1, NFU=3, PEEL=1, SWAPW=0, LDFIRST=0, PRIO=0, K2ORD=0, KPF=0, LDF0='nt', NT_ST=0, ZOOB=1, TEARLY=0, K2PF=1, DA=12, NW=4, INF=32, TMODE='reg', K2NOMFMA=0, K2LDF='', OUTF='')
for a in sys.argv[1:]:
    if '=' in a:
        k, v = a.split('=')
        CFG[k] = int(v) if v.lstrip('-').isdigit() else v.replace('+', ' ')

H_OFF = 0
OA_OFF = H_OFF + 128 * 54 * 1024
W2_OFF = OA_OFF + 128 * 20 * 1024
WO_OFF = W2_OFF + 8 * 54 * 5120
G_OFF = WO_OFF + 8 * 20 * 5120
WS_USED = G_OFF + 2048 * 8
PROF_OFF = 16 << 20

XREG = 144 * 128
WROW = 480
WREG = 64 * WROW
SLOT = XREG + WREG
XFLAG = 3 * 49152 + 15360
SCR = 3 * SLOT
K1_LDS = 163840


def f32(x):
    return struct.unpack('<I', struct.pack('<f', x))[0]


def hexf(x):
    return '0x%08x' % f32(x)


S_AX, S_WQKV, S_WO, S_BX, S_W1, S_B1, S_W2, S_B2, S_GW, S_WS = 4, 6, 8, 10, 12, 14, 16, 18, 20, 22
S_WAVE, S_TYPE, S_RB, S_CG = 24, 25, 26, 27
SRD_X, SRD_W, SRD_I4, SRD_WS, SRD_A, SRD_B = 28, 32, 36, 40, 44, 48


def srd(p, base, ptr, nbytes):
    p(f's_mov_b32 s{base}, s{ptr}')
    p(f's_mov_b32 s{base+1}, s{ptr+1}')
    p(f's_mov_b32 s{base+2}, {nbytes}')
    p(f's_mov_b32 s{base+3}, 0x20000')


def code_prefetch(p, lbl_from, lbl_to, nbytes, vtmp, vdst, s, tag):
    p(f's_getpc_b64 s[{s}:{s+1}]')
    p.label(f'L_pc_{tag}')
    p(f's_add_u32 s{s}, s{s}, {lbl_from}-L_pc_{tag}')
    p(f's_addc_u32 s{s+1}, s{s+1}, 0')
    p(f'v_lshlrev_b32 v{vtmp}, 6, v{vtmp}')
    n = (nbytes + 4095) // 4096
    for j in range(n):
        p(f'v_min_u32 v{vtmp+1}, {lbl_to}-{lbl_from}, v{vtmp}')
        p(f'global_load_dword v{vdst}, v{vtmp+1}, s[{s}:{s+1}]')
        if j + 1 < n:
            p(f'v_add_u32 v{vtmp}, 4096, v{vtmp}')
    return n


def stamp(p, idx, sbase=90):
    if CFG['PROF']:
        p(f'{"s_memtime" if CFG["PROF"] in (2, 3, 6) else "s_memrealtime"} s[{sbase+2*idx}:{sbase+2*idx+1}]')


def k1_decode(p):
    p('s_and_b32 s52, s2, 7')
    p('s_lshr_b32 s53, s2, 3')
    if CFG['MAP1'] == 'mixed':
        p(f's_lshr_b32 s{S_TYPE}, s53, 4')
        p('s_and_b32 s54, s53, 15')
        p('s_lshr_b32 s55, s52, 1')
        p('s_lshl_b32 s55, s55, 2')
        p('s_lshr_b32 s56, s54, 2')
        p(f's_add_u32 s{S_RB}, s55, s56')
        p('s_and_b32 s55, s52, 1')
        p('s_lshl_b32 s55, s55, 2')
        p('s_and_b32 s56, s54, 3')
        p(f's_add_u32 s{S_CG}, s55, s56')
    elif CFG['MAP1'] == 'm82':
        p(f's_lshr_b32 s{S_TYPE}, s53, 4')
        p('s_lshr_b32 s55, s52, 2')
        p('s_lshl_b32 s55, s55, 3')
        p('s_and_b32 s56, s53, 7')
        p(f's_add_u32 s{S_RB}, s55, s56')
        p('s_and_b32 s55, s52, 3')
        p('s_lshl_b32 s55, s55, 1')
        p('s_bfe_u32 s56, s53, 0x10003')
        p(f's_add_u32 s{S_CG}, s55, s56')
    else:
        p(f's_lshr_b32 s{S_TYPE}, s52, 2')
        p('s_and_b32 s54, s52, 3')
        p('s_lshr_b32 s55, s54, 1')
        p('s_lshl_b32 s55, s55, 3')
        p('s_lshr_b32 s56, s53, 2')
        p(f's_add_u32 s{S_RB}, s55, s56')
        p('s_and_b32 s55, s54, 1')
        p('s_lshl_b32 s55, s55, 2')
        p('s_and_b32 s56, s53, 3')
        p(f's_add_u32 s{S_CG}, s55, s56')


def k1_loader(p, attn):
    tag = 'A' if attn else 'F'
    rowstride = 3840 if attn else 3456
    VOFF = 10
    VL = 2
    p.label(f'L_loader_{tag}')
    p(f's_sub_u32 s57, s{S_WAVE}, 4')
    p(f'v_lshrrev_b32 v3, 3, v{VL}')
    p('s_lshl_b32 s58, s57, 3')
    p('v_add_u32 v3, s58, v3')
    p(f's_lshl_b32 s59, s{S_RB}, 7')
    if attn:
        p('s_sub_u32 s59, s59, 16')
    p('v_add_u32 v3, s59, v3')
    p('s_and_b32 s58, s57, 1')
    p('s_lshl_b32 s58, s58, 2')
    p(f'v_lshrrev_b32 v4, 4, v{VL}')
    p('v_add_u32 v4, s58, v4')
    p(f'v_and_b32 v5, 7, v{VL}')
    p('v_xor_b32 v4, v4, v5')
    p('v_lshlrev_b32 v4, 4, v4')
    p('s_movk_i32 s58, 1280')
    p('s_movk_i32 s59, 2047')
    for i in range(5):
        p(f'v_add_u32 v5, {32*i}, v3')
        if attn and i == 0:
            p('v_max_i32 v5, 0, v5')
        if (not attn) and i == 4:
            p('v_min_u32 v5, s59, v5')
        p('v_mul_u32_u24 v5, s58, v5')
        if (not attn) and i == 4 and CFG['DEDUP']:
            p(f'v_mov_b32 v6, v{VOFF}')
        else:
            p(f'v_add_u32 v{VOFF+i if i < 4 else 6}, v5, v4')
    p('s_lshl_b32 s58, s57, 6')
    p(f'v_add_u32 v7, s58, v{VL}')
    p(f's_mov_b32 s60, {rowstride}')
    p('v_mov_b32 v9, 0x7ffffff0')
    if attn:
        p(f's_mul_i32 s61, s{S_CG}, 160')
    else:
        p(f's_mul_i32 s61, s{S_CG}, 448')

    def w_offset(i):
        base = 64 * (4 * i - 18)
        dst = VOFF + i if i > 4 else 8
        if base >= 0:
            p(f'v_add_u32 v3, {base}, v7')
        else:
            p(f'v_subrev_u32 v3, {-base}, v7')
            p('v_max_i32 v3, 0, v3')
        p('v_mul_u32_u24 v4, 2185, v3')
        p('v_lshrrev_b32 v4, 16, v4')
        p('v_mul_u32_u24 v5, 30, v4')
        p('v_sub_u32 v5, v3, v5')
        p('v_lshrrev_b32 v3, 1, v4')
        p('v_xor_b32 v3, v3, v4')
        p('v_and_b32 v3, 4, v3')
        p('v_mul_u32_u24 v3, 3, v3')
        p('v_xor_b32 v4, v3, v4')
        p('v_mul_u32_u24 v4, s60, v4')
        if attn:
            p('v_mul_u32_u24 v3, 205, v5')
            p('v_lshrrev_b32 v3, 11, v3')
            p('v_mul_u32_u24 v3, 1120, v3')
            p('v_lshlrev_b32 v5, 4, v5')
            p('v_add3_u32 v5, v5, v3, s61')
        else:
            if CFG['DEDUP']:
                p('v_min_u32 v5, 27, v5')
            p('v_lshlrev_b32 v5, 4, v5')
            p('v_add_u32 v5, s61, v5')
            if CFG['ZOOB']:
                p('v_cmp_lt_u32 vcc, 3440, v5')
            else:
                p('v_min_u32 v5, 3440, v5')
        p(f'v_add_u32 v{dst}, v4, v5')
        if (not attn) and CFG['ZOOB']:
            p(f'v_cndmask_b32 v{dst}, v{dst}, v9, vcc')
        if i == 4:
            p('s_cmp_lt_u32 s57, 2')
            p('s_cselect_b64 vcc, -1, 0')
            p(f'v_cndmask_b32 v{VOFF+4}, v8, v6, vcc')

    p('s_waitcnt lgkmcnt(0)')
    if attn:
        srd(p, SRD_X, S_AX, 2048 * 1280)
        srd(p, SRD_W, S_WQKV, 640 * 3840)
    else:
        srd(p, SRD_X, S_AX, 2048 * 1280)
        srd(p, SRD_W, S_W1, 640 * 3456)
    p('s_cmp_lt_u32 s57, 2')
    for k in range(3):
        p(f's_cselect_b32 s{SRD_I4+k}, s{SRD_X+k}, s{SRD_W+k}')
    p(f's_mov_b32 s{SRD_I4+3}, 0x20000')
    p('s_movk_i32 s73, 128')
    p('s_cselect_b32 s73, s73, %d' % (64 * rowstride))
    if CFG['ROT']:
        p(f's_and_b32 s79, s{S_RB}, 7')
        p('s_lshr_b32 s80, s79, 2')
        p('s_add_u32 s79, s79, s80')
        if CFG['MAP1'] == 'spec':
            p(f's_and_b32 s80, s{S_CG}, 3')
        else:
            p(f's_and_b32 s80, s{S_CG}, 1')
            p(f's_lshl_b32 s81, s{S_TYPE}, 1')
            p('s_add_u32 s80, s80, s81')
        p('s_mul_i32 s80, s80, 5')
        p('s_lshr_b32 s80, s80, 1')
        p('s_add_u32 s79, s79, s80')
        p('s_cmp_ge_u32 s79, 10')
        p('s_cselect_b32 s80, 10, 0')
        p('s_sub_u32 s79, s79, s80')
    else:
        p('s_mov_b32 s79, 0')
    p('s_lshl_b32 s74, s79, 7')
    p(f's_mul_i32 s75, s79, {64*rowstride}')
    p('s_mul_i32 s76, s79, s73')
    p('s_lshl_b32 s77, s57, 10')

    def issue_stage(st, lazy=False):
        slot = st % 3
        ldf = CFG['LDF0'] if st < CFG['NT_ST'] else CFG['LDF']
        for i in range(12):
            if lazy and i >= 4:
                w_offset(i)
            p(f's_add_u32 m0, s77, {slot*SLOT + i*4096}')
            if i < 4:
                if i == 0:
                    p('s_nop 0')
                p(f'buffer_load_dwordx4 v{VOFF+i}, s[{SRD_X}:{SRD_X+3}], s74 offen {ldf} lds')
            elif i == 4:
                p(f'buffer_load_dwordx4 v{VOFF+i}, s[{SRD_I4}:{SRD_I4+3}], s76 offen {ldf} lds')
            else:
                p(f'buffer_load_dwordx4 v{VOFF+i}, s[{SRD_W}:{SRD_W+3}], s75 offen {ldf} lds')
        p('s_add_u32 s74, s74, 128')
        p(f's_add_u32 s75, s75, {64*rowstride}')
        p('s_add_u32 s76, s76, s73')
        if CFG['ROT']:
            p('s_add_u32 s79, s79, 1')
            p('s_cmp_eq_u32 s79, 10')
            for r in (79, 74, 75, 76):
                p(f's_cselect_b32 s{r}, 0, s{r}')

    stamp(p, 0)
    issue_stage(0, lazy=True)
    issue_stage(1)
    UF = CFG['UNITS_FFN']
    scr_base = SLOT if (UF and not attn) else SCR

    def unit_decode(sfx):
        p('s_and_b32 s64, s62, 7')
        p('s_lshr_b32 s65, s62, 3')
        p('s_lshl_b32 s66, s65, 5')
        p('s_mov_b32 s67, 16')
        p('s_mov_b32 s68, 4')
        p('s_mul_i32 s69, s64, 54')
        p('s_add_u32 s69, s69, s65')
        p('s_mul_i32 s69, s69, 5120')
        p(f's_add_u32 s69, s69, {W2_OFF}')
        p('s_mov_b32 s70, 0')
        p('s_cmp_lt_u32 s65, 54')
        p(f's_cbranch_scc1 L_unit_done_{tag}{sfx}')
        p('s_sub_u32 s65, s65, 54')
        p('s_mov_b32 s70, 1')
        p('s_mul_i32 s69, s64, 20')
        p('s_add_u32 s69, s69, s65')
        p('s_mul_i32 s69, s69, 5120')
        p(f's_add_u32 s69, s69, {WO_OFF}')
        p('s_mul_i32 s66, s65, 40')
        p('s_mov_b32 s67, 20')
        p('s_cmp_lt_u32 s65, 16')
        p(f's_cbranch_scc1 L_unit_done_{tag}{sfx}')
        p('s_sub_u32 s65, s65, 16')
        p('s_mul_i32 s66, s65, 160')
        p('s_add_u32 s66, s66, 16')
        p('s_mov_b32 s67, 80')
        p('s_mov_b32 s68, 20')
        p.label(f'L_unit_done_{tag}{sfx}')
        p('s_mul_i32 s71, s64, 160')
        p('s_movk_i32 s58, 1280')
        for i in range(5):
            p(f'v_add_u32 v3, {64*i}, v{VL}')
            p('v_mul_u32_u24 v4, 6554, v3')
            p('v_lshrrev_b32 v4, 16, v4')
            p('v_mul_u32_u24 v5, 10, v4')
            p('v_sub_u32 v5, v3, v5')
            p('v_lshlrev_b32 v5, 4, v5')
            p('v_add_u32 v5, s71, v5')
            p('v_lshrrev_b32 v3, 4, v4')
            p('v_mul_u32_u24 v3, s67, v3')
            p('v_bfe_u32 v6, v4, 2, 2')
            p('v_mul_u32_u24 v6, s68, v6')
            p('v_and_b32 v4, 3, v4')
            p('v_add3_u32 v3, v3, v6, v4')
            p('v_add_u32 v3, s66, v3')
            p('v_mul_u32_u24 v3, s58, v3')
            p(f'v_add_u32 v{22+i}, v3, v5')

    def unit_srd():
        p('s_cmp_eq_u32 s70, 0')
        p(f's_cselect_b32 s{SRD_A}, s{S_W2}, s{S_WO}')
        p(f's_cselect_b32 s{SRD_A+1}, s{S_W2+1}, s{S_WO+1}')
        p(f's_mov_b32 s{SRD_A+2}, {1728*1280}')
        p(f's_cselect_b32 s{SRD_A+2}, s{SRD_A+2}, {640*1280}')
        p(f's_mov_b32 s{SRD_A+3}, 0x20000')

    do_units = True
    NFU = CFG['NFU']
    always = UF and not attn and NFU == 4
    if UF:
        p(f's_lshl_b32 s62, s{S_RB}, 3')
        p(f's_add_u32 s62, s62, s{S_CG}')
        p('s_lshl_b32 s63, s57, 7')
        p('s_add_u32 s62, s62, s63')
        if not attn:
            p(f's_cmp_lt_u32 s57, {NFU}')
            p('s_cselect_b32 s63, 1, 0')
        else:
            p(f's_add_u32 s62, s62, {128*NFU}')
            p('s_cmp_lt_u32 s62, 592')
            p('s_cselect_b32 s63, 1, 0')
            p('s_cmp_lt_u32 s57, 3')
            p('s_cselect_b32 s63, s63, 0')
    else:
        p('s_lshl_b32 s62, s57, 8')
        p('s_add_u32 s62, s62, s2')
        p('s_cmp_lt_u32 s62, 592')
        p('s_cselect_b32 s63, 1, 0')
        p('s_cmp_lt_u32 s57, 3')
        p('s_cselect_b32 s63, s63, 0')
    if do_units:
        unit_decode('')
        p(f'v_lshrrev_b32 v3, 2, v{VL}')
        p('v_mul_u32_u24 v3, 160, v3')
        p('s_mul_i32 s72, s57, 5120')
        p(f's_add_u32 s72, s72, {scr_base}')
        p('v_add_u32 v3, s72, v3')
        p(f'v_and_b32 v4, 3, v{VL}')
        p('v_lshl_add_u32 v27, v4, 4, v3')
        p('v_lshl_add_u32 v28, v4, 3, v3')
        p(f'v_lshlrev_b32 v29, 4, v{VL}')
        p('v_add_u32 v30, 4096, v29')
    if not attn:
        p(f's_lshl_b32 s58, s{S_RB}, 3')
        p(f's_add_u32 s58, s58, s{S_CG}')
        p('s_lshl_b32 s58, s58, 4')
        p('s_lshl_b32 s59, s57, 2')
        p('s_add_u32 s58, s58, s59')
        p(f'v_lshrrev_b32 v3, 4, v{VL}')
        p('v_add_u32 v31, s58, v3')
        p('s_movk_i32 s58, 1280')
        p('v_mul_u32_u24 v3, s58, v31')
        p(f'v_and_b32 v4, 15, v{VL}')
        p('v_lshlrev_b32 v33, 4, v4')
        p('v_add_u32 v32, v3, v33')
    srd(p, SRD_WS, S_WS, WS_USED)
    if do_units:
        unit_srd()
    GX, GW = 40, 60
    gate = (not attn)
    TG = 10 if gate else 0
    if gate:
        srd(p, SRD_B, S_GW, 1280)

    def unit_loads():
        for i in range(5):
            p(f's_add_u32 m0, s72, {i*1024}')
            p('s_nop 0')
            p(f'buffer_load_dwordx4 v{22+i}, s[{SRD_A}:{SRD_A+3}], 0 offen {CFG["ULDF"]} lds')

    def unit_finish():
        for f in range(5):
            a, off = (27, [0, 8, 64, 72][f]) if f < 4 else (28, 128)
            p(f'ds_read_b64_tr_b16 v[{84+4*f}:{85+4*f}], v{a} offset:{off}')
            p(f'ds_read_b64_tr_b16 v[{86+4*f}:{87+4*f}], v{a} offset:{off+2560}')
        for f in range(5):
            p(f's_waitcnt lgkmcnt({8-2*f})')
            if f < 4:
                p(f'buffer_store_dwordx4 v[{84+4*f}:{87+4*f}], v29, s[{SRD_WS}:{SRD_WS+3}], s69 offen offset:{1024*f} {CFG["STF"]}')
            else:
                p(f'buffer_store_dwordx4 v[{84+4*f}:{87+4*f}], v30, s[{SRD_WS}:{SRD_WS+3}], s69 offen {CFG["STF"]}')

    def tail_loads():
        if not do_units:
            return
        if always:
            unit_loads()
        else:
            p('s_cmp_eq_u32 s63, 0')
            p(f's_cbranch_scc1 L_nounit_ld_{tag}')
            unit_loads()
            p.label(f'L_nounit_ld_{tag}')
        if gate:
            for j in range(5):
                p(f'buffer_load_dwordx4 v[{GX+4*j}:{GX+4*j+3}], v32, s[{SRD_X}:{SRD_X+3}], 0 offen offset:{256*j}')
                p(f'buffer_load_dwordx4 v[{GW+4*j}:{GW+4*j+3}], v33, s[{SRD_B}:{SRD_B+3}], 0 offen offset:{256*j}')

    def unit_prefetch(grp):
        if not (CFG['USPF'] and do_units):
            return
        hi, mid = grp >> 2, grp & 3
        p('s_cmp_eq_u32 s63, 0')
        p(f's_cbranch_scc1 L_uspf{grp}_{tag}')
        p(f's_mul_i32 s99, s67, {hi}')
        p(f's_mul_i32 s98, s68, {mid}')
        p('s_add_u32 s99, s99, s98')
        p('s_add_u32 s99, s99, s66')
        p('s_mul_i32 s99, s99, 1280')
        p('s_add_u32 s99, s99, s71')
        for r in range(4):
            p(f's_load_dword s56, s[{SRD_A}:{SRD_A+1}], s99 offset:{1280*r}')
            p(f's_load_dword s56, s[{SRD_A}:{SRD_A+1}], s99 offset:{1280*r + 156}')
        p.label(f'L_uspf{grp}_{tag}')

    def wait_vm(n_nounit, n_unit, uid):
        if always:
            n_nounit = n_unit
        if n_nounit == n_unit:
            p(f's_waitcnt vmcnt({n_unit})')
            return
        p('s_cmp_eq_u32 s63, 0')
        p(f's_cbranch_scc1 L_w{uid}a_{tag}')
        p(f's_waitcnt vmcnt({n_unit})')
        p(f's_branch L_w{uid}b_{tag}')
        p.label(f'L_w{uid}a_{tag}')
        p(f's_waitcnt vmcnt({n_nounit})')
        p.label(f'L_w{uid}b_{tag}')

    if CFG['TEARLY']:
        tail_loads()
        wait_vm(12 + TG, 12 + TG + 5, 'i')
    else:
        p('s_waitcnt vmcnt(12)')
    stamp(p, 1)
    TJ = CFG['TJ'] if attn else 7
    p('s_barrier')
    issue_stage(2)
    unit_prefetch(0)
    for j in range(9):
        if CFG['TEARLY']:
            if j == 0:
                wait_vm(12 + TG, 12 + TG + 5, j)
            else:
                p('s_waitcnt vmcnt(%d)' % (12 if j <= 7 else 0))
        elif j <= TJ:
            p('s_waitcnt vmcnt(12)')
        elif j == 7:
            wait_vm(12 + TG, 12 + TG + 5, j)
        else:
            wait_vm(TG, TG + 5, j)
        p('s_barrier')
        if j + 3 <= 9 and not CFG['NOLOAD']:
            issue_stage(j + 3)
        if j <= 6:
            unit_prefetch(j + 1)
        if j == TJ and not CFG['TEARLY']:
            tail_loads()
        if j == 3 and CFG['TEARLY'] and gate:
            gate_job(p, GX, GW, store=False)
    stamp(p, 2)
    if CFG['K2PF']:
        p('s_cmp_eq_u32 s57, 3')
        p(f's_cbranch_scc0 L_nok2pf_{tag}')
        p(f'v_mov_b32 v34, v{VL}')
        code_prefetch(p, 'gm_k2_kernel', 'L_k2_end', 16384, 34, 255, 84, 'k2pf' + tag)
        p.label(f'L_nok2pf_{tag}')
    if do_units:
        p('s_waitcnt vmcnt(0) lgkmcnt(0)')
        if always:
            unit_finish()
        else:
            p('s_cmp_eq_u32 s63, 0')
            p(f's_cbranch_scc1 L_nounit_{tag}')
            unit_finish()
            p.label(f'L_nounit_{tag}')
    if gate:
        if CFG['TEARLY']:
            gate_store(p)
        else:
            gate_job(p, GX, GW)
    stamp(p, 3)
    if CFG['PROF']:
        prof_store(p, 4, 'LD' + tag, SRD_WS)
    p('s_endpgm')


def prof_debug(p, n, tag, sbase=90):
    p('s_waitcnt lgkmcnt(0) vmcnt(0)')
    p('s_and_b32 s86, s2, 127')
    p('s_cmp_eq_u32 s86, 0')
    p(f's_cbranch_scc0 L_pd_{tag}')
    p(f's_and_b32 s86, s{S_WAVE}, 3')
    p('s_cmp_eq_u32 s86, 0')
    p(f's_cbranch_scc0 L_pd_{tag}')
    p('s_load_dwordx2 s[76:77], s[0:1], 80')
    p('s_waitcnt lgkmcnt(0)')
    p('s_mov_b32 s78, 256')
    p('s_mov_b32 s79, 0x20000')
    p('s_lshr_b32 s86, s2, 7')
    p('s_lshl_b32 s86, s86, 1')
    p(f's_lshr_b32 s85, s{S_WAVE}, 2')
    p('s_add_u32 s86, s86, s85')
    p('s_lshl_b32 s86, s86, 4')
    p('v_mov_b32 v1, 0')
    for i in range(n):
        p(f's_sub_u32 s85, s{sbase+2*i}, s88')
        p('v_mov_b32 v0, s85')
        p(f'buffer_store_dword v0, v1, s[76:79], s86 offen offset:{4*i}')
    p('s_waitcnt vmcnt(0)')
    p.label(f'L_pd_{tag}')


_pd = [0]


def prof_collect(p, srdws):
    p('s_waitcnt lgkmcnt(0) vmcnt(0)')
    p(f's_or_b32 s86, s2, s{S_WAVE}')
    p('s_cmp_eq_u32 s86, 0')
    p('s_cbranch_scc0 L_pc5')
    p('s_load_dwordx2 s[76:77], s[0:1], 80')
    p(f's_mov_b32 s{srdws+2}, 0x10000000')
    p('v_mbcnt_lo_u32_b32 v0, -1, 0')
    p('v_mbcnt_hi_u32_b32 v0, -1, v0')
    p('v_lshrrev_b32 v1, 2, v0')
    p('v_and_b32 v2, 3, v0')
    p('v_lshlrev_b32 v2, 2, v2')
    p('v_cmp_eq_u32 vcc, 1, v1')
    p('v_mov_b32 v3, 0')
    p('v_mov_b32 v4, 256')
    p('v_cndmask_b32 v3, v3, v4, vcc')
    p('v_cmp_eq_u32 vcc, 2, v1')
    p(f'v_mov_b32 v4, {128*8*64}')
    p('v_cndmask_b32 v3, v3, v4, vcc')
    p('v_add_u32 v3, v3, v2')
    p(f'v_add_u32 v3, {PROF_OFF}, v3')
    p(f'buffer_load_dword v5, v3, s[{srdws}:{srdws+3}], 0 offen')
    p(f'v_mov_b32 v6, {PROF_OFF + 60}')
    p(f'buffer_load_dword v7, v6, s[{srdws}:{srdws+3}], 0 offen')
    p('s_waitcnt vmcnt(0) lgkmcnt(0)')
    p('s_mov_b32 s78, 256')
    p('s_mov_b32 s79, 0x20000')
    p('v_sub_u32 v5, v5, v7')
    for ln, sr_ in ((12, 88), (13, 90), (14, 94), (15, 96)):
        p(f'v_mov_b32 v8, s{sr_}')
        p('v_sub_u32 v8, v8, v7')
        p(f'v_cmp_eq_u32 vcc, {ln}, v0')
        p('v_cndmask_b32 v5, v5, v8, vcc')
    p('v_lshlrev_b32 v0, 2, v0')
    p('v_cmp_gt_u32 vcc, 64, v0')
    p('s_and_saveexec_b64 s[84:85], vcc')
    p('buffer_store_dword v5, v0, s[76:79], 0 offen')
    p('s_waitcnt vmcnt(0)')
    p.label('L_pc5')


def prof_store(p, n, tag, srdws, sbase=90):
    if CFG['PROF'] == 5 and tag.startswith('K2'):
        return prof_collect(p, srdws)
    if CFG['PROF'] == 4:
        _pd[0] += 1
        return prof_debug(p, n, tag + str(_pd[0]), sbase)
    return prof_store_ws(p, n, tag, srdws, sbase)


def prof_store_ws(p, n, tag, srdws, sbase=90):
    p('s_memtime s[80:81]')
    p('s_memrealtime s[78:79]')
    p('s_waitcnt lgkmcnt(0) vmcnt(0)')
    p('s_sub_u32 s80, s80, s82')
    p('s_sub_u32 s78, s78, s88')
    p(f's_mov_b32 s{srdws+2}, 0x10000000')
    p(f's_lshl_b32 s86, s2, 3')
    p(f's_add_u32 s86, s86, s{S_WAVE}')
    p(f's_lshl_b32 s86, s86, 6')
    p(f's_add_u32 s86, s86, {PROF_OFF + (0 if not tag.startswith("K2") else (1 << 20))}')
    if CFG['PROF'] == 3:
        p(f's_lshl_b32 s85, s2, 3')
        p(f's_add_u32 s85, s85, s{S_WAVE}')
        p(f's_lshl_b32 s85, s85, 8')
        p(f's_add_u32 s85, s85, {PROF_OFF + (2 << 20)}')
        p('v_mbcnt_lo_u32_b32 v0, -1, 0')
        p('v_mbcnt_hi_u32_b32 v0, -1, v0')
        p('v_lshlrev_b32 v0, 2, v0')
        if not tag.startswith('K2'):
            p(f'buffer_store_dword v254, v0, s[{srdws}:{srdws+3}], s85 offen')
    p('v_mov_b32 v1, 0')
    p('v_mov_b32 v0, s88')
    p(f'buffer_store_dword v0, v1, s[{srdws}:{srdws+3}], s86 offen offset:60')
    p('v_mov_b32 v0, s80')
    p(f'buffer_store_dword v0, v1, s[{srdws}:{srdws+3}], s86 offen offset:56')
    p('v_mov_b32 v0, s78')
    p(f'buffer_store_dword v0, v1, s[{srdws}:{srdws+3}], s86 offen offset:52')
    for i in range(n):
        p(f'v_mov_b32 v0, s{sbase+2*i}')
        p(f'buffer_store_dword v0, v1, s[{srdws}:{srdws+3}], s86 offen offset:{4*i}')
    if CFG['PROF'] == 6 and tag == 'CA':
        for i, r in enumerate((72, 74, 76)):
            p(f'v_mov_b32 v0, s{r}')
            p(f'buffer_store_dword v0, v1, s[{srdws}:{srdws+3}], s86 offen offset:{16+4*i}')
    p('s_waitcnt vmcnt(0)')


def gate_store(p):
    p(f'buffer_store_dwordx2 v[38:39], v37, s[{SRD_WS}:{SRD_WS+3}], 0 offen {CFG["STF"]}')


def gate_job(p, GX, GW, store=True):
    T = 104
    p('v_mov_b32 v34, 0')
    p('v_mov_b32 v35, 0')
    p('v_mov_b32 v36, 0x3f803f80')
    p('s_mov_b32 s78, 0xffff0000')
    for d in range(20):
        x, w = GX + d, GW + d
        t = T + 6 * (d & 1)
        p(f'v_lshlrev_b32 v{t}, 16, v{x}')
        p(f'v_and_b32 v{t+1}, s78, v{x}')
        p(f'v_lshlrev_b32 v{t+2}, 16, v{w}')
        p(f'v_and_b32 v{t+3}, s78, v{w}')
        p(f'v_pk_mul_f32 v[{t}:{t+1}], v[{t}:{t+1}], v[{t+2}:{t+3}]')
        p(f'v_cvt_pk_bf16_f32 v{t+4}, v{t}, v{t+1}')
        acc = 34 + (d & 1)
        p(f'v_dot2_f32_bf16 v{acc}, v{t+4}, v36, v{acc}')
    p('v_add_f32 v34, v34, v35')
    for sh in (8, 4, 2, 1):
        p(f'v_add_f32_dpp v34, v34, v34 row_ror:{sh} row_mask:0xf bank_mask:0xf')
    p('v_cvt_pk_bf16_f32 v35, v34, v34')
    p('v_lshlrev_b32 v35, 16, v35')
    p(f'v_mul_f32 v35, {hexf(-math.log2(math.e))}, v35')
    p('v_exp_f32 v35, v35')
    p('v_add_f32 v35, 1.0, v35')
    p('v_rcp_f32 v35, v35')
    p('v_cvt_pk_bf16_f32 v35, v35, v35')
    p('v_lshlrev_b32 v38, 16, v35')
    p('v_sub_f32 v39, 1.0, v38')
    p('v_cvt_pk_bf16_f32 v39, v39, v39')
    p('v_lshlrev_b32 v39, 16, v39')
    p('v_lshlrev_b32 v37, 3, v31')
    p(f'v_add_u32 v37, {G_OFF}, v37')
    if store:
        gate_store(p)


A_QM = lambda h, t: 0 + (h * 4 + t) * 4
A_KM = lambda h, kt: 32 + (h * 5 + kt) * 4
A_QKT = lambda kt: 72 + 4 * kt
A_VM = lambda h, kt: 92 + (h * 5 + kt) * 4
A_VT = lambda kt: 132 + 4 * kt
WF = lambda f: 152 + 4 * f
XF = lambda b, t: 184 + 20 * b + 4 * t
V_X0, V_X1, V_W, V_WA, V_WB = 224, 225, 226, 227, 228
V_BPREV, V_BCUR, V_BFIRST, V_SEL = 232, 236, 240, 244
F_ACC = lambda f, t: (f * 4 + t) * 4


class LgkmTracker:
    def __init__(self, p):
        self.p = p
        self.q = []

    def issue(self, tag):
        self.q.append(tag)

    def need(self, tags):
        idx = -1
        for i, t in enumerate(self.q):
            if t in tags:
                idx = i
        if idx < 0:
            return
        n = len(self.q) - 1 - idx
        self.p(f's_waitcnt lgkmcnt({min(n, 15)})')
        keep = min(n, 15)
        self.q = self.q[len(self.q) - keep:] if keep else []

    def drain(self):
        self.p('s_waitcnt lgkmcnt(0)')
        self.q = []


def consumer_loop(p, attn, th=None):
    tag = ('A' if attn else 'F') + ('' if th is None else str(th))
    NT = 5 if attn else 4
    xoff = lambda t: 2048 * t
    if attn:
        kk = range(5) if th in (None, 0) else range(1, 5)
        vk = range(5) if th in (None, 1) else range(1, 5)
        if th == 1:
            xoff = lambda t: 0 if t == 0 else 8192 + 2048 * t
        tiles = []
        for h in range(2):
            tiles.append([(A_QM(h, t), t + 1, 'F') for t in range(4)])
        for h in range(2):
            tiles.append([(A_KM(h, k), k, 'F') for k in kk])
        tiles.append([(A_QKT(k), k, 'F') for k in kk])
        for h in range(2):
            tiles.append([(A_VM(h, k), k, 'T') for k in vk])
        tiles.append([(A_VT(k), k, 'T') for k in vk])
        waddr = [(V_W, 0), (V_W, 40), (V_W, 160), (V_W, 200), (V_WA, 0), (V_W, 320), (V_W, 360), (V_WB, 0)]
    else:
        tiles = [[(F_ACC(f, t), t, 'F') for t in range(4)] for f in range(7)]
        waddr = [(V_W, 32 * f) for f in range(6)] + [(V_WA, 0)]
    NF = len(tiles)

    lg = LgkmTracker(p)

    def rd_w(f, s):
        if CFG['NODS']:
            return
        a, off = waddr[f]
        off += s * 32 * WROW
        p(f'ds_read_b64_tr_b16 v[{WF(f)}:{WF(f)+1}], v{a} offset:{off}')
        lg.issue(('w', f))
        p(f'ds_read_b64_tr_b16 v[{WF(f)+2}:{WF(f)+3}], v{a} offset:{off + 8*WROW}')
        lg.issue(('w', f))

    def rd_x(t, s):
        if CFG['NODS']:
            return
        p(f'ds_read_b128 v[{XF(s,t)}:{XF(s,t)+3}], v{V_X1 if s else V_X0} offset:{2048*t}')
        lg.issue(('x', s, t))

    LAST = NF - 1

    def wreads(f, s):
        a, off = waddr[f]
        off += s * 32 * WROW
        return [(f'ds_read_b64_tr_b16 v[{WF(f)}:{WF(f)+1}], v{a} offset:{off}', ('w', f)),
                (f'ds_read_b64_tr_b16 v[{WF(f)+2}:{WF(f)+3}], v{a} offset:{off + 8*WROW}', ('w', f))]

    def xread(t, s):
        return (f'ds_read_b128 v[{XF(s,t)}:{XF(s,t)+3}], v{V_X1 if s else V_X0} offset:{xoff(t)}', ('x', s, t))

    def emit(item):
        if CFG['NODS']:
            return
        p(item[0])
        lg.issue(item[1])

    order_log = []

    def packing():
        cv = lambda d, a: f'v_cvt_pk_bf16_f32 v{d}, v{a}, v{a+1}'
        out = []
        for h in range(2):
            for t in range(4):
                b = A_QM(h, t)
                out += [(h, cv(b, b)), (h, cv(b + 1, b + 2))]
        for h in range(2):
            for kt in kk:
                b = A_KM(h, kt)
                out += [(2 + h, cv(b, b)), (2 + h, cv(b + 1, b + 2))]
        for kt in kk:
            t = A_QKT(kt)
            out += [(4, cv(t, t)), (4, cv(t + 1, t + 2))]
        for kt in kk:
            t, k0 = A_QKT(kt), A_KM(0, kt)
            out += [(4, f'v_mov_b32 v{k0+2}, v{t}'), (4, f'v_mov_b32 v{k0+3}, v{t+1}')]
        return out

    def step(s, dry=False, last=False):
        nxt = 1 - s
        q = wreads(LAST, s)
        xq = [xread(t, nxt) for t in range(NT)]
        held = []
        upd = [V_W, V_X0, V_X1, V_WA] + ([V_WB] if attn else [])
        pk = []
        if last:
            xq, upd = [], []
            pk = packing() if attn else []
        for f in range(NF):
            if not dry:
                lg.need({('w', f)} | ({('x', s, t) for t in range(NT)} if f == 0 else set()))
            for n, (acc, t, o) in enumerate(tiles[f]):
                w, x = f'v[{WF(f)}:{WF(f)+3}]', f'v[{XF(s,t)}:{XF(s,t)+3}]'
                a, b = (w, x) if o == 'F' else (x, w)
                if not CFG['NOMFMA'] and not dry:
                    p(f'v_mfma_f32_16x16x32_bf16 v[{acc}:{acc+3}], {a}, {b}, v[{acc}:{acc+3}]')
                item = None
                if q:
                    item = q.pop(0)
                elif xq and (s == 0 or f >= 2):
                    item = xq.pop(0)
                if item is not None:
                    if dry:
                        order_log.append(item)
                    else:
                        emit(item)
                if not dry and s == 0 and f == LAST and n == 1:
                    p(f's_add_u32 s53, s53, {SLOT}')
                    p(f's_cmp_eq_u32 s53, {3*SLOT}')
                if not dry and s == 0 and f == LAST and n == 2:
                    p(f's_cselect_b32 s54, s51, {SLOT}')
                    p('s_cselect_b32 s53, 0, s53')
                if not dry and s == 1 and item is None and upd and (f, n) >= (0, 2):
                    p(f'v_add_u32 v{upd[0]}, s54, v{upd[0]}')
                    upd.pop(0)
                for _ in range(2):
                    if pk and pk[0][0] + 2 <= f:
                        p(pk.pop(0)[1])
            if f < LAST and not last:
                rs = wreads(f, nxt)
                if s == 1 and f < 1:
                    held += rs
                elif s == 1 and f == 1:
                    assert not q
                    if not dry:
                        assert not upd
                        if CFG['PROF'] == 3:
                            p('s_memtime s[70:71]')
                        lg.drain()
                        if CFG['PROF'] == 3:
                            p('s_lshl_b32 m0, s52, 1')
                            p('s_nop 3')
                            p('v_writelane_b32 v254, s70, m0')
                            p('s_add_u32 s74, m0, 63')
                            p('s_and_b32 m0, s74, 63')
                            p('s_nop 3')
                            p('v_writelane_b32 v254, s72, m0')
                        if CFG['PEEL']:
                            p('s_barrier')
                        else:
                            p('s_cmp_eq_u32 s52, 9')
                            p(f's_cbranch_scc1 L_nobar_{tag}')
                            p('s_barrier')
                            p.label(f'L_nobar_{tag}')
                        if CFG['PROF'] == 3:
                            p('s_memtime s[72:73]')
                    q += held + rs
                    held = []
                else:
                    q += rs
        assert not q and not xq, (q, xq)
        for _, ins in pk:
            p(ins)

    step(1, dry=True)
    for item in order_log[2:]:
        emit(item)
    p('s_mov_b32 s52, 0')
    p('s_mov_b32 s53, 0')
    p(f's_mov_b32 s51, {(-2*SLOT) & 0xffffffff}')
    if CFG['ALIGN']:
        p(f'.p2align {CFG["ALIGN"]}')
    p.label(f'L_loop_{tag}')
    q_head = list(lg.q)
    step(0)
    step(1)
    q_end = list(lg.q)
    assert q_end == q_head, (q_end, q_head)
    p('s_add_u32 s52, s52, 1')
    p(f's_cmp_lt_u32 s52, {9 if CFG["PEEL"] else 10}')
    p(f's_cbranch_scc1 L_loop_{tag}')
    if CFG['PEEL']:
        step(0)
        step(1, last=True)
    lg.drain()


def check_loop_waits():
    pass


def tlb_touch(p, tag):
    if not CFG['TT']:
        return
    p(f's_cmp_eq_u32 s{S_WAVE}, 1')
    p(f's_cbranch_scc0 L_tt1{tag}')
    for i in range(7):
        p(f's_mov_b32 s70, {i << 21}')
        p(f's_load_dword s{71+i}, s[{S_WS}:{S_WS+1}], s70')
    p.label(f'L_tt1{tag}')
    p(f's_cmp_eq_u32 s{S_WAVE}, 2')
    p(f's_cbranch_scc0 L_tt2{tag}')
    p(f's_load_dword s71, s[{S_WO}:{S_WO+1}], 0')
    p(f's_load_dword s72, s[{S_W2}:{S_W2+1}], 0')
    p(f's_mov_b32 s70, {(1 << 21) + 4096}')
    p(f's_load_dword s73, s[{S_W2}:{S_W2+1}], s70')
    p(f's_load_dword s74, s[{S_GW}:{S_GW+1}], 0')
    p(f's_load_dword s75, s[{S_B2}:{S_B2+1}], 0')
    p('s_load_dword s76, s[100:101], 0')
    p('s_load_dword s77, s[100:101], s70')
    p.label(f'L_tt2{tag}')
    if CFG['TL']:
        p(f's_cmp_eq_u32 s{S_WAVE}, 3')
        p(f's_cbranch_scc0 L_tt3{tag}')
        for i in range(1, 10):
            p(f's_load_dword s{70+(i%8)}, s[{S_B2}:{S_B2+1}], {128*i}')
        for i in range(1, 10):
            p(f's_load_dword s{70+(i%8)}, s[{S_GW}:{S_GW+1}], {128*i}')
        p.label(f'L_tt3{tag}')


def prefetch_setup(p, attn):
    rowstride = 3840 if attn else 3456
    p(f's_lshl_b32 s57, s{S_WAVE}, 6')
    p('v_add_u32 v9, s57, v2')
    p(f's_and_b32 s57, s{S_RB}, 7')
    p('s_lshl_b32 s57, s57, 3')
    p('s_add_u32 s57, s57, 128')
    p(f's_mov_b32 s58, {rowstride}')
    if attn:
        p(f's_mul_i32 s59, s{S_CG}, 160')
        p('s_andn2_b32 s59, s59, 127')
        for rnd in range(2):
            p(f'v_add_u32 v3, {256*rnd}, v9')
            p('v_min_u32 v3, 383, v3')
            p('v_mul_u32_u24 v4, 1366, v3')
            p('v_lshrrev_b32 v4, 16, v4')
            p('v_mul_u32_u24 v5, 48, v4')
            p('v_sub_u32 v5, v3, v5')
            p('v_mul_u32_u24 v6, 43, v5')
            p('v_lshrrev_b32 v6, 8, v6')
            p('v_mul_u32_u24 v7, 6, v6')
            p('v_sub_u32 v7, v5, v7')
            p('v_lshl_add_u32 v4, v4, 6, v6')
            p('v_add_u32 v4, s57, v4')
            p('v_mul_u32_u24 v4, s58, v4')
            p('v_lshrrev_b32 v5, 1, v7')
            p('v_mul_u32_u24 v5, 1280, v5')
            p('v_and_b32 v7, 1, v7')
            p('v_lshl_add_u32 v5, v7, 7, v5')
            p(f'v_add3_u32 v{249+rnd}, v4, v5, s59')
    else:
        p(f's_mul_i32 s59, s{S_CG}, 448')
        p('s_andn2_b32 s59, s59, 127')
        p('v_lshrrev_b32 v4, 5, v9')
        p('v_bfe_u32 v6, v9, 2, 3')
        p('v_lshl_add_u32 v4, v4, 6, v6')
        p('v_add_u32 v4, s57, v4')
        p('v_mul_u32_u24 v4, s58, v4')
        p('v_and_b32 v7, 3, v9')
        p('v_lshlrev_b32 v7, 7, v7')
        p('v_add3_u32 v249, v4, v7, s59')
    p(f's_and_b32 s57, s{S_CG}, 1')
    p(f's_lshl_b32 s58, s{S_TYPE}, 1')
    p('s_add_u32 s57, s57, s58')
    p('s_lshl_b32 s57, s57, 5')
    p(f's_lshl_b32 s58, s{S_RB}, 7')
    p('s_add_u32 s57, s57, s58')
    p('v_and_b32 v4, 31, v9')
    p('v_add_u32 v4, s57, v4')
    p('v_mul_u32_u24 v4, 1280, v4')
    p('v_lshrrev_b32 v5, 5, v9')
    p('v_lshlrev_b32 v5, 7, v5')
    p('v_add3_u32 v251, v4, v5, 256' .replace(', 256', ', s99'))


def prefetch_issue(p, attn):
    if not CFG['PF']:
        return
    p(f'buffer_load_dword v255, v251, s[{SRD_X}:{SRD_X+3}], 0 offen {CFG["PFF"]}')
    p(f'buffer_load_dword v255, v249, s[{SRD_W}:{SRD_W+3}], 0 offen {CFG["PFF"]}')
    if attn:
        p(f'buffer_load_dword v255, v250, s[{SRD_W}:{SRD_W+3}], 0 offen {CFG["PFF"]}')


def attn_prologue(p):
    p(f's_and_b32 s55, s{S_WAVE}, 1')
    p(f's_lshr_b32 s56, s{S_WAVE}, 1')
    p('v_and_b32 v3, 15, v2')
    p('v_lshrrev_b32 v4, 4, v2')
    p('v_lshrrev_b32 v5, 1, v3')
    p('v_xor_b32 v5, v5, v4')
    p('v_lshlrev_b32 v5, 4, v5')
    p('v_lshl_add_u32 v5, v3, 7, v5')
    if CFG['M35']:
        p(f'v_mov_b32 v{V_X0}, v5')
    else:
        p('s_lshl_b32 s57, s56, 13')
        p(f'v_add_u32 v{V_X0}, s57, v5')
    p(f'v_xor_b32 v{V_X1}, 64, v{V_X0}')
    p('v_lshrrev_b32 v5, 5, v2')
    p('v_lshlrev_b32 v5, 4, v5')
    p('v_bfe_u32 v6, v2, 4, 1')
    p('v_lshl_add_u32 v5, v6, 2, v5')
    p('v_bfe_u32 v6, v2, 2, 2')
    p('v_add_u32 v5, v5, v6')
    p(f'v_mul_u32_u24 v5, {WROW}, v5')
    p('s_mul_i32 s57, s55, 80')
    p(f's_add_u32 s57, s57, {XREG}')
    p('v_add_u32 v5, s57, v5')
    p('v_and_b32 v6, 3, v2')
    p(f'v_lshl_add_u32 v{V_W}, v6, 3, v5')
    p('v_and_b32 v7, 1, v6')
    p('v_mul_u32_u24 v7, 40, v7')
    p('v_add_u32 v7, v7, v5')
    p('v_lshrrev_b32 v6, 1, v6')
    p('v_mul_u32_u24 v6, 160, v6')
    p(f'v_add3_u32 v{V_WA}, v7, v6, 32')
    p(f'v_add_u32 v{V_WB}, 352, v7')
    p('v_lshlrev_b32 v5, 2, v4')
    p('v_sub_u32 v5, v3, v5')
    p(f's_mov_b32 s58, {hexf(-1e30)}')
    p('v_mov_b32 v8, s58')
    p(f's_or_b32 s59, s{S_RB}, s56')
    p('s_cmp_eq_u32 s59, 0')
    p('s_cselect_b64 s[60:61], -1, 0')
    for r in range(4):
        p(f'v_subrev_u32 v6, {r}, v5')
        p('v_and_b32 v7, 1, v6')
        p('v_cmp_eq_u32 s[62:63], 0, v7')
        p('v_cmp_ge_i32 s[64:65], v6, 0')
        p('s_and_b64 s[66:67], s[62:63], s[64:65]')
        p('s_andn2_b64 s[68:69], s[62:63], s[64:65]')
        p(f'v_cndmask_b32 v{V_BCUR+r}, v8, 0, s[66:67]')
        p(f'v_cndmask_b32 v{V_BPREV+r}, v8, 0, s[68:69]')
        p(f'v_cndmask_b32 v{V_BFIRST+r}, v{V_BPREV+r}, v8, s[60:61]')
    p('v_and_b32 v7, 1, v3')
    p('v_cmp_eq_u32 s[62:63], 0, v7')
    for k, (lo, hi) in enumerate([(0x0c0c0100, 0x01000c0c), (0x0c0c0302, 0x03020c0c)]):
        p(f'v_mov_b32 v6, {hex(hi)}')
        p(f'v_mov_b32 v9, {hex(lo)}')
        p('v_cndmask_b32 v9, v6, v9, s[62:63]')
        p('v_sub_u32 v6, v5, v7')
        if k:
            p('v_subrev_u32 v6, 2, v6')
        p('v_cmp_ge_i32 s[64:65], v6, 0')
        p('v_mov_b32 v6, 0x0c0c0c0c')
        p(f'v_cndmask_b32 v{V_SEL+k}, v9, v6, s[64:65]')
        p(f'v_cndmask_b32 v{V_SEL+2+k}, v6, v9, s[64:65]')
    p('v_lshlrev_b32 v248, 4, v2')
    if CFG['M35']:
        p('s_lshl_b32 s57, s55, 13')
        p(f's_add_u32 s57, s57, {2*SLOT}')
        p('v_add_u32 v249, s57, v248')
        p('v_lshrrev_b32 v250, 1, v248')
        p('v_add_u32 v250, s57, v250')
        p('s_lshl_b32 s57, s55, 3')
        p(f's_add_u32 s57, s57, {XFLAG}')
        p('v_mov_b32 v251, s57')
        p('v_mov_b32 v252, 0')
        p('v_mov_b32 v253, 0')
        p('ds_write_b64 v251, v[252:253]')
    for r in range(152):
        p(f'v_mov_b32 v{r}, 0')


def attn_epilogue(p, th=None):
    cvt = lambda d, a: p(f'v_cvt_pk_bf16_f32 v{d}, v{a}, v{a+1}')
    tg = '' if th is None else str(th)
    kk = list(range(5)) if th in (None, 0) else [1, 2, 3, 4]
    vk = list(range(5)) if th in (None, 1) else [1, 2, 3, 4]
    p('s_nop 7')

    def pack_k(kts):
        if CFG['PEEL']:
            return
        for kt in kts:
            for h in range(2):
                b = A_KM(h, kt)
                cvt(b, b)
                cvt(b + 1, b + 2)
            t = A_QKT(kt)
            cvt(t, t)
            cvt(t + 1, t + 2)
        for kt in kts:
            t, k0 = A_QKT(kt), A_KM(0, kt)
            p(f'v_mov_b32 v{k0+2}, v{t}')
            p(f'v_mov_b32 v{k0+3}, v{t+1}')

    def tails_k(kts):
        for kt in kts:
            t, k0 = A_QKT(kt), A_KM(0, kt)
            p(f'v_permlane32_swap_b32 v{t}, v{k0+2}')
            p(f'v_permlane32_swap_b32 v{t+1}, v{k0+3}')

    def copy_k(kts):
        for kt in kts:
            k0, k1 = A_KM(0, kt), A_KM(1, kt)
            p(f'v_mov_b32 v{k1+2}, v{k0+2}')
            p(f'v_mov_b32 v{k1+3}, v{k0+3}')

    def pack_v():
        for kt in vk:
            for base, b in ((A_VM(0, 0), A_VM(0, kt)), (A_VM(1, 0), A_VM(1, kt)), (A_VT(0), A_VT(kt))):
                cvt(base + 2 * kt, b)
                cvt(base + 2 * kt + 1, b + 2)

    vbases = (A_VM(0, 0), A_VM(1, 0), A_VT(0))
    if th == 0:
        pack_k([4])
        pack_v()
        tails_k([4])
        rest = [0, 1, 2, 3]
        pack_k(rest[:1])
        copy_k([4])
        p(f'ds_write_b128 v249, v[{A_KM(0,4)}:{A_KM(0,4)+3}]')
        p(f'ds_write_b128 v249, v[{A_KM(1,4)}:{A_KM(1,4)+3}] offset:1024')
        for i, vb in enumerate(vbases):
            p(f'ds_write_b64 v250, v[{vb+8}:{vb+9}] offset:{2048 + 512*i}')
        pack_k(rest[1:])
        p('s_waitcnt lgkmcnt(0)')
        p('v_mov_b32 v252, 1')
        p('ds_write_b32 v251, v252')
        tails_k(rest)
    elif th == 1:
        pack_v()
        for i, vb in enumerate(vbases):
            p(f'ds_write_b64 v250, v[{vb}:{vb+1}] offset:{4096 + 512*i}')
        rest = [1, 2, 3, 4]
        pack_k(rest)
        p('s_waitcnt lgkmcnt(0)')
        p('v_mov_b32 v252, 1')
        p('ds_write_b32 v251, v252 offset:4')
        tails_k(rest)
    else:
        rest = [0, 1, 2, 3, 4]
        pack_k(rest)
        pack_v()
        tails_k(rest)
    for h in range(2):
        for t in range(4):
            b = A_QM(h, t)
            if not CFG['PEEL']:
                cvt(b, b)
                cvt(b + 1, b + 2)
    copy_k(rest)
    p('s_mov_b32 s60, 0x0000ffff')
    p('s_mov_b32 s61, 0')
    p('s_mov_b32 s62, 0xffff0000')
    p('s_mov_b32 s63, 0')
    for t in range(4):
        for h in range(2):
            q, x = A_QM(h, t), A_QKT(t + 1)
            p(f'v_cndmask_b32 v{q+2}, 0, v{x}, s[{60+2*h}:{61+2*h}]')
            p(f'v_cndmask_b32 v{q+3}, 0, v{x+1}, s[{60+2*h}:{61+2*h}]')
    S = lambda t, h: 152 + (t * 2 + h) * 8

    def qk(t):
        for h in range(2):
            q = A_QM(h, t)
            bp = V_BFIRST if t == 0 else V_BPREV
            kp, kc = A_KM(h, t), A_KM(h, t + 1)
            p(f'v_mfma_f32_16x16x32_bf16 v[{S(t,h)}:{S(t,h)+3}], v[{kp}:{kp+3}], v[{q}:{q+3}], v[{bp}:{bp+3}]')
            p(f'v_mfma_f32_16x16x32_bf16 v[{S(t,h)+4}:{S(t,h)+7}], v[{kc}:{kc+3}], v[{q}:{q+3}], v[{V_BCUR}:{V_BCUR+3}]')

    for t in (3, 2, 1):
        qk(t)
    if CFG['PROF'] == 6:
        p('s_memtime s[72:73]')
    if th is not None:
        p.label(f'L_xspin{th}')
        p(f'ds_read_b32 v252, v251 offset:{4 if th == 0 else 0}')
        p('s_waitcnt lgkmcnt(0)')
        p('v_readfirstlane_b32 s70, v252')
        p('s_cmp_eq_u32 s70, 0')
        p(f's_cbranch_scc1 L_xspin{th}')
        if th == 1:
            p(f'ds_read_b128 v[{A_KM(0,0)}:{A_KM(0,0)+3}], v249')
            p(f'ds_read_b128 v[{A_KM(1,0)}:{A_KM(1,0)+3}], v249 offset:1024')
        for i, vb in enumerate(vbases):
            p(f'ds_read_b64 v[{vb}:{vb+1}], v250 offset:{(2048 if th == 1 else 4096) + 512*i}')
        p('s_waitcnt lgkmcnt(0)')
    qk(0)
    if CFG['PROF'] == 6:
        p('s_memtime s[74:75]')
    cs = (20 ** -0.5) * math.log2(math.e)
    p(f's_mov_b32 s64, {hexf(cs)}')
    p(f's_mov_b32 s65, {hexf(cs)}')
    inst = [(t, h) for t in (3, 2, 1, 0) for h in range(2)]
    for (t, h) in inst:
        s = S(t, h)
        p(f'v_max3_f32 v{s}, v{s}, v{s+1}, v{s+4}')
        p(f'v_max3_f32 v{s+2}, v{s+2}, v{s+3}, v{s+6}')
    for (t, h) in inst:
        s = S(t, h)
        p(f'v_max_f32 v{s}, v{s}, v{s+5}')
        p(f'v_max_f32 v{s+1}, v{s+2}, v{s+7}')
    for (t, h) in inst:
        s = S(t, h)
        p(f'v_max_f32 v{s+2}, v{s}, v{s+1}')

    def cross(groups, op, mid):
        for (A, B, C, D) in groups:
            p(f'v_permlane32_swap_b32 v{A}, v{B}')
            p(f'v_permlane32_swap_b32 v{C}, v{D}')
        for (A, B, C, D) in groups:
            p(f'{op} v{A}, v{A}, v{B}')
            p(f'{op} v{C}, v{C}, v{D}')
        for (A, B, C, D) in groups:
            p(f'v_permlane16_swap_b32 v{A}, v{C}')
        for (A, B, C, D) in groups:
            p(f'{op} v{A}, v{A}, v{C}')
        for (A, B, C, D) in groups:
            mid(A)
        for (A, B, C, D) in groups:
            p(f'v_mov_b32 v{C}, v{A}')
        for (A, B, C, D) in groups:
            p(f'v_permlane16_swap_b32 v{A}, v{C}')
        for (A, B, C, D) in groups:
            p(f'v_mov_b32 v{B}, v{A}')
            p(f'v_mov_b32 v{D}, v{C}')
        for (A, B, C, D) in groups:
            p(f'v_permlane32_swap_b32 v{A}, v{B}')
            p(f'v_permlane32_swap_b32 v{C}, v{D}')

    grp = lambda o: [tuple(S(t, h) + o for (t, h) in inst[0:4]), tuple(S(t, h) + o for (t, h) in inst[4:8])]
    cross(grp(2), 'v_max_f32', lambda A: p(f'v_mul_f32 v{A}, s64, v{A}'))
    for (t, h) in inst:
        s = S(t, h)
        p(f'v_pk_fma_f32 v[{s}:{s+1}], v[{s}:{s+1}], s[64:65], v[{s+2}:{s+3}] op_sel_hi:[1,1,0] neg_lo:[0,0,1] neg_hi:[0,0,1]')
    for (t, h) in inst:
        s = S(t, h)
        p(f'v_exp_f32 v{s}, v{s}')
        p(f'v_exp_f32 v{s+1}, v{s+1}')
    for (t, h) in inst:
        s = S(t, h)
        p(f'v_add_f32 v{s+2}, v{s}, v{s+1}')
    cross(grp(2), 'v_add_f32', lambda A: p(f'v_rcp_f32 v{A}, v{A}'))
    for (t, h) in inst:
        s = S(t, h)
        p(f'v_pk_mul_f32 v[{s}:{s+1}], v[{s}:{s+1}], v[{s+2}:{s+3}] op_sel_hi:[1,0]')
    for (t, h) in inst:
        s = S(t, h)
        p(f'v_cvt_pk_bf16_f32 v{s+2}, v{s}, v{s+1}')
    if CFG['PROF'] == 6:
        p('s_memtime s[76:77]')

    def perm(i):
        s = S(*inst[i])
        for k in range(4):
            p(f'v_perm_b32 v{s+4+k}, v{s+2}, v{s+2}, v{V_SEL+k}')

    def pv(i):
        t, h = inst[i]
        s = S(t, h)
        va, vt = A_VM(h, 0) + 2 * t, A_VT(0) + 2 * t
        om, ot = A_QM(h, t), A_KM(h, t)
        p(f'v_mfma_f32_16x16x32_bf16 v[{om}:{om+3}], v[{va}:{va+3}], v[{s+4}:{s+7}], 0')
        p(f'v_mfma_f32_16x16x32_bf16 v[{ot}:{ot+3}], v[{vt}:{vt+3}], v[{s+4}:{s+7}], 0')

    def pack_main(t):
        for h in range(2):
            o = A_QM(h, t)
            d = S(t, 0) + 2 * h
            p(f'v_cvt_pk_bf16_f32 v{d}, v{o}, v{o+1}')
            p(f'v_cvt_pk_bf16_f32 v{d+1}, v{o+2}, v{o+3}')
        d = S(t, 0)
        p(f's_add_u32 s68, s66, {t*20480}')
        p(f'buffer_store_dwordx4 v[{d}:{d+3}], v248, s[{SRD_WS}:{SRD_WS+3}], s68 offen {CFG["STFO"]}')

    def pack_tail(t):
        d = S(t & 2, 1) + 2 * (t & 1)
        o0, o1 = A_KM(0, t), A_KM(1, t)
        for rr in range(4):
            p(f'v_cndmask_b32 v{o0+rr}, v{o0+rr}, v{o1+rr}, s[62:63]')
        p(f'v_cvt_pk_bf16_f32 v{d}, v{o0}, v{o0+1}')
        p(f'v_cvt_pk_bf16_f32 v{d+1}, v{o0+2}, v{o0+3}')

    perm(0)
    perm(1)
    for i in range(8):
        pv(i)
        if i + 2 < 8:
            perm(i + 2)
        if i in (5, 7):
            pass
    for t in (3, 2):
        pack_main(t)
    for t in (3, 2):
        pack_tail(t)
    pack_main(1)
    pack_tail(1)
    pack_main(0)
    pack_tail(0)
    p('s_mov_b32 exec_hi, 0')
    for pr in range(2):
        d = S(2 * pr, 1)
        p(f's_add_u32 s68, s67, {pr*20480}')
        p(f'buffer_store_dwordx4 v[{d}:{d+3}], v248, s[{SRD_WS}:{SRD_WS+3}], s68 offen {CFG["STFO"]}')
    p('s_mov_b32 exec_hi, -1')


def attn_out_addr(p):
    p(f's_lshl_b32 s65, s{S_RB}, 3')
    p('s_lshl_b32 s66, s56, 2')
    p('s_add_u32 s65, s65, s66')
    p('s_mul_i32 s66, s65, 20')
    p(f's_lshl_b32 s67, s{S_CG}, 1')
    p('s_add_u32 s67, s67, s55')
    p('s_add_u32 s66, s66, s67')
    p('s_lshl_b32 s66, s66, 10')
    p(f's_add_u32 s66, s66, {OA_OFF}')
    p(f's_and_b32 s67, s{S_CG}, 1')
    p('s_lshl_b32 s67, s67, 1')
    p('s_add_u32 s67, s67, s65')
    p('s_mul_i32 s67, s67, 20')
    p(f's_lshr_b32 s68, s{S_CG}, 1')
    p('s_add_u32 s67, s67, s68')
    p('s_add_u32 s67, s67, 16')
    p('s_lshl_b32 s67, s67, 10')
    p('s_lshl_b32 s68, s55, 9')
    p('s_add_u32 s67, s67, s68')
    p(f's_add_u32 s67, s67, {OA_OFF}')


def ffn_prologue(p):
    p(f's_and_b32 s55, s{S_WAVE}, 1')
    p(f's_lshr_b32 s56, s{S_WAVE}, 1')
    p('v_and_b32 v3, 15, v2')
    p('v_lshrrev_b32 v4, 4, v2')
    p('v_lshrrev_b32 v5, 1, v3')
    p('v_xor_b32 v5, v5, v4')
    p('v_lshlrev_b32 v5, 4, v5')
    p('v_lshl_add_u32 v5, v3, 7, v5')
    p('s_lshl_b32 s57, s56, 13')
    p(f'v_add_u32 v{V_X0}, s57, v5')
    p(f'v_xor_b32 v{V_X1}, 64, v{V_X0}')
    p('v_lshrrev_b32 v5, 5, v2')
    p('v_lshlrev_b32 v5, 4, v5')
    p('v_bfe_u32 v6, v2, 4, 1')
    p('v_lshl_add_u32 v5, v6, 2, v5')
    p('v_bfe_u32 v6, v2, 2, 2')
    p('v_add_u32 v5, v5, v6')
    p(f'v_mul_u32_u24 v5, {WROW}, v5')
    p(f'v_add_u32 v5, {XREG}, v5')
    p('v_and_b32 v6, 3, v2')
    p('v_lshl_add_u32 v5, v6, 3, v5')
    p('s_lshl_b32 s57, s55, 8')
    p(f'v_add_u32 v{V_W}, s57, v5')
    p('s_lshl_b32 s57, s55, 5')
    p('s_add_u32 s57, s57, 192')
    p(f'v_add_u32 v{V_WA}, s57, v5')
    p(f's_mul_i32 s57, s{S_CG}, 448')
    p('v_lshlrev_b32 v5, 3, v4')
    p('v_add_u32 v5, s57, v5')
    p('s_lshl_b32 s57, s55, 8')
    p('v_add_u32 v6, s57, v5')
    p('s_lshl_b32 s57, s55, 5')
    p('s_add_u32 s57, s57, 192')
    p('v_add_u32 v7, s57, v5')
    p('v_lshlrev_b32 v248, 4, v2')
    p('s_waitcnt lgkmcnt(0)')
    srd(p, SRD_A, S_B1, 3456)
    for f in range(7):
        if f < 6:
            p(f'buffer_load_dwordx2 v[{200+2*f}:{201+2*f}], v6, s[{SRD_A}:{SRD_A+3}], 0 offen offset:{32*f}')
        else:
            p(f'buffer_load_dwordx2 v[{200+2*f}:{201+2*f}], v7, s[{SRD_A}:{SRD_A+3}], 0 offen')
    tlb_touch(p, 'F')
    p('s_mov_b32 s58, 0xffff0000')
    p('s_waitcnt vmcnt(0)')
    for f in range(7):
        for t in range(4):
            a = F_ACC(f, t)
            p(f'v_lshlrev_b32 v{a}, 16, v{200+2*f}')
            p(f'v_and_b32 v{a+1}, s58, v{200+2*f}')
            p(f'v_lshlrev_b32 v{a+2}, 16, v{201+2*f}')
            p(f'v_and_b32 v{a+3}, s58, v{201+2*f}')


def ffn_epilogue(p):
    k1 = -2.0 * math.sqrt(2.0 / math.pi) * math.log2(math.e)
    k2 = k1 * 0.044715
    C1, C2, ONE = 240, 242, 244
    for r in (0, 1):
        p(f'v_mov_b32 v{C1+r}, {hexf(k1)}')
        p(f'v_mov_b32 v{C2+r}, {hexf(k2)}')
        p(f'v_mov_b32 v{ONE+r}, 1.0')
    p('s_nop 5')
    p(f's_lshl_b32 s65, s{S_RB}, 3')
    p('s_lshl_b32 s66, s56, 2')
    p('s_add_u32 s65, s65, s66')
    p('s_mul_i32 s65, s65, 54')
    p(f's_mul_i32 s66, s{S_CG}, 7')
    p('s_add_u32 s67, s66, 3')
    p('s_lshl_b32 s68, s55, 2')
    p('s_add_u32 s66, s66, s68')
    p('s_add_u32 s69, s65, s67')
    p('s_lshl_b32 s69, s69, 10')
    p('s_lshl_b32 s68, s55, 3')
    p('s_add_u32 s69, s69, s68')
    p('s_add_u32 s68, s65, s66')
    p('s_lshl_b32 s68, s68, 10')

    def gelu(regs, tmp):
        for i, x in enumerate(regs):
            p(f'v_pk_mul_f32 v[{tmp+4*i}:{tmp+4*i+1}], v[{x}:{x+1}], v[{x}:{x+1}]')
        for i, x in enumerate(regs):
            p(f'v_pk_fma_f32 v[{tmp+4*i}:{tmp+4*i+1}], v[{tmp+4*i}:{tmp+4*i+1}], v[{C2}:{C2+1}], v[{C1}:{C1+1}]')
        for i, x in enumerate(regs):
            p(f'v_pk_mul_f32 v[{tmp+4*i}:{tmp+4*i+1}], v[{tmp+4*i}:{tmp+4*i+1}], v[{x}:{x+1}]')
        for i, x in enumerate(regs):
            p(f'v_exp_f32 v{tmp+4*i}, v{tmp+4*i}')
            p(f'v_exp_f32 v{tmp+4*i+1}, v{tmp+4*i+1}')
        for i, x in enumerate(regs):
            p(f'v_pk_add_f32 v[{tmp+4*i}:{tmp+4*i+1}], v[{tmp+4*i}:{tmp+4*i+1}], v[{ONE}:{ONE+1}]')
        for i, x in enumerate(regs):
            p(f'v_rcp_f32 v{tmp+4*i}, v{tmp+4*i}')
            p(f'v_rcp_f32 v{tmp+4*i+1}, v{tmp+4*i+1}')
        for i, x in enumerate(regs):
            p(f'v_pk_mul_f32 v[{x}:{x+1}], v[{tmp+4*i}:{tmp+4*i+1}], v[{x}:{x+1}]')

    OUT = 184
    n = 0
    for pr in range(3):
        p(f's_add_u32 s70, s66, {pr}')
        p('s_cmp_ge_u32 s70, 54')
        p(f's_cbranch_scc1 L_skip_pair{pr}')
        for t in range(4):
            a, b = F_ACC(2 * pr, t), F_ACC(2 * pr + 1, t)
            gelu([a, a + 2, b, b + 2], 152)
            o = OUT + 4 * (n % 4)
            n += 1
            p(f'v_cvt_pk_bf16_f32 v{o}, v{a}, v{a+1}')
            p(f'v_cvt_pk_bf16_f32 v{o+1}, v{a+2}, v{a+3}')
            p(f'v_cvt_pk_bf16_f32 v{o+2}, v{b}, v{b+1}')
            p(f'v_cvt_pk_bf16_f32 v{o+3}, v{b+2}, v{b+3}')
            p(f's_add_u32 s70, s68, {pr*1024 + t*54*1024}')
            p(f'buffer_store_dwordx4 v[{o}:{o+3}], v248, s[{SRD_WS}:{SRD_WS+3}], s70 offen {CFG["STFH"]}')
        p.label(f'L_skip_pair{pr}')
    for t2 in range(2):
        a, b = F_ACC(6, 2 * t2), F_ACC(6, 2 * t2 + 1)
        gelu([a, a + 2, b, b + 2], 152)
        for u, x in enumerate((a, b)):
            o = OUT + 16 + 2 * ((2 * t2 + u) % 2)
            p(f'v_cvt_pk_bf16_f32 v{o}, v{x}, v{x+1}')
            p(f'v_cvt_pk_bf16_f32 v{o+1}, v{x+2}, v{x+3}')
            p(f's_add_u32 s70, s69, {(2*t2+u)*54*1024}')
            p(f'buffer_store_dwordx2 v[{o}:{o+1}], v248, s[{SRD_WS}:{SRD_WS+3}], s70 offen {CFG["STFH"]}')


def gen_k1():
    p = Prog()
    p('s_cmp_ge_u32 s2, 256')
    p('s_cbranch_scc1 L_k1_end')
    p('s_load_dwordx4 s[4:7], s[0:1], 0')
    p('s_load_dwordx4 s[8:11], s[0:1], 16')
    p('s_load_dwordx4 s[12:15], s[0:1], 32')
    p('s_load_dwordx4 s[16:19], s[0:1], 48')
    p('s_load_dwordx2 s[20:21], s[0:1], 64')
    p('s_load_dwordx2 s[22:23], s[0:1], 88')
    if CFG['TT']:
        p('s_load_dwordx2 s[100:101], s[0:1], 72')
    if CFG['PROF']:
        p('s_memrealtime s[88:89]')
        p('s_memtime s[82:83]')
    p('v_lshrrev_b32 v1, 6, v0')
    p('v_and_b32 v2, 63, v0')
    p(f'v_readfirstlane_b32 s{S_WAVE}, v1')
    if CFG['SWAPW']:
        p(f's_add_u32 s{S_WAVE}, s{S_WAVE}, 4')
        p(f's_and_b32 s{S_WAVE}, s{S_WAVE}, 7')
    k1_decode(p)
    p(f's_cmp_eq_u32 s{S_WAVE}, 0')
    p('s_cbranch_scc0 L_nopf')
    p('v_mov_b32 v10, v2')
    code_prefetch(p, 'L_k1_body', 'L_k1_end', CFG.get('K1_BYTES', 20480), 10, 255, 84, 'k1')
    p.label('L_nopf')
    p.label('L_k1_body')
    p(f's_cmp_ge_u32 s{S_WAVE}, 4')
    p('s_cbranch_scc0 L_consumer')
    if CFG['LDFIRST']:
        p(f's_cmp_eq_u32 s{S_TYPE}, 0')
        p('s_cbranch_scc0 L_loader_F')
        k1_loader(p, True)
        k1_loader(p, False)
    else:
        p(f's_cmp_eq_u32 s{S_TYPE}, 0')
        p('s_cbranch_scc1 L_loader_A')
        p('s_branch L_loader_F')
    p.label('L_consumer')
    if CFG['PRIO']:
        p(f's_setprio {CFG["PRIO"]}')
    p(f's_cmp_eq_u32 s{S_TYPE}, 0')
    p('s_cbranch_scc0 L_cons_F')
    p('s_movk_i32 s99, 256')
    prefetch_setup(p, True)
    p('s_waitcnt lgkmcnt(0)')
    tlb_touch(p, 'A')
    attn_prologue(p)
    attn_out_addr(p)
    srd(p, SRD_WS, S_WS, WS_USED)
    srd(p, SRD_X, S_AX, 2048 * 1280)
    srd(p, SRD_W, S_WQKV, 640 * 3840)
    p('s_waitcnt lgkmcnt(0)')
    stamp(p, 0)
    p('s_barrier')
    stamp(p, 1)
    prefetch_issue(p, True)
    if CFG['M35']:
        p('s_cmp_eq_u32 s56, 0')
        p('s_cbranch_scc0 L_attn_th1')
        for th in (0, 1):
            if th:
                p.label('L_attn_th1')
            consumer_loop(p, True, th)
            stamp(p, 2)
            attn_epilogue(p, th)
            stamp(p, 3)
            if CFG['PROF']:
                prof_store(p, 4, 'CA', SRD_WS)
            p('s_endpgm')
    else:
        consumer_loop(p, True)
        stamp(p, 2)
        attn_epilogue(p)
        stamp(p, 3)
        if CFG['PROF']:
            prof_store(p, 4, 'CA', SRD_WS)
        p('s_endpgm')
    p.label('L_cons_F')
    p('s_movk_i32 s99, 256')
    prefetch_setup(p, False)
    ffn_prologue(p)
    srd(p, SRD_WS, S_WS, WS_USED)
    srd(p, SRD_X, S_AX, 2048 * 1280)
    srd(p, SRD_W, S_W1, 640 * 3456)
    p('s_waitcnt lgkmcnt(0)')
    stamp(p, 0)
    p('s_barrier')
    stamp(p, 1)
    prefetch_issue(p, False)
    consumer_loop(p, False)
    stamp(p, 2)
    ffn_epilogue(p)
    stamp(p, 3)
    if CFG['PROF']:
        prof_store(p, 4, 'CF', SRD_WS)
    p('s_endpgm')
    if not CFG['LDFIRST']:
        k1_loader(p, True)
        k1_loader(p, False)
    p.label('L_k1_end')
    p('s_endpgm')
    return p


K2_LAST = {}


def k2_small_loads(p, vg, vb, vb2):
    p(f'buffer_load_dwordx2 v[{K2_G}:{K2_G+1}], v{vg}, s[12:15], 0 offen')
    p(f'buffer_load_dwordx4 v[{K2_B2}:{K2_B2+3}], v{vb}, s[16:19], 0 offen')
    p(f'buffer_load_dwordx4 v[{K2_B2+4}:{K2_B2+7}], v{vb}, s[16:19], 0 offen offset:64')
    p(f'buffer_load_dwordx2 v[{K2_B2+8}:{K2_B2+9}], v{vb2}, s[16:19], 0 offen offset:128')


def k2_stream(p, wave_a):
    NB = CFG['NBUF']
    tag = 'a' if wave_a else 'b'
    nsteps = 20 if wave_a else 18
    ACC = lambda t, f: K2_ACC + (t * 5 + f) * 4
    BA = lambda b, t: 36 * b + 4 * t
    BW = lambda b, f: 36 * b + 16 + 4 * f

    def ld_w(b, f):
        if f < 4:
            p(f'buffer_load_dwordx4 v[{BW(b,f)}:{BW(b,f)+3}], v{K2_VL}, s[12:15], s21 offen offset:{1024*f} {CFG["K2LDF"]}')
        else:
            p(f'buffer_load_dwordx4 v[{BW(b,f)}:{BW(b,f)+3}], v{K2_VL2}, s[12:15], s21 offen {CFG["K2LDF"]}')

    def ld_a(b, t):
        p(f'buffer_load_dwordx4 v[{BA(b,t)}:{BA(b,t)+3}], v{K2_VA+t}, s[12:15], s20 offen {CFG["K2LDF"]}')

    nrot = 16 if wave_a else 18
    state = {'n': 0}

    def adv():
        state['n'] += 1
        p('s_add_u32 s20, s20, 1024')
        p('s_add_u32 s21, s21, 5120')
        if not CFG['ROT2']:
            return
        if state['n'] < nrot:
            p('s_add_u32 s22, s22, 1')
            p(f's_cmp_eq_u32 s22, {nrot}')
            p(f's_cselect_b32 s23, {nrot*1024}, 0')
            p('s_sub_u32 s20, s20, s23')
            p('s_mul_i32 s23, s23, 5')
            p('s_sub_u32 s21, s21, s23')
        elif state['n'] == nrot and wave_a:
            p('s_mov_b32 s20, s34')
            p('s_mov_b32 s21, s35')

    for s in range(min(NB, nsteps)):
        for f in range(5):
            ld_w(s % NB, f)
        for t in range(4):
            ld_a(s % NB, t)
        adv()
    if CFG['GLATE']:
        k2_small_loads(p, 246, 247, 248)
    for r in range(80):
        p(f'v_mov_b32 v{K2_ACC+r}, 0')
    stamp(p, 1)
    for s in range(nsteps):
        b = s % NB
        issued = min(s + NB, nsteps)
        newer = (issued - s - 1) * 9
        if CFG['GLATE'] and s < NB:
            newer += 4
        p(f's_waitcnt vmcnt({newer})')
        more = s + NB < nsteps
        tail = wave_a and s >= 16
        amap = [0, 1, 2, 3]
        if tail:
            for (x, y) in ((0, 2), (1, 3)):
                p(f'v_swap_b32 v{BA(b,x)+2}, v{BA(b,y)}')
                p(f'v_swap_b32 v{BA(b,x)+3}, v{BA(b,y)+1}')
            amap = [0, 2, 1, 3]
        if CFG['K2RED'] == 2 and s == nsteps - 1:
            def last_step(w, b=b, amap=amap):
                p(f'v_add_u32 v220, {w*5120}, v{K2_VL}')
                p(f'v_add_u32 v221, {w*5120 + 40960}, v{K2_VL}')
                order = [t for t in range(4) if t != w] + [w]
                if w != 0:
                    order = [0] + [t for t in (1, 2, 3) if t != w] + [w]
                pend = []
                for k, t in enumerate(order):
                    for f in range(5):
                        acc = ACC(t, f)
                        p(f'v_mfma_f32_16x16x32_bf16 v[{acc}:{acc+3}], v[{BW(b,f)}:{BW(b,f)+3}], v[{BA(b,amap[t])}:{BA(b,amap[t])+3}], v[{acc}:{acc+3}]')
                        if pend and k >= 2:
                            p(pend.pop(0))
                    if t != w:
                        pend += [f'ds_write_b128 v{220 + (t >> 1)}, v[{ACC(t,f)}:{ACC(t,f)+3}] offset:{(t & 1)*20480 + f*1024}' for f in range(5)]
                for ins in pend:
                    p(ins)
            if wave_a:
                last_step(0)
            else:
                K2_LAST['b'] = last_step
            continue
        for f in range(5):
            for t in range(4):
                acc = ACC(t, f)
                if not CFG['K2NOMFMA']:
                    p(f'v_mfma_f32_16x16x32_bf16 v[{acc}:{acc+3}], v[{BW(b,f)}:{BW(b,f)+3}], v[{BA(b,amap[t])}:{BA(b,amap[t])+3}], v[{acc}:{acc+3}]')
            if more and CFG['K2ORD'] == 0:
                ld_w(b, f)
            if more and CFG['K2ORD'] == 2 and f >= 1:
                ld_w(b, f - 1)
        if more:
            if CFG['K2ORD'] == 1:
                for f in range(5):
                    ld_w(b, f)
            if CFG['K2ORD'] == 2:
                ld_w(b, 4)
            for t in range(4):
                ld_a(b, t)
            adv()
    if CFG['K2RED'] == 2:
        p('s_branch L_k2_red_a' if wave_a else 's_branch L_k2_red_b')
    else:
        p('s_branch L_k2_reduce')


K2_ACC = 144
K2_VL, K2_VL2, K2_VA = 224, 225, 226
K2_G, K2_B2 = 230, 232
K2_LDS = 4 * 4 * 5120 + 64


def k2_reduce2(p):
    assert CFG['NBUF'] == 3
    ACC = lambda t, f: K2_ACC + (t * 5 + f) * 4
    R1 = lambda f: 4 * f
    R2 = lambda f: 20 + 4 * f
    R3 = lambda j: 40 + 4 * j
    R4 = lambda j: 48 + 4 * j
    AR = lambda f: 56 + 4 * f
    B = lambda f: 188 + 4 * f
    GP, OP, O0 = 208, 210, 212
    FL, ONE, FA, WA, WB, RB = 214, 218, 219, 220, 221, 222
    O = 80
    FOFF = 81920

    def common(w):
        stamp(p, 2)
        p(f'v_add_u32 v{WA}, {w*5120}, v{K2_VL}')
        p(f'v_add_u32 v{WB}, {w*5120 + 40960}, v{K2_VL}')
        p(f'v_add_u32 v{RB}, {w*20480}, v{K2_VL}')
        p(f'v_mov_b32 v{FA}, {FOFF}')
        p(f'v_mov_b32 v{ONE}, 1')
        p('s_nop 7')

    def write_tiles(tiles):
        for t in tiles:
            for f in range(5):
                p(f'ds_write_b128 v{WA + (t >> 1)}, v[{ACC(t,f)}:{ACC(t,f)+3}] offset:{(t & 1)*20480 + f*1024}')

    def set_flag(i):
        p('s_waitcnt lgkmcnt(0)')
        p(f'ds_write_b32 v{FA}, v{ONE} offset:{4*i}')

    def spin(base, idxs, lbl):
        p.label(lbl)
        p(f'ds_read_b128 v[{FL}:{FL+3}], v{FA} offset:{base}')
        p('s_waitcnt lgkmcnt(0)')
        r = FL + idxs[0]
        for k in idxs[1:]:
            p(f'v_and_b32 v{FL+idxs[0]}, v{r}, v{FL+k}')
        p(f'v_readfirstlane_b32 s62, v{FL+idxs[0]}')
        p('s_cmp_eq_u32 s62, 0')
        p(f's_cbranch_scc1 {lbl}')

    def unpack():
        p('s_mov_b32 s63, 0xffff0000')
        for pr in range(2):
            for d in range(4):
                src = K2_B2 + 4 * pr + d
                f, r = 2 * pr + (d >> 1), 2 * (d & 1)
                p(f'v_lshlrev_b32 v{B(f)+r}, 16, v{src}')
                p(f'v_and_b32 v{B(f)+r+1}, s63, v{src}')
        for d in range(2):
            src = K2_B2 + 8 + d
            p(f'v_lshlrev_b32 v{B(4)+2*d}, 16, v{src}')
            p(f'v_and_b32 v{B(4)+2*d+1}, s63, v{src}')

    def pairs(lo_hi):
        for dst, src in lo_hi:
            p(f'v_mov_b32 v{dst}, v{src}')
            p(f'v_mov_b32 v{dst+1}, v{src}')

    def store(res):
        for pr in range(2):
            for u in range(2):
                a = res(2 * pr + u)
                p(f'v_cvt_pk_bf16_f32 v{O+4*pr+2*u}, v{a}, v{a+1}')
                p(f'v_cvt_pk_bf16_f32 v{O+4*pr+2*u+1}, v{a+2}, v{a+3}')
            p(f'buffer_store_dwordx4 v[{O+4*pr}:{O+4*pr+3}], v242, s[28:31], 0 offen offset:{64*pr} {CFG["OUTF"]}')
        a = res(4)
        p(f'v_cvt_pk_bf16_f32 v{O+8}, v{a}, v{a+1}')
        p(f'v_cvt_pk_bf16_f32 v{O+9}, v{a+2}, v{a+3}')
        p(f'buffer_store_dwordx2 v[{O+8}:{O+9}], v243, s[28:31], 0 offen offset:128 {CFG["OUTF"]}')

    def finish():
        stamp(p, 3)
        if CFG['PROF']:
            prof_store(p, 4, 'K2', 12)
        p('s_endpgm')

    p.label('L_k2_red_a')
    common(0)
    set_flag(0)
    pairs([(GP, K2_G)])
    spin(16, [1, 2, 3], 'L_k2_spin_a')
    for f in range(5):
        p(f'ds_read_b128 v[{R1(f)}:{R1(f)+3}], v{K2_VL} offset:{f*1024}')
    for f in range(5):
        p(f's_waitcnt lgkmcnt({4-f})')
        for r in (0, 2):
            a = ACC(0, f) + r
            p(f'v_pk_fma_f32 v[{a}:{a+1}], v[{a}:{a+1}], v[{GP}:{GP+1}], v[{R1(f)+r}:{R1(f)+r+1}]')
    store(lambda f: ACC(0, f))
    finish()
    p.label('L_k2_red_b')
    for w in (1, 2, 3):
        if w < 3:
            p(f's_cmp_eq_u32 s{S_WAVE}, {w}')
            p(f's_cbranch_scc0 L_k2_red_b{w+1}')
        K2_LAST['b'](w)
        common(w)
        set_flag(w)
        unpack()
        pairs([(GP, K2_G), (OP, K2_G + 1), (O0, 245)])
        o1, o2 = [x for x in (1, 2, 3) if x != w]
        spin(0, [o1, o2], f'L_k2_spin_b{w}')
        sub = {1: [0, 1], 2: [2, 3], 3: [4]}[w]
        for j, f in enumerate(sub):
            p(f'ds_read_b128 v[{R3(j)}:{R3(j)+3}], v{K2_VL} offset:{o1*5120 + f*1024}')
            p(f'ds_read_b128 v[{R4(j)}:{R4(j)+3}], v{K2_VL} offset:{o2*5120 + f*1024}')
        for f in range(5):
            p(f'ds_read_b128 v[{R1(f)}:{R1(f)+3}], v{RB} offset:{o1*5120 + f*1024}')
            p(f'ds_read_b128 v[{R2(f)}:{R2(f)+3}], v{RB} offset:{o2*5120 + f*1024}')
        p('s_waitcnt lgkmcnt(10)')
        for j, f in enumerate(sub):
            for r in (0, 2):
                a = ACC(0, f) + r
                p(f'v_pk_add_f32 v[{R3(j)+r}:{R3(j)+r+1}], v[{R3(j)+r}:{R3(j)+r+1}], v[{R4(j)+r}:{R4(j)+r+1}]')
                p(f'v_pk_add_f32 v[{a}:{a+1}], v[{a}:{a+1}], v[{B(f)+r}:{B(f)+r+1}]')
            for r in (0, 2):
                a = ACC(0, f) + r
                p(f'v_pk_add_f32 v[{a}:{a+1}], v[{a}:{a+1}], v[{R3(j)+r}:{R3(j)+r+1}]')
                p(f'v_pk_mul_f32 v[{a}:{a+1}], v[{a}:{a+1}], v[{O0}:{O0+1}]')
        for j, f in enumerate(sub):
            p(f'ds_write_b128 v{K2_VL}, v[{ACC(0,f)}:{ACC(0,f)+3}] offset:{f*1024}')
        set_flag(4 + w)
        for f in range(5):
            for r in (0, 2):
                a = ACC(w, f) + r
                p(f'v_pk_add_f32 v[{R1(f)+r}:{R1(f)+r+1}], v[{R1(f)+r}:{R1(f)+r+1}], v[{R2(f)+r}:{R2(f)+r+1}]')
                p(f'v_pk_add_f32 v[{a}:{a+1}], v[{a}:{a+1}], v[{B(f)+r}:{B(f)+r+1}]')
            for r in (0, 2):
                a = ACC(w, f) + r
                p(f'v_pk_add_f32 v[{a}:{a+1}], v[{a}:{a+1}], v[{R1(f)+r}:{R1(f)+r+1}]')
                p(f'v_pk_mul_f32 v[{a}:{a+1}], v[{a}:{a+1}], v[{OP}:{OP+1}]')
        spin(0, [0], f'L_k2_spin_c{w}')
        for f in range(5):
            p(f'ds_read_b128 v[{AR(f)}:{AR(f)+3}], v{RB} offset:{f*1024}')
        for f in range(5):
            p(f's_waitcnt lgkmcnt({4-f})')
            for r in (0, 2):
                a = ACC(w, f) + r
                p(f'v_pk_fma_f32 v[{a}:{a+1}], v[{AR(f)+r}:{AR(f)+r+1}], v[{GP}:{GP+1}], v[{a}:{a+1}]')
        store(lambda f: ACC(w, f))
        finish()
        if w < 3:
            p.label(f'L_k2_red_b{w+1}')


def gen_k2():
    global K2_ACC
    NB = CFG['NBUF']
    assert NB * 36 + 80 <= 224
    K2_ACC = NB * 36
    p = Prog()
    p('s_cmp_ge_u32 s2, 256')
    p('s_cbranch_scc1 L_k2_end')
    p('s_load_dwordx2 s[4:5], s[0:1], 88')
    p('s_load_dwordx2 s[6:7], s[0:1], 72')
    p('s_load_dwordx2 s[8:9], s[0:1], 56')
    if CFG['PROF']:
        p('s_memrealtime s[88:89]')
        p('s_memtime s[82:83]')
    p('v_lshrrev_b32 v1, 6, v0')
    p('v_and_b32 v2, 63, v0')
    p(f'v_readfirstlane_b32 s{S_WAVE}, v1')
    p('s_and_b32 s52, s2, 7')
    p('s_lshr_b32 s53, s2, 3')
    if CFG['MAP2'] == '8x4':
        p('s_lshr_b32 s54, s52, 1')
        p('s_lshl_b32 s54, s54, 3')
        p('s_lshr_b32 s55, s53, 2')
        p('s_add_u32 s26, s54, s55')
        p('s_and_b32 s54, s52, 1')
        p('s_lshl_b32 s54, s54, 2')
        p('s_and_b32 s55, s53, 3')
        p('s_add_u32 s27, s54, s55')
    else:
        p('s_lshl_b32 s54, s52, 2')
        p('s_lshr_b32 s55, s53, 3')
        p('s_add_u32 s26, s54, s55')
        p('s_and_b32 s27, s53, 7')
    p(f's_cmp_eq_u32 s{S_WAVE}, 0')
    p('s_cbranch_scc0 L_k2_nopf')
    p('v_mov_b32 v10, v2')
    code_prefetch(p, 'L_k2_body', 'L_k2_end', CFG.get('K2_BYTES', 16384), 10, 255, 84, 'k2')
    p.label('L_k2_nopf')
    p.label('L_k2_body')
    p(f'v_lshlrev_b32 v{K2_VL}, 4, v2')
    p(f'v_add_u32 v{K2_VL2}, 4096, v{K2_VL}')
    p(f's_cmp_eq_u32 s{S_WAVE}, 0')
    p('s_mov_b32 s56, 20480')
    p('s_cselect_b32 s56, s56, 55296')
    p(f's_mov_b32 s57, {OA_OFF}')
    p(f's_cselect_b32 s57, s57, {H_OFF}')
    p(f's_mov_b32 s58, {WO_OFF}')
    p(f's_cselect_b32 s58, s58, {W2_OFF}')
    p('s_cselect_b32 s59, 20, 54')
    p(f's_mul_i32 s60, s{S_WAVE}, 18')
    p('s_cselect_b32 s60, 18, s60')
    p('s_sub_u32 s60, s60, 18')
    p('s_lshl_b32 s61, s26, 2')
    p('s_mul_i32 s61, s61, s56')
    p('s_add_u32 s61, s61, s57')
    p('s_lshl_b32 s62, s60, 10')
    p('s_add_u32 s20, s61, s62')
    p('s_mul_i32 s61, s27, s59')
    p('s_add_u32 s61, s61, s60')
    p('s_mul_i32 s61, s61, 5120')
    p('s_add_u32 s21, s61, s58')
    if CFG['ROT2']:
        p('s_add_u32 s34, s20, 16384')
        p('s_add_u32 s35, s21, 81920')
        if CFG['ROT2'] == 2:
            p('s_xor_b32 s62, s26, s27')
            p('s_and_b32 s62, s62, 1')
            p(f's_cmp_eq_u32 s{S_WAVE}, 0')
            p('s_cselect_b32 s63, 8, 9')
            p('s_mul_i32 s22, s62, s63')
        elif CFG['ROT2'] == 3:
            p('s_add_u32 s62, s26, s27')
            p('s_mul_i32 s63, s62, 43')
            p('s_lshr_b32 s63, s63, 7')
            p('s_mul_i32 s63, s63, 3')
            p('s_sub_u32 s62, s62, s63')
            p(f's_cmp_eq_u32 s{S_WAVE}, 0')
            p('s_cselect_b32 s63, 5, 6')
            p('s_mul_i32 s22, s62, s63')
        else:
            p('s_and_b32 s62, s26, 7')
            p('s_and_b32 s63, s27, 3')
            p('s_lshl_b32 s63, s63, 1')
            p('s_add_u32 s62, s62, s63')
            p(f's_cmp_eq_u32 s{S_WAVE}, 0')
            p('s_cselect_b32 s63, 16, 18')
            p('s_mul_i32 s62, s62, s63')
            p('s_lshr_b32 s22, s62, 3')
            p('s_cmp_ge_u32 s22, s63')
            p('s_cselect_b32 s62, s63, 0')
            p('s_sub_u32 s22, s22, s62')
        p('s_lshl_b32 s62, s22, 10')
        p('s_add_u32 s20, s20, s62')
        p('s_mul_i32 s62, s22, 5120')
        p('s_add_u32 s21, s21, s62')
    for t in range(4):
        p(f's_mul_i32 s62, s56, {t}')
        p(f'v_add_u32 v{K2_VA+t}, s62, v{K2_VL}')
    p('v_and_b32 v3, 15, v2')
    p('v_lshrrev_b32 v4, 4, v2')
    p('s_lshl_b32 s62, s26, 6')
    p(f's_lshl_b32 s63, s{S_WAVE}, 4')
    p('s_add_u32 s62, s62, s63')
    p('v_add_u32 v5, s62, v3')
    p('v_lshlrev_b32 v6, 3, v5')
    p(f'v_add_u32 v6, {G_OFF}, v6')
    p('s_mul_i32 s63, s27, 160')
    p('v_lshlrev_b32 v7, 4, v4')
    p('v_add_u32 v7, s63, v7')
    p('v_lshlrev_b32 v8, 3, v4')
    p('v_add_u32 v8, s63, v8')
    p('s_movk_i32 s63, 1280')
    p('v_mul_u32_u24 v5, s63, v5')
    p('v_add_u32 v242, v5, v7')
    p('v_add_u32 v243, v5, v8')
    if CFG['K2RED'] == 2:
        for r in range(4):
            p(f'v_mov_b32 v{214+r}, 0')
        p('v_mov_b32 v219, 81920')
        p('ds_write_b128 v219, v[214:217]')
        p('ds_write_b128 v219, v[214:217] offset:16')
    p('s_waitcnt lgkmcnt(0)')
    if CFG['K2RED'] == 2:
        p('s_barrier')
    srd(p, 12, 4, WS_USED)
    srd(p, 16, 8, 1280)
    srd(p, 28, 6, 2048 * 1280)
    stamp(p, 0)
    if CFG['K2RED'] == 2:
        p('s_lshl_b32 s62, s26, 6')
        p('v_add_u32 v9, s62, v3')
        p('v_lshlrev_b32 v9, 3, v9')
        p(f'v_add_u32 v9, {G_OFF}, v9')
        p('buffer_load_dwordx2 v[244:245], v9, s[12:15], 0 offen')
    if not CFG['GLATE']:
        k2_small_loads(p, 6, 7, 8)
    else:
        p('v_mov_b32 v246, v6')
        p('v_mov_b32 v247, v7')
        p('v_mov_b32 v248, v8')
    p(f's_cmp_eq_u32 s{S_WAVE}, 0')
    p('s_cbranch_scc0 L_k2_b')
    if CFG['K2PRIO']:
        p(f's_setprio {CFG["K2PRIO"]}')
    k2_stream(p, True)
    p.label('L_k2_b')
    k2_stream(p, False)
    if CFG['K2RED'] == 2:
        k2_reduce2(p)
        p.label('L_k2_end')
        p('s_endpgm')
        return p
    p.label('L_k2_reduce')
    stamp(p, 2)
    ACC = lambda t, f: K2_ACC + (t * 5 + f) * 4
    p(f's_mul_i32 s62, s{S_WAVE}, 5120')
    p(f'v_add_u32 v3, s62, v{K2_VL}')
    p('s_nop 7')
    p('v_add_u32 v4, 40960, v3')
    for t in range(4):
        for f in range(5):
            p(f'ds_write_b128 v{3 + (t >> 1)}, v[{ACC(t,f)}:{ACC(t,f)+3}] offset:{(t & 1)*20480 + f*1024}')
    p(f's_mul_i32 s62, s{S_WAVE}, 20480')
    p(f'v_add_u32 v250, s62, v{K2_VL}')
    p('s_waitcnt lgkmcnt(0)')
    p('s_barrier')
    R = lambda w, f: (w * 5 + f) * 4
    for f in range(5):
        for w in range(4):
            p(f'ds_read_b128 v[{R(w,f)}:{R(w,f)+3}], v250 offset:{w*5120 + f*1024}')
    p('s_mov_b32 s62, 0xffff0000')
    B = lambda f: 100 + 4 * f
    for pr in range(2):
        for d in range(4):
            src = K2_B2 + 4 * pr + d
            f, r = 2 * pr + (d >> 1), 2 * (d & 1)
            p(f'v_lshlrev_b32 v{B(f)+r}, 16, v{src}')
            p(f'v_and_b32 v{B(f)+r+1}, s62, v{src}')
    for d in range(2):
        src = K2_B2 + 8 + d
        p(f'v_lshlrev_b32 v{B(4)+2*d}, 16, v{src}')
        p(f'v_and_b32 v{B(4)+2*d+1}, s62, v{src}')
    p(f'v_mov_b32 v120, v{K2_G}')
    p(f'v_mov_b32 v121, v{K2_G}')
    p(f'v_mov_b32 v122, v{K2_G+1}')
    p(f'v_mov_b32 v123, v{K2_G+1}')
    for f in range(5):
        p(f's_waitcnt lgkmcnt({min(15, 16-4*f)})' if f < 4 else 's_waitcnt lgkmcnt(0)')
        if f == 0:
            p('s_waitcnt lgkmcnt(15)')
        for r in (0, 2):
            a, b1, b2_, b3 = R(0, f) + r, R(1, f) + r, R(2, f) + r, R(3, f) + r
            p(f'v_pk_add_f32 v[{b1}:{b1+1}], v[{b1}:{b1+1}], v[{b2_}:{b2_+1}]')
            p(f'v_pk_add_f32 v[{b3}:{b3+1}], v[{b3}:{b3+1}], v[{B(f)+r}:{B(f)+r+1}]')
            p(f'v_pk_mul_f32 v[{a}:{a+1}], v[{a}:{a+1}], v[120:121]')
            p(f'v_pk_add_f32 v[{b1}:{b1+1}], v[{b1}:{b1+1}], v[{b3}:{b3+1}]')
            p(f'v_pk_fma_f32 v[{a}:{a+1}], v[{b1}:{b1+1}], v[122:123], v[{a}:{a+1}]')
    O = 124
    for pr in range(2):
        for u in range(2):
            a = R(0, 2 * pr + u)
            p(f'v_cvt_pk_bf16_f32 v{O+4*pr+2*u}, v{a}, v{a+1}')
            p(f'v_cvt_pk_bf16_f32 v{O+4*pr+2*u+1}, v{a+2}, v{a+3}')
        p(f'buffer_store_dwordx4 v[{O+4*pr}:{O+4*pr+3}], v242, s[28:31], 0 offen offset:{64*pr} {CFG["OUTF"]}')
    a = R(0, 4)
    p(f'v_cvt_pk_bf16_f32 v{O+8}, v{a}, v{a+1}')
    p(f'v_cvt_pk_bf16_f32 v{O+9}, v{a+2}, v{a+3}')
    p(f'buffer_store_dwordx2 v[{O+8}:{O+9}], v243, s[28:31], 0 offen offset:128 {CFG["OUTF"]}')
    stamp(p, 3)
    if CFG['PROF']:
        prof_store(p, 4, 'K2', 12)
    p.label('L_k2_end')
    p('s_endpgm')
    return p


K2B_R = 4
K2B_STEP = 9216
K2B_SLOT = 4 * K2B_STEP
K2B_LDS = K2B_R * K2B_SLOT


def gen_k2b():
    R, SL, ST = K2B_R, K2B_SLOT, K2B_STEP
    stages = [('a', 4 * i, 4) for i in range(5)] + [('b', 4 * i, 4) for i in range(13)] + [('b', 52, 2)]
    NS = len(stages)
    p = Prog()
    p('s_cmp_ge_u32 s2, 256')
    p('s_cbranch_scc1 L_k2_end')
    p('s_load_dwordx2 s[4:5], s[0:1], 88')
    p('s_load_dwordx2 s[6:7], s[0:1], 72')
    p('s_load_dwordx2 s[8:9], s[0:1], 56')
    if CFG['PROF']:
        p('s_memrealtime s[88:89]')
        p('s_memtime s[82:83]')
    p('v_lshrrev_b32 v1, 6, v0')
    p('v_and_b32 v2, 63, v0')
    p(f'v_readfirstlane_b32 s{S_WAVE}, v1')
    p('s_and_b32 s52, s2, 7')
    p('s_lshr_b32 s53, s2, 3')
    if CFG['MAP2'] == '8x4':
        p('s_lshr_b32 s54, s52, 1')
        p('s_lshl_b32 s54, s54, 3')
        p('s_lshr_b32 s55, s53, 2')
        p('s_add_u32 s26, s54, s55')
        p('s_and_b32 s54, s52, 1')
        p('s_lshl_b32 s54, s54, 2')
        p('s_and_b32 s55, s53, 3')
        p('s_add_u32 s27, s54, s55')
    else:
        p('s_lshl_b32 s54, s52, 2')
        p('s_lshr_b32 s55, s53, 3')
        p('s_add_u32 s26, s54, s55')
        p('s_and_b32 s27, s53, 7')
    p('v_lshlrev_b32 v3, 4, v2')
    p(f's_cmp_ge_u32 s{S_WAVE}, 4')
    p('s_cbranch_scc0 L_k2_consumer')
    p(f's_sub_u32 s57, s{S_WAVE}, 4')
    p('s_mul_i32 s20, s27, 20')
    p('s_add_u32 s20, s20, s57')
    p('s_mul_i32 s20, s20, 5120')
    p(f's_add_u32 s20, s20, {WO_OFF}')
    p('s_mul_i32 s21, s27, 54')
    p('s_add_u32 s21, s21, s57')
    p('s_mul_i32 s21, s21, 5120')
    p(f's_add_u32 s21, s21, {W2_OFF}')
    p('s_lshl_b32 s54, s26, 2')
    p('s_mul_i32 s22, s54, 20')
    p('s_add_u32 s22, s22, s57')
    p('s_lshl_b32 s22, s22, 10')
    p(f's_add_u32 s22, s22, {OA_OFF}')
    p('s_mul_i32 s25, s54, 54')
    p('s_add_u32 s25, s25, s57')
    p('s_lshl_b32 s25, s25, 10')
    if H_OFF:
        p(f's_add_u32 s25, s25, {H_OFF}')
    p(f's_mul_i32 s58, s57, {ST}')
    p('v_add_u32 v4, 4096, v3')
    for u in range(4):
        p(f'v_add_u32 v{10+u}, {20480*u}, v3')
        p(f'v_add_u32 v{14+u}, {55296*u}, v3')
    p('s_waitcnt lgkmcnt(0)')
    srd(p, 12, 4, WS_USED)
    stamp(p, 0)

    def issue(j):
        part, s0, n = stages[j]
        slot = j % R
        if n < 4:
            p(f's_cmp_ge_u32 s57, {n}')
            p(f's_cbranch_scc1 L_k2_skip{j}')
        p(f's_add_u32 s23, s{20 if part == "a" else 21}, {s0*5120}')
        p(f's_add_u32 s24, s{22 if part == "a" else 25}, {s0*1024}') if False else None
        p(f's_add_u32 m0, s58, {slot*SL}')
        p(f's_add_u32 s59, s{22 if part == "a" else 25}, {s0*1024}')
        for f in range(4):
            p(f'buffer_load_dwordx4 v3, s[12:15], s23 offen offset:{1024*f} {CFG["K2LDF"]} lds')
        p(f's_add_u32 m0, s58, {slot*SL + 4096}')
        p('s_nop 0')
        p(f'buffer_load_dwordx4 v4, s[12:15], s23 offen {CFG["K2LDF"]} lds')
        for u in range(4):
            p(f's_add_u32 m0, s58, {slot*SL + 5120 + 1024*u}')
            p('s_nop 0')
            p(f'buffer_load_dwordx4 v{(10 if part == "a" else 14)+u}, s[12:15], s59 offen {CFG["K2LDF"]} lds')
        if n < 4:
            p.label(f'L_k2_skip{j}')

    for j in range(R - 1):
        issue(j)
    stamp(p, 1)
    for j in range(NS):
        hi = min(j + R - 2, NS - 1)
        newer = 9 * (hi - j)
        if hi == NS - 1 and j < NS - 1:
            newer -= 9
        p(f's_waitcnt vmcnt({max(newer, 0)})')
        p('s_barrier')
        if j + R - 1 < NS:
            issue(j + R - 1)
    stamp(p, 2)
    stamp(p, 3)
    if CFG['PROF']:
        prof_store(p, 4, 'K2', 12)
    p('s_endpgm')
    p.label('L_k2_consumer')
    p(f's_cmp_eq_u32 s{S_WAVE}, 0')
    p('s_cbranch_scc0 L_k2_nopf')
    p('v_mov_b32 v10, v2')
    code_prefetch(p, 'L_k2_body', 'L_k2_end', CFG.get('K2_BYTES', 12288), 10, 255, 84, 'k2')
    p.label('L_k2_nopf')
    p.label('L_k2_body')
    ACA, ACB = 0, 20
    WR = lambda q, f: 40 + 20 * q + 4 * f
    AR = lambda q: 120 + 4 * q
    G, B2 = 230, 232
    p('s_lshl_b32 s54, s26, 2')
    p(f's_add_u32 s54, s54, s{S_WAVE}')
    p('v_and_b32 v4, 15, v2')
    p('v_lshrrev_b32 v5, 4, v2')
    p('s_lshl_b32 s55, s54, 4')
    p('v_add_u32 v6, s55, v4')
    p('v_lshlrev_b32 v7, 3, v6')
    p(f'v_add_u32 v7, {G_OFF}, v7')
    p('s_mul_i32 s55, s27, 160')
    p('v_lshlrev_b32 v8, 4, v5')
    p('v_add_u32 v8, s55, v8')
    p('v_lshlrev_b32 v9, 3, v5')
    p('v_add_u32 v9, s55, v9')
    p('v_mul_u32_u24 v6, 1280, v6')
    p('v_add_u32 v242, v6, v8')
    p('v_add_u32 v243, v6, v9')
    p(f's_lshl_b32 s55, s{S_WAVE}, 10')
    p('s_add_u32 s55, s55, 5120')
    for sl in range(R):
        p(f'v_add_u32 v{244+sl}, {sl*SL}, v3')
        p(f'v_add_u32 v{250+sl}, s55, v{244+sl}')
    p(f's_lshr_b32 s55, s{S_WAVE}, 1')
    p('s_lshl_b32 s55, s55, 10')
    p(f's_and_b32 s56, s{S_WAVE}, 1')
    p('s_lshl_b32 s56, s56, 3')
    p('s_add_u32 s55, s55, s56')
    p('s_add_u32 s55, s55, 5120')
    p('v_add_u32 v249, s55, v3')
    p('s_waitcnt lgkmcnt(0)')
    srd(p, 12, 4, WS_USED)
    srd(p, 16, 8, 1280)
    srd(p, 28, 6, 2048 * 1280)
    stamp(p, 0)
    p(f'buffer_load_dwordx2 v[{G}:{G+1}], v7, s[12:15], 0 offen')
    p(f'buffer_load_dwordx4 v[{B2}:{B2+3}], v8, s[16:19], 0 offen')
    p(f'buffer_load_dwordx4 v[{B2+4}:{B2+7}], v8, s[16:19], 0 offen offset:64')
    p(f'buffer_load_dwordx2 v[{B2+8}:{B2+9}], v9, s[16:19], 0 offen offset:128')
    for r in range(40):
        p(f'v_mov_b32 v{r}, 0')
    stamp(p, 1)
    for j, (part, s0, n) in enumerate(stages):
        slot = j % R
        tail = (part == 'a' and s0 == 16)
        assert not tail or slot == 0
        p('s_barrier')
        log = []
        for q in range(n):
            if tail:
                p(f'ds_read_b64 v[{AR(q)}:{AR(q)+1}], v249 offset:{q*ST}')
                p(f'ds_read_b64 v[{AR(q)+2}:{AR(q)+3}], v249 offset:{q*ST + 2048}')
                log += [('a', q), ('a', q)]
            else:
                p(f'ds_read_b128 v[{AR(q)}:{AR(q)+3}], v{250+slot} offset:{q*ST}')
                log.append(('a', q))
            for f in range(5):
                p(f'ds_read_b128 v[{WR(q,f)}:{WR(q,f)+3}], v{244+slot} offset:{q*ST + f*1024}')
                log.append(('w', q, f))
        known = max(0, len(log) - 15) if len(log) > 15 else 0
        done = -1
        for q in range(n):
            acc0 = ACA if part == 'a' else ACB
            for f in range(5):
                idx = log.index(('w', q, f))
                if idx > done:
                    left = len(log) - 1 - idx
                    w = min(left, 15)
                    p(f's_waitcnt lgkmcnt({w})')
                    done = len(log) - 1 - w
                p(f'v_mfma_f32_16x16x32_bf16 v[{acc0+4*f}:{acc0+4*f+3}], v[{WR(q,f)}:{WR(q,f)+3}], v[{AR(q)}:{AR(q)+3}], v[{acc0+4*f}:{acc0+4*f+3}]')
    stamp(p, 2)
    p('s_mov_b32 s62, 0xffff0000')
    p('s_waitcnt vmcnt(0)')
    Bf = lambda f: 100 + 4 * f
    for pr in range(2):
        for d in range(4):
            s_ = B2 + 4 * pr + d
            f, r = 2 * pr + (d >> 1), 2 * (d & 1)
            p(f'v_lshlrev_b32 v{Bf(f)+r}, 16, v{s_}')
            p(f'v_and_b32 v{Bf(f)+r+1}, s62, v{s_}')
    for d in range(2):
        s_ = B2 + 8 + d
        p(f'v_lshlrev_b32 v{Bf(4)+2*d}, 16, v{s_}')
        p(f'v_and_b32 v{Bf(4)+2*d+1}, s62, v{s_}')
    p(f'v_mov_b32 v120, v{G}')
    p(f'v_mov_b32 v121, v{G}')
    p(f'v_mov_b32 v122, v{G+1}')
    p(f'v_mov_b32 v123, v{G+1}')
    for f in range(5):
        for r in (0, 2):
            a, b = ACA + 4 * f + r, ACB + 4 * f + r
            p(f'v_pk_add_f32 v[{b}:{b+1}], v[{b}:{b+1}], v[{Bf(f)+r}:{Bf(f)+r+1}]')
            p(f'v_pk_mul_f32 v[{a}:{a+1}], v[{a}:{a+1}], v[120:121]')
    for f in range(5):
        for r in (0, 2):
            a, b = ACA + 4 * f + r, ACB + 4 * f + r
            p(f'v_pk_fma_f32 v[{a}:{a+1}], v[{b}:{b+1}], v[122:123], v[{a}:{a+1}]')
    O = 124
    for pr in range(2):
        for u in range(2):
            a = ACA + 4 * (2 * pr + u)
            p(f'v_cvt_pk_bf16_f32 v{O+4*pr+2*u}, v{a}, v{a+1}')
            p(f'v_cvt_pk_bf16_f32 v{O+4*pr+2*u+1}, v{a+2}, v{a+3}')
        p(f'buffer_store_dwordx4 v[{O+4*pr}:{O+4*pr+3}], v242, s[28:31], 0 offen offset:{64*pr} {CFG["OUTF"]}')
    a = ACA + 16
    p(f'v_cvt_pk_bf16_f32 v{O+8}, v{a}, v{a+1}')
    p(f'v_cvt_pk_bf16_f32 v{O+9}, v{a+2}, v{a+3}')
    p(f'buffer_store_dwordx2 v[{O+8}:{O+9}], v243, s[28:31], 0 offen offset:128 {CFG["OUTF"]}')
    stamp(p, 3)
    if CFG['PROF']:
        prof_store(p, 4, 'K2', 12)
    p.label('L_k2_end')
    p('s_endpgm')
    return p


def gen_k2t():
    NW, INF, MODE = CFG['NW'], CFG['INF'], CFG['TMODE']
    p = Prog()
    p('s_cmp_ge_u32 s2, 256')
    p('s_cbranch_scc1 L_k2_end')
    p('s_load_dwordx2 s[4:5], s[0:1], 88')
    p('s_memrealtime s[88:89]')
    p('s_memtime s[82:83]')
    p('v_lshrrev_b32 v1, 6, v0')
    p('v_and_b32 v2, 63, v0')
    p(f'v_readfirstlane_b32 s{S_WAVE}, v1')
    p('s_and_b32 s52, s2, 7')
    p('s_lshr_b32 s53, s2, 3')
    p('s_lshr_b32 s54, s52, 1')
    p('s_lshl_b32 s54, s54, 3')
    p('s_lshr_b32 s55, s53, 2')
    p('s_add_u32 s26, s54, s55')
    p('s_and_b32 s54, s52, 1')
    p('s_lshl_b32 s54, s54, 2')
    p('s_and_b32 s55, s53, 3')
    p('s_add_u32 s27, s54, s55')
    p('v_lshlrev_b32 v3, 4, v2')
    p('v_add_u32 v4, 4096, v3')
    nst = 72 // NW
    p(f's_mul_i32 s60, s{S_WAVE}, {nst}')
    p('s_cmp_ge_u32 s60, 54')
    p('s_cselect_b32 s61, 1, 0')
    p('s_cselect_b32 s56, 20480, 0')
    p('s_cselect_b32 s56, s56, 55296')
    p(f's_mov_b32 s57, {OA_OFF}')
    p(f's_cselect_b32 s57, s57, {H_OFF}')
    p(f's_mov_b32 s58, {WO_OFF}')
    p(f's_cselect_b32 s58, s58, {W2_OFF}')
    p('s_cselect_b32 s59, 20, 54')
    p('s_cselect_b32 s62, 54, 0')
    p('s_sub_u32 s60, s60, s62')
    p('s_lshl_b32 s61, s26, 2')
    p('s_mul_i32 s61, s61, s56')
    p('s_add_u32 s61, s61, s57')
    p('s_lshl_b32 s62, s60, 10')
    p('s_add_u32 s20, s61, s62')
    p('s_mul_i32 s61, s27, s59')
    p('s_add_u32 s61, s61, s60')
    p('s_mul_i32 s61, s61, 5120')
    p('s_add_u32 s21, s61, s58')
    for t in range(4):
        p(f's_mul_i32 s62, s56, {t}')
        p(f'v_add_u32 v{10+t}, s62, v3')
    p(f's_mul_i32 s63, s{S_WAVE}, 16384')
    p('s_waitcnt lgkmcnt(0)')
    srd(p, 12, 4, WS_USED)
    stamp(p, 0)
    stamp(p, 1)
    n = 0
    for s in range(nst):
        for f in range(9):
            r = 20 + 4 * (n % 48)
            if MODE == 'dma':
                p(f's_add_u32 m0, s63, {(n % 16) * 1024}')
                p('s_nop 0')
            a, so, off = (3, 's21', 1024 * f) if f < 4 else ((4, 's21', 0) if f == 4 else (10 + f - 5, 's20', 0))
            if MODE == 'dma':
                if f < 4 and f > 0:
                    p(f's_sub_u32 m0, m0, {off}')
                    p('s_nop 0')
                p(f'buffer_load_dwordx4 v{a}, s[12:15], {so} offen offset:{off} lds')
            else:
                p(f'buffer_load_dwordx4 v[{r}:{r+3}], v{a}, s[12:15], {so} offen offset:{off}')
            p(f's_waitcnt vmcnt({INF})')
            n += 1
        p('s_add_u32 s20, s20, 1024')
        p('s_add_u32 s21, s21, 5120')
    p('s_waitcnt vmcnt(0)')
    stamp(p, 2)
    stamp(p, 3)
    prof_store(p, 4, 'K2', 12)
    p.label('L_k2_end')
    p('s_endpgm')
    return p


def gen_kpf():
    p = Prog()
    p('s_cmp_ge_u32 s2, 256')
    p('s_cbranch_scc1 L_kpf_end')
    p('s_load_dwordx2 s[4:5], s[0:1], 88')
    p('v_and_b32 v2, 63, v0')
    p('v_lshrrev_b32 v1, 6, v0')
    p('s_and_b32 s52, s2, 7')
    p('s_lshr_b32 s53, s2, 3')
    p('v_lshlrev_b32 v3, 7, v0')
    p('s_waitcnt lgkmcnt(0)')
    srd(p, 12, 4, WS_USED)
    if CFG['KPF'] == 1:
        p('s_and_b32 s54, s52, 1')
        p(f's_mul_i32 s55, s54, {4*54*5120}')
        p(f's_add_u32 s55, s55, {W2_OFF}')
        p('s_lshl_b32 s56, s53, 15')
        p('s_add_u32 s57, s55, s56')
        p('buffer_load_dword v10, v3, s[12:15], s57 offen')
        p('s_add_u32 s57, s57, 57344')
        p('buffer_load_dword v10, v3, s[12:15], s57 offen')
        p(f's_mul_i32 s55, s54, {4*20*5120}')
        p(f's_add_u32 s55, s55, {WO_OFF}')
        p('s_mul_i32 s56, s53, 12800')
        p('s_add_u32 s57, s55, s56')
        p('buffer_load_dword v10, v3, s[12:15], s57 offen')
    else:
        p('s_lshr_b32 s54, s52, 1')
        p(f's_mul_i32 s55, s54, {32*55296}')
        p('s_mul_i32 s56, s53, 55296')
        p('s_add_u32 s57, s55, s56')
        p('buffer_load_dword v10, v3, s[12:15], s57 offen')
        p('s_add_u32 s57, s57, 22528')
        p('buffer_load_dword v10, v3, s[12:15], s57 offen')
        p(f's_mul_i32 s55, s54, {32*20480}')
        p(f's_add_u32 s55, s55, {OA_OFF}')
        p('s_mul_i32 s56, s53, 20480')
        p('s_add_u32 s57, s55, s56')
        p('buffer_load_dword v10, v3, s[12:15], s57 offen')
    p('s_waitcnt vmcnt(0)')
    p.label('L_kpf_end')
    p('s_endpgm')
    return p


HEADER = """; Kernarg layout (96 bytes, ptrs only, base s[0:1]):
; @launch kernel=gm_k1_kernel grid=(256,1,1) block=(512,1,1) lds=%d
; @launch kernel=gm_k2_kernel grid=(256,1,1) block=(256,1,1) lds=%d
.amdgcn_target "amdgcn-amd-amdhsa--gfx950"
"""

KD = """.amdhsa_kernel %s
  .amdhsa_next_free_vgpr %d
  .amdhsa_next_free_sgpr 102
  .amdhsa_accum_offset %d
  .amdhsa_group_segment_fixed_size 0
  .amdhsa_kernarg_size 96
  .amdhsa_user_sgpr_count 2
  .amdhsa_user_sgpr_kernarg_segment_ptr 1
  .amdhsa_system_sgpr_workgroup_id_x 1
  .amdhsa_float_denorm_mode_32 3
.end_amdhsa_kernel
"""


def main():
    k1 = gen_k1()
    k2 = gen_k2b() if CFG['K2V'] == 2 else (gen_k2t() if CFG['K2V'] == 3 else gen_k2())
    t1, t2 = k1.finish(), k2.finish()
    s = HEADER % (K1_LDS, K2B_LDS if CFG['K2V'] == 2 else K2_LDS)
    if CFG['K2V'] == 3:
        s = s.replace('kernel=gm_k2_kernel grid=(256,1,1) block=(256,1,1) lds=%d' % K2_LDS, 'kernel=gm_k2_kernel grid=(256,1,1) block=(%d,1,1) lds=131072' % (64 * CFG['NW']))
    if CFG['K2V'] == 2:
        s = s.replace('kernel=gm_k2_kernel grid=(256,1,1) block=(256,1,1)', 'kernel=gm_k2_kernel grid=(256,1,1) block=(512,1,1)')
    if CFG['K2TWICE']:
        ln = [l for l in s.split('\n') if 'kernel=gm_k2_kernel' in l][0]
        s = s.replace(ln, ln + '\n' + ln)
    s += '.text\n'
    for name, t in (('gm_k1_kernel', t1), ('gm_k2_kernel', t2)):
        s += f'.globl {name}\n.p2align 8\n.type {name},@function\n{name}:\n{t}'
    s += '.p2align 8\n.fill 64, 4, 0xbf800000\n' if False else ''
    if CFG['KPF']:
        s += '.globl gm_pf_kernel\n.p2align 8\n.type gm_pf_kernel,@function\ngm_pf_kernel:\n' + gen_kpf().finish()
        ln = [l for l in s.split('\n') if 'kernel=gm_k2_kernel' in l][0]
        s = s.replace(ln, '; @launch kernel=gm_pf_kernel grid=(256,1,1) block=(256,1,1) lds=0\n' + ln)
    s += '.section .rodata,"a"\n.p2align 6\n'
    s += KD % ('gm_k1_kernel', 256, 256)
    s += '.p2align 6\n'
    s += KD % ('gm_k2_kernel', 256, 256)
    if CFG['KPF']:
        s += '.p2align 6\n' + KD % ('gm_pf_kernel', 64, 64)
    out = CFG.get('OUT', f'cdna_kernels/{NAME}.s')
    open(out, 'w').write(s)
    print('written', out, len(s), 'bytes; nops inserted k1', k1.nops_inserted, 'k2', k2.nops_inserted)


if __name__ == '__main__':
    main()
```

```python
import sys, os, math, struct
sys.path.insert(0, os.path.dirname(os.path.abspath(__file__)))
from asmlib import Prog, vr, ar, sr

NAME = 'gated_mix__sliding_local_dilated__dense_activation_gelu__prompt'

CFG = dict(MAP1='m82', MAP2='8x4', NBUF=3, PROF=0, NOMFMA=0, NOLOAD=0, NODS=0, STF='sc1', LDF='', ULDF='nt', PFF='', PF=0, TT=0, ROT=1, ROT2=0, K2TWICE=0, K2V=1, M35=1, ZVT=0, DEDUP=1, K2RED=2, K2PRIO=0, USPF=0, TJ=7, TL=0, GLATE=0, STFO='sc1', STFH='sc1', ALIGN=0, UNITS_FFN=1, NFU=3, PEEL=1, SWAPW=0, LDFIRST=0, PRIO=0, K2ORD=0, KPF=0, LDF0='nt', NT_ST=0, ZOOB=1, TEARLY=0, K2PF=1, DA=12, NW=4, INF=32, TMODE='reg', K2NOMFMA=0, K2LDF='', OUTF='')
for a in sys.argv[1:]:
    if '=' in a:
        k, v = a.split('=')
        CFG[k] = int(v) if v.lstrip('-').isdigit() else v.replace('+', ' ')

H_OFF = 0
OA_OFF = H_OFF + 128 * 54 * 1024
W2_OFF = OA_OFF + 128 * 20 * 1024
WO_OFF = W2_OFF + 8 * 54 * 5120
G_OFF = WO_OFF + 8 * 20 * 5120
WS_USED = G_OFF + 2048 * 8
PROF_OFF = 16 << 20

XREG = 144 * 128
WROW = 480
WREG = 64 * WROW
SLOT = XREG + WREG
XFLAG = 3 * 49152 + 15360
SCR = 3 * SLOT
K1_LDS = 163840


def f32(x):
    return struct.unpack('<I', struct.pack('<f', x))[0]


def hexf(x):
    return '0x%08x' % f32(x)


S_AX, S_WQKV, S_WO, S_BX, S_W1, S_B1, S_W2, S_B2, S_GW, S_WS = 4, 6, 8, 10, 12, 14, 16, 18, 20, 22
S_WAVE, S_TYPE, S_RB, S_CG = 24, 25, 26, 27
SRD_X, SRD_W, SRD_I4, SRD_WS, SRD_A, SRD_B = 28, 32, 36, 40, 44, 48


def srd(p, base, ptr, nbytes):
    p(f's_mov_b32 s{base}, s{ptr}')
    p(f's_mov_b32 s{base+1}, s{ptr+1}')
    p(f's_mov_b32 s{base+2}, {nbytes}')
    p(f's_mov_b32 s{base+3}, 0x20000')


def code_prefetch(p, lbl_from, lbl_to, nbytes, vtmp, vdst, s, tag):
    p(f's_getpc_b64 s[{s}:{s+1}]')
    p.label(f'L_pc_{tag}')
    p(f's_add_u32 s{s}, s{s}, {lbl_from}-L_pc_{tag}')
    p(f's_addc_u32 s{s+1}, s{s+1}, 0')
    p(f'v_lshlrev_b32 v{vtmp}, 6, v{vtmp}')
    n = (nbytes + 4095) // 4096
    for j in range(n):
        p(f'v_min_u32 v{vtmp+1}, {lbl_to}-{lbl_from}, v{vtmp}')
        p(f'global_load_dword v{vdst}, v{vtmp+1}, s[{s}:{s+1}]')
        if j + 1 < n:
            p(f'v_add_u32 v{vtmp}, 4096, v{vtmp}')
    return n


def stamp(p, idx, sbase=90):
    if CFG['PROF']:
        p(f'{"s_memtime" if CFG["PROF"] in (2, 3, 6) else "s_memrealtime"} s[{sbase+2*idx}:{sbase+2*idx+1}]')


def k1_decode(p):
    p('s_and_b32 s52, s2, 7')
    p('s_lshr_b32 s53, s2, 3')
    if CFG['MAP1'] == 'mixed':
        p(f's_lshr_b32 s{S_TYPE}, s53, 4')
        p('s_and_b32 s54, s53, 15')
        p('s_lshr_b32 s55, s52, 1')
        p('s_lshl_b32 s55, s55, 2')
        p('s_lshr_b32 s56, s54, 2')
        p(f's_add_u32 s{S_RB}, s55, s56')
        p('s_and_b32 s55, s52, 1')
        p('s_lshl_b32 s55, s55, 2')
        p('s_and_b32 s56, s54, 3')
        p(f's_add_u32 s{S_CG}, s55, s56')
    elif CFG['MAP1'] == 'm82':
        p(f's_lshr_b32 s{S_TYPE}, s53, 4')
        p('s_lshr_b32 s55, s52, 2')
        p('s_lshl_b32 s55, s55, 3')
        p('s_and_b32 s56, s53, 7')
        p(f's_add_u32 s{S_RB}, s55, s56')
        p('s_and_b32 s55, s52, 3')
        p('s_lshl_b32 s55, s55, 1')
        p('s_bfe_u32 s56, s53, 0x10003')
        p(f's_add_u32 s{S_CG}, s55, s56')
    else:
        p(f's_lshr_b32 s{S_TYPE}, s52, 2')
        p('s_and_b32 s54, s52, 3')
        p('s_lshr_b32 s55, s54, 1')
        p('s_lshl_b32 s55, s55, 3')
        p('s_lshr_b32 s56, s53, 2')
        p(f's_add_u32 s{S_RB}, s55, s56')
        p('s_and_b32 s55, s54, 1')
        p('s_lshl_b32 s55, s55, 2')
        p('s_and_b32 s56, s53, 3')
        p(f's_add_u32 s{S_CG}, s55, s56')


def k1_loader(p, attn):
    tag = 'A' if attn else 'F'
    rowstride = 3840 if attn else 3456
    VOFF = 10
    VL = 2
    p.label(f'L_loader_{tag}')
    p(f's_sub_u32 s57, s{S_WAVE}, 4')
    p(f'v_lshrrev_b32 v3, 3, v{VL}')
    p('s_lshl_b32 s58, s57, 3')
    p('v_add_u32 v3, s58, v3')
    p(f's_lshl_b32 s59, s{S_RB}, 7')
    if attn:
        p('s_sub_u32 s59, s59, 16')
    p('v_add_u32 v3, s59, v3')
    p('s_and_b32 s58, s57, 1')
    p('s_lshl_b32 s58, s58, 2')
    p(f'v_lshrrev_b32 v4, 4, v{VL}')
    p('v_add_u32 v4, s58, v4')
    p(f'v_and_b32 v5, 7, v{VL}')
    p('v_xor_b32 v4, v4, v5')
    p('v_lshlrev_b32 v4, 4, v4')
    p('s_movk_i32 s58, 1280')
    p('s_movk_i32 s59, 2047')
    for i in range(5):
        p(f'v_add_u32 v5, {32*i}, v3')
        if attn and i == 0:
            p('v_max_i32 v5, 0, v5')
        if (not attn) and i == 4:
            p('v_min_u32 v5, s59, v5')
        p('v_mul_u32_u24 v5, s58, v5')
        if (not attn) and i == 4 and CFG['DEDUP']:
            p(f'v_mov_b32 v6, v{VOFF}')
        else:
            p(f'v_add_u32 v{VOFF+i if i < 4 else 6}, v5, v4')
    p('s_lshl_b32 s58, s57, 6')
    p(f'v_add_u32 v7, s58, v{VL}')
    p(f's_mov_b32 s60, {rowstride}')
    p('v_mov_b32 v9, 0x7ffffff0')
    if attn:
        p(f's_mul_i32 s61, s{S_CG}, 160')
    else:
        p(f's_mul_i32 s61, s{S_CG}, 448')

    def w_offset(i):
        base = 64 * (4 * i - 18)
        dst = VOFF + i if i > 4 else 8
        if base >= 0:
            p(f'v_add_u32 v3, {base}, v7')
        else:
            p(f'v_subrev_u32 v3, {-base}, v7')
            p('v_max_i32 v3, 0, v3')
        p('v_mul_u32_u24 v4, 2185, v3')
        p('v_lshrrev_b32 v4, 16, v4')
        p('v_mul_u32_u24 v5, 30, v4')
        p('v_sub_u32 v5, v3, v5')
        p('v_lshrrev_b32 v3, 1, v4')
        p('v_xor_b32 v3, v3, v4')
        p('v_and_b32 v3, 4, v3')
        p('v_mul_u32_u24 v3, 3, v3')
        p('v_xor_b32 v4, v3, v4')
        p('v_mul_u32_u24 v4, s60, v4')
        if attn:
            p('v_mul_u32_u24 v3, 205, v5')
            p('v_lshrrev_b32 v3, 11, v3')
            p('v_mul_u32_u24 v3, 1120, v3')
            p('v_lshlrev_b32 v5, 4, v5')
            p('v_add3_u32 v5, v5, v3, s61')
        else:
            if CFG['DEDUP']:
                p('v_min_u32 v5, 27, v5')
            p('v_lshlrev_b32 v5, 4, v5')
            p('v_add_u32 v5, s61, v5')
            if CFG['ZOOB']:
                p('v_cmp_lt_u32 vcc, 3440, v5')
            else:
                p('v_min_u32 v5, 3440, v5')
        p(f'v_add_u32 v{dst}, v4, v5')
        if (not attn) and CFG['ZOOB']:
            p(f'v_cndmask_b32 v{dst}, v{dst}, v9, vcc')
        if i == 4:
            p('s_cmp_lt_u32 s57, 2')
            p('s_cselect_b64 vcc, -1, 0')
            p(f'v_cndmask_b32 v{VOFF+4}, v8, v6, vcc')

    p('s_waitcnt lgkmcnt(0)')
    if attn:
        srd(p, SRD_X, S_AX, 2048 * 1280)
        srd(p, SRD_W, S_WQKV, 640 * 3840)
    else:
        srd(p, SRD_X, S_AX, 2048 * 1280)
        srd(p, SRD_W, S_W1, 640 * 3456)
    p('s_cmp_lt_u32 s57, 2')
    for k in range(3):
        p(f's_cselect_b32 s{SRD_I4+k}, s{SRD_X+k}, s{SRD_W+k}')
    p(f's_mov_b32 s{SRD_I4+3}, 0x20000')
    p('s_movk_i32 s73, 128')
    p('s_cselect_b32 s73, s73, %d' % (64 * rowstride))
    if CFG['ROT']:
        p(f's_and_b32 s79, s{S_RB}, 7')
        p('s_lshr_b32 s80, s79, 2')
        p('s_add_u32 s79, s79, s80')
        if CFG['MAP1'] == 'spec':
            p(f's_and_b32 s80, s{S_CG}, 3')
        else:
            p(f's_and_b32 s80, s{S_CG}, 1')
            p(f's_lshl_b32 s81, s{S_TYPE}, 1')
            p('s_add_u32 s80, s80, s81')
        p('s_mul_i32 s80, s80, 5')
        p('s_lshr_b32 s80, s80, 1')
        p('s_add_u32 s79, s79, s80')
        p('s_cmp_ge_u32 s79, 10')
        p('s_cselect_b32 s80, 10, 0')
        p('s_sub_u32 s79, s79, s80')
    else:
        p('s_mov_b32 s79, 0')
    p('s_lshl_b32 s74, s79, 7')
    p(f's_mul_i32 s75, s79, {64*rowstride}')
    p('s_mul_i32 s76, s79, s73')
    p('s_lshl_b32 s77, s57, 10')

    def issue_stage(st, lazy=False):
        slot = st % 3
        ldf = CFG['LDF0'] if st < CFG['NT_ST'] else CFG['LDF']
        for i in range(12):
            if lazy and i >= 4:
                w_offset(i)
            p(f's_add_u32 m0, s77, {slot*SLOT + i*4096}')
            if i < 4:
                if i == 0:
                    p('s_nop 0')
                p(f'buffer_load_dwordx4 v{VOFF+i}, s[{SRD_X}:{SRD_X+3}], s74 offen {ldf} lds')
            elif i == 4:
                p(f'buffer_load_dwordx4 v{VOFF+i}, s[{SRD_I4}:{SRD_I4+3}], s76 offen {ldf} lds')
            else:
                p(f'buffer_load_dwordx4 v{VOFF+i}, s[{SRD_W}:{SRD_W+3}], s75 offen {ldf} lds')
        p('s_add_u32 s74, s74, 128')
        p(f's_add_u32 s75, s75, {64*rowstride}')
        p('s_add_u32 s76, s76, s73')
        if CFG['ROT']:
            p('s_add_u32 s79, s79, 1')
            p('s_cmp_eq_u32 s79, 10')
            for r in (79, 74, 75, 76):
                p(f's_cselect_b32 s{r}, 0, s{r}')

    stamp(p, 0)
    issue_stage(0, lazy=True)
    issue_stage(1)
    UF = CFG['UNITS_FFN']
    scr_base = SLOT if (UF and not attn) else SCR

    def unit_decode(sfx):
        p('s_and_b32 s64, s62, 7')
        p('s_lshr_b32 s65, s62, 3')
        p('s_lshl_b32 s66, s65, 5')
        p('s_mov_b32 s67, 16')
        p('s_mov_b32 s68, 4')
        p('s_mul_i32 s69, s64, 54')
        p('s_add_u32 s69, s69, s65')
        p('s_mul_i32 s69, s69, 5120')
        p(f's_add_u32 s69, s69, {W2_OFF}')
        p('s_mov_b32 s70, 0')
        p('s_cmp_lt_u32 s65, 54')
        p(f's_cbranch_scc1 L_unit_done_{tag}{sfx}')
        p('s_sub_u32 s65, s65, 54')
        p('s_mov_b32 s70, 1')
        p('s_mul_i32 s69, s64, 20')
        p('s_add_u32 s69, s69, s65')
        p('s_mul_i32 s69, s69, 5120')
        p(f's_add_u32 s69, s69, {WO_OFF}')
        p('s_mul_i32 s66, s65, 40')
        p('s_mov_b32 s67, 20')
        p('s_cmp_lt_u32 s65, 16')
        p(f's_cbranch_scc1 L_unit_done_{tag}{sfx}')
        p('s_sub_u32 s65, s65, 16')
        p('s_mul_i32 s66, s65, 160')
        p('s_add_u32 s66, s66, 16')
        p('s_mov_b32 s67, 80')
        p('s_mov_b32 s68, 20')
        p.label(f'L_unit_done_{tag}{sfx}')
        p('s_mul_i32 s71, s64, 160')
        p('s_movk_i32 s58, 1280')
        for i in range(5):
            p(f'v_add_u32 v3, {64*i}, v{VL}')
            p('v_mul_u32_u24 v4, 6554, v3')
            p('v_lshrrev_b32 v4, 16, v4')
            p('v_mul_u32_u24 v5, 10, v4')
            p('v_sub_u32 v5, v3, v5')
            p('v_lshlrev_b32 v5, 4, v5')
            p('v_add_u32 v5, s71, v5')
            p('v_lshrrev_b32 v3, 4, v4')
            p('v_mul_u32_u24 v3, s67, v3')
            p('v_bfe_u32 v6, v4, 2, 2')
            p('v_mul_u32_u24 v6, s68, v6')
            p('v_and_b32 v4, 3, v4')
            p('v_add3_u32 v3, v3, v6, v4')
            p('v_add_u32 v3, s66, v3')
            p('v_mul_u32_u24 v3, s58, v3')
            p(f'v_add_u32 v{22+i}, v3, v5')

    def unit_srd():
        p('s_cmp_eq_u32 s70, 0')
        p(f's_cselect_b32 s{SRD_A}, s{S_W2}, s{S_WO}')
        p(f's_cselect_b32 s{SRD_A+1}, s{S_W2+1}, s{S_WO+1}')
        p(f's_mov_b32 s{SRD_A+2}, {1728*1280}')
        p(f's_cselect_b32 s{SRD_A+2}, s{SRD_A+2}, {640*1280}')
        p(f's_mov_b32 s{SRD_A+3}, 0x20000')

    do_units = True
    NFU = CFG['NFU']
    always = UF and not attn and NFU == 4
    if UF:
        p(f's_lshl_b32 s62, s{S_RB}, 3')
        p(f's_add_u32 s62, s62, s{S_CG}')
        p('s_lshl_b32 s63, s57, 7')
        p('s_add_u32 s62, s62, s63')
        if not attn:
            p(f's_cmp_lt_u32 s57, {NFU}')
            p('s_cselect_b32 s63, 1, 0')
        else:
            p(f's_add_u32 s62, s62, {128*NFU}')
            p('s_cmp_lt_u32 s62, 592')
            p('s_cselect_b32 s63, 1, 0')
            p('s_cmp_lt_u32 s57, 3')
            p('s_cselect_b32 s63, s63, 0')
    else:
        p('s_lshl_b32 s62, s57, 8')
        p('s_add_u32 s62, s62, s2')
        p('s_cmp_lt_u32 s62, 592')
        p('s_cselect_b32 s63, 1, 0')
        p('s_cmp_lt_u32 s57, 3')
        p('s_cselect_b32 s63, s63, 0')
    if do_units:
        unit_decode('')
        p(f'v_lshrrev_b32 v3, 2, v{VL}')
        p('v_mul_u32_u24 v3, 160, v3')
        p('s_mul_i32 s72, s57, 5120')
        p(f's_add_u32 s72, s72, {scr_base}')
        p('v_add_u32 v3, s72, v3')
        p(f'v_and_b32 v4, 3, v{VL}')
        p('v_lshl_add_u32 v27, v4, 4, v3')
        p('v_lshl_add_u32 v28, v4, 3, v3')
        p(f'v_lshlrev_b32 v29, 4, v{VL}')
        p('v_add_u32 v30, 4096, v29')
    if not attn:
        p(f's_lshl_b32 s58, s{S_RB}, 3')
        p(f's_add_u32 s58, s58, s{S_CG}')
        p('s_lshl_b32 s58, s58, 4')
        p('s_lshl_b32 s59, s57, 2')
        p('s_add_u32 s58, s58, s59')
        p(f'v_lshrrev_b32 v3, 4, v{VL}')
        p('v_add_u32 v31, s58, v3')
        p('s_movk_i32 s58, 1280')
        p('v_mul_u32_u24 v3, s58, v31')
        p(f'v_and_b32 v4, 15, v{VL}')
        p('v_lshlrev_b32 v33, 4, v4')
        p('v_add_u32 v32, v3, v33')
    srd(p, SRD_WS, S_WS, WS_USED)
    if do_units:
        unit_srd()
    GX, GW = 40, 60
    gate = (not attn)
    TG = 10 if gate else 0
    if gate:
        srd(p, SRD_B, S_GW, 1280)

    def unit_loads():
        for i in range(5):
            p(f's_add_u32 m0, s72, {i*1024}')
            p('s_nop 0')
            p(f'buffer_load_dwordx4 v{22+i}, s[{SRD_A}:{SRD_A+3}], 0 offen {CFG["ULDF"]} lds')

    def unit_finish():
        for f in range(5):
            a, off = (27, [0, 8, 64, 72][f]) if f < 4 else (28, 128)
            p(f'ds_read_b64_tr_b16 v[{84+4*f}:{85+4*f}], v{a} offset:{off}')
            p(f'ds_read_b64_tr_b16 v[{86+4*f}:{87+4*f}], v{a} offset:{off+2560}')
        for f in range(5):
            p(f's_waitcnt lgkmcnt({8-2*f})')
            if f < 4:
                p(f'buffer_store_dwordx4 v[{84+4*f}:{87+4*f}], v29, s[{SRD_WS}:{SRD_WS+3}], s69 offen offset:{1024*f} {CFG["STF"]}')
            else:
                p(f'buffer_store_dwordx4 v[{84+4*f}:{87+4*f}], v30, s[{SRD_WS}:{SRD_WS+3}], s69 offen {CFG["STF"]}')

    def tail_loads():
        if not do_units:
            return
        if always:
            unit_loads()
        else:
            p('s_cmp_eq_u32 s63, 0')
            p(f's_cbranch_scc1 L_nounit_ld_{tag}')
            unit_loads()
            p.label(f'L_nounit_ld_{tag}')
        if gate:
            for j in range(5):
                p(f'buffer_load_dwordx4 v[{GX+4*j}:{GX+4*j+3}], v32, s[{SRD_X}:{SRD_X+3}], 0 offen offset:{256*j}')
                p(f'buffer_load_dwordx4 v[{GW+4*j}:{GW+4*j+3}], v33, s[{SRD_B}:{SRD_B+3}], 0 offen offset:{256*j}')

    def unit_prefetch(grp):
        if not (CFG['USPF'] and do_units):
            return
        hi, mid = grp >> 2, grp & 3
        p('s_cmp_eq_u32 s63, 0')
        p(f's_cbranch_scc1 L_uspf{grp}_{tag}')
        p(f's_mul_i32 s99, s67, {hi}')
        p(f's_mul_i32 s98, s68, {mid}')
        p('s_add_u32 s99, s99, s98')
        p('s_add_u32 s99, s99, s66')
        p('s_mul_i32 s99, s99, 1280')
        p('s_add_u32 s99, s99, s71')
        for r in range(4):
            p(f's_load_dword s56, s[{SRD_A}:{SRD_A+1}], s99 offset:{1280*r}')
            p(f's_load_dword s56, s[{SRD_A}:{SRD_A+1}], s99 offset:{1280*r + 156}')
        p.label(f'L_uspf{grp}_{tag}')

    def wait_vm(n_nounit, n_unit, uid):
        if always:
            n_nounit = n_unit
        if n_nounit == n_unit:
            p(f's_waitcnt vmcnt({n_unit})')
            return
        p('s_cmp_eq_u32 s63, 0')
        p(f's_cbranch_scc1 L_w{uid}a_{tag}')
        p(f's_waitcnt vmcnt({n_unit})')
        p(f's_branch L_w{uid}b_{tag}')
        p.label(f'L_w{uid}a_{tag}')
        p(f's_waitcnt vmcnt({n_nounit})')
        p.label(f'L_w{uid}b_{tag}')

    if CFG['TEARLY']:
        tail_loads()
        wait_vm(12 + TG, 12 + TG + 5, 'i')
    else:
        p('s_waitcnt vmcnt(12)')
    stamp(p, 1)
    TJ = CFG['TJ'] if attn else 7
    p('s_barrier')
    issue_stage(2)
    unit_prefetch(0)
    for j in range(9):
        if CFG['TEARLY']:
            if j == 0:
                wait_vm(12 + TG, 12 + TG + 5, j)
            else:
                p('s_waitcnt vmcnt(%d)' % (12 if j <= 7 else 0))
        elif j <= TJ:
            p('s_waitcnt vmcnt(12)')
        elif j == 7:
            wait_vm(12 + TG, 12 + TG + 5, j)
        else:
            wait_vm(TG, TG + 5, j)
        p('s_barrier')
        if j + 3 <= 9 and not CFG['NOLOAD']:
            issue_stage(j + 3)
        if j <= 6:
            unit_prefetch(j + 1)
        if j == TJ and not CFG['TEARLY']:
            tail_loads()
        if j == 3 and CFG['TEARLY'] and gate:
            gate_job(p, GX, GW, store=False)
    stamp(p, 2)
    if CFG['K2PF']:
        p('s_cmp_eq_u32 s57, 3')
        p(f's_cbranch_scc0 L_nok2pf_{tag}')
        p(f'v_mov_b32 v34, v{VL}')
        code_prefetch(p, 'gm_k2_kernel', 'L_k2_end', 16384, 34, 255, 84, 'k2pf' + tag)
        p.label(f'L_nok2pf_{tag}')
    if do_units:
        p('s_waitcnt vmcnt(0) lgkmcnt(0)')
        if always:
            unit_finish()
        else:
            p('s_cmp_eq_u32 s63, 0')
            p(f's_cbranch_scc1 L_nounit_{tag}')
            unit_finish()
            p.label(f'L_nounit_{tag}')
    if gate:
        if CFG['TEARLY']:
            gate_store(p)
        else:
            gate_job(p, GX, GW)
    stamp(p, 3)
    if CFG['PROF']:
        prof_store(p, 4, 'LD' + tag, SRD_WS)
    p('s_endpgm')


def prof_debug(p, n, tag, sbase=90):
    p('s_waitcnt lgkmcnt(0) vmcnt(0)')
    p('s_and_b32 s86, s2, 127')
    p('s_cmp_eq_u32 s86, 0')
    p(f's_cbranch_scc0 L_pd_{tag}')
    p(f's_and_b32 s86, s{S_WAVE}, 3')
    p('s_cmp_eq_u32 s86, 0')
    p(f's_cbranch_scc0 L_pd_{tag}')
    p('s_load_dwordx2 s[76:77], s[0:1], 80')
    p('s_waitcnt lgkmcnt(0)')
    p('s_mov_b32 s78, 256')
    p('s_mov_b32 s79, 0x20000')
    p('s_lshr_b32 s86, s2, 7')
    p('s_lshl_b32 s86, s86, 1')
    p(f's_lshr_b32 s85, s{S_WAVE}, 2')
    p('s_add_u32 s86, s86, s85')
    p('s_lshl_b32 s86, s86, 4')
    p('v_mov_b32 v1, 0')
    for i in range(n):
        p(f's_sub_u32 s85, s{sbase+2*i}, s88')
        p('v_mov_b32 v0, s85')
        p(f'buffer_store_dword v0, v1, s[76:79], s86 offen offset:{4*i}')
    p('s_waitcnt vmcnt(0)')
    p.label(f'L_pd_{tag}')


_pd = [0]


def prof_collect(p, srdws):
    p('s_waitcnt lgkmcnt(0) vmcnt(0)')
    p(f's_or_b32 s86, s2, s{S_WAVE}')
    p('s_cmp_eq_u32 s86, 0')
    p('s_cbranch_scc0 L_pc5')
    p('s_load_dwordx2 s[76:77], s[0:1], 80')
    p(f's_mov_b32 s{srdws+2}, 0x10000000')
    p('v_mbcnt_lo_u32_b32 v0, -1, 0')
    p('v_mbcnt_hi_u32_b32 v0, -1, v0')
    p('v_lshrrev_b32 v1, 2, v0')
    p('v_and_b32 v2, 3, v0')
    p('v_lshlrev_b32 v2, 2, v2')
    p('v_cmp_eq_u32 vcc, 1, v1')
    p('v_mov_b32 v3, 0')
    p('v_mov_b32 v4, 256')
    p('v_cndmask_b32 v3, v3, v4, vcc')
    p('v_cmp_eq_u32 vcc, 2, v1')
    p(f'v_mov_b32 v4, {128*8*64}')
    p('v_cndmask_b32 v3, v3, v4, vcc')
    p('v_add_u32 v3, v3, v2')
    p(f'v_add_u32 v3, {PROF_OFF}, v3')
    p(f'buffer_load_dword v5, v3, s[{srdws}:{srdws+3}], 0 offen')
    p(f'v_mov_b32 v6, {PROF_OFF + 60}')
    p(f'buffer_load_dword v7, v6, s[{srdws}:{srdws+3}], 0 offen')
    p('s_waitcnt vmcnt(0) lgkmcnt(0)')
    p('s_mov_b32 s78, 256')
    p('s_mov_b32 s79, 0x20000')
    p('v_sub_u32 v5, v5, v7')
    for ln, sr_ in ((12, 88), (13, 90), (14, 94), (15, 96)):
        p(f'v_mov_b32 v8, s{sr_}')
        p('v_sub_u32 v8, v8, v7')
        p(f'v_cmp_eq_u32 vcc, {ln}, v0')
        p('v_cndmask_b32 v5, v5, v8, vcc')
    p('v_lshlrev_b32 v0, 2, v0')
    p('v_cmp_gt_u32 vcc, 64, v0')
    p('s_and_saveexec_b64 s[84:85], vcc')
    p('buffer_store_dword v5, v0, s[76:79], 0 offen')
    p('s_waitcnt vmcnt(0)')
    p.label('L_pc5')


def prof_store(p, n, tag, srdws, sbase=90):
    if CFG['PROF'] == 5 and tag.startswith('K2'):
        return prof_collect(p, srdws)
    if CFG['PROF'] == 4:
        _pd[0] += 1
        return prof_debug(p, n, tag + str(_pd[0]), sbase)
    return prof_store_ws(p, n, tag, srdws, sbase)


def prof_store_ws(p, n, tag, srdws, sbase=90):
    p('s_memtime s[80:81]')
    p('s_memrealtime s[78:79]')
    p('s_waitcnt lgkmcnt(0) vmcnt(0)')
    p('s_sub_u32 s80, s80, s82')
    p('s_sub_u32 s78, s78, s88')
    p(f's_mov_b32 s{srdws+2}, 0x10000000')
    p(f's_lshl_b32 s86, s2, 3')
    p(f's_add_u32 s86, s86, s{S_WAVE}')
    p(f's_lshl_b32 s86, s86, 6')
    p(f's_add_u32 s86, s86, {PROF_OFF + (0 if not tag.startswith("K2") else (1 << 20))}')
    if CFG['PROF'] == 3:
        p(f's_lshl_b32 s85, s2, 3')
        p(f's_add_u32 s85, s85, s{S_WAVE}')
        p(f's_lshl_b32 s85, s85, 8')
        p(f's_add_u32 s85, s85, {PROF_OFF + (2 << 20)}')
        p('v_mbcnt_lo_u32_b32 v0, -1, 0')
        p('v_mbcnt_hi_u32_b32 v0, -1, v0')
        p('v_lshlrev_b32 v0, 2, v0')
        if not tag.startswith('K2'):
            p(f'buffer_store_dword v254, v0, s[{srdws}:{srdws+3}], s85 offen')
    p('v_mov_b32 v1, 0')
    p('v_mov_b32 v0, s88')
    p(f'buffer_store_dword v0, v1, s[{srdws}:{srdws+3}], s86 offen offset:60')
    p('v_mov_b32 v0, s80')
    p(f'buffer_store_dword v0, v1, s[{srdws}:{srdws+3}], s86 offen offset:56')
    p('v_mov_b32 v0, s78')
    p(f'buffer_store_dword v0, v1, s[{srdws}:{srdws+3}], s86 offen offset:52')
    for i in range(n):
        p(f'v_mov_b32 v0, s{sbase+2*i}')
        p(f'buffer_store_dword v0, v1, s[{srdws}:{srdws+3}], s86 offen offset:{4*i}')
    if CFG['PROF'] == 6 and tag == 'CA':
        for i, r in enumerate((72, 74, 76)):
            p(f'v_mov_b32 v0, s{r}')
            p(f'buffer_store_dword v0, v1, s[{srdws}:{srdws+3}], s86 offen offset:{16+4*i}')
    p('s_waitcnt vmcnt(0)')


def gate_store(p):
    p(f'buffer_store_dwordx2 v[38:39], v37, s[{SRD_WS}:{SRD_WS+3}], 0 offen {CFG["STF"]}')


def gate_job(p, GX, GW, store=True):
    T = 104
    p('v_mov_b32 v34, 0')
    p('v_mov_b32 v35, 0')
    p('v_mov_b32 v36, 0x3f803f80')
    p('s_mov_b32 s78, 0xffff0000')
    for d in range(20):
        x, w = GX + d, GW + d
        t = T + 6 * (d & 1)
        p(f'v_lshlrev_b32 v{t}, 16, v{x}')
        p(f'v_and_b32 v{t+1}, s78, v{x}')
        p(f'v_lshlrev_b32 v{t+2}, 16, v{w}')
        p(f'v_and_b32 v{t+3}, s78, v{w}')
        p(f'v_pk_mul_f32 v[{t}:{t+1}], v[{t}:{t+1}], v[{t+2}:{t+3}]')
        p(f'v_cvt_pk_bf16_f32 v{t+4}, v{t}, v{t+1}')
        acc = 34 + (d & 1)
        p(f'v_dot2_f32_bf16 v{acc}, v{t+4}, v36, v{acc}')
    p('v_add_f32 v34, v34, v35')
    for sh in (8, 4, 2, 1):
        p(f'v_add_f32_dpp v34, v34, v34 row_ror:{sh} row_mask:0xf bank_mask:0xf')
    p('v_cvt_pk_bf16_f32 v35, v34, v34')
    p('v_lshlrev_b32 v35, 16, v35')
    p(f'v_mul_f32 v35, {hexf(-math.log2(math.e))}, v35')
    p('v_exp_f32 v35, v35')
    p('v_add_f32 v35, 1.0, v35')
    p('v_rcp_f32 v35, v35')
    p('v_cvt_pk_bf16_f32 v35, v35, v35')
    p('v_lshlrev_b32 v38, 16, v35')
    p('v_sub_f32 v39, 1.0, v38')
    p('v_cvt_pk_bf16_f32 v39, v39, v39')
    p('v_lshlrev_b32 v39, 16, v39')
    p('v_lshlrev_b32 v37, 3, v31')
    p(f'v_add_u32 v37, {G_OFF}, v37')
    if store:
        gate_store(p)


A_QM = lambda h, t: 0 + (h * 4 + t) * 4
A_KM = lambda h, kt: 32 + (h * 5 + kt) * 4
A_QKT = lambda kt: 72 + 4 * kt
A_VM = lambda h, kt: 92 + (h * 5 + kt) * 4
A_VT = lambda kt: 132 + 4 * kt
WF = lambda f: 152 + 4 * f
XF = lambda b, t: 184 + 20 * b + 4 * t
V_X0, V_X1, V_W, V_WA, V_WB = 224, 225, 226, 227, 228
V_BPREV, V_BCUR, V_BFIRST, V_SEL = 232, 236, 240, 244
F_ACC = lambda f, t: (f * 4 + t) * 4


class LgkmTracker:
    def __init__(self, p):
        self.p = p
        self.q = []

    def issue(self, tag):
        self.q.append(tag)

    def need(self, tags):
        idx = -1
        for i, t in enumerate(self.q):
            if t in tags:
                idx = i
        if idx < 0:
            return
        n = len(self.q) - 1 - idx
        self.p(f's_waitcnt lgkmcnt({min(n, 15)})')
        keep = min(n, 15)
        self.q = self.q[len(self.q) - keep:] if keep else []

    def drain(self):
        self.p('s_waitcnt lgkmcnt(0)')
        self.q = []


def consumer_loop(p, attn, th=None):
    tag = ('A' if attn else 'F') + ('' if th is None else str(th))
    NT = 5 if attn else 4
    xoff = lambda t: 2048 * t
    if attn:
        kk = range(5) if th in (None, 0) else range(1, 5)
        vk = range(5) if th in (None, 1) else range(1, 5)
        if th == 1:
            xoff = lambda t: 0 if t == 0 else 8192 + 2048 * t
        tiles = []
        for h in range(2):
            tiles.append([(A_QM(h, t), t + 1, 'F') for t in range(4)])
        for h in range(2):
            tiles.append([(A_KM(h, k), k, 'F') for k in kk])
        tiles.append([(A_QKT(k), k, 'F') for k in kk])
        for h in range(2):
            tiles.append([(A_VM(h, k), k, 'T') for k in vk])
        tiles.append([(A_VT(k), k, 'T') for k in vk])
        waddr = [(V_W, 0), (V_W, 40), (V_W, 160), (V_W, 200), (V_WA, 0), (V_W, 320), (V_W, 360), (V_WB, 0)]
    else:
        tiles = [[(F_ACC(f, t), t, 'F') for t in range(4)] for f in range(7)]
        waddr = [(V_W, 32 * f) for f in range(6)] + [(V_WA, 0)]
    NF = len(tiles)

    lg = LgkmTracker(p)

    def rd_w(f, s):
        if CFG['NODS']:
            return
        a, off = waddr[f]
        off += s * 32 * WROW
        p(f'ds_read_b64_tr_b16 v[{WF(f)}:{WF(f)+1}], v{a} offset:{off}')
        lg.issue(('w', f))
        p(f'ds_read_b64_tr_b16 v[{WF(f)+2}:{WF(f)+3}], v{a} offset:{off + 8*WROW}')
        lg.issue(('w', f))

    def rd_x(t, s):
        if CFG['NODS']:
            return
        p(f'ds_read_b128 v[{XF(s,t)}:{XF(s,t)+3}], v{V_X1 if s else V_X0} offset:{2048*t}')
        lg.issue(('x', s, t))

    LAST = NF - 1

    def wreads(f, s):
        a, off = waddr[f]
        off += s * 32 * WROW
        return [(f'ds_read_b64_tr_b16 v[{WF(f)}:{WF(f)+1}], v{a} offset:{off}', ('w', f)),
                (f'ds_read_b64_tr_b16 v[{WF(f)+2}:{WF(f)+3}], v{a} offset:{off + 8*WROW}', ('w', f))]

    def xread(t, s):
        return (f'ds_read_b128 v[{XF(s,t)}:{XF(s,t)+3}], v{V_X1 if s else V_X0} offset:{xoff(t)}', ('x', s, t))

    def emit(item):
        if CFG['NODS']:
            return
        p(item[0])
        lg.issue(item[1])

    order_log = []

    def packing():
        cv = lambda d, a: f'v_cvt_pk_bf16_f32 v{d}, v{a}, v{a+1}'
        out = []
        for h in range(2):
            for t in range(4):
                b = A_QM(h, t)
                out += [(h, cv(b, b)), (h, cv(b + 1, b + 2))]
        for h in range(2):
            for kt in kk:
                b = A_KM(h, kt)
                out += [(2 + h, cv(b, b)), (2 + h, cv(b + 1, b + 2))]
        for kt in kk:
            t = A_QKT(kt)
            out += [(4, cv(t, t)), (4, cv(t + 1, t + 2))]
        for kt in kk:
            t, k0 = A_QKT(kt), A_KM(0, kt)
            out += [(4, f'v_mov_b32 v{k0+2}, v{t}'), (4, f'v_mov_b32 v{k0+3}, v{t+1}')]
        return out

    def step(s, dry=False, last=False):
        nxt = 1 - s
        q = wreads(LAST, s)
        xq = [xread(t, nxt) for t in range(NT)]
        held = []
        upd = [V_W, V_X0, V_X1, V_WA] + ([V_WB] if attn else [])
        pk = []
        if last:
            xq, upd = [], []
            pk = packing() if attn else []
        zq = []
        for f in range(NF):
            if not dry:
                lg.need({('w', f)} | ({('x', s, t) for t in range(NT)} if f == 0 else set()))
                if attn and CFG['ZVT'] and f == LAST - 1:
                    lg.need({('w', LAST)})
                    zq = [f'v_cndmask_b32 v{WF(LAST)+k}, 0, v{WF(LAST)+k}, s[68:69]' for k in range(4)]
            for n, (acc, t, o) in enumerate(tiles[f]):
                w, x = f'v[{WF(f)}:{WF(f)+3}]', f'v[{XF(s,t)}:{XF(s,t)+3}]'
                a, b = (w, x) if o == 'F' else (x, w)
                if not CFG['NOMFMA'] and not dry:
                    p(f'v_mfma_f32_16x16x32_bf16 v[{acc}:{acc+3}], {a}, {b}, v[{acc}:{acc+3}]')
                item = None
                if q:
                    item = q.pop(0)
                elif xq and (s == 0 or f >= 2):
                    item = xq.pop(0)
                if item is not None:
                    if dry:
                        order_log.append(item)
                    else:
                        emit(item)
                if not dry and s == 0 and f == LAST and n == 1:
                    p(f's_add_u32 s53, s53, {SLOT}')
                    p(f's_cmp_eq_u32 s53, {3*SLOT}')
                if not dry and s == 0 and f == LAST and n == 2:
                    p(f's_cselect_b32 s54, s51, {SLOT}')
                    p('s_cselect_b32 s53, 0, s53')
                if not dry and s == 1 and item is None and upd and (f, n) >= (0, 2):
                    p(f'v_add_u32 v{upd[0]}, s54, v{upd[0]}')
                    upd.pop(0)
                if zq and not dry:
                    p(zq.pop(0))
                for _ in range(2 - (1 if (attn and CFG['ZVT'] and f == LAST - 1) else 0)):
                    if pk and pk[0][0] + 2 <= f:
                        p(pk.pop(0)[1])
            if f < LAST and not last:
                rs = wreads(f, nxt)
                if s == 1 and f < 1:
                    held += rs
                elif s == 1 and f == 1:
                    assert not q
                    if not dry:
                        assert not upd
                        if CFG['PROF'] == 3:
                            p('s_memtime s[70:71]')
                        lg.drain()
                        if CFG['PROF'] == 3:
                            p('s_lshl_b32 m0, s52, 1')
                            p('s_nop 3')
                            p('v_writelane_b32 v254, s70, m0')
                            p('s_add_u32 s74, m0, 63')
                            p('s_and_b32 m0, s74, 63')
                            p('s_nop 3')
                            p('v_writelane_b32 v254, s72, m0')
                        if CFG['PEEL']:
                            p('s_barrier')
                        else:
                            p('s_cmp_eq_u32 s52, 9')
                            p(f's_cbranch_scc1 L_nobar_{tag}')
                            p('s_barrier')
                            p.label(f'L_nobar_{tag}')
                        if CFG['PROF'] == 3:
                            p('s_memtime s[72:73]')
                    q += held + rs
                    held = []
                else:
                    q += rs
        assert not q and not xq, (q, xq)
        for _, ins in pk:
            p(ins)

    step(1, dry=True)
    for item in order_log[2:]:
        emit(item)
    p('s_mov_b32 s52, 0')
    p('s_mov_b32 s53, 0')
    p(f's_mov_b32 s51, {(-2*SLOT) & 0xffffffff}')
    if CFG['ALIGN']:
        p(f'.p2align {CFG["ALIGN"]}')
    p.label(f'L_loop_{tag}')
    q_head = list(lg.q)
    step(0)
    step(1)
    q_end = list(lg.q)
    assert q_end == q_head, (q_end, q_head)
    p('s_add_u32 s52, s52, 1')
    p(f's_cmp_lt_u32 s52, {9 if CFG["PEEL"] else 10}')
    p(f's_cbranch_scc1 L_loop_{tag}')
    if CFG['PEEL']:
        step(0)
        step(1, last=True)
    lg.drain()


def check_loop_waits():
    pass


def tlb_touch(p, tag):
    if not CFG['TT']:
        return
    p(f's_cmp_eq_u32 s{S_WAVE}, 1')
    p(f's_cbranch_scc0 L_tt1{tag}')
    for i in range(7):
        p(f's_mov_b32 s70, {i << 21}')
        p(f's_load_dword s{71+i}, s[{S_WS}:{S_WS+1}], s70')
    p.label(f'L_tt1{tag}')
    p(f's_cmp_eq_u32 s{S_WAVE}, 2')
    p(f's_cbranch_scc0 L_tt2{tag}')
    p(f's_load_dword s71, s[{S_WO}:{S_WO+1}], 0')
    p(f's_load_dword s72, s[{S_W2}:{S_W2+1}], 0')
    p(f's_mov_b32 s70, {(1 << 21) + 4096}')
    p(f's_load_dword s73, s[{S_W2}:{S_W2+1}], s70')
    p(f's_load_dword s74, s[{S_GW}:{S_GW+1}], 0')
    p(f's_load_dword s75, s[{S_B2}:{S_B2+1}], 0')
    p('s_load_dword s76, s[100:101], 0')
    p('s_load_dword s77, s[100:101], s70')
    p.label(f'L_tt2{tag}')
    if CFG['TL']:
        p(f's_cmp_eq_u32 s{S_WAVE}, 3')
        p(f's_cbranch_scc0 L_tt3{tag}')
        for i in range(1, 10):
            p(f's_load_dword s{70+(i%8)}, s[{S_B2}:{S_B2+1}], {128*i}')
        for i in range(1, 10):
            p(f's_load_dword s{70+(i%8)}, s[{S_GW}:{S_GW+1}], {128*i}')
        p.label(f'L_tt3{tag}')


def prefetch_setup(p, attn):
    rowstride = 3840 if attn else 3456
    p(f's_lshl_b32 s57, s{S_WAVE}, 6')
    p('v_add_u32 v9, s57, v2')
    p(f's_and_b32 s57, s{S_RB}, 7')
    p('s_lshl_b32 s57, s57, 3')
    p('s_add_u32 s57, s57, 128')
    p(f's_mov_b32 s58, {rowstride}')
    if attn:
        p(f's_mul_i32 s59, s{S_CG}, 160')
        p('s_andn2_b32 s59, s59, 127')
        for rnd in range(2):
            p(f'v_add_u32 v3, {256*rnd}, v9')
            p('v_min_u32 v3, 383, v3')
            p('v_mul_u32_u24 v4, 1366, v3')
            p('v_lshrrev_b32 v4, 16, v4')
            p('v_mul_u32_u24 v5, 48, v4')
            p('v_sub_u32 v5, v3, v5')
            p('v_mul_u32_u24 v6, 43, v5')
            p('v_lshrrev_b32 v6, 8, v6')
            p('v_mul_u32_u24 v7, 6, v6')
            p('v_sub_u32 v7, v5, v7')
            p('v_lshl_add_u32 v4, v4, 6, v6')
            p('v_add_u32 v4, s57, v4')
            p('v_mul_u32_u24 v4, s58, v4')
            p('v_lshrrev_b32 v5, 1, v7')
            p('v_mul_u32_u24 v5, 1280, v5')
            p('v_and_b32 v7, 1, v7')
            p('v_lshl_add_u32 v5, v7, 7, v5')
            p(f'v_add3_u32 v{249+rnd}, v4, v5, s59')
    else:
        p(f's_mul_i32 s59, s{S_CG}, 448')
        p('s_andn2_b32 s59, s59, 127')
        p('v_lshrrev_b32 v4, 5, v9')
        p('v_bfe_u32 v6, v9, 2, 3')
        p('v_lshl_add_u32 v4, v4, 6, v6')
        p('v_add_u32 v4, s57, v4')
        p('v_mul_u32_u24 v4, s58, v4')
        p('v_and_b32 v7, 3, v9')
        p('v_lshlrev_b32 v7, 7, v7')
        p('v_add3_u32 v249, v4, v7, s59')
    p(f's_and_b32 s57, s{S_CG}, 1')
    p(f's_lshl_b32 s58, s{S_TYPE}, 1')
    p('s_add_u32 s57, s57, s58')
    p('s_lshl_b32 s57, s57, 5')
    p(f's_lshl_b32 s58, s{S_RB}, 7')
    p('s_add_u32 s57, s57, s58')
    p('v_and_b32 v4, 31, v9')
    p('v_add_u32 v4, s57, v4')
    p('v_mul_u32_u24 v4, 1280, v4')
    p('v_lshrrev_b32 v5, 5, v9')
    p('v_lshlrev_b32 v5, 7, v5')
    p('v_add3_u32 v251, v4, v5, 256' .replace(', 256', ', s99'))


def prefetch_issue(p, attn):
    if not CFG['PF']:
        return
    p(f'buffer_load_dword v255, v251, s[{SRD_X}:{SRD_X+3}], 0 offen {CFG["PFF"]}')
    p(f'buffer_load_dword v255, v249, s[{SRD_W}:{SRD_W+3}], 0 offen {CFG["PFF"]}')
    if attn:
        p(f'buffer_load_dword v255, v250, s[{SRD_W}:{SRD_W+3}], 0 offen {CFG["PFF"]}')


def attn_prologue(p):
    p(f's_and_b32 s55, s{S_WAVE}, 1')
    p(f's_lshr_b32 s56, s{S_WAVE}, 1')
    p('v_and_b32 v3, 15, v2')
    p('v_lshrrev_b32 v4, 4, v2')
    p('v_lshrrev_b32 v5, 1, v3')
    p('v_xor_b32 v5, v5, v4')
    p('v_lshlrev_b32 v5, 4, v5')
    p('v_lshl_add_u32 v5, v3, 7, v5')
    if CFG['M35']:
        p(f'v_mov_b32 v{V_X0}, v5')
    else:
        p('s_lshl_b32 s57, s56, 13')
        p(f'v_add_u32 v{V_X0}, s57, v5')
    p(f'v_xor_b32 v{V_X1}, 64, v{V_X0}')
    p('v_lshrrev_b32 v5, 5, v2')
    p('v_lshlrev_b32 v5, 4, v5')
    p('v_bfe_u32 v6, v2, 4, 1')
    p('v_lshl_add_u32 v5, v6, 2, v5')
    p('v_bfe_u32 v6, v2, 2, 2')
    p('v_add_u32 v5, v5, v6')
    p(f'v_mul_u32_u24 v5, {WROW}, v5')
    p('s_mul_i32 s57, s55, 80')
    p(f's_add_u32 s57, s57, {XREG}')
    p('v_add_u32 v5, s57, v5')
    p('v_and_b32 v6, 3, v2')
    p(f'v_lshl_add_u32 v{V_W}, v6, 3, v5')
    p('v_and_b32 v7, 1, v6')
    p('v_mul_u32_u24 v7, 40, v7')
    p('v_add_u32 v7, v7, v5')
    p('v_lshrrev_b32 v6, 1, v6')
    p('v_mul_u32_u24 v6, 160, v6')
    p(f'v_add3_u32 v{V_WA}, v7, v6, 32')
    p(f'v_add_u32 v{V_WB}, 352, v7')
    p('v_lshlrev_b32 v5, 2, v4')
    p('v_sub_u32 v5, v3, v5')
    p(f's_mov_b32 s58, {hexf(-1e30)}')
    p('v_mov_b32 v8, s58')
    p(f's_or_b32 s59, s{S_RB}, s56')
    p('s_cmp_eq_u32 s59, 0')
    p('s_cselect_b64 s[60:61], -1, 0')
    for r in range(4):
        p(f'v_subrev_u32 v6, {r}, v5')
        p('v_and_b32 v7, 1, v6')
        p('v_cmp_eq_u32 s[62:63], 0, v7')
        p('v_cmp_ge_i32 s[64:65], v6, 0')
        p('s_and_b64 s[66:67], s[62:63], s[64:65]')
        p('s_andn2_b64 s[68:69], s[62:63], s[64:65]')
        p(f'v_cndmask_b32 v{V_BCUR+r}, v8, 0, s[66:67]')
        p(f'v_cndmask_b32 v{V_BPREV+r}, v8, 0, s[68:69]')
        p(f'v_cndmask_b32 v{V_BFIRST+r}, v{V_BPREV+r}, v8, s[60:61]')
    p('v_and_b32 v7, 1, v3')
    p('v_cmp_eq_u32 s[62:63], 0, v7')
    for k, (lo, hi) in enumerate([(0x0c0c0100, 0x01000c0c), (0x0c0c0302, 0x03020c0c)]):
        p(f'v_mov_b32 v6, {hex(hi)}')
        p(f'v_mov_b32 v9, {hex(lo)}')
        p('v_cndmask_b32 v9, v6, v9, s[62:63]')
        p('v_sub_u32 v6, v5, v7')
        if k:
            p('v_subrev_u32 v6, 2, v6')
        p('v_cmp_ge_i32 s[64:65], v6, 0')
        p('v_mov_b32 v6, 0x0c0c0c0c')
        p(f'v_cndmask_b32 v{V_SEL+k}, v9, v6, s[64:65]')
        p(f'v_cndmask_b32 v{V_SEL+2+k}, v6, v9, s[64:65]')
    p('v_lshlrev_b32 v248, 4, v2')
    if CFG['M35']:
        p('s_lshl_b32 s57, s55, 13')
        p(f's_add_u32 s57, s57, {2*SLOT}')
        p('v_add_u32 v249, s57, v248')
        p('v_lshrrev_b32 v250, 1, v248')
        p('v_add_u32 v250, s57, v250')
        p('s_lshl_b32 s57, s55, 3')
        p(f's_add_u32 s57, s57, {XFLAG}')
        p('v_mov_b32 v251, s57')
        p('v_mov_b32 v252, 0')
        p('v_mov_b32 v253, 0')
        p('ds_write_b64 v251, v[252:253]')
    for r in range(152):
        p(f'v_mov_b32 v{r}, 0')


def attn_epilogue(p, th=None):
    cvt = lambda d, a: p(f'v_cvt_pk_bf16_f32 v{d}, v{a}, v{a+1}')
    tg = '' if th is None else str(th)
    kk = list(range(5)) if th in (None, 0) else [1, 2, 3, 4]
    vk = list(range(5)) if th in (None, 1) else [1, 2, 3, 4]
    p('s_nop 7')

    def pack_k(kts):
        if CFG['PEEL']:
            return
        for kt in kts:
            for h in range(2):
                b = A_KM(h, kt)
                cvt(b, b)
                cvt(b + 1, b + 2)
            t = A_QKT(kt)
            cvt(t, t)
            cvt(t + 1, t + 2)
        for kt in kts:
            t, k0 = A_QKT(kt), A_KM(0, kt)
            p(f'v_mov_b32 v{k0+2}, v{t}')
            p(f'v_mov_b32 v{k0+3}, v{t+1}')

    def tails_k(kts):
        for kt in kts:
            t, k0 = A_QKT(kt), A_KM(0, kt)
            p(f'v_permlane32_swap_b32 v{t}, v{k0+2}')
            p(f'v_permlane32_swap_b32 v{t+1}, v{k0+3}')

    def copy_k(kts):
        for kt in kts:
            k0, k1 = A_KM(0, kt), A_KM(1, kt)
            p(f'v_mov_b32 v{k1+2}, v{k0+2}')
            p(f'v_mov_b32 v{k1+3}, v{k0+3}')

    def pack_v():
        for kt in vk:
            for base, b in ((A_VM(0, 0), A_VM(0, kt)), (A_VM(1, 0), A_VM(1, kt)), (A_VT(0), A_VT(kt))):
                cvt(base + 2 * kt, b)
                cvt(base + 2 * kt + 1, b + 2)

    vbases = (A_VM(0, 0), A_VM(1, 0), A_VT(0))
    if th == 0:
        pack_k([4])
        pack_v()
        tails_k([4])
        rest = [0, 1, 2, 3]
        pack_k(rest[:1])
        copy_k([4])
        p(f'ds_write_b128 v249, v[{A_KM(0,4)}:{A_KM(0,4)+3}]')
        p(f'ds_write_b128 v249, v[{A_KM(1,4)}:{A_KM(1,4)+3}] offset:1024')
        for i, vb in enumerate(vbases):
            p(f'ds_write_b64 v250, v[{vb+8}:{vb+9}] offset:{2048 + 512*i}')
        pack_k(rest[1:])
        p('s_waitcnt lgkmcnt(0)')
        p('v_mov_b32 v252, 1')
        p('ds_write_b32 v251, v252')
        tails_k(rest)
    elif th == 1:
        pack_v()
        for i, vb in enumerate(vbases):
            p(f'ds_write_b64 v250, v[{vb}:{vb+1}] offset:{4096 + 512*i}')
        rest = [1, 2, 3, 4]
        pack_k(rest)
        p('s_waitcnt lgkmcnt(0)')
        p('v_mov_b32 v252, 1')
        p('ds_write_b32 v251, v252 offset:4')
        tails_k(rest)
    else:
        rest = [0, 1, 2, 3, 4]
        pack_k(rest)
        pack_v()
        tails_k(rest)
    for h in range(2):
        for t in range(4):
            b = A_QM(h, t)
            if not CFG['PEEL']:
                cvt(b, b)
                cvt(b + 1, b + 2)
    copy_k(rest)
    p('s_mov_b32 s60, 0x0000ffff')
    p('s_mov_b32 s61, 0')
    p('s_mov_b32 s62, 0xffff0000')
    p('s_mov_b32 s63, 0')
    for t in range(4):
        for h in range(2):
            q, x = A_QM(h, t), A_QKT(t + 1)
            p(f'v_cndmask_b32 v{q+2}, 0, v{x}, s[{60+2*h}:{61+2*h}]')
            p(f'v_cndmask_b32 v{q+3}, 0, v{x+1}, s[{60+2*h}:{61+2*h}]')
    S = lambda t, h: 152 + (t * 2 + h) * 8

    def qk(t):
        for h in range(2):
            q = A_QM(h, t)
            bp = V_BFIRST if t == 0 else V_BPREV
            kp, kc = A_KM(h, t), A_KM(h, t + 1)
            p(f'v_mfma_f32_16x16x32_bf16 v[{S(t,h)}:{S(t,h)+3}], v[{kp}:{kp+3}], v[{q}:{q+3}], v[{bp}:{bp+3}]')
            p(f'v_mfma_f32_16x16x32_bf16 v[{S(t,h)+4}:{S(t,h)+7}], v[{kc}:{kc+3}], v[{q}:{q+3}], v[{V_BCUR}:{V_BCUR+3}]')

    for t in (3, 2, 1):
        qk(t)
    if CFG['PROF'] == 6:
        p('s_memtime s[72:73]')
    if th is not None:
        p.label(f'L_xspin{th}')
        p(f'ds_read_b32 v252, v251 offset:{4 if th == 0 else 0}')
        p('s_waitcnt lgkmcnt(0)')
        p('v_readfirstlane_b32 s70, v252')
        p('s_cmp_eq_u32 s70, 0')
        p(f's_cbranch_scc1 L_xspin{th}')
        if th == 1:
            p(f'ds_read_b128 v[{A_KM(0,0)}:{A_KM(0,0)+3}], v249')
            p(f'ds_read_b128 v[{A_KM(1,0)}:{A_KM(1,0)+3}], v249 offset:1024')
        for i, vb in enumerate(vbases):
            p(f'ds_read_b64 v[{vb}:{vb+1}], v250 offset:{(2048 if th == 1 else 4096) + 512*i}')
        p('s_waitcnt lgkmcnt(0)')
    qk(0)
    if CFG['PROF'] == 6:
        p('s_memtime s[74:75]')
    cs = (20 ** -0.5) * math.log2(math.e)
    p(f's_mov_b32 s64, {hexf(cs)}')
    p(f's_mov_b32 s65, {hexf(cs)}')
    inst = [(t, h) for t in (3, 2, 1, 0) for h in range(2)]
    for (t, h) in inst:
        s = S(t, h)
        p(f'v_max3_f32 v{s}, v{s}, v{s+1}, v{s+4}')
        p(f'v_max3_f32 v{s+2}, v{s+2}, v{s+3}, v{s+6}')
    for (t, h) in inst:
        s = S(t, h)
        p(f'v_max_f32 v{s}, v{s}, v{s+5}')
        p(f'v_max_f32 v{s+1}, v{s+2}, v{s+7}')
    for (t, h) in inst:
        s = S(t, h)
        p(f'v_max_f32 v{s+2}, v{s}, v{s+1}')

    def cross(groups, op, mid):
        for (A, B, C, D) in groups:
            p(f'v_permlane32_swap_b32 v{A}, v{B}')
            p(f'v_permlane32_swap_b32 v{C}, v{D}')
        for (A, B, C, D) in groups:
            p(f'{op} v{A}, v{A}, v{B}')
            p(f'{op} v{C}, v{C}, v{D}')
        for (A, B, C, D) in groups:
            p(f'v_permlane16_swap_b32 v{A}, v{C}')
        for (A, B, C, D) in groups:
            p(f'{op} v{A}, v{A}, v{C}')
        for (A, B, C, D) in groups:
            mid(A)
        for (A, B, C, D) in groups:
            p(f'v_mov_b32 v{C}, v{A}')
        for (A, B, C, D) in groups:
            p(f'v_permlane16_swap_b32 v{A}, v{C}')
        for (A, B, C, D) in groups:
            p(f'v_mov_b32 v{B}, v{A}')
            p(f'v_mov_b32 v{D}, v{C}')
        for (A, B, C, D) in groups:
            p(f'v_permlane32_swap_b32 v{A}, v{B}')
            p(f'v_permlane32_swap_b32 v{C}, v{D}')

    grp = lambda o: [tuple(S(t, h) + o for (t, h) in inst[0:4]), tuple(S(t, h) + o for (t, h) in inst[4:8])]
    cross(grp(2), 'v_max_f32', lambda A: p(f'v_mul_f32 v{A}, s64, v{A}'))
    for (t, h) in inst:
        s = S(t, h)
        p(f'v_pk_fma_f32 v[{s}:{s+1}], v[{s}:{s+1}], s[64:65], v[{s+2}:{s+3}] op_sel_hi:[1,1,0] neg_lo:[0,0,1] neg_hi:[0,0,1]')
    for (t, h) in inst:
        s = S(t, h)
        p(f'v_exp_f32 v{s}, v{s}')
        p(f'v_exp_f32 v{s+1}, v{s+1}')
    for (t, h) in inst:
        s = S(t, h)
        p(f'v_add_f32 v{s+2}, v{s}, v{s+1}')
    cross(grp(2), 'v_add_f32', lambda A: p(f'v_rcp_f32 v{A}, v{A}'))
    for (t, h) in inst:
        s = S(t, h)
        p(f'v_pk_mul_f32 v[{s}:{s+1}], v[{s}:{s+1}], v[{s+2}:{s+3}] op_sel_hi:[1,0]')
    for (t, h) in inst:
        s = S(t, h)
        p(f'v_cvt_pk_bf16_f32 v{s+2}, v{s}, v{s+1}')
    if CFG['PROF'] == 6:
        p('s_memtime s[76:77]')

    def perm(i):
        s = S(*inst[i])
        for k in range(4):
            p(f'v_perm_b32 v{s+4+k}, v{s+2}, v{s+2}, v{V_SEL+k}')

    def pv(i):
        t, h = inst[i]
        s = S(t, h)
        va, vt = A_VM(h, 0) + 2 * t, A_VT(0) + 2 * t
        om, ot = A_QM(h, t), A_KM(h, t)
        p(f'v_mfma_f32_16x16x32_bf16 v[{om}:{om+3}], v[{va}:{va+3}], v[{s+4}:{s+7}], 0')
        p(f'v_mfma_f32_16x16x32_bf16 v[{ot}:{ot+3}], v[{vt}:{vt+3}], v[{s+4}:{s+7}], 0')

    def pack_main(t):
        for h in range(2):
            o = A_QM(h, t)
            d = S(t, 0) + 2 * h
            p(f'v_cvt_pk_bf16_f32 v{d}, v{o}, v{o+1}')
            p(f'v_cvt_pk_bf16_f32 v{d+1}, v{o+2}, v{o+3}')
        d = S(t, 0)
        p(f's_add_u32 s68, s66, {t*20480}')
        p(f'buffer_store_dwordx4 v[{d}:{d+3}], v248, s[{SRD_WS}:{SRD_WS+3}], s68 offen {CFG["STFO"]}')

    def pack_tail(t):
        d = S(t & 2, 1) + 2 * (t & 1)
        o0, o1 = A_KM(0, t), A_KM(1, t)
        for rr in range(4):
            p(f'v_cndmask_b32 v{o0+rr}, v{o0+rr}, v{o1+rr}, s[62:63]')
        p(f'v_cvt_pk_bf16_f32 v{d}, v{o0}, v{o0+1}')
        p(f'v_cvt_pk_bf16_f32 v{d+1}, v{o0+2}, v{o0+3}')

    perm(0)
    perm(1)
    for i in range(8):
        pv(i)
        if i + 2 < 8:
            perm(i + 2)
        if i in (5, 7):
            pass
    for t in (3, 2):
        pack_main(t)
    for t in (3, 2):
        pack_tail(t)
    pack_main(1)
    pack_tail(1)
    pack_main(0)
    pack_tail(0)
    p('s_mov_b32 exec_hi, 0')
    for pr in range(2):
        d = S(2 * pr, 1)
        p(f's_add_u32 s68, s67, {pr*20480}')
        p(f'buffer_store_dwordx4 v[{d}:{d+3}], v248, s[{SRD_WS}:{SRD_WS+3}], s68 offen {CFG["STFO"]}')
    p('s_mov_b32 exec_hi, -1')


def attn_out_addr(p):
    p(f's_lshl_b32 s65, s{S_RB}, 3')
    p('s_lshl_b32 s66, s56, 2')
    p('s_add_u32 s65, s65, s66')
    p('s_mul_i32 s66, s65, 20')
    p(f's_lshl_b32 s67, s{S_CG}, 1')
    p('s_add_u32 s67, s67, s55')
    p('s_add_u32 s66, s66, s67')
    p('s_lshl_b32 s66, s66, 10')
    p(f's_add_u32 s66, s66, {OA_OFF}')
    p(f's_and_b32 s67, s{S_CG}, 1')
    p('s_lshl_b32 s67, s67, 1')
    p('s_add_u32 s67, s67, s65')
    p('s_mul_i32 s67, s67, 20')
    p(f's_lshr_b32 s68, s{S_CG}, 1')
    p('s_add_u32 s67, s67, s68')
    p('s_add_u32 s67, s67, 16')
    p('s_lshl_b32 s67, s67, 10')
    p('s_lshl_b32 s68, s55, 9')
    p('s_add_u32 s67, s67, s68')
    p(f's_add_u32 s67, s67, {OA_OFF}')


def ffn_prologue(p):
    p(f's_and_b32 s55, s{S_WAVE}, 1')
    p(f's_lshr_b32 s56, s{S_WAVE}, 1')
    p('v_and_b32 v3, 15, v2')
    p('v_lshrrev_b32 v4, 4, v2')
    p('v_lshrrev_b32 v5, 1, v3')
    p('v_xor_b32 v5, v5, v4')
    p('v_lshlrev_b32 v5, 4, v5')
    p('v_lshl_add_u32 v5, v3, 7, v5')
    p('s_lshl_b32 s57, s56, 13')
    p(f'v_add_u32 v{V_X0}, s57, v5')
    p(f'v_xor_b32 v{V_X1}, 64, v{V_X0}')
    p('v_lshrrev_b32 v5, 5, v2')
    p('v_lshlrev_b32 v5, 4, v5')
    p('v_bfe_u32 v6, v2, 4, 1')
    p('v_lshl_add_u32 v5, v6, 2, v5')
    p('v_bfe_u32 v6, v2, 2, 2')
    p('v_add_u32 v5, v5, v6')
    p(f'v_mul_u32_u24 v5, {WROW}, v5')
    p(f'v_add_u32 v5, {XREG}, v5')
    p('v_and_b32 v6, 3, v2')
    p('v_lshl_add_u32 v5, v6, 3, v5')
    p('s_lshl_b32 s57, s55, 8')
    p(f'v_add_u32 v{V_W}, s57, v5')
    p('s_lshl_b32 s57, s55, 5')
    p('s_add_u32 s57, s57, 192')
    p(f'v_add_u32 v{V_WA}, s57, v5')
    p(f's_mul_i32 s57, s{S_CG}, 448')
    p('v_lshlrev_b32 v5, 3, v4')
    p('v_add_u32 v5, s57, v5')
    p('s_lshl_b32 s57, s55, 8')
    p('v_add_u32 v6, s57, v5')
    p('s_lshl_b32 s57, s55, 5')
    p('s_add_u32 s57, s57, 192')
    p('v_add_u32 v7, s57, v5')
    p('v_lshlrev_b32 v248, 4, v2')
    p('s_waitcnt lgkmcnt(0)')
    srd(p, SRD_A, S_B1, 3456)
    for f in range(7):
        if f < 6:
            p(f'buffer_load_dwordx2 v[{200+2*f}:{201+2*f}], v6, s[{SRD_A}:{SRD_A+3}], 0 offen offset:{32*f}')
        else:
            p(f'buffer_load_dwordx2 v[{200+2*f}:{201+2*f}], v7, s[{SRD_A}:{SRD_A+3}], 0 offen')
    tlb_touch(p, 'F')
    p('s_mov_b32 s58, 0xffff0000')
    p('s_waitcnt vmcnt(0)')
    for f in range(7):
        for t in range(4):
            a = F_ACC(f, t)
            p(f'v_lshlrev_b32 v{a}, 16, v{200+2*f}')
            p(f'v_and_b32 v{a+1}, s58, v{200+2*f}')
            p(f'v_lshlrev_b32 v{a+2}, 16, v{201+2*f}')
            p(f'v_and_b32 v{a+3}, s58, v{201+2*f}')


def ffn_epilogue(p):
    k1 = -2.0 * math.sqrt(2.0 / math.pi) * math.log2(math.e)
    k2 = k1 * 0.044715
    C1, C2, ONE = 240, 242, 244
    for r in (0, 1):
        p(f'v_mov_b32 v{C1+r}, {hexf(k1)}')
        p(f'v_mov_b32 v{C2+r}, {hexf(k2)}')
        p(f'v_mov_b32 v{ONE+r}, 1.0')
    p('s_nop 5')
    p(f's_lshl_b32 s65, s{S_RB}, 3')
    p('s_lshl_b32 s66, s56, 2')
    p('s_add_u32 s65, s65, s66')
    p('s_mul_i32 s65, s65, 54')
    p(f's_mul_i32 s66, s{S_CG}, 7')
    p('s_add_u32 s67, s66, 3')
    p('s_lshl_b32 s68, s55, 2')
    p('s_add_u32 s66, s66, s68')
    p('s_add_u32 s69, s65, s67')
    p('s_lshl_b32 s69, s69, 10')
    p('s_lshl_b32 s68, s55, 3')
    p('s_add_u32 s69, s69, s68')
    p('s_add_u32 s68, s65, s66')
    p('s_lshl_b32 s68, s68, 10')

    def gelu(regs, tmp):
        for i, x in enumerate(regs):
            p(f'v_pk_mul_f32 v[{tmp+4*i}:{tmp+4*i+1}], v[{x}:{x+1}], v[{x}:{x+1}]')
        for i, x in enumerate(regs):
            p(f'v_pk_fma_f32 v[{tmp+4*i}:{tmp+4*i+1}], v[{tmp+4*i}:{tmp+4*i+1}], v[{C2}:{C2+1}], v[{C1}:{C1+1}]')
        for i, x in enumerate(regs):
            p(f'v_pk_mul_f32 v[{tmp+4*i}:{tmp+4*i+1}], v[{tmp+4*i}:{tmp+4*i+1}], v[{x}:{x+1}]')
        for i, x in enumerate(regs):
            p(f'v_exp_f32 v{tmp+4*i}, v{tmp+4*i}')
            p(f'v_exp_f32 v{tmp+4*i+1}, v{tmp+4*i+1}')
        for i, x in enumerate(regs):
            p(f'v_pk_add_f32 v[{tmp+4*i}:{tmp+4*i+1}], v[{tmp+4*i}:{tmp+4*i+1}], v[{ONE}:{ONE+1}]')
        for i, x in enumerate(regs):
            p(f'v_rcp_f32 v{tmp+4*i}, v{tmp+4*i}')
            p(f'v_rcp_f32 v{tmp+4*i+1}, v{tmp+4*i+1}')
        for i, x in enumerate(regs):
            p(f'v_pk_mul_f32 v[{x}:{x+1}], v[{tmp+4*i}:{tmp+4*i+1}], v[{x}:{x+1}]')

    OUT = 184
    n = 0
    for pr in range(3):
        p(f's_add_u32 s70, s66, {pr}')
        p('s_cmp_ge_u32 s70, 54')
        p(f's_cbranch_scc1 L_skip_pair{pr}')
        for t in range(4):
            a, b = F_ACC(2 * pr, t), F_ACC(2 * pr + 1, t)
            gelu([a, a + 2, b, b + 2], 152)
            o = OUT + 4 * (n % 4)
            n += 1
            p(f'v_cvt_pk_bf16_f32 v{o}, v{a}, v{a+1}')
            p(f'v_cvt_pk_bf16_f32 v{o+1}, v{a+2}, v{a+3}')
            p(f'v_cvt_pk_bf16_f32 v{o+2}, v{b}, v{b+1}')
            p(f'v_cvt_pk_bf16_f32 v{o+3}, v{b+2}, v{b+3}')
            p(f's_add_u32 s70, s68, {pr*1024 + t*54*1024}')
            p(f'buffer_store_dwordx4 v[{o}:{o+3}], v248, s[{SRD_WS}:{SRD_WS+3}], s70 offen {CFG["STFH"]}')
        p.label(f'L_skip_pair{pr}')
    for t2 in range(2):
        a, b = F_ACC(6, 2 * t2), F_ACC(6, 2 * t2 + 1)
        gelu([a, a + 2, b, b + 2], 152)
        for u, x in enumerate((a, b)):
            o = OUT + 16 + 2 * ((2 * t2 + u) % 2)
            p(f'v_cvt_pk_bf16_f32 v{o}, v{x}, v{x+1}')
            p(f'v_cvt_pk_bf16_f32 v{o+1}, v{x+2}, v{x+3}')
            p(f's_add_u32 s70, s69, {(2*t2+u)*54*1024}')
            p(f'buffer_store_dwordx2 v[{o}:{o+1}], v248, s[{SRD_WS}:{SRD_WS+3}], s70 offen {CFG["STFH"]}')


def gen_k1():
    p = Prog()
    p('s_cmp_ge_u32 s2, 256')
    p('s_cbranch_scc1 L_k1_end')
    p('s_load_dwordx4 s[4:7], s[0:1], 0')
    p('s_load_dwordx4 s[8:11], s[0:1], 16')
    p('s_load_dwordx4 s[12:15], s[0:1], 32')
    p('s_load_dwordx4 s[16:19], s[0:1], 48')
    p('s_load_dwordx2 s[20:21], s[0:1], 64')
    p('s_load_dwordx2 s[22:23], s[0:1], 88')
    if CFG['TT']:
        p('s_load_dwordx2 s[100:101], s[0:1], 72')
    if CFG['PROF']:
        p('s_memrealtime s[88:89]')
        p('s_memtime s[82:83]')
    p('v_lshrrev_b32 v1, 6, v0')
    p('v_and_b32 v2, 63, v0')
    p(f'v_readfirstlane_b32 s{S_WAVE}, v1')
    if CFG['SWAPW']:
        p(f's_add_u32 s{S_WAVE}, s{S_WAVE}, 4')
        p(f's_and_b32 s{S_WAVE}, s{S_WAVE}, 7')
    k1_decode(p)
    p(f's_cmp_eq_u32 s{S_WAVE}, 0')
    p('s_cbranch_scc0 L_nopf')
    p('v_mov_b32 v10, v2')
    code_prefetch(p, 'L_k1_body', 'L_k1_end', CFG.get('K1_BYTES', 20480), 10, 255, 84, 'k1')
    p.label('L_nopf')
    p.label('L_k1_body')
    p(f's_cmp_ge_u32 s{S_WAVE}, 4')
    p('s_cbranch_scc0 L_consumer')
    if CFG['LDFIRST']:
        p(f's_cmp_eq_u32 s{S_TYPE}, 0')
        p('s_cbranch_scc0 L_loader_F')
        k1_loader(p, True)
        k1_loader(p, False)
    else:
        p(f's_cmp_eq_u32 s{S_TYPE}, 0')
        p('s_cbranch_scc1 L_loader_A')
        p('s_branch L_loader_F')
    p.label('L_consumer')
    if CFG['PRIO']:
        p(f's_setprio {CFG["PRIO"]}')
    p(f's_cmp_eq_u32 s{S_TYPE}, 0')
    p('s_cbranch_scc0 L_cons_F')
    p('s_movk_i32 s99, 256')
    prefetch_setup(p, True)
    p('s_waitcnt lgkmcnt(0)')
    tlb_touch(p, 'A')
    attn_prologue(p)
    attn_out_addr(p)
    if CFG['ZVT']:
        p('s_mov_b32 s68, 0x00ff00ff')
        p('s_mov_b32 s69, 0x00ff00ff')
    srd(p, SRD_WS, S_WS, WS_USED)
    srd(p, SRD_X, S_AX, 2048 * 1280)
    srd(p, SRD_W, S_WQKV, 640 * 3840)
    p('s_waitcnt lgkmcnt(0)')
    stamp(p, 0)
    p('s_barrier')
    stamp(p, 1)
    prefetch_issue(p, True)
    if CFG['M35']:
        p('s_cmp_eq_u32 s56, 0')
        p('s_cbranch_scc0 L_attn_th1')
        for th in (0, 1):
            if th:
                p.label('L_attn_th1')
            consumer_loop(p, True, th)
            stamp(p, 2)
            attn_epilogue(p, th)
            stamp(p, 3)
            if CFG['PROF']:
                prof_store(p, 4, 'CA', SRD_WS)
            p('s_endpgm')
    else:
        consumer_loop(p, True)
        stamp(p, 2)
        attn_epilogue(p)
        stamp(p, 3)
        if CFG['PROF']:
            prof_store(p, 4, 'CA', SRD_WS)
        p('s_endpgm')
    p.label('L_cons_F')
    p('s_movk_i32 s99, 256')
    prefetch_setup(p, False)
    ffn_prologue(p)
    srd(p, SRD_WS, S_WS, WS_USED)
    srd(p, SRD_X, S_AX, 2048 * 1280)
    srd(p, SRD_W, S_W1, 640 * 3456)
    p('s_waitcnt lgkmcnt(0)')
    stamp(p, 0)
    p('s_barrier')
    stamp(p, 1)
    prefetch_issue(p, False)
    consumer_loop(p, False)
    stamp(p, 2)
    ffn_epilogue(p)
    stamp(p, 3)
    if CFG['PROF']:
        prof_store(p, 4, 'CF', SRD_WS)
    p('s_endpgm')
    if not CFG['LDFIRST']:
        k1_loader(p, True)
        k1_loader(p, False)
    p.label('L_k1_end')
    p('s_endpgm')
    return p


K2_LAST = {}


def k2_small_loads(p, vg, vb, vb2):
    p(f'buffer_load_dwordx2 v[{K2_G}:{K2_G+1}], v{vg}, s[12:15], 0 offen')
    p(f'buffer_load_dwordx4 v[{K2_B2}:{K2_B2+3}], v{vb}, s[16:19], 0 offen')
    p(f'buffer_load_dwordx4 v[{K2_B2+4}:{K2_B2+7}], v{vb}, s[16:19], 0 offen offset:64')
    p(f'buffer_load_dwordx2 v[{K2_B2+8}:{K2_B2+9}], v{vb2}, s[16:19], 0 offen offset:128')


def k2_stream(p, wave_a):
    NB = CFG['NBUF']
    tag = 'a' if wave_a else 'b'
    nsteps = 20 if wave_a else 18
    ACC = lambda t, f: K2_ACC + (t * 5 + f) * 4
    BA = lambda b, t: 36 * b + 4 * t
    BW = lambda b, f: 36 * b + 16 + 4 * f

    def ld_w(b, f):
        if f < 4:
            p(f'buffer_load_dwordx4 v[{BW(b,f)}:{BW(b,f)+3}], v{K2_VL}, s[12:15], s21 offen offset:{1024*f} {CFG["K2LDF"]}')
        else:
            p(f'buffer_load_dwordx4 v[{BW(b,f)}:{BW(b,f)+3}], v{K2_VL2}, s[12:15], s21 offen {CFG["K2LDF"]}')

    def ld_a(b, t):
        p(f'buffer_load_dwordx4 v[{BA(b,t)}:{BA(b,t)+3}], v{K2_VA+t}, s[12:15], s20 offen {CFG["K2LDF"]}')

    nrot = 16 if wave_a else 18
    state = {'n': 0}

    def adv():
        state['n'] += 1
        p('s_add_u32 s20, s20, 1024')
        p('s_add_u32 s21, s21, 5120')
        if not CFG['ROT2']:
            return
        if state['n'] < nrot:
            p('s_add_u32 s22, s22, 1')
            p(f's_cmp_eq_u32 s22, {nrot}')
            p(f's_cselect_b32 s23, {nrot*1024}, 0')
            p('s_sub_u32 s20, s20, s23')
            p('s_mul_i32 s23, s23, 5')
            p('s_sub_u32 s21, s21, s23')
        elif state['n'] == nrot and wave_a:
            p('s_mov_b32 s20, s34')
            p('s_mov_b32 s21, s35')

    for s in range(min(NB, nsteps)):
        for f in range(5):
            ld_w(s % NB, f)
        for t in range(4):
            ld_a(s % NB, t)
        adv()
    if CFG['GLATE']:
        k2_small_loads(p, 246, 247, 248)
    for r in range(80):
        p(f'v_mov_b32 v{K2_ACC+r}, 0')
    stamp(p, 1)
    for s in range(nsteps):
        b = s % NB
        issued = min(s + NB, nsteps)
        newer = (issued - s - 1) * 9
        if CFG['GLATE'] and s < NB:
            newer += 4
        p(f's_waitcnt vmcnt({newer})')
        more = s + NB < nsteps
        tail = wave_a and s >= 16
        amap = [0, 1, 2, 3]
        if tail:
            for (x, y) in ((0, 2), (1, 3)):
                p(f'v_swap_b32 v{BA(b,x)+2}, v{BA(b,y)}')
                p(f'v_swap_b32 v{BA(b,x)+3}, v{BA(b,y)+1}')
            amap = [0, 2, 1, 3]
        if CFG['K2RED'] == 2 and s == nsteps - 1:
            def last_step(w, b=b, amap=amap):
                p(f'v_add_u32 v220, {w*5120}, v{K2_VL}')
                p(f'v_add_u32 v221, {w*5120 + 40960}, v{K2_VL}')
                order = [t for t in range(4) if t != w] + [w]
                if w != 0:
                    order = [0] + [t for t in (1, 2, 3) if t != w] + [w]
                pend = []
                for k, t in enumerate(order):
                    for f in range(5):
                        acc = ACC(t, f)
                        p(f'v_mfma_f32_16x16x32_bf16 v[{acc}:{acc+3}], v[{BW(b,f)}:{BW(b,f)+3}], v[{BA(b,amap[t])}:{BA(b,amap[t])+3}], v[{acc}:{acc+3}]')
                        if pend and k >= 2:
                            p(pend.pop(0))
                    if t != w:
                        pend += [f'ds_write_b128 v{220 + (t >> 1)}, v[{ACC(t,f)}:{ACC(t,f)+3}] offset:{(t & 1)*20480 + f*1024}' for f in range(5)]
                for ins in pend:
                    p(ins)
            if wave_a:
                last_step(0)
            else:
                K2_LAST['b'] = last_step
            continue
        for f in range(5):
            for t in range(4):
                acc = ACC(t, f)
                if not CFG['K2NOMFMA']:
                    p(f'v_mfma_f32_16x16x32_bf16 v[{acc}:{acc+3}], v[{BW(b,f)}:{BW(b,f)+3}], v[{BA(b,amap[t])}:{BA(b,amap[t])+3}], v[{acc}:{acc+3}]')
            if more and CFG['K2ORD'] == 0:
                ld_w(b, f)
            if more and CFG['K2ORD'] == 2 and f >= 1:
                ld_w(b, f - 1)
        if more:
            if CFG['K2ORD'] == 1:
                for f in range(5):
                    ld_w(b, f)
            if CFG['K2ORD'] == 2:
                ld_w(b, 4)
            for t in range(4):
                ld_a(b, t)
            adv()
    if CFG['K2RED'] == 2:
        p('s_branch L_k2_red_a' if wave_a else 's_branch L_k2_red_b')
    else:
        p('s_branch L_k2_reduce')


K2_ACC = 144
K2_VL, K2_VL2, K2_VA = 224, 225, 226
K2_G, K2_B2 = 230, 232
K2_LDS = 4 * 4 * 5120 + 64


def k2_reduce2(p):
    assert CFG['NBUF'] == 3
    ACC = lambda t, f: K2_ACC + (t * 5 + f) * 4
    R1 = lambda f: 4 * f
    R2 = lambda f: 20 + 4 * f
    R3 = lambda j: 40 + 4 * j
    R4 = lambda j: 48 + 4 * j
    AR = lambda f: 56 + 4 * f
    B = lambda f: 188 + 4 * f
    GP, OP, O0 = 208, 210, 212
    FL, ONE, FA, WA, WB, RB = 214, 218, 219, 220, 221, 222
    O = 80
    FOFF = 81920

    def common(w):
        stamp(p, 2)
        p(f'v_add_u32 v{WA}, {w*5120}, v{K2_VL}')
        p(f'v_add_u32 v{WB}, {w*5120 + 40960}, v{K2_VL}')
        p(f'v_add_u32 v{RB}, {w*20480}, v{K2_VL}')
        p(f'v_mov_b32 v{FA}, {FOFF}')
        p(f'v_mov_b32 v{ONE}, 1')
        p('s_nop 7')

    def write_tiles(tiles):
        for t in tiles:
            for f in range(5):
                p(f'ds_write_b128 v{WA + (t >> 1)}, v[{ACC(t,f)}:{ACC(t,f)+3}] offset:{(t & 1)*20480 + f*1024}')

    def set_flag(i):
        p('s_waitcnt lgkmcnt(0)')
        p(f'ds_write_b32 v{FA}, v{ONE} offset:{4*i}')

    def spin(base, idxs, lbl):
        p.label(lbl)
        p(f'ds_read_b128 v[{FL}:{FL+3}], v{FA} offset:{base}')
        p('s_waitcnt lgkmcnt(0)')
        r = FL + idxs[0]
        for k in idxs[1:]:
            p(f'v_and_b32 v{FL+idxs[0]}, v{r}, v{FL+k}')
        p(f'v_readfirstlane_b32 s62, v{FL+idxs[0]}')
        p('s_cmp_eq_u32 s62, 0')
        p(f's_cbranch_scc1 {lbl}')

    def unpack():
        p('s_mov_b32 s63, 0xffff0000')
        for pr in range(2):
            for d in range(4):
                src = K2_B2 + 4 * pr + d
                f, r = 2 * pr + (d >> 1), 2 * (d & 1)
                p(f'v_lshlrev_b32 v{B(f)+r}, 16, v{src}')
                p(f'v_and_b32 v{B(f)+r+1}, s63, v{src}')
        for d in range(2):
            src = K2_B2 + 8 + d
            p(f'v_lshlrev_b32 v{B(4)+2*d}, 16, v{src}')
            p(f'v_and_b32 v{B(4)+2*d+1}, s63, v{src}')

    def pairs(lo_hi):
        for dst, src in lo_hi:
            p(f'v_mov_b32 v{dst}, v{src}')
            p(f'v_mov_b32 v{dst+1}, v{src}')

    def store(res):
        for pr in range(2):
            for u in range(2):
                a = res(2 * pr + u)
                p(f'v_cvt_pk_bf16_f32 v{O+4*pr+2*u}, v{a}, v{a+1}')
                p(f'v_cvt_pk_bf16_f32 v{O+4*pr+2*u+1}, v{a+2}, v{a+3}')
            p(f'buffer_store_dwordx4 v[{O+4*pr}:{O+4*pr+3}], v242, s[28:31], 0 offen offset:{64*pr} {CFG["OUTF"]}')
        a = res(4)
        p(f'v_cvt_pk_bf16_f32 v{O+8}, v{a}, v{a+1}')
        p(f'v_cvt_pk_bf16_f32 v{O+9}, v{a+2}, v{a+3}')
        p(f'buffer_store_dwordx2 v[{O+8}:{O+9}], v243, s[28:31], 0 offen offset:128 {CFG["OUTF"]}')

    def finish():
        stamp(p, 3)
        if CFG['PROF']:
            prof_store(p, 4, 'K2', 12)
        p('s_endpgm')

    p.label('L_k2_red_a')
    common(0)
    set_flag(0)
    pairs([(GP, K2_G)])
    spin(16, [1, 2, 3], 'L_k2_spin_a')
    for f in range(5):
        p(f'ds_read_b128 v[{R1(f)}:{R1(f)+3}], v{K2_VL} offset:{f*1024}')
    for f in range(5):
        p(f's_waitcnt lgkmcnt({4-f})')
        for r in (0, 2):
            a = ACC(0, f) + r
            p(f'v_pk_fma_f32 v[{a}:{a+1}], v[{a}:{a+1}], v[{GP}:{GP+1}], v[{R1(f)+r}:{R1(f)+r+1}]')
    store(lambda f: ACC(0, f))
    finish()
    p.label('L_k2_red_b')
    for w in (1, 2, 3):
        if w < 3:
            p(f's_cmp_eq_u32 s{S_WAVE}, {w}')
            p(f's_cbranch_scc0 L_k2_red_b{w+1}')
        K2_LAST['b'](w)
        common(w)
        set_flag(w)
        unpack()
        pairs([(GP, K2_G), (OP, K2_G + 1), (O0, 245)])
        o1, o2 = [x for x in (1, 2, 3) if x != w]
        spin(0, [o1, o2], f'L_k2_spin_b{w}')
        sub = {1: [0, 1], 2: [2, 3], 3: [4]}[w]
        for j, f in enumerate(sub):
            p(f'ds_read_b128 v[{R3(j)}:{R3(j)+3}], v{K2_VL} offset:{o1*5120 + f*1024}')
            p(f'ds_read_b128 v[{R4(j)}:{R4(j)+3}], v{K2_VL} offset:{o2*5120 + f*1024}')
        for f in range(5):
            p(f'ds_read_b128 v[{R1(f)}:{R1(f)+3}], v{RB} offset:{o1*5120 + f*1024}')
            p(f'ds_read_b128 v[{R2(f)}:{R2(f)+3}], v{RB} offset:{o2*5120 + f*1024}')
        p('s_waitcnt lgkmcnt(10)')
        for j, f in enumerate(sub):
            for r in (0, 2):
                a = ACC(0, f) + r
                p(f'v_pk_add_f32 v[{R3(j)+r}:{R3(j)+r+1}], v[{R3(j)+r}:{R3(j)+r+1}], v[{R4(j)+r}:{R4(j)+r+1}]')
                p(f'v_pk_add_f32 v[{a}:{a+1}], v[{a}:{a+1}], v[{B(f)+r}:{B(f)+r+1}]')
            for r in (0, 2):
                a = ACC(0, f) + r
                p(f'v_pk_add_f32 v[{a}:{a+1}], v[{a}:{a+1}], v[{R3(j)+r}:{R3(j)+r+1}]')
                p(f'v_pk_mul_f32 v[{a}:{a+1}], v[{a}:{a+1}], v[{O0}:{O0+1}]')
        for j, f in enumerate(sub):
            p(f'ds_write_b128 v{K2_VL}, v[{ACC(0,f)}:{ACC(0,f)+3}] offset:{f*1024}')
        set_flag(4 + w)
        for f in range(5):
            for r in (0, 2):
                a = ACC(w, f) + r
                p(f'v_pk_add_f32 v[{R1(f)+r}:{R1(f)+r+1}], v[{R1(f)+r}:{R1(f)+r+1}], v[{R2(f)+r}:{R2(f)+r+1}]')
                p(f'v_pk_add_f32 v[{a}:{a+1}], v[{a}:{a+1}], v[{B(f)+r}:{B(f)+r+1}]')
            for r in (0, 2):
                a = ACC(w, f) + r
                p(f'v_pk_add_f32 v[{a}:{a+1}], v[{a}:{a+1}], v[{R1(f)+r}:{R1(f)+r+1}]')
                p(f'v_pk_mul_f32 v[{a}:{a+1}], v[{a}:{a+1}], v[{OP}:{OP+1}]')
        spin(0, [0], f'L_k2_spin_c{w}')
        for f in range(5):
            p(f'ds_read_b128 v[{AR(f)}:{AR(f)+3}], v{RB} offset:{f*1024}')
        for f in range(5):
            p(f's_waitcnt lgkmcnt({4-f})')
            for r in (0, 2):
                a = ACC(w, f) + r
                p(f'v_pk_fma_f32 v[{a}:{a+1}], v[{AR(f)+r}:{AR(f)+r+1}], v[{GP}:{GP+1}], v[{a}:{a+1}]')
        store(lambda f: ACC(w, f))
        finish()
        if w < 3:
            p.label(f'L_k2_red_b{w+1}')


def gen_k2():
    global K2_ACC
    NB = CFG['NBUF']
    assert NB * 36 + 80 <= 224
    K2_ACC = NB * 36
    p = Prog()
    p('s_cmp_ge_u32 s2, 256')
    p('s_cbranch_scc1 L_k2_end')
    p('s_load_dwordx2 s[4:5], s[0:1], 88')
    p('s_load_dwordx2 s[6:7], s[0:1], 72')
    p('s_load_dwordx2 s[8:9], s[0:1], 56')
    if CFG['PROF']:
        p('s_memrealtime s[88:89]')
        p('s_memtime s[82:83]')
    p('v_lshrrev_b32 v1, 6, v0')
    p('v_and_b32 v2, 63, v0')
    p(f'v_readfirstlane_b32 s{S_WAVE}, v1')
    p('s_and_b32 s52, s2, 7')
    p('s_lshr_b32 s53, s2, 3')
    if CFG['MAP2'] == '8x4':
        p('s_lshr_b32 s54, s52, 1')
        p('s_lshl_b32 s54, s54, 3')
        p('s_lshr_b32 s55, s53, 2')
        p('s_add_u32 s26, s54, s55')
        p('s_and_b32 s54, s52, 1')
        p('s_lshl_b32 s54, s54, 2')
        p('s_and_b32 s55, s53, 3')
        p('s_add_u32 s27, s54, s55')
    else:
        p('s_lshl_b32 s54, s52, 2')
        p('s_lshr_b32 s55, s53, 3')
        p('s_add_u32 s26, s54, s55')
        p('s_and_b32 s27, s53, 7')
    p(f's_cmp_eq_u32 s{S_WAVE}, 0')
    p('s_cbranch_scc0 L_k2_nopf')
    p('v_mov_b32 v10, v2')
    code_prefetch(p, 'L_k2_body', 'L_k2_end', CFG.get('K2_BYTES', 16384), 10, 255, 84, 'k2')
    p.label('L_k2_nopf')
    p.label('L_k2_body')
    p(f'v_lshlrev_b32 v{K2_VL}, 4, v2')
    p(f'v_add_u32 v{K2_VL2}, 4096, v{K2_VL}')
    p(f's_cmp_eq_u32 s{S_WAVE}, 0')
    p('s_mov_b32 s56, 20480')
    p('s_cselect_b32 s56, s56, 55296')
    p(f's_mov_b32 s57, {OA_OFF}')
    p(f's_cselect_b32 s57, s57, {H_OFF}')
    p(f's_mov_b32 s58, {WO_OFF}')
    p(f's_cselect_b32 s58, s58, {W2_OFF}')
    p('s_cselect_b32 s59, 20, 54')
    p(f's_mul_i32 s60, s{S_WAVE}, 18')
    p('s_cselect_b32 s60, 18, s60')
    p('s_sub_u32 s60, s60, 18')
    p('s_lshl_b32 s61, s26, 2')
    p('s_mul_i32 s61, s61, s56')
    p('s_add_u32 s61, s61, s57')
    p('s_lshl_b32 s62, s60, 10')
    p('s_add_u32 s20, s61, s62')
    p('s_mul_i32 s61, s27, s59')
    p('s_add_u32 s61, s61, s60')
    p('s_mul_i32 s61, s61, 5120')
    p('s_add_u32 s21, s61, s58')
    if CFG['ROT2']:
        p('s_add_u32 s34, s20, 16384')
        p('s_add_u32 s35, s21, 81920')
        if CFG['ROT2'] == 2:
            p('s_xor_b32 s62, s26, s27')
            p('s_and_b32 s62, s62, 1')
            p(f's_cmp_eq_u32 s{S_WAVE}, 0')
            p('s_cselect_b32 s63, 8, 9')
            p('s_mul_i32 s22, s62, s63')
        elif CFG['ROT2'] == 3:
            p('s_add_u32 s62, s26, s27')
            p('s_mul_i32 s63, s62, 43')
            p('s_lshr_b32 s63, s63, 7')
            p('s_mul_i32 s63, s63, 3')
            p('s_sub_u32 s62, s62, s63')
            p(f's_cmp_eq_u32 s{S_WAVE}, 0')
            p('s_cselect_b32 s63, 5, 6')
            p('s_mul_i32 s22, s62, s63')
        else:
            p('s_and_b32 s62, s26, 7')
            p('s_and_b32 s63, s27, 3')
            p('s_lshl_b32 s63, s63, 1')
            p('s_add_u32 s62, s62, s63')
            p(f's_cmp_eq_u32 s{S_WAVE}, 0')
            p('s_cselect_b32 s63, 16, 18')
            p('s_mul_i32 s62, s62, s63')
            p('s_lshr_b32 s22, s62, 3')
            p('s_cmp_ge_u32 s22, s63')
            p('s_cselect_b32 s62, s63, 0')
            p('s_sub_u32 s22, s22, s62')
        p('s_lshl_b32 s62, s22, 10')
        p('s_add_u32 s20, s20, s62')
        p('s_mul_i32 s62, s22, 5120')
        p('s_add_u32 s21, s21, s62')
    for t in range(4):
        p(f's_mul_i32 s62, s56, {t}')
        p(f'v_add_u32 v{K2_VA+t}, s62, v{K2_VL}')
    p('v_and_b32 v3, 15, v2')
    p('v_lshrrev_b32 v4, 4, v2')
    p('s_lshl_b32 s62, s26, 6')
    p(f's_lshl_b32 s63, s{S_WAVE}, 4')
    p('s_add_u32 s62, s62, s63')
    p('v_add_u32 v5, s62, v3')
    p('v_lshlrev_b32 v6, 3, v5')
    p(f'v_add_u32 v6, {G_OFF}, v6')
    p('s_mul_i32 s63, s27, 160')
    p('v_lshlrev_b32 v7, 4, v4')
    p('v_add_u32 v7, s63, v7')
    p('v_lshlrev_b32 v8, 3, v4')
    p('v_add_u32 v8, s63, v8')
    p('s_movk_i32 s63, 1280')
    p('v_mul_u32_u24 v5, s63, v5')
    p('v_add_u32 v242, v5, v7')
    p('v_add_u32 v243, v5, v8')
    if CFG['K2RED'] == 2:
        for r in range(4):
            p(f'v_mov_b32 v{214+r}, 0')
        p('v_mov_b32 v219, 81920')
        p('ds_write_b128 v219, v[214:217]')
        p('ds_write_b128 v219, v[214:217] offset:16')
    p('s_waitcnt lgkmcnt(0)')
    if CFG['K2RED'] == 2:
        p('s_barrier')
    srd(p, 12, 4, WS_USED)
    srd(p, 16, 8, 1280)
    srd(p, 28, 6, 2048 * 1280)
    stamp(p, 0)
    if CFG['K2RED'] == 2:
        p('s_lshl_b32 s62, s26, 6')
        p('v_add_u32 v9, s62, v3')
        p('v_lshlrev_b32 v9, 3, v9')
        p(f'v_add_u32 v9, {G_OFF}, v9')
        p('buffer_load_dwordx2 v[244:245], v9, s[12:15], 0 offen')
    if not CFG['GLATE']:
        k2_small_loads(p, 6, 7, 8)
    else:
        p('v_mov_b32 v246, v6')
        p('v_mov_b32 v247, v7')
        p('v_mov_b32 v248, v8')
    p(f's_cmp_eq_u32 s{S_WAVE}, 0')
    p('s_cbranch_scc0 L_k2_b')
    if CFG['K2PRIO']:
        p(f's_setprio {CFG["K2PRIO"]}')
    k2_stream(p, True)
    p.label('L_k2_b')
    k2_stream(p, False)
    if CFG['K2RED'] == 2:
        k2_reduce2(p)
        p.label('L_k2_end')
        p('s_endpgm')
        return p
    p.label('L_k2_reduce')
    stamp(p, 2)
    ACC = lambda t, f: K2_ACC + (t * 5 + f) * 4
    p(f's_mul_i32 s62, s{S_WAVE}, 5120')
    p(f'v_add_u32 v3, s62, v{K2_VL}')
    p('s_nop 7')
    p('v_add_u32 v4, 40960, v3')
    for t in range(4):
        for f in range(5):
            p(f'ds_write_b128 v{3 + (t >> 1)}, v[{ACC(t,f)}:{ACC(t,f)+3}] offset:{(t & 1)*20480 + f*1024}')
    p(f's_mul_i32 s62, s{S_WAVE}, 20480')
    p(f'v_add_u32 v250, s62, v{K2_VL}')
    p('s_waitcnt lgkmcnt(0)')
    p('s_barrier')
    R = lambda w, f: (w * 5 + f) * 4
    for f in range(5):
        for w in range(4):
            p(f'ds_read_b128 v[{R(w,f)}:{R(w,f)+3}], v250 offset:{w*5120 + f*1024}')
    p('s_mov_b32 s62, 0xffff0000')
    B = lambda f: 100 + 4 * f
    for pr in range(2):
        for d in range(4):
            src = K2_B2 + 4 * pr + d
            f, r = 2 * pr + (d >> 1), 2 * (d & 1)
            p(f'v_lshlrev_b32 v{B(f)+r}, 16, v{src}')
            p(f'v_and_b32 v{B(f)+r+1}, s62, v{src}')
    for d in range(2):
        src = K2_B2 + 8 + d
        p(f'v_lshlrev_b32 v{B(4)+2*d}, 16, v{src}')
        p(f'v_and_b32 v{B(4)+2*d+1}, s62, v{src}')
    p(f'v_mov_b32 v120, v{K2_G}')
    p(f'v_mov_b32 v121, v{K2_G}')
    p(f'v_mov_b32 v122, v{K2_G+1}')
    p(f'v_mov_b32 v123, v{K2_G+1}')
    for f in range(5):
        p(f's_waitcnt lgkmcnt({min(15, 16-4*f)})' if f < 4 else 's_waitcnt lgkmcnt(0)')
        if f == 0:
            p('s_waitcnt lgkmcnt(15)')
        for r in (0, 2):
            a, b1, b2_, b3 = R(0, f) + r, R(1, f) + r, R(2, f) + r, R(3, f) + r
            p(f'v_pk_add_f32 v[{b1}:{b1+1}], v[{b1}:{b1+1}], v[{b2_}:{b2_+1}]')
            p(f'v_pk_add_f32 v[{b3}:{b3+1}], v[{b3}:{b3+1}], v[{B(f)+r}:{B(f)+r+1}]')
            p(f'v_pk_mul_f32 v[{a}:{a+1}], v[{a}:{a+1}], v[120:121]')
            p(f'v_pk_add_f32 v[{b1}:{b1+1}], v[{b1}:{b1+1}], v[{b3}:{b3+1}]')
            p(f'v_pk_fma_f32 v[{a}:{a+1}], v[{b1}:{b1+1}], v[122:123], v[{a}:{a+1}]')
    O = 124
    for pr in range(2):
        for u in range(2):
            a = R(0, 2 * pr + u)
            p(f'v_cvt_pk_bf16_f32 v{O+4*pr+2*u}, v{a}, v{a+1}')
            p(f'v_cvt_pk_bf16_f32 v{O+4*pr+2*u+1}, v{a+2}, v{a+3}')
        p(f'buffer_store_dwordx4 v[{O+4*pr}:{O+4*pr+3}], v242, s[28:31], 0 offen offset:{64*pr} {CFG["OUTF"]}')
    a = R(0, 4)
    p(f'v_cvt_pk_bf16_f32 v{O+8}, v{a}, v{a+1}')
    p(f'v_cvt_pk_bf16_f32 v{O+9}, v{a+2}, v{a+3}')
    p(f'buffer_store_dwordx2 v[{O+8}:{O+9}], v243, s[28:31], 0 offen offset:128 {CFG["OUTF"]}')
    stamp(p, 3)
    if CFG['PROF']:
        prof_store(p, 4, 'K2', 12)
    p.label('L_k2_end')
    p('s_endpgm')
    return p


K2B_R = 4
K2B_STEP = 9216
K2B_SLOT = 4 * K2B_STEP
K2B_LDS = K2B_R * K2B_SLOT


def gen_k2b():
    R, SL, ST = K2B_R, K2B_SLOT, K2B_STEP
    stages = [('a', 4 * i, 4) for i in range(5)] + [('b', 4 * i, 4) for i in range(13)] + [('b', 52, 2)]
    NS = len(stages)
    p = Prog()
    p('s_cmp_ge_u32 s2, 256')
    p('s_cbranch_scc1 L_k2_end')
    p('s_load_dwordx2 s[4:5], s[0:1], 88')
    p('s_load_dwordx2 s[6:7], s[0:1], 72')
    p('s_load_dwordx2 s[8:9], s[0:1], 56')
    if CFG['PROF']:
        p('s_memrealtime s[88:89]')
        p('s_memtime s[82:83]')
    p('v_lshrrev_b32 v1, 6, v0')
    p('v_and_b32 v2, 63, v0')
    p(f'v_readfirstlane_b32 s{S_WAVE}, v1')
    p('s_and_b32 s52, s2, 7')
    p('s_lshr_b32 s53, s2, 3')
    if CFG['MAP2'] == '8x4':
        p('s_lshr_b32 s54, s52, 1')
        p('s_lshl_b32 s54, s54, 3')
        p('s_lshr_b32 s55, s53, 2')
        p('s_add_u32 s26, s54, s55')
        p('s_and_b32 s54, s52, 1')
        p('s_lshl_b32 s54, s54, 2')
        p('s_and_b32 s55, s53, 3')
        p('s_add_u32 s27, s54, s55')
    else:
        p('s_lshl_b32 s54, s52, 2')
        p('s_lshr_b32 s55, s53, 3')
        p('s_add_u32 s26, s54, s55')
        p('s_and_b32 s27, s53, 7')
    p('v_lshlrev_b32 v3, 4, v2')
    p(f's_cmp_ge_u32 s{S_WAVE}, 4')
    p('s_cbranch_scc0 L_k2_consumer')
    p(f's_sub_u32 s57, s{S_WAVE}, 4')
    p('s_mul_i32 s20, s27, 20')
    p('s_add_u32 s20, s20, s57')
    p('s_mul_i32 s20, s20, 5120')
    p(f's_add_u32 s20, s20, {WO_OFF}')
    p('s_mul_i32 s21, s27, 54')
    p('s_add_u32 s21, s21, s57')
    p('s_mul_i32 s21, s21, 5120')
    p(f's_add_u32 s21, s21, {W2_OFF}')
    p('s_lshl_b32 s54, s26, 2')
    p('s_mul_i32 s22, s54, 20')
    p('s_add_u32 s22, s22, s57')
    p('s_lshl_b32 s22, s22, 10')
    p(f's_add_u32 s22, s22, {OA_OFF}')
    p('s_mul_i32 s25, s54, 54')
    p('s_add_u32 s25, s25, s57')
    p('s_lshl_b32 s25, s25, 10')
    if H_OFF:
        p(f's_add_u32 s25, s25, {H_OFF}')
    p(f's_mul_i32 s58, s57, {ST}')
    p('v_add_u32 v4, 4096, v3')
    for u in range(4):
        p(f'v_add_u32 v{10+u}, {20480*u}, v3')
        p(f'v_add_u32 v{14+u}, {55296*u}, v3')
    p('s_waitcnt lgkmcnt(0)')
    srd(p, 12, 4, WS_USED)
    stamp(p, 0)

    def issue(j):
        part, s0, n = stages[j]
        slot = j % R
        if n < 4:
            p(f's_cmp_ge_u32 s57, {n}')
            p(f's_cbranch_scc1 L_k2_skip{j}')
        p(f's_add_u32 s23, s{20 if part == "a" else 21}, {s0*5120}')
        p(f's_add_u32 s24, s{22 if part == "a" else 25}, {s0*1024}') if False else None
        p(f's_add_u32 m0, s58, {slot*SL}')
        p(f's_add_u32 s59, s{22 if part == "a" else 25}, {s0*1024}')
        for f in range(4):
            p(f'buffer_load_dwordx4 v3, s[12:15], s23 offen offset:{1024*f} {CFG["K2LDF"]} lds')
        p(f's_add_u32 m0, s58, {slot*SL + 4096}')
        p('s_nop 0')
        p(f'buffer_load_dwordx4 v4, s[12:15], s23 offen {CFG["K2LDF"]} lds')
        for u in range(4):
            p(f's_add_u32 m0, s58, {slot*SL + 5120 + 1024*u}')
            p('s_nop 0')
            p(f'buffer_load_dwordx4 v{(10 if part == "a" else 14)+u}, s[12:15], s59 offen {CFG["K2LDF"]} lds')
        if n < 4:
            p.label(f'L_k2_skip{j}')

    for j in range(R - 1):
        issue(j)
    stamp(p, 1)
    for j in range(NS):
        hi = min(j + R - 2, NS - 1)
        newer = 9 * (hi - j)
        if hi == NS - 1 and j < NS - 1:
            newer -= 9
        p(f's_waitcnt vmcnt({max(newer, 0)})')
        p('s_barrier')
        if j + R - 1 < NS:
            issue(j + R - 1)
    stamp(p, 2)
    stamp(p, 3)
    if CFG['PROF']:
        prof_store(p, 4, 'K2', 12)
    p('s_endpgm')
    p.label('L_k2_consumer')
    p(f's_cmp_eq_u32 s{S_WAVE}, 0')
    p('s_cbranch_scc0 L_k2_nopf')
    p('v_mov_b32 v10, v2')
    code_prefetch(p, 'L_k2_body', 'L_k2_end', CFG.get('K2_BYTES', 12288), 10, 255, 84, 'k2')
    p.label('L_k2_nopf')
    p.label('L_k2_body')
    ACA, ACB = 0, 20
    WR = lambda q, f: 40 + 20 * q + 4 * f
    AR = lambda q: 120 + 4 * q
    G, B2 = 230, 232
    p('s_lshl_b32 s54, s26, 2')
    p(f's_add_u32 s54, s54, s{S_WAVE}')
    p('v_and_b32 v4, 15, v2')
    p('v_lshrrev_b32 v5, 4, v2')
    p('s_lshl_b32 s55, s54, 4')
    p('v_add_u32 v6, s55, v4')
    p('v_lshlrev_b32 v7, 3, v6')
    p(f'v_add_u32 v7, {G_OFF}, v7')
    p('s_mul_i32 s55, s27, 160')
    p('v_lshlrev_b32 v8, 4, v5')
    p('v_add_u32 v8, s55, v8')
    p('v_lshlrev_b32 v9, 3, v5')
    p('v_add_u32 v9, s55, v9')
    p('v_mul_u32_u24 v6, 1280, v6')
    p('v_add_u32 v242, v6, v8')
    p('v_add_u32 v243, v6, v9')
    p(f's_lshl_b32 s55, s{S_WAVE}, 10')
    p('s_add_u32 s55, s55, 5120')
    for sl in range(R):
        p(f'v_add_u32 v{244+sl}, {sl*SL}, v3')
        p(f'v_add_u32 v{250+sl}, s55, v{244+sl}')
    p(f's_lshr_b32 s55, s{S_WAVE}, 1')
    p('s_lshl_b32 s55, s55, 10')
    p(f's_and_b32 s56, s{S_WAVE}, 1')
    p('s_lshl_b32 s56, s56, 3')
    p('s_add_u32 s55, s55, s56')
    p('s_add_u32 s55, s55, 5120')
    p('v_add_u32 v249, s55, v3')
    p('s_waitcnt lgkmcnt(0)')
    srd(p, 12, 4, WS_USED)
    srd(p, 16, 8, 1280)
    srd(p, 28, 6, 2048 * 1280)
    stamp(p, 0)
    p(f'buffer_load_dwordx2 v[{G}:{G+1}], v7, s[12:15], 0 offen')
    p(f'buffer_load_dwordx4 v[{B2}:{B2+3}], v8, s[16:19], 0 offen')
    p(f'buffer_load_dwordx4 v[{B2+4}:{B2+7}], v8, s[16:19], 0 offen offset:64')
    p(f'buffer_load_dwordx2 v[{B2+8}:{B2+9}], v9, s[16:19], 0 offen offset:128')
    for r in range(40):
        p(f'v_mov_b32 v{r}, 0')
    stamp(p, 1)
    for j, (part, s0, n) in enumerate(stages):
        slot = j % R
        tail = (part == 'a' and s0 == 16)
        assert not tail or slot == 0
        p('s_barrier')
        log = []
        for q in range(n):
            if tail:
                p(f'ds_read_b64 v[{AR(q)}:{AR(q)+1}], v249 offset:{q*ST}')
                p(f'ds_read_b64 v[{AR(q)+2}:{AR(q)+3}], v249 offset:{q*ST + 2048}')
                log += [('a', q), ('a', q)]
            else:
                p(f'ds_read_b128 v[{AR(q)}:{AR(q)+3}], v{250+slot} offset:{q*ST}')
                log.append(('a', q))
            for f in range(5):
                p(f'ds_read_b128 v[{WR(q,f)}:{WR(q,f)+3}], v{244+slot} offset:{q*ST + f*1024}')
                log.append(('w', q, f))
        known = max(0, len(log) - 15) if len(log) > 15 else 0
        done = -1
        for q in range(n):
            acc0 = ACA if part == 'a' else ACB
            for f in range(5):
                idx = log.index(('w', q, f))
                if idx > done:
                    left = len(log) - 1 - idx
                    w = min(left, 15)
                    p(f's_waitcnt lgkmcnt({w})')
                    done = len(log) - 1 - w
                p(f'v_mfma_f32_16x16x32_bf16 v[{acc0+4*f}:{acc0+4*f+3}], v[{WR(q,f)}:{WR(q,f)+3}], v[{AR(q)}:{AR(q)+3}], v[{acc0+4*f}:{acc0+4*f+3}]')
    stamp(p, 2)
    p('s_mov_b32 s62, 0xffff0000')
    p('s_waitcnt vmcnt(0)')
    Bf = lambda f: 100 + 4 * f
    for pr in range(2):
        for d in range(4):
            s_ = B2 + 4 * pr + d
            f, r = 2 * pr + (d >> 1), 2 * (d & 1)
            p(f'v_lshlrev_b32 v{Bf(f)+r}, 16, v{s_}')
            p(f'v_and_b32 v{Bf(f)+r+1}, s62, v{s_}')
    for d in range(2):
        s_ = B2 + 8 + d
        p(f'v_lshlrev_b32 v{Bf(4)+2*d}, 16, v{s_}')
        p(f'v_and_b32 v{Bf(4)+2*d+1}, s62, v{s_}')
    p(f'v_mov_b32 v120, v{G}')
    p(f'v_mov_b32 v121, v{G}')
    p(f'v_mov_b32 v122, v{G+1}')
    p(f'v_mov_b32 v123, v{G+1}')
    for f in range(5):
        for r in (0, 2):
            a, b = ACA + 4 * f + r, ACB + 4 * f + r
            p(f'v_pk_add_f32 v[{b}:{b+1}], v[{b}:{b+1}], v[{Bf(f)+r}:{Bf(f)+r+1}]')
            p(f'v_pk_mul_f32 v[{a}:{a+1}], v[{a}:{a+1}], v[120:121]')
    for f in range(5):
        for r in (0, 2):
            a, b = ACA + 4 * f + r, ACB + 4 * f + r
            p(f'v_pk_fma_f32 v[{a}:{a+1}], v[{b}:{b+1}], v[122:123], v[{a}:{a+1}]')
    O = 124
    for pr in range(2):
        for u in range(2):
            a = ACA + 4 * (2 * pr + u)
            p(f'v_cvt_pk_bf16_f32 v{O+4*pr+2*u}, v{a}, v{a+1}')
            p(f'v_cvt_pk_bf16_f32 v{O+4*pr+2*u+1}, v{a+2}, v{a+3}')
        p(f'buffer_store_dwordx4 v[{O+4*pr}:{O+4*pr+3}], v242, s[28:31], 0 offen offset:{64*pr} {CFG["OUTF"]}')
    a = ACA + 16
    p(f'v_cvt_pk_bf16_f32 v{O+8}, v{a}, v{a+1}')
    p(f'v_cvt_pk_bf16_f32 v{O+9}, v{a+2}, v{a+3}')
    p(f'buffer_store_dwordx2 v[{O+8}:{O+9}], v243, s[28:31], 0 offen offset:128 {CFG["OUTF"]}')
    stamp(p, 3)
    if CFG['PROF']:
        prof_store(p, 4, 'K2', 12)
    p.label('L_k2_end')
    p('s_endpgm')
    return p


def gen_k2t():
    NW, INF, MODE = CFG['NW'], CFG['INF'], CFG['TMODE']
    p = Prog()
    p('s_cmp_ge_u32 s2, 256')
    p('s_cbranch_scc1 L_k2_end')
    p('s_load_dwordx2 s[4:5], s[0:1], 88')
    p('s_memrealtime s[88:89]')
    p('s_memtime s[82:83]')
    p('v_lshrrev_b32 v1, 6, v0')
    p('v_and_b32 v2, 63, v0')
    p(f'v_readfirstlane_b32 s{S_WAVE}, v1')
    p('s_and_b32 s52, s2, 7')
    p('s_lshr_b32 s53, s2, 3')
    p('s_lshr_b32 s54, s52, 1')
    p('s_lshl_b32 s54, s54, 3')
    p('s_lshr_b32 s55, s53, 2')
    p('s_add_u32 s26, s54, s55')
    p('s_and_b32 s54, s52, 1')
    p('s_lshl_b32 s54, s54, 2')
    p('s_and_b32 s55, s53, 3')
    p('s_add_u32 s27, s54, s55')
    p('v_lshlrev_b32 v3, 4, v2')
    p('v_add_u32 v4, 4096, v3')
    nst = 72 // NW
    p(f's_mul_i32 s60, s{S_WAVE}, {nst}')
    p('s_cmp_ge_u32 s60, 54')
    p('s_cselect_b32 s61, 1, 0')
    p('s_cselect_b32 s56, 20480, 0')
    p('s_cselect_b32 s56, s56, 55296')
    p(f's_mov_b32 s57, {OA_OFF}')
    p(f's_cselect_b32 s57, s57, {H_OFF}')
    p(f's_mov_b32 s58, {WO_OFF}')
    p(f's_cselect_b32 s58, s58, {W2_OFF}')
    p('s_cselect_b32 s59, 20, 54')
    p('s_cselect_b32 s62, 54, 0')
    p('s_sub_u32 s60, s60, s62')
    p('s_lshl_b32 s61, s26, 2')
    p('s_mul_i32 s61, s61, s56')
    p('s_add_u32 s61, s61, s57')
    p('s_lshl_b32 s62, s60, 10')
    p('s_add_u32 s20, s61, s62')
    p('s_mul_i32 s61, s27, s59')
    p('s_add_u32 s61, s61, s60')
    p('s_mul_i32 s61, s61, 5120')
    p('s_add_u32 s21, s61, s58')
    for t in range(4):
        p(f's_mul_i32 s62, s56, {t}')
        p(f'v_add_u32 v{10+t}, s62, v3')
    p(f's_mul_i32 s63, s{S_WAVE}, 16384')
    p('s_waitcnt lgkmcnt(0)')
    srd(p, 12, 4, WS_USED)
    stamp(p, 0)
    stamp(p, 1)
    n = 0
    for s in range(nst):
        for f in range(9):
            r = 20 + 4 * (n % 48)
            if MODE == 'dma':
                p(f's_add_u32 m0, s63, {(n % 16) * 1024}')
                p('s_nop 0')
            a, so, off = (3, 's21', 1024 * f) if f < 4 else ((4, 's21', 0) if f == 4 else (10 + f - 5, 's20', 0))
            if MODE == 'dma':
                if f < 4 and f > 0:
                    p(f's_sub_u32 m0, m0, {off}')
                    p('s_nop 0')
                p(f'buffer_load_dwordx4 v{a}, s[12:15], {so} offen offset:{off} lds')
            else:
                p(f'buffer_load_dwordx4 v[{r}:{r+3}], v{a}, s[12:15], {so} offen offset:{off}')
            p(f's_waitcnt vmcnt({INF})')
            n += 1
        p('s_add_u32 s20, s20, 1024')
        p('s_add_u32 s21, s21, 5120')
    p('s_waitcnt vmcnt(0)')
    stamp(p, 2)
    stamp(p, 3)
    prof_store(p, 4, 'K2', 12)
    p.label('L_k2_end')
    p('s_endpgm')
    return p


def gen_kpf():
    p = Prog()
    p('s_cmp_ge_u32 s2, 256')
    p('s_cbranch_scc1 L_kpf_end')
    p('s_load_dwordx2 s[4:5], s[0:1], 88')
    p('v_and_b32 v2, 63, v0')
    p('v_lshrrev_b32 v1, 6, v0')
    p('s_and_b32 s52, s2, 7')
    p('s_lshr_b32 s53, s2, 3')
    p('v_lshlrev_b32 v3, 7, v0')
    p('s_waitcnt lgkmcnt(0)')
    srd(p, 12, 4, WS_USED)
    if CFG['KPF'] == 1:
        p('s_and_b32 s54, s52, 1')
        p(f's_mul_i32 s55, s54, {4*54*5120}')
        p(f's_add_u32 s55, s55, {W2_OFF}')
        p('s_lshl_b32 s56, s53, 15')
        p('s_add_u32 s57, s55, s56')
        p('buffer_load_dword v10, v3, s[12:15], s57 offen')
        p('s_add_u32 s57, s57, 57344')
        p('buffer_load_dword v10, v3, s[12:15], s57 offen')
        p(f's_mul_i32 s55, s54, {4*20*5120}')
        p(f's_add_u32 s55, s55, {WO_OFF}')
        p('s_mul_i32 s56, s53, 12800')
        p('s_add_u32 s57, s55, s56')
        p('buffer_load_dword v10, v3, s[12:15], s57 offen')
    else:
        p('s_lshr_b32 s54, s52, 1')
        p(f's_mul_i32 s55, s54, {32*55296}')
        p('s_mul_i32 s56, s53, 55296')
        p('s_add_u32 s57, s55, s56')
        p('buffer_load_dword v10, v3, s[12:15], s57 offen')
        p('s_add_u32 s57, s57, 22528')
        p('buffer_load_dword v10, v3, s[12:15], s57 offen')
        p(f's_mul_i32 s55, s54, {32*20480}')
        p(f's_add_u32 s55, s55, {OA_OFF}')
        p('s_mul_i32 s56, s53, 20480')
        p('s_add_u32 s57, s55, s56')
        p('buffer_load_dword v10, v3, s[12:15], s57 offen')
    p('s_waitcnt vmcnt(0)')
    p.label('L_kpf_end')
    p('s_endpgm')
    return p


HEADER = """; gated mix of (sliding dilated attention branch) and (GELU MLP branch), S=2048 D=640 H=32 Dh=20 F=1728, bf16.
; @launch kernel=gm_k1_kernel grid=(256,1,1) block=(512,1,1) lds=%d
; @launch kernel=gm_k2_kernel grid=(256,1,1) block=(256,1,1) lds=%d
.amdgcn_target "amdgcn-amd-amdhsa--gfx950"
"""

KD = """.amdhsa_kernel %s
  .amdhsa_next_free_vgpr %d
  .amdhsa_next_free_sgpr 102
  .amdhsa_accum_offset %d
  .amdhsa_group_segment_fixed_size 0
  .amdhsa_kernarg_size 96
  .amdhsa_user_sgpr_count 2
  .amdhsa_user_sgpr_kernarg_segment_ptr 1
  .amdhsa_system_sgpr_workgroup_id_x 1
  .amdhsa_float_denorm_mode_32 3
.end_amdhsa_kernel
"""


def main():
    k1 = gen_k1()
    k2 = gen_k2b() if CFG['K2V'] == 2 else (gen_k2t() if CFG['K2V'] == 3 else gen_k2())
    t1, t2 = k1.finish(), k2.finish()
    s = HEADER % (K1_LDS, K2B_LDS if CFG['K2V'] == 2 else K2_LDS)
    if CFG['K2V'] == 3:
        s = s.replace('kernel=gm_k2_kernel grid=(256,1,1) block=(256,1,1) lds=%d' % K2_LDS, 'kernel=gm_k2_kernel grid=(256,1,1) block=(%d,1,1) lds=131072' % (64 * CFG['NW']))
    if CFG['K2V'] == 2:
        s = s.replace('kernel=gm_k2_kernel grid=(256,1,1) block=(256,1,1)', 'kernel=gm_k2_kernel grid=(256,1,1) block=(512,1,1)')
    if CFG['K2TWICE']:
        ln = [l for l in s.split('\n') if 'kernel=gm_k2_kernel' in l][0]
        s = s.replace(ln, ln + '\n' + ln)
    s += '.text\n'
    for name, t in (('gm_k1_kernel', t1), ('gm_k2_kernel', t2)):
        s += f'.globl {name}\n.p2align 8\n.type {name},@function\n{name}:\n{t}'
    s += '.p2align 8\n.fill 64, 4, 0xbf800000\n' if False else ''
    if CFG['KPF']:
        s += '.globl gm_pf_kernel\n.p2align 8\n.type gm_pf_kernel,@function\ngm_pf_kernel:\n' + gen_kpf().finish()
        ln = [l for l in s.split('\n') if 'kernel=gm_k2_kernel' in l][0]
        s = s.replace(ln, '; @launch kernel=gm_pf_kernel grid=(256,1,1) block=(256,1,1) lds=0\n' + ln)
    s += '.section .rodata,"a"\n.p2align 6\n'
    s += KD % ('gm_k1_kernel', 256, 256)
    s += '.p2align 6\n'
    s += KD % ('gm_k2_kernel', 256, 256)
    if CFG['KPF']:
        s += '.p2align 6\n' + KD % ('gm_pf_kernel', 64, 64)
    out = CFG.get('OUT', f'cdna_kernels/{NAME}.s')
    open(out, 'w').write(s)
    print('written', out, len(s), 'bytes; nops inserted k1', k1.nops_inserted, 'k2', k2.nops_inserted)


if __name__ == '__main__':
    main()
```

```python
import sys, os, math, struct
sys.path.insert(0, os.path.dirname(os.path.abspath(__file__)))
from asmlib import Prog, vr, ar, sr

NAME = 'gated_mix__sliding_local_dilated__dense_activation_gelu__prompt'

CFG = dict(MAP1='m82', MAP2='8x4', NBUF=3, PROF=0, NOMFMA=0, NOLOAD=0, NODS=0, STF='sc1', LDF='', ULDF='nt', PFF='', PF=0, TT=0, ROT=1, ROT2=0, K2TWICE=0, K2V=1, M35=1, ZVT=0, DEDUP=1, K2RED=2, K2PRIO=0, USPF=0, TJ=7, TL=0, GLATE=0, STFO='sc1', STFH='sc1', ALIGN=0, UNITS_FFN=1, NFU=3, PEEL=1, SWAPW=0, LDFIRST=2, PRIO=0, K2ORD=0, KPF=0, LDF0='nt', NT_ST=0, ZOOB=1, TEARLY=0, K2PF=1, DA=12, NW=4, INF=32, TMODE='reg', K2NOMFMA=0, K2LDF='', OUTF='')
for a in sys.argv[1:]:
    if '=' in a:
        k, v = a.split('=')
        CFG[k] = int(v) if v.lstrip('-').isdigit() else v.replace('+', ' ')

H_OFF = 0
OA_OFF = H_OFF + 128 * 54 * 1024
W2_OFF = OA_OFF + 128 * 20 * 1024
WO_OFF = W2_OFF + 8 * 54 * 5120
G_OFF = WO_OFF + 8 * 20 * 5120
WS_USED = G_OFF + 2048 * 8
PROF_OFF = 16 << 20

XREG = 144 * 128
WROW = 480
WREG = 64 * WROW
SLOT = XREG + WREG
XFLAG = 3 * 49152 + 15360
SCR = 3 * SLOT
K1_LDS = 163840


def f32(x):
    return struct.unpack('<I', struct.pack('<f', x))[0]


def hexf(x):
    return '0x%08x' % f32(x)


S_AX, S_WQKV, S_WO, S_BX, S_W1, S_B1, S_W2, S_B2, S_GW, S_WS = 4, 6, 8, 10, 12, 14, 16, 18, 20, 22
S_WAVE, S_TYPE, S_RB, S_CG = 24, 25, 26, 27
SRD_X, SRD_W, SRD_I4, SRD_WS, SRD_A, SRD_B = 28, 32, 36, 40, 44, 48


def srd(p, base, ptr, nbytes):
    p(f's_mov_b32 s{base}, s{ptr}')
    p(f's_mov_b32 s{base+1}, s{ptr+1}')
    p(f's_mov_b32 s{base+2}, {nbytes}')
    p(f's_mov_b32 s{base+3}, 0x20000')


def code_prefetch(p, lbl_from, lbl_to, nbytes, vtmp, vdst, s, tag):
    p(f's_getpc_b64 s[{s}:{s+1}]')
    p.label(f'L_pc_{tag}')
    p(f's_add_u32 s{s}, s{s}, {lbl_from}-L_pc_{tag}')
    p(f's_addc_u32 s{s+1}, s{s+1}, 0')
    p(f'v_lshlrev_b32 v{vtmp}, 6, v{vtmp}')
    n = (nbytes + 4095) // 4096
    for j in range(n):
        p(f'v_min_u32 v{vtmp+1}, {lbl_to}-{lbl_from}, v{vtmp}')
        p(f'global_load_dword v{vdst}, v{vtmp+1}, s[{s}:{s+1}]')
        if j + 1 < n:
            p(f'v_add_u32 v{vtmp}, 4096, v{vtmp}')
    return n


def stamp(p, idx, sbase=90):
    if CFG['PROF']:
        p(f'{"s_memtime" if CFG["PROF"] in (2, 3, 6) else "s_memrealtime"} s[{sbase+2*idx}:{sbase+2*idx+1}]')


def k1_decode(p):
    p('s_and_b32 s52, s2, 7')
    p('s_lshr_b32 s53, s2, 3')
    if CFG['MAP1'] == 'mixed':
        p(f's_lshr_b32 s{S_TYPE}, s53, 4')
        p('s_and_b32 s54, s53, 15')
        p('s_lshr_b32 s55, s52, 1')
        p('s_lshl_b32 s55, s55, 2')
        p('s_lshr_b32 s56, s54, 2')
        p(f's_add_u32 s{S_RB}, s55, s56')
        p('s_and_b32 s55, s52, 1')
        p('s_lshl_b32 s55, s55, 2')
        p('s_and_b32 s56, s54, 3')
        p(f's_add_u32 s{S_CG}, s55, s56')
    elif CFG['MAP1'] == 'm82':
        p(f's_lshr_b32 s{S_TYPE}, s53, 4')
        p('s_lshr_b32 s55, s52, 2')
        p('s_lshl_b32 s55, s55, 3')
        p('s_and_b32 s56, s53, 7')
        p(f's_add_u32 s{S_RB}, s55, s56')
        p('s_and_b32 s55, s52, 3')
        p('s_lshl_b32 s55, s55, 1')
        p('s_bfe_u32 s56, s53, 0x10003')
        p(f's_add_u32 s{S_CG}, s55, s56')
    else:
        p(f's_lshr_b32 s{S_TYPE}, s52, 2')
        p('s_and_b32 s54, s52, 3')
        p('s_lshr_b32 s55, s54, 1')
        p('s_lshl_b32 s55, s55, 3')
        p('s_lshr_b32 s56, s53, 2')
        p(f's_add_u32 s{S_RB}, s55, s56')
        p('s_and_b32 s55, s54, 1')
        p('s_lshl_b32 s55, s55, 2')
        p('s_and_b32 s56, s53, 3')
        p(f's_add_u32 s{S_CG}, s55, s56')


def k1_loader(p, attn):
    tag = 'A' if attn else 'F'
    rowstride = 3840 if attn else 3456
    VOFF = 10
    VL = 2
    p.label(f'L_loader_{tag}')
    p(f's_sub_u32 s57, s{S_WAVE}, 4')
    p(f'v_lshrrev_b32 v3, 3, v{VL}')
    p('s_lshl_b32 s58, s57, 3')
    p('v_add_u32 v3, s58, v3')
    p(f's_lshl_b32 s59, s{S_RB}, 7')
    if attn:
        p('s_sub_u32 s59, s59, 16')
    p('v_add_u32 v3, s59, v3')
    p('s_and_b32 s58, s57, 1')
    p('s_lshl_b32 s58, s58, 2')
    p(f'v_lshrrev_b32 v4, 4, v{VL}')
    p('v_add_u32 v4, s58, v4')
    p(f'v_and_b32 v5, 7, v{VL}')
    p('v_xor_b32 v4, v4, v5')
    p('v_lshlrev_b32 v4, 4, v4')
    p('s_movk_i32 s58, 1280')
    p('s_movk_i32 s59, 2047')
    for i in range(5):
        p(f'v_add_u32 v5, {32*i}, v3')
        if attn and i == 0:
            p('v_max_i32 v5, 0, v5')
        if (not attn) and i == 4:
            p('v_min_u32 v5, s59, v5')
        p('v_mul_u32_u24 v5, s58, v5')
        if (not attn) and i == 4 and CFG['DEDUP']:
            p(f'v_mov_b32 v6, v{VOFF}')
        else:
            p(f'v_add_u32 v{VOFF+i if i < 4 else 6}, v5, v4')
    p('s_lshl_b32 s58, s57, 6')
    p(f'v_add_u32 v7, s58, v{VL}')
    p(f's_mov_b32 s60, {rowstride}')
    p('v_mov_b32 v9, 0x7ffffff0')
    if attn:
        p(f's_mul_i32 s61, s{S_CG}, 160')
    else:
        p(f's_mul_i32 s61, s{S_CG}, 448')

    def w_offset(i):
        base = 64 * (4 * i - 18)
        dst = VOFF + i if i > 4 else 8
        if base >= 0:
            p(f'v_add_u32 v3, {base}, v7')
        else:
            p(f'v_subrev_u32 v3, {-base}, v7')
            p('v_max_i32 v3, 0, v3')
        p('v_mul_u32_u24 v4, 2185, v3')
        p('v_lshrrev_b32 v4, 16, v4')
        p('v_mul_u32_u24 v5, 30, v4')
        p('v_sub_u32 v5, v3, v5')
        p('v_lshrrev_b32 v3, 1, v4')
        p('v_xor_b32 v3, v3, v4')
        p('v_and_b32 v3, 4, v3')
        p('v_mul_u32_u24 v3, 3, v3')
        p('v_xor_b32 v4, v3, v4')
        p('v_mul_u32_u24 v4, s60, v4')
        if attn:
            p('v_mul_u32_u24 v3, 205, v5')
            p('v_lshrrev_b32 v3, 11, v3')
            p('v_mul_u32_u24 v3, 1120, v3')
            p('v_lshlrev_b32 v5, 4, v5')
            p('v_add3_u32 v5, v5, v3, s61')
        else:
            if CFG['DEDUP']:
                p('v_min_u32 v5, 27, v5')
            p('v_lshlrev_b32 v5, 4, v5')
            p('v_add_u32 v5, s61, v5')
            if CFG['ZOOB']:
                p('v_cmp_lt_u32 vcc, 3440, v5')
            else:
                p('v_min_u32 v5, 3440, v5')
        p(f'v_add_u32 v{dst}, v4, v5')
        if (not attn) and CFG['ZOOB']:
            p(f'v_cndmask_b32 v{dst}, v{dst}, v9, vcc')
        if i == 4:
            p('s_cmp_lt_u32 s57, 2')
            p('s_cselect_b64 vcc, -1, 0')
            p(f'v_cndmask_b32 v{VOFF+4}, v8, v6, vcc')

    p('s_waitcnt lgkmcnt(0)')
    if attn:
        srd(p, SRD_X, S_AX, 2048 * 1280)
        srd(p, SRD_W, S_WQKV, 640 * 3840)
    else:
        srd(p, SRD_X, S_AX, 2048 * 1280)
        srd(p, SRD_W, S_W1, 640 * 3456)
    p('s_cmp_lt_u32 s57, 2')
    for k in range(3):
        p(f's_cselect_b32 s{SRD_I4+k}, s{SRD_X+k}, s{SRD_W+k}')
    p(f's_mov_b32 s{SRD_I4+3}, 0x20000')
    p('s_movk_i32 s73, 128')
    p('s_cselect_b32 s73, s73, %d' % (64 * rowstride))
    if CFG['ROT']:
        p(f's_and_b32 s79, s{S_RB}, 7')
        p('s_lshr_b32 s80, s79, 2')
        p('s_add_u32 s79, s79, s80')
        if CFG['MAP1'] == 'spec':
            p(f's_and_b32 s80, s{S_CG}, 3')
        else:
            p(f's_and_b32 s80, s{S_CG}, 1')
            p(f's_lshl_b32 s81, s{S_TYPE}, 1')
            p('s_add_u32 s80, s80, s81')
        p('s_mul_i32 s80, s80, 5')
        p('s_lshr_b32 s80, s80, 1')
        p('s_add_u32 s79, s79, s80')
        p('s_cmp_ge_u32 s79, 10')
        p('s_cselect_b32 s80, 10, 0')
        p('s_sub_u32 s79, s79, s80')
    else:
        p('s_mov_b32 s79, 0')
    p('s_lshl_b32 s74, s79, 7')
    p(f's_mul_i32 s75, s79, {64*rowstride}')
    p('s_mul_i32 s76, s79, s73')
    p('s_lshl_b32 s77, s57, 10')

    def issue_stage(st, lazy=False):
        slot = st % 3
        ldf = CFG['LDF0'] if st < CFG['NT_ST'] else CFG['LDF']
        for i in range(12):
            if lazy and i >= 4:
                w_offset(i)
            p(f's_add_u32 m0, s77, {slot*SLOT + i*4096}')
            if i < 4:
                if i == 0:
                    p('s_nop 0')
                p(f'buffer_load_dwordx4 v{VOFF+i}, s[{SRD_X}:{SRD_X+3}], s74 offen {ldf} lds')
            elif i == 4:
                p(f'buffer_load_dwordx4 v{VOFF+i}, s[{SRD_I4}:{SRD_I4+3}], s76 offen {ldf} lds')
            else:
                p(f'buffer_load_dwordx4 v{VOFF+i}, s[{SRD_W}:{SRD_W+3}], s75 offen {ldf} lds')
        p('s_add_u32 s74, s74, 128')
        p(f's_add_u32 s75, s75, {64*rowstride}')
        p('s_add_u32 s76, s76, s73')
        if CFG['ROT']:
            p('s_add_u32 s79, s79, 1')
            p('s_cmp_eq_u32 s79, 10')
            for r in (79, 74, 75, 76):
                p(f's_cselect_b32 s{r}, 0, s{r}')

    stamp(p, 0)
    issue_stage(0, lazy=True)
    issue_stage(1)
    UF = CFG['UNITS_FFN']
    scr_base = SLOT if (UF and not attn) else SCR

    def unit_decode(sfx):
        p('s_and_b32 s64, s62, 7')
        p('s_lshr_b32 s65, s62, 3')
        p('s_lshl_b32 s66, s65, 5')
        p('s_mov_b32 s67, 16')
        p('s_mov_b32 s68, 4')
        p('s_mul_i32 s69, s64, 54')
        p('s_add_u32 s69, s69, s65')
        p('s_mul_i32 s69, s69, 5120')
        p(f's_add_u32 s69, s69, {W2_OFF}')
        p('s_mov_b32 s70, 0')
        p('s_cmp_lt_u32 s65, 54')
        p(f's_cbranch_scc1 L_unit_done_{tag}{sfx}')
        p('s_sub_u32 s65, s65, 54')
        p('s_mov_b32 s70, 1')
        p('s_mul_i32 s69, s64, 20')
        p('s_add_u32 s69, s69, s65')
        p('s_mul_i32 s69, s69, 5120')
        p(f's_add_u32 s69, s69, {WO_OFF}')
        p('s_mul_i32 s66, s65, 40')
        p('s_mov_b32 s67, 20')
        p('s_cmp_lt_u32 s65, 16')
        p(f's_cbranch_scc1 L_unit_done_{tag}{sfx}')
        p('s_sub_u32 s65, s65, 16')
        p('s_mul_i32 s66, s65, 160')
        p('s_add_u32 s66, s66, 16')
        p('s_mov_b32 s67, 80')
        p('s_mov_b32 s68, 20')
        p.label(f'L_unit_done_{tag}{sfx}')
        p('s_mul_i32 s71, s64, 160')
        p('s_movk_i32 s58, 1280')
        for i in range(5):
            p(f'v_add_u32 v3, {64*i}, v{VL}')
            p('v_mul_u32_u24 v4, 6554, v3')
            p('v_lshrrev_b32 v4, 16, v4')
            p('v_mul_u32_u24 v5, 10, v4')
            p('v_sub_u32 v5, v3, v5')
            p('v_lshlrev_b32 v5, 4, v5')
            p('v_add_u32 v5, s71, v5')
            p('v_lshrrev_b32 v3, 4, v4')
            p('v_mul_u32_u24 v3, s67, v3')
            p('v_bfe_u32 v6, v4, 2, 2')
            p('v_mul_u32_u24 v6, s68, v6')
            p('v_and_b32 v4, 3, v4')
            p('v_add3_u32 v3, v3, v6, v4')
            p('v_add_u32 v3, s66, v3')
            p('v_mul_u32_u24 v3, s58, v3')
            p(f'v_add_u32 v{22+i}, v3, v5')

    def unit_srd():
        p('s_cmp_eq_u32 s70, 0')
        p(f's_cselect_b32 s{SRD_A}, s{S_W2}, s{S_WO}')
        p(f's_cselect_b32 s{SRD_A+1}, s{S_W2+1}, s{S_WO+1}')
        p(f's_mov_b32 s{SRD_A+2}, {1728*1280}')
        p(f's_cselect_b32 s{SRD_A+2}, s{SRD_A+2}, {640*1280}')
        p(f's_mov_b32 s{SRD_A+3}, 0x20000')

    do_units = True
    NFU = CFG['NFU']
    always = UF and not attn and NFU == 4
    if UF:
        p(f's_lshl_b32 s62, s{S_RB}, 3')
        p(f's_add_u32 s62, s62, s{S_CG}')
        p('s_lshl_b32 s63, s57, 7')
        p('s_add_u32 s62, s62, s63')
        if not attn:
            p(f's_cmp_lt_u32 s57, {NFU}')
            p('s_cselect_b32 s63, 1, 0')
        else:
            p(f's_add_u32 s62, s62, {128*NFU}')
            p('s_cmp_lt_u32 s62, 592')
            p('s_cselect_b32 s63, 1, 0')
            p('s_cmp_lt_u32 s57, 3')
            p('s_cselect_b32 s63, s63, 0')
    else:
        p('s_lshl_b32 s62, s57, 8')
        p('s_add_u32 s62, s62, s2')
        p('s_cmp_lt_u32 s62, 592')
        p('s_cselect_b32 s63, 1, 0')
        p('s_cmp_lt_u32 s57, 3')
        p('s_cselect_b32 s63, s63, 0')
    if do_units:
        unit_decode('')
        p(f'v_lshrrev_b32 v3, 2, v{VL}')
        p('v_mul_u32_u24 v3, 160, v3')
        p('s_mul_i32 s72, s57, 5120')
        p(f's_add_u32 s72, s72, {scr_base}')
        p('v_add_u32 v3, s72, v3')
        p(f'v_and_b32 v4, 3, v{VL}')
        p('v_lshl_add_u32 v27, v4, 4, v3')
        p('v_lshl_add_u32 v28, v4, 3, v3')
        p(f'v_lshlrev_b32 v29, 4, v{VL}')
        p('v_add_u32 v30, 4096, v29')
    if not attn:
        p(f's_lshl_b32 s58, s{S_RB}, 3')
        p(f's_add_u32 s58, s58, s{S_CG}')
        p('s_lshl_b32 s58, s58, 4')
        p('s_lshl_b32 s59, s57, 2')
        p('s_add_u32 s58, s58, s59')
        p(f'v_lshrrev_b32 v3, 4, v{VL}')
        p('v_add_u32 v31, s58, v3')
        p('s_movk_i32 s58, 1280')
        p('v_mul_u32_u24 v3, s58, v31')
        p(f'v_and_b32 v4, 15, v{VL}')
        p('v_lshlrev_b32 v33, 4, v4')
        p('v_add_u32 v32, v3, v33')
    srd(p, SRD_WS, S_WS, WS_USED)
    if do_units:
        unit_srd()
    GX, GW = 40, 60
    gate = (not attn)
    TG = 10 if gate else 0
    if gate:
        srd(p, SRD_B, S_GW, 1280)

    def unit_loads():
        for i in range(5):
            p(f's_add_u32 m0, s72, {i*1024}')
            p('s_nop 0')
            p(f'buffer_load_dwordx4 v{22+i}, s[{SRD_A}:{SRD_A+3}], 0 offen {CFG["ULDF"]} lds')

    def unit_finish():
        for f in range(5):
            a, off = (27, [0, 8, 64, 72][f]) if f < 4 else (28, 128)
            p(f'ds_read_b64_tr_b16 v[{84+4*f}:{85+4*f}], v{a} offset:{off}')
            p(f'ds_read_b64_tr_b16 v[{86+4*f}:{87+4*f}], v{a} offset:{off+2560}')
        for f in range(5):
            p(f's_waitcnt lgkmcnt({8-2*f})')
            if f < 4:
                p(f'buffer_store_dwordx4 v[{84+4*f}:{87+4*f}], v29, s[{SRD_WS}:{SRD_WS+3}], s69 offen offset:{1024*f} {CFG["STF"]}')
            else:
                p(f'buffer_store_dwordx4 v[{84+4*f}:{87+4*f}], v30, s[{SRD_WS}:{SRD_WS+3}], s69 offen {CFG["STF"]}')

    def tail_loads():
        if not do_units:
            return
        if always:
            unit_loads()
        else:
            p('s_cmp_eq_u32 s63, 0')
            p(f's_cbranch_scc1 L_nounit_ld_{tag}')
            unit_loads()
            p.label(f'L_nounit_ld_{tag}')
        if gate:
            for j in range(5):
                p(f'buffer_load_dwordx4 v[{GX+4*j}:{GX+4*j+3}], v32, s[{SRD_X}:{SRD_X+3}], 0 offen offset:{256*j}')
                p(f'buffer_load_dwordx4 v[{GW+4*j}:{GW+4*j+3}], v33, s[{SRD_B}:{SRD_B+3}], 0 offen offset:{256*j}')

    def unit_prefetch(grp):
        if not (CFG['USPF'] and do_units):
            return
        hi, mid = grp >> 2, grp & 3
        p('s_cmp_eq_u32 s63, 0')
        p(f's_cbranch_scc1 L_uspf{grp}_{tag}')
        p(f's_mul_i32 s99, s67, {hi}')
        p(f's_mul_i32 s98, s68, {mid}')
        p('s_add_u32 s99, s99, s98')
        p('s_add_u32 s99, s99, s66')
        p('s_mul_i32 s99, s99, 1280')
        p('s_add_u32 s99, s99, s71')
        for r in range(4):
            p(f's_load_dword s56, s[{SRD_A}:{SRD_A+1}], s99 offset:{1280*r}')
            p(f's_load_dword s56, s[{SRD_A}:{SRD_A+1}], s99 offset:{1280*r + 156}')
        p.label(f'L_uspf{grp}_{tag}')

    def wait_vm(n_nounit, n_unit, uid):
        if always:
            n_nounit = n_unit
        if n_nounit == n_unit:
            p(f's_waitcnt vmcnt({n_unit})')
            return
        p('s_cmp_eq_u32 s63, 0')
        p(f's_cbranch_scc1 L_w{uid}a_{tag}')
        p(f's_waitcnt vmcnt({n_unit})')
        p(f's_branch L_w{uid}b_{tag}')
        p.label(f'L_w{uid}a_{tag}')
        p(f's_waitcnt vmcnt({n_nounit})')
        p.label(f'L_w{uid}b_{tag}')

    if CFG['TEARLY']:
        tail_loads()
        wait_vm(12 + TG, 12 + TG + 5, 'i')
    else:
        p('s_waitcnt vmcnt(12)')
    stamp(p, 1)
    TJ = CFG['TJ'] if attn else 7
    p('s_barrier')
    issue_stage(2)
    unit_prefetch(0)
    for j in range(9):
        if CFG['TEARLY']:
            if j == 0:
                wait_vm(12 + TG, 12 + TG + 5, j)
            else:
                p('s_waitcnt vmcnt(%d)' % (12 if j <= 7 else 0))
        elif j <= TJ:
            p('s_waitcnt vmcnt(12)')
        elif j == 7:
            wait_vm(12 + TG, 12 + TG + 5, j)
        else:
            wait_vm(TG, TG + 5, j)
        p('s_barrier')
        if j + 3 <= 9 and not CFG['NOLOAD']:
            issue_stage(j + 3)
        if j <= 6:
            unit_prefetch(j + 1)
        if j == TJ and not CFG['TEARLY']:
            tail_loads()
        if j == 3 and CFG['TEARLY'] and gate:
            gate_job(p, GX, GW, store=False)
    stamp(p, 2)
    if CFG['K2PF']:
        p('s_cmp_eq_u32 s57, 3')
        p(f's_cbranch_scc0 L_nok2pf_{tag}')
        p(f'v_mov_b32 v34, v{VL}')
        code_prefetch(p, 'gm_k2_kernel', 'L_k2_end', 16384, 34, 255, 84, 'k2pf' + tag)
        p.label(f'L_nok2pf_{tag}')
    if do_units:
        p('s_waitcnt vmcnt(0) lgkmcnt(0)')
        if always:
            unit_finish()
        else:
            p('s_cmp_eq_u32 s63, 0')
            p(f's_cbranch_scc1 L_nounit_{tag}')
            unit_finish()
            p.label(f'L_nounit_{tag}')
    if gate:
        if CFG['TEARLY']:
            gate_store(p)
        else:
            gate_job(p, GX, GW)
    stamp(p, 3)
    if CFG['PROF']:
        prof_store(p, 4, 'LD' + tag, SRD_WS)
    p('s_endpgm')


def prof_debug(p, n, tag, sbase=90):
    p('s_waitcnt lgkmcnt(0) vmcnt(0)')
    p('s_and_b32 s86, s2, 127')
    p('s_cmp_eq_u32 s86, 0')
    p(f's_cbranch_scc0 L_pd_{tag}')
    p(f's_and_b32 s86, s{S_WAVE}, 3')
    p('s_cmp_eq_u32 s86, 0')
    p(f's_cbranch_scc0 L_pd_{tag}')
    p('s_load_dwordx2 s[76:77], s[0:1], 80')
    p('s_waitcnt lgkmcnt(0)')
    p('s_mov_b32 s78, 256')
    p('s_mov_b32 s79, 0x20000')
    p('s_lshr_b32 s86, s2, 7')
    p('s_lshl_b32 s86, s86, 1')
    p(f's_lshr_b32 s85, s{S_WAVE}, 2')
    p('s_add_u32 s86, s86, s85')
    p('s_lshl_b32 s86, s86, 4')
    p('v_mov_b32 v1, 0')
    for i in range(n):
        p(f's_sub_u32 s85, s{sbase+2*i}, s88')
        p('v_mov_b32 v0, s85')
        p(f'buffer_store_dword v0, v1, s[76:79], s86 offen offset:{4*i}')
    p('s_waitcnt vmcnt(0)')
    p.label(f'L_pd_{tag}')


_pd = [0]


def prof_collect(p, srdws):
    p('s_waitcnt lgkmcnt(0) vmcnt(0)')
    p(f's_or_b32 s86, s2, s{S_WAVE}')
    p('s_cmp_eq_u32 s86, 0')
    p('s_cbranch_scc0 L_pc5')
    p('s_load_dwordx2 s[76:77], s[0:1], 80')
    p(f's_mov_b32 s{srdws+2}, 0x10000000')
    p('v_mbcnt_lo_u32_b32 v0, -1, 0')
    p('v_mbcnt_hi_u32_b32 v0, -1, v0')
    p('v_lshrrev_b32 v1, 2, v0')
    p('v_and_b32 v2, 3, v0')
    p('v_lshlrev_b32 v2, 2, v2')
    p('v_cmp_eq_u32 vcc, 1, v1')
    p('v_mov_b32 v3, 0')
    p('v_mov_b32 v4, 256')
    p('v_cndmask_b32 v3, v3, v4, vcc')
    p('v_cmp_eq_u32 vcc, 2, v1')
    p(f'v_mov_b32 v4, {128*8*64}')
    p('v_cndmask_b32 v3, v3, v4, vcc')
    p('v_add_u32 v3, v3, v2')
    p(f'v_add_u32 v3, {PROF_OFF}, v3')
    p(f'buffer_load_dword v5, v3, s[{srdws}:{srdws+3}], 0 offen')
    p(f'v_mov_b32 v6, {PROF_OFF + 60}')
    p(f'buffer_load_dword v7, v6, s[{srdws}:{srdws+3}], 0 offen')
    p('s_waitcnt vmcnt(0) lgkmcnt(0)')
    p('s_mov_b32 s78, 256')
    p('s_mov_b32 s79, 0x20000')
    p('v_sub_u32 v5, v5, v7')
    for ln, sr_ in ((12, 88), (13, 90), (14, 94), (15, 96)):
        p(f'v_mov_b32 v8, s{sr_}')
        p('v_sub_u32 v8, v8, v7')
        p(f'v_cmp_eq_u32 vcc, {ln}, v0')
        p('v_cndmask_b32 v5, v5, v8, vcc')
    p('v_lshlrev_b32 v0, 2, v0')
    p('v_cmp_gt_u32 vcc, 64, v0')
    p('s_and_saveexec_b64 s[84:85], vcc')
    p('buffer_store_dword v5, v0, s[76:79], 0 offen')
    p('s_waitcnt vmcnt(0)')
    p.label('L_pc5')


def prof_store(p, n, tag, srdws, sbase=90):
    if CFG['PROF'] == 5 and tag.startswith('K2'):
        return prof_collect(p, srdws)
    if CFG['PROF'] == 4:
        _pd[0] += 1
        return prof_debug(p, n, tag + str(_pd[0]), sbase)
    return prof_store_ws(p, n, tag, srdws, sbase)


def prof_store_ws(p, n, tag, srdws, sbase=90):
    p('s_memtime s[80:81]')
    p('s_memrealtime s[78:79]')
    p('s_waitcnt lgkmcnt(0) vmcnt(0)')
    p('s_sub_u32 s80, s80, s82')
    p('s_sub_u32 s78, s78, s88')
    p(f's_mov_b32 s{srdws+2}, 0x10000000')
    p(f's_lshl_b32 s86, s2, 3')
    p(f's_add_u32 s86, s86, s{S_WAVE}')
    p(f's_lshl_b32 s86, s86, 6')
    p(f's_add_u32 s86, s86, {PROF_OFF + (0 if not tag.startswith("K2") else (1 << 20))}')
    if CFG['PROF'] == 3:
        p(f's_lshl_b32 s85, s2, 3')
        p(f's_add_u32 s85, s85, s{S_WAVE}')
        p(f's_lshl_b32 s85, s85, 8')
        p(f's_add_u32 s85, s85, {PROF_OFF + (2 << 20)}')
        p('v_mbcnt_lo_u32_b32 v0, -1, 0')
        p('v_mbcnt_hi_u32_b32 v0, -1, v0')
        p('v_lshlrev_b32 v0, 2, v0')
        if not tag.startswith('K2'):
            p(f'buffer_store_dword v254, v0, s[{srdws}:{srdws+3}], s85 offen')
    p('v_mov_b32 v1, 0')
    p('v_mov_b32 v0, s88')
    p(f'buffer_store_dword v0, v1, s[{srdws}:{srdws+3}], s86 offen offset:60')
    p('v_mov_b32 v0, s80')
    p(f'buffer_store_dword v0, v1, s[{srdws}:{srdws+3}], s86 offen offset:56')
    p('v_mov_b32 v0, s78')
    p(f'buffer_store_dword v0, v1, s[{srdws}:{srdws+3}], s86 offen offset:52')
    for i in range(n):
        p(f'v_mov_b32 v0, s{sbase+2*i}')
        p(f'buffer_store_dword v0, v1, s[{srdws}:{srdws+3}], s86 offen offset:{4*i}')
    if CFG['PROF'] == 6 and tag == 'CA':
        for i, r in enumerate((72, 74, 76)):
            p(f'v_mov_b32 v0, s{r}')
            p(f'buffer_store_dword v0, v1, s[{srdws}:{srdws+3}], s86 offen offset:{16+4*i}')
    p('s_waitcnt vmcnt(0)')


def gate_store(p):
    p(f'buffer_store_dwordx2 v[38:39], v37, s[{SRD_WS}:{SRD_WS+3}], 0 offen {CFG["STF"]}')


def gate_job(p, GX, GW, store=True):
    T = 104
    p('v_mov_b32 v34, 0')
    p('v_mov_b32 v35, 0')
    p('v_mov_b32 v36, 0x3f803f80')
    p('s_mov_b32 s78, 0xffff0000')
    for d in range(20):
        x, w = GX + d, GW + d
        t = T + 6 * (d & 1)
        p(f'v_lshlrev_b32 v{t}, 16, v{x}')
        p(f'v_and_b32 v{t+1}, s78, v{x}')
        p(f'v_lshlrev_b32 v{t+2}, 16, v{w}')
        p(f'v_and_b32 v{t+3}, s78, v{w}')
        p(f'v_pk_mul_f32 v[{t}:{t+1}], v[{t}:{t+1}], v[{t+2}:{t+3}]')
        p(f'v_cvt_pk_bf16_f32 v{t+4}, v{t}, v{t+1}')
        acc = 34 + (d & 1)
        p(f'v_dot2_f32_bf16 v{acc}, v{t+4}, v36, v{acc}')
    p('v_add_f32 v34, v34, v35')
    for sh in (8, 4, 2, 1):
        p(f'v_add_f32_dpp v34, v34, v34 row_ror:{sh} row_mask:0xf bank_mask:0xf')
    p('v_cvt_pk_bf16_f32 v35, v34, v34')
    p('v_lshlrev_b32 v35, 16, v35')
    p(f'v_mul_f32 v35, {hexf(-math.log2(math.e))}, v35')
    p('v_exp_f32 v35, v35')
    p('v_add_f32 v35, 1.0, v35')
    p('v_rcp_f32 v35, v35')
    p('v_cvt_pk_bf16_f32 v35, v35, v35')
    p('v_lshlrev_b32 v38, 16, v35')
    p('v_sub_f32 v39, 1.0, v38')
    p('v_cvt_pk_bf16_f32 v39, v39, v39')
    p('v_lshlrev_b32 v39, 16, v39')
    p('v_lshlrev_b32 v37, 3, v31')
    p(f'v_add_u32 v37, {G_OFF}, v37')
    if store:
        gate_store(p)


A_QM = lambda h, t: 0 + (h * 4 + t) * 4
A_KM = lambda h, kt: 32 + (h * 5 + kt) * 4
A_QKT = lambda kt: 72 + 4 * kt
A_VM = lambda h, kt: 92 + (h * 5 + kt) * 4
A_VT = lambda kt: 132 + 4 * kt
WF = lambda f: 152 + 4 * f
XF = lambda b, t: 184 + 20 * b + 4 * t
V_X0, V_X1, V_W, V_WA, V_WB = 224, 225, 226, 227, 228
V_BPREV, V_BCUR, V_BFIRST, V_SEL = 232, 236, 240, 244
F_ACC = lambda f, t: (f * 4 + t) * 4


class LgkmTracker:
    def __init__(self, p):
        self.p = p
        self.q = []

    def issue(self, tag):
        self.q.append(tag)

    def need(self, tags):
        idx = -1
        for i, t in enumerate(self.q):
            if t in tags:
                idx = i
        if idx < 0:
            return
        n = len(self.q) - 1 - idx
        self.p(f's_waitcnt lgkmcnt({min(n, 15)})')
        keep = min(n, 15)
        self.q = self.q[len(self.q) - keep:] if keep else []

    def drain(self):
        self.p('s_waitcnt lgkmcnt(0)')
        self.q = []


def consumer_loop(p, attn, th=None):
    tag = ('A' if attn else 'F') + ('' if th is None else str(th))
    NT = 5 if attn else 4
    xoff = lambda t: 2048 * t
    if attn:
        kk = range(5) if th in (None, 0) else range(1, 5)
        vk = range(5) if th in (None, 1) else range(1, 5)
        if th == 1:
            xoff = lambda t: 0 if t == 0 else 8192 + 2048 * t
        tiles = []
        for h in range(2):
            tiles.append([(A_QM(h, t), t + 1, 'F') for t in range(4)])
        for h in range(2):
            tiles.append([(A_KM(h, k), k, 'F') for k in kk])
        tiles.append([(A_QKT(k), k, 'F') for k in kk])
        for h in range(2):
            tiles.append([(A_VM(h, k), k, 'T') for k in vk])
        tiles.append([(A_VT(k), k, 'T') for k in vk])
        waddr = [(V_W, 0), (V_W, 40), (V_W, 160), (V_W, 200), (V_WA, 0), (V_W, 320), (V_W, 360), (V_WB, 0)]
    else:
        tiles = [[(F_ACC(f, t), t, 'F') for t in range(4)] for f in range(7)]
        waddr = [(V_W, 32 * f) for f in range(6)] + [(V_WA, 0)]
    NF = len(tiles)

    lg = LgkmTracker(p)

    def rd_w(f, s):
        if CFG['NODS']:
            return
        a, off = waddr[f]
        off += s * 32 * WROW
        p(f'ds_read_b64_tr_b16 v[{WF(f)}:{WF(f)+1}], v{a} offset:{off}')
        lg.issue(('w', f))
        p(f'ds_read_b64_tr_b16 v[{WF(f)+2}:{WF(f)+3}], v{a} offset:{off + 8*WROW}')
        lg.issue(('w', f))

    def rd_x(t, s):
        if CFG['NODS']:
            return
        p(f'ds_read_b128 v[{XF(s,t)}:{XF(s,t)+3}], v{V_X1 if s else V_X0} offset:{2048*t}')
        lg.issue(('x', s, t))

    LAST = NF - 1

    def wreads(f, s):
        a, off = waddr[f]
        off += s * 32 * WROW
        return [(f'ds_read_b64_tr_b16 v[{WF(f)}:{WF(f)+1}], v{a} offset:{off}', ('w', f)),
                (f'ds_read_b64_tr_b16 v[{WF(f)+2}:{WF(f)+3}], v{a} offset:{off + 8*WROW}', ('w', f))]

    def xread(t, s):
        return (f'ds_read_b128 v[{XF(s,t)}:{XF(s,t)+3}], v{V_X1 if s else V_X0} offset:{xoff(t)}', ('x', s, t))

    def emit(item):
        if CFG['NODS']:
            return
        p(item[0])
        lg.issue(item[1])

    order_log = []

    def packing():
        cv = lambda d, a: f'v_cvt_pk_bf16_f32 v{d}, v{a}, v{a+1}'
        out = []
        for h in range(2):
            for t in range(4):
                b = A_QM(h, t)
                out += [(h, cv(b, b)), (h, cv(b + 1, b + 2))]
        for h in range(2):
            for kt in kk:
                b = A_KM(h, kt)
                out += [(2 + h, cv(b, b)), (2 + h, cv(b + 1, b + 2))]
        for kt in kk:
            t = A_QKT(kt)
            out += [(4, cv(t, t)), (4, cv(t + 1, t + 2))]
        for kt in kk:
            t, k0 = A_QKT(kt), A_KM(0, kt)
            out += [(4, f'v_mov_b32 v{k0+2}, v{t}'), (4, f'v_mov_b32 v{k0+3}, v{t+1}')]
        return out

    def step(s, dry=False, last=False):
        nxt = 1 - s
        q = wreads(LAST, s)
        xq = [xread(t, nxt) for t in range(NT)]
        held = []
        upd = [V_W, V_X0, V_X1, V_WA] + ([V_WB] if attn else [])
        pk = []
        if last:
            xq, upd = [], []
            pk = packing() if attn else []
        zq = []
        for f in range(NF):
            if not dry:
                lg.need({('w', f)} | ({('x', s, t) for t in range(NT)} if f == 0 else set()))
                if attn and CFG['ZVT'] and f == LAST - 1:
                    lg.need({('w', LAST)})
                    zq = [f'v_cndmask_b32 v{WF(LAST)+k}, 0, v{WF(LAST)+k}, s[68:69]' for k in range(4)]
            for n, (acc, t, o) in enumerate(tiles[f]):
                w, x = f'v[{WF(f)}:{WF(f)+3}]', f'v[{XF(s,t)}:{XF(s,t)+3}]'
                a, b = (w, x) if o == 'F' else (x, w)
                if not CFG['NOMFMA'] and not dry:
                    p(f'v_mfma_f32_16x16x32_bf16 v[{acc}:{acc+3}], {a}, {b}, v[{acc}:{acc+3}]')
                item = None
                if q:
                    item = q.pop(0)
                elif xq and (s == 0 or f >= 2):
                    item = xq.pop(0)
                if item is not None:
                    if dry:
                        order_log.append(item)
                    else:
                        emit(item)
                if not dry and s == 0 and f == LAST and n == 1:
                    p(f's_add_u32 s53, s53, {SLOT}')
                    p(f's_cmp_eq_u32 s53, {3*SLOT}')
                if not dry and s == 0 and f == LAST and n == 2:
                    p(f's_cselect_b32 s54, s51, {SLOT}')
                    p('s_cselect_b32 s53, 0, s53')
                if not dry and s == 1 and item is None and upd and (f, n) >= (0, 2):
                    p(f'v_add_u32 v{upd[0]}, s54, v{upd[0]}')
                    upd.pop(0)
                if zq and not dry:
                    p(zq.pop(0))
                for _ in range(2 - (1 if (attn and CFG['ZVT'] and f == LAST - 1) else 0)):
                    if pk and pk[0][0] + 2 <= f:
                        p(pk.pop(0)[1])
            if f < LAST and not last:
                rs = wreads(f, nxt)
                if s == 1 and f < 1:
                    held += rs
                elif s == 1 and f == 1:
                    assert not q
                    if not dry:
                        assert not upd
                        if CFG['PROF'] == 3:
                            p('s_memtime s[70:71]')
                        lg.drain()
                        if CFG['PROF'] == 3:
                            p('s_lshl_b32 m0, s52, 1')
                            p('s_nop 3')
                            p('v_writelane_b32 v254, s70, m0')
                            p('s_add_u32 s74, m0, 63')
                            p('s_and_b32 m0, s74, 63')
                            p('s_nop 3')
                            p('v_writelane_b32 v254, s72, m0')
                        if CFG['PEEL']:
                            p('s_barrier')
                        else:
                            p('s_cmp_eq_u32 s52, 9')
                            p(f's_cbranch_scc1 L_nobar_{tag}')
                            p('s_barrier')
                            p.label(f'L_nobar_{tag}')
                        if CFG['PROF'] == 3:
                            p('s_memtime s[72:73]')
                    q += held + rs
                    held = []
                else:
                    q += rs
        assert not q and not xq, (q, xq)
        for _, ins in pk:
            p(ins)

    step(1, dry=True)
    for item in order_log[2:]:
        emit(item)
    p('s_mov_b32 s52, 0')
    p('s_mov_b32 s53, 0')
    p(f's_mov_b32 s51, {(-2*SLOT) & 0xffffffff}')
    if CFG['ALIGN']:
        p(f'.p2align {CFG["ALIGN"]}')
    p.label(f'L_loop_{tag}')
    q_head = list(lg.q)
    step(0)
    step(1)
    q_end = list(lg.q)
    assert q_end == q_head, (q_end, q_head)
    p('s_add_u32 s52, s52, 1')
    p(f's_cmp_lt_u32 s52, {9 if CFG["PEEL"] else 10}')
    p(f's_cbranch_scc1 L_loop_{tag}')
    if CFG['PEEL']:
        step(0)
        step(1, last=True)
    lg.drain()


def check_loop_waits():
    pass


def tlb_touch(p, tag):
    if not CFG['TT']:
        return
    p(f's_cmp_eq_u32 s{S_WAVE}, 1')
    p(f's_cbranch_scc0 L_tt1{tag}')
    for i in range(7):
        p(f's_mov_b32 s70, {i << 21}')
        p(f's_load_dword s{71+i}, s[{S_WS}:{S_WS+1}], s70')
    p.label(f'L_tt1{tag}')
    p(f's_cmp_eq_u32 s{S_WAVE}, 2')
    p(f's_cbranch_scc0 L_tt2{tag}')
    p(f's_load_dword s71, s[{S_WO}:{S_WO+1}], 0')
    p(f's_load_dword s72, s[{S_W2}:{S_W2+1}], 0')
    p(f's_mov_b32 s70, {(1 << 21) + 4096}')
    p(f's_load_dword s73, s[{S_W2}:{S_W2+1}], s70')
    p(f's_load_dword s74, s[{S_GW}:{S_GW+1}], 0')
    p(f's_load_dword s75, s[{S_B2}:{S_B2+1}], 0')
    p('s_load_dword s76, s[100:101], 0')
    p('s_load_dword s77, s[100:101], s70')
    p.label(f'L_tt2{tag}')
    if CFG['TL']:
        p(f's_cmp_eq_u32 s{S_WAVE}, 3')
        p(f's_cbranch_scc0 L_tt3{tag}')
        for i in range(1, 10):
            p(f's_load_dword s{70+(i%8)}, s[{S_B2}:{S_B2+1}], {128*i}')
        for i in range(1, 10):
            p(f's_load_dword s{70+(i%8)}, s[{S_GW}:{S_GW+1}], {128*i}')
        p.label(f'L_tt3{tag}')


def prefetch_setup(p, attn):
    rowstride = 3840 if attn else 3456
    p(f's_lshl_b32 s57, s{S_WAVE}, 6')
    p('v_add_u32 v9, s57, v2')
    p(f's_and_b32 s57, s{S_RB}, 7')
    p('s_lshl_b32 s57, s57, 3')
    p('s_add_u32 s57, s57, 128')
    p(f's_mov_b32 s58, {rowstride}')
    if attn:
        p(f's_mul_i32 s59, s{S_CG}, 160')
        p('s_andn2_b32 s59, s59, 127')
        for rnd in range(2):
            p(f'v_add_u32 v3, {256*rnd}, v9')
            p('v_min_u32 v3, 383, v3')
            p('v_mul_u32_u24 v4, 1366, v3')
            p('v_lshrrev_b32 v4, 16, v4')
            p('v_mul_u32_u24 v5, 48, v4')
            p('v_sub_u32 v5, v3, v5')
            p('v_mul_u32_u24 v6, 43, v5')
            p('v_lshrrev_b32 v6, 8, v6')
            p('v_mul_u32_u24 v7, 6, v6')
            p('v_sub_u32 v7, v5, v7')
            p('v_lshl_add_u32 v4, v4, 6, v6')
            p('v_add_u32 v4, s57, v4')
            p('v_mul_u32_u24 v4, s58, v4')
            p('v_lshrrev_b32 v5, 1, v7')
            p('v_mul_u32_u24 v5, 1280, v5')
            p('v_and_b32 v7, 1, v7')
            p('v_lshl_add_u32 v5, v7, 7, v5')
            p(f'v_add3_u32 v{249+rnd}, v4, v5, s59')
    else:
        p(f's_mul_i32 s59, s{S_CG}, 448')
        p('s_andn2_b32 s59, s59, 127')
        p('v_lshrrev_b32 v4, 5, v9')
        p('v_bfe_u32 v6, v9, 2, 3')
        p('v_lshl_add_u32 v4, v4, 6, v6')
        p('v_add_u32 v4, s57, v4')
        p('v_mul_u32_u24 v4, s58, v4')
        p('v_and_b32 v7, 3, v9')
        p('v_lshlrev_b32 v7, 7, v7')
        p('v_add3_u32 v249, v4, v7, s59')
    p(f's_and_b32 s57, s{S_CG}, 1')
    p(f's_lshl_b32 s58, s{S_TYPE}, 1')
    p('s_add_u32 s57, s57, s58')
    p('s_lshl_b32 s57, s57, 5')
    p(f's_lshl_b32 s58, s{S_RB}, 7')
    p('s_add_u32 s57, s57, s58')
    p('v_and_b32 v4, 31, v9')
    p('v_add_u32 v4, s57, v4')
    p('v_mul_u32_u24 v4, 1280, v4')
    p('v_lshrrev_b32 v5, 5, v9')
    p('v_lshlrev_b32 v5, 7, v5')
    p('v_add3_u32 v251, v4, v5, 256' .replace(', 256', ', s99'))


def prefetch_issue(p, attn):
    if not CFG['PF']:
        return
    p(f'buffer_load_dword v255, v251, s[{SRD_X}:{SRD_X+3}], 0 offen {CFG["PFF"]}')
    p(f'buffer_load_dword v255, v249, s[{SRD_W}:{SRD_W+3}], 0 offen {CFG["PFF"]}')
    if attn:
        p(f'buffer_load_dword v255, v250, s[{SRD_W}:{SRD_W+3}], 0 offen {CFG["PFF"]}')


def attn_prologue(p):
    p(f's_and_b32 s55, s{S_WAVE}, 1')
    p(f's_lshr_b32 s56, s{S_WAVE}, 1')
    p('v_and_b32 v3, 15, v2')
    p('v_lshrrev_b32 v4, 4, v2')
    p('v_lshrrev_b32 v5, 1, v3')
    p('v_xor_b32 v5, v5, v4')
    p('v_lshlrev_b32 v5, 4, v5')
    p('v_lshl_add_u32 v5, v3, 7, v5')
    if CFG['M35']:
        p(f'v_mov_b32 v{V_X0}, v5')
    else:
        p('s_lshl_b32 s57, s56, 13')
        p(f'v_add_u32 v{V_X0}, s57, v5')
    p(f'v_xor_b32 v{V_X1}, 64, v{V_X0}')
    p('v_lshrrev_b32 v5, 5, v2')
    p('v_lshlrev_b32 v5, 4, v5')
    p('v_bfe_u32 v6, v2, 4, 1')
    p('v_lshl_add_u32 v5, v6, 2, v5')
    p('v_bfe_u32 v6, v2, 2, 2')
    p('v_add_u32 v5, v5, v6')
    p(f'v_mul_u32_u24 v5, {WROW}, v5')
    p('s_mul_i32 s57, s55, 80')
    p(f's_add_u32 s57, s57, {XREG}')
    p('v_add_u32 v5, s57, v5')
    p('v_and_b32 v6, 3, v2')
    p(f'v_lshl_add_u32 v{V_W}, v6, 3, v5')
    p('v_and_b32 v7, 1, v6')
    p('v_mul_u32_u24 v7, 40, v7')
    p('v_add_u32 v7, v7, v5')
    p('v_lshrrev_b32 v6, 1, v6')
    p('v_mul_u32_u24 v6, 160, v6')
    p(f'v_add3_u32 v{V_WA}, v7, v6, 32')
    p(f'v_add_u32 v{V_WB}, 352, v7')
    p('v_lshlrev_b32 v5, 2, v4')
    p('v_sub_u32 v5, v3, v5')
    p(f's_mov_b32 s58, {hexf(-1e30)}')
    p('v_mov_b32 v8, s58')
    p(f's_or_b32 s59, s{S_RB}, s56')
    p('s_cmp_eq_u32 s59, 0')
    p('s_cselect_b64 s[60:61], -1, 0')
    for r in range(4):
        p(f'v_subrev_u32 v6, {r}, v5')
        p('v_and_b32 v7, 1, v6')
        p('v_cmp_eq_u32 s[62:63], 0, v7')
        p('v_cmp_ge_i32 s[64:65], v6, 0')
        p('s_and_b64 s[66:67], s[62:63], s[64:65]')
        p('s_andn2_b64 s[68:69], s[62:63], s[64:65]')
        p(f'v_cndmask_b32 v{V_BCUR+r}, v8, 0, s[66:67]')
        p(f'v_cndmask_b32 v{V_BPREV+r}, v8, 0, s[68:69]')
        p(f'v_cndmask_b32 v{V_BFIRST+r}, v{V_BPREV+r}, v8, s[60:61]')
    p('v_and_b32 v7, 1, v3')
    p('v_cmp_eq_u32 s[62:63], 0, v7')
    for k, (lo, hi) in enumerate([(0x0c0c0100, 0x01000c0c), (0x0c0c0302, 0x03020c0c)]):
        p(f'v_mov_b32 v6, {hex(hi)}')
        p(f'v_mov_b32 v9, {hex(lo)}')
        p('v_cndmask_b32 v9, v6, v9, s[62:63]')
        p('v_sub_u32 v6, v5, v7')
        if k:
            p('v_subrev_u32 v6, 2, v6')
        p('v_cmp_ge_i32 s[64:65], v6, 0')
        p('v_mov_b32 v6, 0x0c0c0c0c')
        p(f'v_cndmask_b32 v{V_SEL+k}, v9, v6, s[64:65]')
        p(f'v_cndmask_b32 v{V_SEL+2+k}, v6, v9, s[64:65]')
    p('v_lshlrev_b32 v248, 4, v2')
    if CFG['M35']:
        p('s_lshl_b32 s57, s55, 13')
        p(f's_add_u32 s57, s57, {2*SLOT}')
        p('v_add_u32 v249, s57, v248')
        p('v_lshrrev_b32 v250, 1, v248')
        p('v_add_u32 v250, s57, v250')
        p('s_lshl_b32 s57, s55, 3')
        p(f's_add_u32 s57, s57, {XFLAG}')
        p('v_mov_b32 v251, s57')
        p('v_mov_b32 v252, 0')
        p('v_mov_b32 v253, 0')
        p('ds_write_b64 v251, v[252:253]')
    for r in range(152):
        p(f'v_mov_b32 v{r}, 0')


def attn_epilogue(p, th=None):
    cvt = lambda d, a: p(f'v_cvt_pk_bf16_f32 v{d}, v{a}, v{a+1}')
    tg = '' if th is None else str(th)
    kk = list(range(5)) if th in (None, 0) else [1, 2, 3, 4]
    vk = list(range(5)) if th in (None, 1) else [1, 2, 3, 4]
    p('s_nop 7')

    def pack_k(kts):
        if CFG['PEEL']:
            return
        for kt in kts:
            for h in range(2):
                b = A_KM(h, kt)
                cvt(b, b)
                cvt(b + 1, b + 2)
            t = A_QKT(kt)
            cvt(t, t)
            cvt(t + 1, t + 2)
        for kt in kts:
            t, k0 = A_QKT(kt), A_KM(0, kt)
            p(f'v_mov_b32 v{k0+2}, v{t}')
            p(f'v_mov_b32 v{k0+3}, v{t+1}')

    def tails_k(kts):
        for kt in kts:
            t, k0 = A_QKT(kt), A_KM(0, kt)
            p(f'v_permlane32_swap_b32 v{t}, v{k0+2}')
            p(f'v_permlane32_swap_b32 v{t+1}, v{k0+3}')

    def copy_k(kts):
        for kt in kts:
            k0, k1 = A_KM(0, kt), A_KM(1, kt)
            p(f'v_mov_b32 v{k1+2}, v{k0+2}')
            p(f'v_mov_b32 v{k1+3}, v{k0+3}')

    def pack_v():
        for kt in vk:
            for base, b in ((A_VM(0, 0), A_VM(0, kt)), (A_VM(1, 0), A_VM(1, kt)), (A_VT(0), A_VT(kt))):
                cvt(base + 2 * kt, b)
                cvt(base + 2 * kt + 1, b + 2)

    vbases = (A_VM(0, 0), A_VM(1, 0), A_VT(0))
    if th == 0:
        pack_k([4])
        pack_v()
        tails_k([4])
        rest = [0, 1, 2, 3]
        pack_k(rest[:1])
        copy_k([4])
        p(f'ds_write_b128 v249, v[{A_KM(0,4)}:{A_KM(0,4)+3}]')
        p(f'ds_write_b128 v249, v[{A_KM(1,4)}:{A_KM(1,4)+3}] offset:1024')
        for i, vb in enumerate(vbases):
            p(f'ds_write_b64 v250, v[{vb+8}:{vb+9}] offset:{2048 + 512*i}')
        pack_k(rest[1:])
        p('s_waitcnt lgkmcnt(0)')
        p('v_mov_b32 v252, 1')
        p('ds_write_b32 v251, v252')
        tails_k(rest)
    elif th == 1:
        pack_v()
        for i, vb in enumerate(vbases):
            p(f'ds_write_b64 v250, v[{vb}:{vb+1}] offset:{4096 + 512*i}')
        rest = [1, 2, 3, 4]
        pack_k(rest)
        p('s_waitcnt lgkmcnt(0)')
        p('v_mov_b32 v252, 1')
        p('ds_write_b32 v251, v252 offset:4')
        tails_k(rest)
    else:
        rest = [0, 1, 2, 3, 4]
        pack_k(rest)
        pack_v()
        tails_k(rest)
    for h in range(2):
        for t in range(4):
            b = A_QM(h, t)
            if not CFG['PEEL']:
                cvt(b, b)
                cvt(b + 1, b + 2)
    copy_k(rest)
    p('s_mov_b32 s60, 0x0000ffff')
    p('s_mov_b32 s61, 0')
    p('s_mov_b32 s62, 0xffff0000')
    p('s_mov_b32 s63, 0')
    for t in range(4):
        for h in range(2):
            q, x = A_QM(h, t), A_QKT(t + 1)
            p(f'v_cndmask_b32 v{q+2}, 0, v{x}, s[{60+2*h}:{61+2*h}]')
            p(f'v_cndmask_b32 v{q+3}, 0, v{x+1}, s[{60+2*h}:{61+2*h}]')
    S = lambda t, h: 152 + (t * 2 + h) * 8

    def qk(t):
        for h in range(2):
            q = A_QM(h, t)
            bp = V_BFIRST if t == 0 else V_BPREV
            kp, kc = A_KM(h, t), A_KM(h, t + 1)
            p(f'v_mfma_f32_16x16x32_bf16 v[{S(t,h)}:{S(t,h)+3}], v[{kp}:{kp+3}], v[{q}:{q+3}], v[{bp}:{bp+3}]')
            p(f'v_mfma_f32_16x16x32_bf16 v[{S(t,h)+4}:{S(t,h)+7}], v[{kc}:{kc+3}], v[{q}:{q+3}], v[{V_BCUR}:{V_BCUR+3}]')

    for t in (3, 2, 1):
        qk(t)
    if CFG['PROF'] == 6:
        p('s_memtime s[72:73]')
    if th is not None:
        p.label(f'L_xspin{th}')
        p(f'ds_read_b32 v252, v251 offset:{4 if th == 0 else 0}')
        p('s_waitcnt lgkmcnt(0)')
        p('v_readfirstlane_b32 s70, v252')
        p('s_cmp_eq_u32 s70, 0')
        p(f's_cbranch_scc1 L_xspin{th}')
        if th == 1:
            p(f'ds_read_b128 v[{A_KM(0,0)}:{A_KM(0,0)+3}], v249')
            p(f'ds_read_b128 v[{A_KM(1,0)}:{A_KM(1,0)+3}], v249 offset:1024')
        for i, vb in enumerate(vbases):
            p(f'ds_read_b64 v[{vb}:{vb+1}], v250 offset:{(2048 if th == 1 else 4096) + 512*i}')
        p('s_waitcnt lgkmcnt(0)')
    qk(0)
    if CFG['PROF'] == 6:
        p('s_memtime s[74:75]')
    cs = (20 ** -0.5) * math.log2(math.e)
    p(f's_mov_b32 s64, {hexf(cs)}')
    p(f's_mov_b32 s65, {hexf(cs)}')
    inst = [(t, h) for t in (3, 2, 1, 0) for h in range(2)]
    for (t, h) in inst:
        s = S(t, h)
        p(f'v_max3_f32 v{s}, v{s}, v{s+1}, v{s+4}')
        p(f'v_max3_f32 v{s+2}, v{s+2}, v{s+3}, v{s+6}')
    for (t, h) in inst:
        s = S(t, h)
        p(f'v_max_f32 v{s}, v{s}, v{s+5}')
        p(f'v_max_f32 v{s+1}, v{s+2}, v{s+7}')
    for (t, h) in inst:
        s = S(t, h)
        p(f'v_max_f32 v{s+2}, v{s}, v{s+1}')

    def cross(groups, op, mid):
        for (A, B, C, D) in groups:
            p(f'v_permlane32_swap_b32 v{A}, v{B}')
            p(f'v_permlane32_swap_b32 v{C}, v{D}')
        for (A, B, C, D) in groups:
            p(f'{op} v{A}, v{A}, v{B}')
            p(f'{op} v{C}, v{C}, v{D}')
        for (A, B, C, D) in groups:
            p(f'v_permlane16_swap_b32 v{A}, v{C}')
        for (A, B, C, D) in groups:
            p(f'{op} v{A}, v{A}, v{C}')
        for (A, B, C, D) in groups:
            mid(A)
        for (A, B, C, D) in groups:
            p(f'v_mov_b32 v{C}, v{A}')
        for (A, B, C, D) in groups:
            p(f'v_permlane16_swap_b32 v{A}, v{C}')
        for (A, B, C, D) in groups:
            p(f'v_mov_b32 v{B}, v{A}')
            p(f'v_mov_b32 v{D}, v{C}')
        for (A, B, C, D) in groups:
            p(f'v_permlane32_swap_b32 v{A}, v{B}')
            p(f'v_permlane32_swap_b32 v{C}, v{D}')

    grp = lambda o: [tuple(S(t, h) + o for (t, h) in inst[0:4]), tuple(S(t, h) + o for (t, h) in inst[4:8])]
    cross(grp(2), 'v_max_f32', lambda A: p(f'v_mul_f32 v{A}, s64, v{A}'))
    for (t, h) in inst:
        s = S(t, h)
        p(f'v_pk_fma_f32 v[{s}:{s+1}], v[{s}:{s+1}], s[64:65], v[{s+2}:{s+3}] op_sel_hi:[1,1,0] neg_lo:[0,0,1] neg_hi:[0,0,1]')
    for (t, h) in inst:
        s = S(t, h)
        p(f'v_exp_f32 v{s}, v{s}')
        p(f'v_exp_f32 v{s+1}, v{s+1}')
    for (t, h) in inst:
        s = S(t, h)
        p(f'v_add_f32 v{s+2}, v{s}, v{s+1}')
    cross(grp(2), 'v_add_f32', lambda A: p(f'v_rcp_f32 v{A}, v{A}'))
    for (t, h) in inst:
        s = S(t, h)
        p(f'v_pk_mul_f32 v[{s}:{s+1}], v[{s}:{s+1}], v[{s+2}:{s+3}] op_sel_hi:[1,0]')
    for (t, h) in inst:
        s = S(t, h)
        p(f'v_cvt_pk_bf16_f32 v{s+2}, v{s}, v{s+1}')
    if CFG['PROF'] == 6:
        p('s_memtime s[76:77]')

    def perm(i):
        s = S(*inst[i])
        for k in range(4):
            p(f'v_perm_b32 v{s+4+k}, v{s+2}, v{s+2}, v{V_SEL+k}')

    def pv(i):
        t, h = inst[i]
        s = S(t, h)
        va, vt = A_VM(h, 0) + 2 * t, A_VT(0) + 2 * t
        om, ot = A_QM(h, t), A_KM(h, t)
        p(f'v_mfma_f32_16x16x32_bf16 v[{om}:{om+3}], v[{va}:{va+3}], v[{s+4}:{s+7}], 0')
        p(f'v_mfma_f32_16x16x32_bf16 v[{ot}:{ot+3}], v[{vt}:{vt+3}], v[{s+4}:{s+7}], 0')

    def pack_main(t):
        for h in range(2):
            o = A_QM(h, t)
            d = S(t, 0) + 2 * h
            p(f'v_cvt_pk_bf16_f32 v{d}, v{o}, v{o+1}')
            p(f'v_cvt_pk_bf16_f32 v{d+1}, v{o+2}, v{o+3}')
        d = S(t, 0)
        p(f's_add_u32 s68, s66, {t*20480}')
        p(f'buffer_store_dwordx4 v[{d}:{d+3}], v248, s[{SRD_WS}:{SRD_WS+3}], s68 offen {CFG["STFO"]}')

    def pack_tail(t):
        d = S(t & 2, 1) + 2 * (t & 1)
        o0, o1 = A_KM(0, t), A_KM(1, t)
        for rr in range(4):
            p(f'v_cndmask_b32 v{o0+rr}, v{o0+rr}, v{o1+rr}, s[62:63]')
        p(f'v_cvt_pk_bf16_f32 v{d}, v{o0}, v{o0+1}')
        p(f'v_cvt_pk_bf16_f32 v{d+1}, v{o0+2}, v{o0+3}')

    perm(0)
    perm(1)
    for i in range(8):
        pv(i)
        if i + 2 < 8:
            perm(i + 2)
        if i in (5, 7):
            pass
    for t in (3, 2):
        pack_main(t)
    for t in (3, 2):
        pack_tail(t)
    pack_main(1)
    pack_tail(1)
    pack_main(0)
    pack_tail(0)
    p('s_mov_b32 exec_hi, 0')
    for pr in range(2):
        d = S(2 * pr, 1)
        p(f's_add_u32 s68, s67, {pr*20480}')
        p(f'buffer_store_dwordx4 v[{d}:{d+3}], v248, s[{SRD_WS}:{SRD_WS+3}], s68 offen {CFG["STFO"]}')
    p('s_mov_b32 exec_hi, -1')


def attn_out_addr(p):
    p(f's_lshl_b32 s65, s{S_RB}, 3')
    p('s_lshl_b32 s66, s56, 2')
    p('s_add_u32 s65, s65, s66')
    p('s_mul_i32 s66, s65, 20')
    p(f's_lshl_b32 s67, s{S_CG}, 1')
    p('s_add_u32 s67, s67, s55')
    p('s_add_u32 s66, s66, s67')
    p('s_lshl_b32 s66, s66, 10')
    p(f's_add_u32 s66, s66, {OA_OFF}')
    p(f's_and_b32 s67, s{S_CG}, 1')
    p('s_lshl_b32 s67, s67, 1')
    p('s_add_u32 s67, s67, s65')
    p('s_mul_i32 s67, s67, 20')
    p(f's_lshr_b32 s68, s{S_CG}, 1')
    p('s_add_u32 s67, s67, s68')
    p('s_add_u32 s67, s67, 16')
    p('s_lshl_b32 s67, s67, 10')
    p('s_lshl_b32 s68, s55, 9')
    p('s_add_u32 s67, s67, s68')
    p(f's_add_u32 s67, s67, {OA_OFF}')


def ffn_prologue(p):
    p(f's_and_b32 s55, s{S_WAVE}, 1')
    p(f's_lshr_b32 s56, s{S_WAVE}, 1')
    p('v_and_b32 v3, 15, v2')
    p('v_lshrrev_b32 v4, 4, v2')
    p('v_lshrrev_b32 v5, 1, v3')
    p('v_xor_b32 v5, v5, v4')
    p('v_lshlrev_b32 v5, 4, v5')
    p('v_lshl_add_u32 v5, v3, 7, v5')
    p('s_lshl_b32 s57, s56, 13')
    p(f'v_add_u32 v{V_X0}, s57, v5')
    p(f'v_xor_b32 v{V_X1}, 64, v{V_X0}')
    p('v_lshrrev_b32 v5, 5, v2')
    p('v_lshlrev_b32 v5, 4, v5')
    p('v_bfe_u32 v6, v2, 4, 1')
    p('v_lshl_add_u32 v5, v6, 2, v5')
    p('v_bfe_u32 v6, v2, 2, 2')
    p('v_add_u32 v5, v5, v6')
    p(f'v_mul_u32_u24 v5, {WROW}, v5')
    p(f'v_add_u32 v5, {XREG}, v5')
    p('v_and_b32 v6, 3, v2')
    p('v_lshl_add_u32 v5, v6, 3, v5')
    p('s_lshl_b32 s57, s55, 8')
    p(f'v_add_u32 v{V_W}, s57, v5')
    p('s_lshl_b32 s57, s55, 5')
    p('s_add_u32 s57, s57, 192')
    p(f'v_add_u32 v{V_WA}, s57, v5')
    p(f's_mul_i32 s57, s{S_CG}, 448')
    p('v_lshlrev_b32 v5, 3, v4')
    p('v_add_u32 v5, s57, v5')
    p('s_lshl_b32 s57, s55, 8')
    p('v_add_u32 v6, s57, v5')
    p('s_lshl_b32 s57, s55, 5')
    p('s_add_u32 s57, s57, 192')
    p('v_add_u32 v7, s57, v5')
    p('v_lshlrev_b32 v248, 4, v2')
    p('s_waitcnt lgkmcnt(0)')
    srd(p, SRD_A, S_B1, 3456)
    for f in range(7):
        if f < 6:
            p(f'buffer_load_dwordx2 v[{200+2*f}:{201+2*f}], v6, s[{SRD_A}:{SRD_A+3}], 0 offen offset:{32*f}')
        else:
            p(f'buffer_load_dwordx2 v[{200+2*f}:{201+2*f}], v7, s[{SRD_A}:{SRD_A+3}], 0 offen')
    tlb_touch(p, 'F')
    p('s_mov_b32 s58, 0xffff0000')
    p('s_waitcnt vmcnt(0)')
    for f in range(7):
        for t in range(4):
            a = F_ACC(f, t)
            p(f'v_lshlrev_b32 v{a}, 16, v{200+2*f}')
            p(f'v_and_b32 v{a+1}, s58, v{200+2*f}')
            p(f'v_lshlrev_b32 v{a+2}, 16, v{201+2*f}')
            p(f'v_and_b32 v{a+3}, s58, v{201+2*f}')


def ffn_epilogue(p):
    k1 = -2.0 * math.sqrt(2.0 / math.pi) * math.log2(math.e)
    k2 = k1 * 0.044715
    C1, C2, ONE = 240, 242, 244
    for r in (0, 1):
        p(f'v_mov_b32 v{C1+r}, {hexf(k1)}')
        p(f'v_mov_b32 v{C2+r}, {hexf(k2)}')
        p(f'v_mov_b32 v{ONE+r}, 1.0')
    p('s_nop 5')
    p(f's_lshl_b32 s65, s{S_RB}, 3')
    p('s_lshl_b32 s66, s56, 2')
    p('s_add_u32 s65, s65, s66')
    p('s_mul_i32 s65, s65, 54')
    p(f's_mul_i32 s66, s{S_CG}, 7')
    p('s_add_u32 s67, s66, 3')
    p('s_lshl_b32 s68, s55, 2')
    p('s_add_u32 s66, s66, s68')
    p('s_add_u32 s69, s65, s67')
    p('s_lshl_b32 s69, s69, 10')
    p('s_lshl_b32 s68, s55, 3')
    p('s_add_u32 s69, s69, s68')
    p('s_add_u32 s68, s65, s66')
    p('s_lshl_b32 s68, s68, 10')

    def gelu(regs, tmp):
        for i, x in enumerate(regs):
            p(f'v_pk_mul_f32 v[{tmp+4*i}:{tmp+4*i+1}], v[{x}:{x+1}], v[{x}:{x+1}]')
        for i, x in enumerate(regs):
            p(f'v_pk_fma_f32 v[{tmp+4*i}:{tmp+4*i+1}], v[{tmp+4*i}:{tmp+4*i+1}], v[{C2}:{C2+1}], v[{C1}:{C1+1}]')
        for i, x in enumerate(regs):
            p(f'v_pk_mul_f32 v[{tmp+4*i}:{tmp+4*i+1}], v[{tmp+4*i}:{tmp+4*i+1}], v[{x}:{x+1}]')
        for i, x in enumerate(regs):
            p(f'v_exp_f32 v{tmp+4*i}, v{tmp+4*i}')
            p(f'v_exp_f32 v{tmp+4*i+1}, v{tmp+4*i+1}')
        for i, x in enumerate(regs):
            p(f'v_pk_add_f32 v[{tmp+4*i}:{tmp+4*i+1}], v[{tmp+4*i}:{tmp+4*i+1}], v[{ONE}:{ONE+1}]')
        for i, x in enumerate(regs):
            p(f'v_rcp_f32 v{tmp+4*i}, v{tmp+4*i}')
            p(f'v_rcp_f32 v{tmp+4*i+1}, v{tmp+4*i+1}')
        for i, x in enumerate(regs):
            p(f'v_pk_mul_f32 v[{x}:{x+1}], v[{tmp+4*i}:{tmp+4*i+1}], v[{x}:{x+1}]')

    OUT = 184
    n = 0
    for pr in range(3):
        p(f's_add_u32 s70, s66, {pr}')
        p('s_cmp_ge_u32 s70, 54')
        p(f's_cbranch_scc1 L_skip_pair{pr}')
        for t in range(4):
            a, b = F_ACC(2 * pr, t), F_ACC(2 * pr + 1, t)
            gelu([a, a + 2, b, b + 2], 152)
            o = OUT + 4 * (n % 4)
            n += 1
            p(f'v_cvt_pk_bf16_f32 v{o}, v{a}, v{a+1}')
            p(f'v_cvt_pk_bf16_f32 v{o+1}, v{a+2}, v{a+3}')
            p(f'v_cvt_pk_bf16_f32 v{o+2}, v{b}, v{b+1}')
            p(f'v_cvt_pk_bf16_f32 v{o+3}, v{b+2}, v{b+3}')
            p(f's_add_u32 s70, s68, {pr*1024 + t*54*1024}')
            p(f'buffer_store_dwordx4 v[{o}:{o+3}], v248, s[{SRD_WS}:{SRD_WS+3}], s70 offen {CFG["STFH"]}')
        p.label(f'L_skip_pair{pr}')
    for t2 in range(2):
        a, b = F_ACC(6, 2 * t2), F_ACC(6, 2 * t2 + 1)
        gelu([a, a + 2, b, b + 2], 152)
        for u, x in enumerate((a, b)):
            o = OUT + 16 + 2 * ((2 * t2 + u) % 2)
            p(f'v_cvt_pk_bf16_f32 v{o}, v{x}, v{x+1}')
            p(f'v_cvt_pk_bf16_f32 v{o+1}, v{x+2}, v{x+3}')
            p(f's_add_u32 s70, s69, {(2*t2+u)*54*1024}')
            p(f'buffer_store_dwordx2 v[{o}:{o+1}], v248, s[{SRD_WS}:{SRD_WS+3}], s70 offen {CFG["STFH"]}')


def gen_k1():
    p = Prog()
    p('s_cmp_ge_u32 s2, 256')
    p('s_cbranch_scc1 L_k1_end')
    p('s_load_dwordx4 s[4:7], s[0:1], 0')
    p('s_load_dwordx4 s[8:11], s[0:1], 16')
    p('s_load_dwordx4 s[12:15], s[0:1], 32')
    p('s_load_dwordx4 s[16:19], s[0:1], 48')
    p('s_load_dwordx2 s[20:21], s[0:1], 64')
    p('s_load_dwordx2 s[22:23], s[0:1], 88')
    if CFG['TT']:
        p('s_load_dwordx2 s[100:101], s[0:1], 72')
    if CFG['PROF']:
        p('s_memrealtime s[88:89]')
        p('s_memtime s[82:83]')
    p('v_lshrrev_b32 v1, 6, v0')
    p('v_and_b32 v2, 63, v0')
    p(f'v_readfirstlane_b32 s{S_WAVE}, v1')
    if CFG['SWAPW']:
        p(f's_add_u32 s{S_WAVE}, s{S_WAVE}, 4')
        p(f's_and_b32 s{S_WAVE}, s{S_WAVE}, 7')
    k1_decode(p)
    p(f's_cmp_eq_u32 s{S_WAVE}, 0')
    p('s_cbranch_scc0 L_nopf')
    p('v_mov_b32 v10, v2')
    code_prefetch(p, 'L_k1_body', 'L_k1_end', CFG.get('K1_BYTES', 20480), 10, 255, 84, 'k1')
    p.label('L_nopf')
    p.label('L_k1_body')
    p(f's_cmp_ge_u32 s{S_WAVE}, 4')
    p('s_cbranch_scc0 L_consumer')
    if CFG['LDFIRST'] == 1:
        p(f's_cmp_eq_u32 s{S_TYPE}, 0')
        p('s_cbranch_scc0 L_loader_F')
        k1_loader(p, True)
        k1_loader(p, False)
    elif CFG['LDFIRST'] == 2:
        p(f's_cmp_eq_u32 s{S_TYPE}, 0')
        p('s_cbranch_scc0 L_loader_F')
        k1_loader(p, True)
    else:
        p(f's_cmp_eq_u32 s{S_TYPE}, 0')
        p('s_cbranch_scc1 L_loader_A')
        p('s_branch L_loader_F')
    p.label('L_consumer')
    if CFG['PRIO']:
        p(f's_setprio {CFG["PRIO"]}')
    p(f's_cmp_eq_u32 s{S_TYPE}, 0')
    p('s_cbranch_scc0 L_cons_F')
    p('s_movk_i32 s99, 256')
    prefetch_setup(p, True)
    p('s_waitcnt lgkmcnt(0)')
    tlb_touch(p, 'A')
    attn_prologue(p)
    attn_out_addr(p)
    if CFG['ZVT']:
        p('s_mov_b32 s68, 0x00ff00ff')
        p('s_mov_b32 s69, 0x00ff00ff')
    srd(p, SRD_WS, S_WS, WS_USED)
    srd(p, SRD_X, S_AX, 2048 * 1280)
    srd(p, SRD_W, S_WQKV, 640 * 3840)
    p('s_waitcnt lgkmcnt(0)')
    stamp(p, 0)
    p('s_barrier')
    stamp(p, 1)
    prefetch_issue(p, True)
    if CFG['M35']:
        p('s_cmp_eq_u32 s56, 0')
        p('s_cbranch_scc0 L_attn_th1')
        for th in (0, 1):
            if th:
                p.label('L_attn_th1')
            consumer_loop(p, True, th)
            stamp(p, 2)
            attn_epilogue(p, th)
            stamp(p, 3)
            if CFG['PROF']:
                prof_store(p, 4, 'CA', SRD_WS)
            p('s_endpgm')
    else:
        consumer_loop(p, True)
        stamp(p, 2)
        attn_epilogue(p)
        stamp(p, 3)
        if CFG['PROF']:
            prof_store(p, 4, 'CA', SRD_WS)
        p('s_endpgm')
    p.label('L_cons_F')
    p('s_movk_i32 s99, 256')
    prefetch_setup(p, False)
    ffn_prologue(p)
    srd(p, SRD_WS, S_WS, WS_USED)
    srd(p, SRD_X, S_AX, 2048 * 1280)
    srd(p, SRD_W, S_W1, 640 * 3456)
    p('s_waitcnt lgkmcnt(0)')
    stamp(p, 0)
    p('s_barrier')
    stamp(p, 1)
    prefetch_issue(p, False)
    consumer_loop(p, False)
    stamp(p, 2)
    ffn_epilogue(p)
    stamp(p, 3)
    if CFG['PROF']:
        prof_store(p, 4, 'CF', SRD_WS)
    p('s_endpgm')
    if not CFG['LDFIRST']:
        k1_loader(p, True)
        k1_loader(p, False)
    elif CFG['LDFIRST'] == 2:
        k1_loader(p, False)
    p.label('L_k1_end')
    p('s_endpgm')
    return p


K2_LAST = {}


def k2_small_loads(p, vg, vb, vb2):
    p(f'buffer_load_dwordx2 v[{K2_G}:{K2_G+1}], v{vg}, s[12:15], 0 offen')
    p(f'buffer_load_dwordx4 v[{K2_B2}:{K2_B2+3}], v{vb}, s[16:19], 0 offen')
    p(f'buffer_load_dwordx4 v[{K2_B2+4}:{K2_B2+7}], v{vb}, s[16:19], 0 offen offset:64')
    p(f'buffer_load_dwordx2 v[{K2_B2+8}:{K2_B2+9}], v{vb2}, s[16:19], 0 offen offset:128')


def k2_stream(p, wave_a):
    NB = CFG['NBUF']
    tag = 'a' if wave_a else 'b'
    nsteps = 20 if wave_a else 18
    ACC = lambda t, f: K2_ACC + (t * 5 + f) * 4
    BA = lambda b, t: 36 * b + 4 * t
    BW = lambda b, f: 36 * b + 16 + 4 * f

    def ld_w(b, f):
        if f < 4:
            p(f'buffer_load_dwordx4 v[{BW(b,f)}:{BW(b,f)+3}], v{K2_VL}, s[12:15], s21 offen offset:{1024*f} {CFG["K2LDF"]}')
        else:
            p(f'buffer_load_dwordx4 v[{BW(b,f)}:{BW(b,f)+3}], v{K2_VL2}, s[12:15], s21 offen {CFG["K2LDF"]}')

    def ld_a(b, t):
        p(f'buffer_load_dwordx4 v[{BA(b,t)}:{BA(b,t)+3}], v{K2_VA+t}, s[12:15], s20 offen {CFG["K2LDF"]}')

    nrot = 16 if wave_a else 18
    state = {'n': 0}

    def adv():
        state['n'] += 1
        p('s_add_u32 s20, s20, 1024')
        p('s_add_u32 s21, s21, 5120')
        if not CFG['ROT2']:
            return
        if state['n'] < nrot:
            p('s_add_u32 s22, s22, 1')
            p(f's_cmp_eq_u32 s22, {nrot}')
            p(f's_cselect_b32 s23, {nrot*1024}, 0')
            p('s_sub_u32 s20, s20, s23')
            p('s_mul_i32 s23, s23, 5')
            p('s_sub_u32 s21, s21, s23')
        elif state['n'] == nrot and wave_a:
            p('s_mov_b32 s20, s34')
            p('s_mov_b32 s21, s35')

    for s in range(min(NB, nsteps)):
        for f in range(5):
            ld_w(s % NB, f)
        for t in range(4):
            ld_a(s % NB, t)
        adv()
    if CFG['GLATE']:
        k2_small_loads(p, 246, 247, 248)
    for r in range(80):
        p(f'v_mov_b32 v{K2_ACC+r}, 0')
    stamp(p, 1)
    for s in range(nsteps):
        b = s % NB
        issued = min(s + NB, nsteps)
        newer = (issued - s - 1) * 9
        if CFG['GLATE'] and s < NB:
            newer += 4
        p(f's_waitcnt vmcnt({newer})')
        more = s + NB < nsteps
        tail = wave_a and s >= 16
        amap = [0, 1, 2, 3]
        if tail:
            for (x, y) in ((0, 2), (1, 3)):
                p(f'v_swap_b32 v{BA(b,x)+2}, v{BA(b,y)}')
                p(f'v_swap_b32 v{BA(b,x)+3}, v{BA(b,y)+1}')
            amap = [0, 2, 1, 3]
        if CFG['K2RED'] == 2 and s == nsteps - 1:
            def last_step(w, b=b, amap=amap):
                p(f'v_add_u32 v220, {w*5120}, v{K2_VL}')
                p(f'v_add_u32 v221, {w*5120 + 40960}, v{K2_VL}')
                order = [t for t in range(4) if t != w] + [w]
                if w != 0:
                    order = [0] + [t for t in (1, 2, 3) if t != w] + [w]
                pend = []
                for k, t in enumerate(order):
                    for f in range(5):
                        acc = ACC(t, f)
                        p(f'v_mfma_f32_16x16x32_bf16 v[{acc}:{acc+3}], v[{BW(b,f)}:{BW(b,f)+3}], v[{BA(b,amap[t])}:{BA(b,amap[t])+3}], v[{acc}:{acc+3}]')
                        if pend and k >= 2:
                            p(pend.pop(0))
                    if t != w:
                        pend += [f'ds_write_b128 v{220 + (t >> 1)}, v[{ACC(t,f)}:{ACC(t,f)+3}] offset:{(t & 1)*20480 + f*1024}' for f in range(5)]
                for ins in pend:
                    p(ins)
            if wave_a:
                last_step(0)
            else:
                K2_LAST['b'] = last_step
            continue
        for f in range(5):
            for t in range(4):
                acc = ACC(t, f)
                if not CFG['K2NOMFMA']:
                    p(f'v_mfma_f32_16x16x32_bf16 v[{acc}:{acc+3}], v[{BW(b,f)}:{BW(b,f)+3}], v[{BA(b,amap[t])}:{BA(b,amap[t])+3}], v[{acc}:{acc+3}]')
            if more and CFG['K2ORD'] == 0:
                ld_w(b, f)
            if more and CFG['K2ORD'] == 2 and f >= 1:
                ld_w(b, f - 1)
        if more:
            if CFG['K2ORD'] == 1:
                for f in range(5):
                    ld_w(b, f)
            if CFG['K2ORD'] == 2:
                ld_w(b, 4)
            for t in range(4):
                ld_a(b, t)
            adv()
    if CFG['K2RED'] == 2:
        p('s_branch L_k2_red_a' if wave_a else 's_branch L_k2_red_b')
    else:
        p('s_branch L_k2_reduce')


K2_ACC = 144
K2_VL, K2_VL2, K2_VA = 224, 225, 226
K2_G, K2_B2 = 230, 232
K2_LDS = 4 * 4 * 5120 + 64


def k2_reduce2(p):
    assert CFG['NBUF'] == 3
    ACC = lambda t, f: K2_ACC + (t * 5 + f) * 4
    R1 = lambda f: 4 * f
    R2 = lambda f: 20 + 4 * f
    R3 = lambda j: 40 + 4 * j
    R4 = lambda j: 48 + 4 * j
    AR = lambda f: 56 + 4 * f
    B = lambda f: 188 + 4 * f
    GP, OP, O0 = 208, 210, 212
    FL, ONE, FA, WA, WB, RB = 214, 218, 219, 220, 221, 222
    O = 80
    FOFF = 81920

    def common(w):
        stamp(p, 2)
        p(f'v_add_u32 v{WA}, {w*5120}, v{K2_VL}')
        p(f'v_add_u32 v{WB}, {w*5120 + 40960}, v{K2_VL}')
        p(f'v_add_u32 v{RB}, {w*20480}, v{K2_VL}')
        p(f'v_mov_b32 v{FA}, {FOFF}')
        p(f'v_mov_b32 v{ONE}, 1')
        p('s_nop 7')

    def write_tiles(tiles):
        for t in tiles:
            for f in range(5):
                p(f'ds_write_b128 v{WA + (t >> 1)}, v[{ACC(t,f)}:{ACC(t,f)+3}] offset:{(t & 1)*20480 + f*1024}')

    def set_flag(i):
        p('s_waitcnt lgkmcnt(0)')
        p(f'ds_write_b32 v{FA}, v{ONE} offset:{4*i}')

    def spin(base, idxs, lbl):
        p.label(lbl)
        p(f'ds_read_b128 v[{FL}:{FL+3}], v{FA} offset:{base}')
        p('s_waitcnt lgkmcnt(0)')
        r = FL + idxs[0]
        for k in idxs[1:]:
            p(f'v_and_b32 v{FL+idxs[0]}, v{r}, v{FL+k}')
        p(f'v_readfirstlane_b32 s62, v{FL+idxs[0]}')
        p('s_cmp_eq_u32 s62, 0')
        p(f's_cbranch_scc1 {lbl}')

    def unpack():
        p('s_mov_b32 s63, 0xffff0000')
        for pr in range(2):
            for d in range(4):
                src = K2_B2 + 4 * pr + d
                f, r = 2 * pr + (d >> 1), 2 * (d & 1)
                p(f'v_lshlrev_b32 v{B(f)+r}, 16, v{src}')
                p(f'v_and_b32 v{B(f)+r+1}, s63, v{src}')
        for d in range(2):
            src = K2_B2 + 8 + d
            p(f'v_lshlrev_b32 v{B(4)+2*d}, 16, v{src}')
            p(f'v_and_b32 v{B(4)+2*d+1}, s63, v{src}')

    def pairs(lo_hi):
        for dst, src in lo_hi:
            p(f'v_mov_b32 v{dst}, v{src}')
            p(f'v_mov_b32 v{dst+1}, v{src}')

    def store(res):
        for pr in range(2):
            for u in range(2):
                a = res(2 * pr + u)
                p(f'v_cvt_pk_bf16_f32 v{O+4*pr+2*u}, v{a}, v{a+1}')
                p(f'v_cvt_pk_bf16_f32 v{O+4*pr+2*u+1}, v{a+2}, v{a+3}')
            p(f'buffer_store_dwordx4 v[{O+4*pr}:{O+4*pr+3}], v242, s[28:31], 0 offen offset:{64*pr} {CFG["OUTF"]}')
        a = res(4)
        p(f'v_cvt_pk_bf16_f32 v{O+8}, v{a}, v{a+1}')
        p(f'v_cvt_pk_bf16_f32 v{O+9}, v{a+2}, v{a+3}')
        p(f'buffer_store_dwordx2 v[{O+8}:{O+9}], v243, s[28:31], 0 offen offset:128 {CFG["OUTF"]}')

    def finish():
        stamp(p, 3)
        if CFG['PROF']:
            prof_store(p, 4, 'K2', 12)
        p('s_endpgm')

    p.label('L_k2_red_a')
    common(0)
    set_flag(0)
    pairs([(GP, K2_G)])
    spin(16, [1, 2, 3], 'L_k2_spin_a')
    for f in range(5):
        p(f'ds_read_b128 v[{R1(f)}:{R1(f)+3}], v{K2_VL} offset:{f*1024}')
    for f in range(5):
        p(f's_waitcnt lgkmcnt({4-f})')
        for r in (0, 2):
            a = ACC(0, f) + r
            p(f'v_pk_fma_f32 v[{a}:{a+1}], v[{a}:{a+1}], v[{GP}:{GP+1}], v[{R1(f)+r}:{R1(f)+r+1}]')
    store(lambda f: ACC(0, f))
    finish()
    p.label('L_k2_red_b')
    for w in (1, 2, 3):
        if w < 3:
            p(f's_cmp_eq_u32 s{S_WAVE}, {w}')
            p(f's_cbranch_scc0 L_k2_red_b{w+1}')
        K2_LAST['b'](w)
        common(w)
        set_flag(w)
        unpack()
        pairs([(GP, K2_G), (OP, K2_G + 1), (O0, 245)])
        o1, o2 = [x for x in (1, 2, 3) if x != w]
        spin(0, [o1, o2], f'L_k2_spin_b{w}')
        sub = {1: [0, 1], 2: [2, 3], 3: [4]}[w]
        for j, f in enumerate(sub):
            p(f'ds_read_b128 v[{R3(j)}:{R3(j)+3}], v{K2_VL} offset:{o1*5120 + f*1024}')
            p(f'ds_read_b128 v[{R4(j)}:{R4(j)+3}], v{K2_VL} offset:{o2*5120 + f*1024}')
        for f in range(5):
            p(f'ds_read_b128 v[{R1(f)}:{R1(f)+3}], v{RB} offset:{o1*5120 + f*1024}')
            p(f'ds_read_b128 v[{R2(f)}:{R2(f)+3}], v{RB} offset:{o2*5120 + f*1024}')
        p('s_waitcnt lgkmcnt(10)')
        for j, f in enumerate(sub):
            for r in (0, 2):
                a = ACC(0, f) + r
                p(f'v_pk_add_f32 v[{R3(j)+r}:{R3(j)+r+1}], v[{R3(j)+r}:{R3(j)+r+1}], v[{R4(j)+r}:{R4(j)+r+1}]')
                p(f'v_pk_add_f32 v[{a}:{a+1}], v[{a}:{a+1}], v[{B(f)+r}:{B(f)+r+1}]')
            for r in (0, 2):
                a = ACC(0, f) + r
                p(f'v_pk_add_f32 v[{a}:{a+1}], v[{a}:{a+1}], v[{R3(j)+r}:{R3(j)+r+1}]')
                p(f'v_pk_mul_f32 v[{a}:{a+1}], v[{a}:{a+1}], v[{O0}:{O0+1}]')
        for j, f in enumerate(sub):
            p(f'ds_write_b128 v{K2_VL}, v[{ACC(0,f)}:{ACC(0,f)+3}] offset:{f*1024}')
        set_flag(4 + w)
        for f in range(5):
            for r in (0, 2):
                a = ACC(w, f) + r
                p(f'v_pk_add_f32 v[{R1(f)+r}:{R1(f)+r+1}], v[{R1(f)+r}:{R1(f)+r+1}], v[{R2(f)+r}:{R2(f)+r+1}]')
                p(f'v_pk_add_f32 v[{a}:{a+1}], v[{a}:{a+1}], v[{B(f)+r}:{B(f)+r+1}]')
            for r in (0, 2):
                a = ACC(w, f) + r
                p(f'v_pk_add_f32 v[{a}:{a+1}], v[{a}:{a+1}], v[{R1(f)+r}:{R1(f)+r+1}]')
                p(f'v_pk_mul_f32 v[{a}:{a+1}], v[{a}:{a+1}], v[{OP}:{OP+1}]')
        spin(0, [0], f'L_k2_spin_c{w}')
        for f in range(5):
            p(f'ds_read_b128 v[{AR(f)}:{AR(f)+3}], v{RB} offset:{f*1024}')
        for f in range(5):
            p(f's_waitcnt lgkmcnt({4-f})')
            for r in (0, 2):
                a = ACC(w, f) + r
                p(f'v_pk_fma_f32 v[{a}:{a+1}], v[{AR(f)+r}:{AR(f)+r+1}], v[{GP}:{GP+1}], v[{a}:{a+1}]')
        store(lambda f: ACC(w, f))
        finish()
        if w < 3:
            p.label(f'L_k2_red_b{w+1}')


def gen_k2():
    global K2_ACC
    NB = CFG['NBUF']
    assert NB * 36 + 80 <= 224
    K2_ACC = NB * 36
    p = Prog()
    p('s_cmp_ge_u32 s2, 256')
    p('s_cbranch_scc1 L_k2_end')
    p('s_load_dwordx2 s[4:5], s[0:1], 88')
    p('s_load_dwordx2 s[6:7], s[0:1], 72')
    p('s_load_dwordx2 s[8:9], s[0:1], 56')
    if CFG['PROF']:
        p('s_memrealtime s[88:89]')
        p('s_memtime s[82:83]')
    p('v_lshrrev_b32 v1, 6, v0')
    p('v_and_b32 v2, 63, v0')
    p(f'v_readfirstlane_b32 s{S_WAVE}, v1')
    p('s_and_b32 s52, s2, 7')
    p('s_lshr_b32 s53, s2, 3')
    if CFG['MAP2'] == '8x4':
        p('s_lshr_b32 s54, s52, 1')
        p('s_lshl_b32 s54, s54, 3')
        p('s_lshr_b32 s55, s53, 2')
        p('s_add_u32 s26, s54, s55')
        p('s_and_b32 s54, s52, 1')
        p('s_lshl_b32 s54, s54, 2')
        p('s_and_b32 s55, s53, 3')
        p('s_add_u32 s27, s54, s55')
    else:
        p('s_lshl_b32 s54, s52, 2')
        p('s_lshr_b32 s55, s53, 3')
        p('s_add_u32 s26, s54, s55')
        p('s_and_b32 s27, s53, 7')
    p(f's_cmp_eq_u32 s{S_WAVE}, 0')
    p('s_cbranch_scc0 L_k2_nopf')
    p('v_mov_b32 v10, v2')
    code_prefetch(p, 'L_k2_body', 'L_k2_end', CFG.get('K2_BYTES', 16384), 10, 255, 84, 'k2')
    p.label('L_k2_nopf')
    p.label('L_k2_body')
    p(f'v_lshlrev_b32 v{K2_VL}, 4, v2')
    p(f'v_add_u32 v{K2_VL2}, 4096, v{K2_VL}')
    p(f's_cmp_eq_u32 s{S_WAVE}, 0')
    p('s_mov_b32 s56, 20480')
    p('s_cselect_b32 s56, s56, 55296')
    p(f's_mov_b32 s57, {OA_OFF}')
    p(f's_cselect_b32 s57, s57, {H_OFF}')
    p(f's_mov_b32 s58, {WO_OFF}')
    p(f's_cselect_b32 s58, s58, {W2_OFF}')
    p('s_cselect_b32 s59, 20, 54')
    p(f's_mul_i32 s60, s{S_WAVE}, 18')
    p('s_cselect_b32 s60, 18, s60')
    p('s_sub_u32 s60, s60, 18')
    p('s_lshl_b32 s61, s26, 2')
    p('s_mul_i32 s61, s61, s56')
    p('s_add_u32 s61, s61, s57')
    p('s_lshl_b32 s62, s60, 10')
    p('s_add_u32 s20, s61, s62')
    p('s_mul_i32 s61, s27, s59')
    p('s_add_u32 s61, s61, s60')
    p('s_mul_i32 s61, s61, 5120')
    p('s_add_u32 s21, s61, s58')
    if CFG['ROT2']:
        p('s_add_u32 s34, s20, 16384')
        p('s_add_u32 s35, s21, 81920')
        if CFG['ROT2'] == 2:
            p('s_xor_b32 s62, s26, s27')
            p('s_and_b32 s62, s62, 1')
            p(f's_cmp_eq_u32 s{S_WAVE}, 0')
            p('s_cselect_b32 s63, 8, 9')
            p('s_mul_i32 s22, s62, s63')
        elif CFG['ROT2'] == 3:
            p('s_add_u32 s62, s26, s27')
            p('s_mul_i32 s63, s62, 43')
            p('s_lshr_b32 s63, s63, 7')
            p('s_mul_i32 s63, s63, 3')
            p('s_sub_u32 s62, s62, s63')
            p(f's_cmp_eq_u32 s{S_WAVE}, 0')
            p('s_cselect_b32 s63, 5, 6')
            p('s_mul_i32 s22, s62, s63')
        else:
            p('s_and_b32 s62, s26, 7')
            p('s_and_b32 s63, s27, 3')
            p('s_lshl_b32 s63, s63, 1')
            p('s_add_u32 s62, s62, s63')
            p(f's_cmp_eq_u32 s{S_WAVE}, 0')
            p('s_cselect_b32 s63, 16, 18')
            p('s_mul_i32 s62, s62, s63')
            p('s_lshr_b32 s22, s62, 3')
            p('s_cmp_ge_u32 s22, s63')
            p('s_cselect_b32 s62, s63, 0')
            p('s_sub_u32 s22, s22, s62')
        p('s_lshl_b32 s62, s22, 10')
        p('s_add_u32 s20, s20, s62')
        p('s_mul_i32 s62, s22, 5120')
        p('s_add_u32 s21, s21, s62')
    for t in range(4):
        p(f's_mul_i32 s62, s56, {t}')
        p(f'v_add_u32 v{K2_VA+t}, s62, v{K2_VL}')
    p('v_and_b32 v3, 15, v2')
    p('v_lshrrev_b32 v4, 4, v2')
    p('s_lshl_b32 s62, s26, 6')
    p(f's_lshl_b32 s63, s{S_WAVE}, 4')
    p('s_add_u32 s62, s62, s63')
    p('v_add_u32 v5, s62, v3')
    p('v_lshlrev_b32 v6, 3, v5')
    p(f'v_add_u32 v6, {G_OFF}, v6')
    p('s_mul_i32 s63, s27, 160')
    p('v_lshlrev_b32 v7, 4, v4')
    p('v_add_u32 v7, s63, v7')
    p('v_lshlrev_b32 v8, 3, v4')
    p('v_add_u32 v8, s63, v8')
    p('s_movk_i32 s63, 1280')
    p('v_mul_u32_u24 v5, s63, v5')
    p('v_add_u32 v242, v5, v7')
    p('v_add_u32 v243, v5, v8')
    if CFG['K2RED'] == 2:
        for r in range(4):
            p(f'v_mov_b32 v{214+r}, 0')
        p('v_mov_b32 v219, 81920')
        p('ds_write_b128 v219, v[214:217]')
        p('ds_write_b128 v219, v[214:217] offset:16')
    p('s_waitcnt lgkmcnt(0)')
    if CFG['K2RED'] == 2:
        p('s_barrier')
    srd(p, 12, 4, WS_USED)
    srd(p, 16, 8, 1280)
    srd(p, 28, 6, 2048 * 1280)
    stamp(p, 0)
    if CFG['K2RED'] == 2:
        p('s_lshl_b32 s62, s26, 6')
        p('v_add_u32 v9, s62, v3')
        p('v_lshlrev_b32 v9, 3, v9')
        p(f'v_add_u32 v9, {G_OFF}, v9')
        p('buffer_load_dwordx2 v[244:245], v9, s[12:15], 0 offen')
    if not CFG['GLATE']:
        k2_small_loads(p, 6, 7, 8)
    else:
        p('v_mov_b32 v246, v6')
        p('v_mov_b32 v247, v7')
        p('v_mov_b32 v248, v8')
    p(f's_cmp_eq_u32 s{S_WAVE}, 0')
    p('s_cbranch_scc0 L_k2_b')
    if CFG['K2PRIO']:
        p(f's_setprio {CFG["K2PRIO"]}')
    k2_stream(p, True)
    p.label('L_k2_b')
    k2_stream(p, False)
    if CFG['K2RED'] == 2:
        k2_reduce2(p)
        p.label('L_k2_end')
        p('s_endpgm')
        return p
    p.label('L_k2_reduce')
    stamp(p, 2)
    ACC = lambda t, f: K2_ACC + (t * 5 + f) * 4
    p(f's_mul_i32 s62, s{S_WAVE}, 5120')
    p(f'v_add_u32 v3, s62, v{K2_VL}')
    p('s_nop 7')
    p('v_add_u32 v4, 40960, v3')
    for t in range(4):
        for f in range(5):
            p(f'ds_write_b128 v{3 + (t >> 1)}, v[{ACC(t,f)}:{ACC(t,f)+3}] offset:{(t & 1)*20480 + f*1024}')
    p(f's_mul_i32 s62, s{S_WAVE}, 20480')
    p(f'v_add_u32 v250, s62, v{K2_VL}')
    p('s_waitcnt lgkmcnt(0)')
    p('s_barrier')
    R = lambda w, f: (w * 5 + f) * 4
    for f in range(5):
        for w in range(4):
            p(f'ds_read_b128 v[{R(w,f)}:{R(w,f)+3}], v250 offset:{w*5120 + f*1024}')
    p('s_mov_b32 s62, 0xffff0000')
    B = lambda f: 100 + 4 * f
    for pr in range(2):
        for d in range(4):
            src = K2_B2 + 4 * pr + d
            f, r = 2 * pr + (d >> 1), 2 * (d & 1)
            p(f'v_lshlrev_b32 v{B(f)+r}, 16, v{src}')
            p(f'v_and_b32 v{B(f)+r+1}, s62, v{src}')
    for d in range(2):
        src = K2_B2 + 8 + d
        p(f'v_lshlrev_b32 v{B(4)+2*d}, 16, v{src}')
        p(f'v_and_b32 v{B(4)+2*d+1}, s62, v{src}')
    p(f'v_mov_b32 v120, v{K2_G}')
    p(f'v_mov_b32 v121, v{K2_G}')
    p(f'v_mov_b32 v122, v{K2_G+1}')
    p(f'v_mov_b32 v123, v{K2_G+1}')
    for f in range(5):
        p(f's_waitcnt lgkmcnt({min(15, 16-4*f)})' if f < 4 else 's_waitcnt lgkmcnt(0)')
        if f == 0:
            p('s_waitcnt lgkmcnt(15)')
        for r in (0, 2):
            a, b1, b2_, b3 = R(0, f) + r, R(1, f) + r, R(2, f) + r, R(3, f) + r
            p(f'v_pk_add_f32 v[{b1}:{b1+1}], v[{b1}:{b1+1}], v[{b2_}:{b2_+1}]')
            p(f'v_pk_add_f32 v[{b3}:{b3+1}], v[{b3}:{b3+1}], v[{B(f)+r}:{B(f)+r+1}]')
            p(f'v_pk_mul_f32 v[{a}:{a+1}], v[{a}:{a+1}], v[120:121]')
            p(f'v_pk_add_f32 v[{b1}:{b1+1}], v[{b1}:{b1+1}], v[{b3}:{b3+1}]')
            p(f'v_pk_fma_f32 v[{a}:{a+1}], v[{b1}:{b1+1}], v[122:123], v[{a}:{a+1}]')
    O = 124
    for pr in range(2):
        for u in range(2):
            a = R(0, 2 * pr + u)
            p(f'v_cvt_pk_bf16_f32 v{O+4*pr+2*u}, v{a}, v{a+1}')
            p(f'v_cvt_pk_bf16_f32 v{O+4*pr+2*u+1}, v{a+2}, v{a+3}')
        p(f'buffer_store_dwordx4 v[{O+4*pr}:{O+4*pr+3}], v242, s[28:31], 0 offen offset:{64*pr} {CFG["OUTF"]}')
    a = R(0, 4)
    p(f'v_cvt_pk_bf16_f32 v{O+8}, v{a}, v{a+1}')
    p(f'v_cvt_pk_bf16_f32 v{O+9}, v{a+2}, v{a+3}')
    p(f'buffer_store_dwordx2 v[{O+8}:{O+9}], v243, s[28:31], 0 offen offset:128 {CFG["OUTF"]}')
    stamp(p, 3)
    if CFG['PROF']:
        prof_store(p, 4, 'K2', 12)
    p.label('L_k2_end')
    p('s_endpgm')
    return p


K2B_R = 4
K2B_STEP = 9216
K2B_SLOT = 4 * K2B_STEP
K2B_LDS = K2B_R * K2B_SLOT


def gen_k2b():
    R, SL, ST = K2B_R, K2B_SLOT, K2B_STEP
    stages = [('a', 4 * i, 4) for i in range(5)] + [('b', 4 * i, 4) for i in range(13)] + [('b', 52, 2)]
    NS = len(stages)
    p = Prog()
    p('s_cmp_ge_u32 s2, 256')
    p('s_cbranch_scc1 L_k2_end')
    p('s_load_dwordx2 s[4:5], s[0:1], 88')
    p('s_load_dwordx2 s[6:7], s[0:1], 72')
    p('s_load_dwordx2 s[8:9], s[0:1], 56')
    if CFG['PROF']:
        p('s_memrealtime s[88:89]')
        p('s_memtime s[82:83]')
    p('v_lshrrev_b32 v1, 6, v0')
    p('v_and_b32 v2, 63, v0')
    p(f'v_readfirstlane_b32 s{S_WAVE}, v1')
    p('s_and_b32 s52, s2, 7')
    p('s_lshr_b32 s53, s2, 3')
    if CFG['MAP2'] == '8x4':
        p('s_lshr_b32 s54, s52, 1')
        p('s_lshl_b32 s54, s54, 3')
        p('s_lshr_b32 s55, s53, 2')
        p('s_add_u32 s26, s54, s55')
        p('s_and_b32 s54, s52, 1')
        p('s_lshl_b32 s54, s54, 2')
        p('s_and_b32 s55, s53, 3')
        p('s_add_u32 s27, s54, s55')
    else:
        p('s_lshl_b32 s54, s52, 2')
        p('s_lshr_b32 s55, s53, 3')
        p('s_add_u32 s26, s54, s55')
        p('s_and_b32 s27, s53, 7')
    p('v_lshlrev_b32 v3, 4, v2')
    p(f's_cmp_ge_u32 s{S_WAVE}, 4')
    p('s_cbranch_scc0 L_k2_consumer')
    p(f's_sub_u32 s57, s{S_WAVE}, 4')
    p('s_mul_i32 s20, s27, 20')
    p('s_add_u32 s20, s20, s57')
    p('s_mul_i32 s20, s20, 5120')
    p(f's_add_u32 s20, s20, {WO_OFF}')
    p('s_mul_i32 s21, s27, 54')
    p('s_add_u32 s21, s21, s57')
    p('s_mul_i32 s21, s21, 5120')
    p(f's_add_u32 s21, s21, {W2_OFF}')
    p('s_lshl_b32 s54, s26, 2')
    p('s_mul_i32 s22, s54, 20')
    p('s_add_u32 s22, s22, s57')
    p('s_lshl_b32 s22, s22, 10')
    p(f's_add_u32 s22, s22, {OA_OFF}')
    p('s_mul_i32 s25, s54, 54')
    p('s_add_u32 s25, s25, s57')
    p('s_lshl_b32 s25, s25, 10')
    if H_OFF:
        p(f's_add_u32 s25, s25, {H_OFF}')
    p(f's_mul_i32 s58, s57, {ST}')
    p('v_add_u32 v4, 4096, v3')
    for u in range(4):
        p(f'v_add_u32 v{10+u}, {20480*u}, v3')
        p(f'v_add_u32 v{14+u}, {55296*u}, v3')
    p('s_waitcnt lgkmcnt(0)')
    srd(p, 12, 4, WS_USED)
    stamp(p, 0)

    def issue(j):
        part, s0, n = stages[j]
        slot = j % R
        if n < 4:
            p(f's_cmp_ge_u32 s57, {n}')
            p(f's_cbranch_scc1 L_k2_skip{j}')
        p(f's_add_u32 s23, s{20 if part == "a" else 21}, {s0*5120}')
        p(f's_add_u32 s24, s{22 if part == "a" else 25}, {s0*1024}') if False else None
        p(f's_add_u32 m0, s58, {slot*SL}')
        p(f's_add_u32 s59, s{22 if part == "a" else 25}, {s0*1024}')
        for f in range(4):
            p(f'buffer_load_dwordx4 v3, s[12:15], s23 offen offset:{1024*f} {CFG["K2LDF"]} lds')
        p(f's_add_u32 m0, s58, {slot*SL + 4096}')
        p('s_nop 0')
        p(f'buffer_load_dwordx4 v4, s[12:15], s23 offen {CFG["K2LDF"]} lds')
        for u in range(4):
            p(f's_add_u32 m0, s58, {slot*SL + 5120 + 1024*u}')
            p('s_nop 0')
            p(f'buffer_load_dwordx4 v{(10 if part == "a" else 14)+u}, s[12:15], s59 offen {CFG["K2LDF"]} lds')
        if n < 4:
            p.label(f'L_k2_skip{j}')

    for j in range(R - 1):
        issue(j)
    stamp(p, 1)
    for j in range(NS):
        hi = min(j + R - 2, NS - 1)
        newer = 9 * (hi - j)
        if hi == NS - 1 and j < NS - 1:
            newer -= 9
        p(f's_waitcnt vmcnt({max(newer, 0)})')
        p('s_barrier')
        if j + R - 1 < NS:
            issue(j + R - 1)
    stamp(p, 2)
    stamp(p, 3)
    if CFG['PROF']:
        prof_store(p, 4, 'K2', 12)
    p('s_endpgm')
    p.label('L_k2_consumer')
    p(f's_cmp_eq_u32 s{S_WAVE}, 0')
    p('s_cbranch_scc0 L_k2_nopf')
    p('v_mov_b32 v10, v2')
    code_prefetch(p, 'L_k2_body', 'L_k2_end', CFG.get('K2_BYTES', 12288), 10, 255, 84, 'k2')
    p.label('L_k2_nopf')
    p.label('L_k2_body')
    ACA, ACB = 0, 20
    WR = lambda q, f: 40 + 20 * q + 4 * f
    AR = lambda q: 120 + 4 * q
    G, B2 = 230, 232
    p('s_lshl_b32 s54, s26, 2')
    p(f's_add_u32 s54, s54, s{S_WAVE}')
    p('v_and_b32 v4, 15, v2')
    p('v_lshrrev_b32 v5, 4, v2')
    p('s_lshl_b32 s55, s54, 4')
    p('v_add_u32 v6, s55, v4')
    p('v_lshlrev_b32 v7, 3, v6')
    p(f'v_add_u32 v7, {G_OFF}, v7')
    p('s_mul_i32 s55, s27, 160')
    p('v_lshlrev_b32 v8, 4, v5')
    p('v_add_u32 v8, s55, v8')
    p('v_lshlrev_b32 v9, 3, v5')
    p('v_add_u32 v9, s55, v9')
    p('v_mul_u32_u24 v6, 1280, v6')
    p('v_add_u32 v242, v6, v8')
    p('v_add_u32 v243, v6, v9')
    p(f's_lshl_b32 s55, s{S_WAVE}, 10')
    p('s_add_u32 s55, s55, 5120')
    for sl in range(R):
        p(f'v_add_u32 v{244+sl}, {sl*SL}, v3')
        p(f'v_add_u32 v{250+sl}, s55, v{244+sl}')
    p(f's_lshr_b32 s55, s{S_WAVE}, 1')
    p('s_lshl_b32 s55, s55, 10')
    p(f's_and_b32 s56, s{S_WAVE}, 1')
    p('s_lshl_b32 s56, s56, 3')
    p('s_add_u32 s55, s55, s56')
    p('s_add_u32 s55, s55, 5120')
    p('v_add_u32 v249, s55, v3')
    p('s_waitcnt lgkmcnt(0)')
    srd(p, 12, 4, WS_USED)
    srd(p, 16, 8, 1280)
    srd(p, 28, 6, 2048 * 1280)
    stamp(p, 0)
    p(f'buffer_load_dwordx2 v[{G}:{G+1}], v7, s[12:15], 0 offen')
    p(f'buffer_load_dwordx4 v[{B2}:{B2+3}], v8, s[16:19], 0 offen')
    p(f'buffer_load_dwordx4 v[{B2+4}:{B2+7}], v8, s[16:19], 0 offen offset:64')
    p(f'buffer_load_dwordx2 v[{B2+8}:{B2+9}], v9, s[16:19], 0 offen offset:128')
    for r in range(40):
        p(f'v_mov_b32 v{r}, 0')
    stamp(p, 1)
    for j, (part, s0, n) in enumerate(stages):
        slot = j % R
        tail = (part == 'a' and s0 == 16)
        assert not tail or slot == 0
        p('s_barrier')
        log = []
        for q in range(n):
            if tail:
                p(f'ds_read_b64 v[{AR(q)}:{AR(q)+1}], v249 offset:{q*ST}')
                p(f'ds_read_b64 v[{AR(q)+2}:{AR(q)+3}], v249 offset:{q*ST + 2048}')
                log += [('a', q), ('a', q)]
            else:
                p(f'ds_read_b128 v[{AR(q)}:{AR(q)+3}], v{250+slot} offset:{q*ST}')
                log.append(('a', q))
            for f in range(5):
                p(f'ds_read_b128 v[{WR(q,f)}:{WR(q,f)+3}], v{244+slot} offset:{q*ST + f*1024}')
                log.append(('w', q, f))
        known = max(0, len(log) - 15) if len(log) > 15 else 0
        done = -1
        for q in range(n):
            acc0 = ACA if part == 'a' else ACB
            for f in range(5):
                idx = log.index(('w', q, f))
                if idx > done:
                    left = len(log) - 1 - idx
                    w = min(left, 15)
                    p(f's_waitcnt lgkmcnt({w})')
                    done = len(log) - 1 - w
                p(f'v_mfma_f32_16x16x32_bf16 v[{acc0+4*f}:{acc0+4*f+3}], v[{WR(q,f)}:{WR(q,f)+3}], v[{AR(q)}:{AR(q)+3}], v[{acc0+4*f}:{acc0+4*f+3}]')
    stamp(p, 2)
    p('s_mov_b32 s62, 0xffff0000')
    p('s_waitcnt vmcnt(0)')
    Bf = lambda f: 100 + 4 * f
    for pr in range(2):
        for d in range(4):
            s_ = B2 + 4 * pr + d
            f, r = 2 * pr + (d >> 1), 2 * (d & 1)
            p(f'v_lshlrev_b32 v{Bf(f)+r}, 16, v{s_}')
            p(f'v_and_b32 v{Bf(f)+r+1}, s62, v{s_}')
    for d in range(2):
        s_ = B2 + 8 + d
        p(f'v_lshlrev_b32 v{Bf(4)+2*d}, 16, v{s_}')
        p(f'v_and_b32 v{Bf(4)+2*d+1}, s62, v{s_}')
    p(f'v_mov_b32 v120, v{G}')
    p(f'v_mov_b32 v121, v{G}')
    p(f'v_mov_b32 v122, v{G+1}')
    p(f'v_mov_b32 v123, v{G+1}')
    for f in range(5):
        for r in (0, 2):
            a, b = ACA + 4 * f + r, ACB + 4 * f + r
            p(f'v_pk_add_f32 v[{b}:{b+1}], v[{b}:{b+1}], v[{Bf(f)+r}:{Bf(f)+r+1}]')
            p(f'v_pk_mul_f32 v[{a}:{a+1}], v[{a}:{a+1}], v[120:121]')
    for f in range(5):
        for r in (0, 2):
            a, b = ACA + 4 * f + r, ACB + 4 * f + r
            p(f'v_pk_fma_f32 v[{a}:{a+1}], v[{b}:{b+1}], v[122:123], v[{a}:{a+1}]')
    O = 124
    for pr in range(2):
        for u in range(2):
            a = ACA + 4 * (2 * pr + u)
            p(f'v_cvt_pk_bf16_f32 v{O+4*pr+2*u}, v{a}, v{a+1}')
            p(f'v_cvt_pk_bf16_f32 v{O+4*pr+2*u+1}, v{a+2}, v{a+3}')
        p(f'buffer_store_dwordx4 v[{O+4*pr}:{O+4*pr+3}], v242, s[28:31], 0 offen offset:{64*pr} {CFG["OUTF"]}')
    a = ACA + 16
    p(f'v_cvt_pk_bf16_f32 v{O+8}, v{a}, v{a+1}')
    p(f'v_cvt_pk_bf16_f32 v{O+9}, v{a+2}, v{a+3}')
    p(f'buffer_store_dwordx2 v[{O+8}:{O+9}], v243, s[28:31], 0 offen offset:128 {CFG["OUTF"]}')
    stamp(p, 3)
    if CFG['PROF']:
        prof_store(p, 4, 'K2', 12)
    p.label('L_k2_end')
    p('s_endpgm')
    return p


def gen_k2t():
    NW, INF, MODE = CFG['NW'], CFG['INF'], CFG['TMODE']
    p = Prog()
    p('s_cmp_ge_u32 s2, 256')
    p('s_cbranch_scc1 L_k2_end')
    p('s_load_dwordx2 s[4:5], s[0:1], 88')
    p('s_memrealtime s[88:89]')
    p('s_memtime s[82:83]')
    p('v_lshrrev_b32 v1, 6, v0')
    p('v_and_b32 v2, 63, v0')
    p(f'v_readfirstlane_b32 s{S_WAVE}, v1')
    p('s_and_b32 s52, s2, 7')
    p('s_lshr_b32 s53, s2, 3')
    p('s_lshr_b32 s54, s52, 1')
    p('s_lshl_b32 s54, s54, 3')
    p('s_lshr_b32 s55, s53, 2')
    p('s_add_u32 s26, s54, s55')
    p('s_and_b32 s54, s52, 1')
    p('s_lshl_b32 s54, s54, 2')
    p('s_and_b32 s55, s53, 3')
    p('s_add_u32 s27, s54, s55')
    p('v_lshlrev_b32 v3, 4, v2')
    p('v_add_u32 v4, 4096, v3')
    nst = 72 // NW
    p(f's_mul_i32 s60, s{S_WAVE}, {nst}')
    p('s_cmp_ge_u32 s60, 54')
    p('s_cselect_b32 s61, 1, 0')
    p('s_cselect_b32 s56, 20480, 0')
    p('s_cselect_b32 s56, s56, 55296')
    p(f's_mov_b32 s57, {OA_OFF}')
    p(f's_cselect_b32 s57, s57, {H_OFF}')
    p(f's_mov_b32 s58, {WO_OFF}')
    p(f's_cselect_b32 s58, s58, {W2_OFF}')
    p('s_cselect_b32 s59, 20, 54')
    p('s_cselect_b32 s62, 54, 0')
    p('s_sub_u32 s60, s60, s62')
    p('s_lshl_b32 s61, s26, 2')
    p('s_mul_i32 s61, s61, s56')
    p('s_add_u32 s61, s61, s57')
    p('s_lshl_b32 s62, s60, 10')
    p('s_add_u32 s20, s61, s62')
    p('s_mul_i32 s61, s27, s59')
    p('s_add_u32 s61, s61, s60')
    p('s_mul_i32 s61, s61, 5120')
    p('s_add_u32 s21, s61, s58')
    for t in range(4):
        p(f's_mul_i32 s62, s56, {t}')
        p(f'v_add_u32 v{10+t}, s62, v3')
    p(f's_mul_i32 s63, s{S_WAVE}, 16384')
    p('s_waitcnt lgkmcnt(0)')
    srd(p, 12, 4, WS_USED)
    stamp(p, 0)
    stamp(p, 1)
    n = 0
    for s in range(nst):
        for f in range(9):
            r = 20 + 4 * (n % 48)
            if MODE == 'dma':
                p(f's_add_u32 m0, s63, {(n % 16) * 1024}')
                p('s_nop 0')
            a, so, off = (3, 's21', 1024 * f) if f < 4 else ((4, 's21', 0) if f == 4 else (10 + f - 5, 's20', 0))
            if MODE == 'dma':
                if f < 4 and f > 0:
                    p(f's_sub_u32 m0, m0, {off}')
                    p('s_nop 0')
                p(f'buffer_load_dwordx4 v{a}, s[12:15], {so} offen offset:{off} lds')
            else:
                p(f'buffer_load_dwordx4 v[{r}:{r+3}], v{a}, s[12:15], {so} offen offset:{off}')
            p(f's_waitcnt vmcnt({INF})')
            n += 1
        p('s_add_u32 s20, s20, 1024')
        p('s_add_u32 s21, s21, 5120')
    p('s_waitcnt vmcnt(0)')
    stamp(p, 2)
    stamp(p, 3)
    prof_store(p, 4, 'K2', 12)
    p.label('L_k2_end')
    p('s_endpgm')
    return p


def gen_kpf():
    p = Prog()
    p('s_cmp_ge_u32 s2, 256')
    p('s_cbranch_scc1 L_kpf_end')
    p('s_load_dwordx2 s[4:5], s[0:1], 88')
    p('v_and_b32 v2, 63, v0')
    p('v_lshrrev_b32 v1, 6, v0')
    p('s_and_b32 s52, s2, 7')
    p('s_lshr_b32 s53, s2, 3')
    p('v_lshlrev_b32 v3, 7, v0')
    p('s_waitcnt lgkmcnt(0)')
    srd(p, 12, 4, WS_USED)
    if CFG['KPF'] == 1:
        p('s_and_b32 s54, s52, 1')
        p(f's_mul_i32 s55, s54, {4*54*5120}')
        p(f's_add_u32 s55, s55, {W2_OFF}')
        p('s_lshl_b32 s56, s53, 15')
        p('s_add_u32 s57, s55, s56')
        p('buffer_load_dword v10, v3, s[12:15], s57 offen')
        p('s_add_u32 s57, s57, 57344')
        p('buffer_load_dword v10, v3, s[12:15], s57 offen')
        p(f's_mul_i32 s55, s54, {4*20*5120}')
        p(f's_add_u32 s55, s55, {WO_OFF}')
        p('s_mul_i32 s56, s53, 12800')
        p('s_add_u32 s57, s55, s56')
        p('buffer_load_dword v10, v3, s[12:15], s57 offen')
    else:
        p('s_lshr_b32 s54, s52, 1')
        p(f's_mul_i32 s55, s54, {32*55296}')
        p('s_mul_i32 s56, s53, 55296')
        p('s_add_u32 s57, s55, s56')
        p('buffer_load_dword v10, v3, s[12:15], s57 offen')
        p('s_add_u32 s57, s57, 22528')
        p('buffer_load_dword v10, v3, s[12:15], s57 offen')
        p(f's_mul_i32 s55, s54, {32*20480}')
        p(f's_add_u32 s55, s55, {OA_OFF}')
        p('s_mul_i32 s56, s53, 20480')
        p('s_add_u32 s57, s55, s56')
        p('buffer_load_dword v10, v3, s[12:15], s57 offen')
    p('s_waitcnt vmcnt(0)')
    p.label('L_kpf_end')
    p('s_endpgm')
    return p


HEADER = """; gated mix of (sliding dilated attention branch) and (GELU MLP branch), S=2048 D=640 H=32 Dh=20 F=1728, bf16.
; @launch kernel=gm_k1_kernel grid=(256,1,1) block=(512,1,1) lds=%d
; @launch kernel=gm_k2_kernel grid=(256,1,1) block=(256,1,1) lds=%d
.amdgcn_target "amdgcn-amd-amdhsa--gfx950"
"""

KD = """.amdhsa_kernel %s
  .amdhsa_next_free_vgpr %d
  .amdhsa_next_free_sgpr 102
  .amdhsa_accum_offset %d
  .amdhsa_group_segment_fixed_size 0
  .amdhsa_kernarg_size 96
  .amdhsa_user_sgpr_count 2
  .amdhsa_user_sgpr_kernarg_segment_ptr 1
  .amdhsa_system_sgpr_workgroup_id_x 1
  .amdhsa_float_denorm_mode_32 3
.end_amdhsa_kernel
"""


def main():
    k1 = gen_k1()
    k2 = gen_k2b() if CFG['K2V'] == 2 else (gen_k2t() if CFG['K2V'] == 3 else gen_k2())
    t1, t2 = k1.finish(), k2.finish()
    s = HEADER % (K1_LDS, K2B_LDS if CFG['K2V'] == 2 else K2_LDS)
    if CFG['K2V'] == 3:
        s = s.replace('kernel=gm_k2_kernel grid=(256,1,1) block=(256,1,1) lds=%d' % K2_LDS, 'kernel=gm_k2_kernel grid=(256,1,1) block=(%d,1,1) lds=131072' % (64 * CFG['NW']))
    if CFG['K2V'] == 2:
        s = s.replace('kernel=gm_k2_kernel grid=(256,1,1) block=(256,1,1)', 'kernel=gm_k2_kernel grid=(256,1,1) block=(512,1,1)')
    if CFG['K2TWICE']:
        ln = [l for l in s.split('\n') if 'kernel=gm_k2_kernel' in l][0]
        s = s.replace(ln, ln + '\n' + ln)
    s += '.text\n'
    for name, t in (('gm_k1_kernel', t1), ('gm_k2_kernel', t2)):
        s += f'.globl {name}\n.p2align 8\n.type {name},@function\n{name}:\n{t}'
    s += '.p2align 8\n.fill 64, 4, 0xbf800000\n' if False else ''
    if CFG['KPF']:
        s += '.globl gm_pf_kernel\n.p2align 8\n.type gm_pf_kernel,@function\ngm_pf_kernel:\n' + gen_kpf().finish()
        ln = [l for l in s.split('\n') if 'kernel=gm_k2_kernel' in l][0]
        s = s.replace(ln, '; @launch kernel=gm_pf_kernel grid=(256,1,1) block=(256,1,1) lds=0\n' + ln)
    s += '.section .rodata,"a"\n.p2align 6\n'
    s += KD % ('gm_k1_kernel', 256, 256)
    s += '.p2align 6\n'
    s += KD % ('gm_k2_kernel', 256, 256)
    if CFG['KPF']:
        s += '.p2align 6\n' + KD % ('gm_pf_kernel', 64, 64)
    out = CFG.get('OUT', f'cdna_kernels/{NAME}.s')
    open(out, 'w').write(s)
    print('written', out, len(s), 'bytes; nops inserted k1', k1.nops_inserted, 'k2', k2.nops_inserted)


if __name__ == '__main__':
    main()
```

```python
import sys, os, math, struct
sys.path.insert(0, os.path.dirname(os.path.abspath(__file__)))
from asmlib import Prog, vr, ar, sr

NAME = 'gated_mix__sliding_local_dilated__dense_activation_gelu__prompt'

CFG = dict(MAP1='m82', MAP2='8x4', NBUF=3, PROF=0, NOMFMA=0, NOLOAD=0, NODS=0, STF='sc1', LDF='', ULDF='nt', PFF='', PF=0, TT=0, ROT=1, ROT2=0, K2TWICE=0, K2V=1, M35=1, KW=4, KX=4, HALF=0, ZVT=0, DEDUP=1, K2RED=2, K2PRIO=0, USPF=0, TJ=7, TL=0, GLATE=0, STFO='sc1', STFH='sc1', ALIGN=0, UNITS_FFN=1, NFU=3, PEEL=1, SWAPW=0, LDFIRST=2, PRIO=0, K2ORD=0, KPF=0, LDF0='nt', NT_ST=0, ZOOB=1, TEARLY=0, K2PF=1, DA=12, NW=4, INF=32, TMODE='reg', K2NOMFMA=0, K2LDF='', OUTF='')
for a in sys.argv[1:]:
    if '=' in a:
        k, v = a.split('=')
        CFG[k] = int(v) if v.lstrip('-').isdigit() else v.replace('+', ' ')

H_OFF = 0
OA_OFF = H_OFF + 128 * 54 * 1024
W2_OFF = OA_OFF + 128 * 20 * 1024
WO_OFF = W2_OFF + 8 * 54 * 5120
G_OFF = WO_OFF + 8 * 20 * 5120
WS_USED = G_OFF + 2048 * 8
PROF_OFF = 16 << 20

XREG = 144 * 128
WROW = 480
WREG = 64 * WROW
SLOT = XREG + WREG
XFLAG = 3 * 49152 + 15360
SCR = 3 * SLOT
K1_LDS = 163840


def f32(x):
    return struct.unpack('<I', struct.pack('<f', x))[0]


def hexf(x):
    return '0x%08x' % f32(x)


S_AX, S_WQKV, S_WO, S_BX, S_W1, S_B1, S_W2, S_B2, S_GW, S_WS = 4, 6, 8, 10, 12, 14, 16, 18, 20, 22
S_WAVE, S_TYPE, S_RB, S_CG = 24, 25, 26, 27
SRD_X, SRD_W, SRD_I4, SRD_WS, SRD_A, SRD_B = 28, 32, 36, 40, 44, 48


def srd(p, base, ptr, nbytes):
    p(f's_mov_b32 s{base}, s{ptr}')
    p(f's_mov_b32 s{base+1}, s{ptr+1}')
    p(f's_mov_b32 s{base+2}, {nbytes}')
    p(f's_mov_b32 s{base+3}, 0x20000')


def code_prefetch(p, lbl_from, lbl_to, nbytes, vtmp, vdst, s, tag):
    p(f's_getpc_b64 s[{s}:{s+1}]')
    p.label(f'L_pc_{tag}')
    p(f's_add_u32 s{s}, s{s}, {lbl_from}-L_pc_{tag}')
    p(f's_addc_u32 s{s+1}, s{s+1}, 0')
    p(f'v_lshlrev_b32 v{vtmp}, 6, v{vtmp}')
    n = (nbytes + 4095) // 4096
    for j in range(n):
        p(f'v_min_u32 v{vtmp+1}, {lbl_to}-{lbl_from}, v{vtmp}')
        p(f'global_load_dword v{vdst}, v{vtmp+1}, s[{s}:{s+1}]')
        if j + 1 < n:
            p(f'v_add_u32 v{vtmp}, 4096, v{vtmp}')
    return n


def stamp(p, idx, sbase=90):
    if CFG['PROF']:
        p(f'{"s_memtime" if CFG["PROF"] in (2, 3, 6) else "s_memrealtime"} s[{sbase+2*idx}:{sbase+2*idx+1}]')


def k1_decode(p):
    p('s_and_b32 s52, s2, 7')
    p('s_lshr_b32 s53, s2, 3')
    if CFG['MAP1'] == 'mixed':
        p(f's_lshr_b32 s{S_TYPE}, s53, 4')
        p('s_and_b32 s54, s53, 15')
        p('s_lshr_b32 s55, s52, 1')
        p('s_lshl_b32 s55, s55, 2')
        p('s_lshr_b32 s56, s54, 2')
        p(f's_add_u32 s{S_RB}, s55, s56')
        p('s_and_b32 s55, s52, 1')
        p('s_lshl_b32 s55, s55, 2')
        p('s_and_b32 s56, s54, 3')
        p(f's_add_u32 s{S_CG}, s55, s56')
    elif CFG['MAP1'] == 'm82':
        p(f's_lshr_b32 s{S_TYPE}, s53, 4')
        p('s_lshr_b32 s55, s52, 2')
        p('s_lshl_b32 s55, s55, 3')
        p('s_and_b32 s56, s53, 7')
        p(f's_add_u32 s{S_RB}, s55, s56')
        p('s_and_b32 s55, s52, 3')
        p('s_lshl_b32 s55, s55, 1')
        p('s_bfe_u32 s56, s53, 0x10003')
        p(f's_add_u32 s{S_CG}, s55, s56')
    else:
        p(f's_lshr_b32 s{S_TYPE}, s52, 2')
        p('s_and_b32 s54, s52, 3')
        p('s_lshr_b32 s55, s54, 1')
        p('s_lshl_b32 s55, s55, 3')
        p('s_lshr_b32 s56, s53, 2')
        p(f's_add_u32 s{S_RB}, s55, s56')
        p('s_and_b32 s55, s54, 1')
        p('s_lshl_b32 s55, s55, 2')
        p('s_and_b32 s56, s53, 3')
        p(f's_add_u32 s{S_CG}, s55, s56')


def k1_loader(p, attn):
    tag = 'A' if attn else 'F'
    rowstride = 3840 if attn else 3456
    VOFF = 10
    VL = 2
    p.label(f'L_loader_{tag}')
    p(f's_sub_u32 s57, s{S_WAVE}, 4')
    p(f'v_lshrrev_b32 v3, 3, v{VL}')
    p('s_lshl_b32 s58, s57, 3')
    p('v_add_u32 v3, s58, v3')
    p(f's_lshl_b32 s59, s{S_RB}, 7')
    if attn:
        p('s_sub_u32 s59, s59, 16')
    p('v_add_u32 v3, s59, v3')
    p('s_and_b32 s58, s57, 1')
    p('s_lshl_b32 s58, s58, 2')
    p(f'v_lshrrev_b32 v4, 4, v{VL}')
    p('v_add_u32 v4, s58, v4')
    p(f'v_and_b32 v5, 7, v{VL}')
    p('v_xor_b32 v4, v4, v5')
    p('v_lshlrev_b32 v4, 4, v4')
    p('s_movk_i32 s58, 1280')
    p('s_movk_i32 s59, 2047')
    for i in range(5):
        p(f'v_add_u32 v5, {32*i}, v3')
        if attn and i == 0:
            p('v_max_i32 v5, 0, v5')
        if (not attn) and i == 4:
            p('v_min_u32 v5, s59, v5')
        p('v_mul_u32_u24 v5, s58, v5')
        if (not attn) and i == 4 and CFG['DEDUP']:
            p(f'v_mov_b32 v6, v{VOFF}')
        else:
            p(f'v_add_u32 v{VOFF+i if i < 4 else 6}, v5, v4')
    p('s_lshl_b32 s58, s57, 6')
    p(f'v_add_u32 v7, s58, v{VL}')
    p(f's_mov_b32 s60, {rowstride}')
    p('v_mov_b32 v9, 0x7ffffff0')
    if attn:
        p(f's_mul_i32 s61, s{S_CG}, 160')
    else:
        p(f's_mul_i32 s61, s{S_CG}, 448')

    def w_offset(i):
        base = 64 * (4 * i - 18)
        dst = VOFF + i if i > 4 else 8
        if base >= 0:
            p(f'v_add_u32 v3, {base}, v7')
        else:
            p(f'v_subrev_u32 v3, {-base}, v7')
            p('v_max_i32 v3, 0, v3')
        p('v_mul_u32_u24 v4, 2185, v3')
        p('v_lshrrev_b32 v4, 16, v4')
        p('v_mul_u32_u24 v5, 30, v4')
        p('v_sub_u32 v5, v3, v5')
        p('v_lshrrev_b32 v3, 1, v4')
        p('v_xor_b32 v3, v3, v4')
        p('v_and_b32 v3, 4, v3')
        p('v_mul_u32_u24 v3, 3, v3')
        p('v_xor_b32 v4, v3, v4')
        p('v_mul_u32_u24 v4, s60, v4')
        if attn:
            p('v_mul_u32_u24 v3, 205, v5')
            p('v_lshrrev_b32 v3, 11, v3')
            p('v_mul_u32_u24 v3, 1120, v3')
            p('v_lshlrev_b32 v5, 4, v5')
            p('v_add3_u32 v5, v5, v3, s61')
        else:
            if CFG['DEDUP']:
                p('v_min_u32 v5, 27, v5')
            p('v_lshlrev_b32 v5, 4, v5')
            p('v_add_u32 v5, s61, v5')
            if CFG['ZOOB']:
                p('v_cmp_lt_u32 vcc, 3440, v5')
            else:
                p('v_min_u32 v5, 3440, v5')
        p(f'v_add_u32 v{dst}, v4, v5')
        if (not attn) and CFG['ZOOB']:
            p(f'v_cndmask_b32 v{dst}, v{dst}, v9, vcc')
        if i == 4:
            p('s_cmp_lt_u32 s57, 2')
            p('s_cselect_b64 vcc, -1, 0')
            p(f'v_cndmask_b32 v{VOFF+4}, v8, v6, vcc')

    p('s_waitcnt lgkmcnt(0)')
    if attn:
        srd(p, SRD_X, S_AX, 2048 * 1280)
        srd(p, SRD_W, S_WQKV, 640 * 3840)
    else:
        srd(p, SRD_X, S_AX, 2048 * 1280)
        srd(p, SRD_W, S_W1, 640 * 3456)
    p('s_cmp_lt_u32 s57, 2')
    for k in range(3):
        p(f's_cselect_b32 s{SRD_I4+k}, s{SRD_X+k}, s{SRD_W+k}')
    p(f's_mov_b32 s{SRD_I4+3}, 0x20000')
    p('s_movk_i32 s73, 128')
    p('s_cselect_b32 s73, s73, %d' % (64 * rowstride))
    if CFG['ROT']:
        p(f's_and_b32 s79, s{S_RB}, 7')
        if CFG['KW'] == 8:
            p('s_lshr_b32 s80, s79, 2')
            p('s_add_u32 s79, s79, s80')
        elif CFG['KW'] == 4:
            p('s_lshr_b32 s79, s79, 1')
            p('s_mul_i32 s79, s79, 5')
            p('s_lshr_b32 s79, s79, 1')
        elif CFG['KW'] == 2:
            p('s_lshr_b32 s79, s79, 2')
            p('s_mul_i32 s79, s79, 5')
        elif CFG['KW'] == 3:
            p('s_mul_i32 s79, s79, 43')
            p('s_lshr_b32 s79, s79, 7')
            p('s_mul_i32 s79, s79, 10')
            p('s_mul_i32 s79, s79, 43')
            p('s_lshr_b32 s79, s79, 7')
        elif CFG['KW'] == 41:
            p('s_and_b32 s79, s79, 3')
            p('s_mul_i32 s79, s79, 5')
            p('s_lshr_b32 s79, s79, 1')
        elif CFG['KW'] == 5:
            p('s_mul_i32 s79, s79, 5')
            p('s_lshr_b32 s79, s79, 2')
            p('s_andn2_b32 s79, s79, 1')
        if CFG['MAP1'] == 'spec':
            p(f's_and_b32 s80, s{S_CG}, 3')
        else:
            p(f's_and_b32 s80, s{S_CG}, 1')
            p(f's_lshl_b32 s81, s{S_TYPE}, 1')
            p('s_add_u32 s80, s80, s81')
        if CFG['KX'] == 4:
            p('s_mul_i32 s80, s80, 5')
            p('s_lshr_b32 s80, s80, 1')
        elif CFG['KX'] == 3:
            p('s_mul_i32 s80, s80, 3')
        elif CFG['KX'] == 2:
            p('s_lshr_b32 s80, s80, 1')
            p('s_mul_i32 s80, s80, 5')
        else:
            p('s_mov_b32 s80, 0')
        p('s_add_u32 s79, s79, s80')
        p('s_cmp_ge_u32 s79, 10')
        p('s_cselect_b32 s80, 10, 0')
        p('s_sub_u32 s79, s79, s80')
    else:
        p('s_mov_b32 s79, 0')
    p('s_lshl_b32 s74, s79, 7')
    p(f's_mul_i32 s75, s79, {64*rowstride}')
    p('s_mul_i32 s76, s79, s73')
    p('s_lshl_b32 s77, s57, 10')

    def issue_stage(st, lazy=False):
        slot = st % 3
        ldf = CFG['LDF0'] if st < CFG['NT_ST'] else CFG['LDF']
        for i in range(12):
            if lazy and i >= 4:
                w_offset(i)
            p(f's_add_u32 m0, s77, {slot*SLOT + i*4096}')
            if i < 4:
                if i == 0:
                    p('s_nop 0')
                p(f'buffer_load_dwordx4 v{VOFF+i}, s[{SRD_X}:{SRD_X+3}], s74 offen {ldf} lds')
            elif i == 4:
                p(f'buffer_load_dwordx4 v{VOFF+i}, s[{SRD_I4}:{SRD_I4+3}], s76 offen {ldf} lds')
            else:
                p(f'buffer_load_dwordx4 v{VOFF+i}, s[{SRD_W}:{SRD_W+3}], s75 offen {ldf} lds')
        p('s_add_u32 s74, s74, 128')
        p(f's_add_u32 s75, s75, {64*rowstride}')
        p('s_add_u32 s76, s76, s73')
        if CFG['ROT']:
            p('s_add_u32 s79, s79, 1')
            p('s_cmp_eq_u32 s79, 10')
            for r in (79, 74, 75, 76):
                p(f's_cselect_b32 s{r}, 0, s{r}')

    stamp(p, 0)
    issue_stage(0, lazy=True)
    if not CFG['HALF']:
        issue_stage(1)
    UF = CFG['UNITS_FFN']
    scr_base = SLOT if (UF and not attn) else SCR

    def unit_decode(sfx):
        p('s_and_b32 s64, s62, 7')
        p('s_lshr_b32 s65, s62, 3')
        p('s_lshl_b32 s66, s65, 5')
        p('s_mov_b32 s67, 16')
        p('s_mov_b32 s68, 4')
        p('s_mul_i32 s69, s64, 54')
        p('s_add_u32 s69, s69, s65')
        p('s_mul_i32 s69, s69, 5120')
        p(f's_add_u32 s69, s69, {W2_OFF}')
        p('s_mov_b32 s70, 0')
        p('s_cmp_lt_u32 s65, 54')
        p(f's_cbranch_scc1 L_unit_done_{tag}{sfx}')
        p('s_sub_u32 s65, s65, 54')
        p('s_mov_b32 s70, 1')
        p('s_mul_i32 s69, s64, 20')
        p('s_add_u32 s69, s69, s65')
        p('s_mul_i32 s69, s69, 5120')
        p(f's_add_u32 s69, s69, {WO_OFF}')
        p('s_mul_i32 s66, s65, 40')
        p('s_mov_b32 s67, 20')
        p('s_cmp_lt_u32 s65, 16')
        p(f's_cbranch_scc1 L_unit_done_{tag}{sfx}')
        p('s_sub_u32 s65, s65, 16')
        p('s_mul_i32 s66, s65, 160')
        p('s_add_u32 s66, s66, 16')
        p('s_mov_b32 s67, 80')
        p('s_mov_b32 s68, 20')
        p.label(f'L_unit_done_{tag}{sfx}')
        p('s_mul_i32 s71, s64, 160')
        p('s_movk_i32 s58, 1280')
        for i in range(5):
            p(f'v_add_u32 v3, {64*i}, v{VL}')
            p('v_mul_u32_u24 v4, 6554, v3')
            p('v_lshrrev_b32 v4, 16, v4')
            p('v_mul_u32_u24 v5, 10, v4')
            p('v_sub_u32 v5, v3, v5')
            p('v_lshlrev_b32 v5, 4, v5')
            p('v_add_u32 v5, s71, v5')
            p('v_lshrrev_b32 v3, 4, v4')
            p('v_mul_u32_u24 v3, s67, v3')
            p('v_bfe_u32 v6, v4, 2, 2')
            p('v_mul_u32_u24 v6, s68, v6')
            p('v_and_b32 v4, 3, v4')
            p('v_add3_u32 v3, v3, v6, v4')
            p('v_add_u32 v3, s66, v3')
            p('v_mul_u32_u24 v3, s58, v3')
            p(f'v_add_u32 v{22+i}, v3, v5')

    def unit_srd():
        p('s_cmp_eq_u32 s70, 0')
        p(f's_cselect_b32 s{SRD_A}, s{S_W2}, s{S_WO}')
        p(f's_cselect_b32 s{SRD_A+1}, s{S_W2+1}, s{S_WO+1}')
        p(f's_mov_b32 s{SRD_A+2}, {1728*1280}')
        p(f's_cselect_b32 s{SRD_A+2}, s{SRD_A+2}, {640*1280}')
        p(f's_mov_b32 s{SRD_A+3}, 0x20000')

    do_units = True
    NFU = CFG['NFU']
    always = UF and not attn and NFU == 4
    if UF:
        p(f's_lshl_b32 s62, s{S_RB}, 3')
        p(f's_add_u32 s62, s62, s{S_CG}')
        p('s_lshl_b32 s63, s57, 7')
        p('s_add_u32 s62, s62, s63')
        if not attn:
            p(f's_cmp_lt_u32 s57, {NFU}')
            p('s_cselect_b32 s63, 1, 0')
        else:
            p(f's_add_u32 s62, s62, {128*NFU}')
            p('s_cmp_lt_u32 s62, 592')
            p('s_cselect_b32 s63, 1, 0')
            p('s_cmp_lt_u32 s57, 3')
            p('s_cselect_b32 s63, s63, 0')
    else:
        p('s_lshl_b32 s62, s57, 8')
        p('s_add_u32 s62, s62, s2')
        p('s_cmp_lt_u32 s62, 592')
        p('s_cselect_b32 s63, 1, 0')
        p('s_cmp_lt_u32 s57, 3')
        p('s_cselect_b32 s63, s63, 0')
    if do_units:
        unit_decode('')
        p(f'v_lshrrev_b32 v3, 2, v{VL}')
        p('v_mul_u32_u24 v3, 160, v3')
        p('s_mul_i32 s72, s57, 5120')
        p(f's_add_u32 s72, s72, {scr_base}')
        p('v_add_u32 v3, s72, v3')
        p(f'v_and_b32 v4, 3, v{VL}')
        p('v_lshl_add_u32 v27, v4, 4, v3')
        p('v_lshl_add_u32 v28, v4, 3, v3')
        p(f'v_lshlrev_b32 v29, 4, v{VL}')
        p('v_add_u32 v30, 4096, v29')
    if not attn:
        p(f's_lshl_b32 s58, s{S_RB}, 3')
        p(f's_add_u32 s58, s58, s{S_CG}')
        p('s_lshl_b32 s58, s58, 4')
        p('s_lshl_b32 s59, s57, 2')
        p('s_add_u32 s58, s58, s59')
        p(f'v_lshrrev_b32 v3, 4, v{VL}')
        p('v_add_u32 v31, s58, v3')
        p('s_movk_i32 s58, 1280')
        p('v_mul_u32_u24 v3, s58, v31')
        p(f'v_and_b32 v4, 15, v{VL}')
        p('v_lshlrev_b32 v33, 4, v4')
        p('v_add_u32 v32, v3, v33')
    srd(p, SRD_WS, S_WS, WS_USED)
    if do_units:
        unit_srd()
    GX, GW = 40, 60
    gate = (not attn)
    TG = 10 if gate else 0
    if gate:
        srd(p, SRD_B, S_GW, 1280)

    def unit_loads():
        for i in range(5):
            p(f's_add_u32 m0, s72, {i*1024}')
            p('s_nop 0')
            p(f'buffer_load_dwordx4 v{22+i}, s[{SRD_A}:{SRD_A+3}], 0 offen {CFG["ULDF"]} lds')

    def unit_finish():
        for f in range(5):
            a, off = (27, [0, 8, 64, 72][f]) if f < 4 else (28, 128)
            p(f'ds_read_b64_tr_b16 v[{84+4*f}:{85+4*f}], v{a} offset:{off}')
            p(f'ds_read_b64_tr_b16 v[{86+4*f}:{87+4*f}], v{a} offset:{off+2560}')
        for f in range(5):
            p(f's_waitcnt lgkmcnt({8-2*f})')
            if f < 4:
                p(f'buffer_store_dwordx4 v[{84+4*f}:{87+4*f}], v29, s[{SRD_WS}:{SRD_WS+3}], s69 offen offset:{1024*f} {CFG["STF"]}')
            else:
                p(f'buffer_store_dwordx4 v[{84+4*f}:{87+4*f}], v30, s[{SRD_WS}:{SRD_WS+3}], s69 offen {CFG["STF"]}')

    def tail_loads():
        if not do_units:
            return
        if always:
            unit_loads()
        else:
            p('s_cmp_eq_u32 s63, 0')
            p(f's_cbranch_scc1 L_nounit_ld_{tag}')
            unit_loads()
            p.label(f'L_nounit_ld_{tag}')
        if gate:
            for j in range(5):
                p(f'buffer_load_dwordx4 v[{GX+4*j}:{GX+4*j+3}], v32, s[{SRD_X}:{SRD_X+3}], 0 offen offset:{256*j}')
                p(f'buffer_load_dwordx4 v[{GW+4*j}:{GW+4*j+3}], v33, s[{SRD_B}:{SRD_B+3}], 0 offen offset:{256*j}')

    def unit_prefetch(grp):
        if not (CFG['USPF'] and do_units):
            return
        hi, mid = grp >> 2, grp & 3
        p('s_cmp_eq_u32 s63, 0')
        p(f's_cbranch_scc1 L_uspf{grp}_{tag}')
        p(f's_mul_i32 s99, s67, {hi}')
        p(f's_mul_i32 s98, s68, {mid}')
        p('s_add_u32 s99, s99, s98')
        p('s_add_u32 s99, s99, s66')
        p('s_mul_i32 s99, s99, 1280')
        p('s_add_u32 s99, s99, s71')
        for r in range(4):
            p(f's_load_dword s56, s[{SRD_A}:{SRD_A+1}], s99 offset:{1280*r}')
            p(f's_load_dword s56, s[{SRD_A}:{SRD_A+1}], s99 offset:{1280*r + 156}')
        p.label(f'L_uspf{grp}_{tag}')

    def wait_vm(n_nounit, n_unit, uid):
        if always:
            n_nounit = n_unit
        if n_nounit == n_unit:
            p(f's_waitcnt vmcnt({n_unit})')
            return
        p('s_cmp_eq_u32 s63, 0')
        p(f's_cbranch_scc1 L_w{uid}a_{tag}')
        p(f's_waitcnt vmcnt({n_unit})')
        p(f's_branch L_w{uid}b_{tag}')
        p.label(f'L_w{uid}a_{tag}')
        p(f's_waitcnt vmcnt({n_nounit})')
        p.label(f'L_w{uid}b_{tag}')

    if CFG['HALF']:
        p('s_waitcnt vmcnt(3)')
        p('s_barrier')
        issue_stage(1)
        p('s_waitcnt vmcnt(12)')
    elif CFG['TEARLY']:
        tail_loads()
        wait_vm(12 + TG, 12 + TG + 5, 'i')
    else:
        p('s_waitcnt vmcnt(12)')
    stamp(p, 1)
    TJ = CFG['TJ'] if attn else 7
    p('s_barrier')
    issue_stage(2)
    unit_prefetch(0)
    for j in range(9):
        if CFG['TEARLY']:
            if j == 0:
                wait_vm(12 + TG, 12 + TG + 5, j)
            else:
                p('s_waitcnt vmcnt(%d)' % (12 if j <= 7 else 0))
        elif j <= TJ:
            p('s_waitcnt vmcnt(12)')
        elif j == 7:
            wait_vm(12 + TG, 12 + TG + 5, j)
        else:
            wait_vm(TG, TG + 5, j)
        p('s_barrier')
        if j + 3 <= 9 and not CFG['NOLOAD']:
            issue_stage(j + 3)
        if j <= 6:
            unit_prefetch(j + 1)
        if j == TJ and not CFG['TEARLY']:
            tail_loads()
        if j == 3 and CFG['TEARLY'] and gate:
            gate_job(p, GX, GW, store=False)
    stamp(p, 2)
    if CFG['K2PF']:
        p('s_cmp_eq_u32 s57, 3')
        p(f's_cbranch_scc0 L_nok2pf_{tag}')
        p(f'v_mov_b32 v34, v{VL}')
        code_prefetch(p, 'gm_k2_kernel', 'L_k2_end', 16384, 34, 255, 84, 'k2pf' + tag)
        p.label(f'L_nok2pf_{tag}')
    if do_units:
        p('s_waitcnt vmcnt(0) lgkmcnt(0)')
        if always:
            unit_finish()
        else:
            p('s_cmp_eq_u32 s63, 0')
            p(f's_cbranch_scc1 L_nounit_{tag}')
            unit_finish()
            p.label(f'L_nounit_{tag}')
    if gate:
        if CFG['TEARLY']:
            gate_store(p)
        else:
            gate_job(p, GX, GW)
    stamp(p, 3)
    if CFG['PROF']:
        prof_store(p, 4, 'LD' + tag, SRD_WS)
    p('s_endpgm')


def prof_debug(p, n, tag, sbase=90):
    p('s_waitcnt lgkmcnt(0) vmcnt(0)')
    p('s_and_b32 s86, s2, 127')
    p('s_cmp_eq_u32 s86, 0')
    p(f's_cbranch_scc0 L_pd_{tag}')
    p(f's_and_b32 s86, s{S_WAVE}, 3')
    p('s_cmp_eq_u32 s86, 0')
    p(f's_cbranch_scc0 L_pd_{tag}')
    p('s_load_dwordx2 s[76:77], s[0:1], 80')
    p('s_waitcnt lgkmcnt(0)')
    p('s_mov_b32 s78, 256')
    p('s_mov_b32 s79, 0x20000')
    p('s_lshr_b32 s86, s2, 7')
    p('s_lshl_b32 s86, s86, 1')
    p(f's_lshr_b32 s85, s{S_WAVE}, 2')
    p('s_add_u32 s86, s86, s85')
    p('s_lshl_b32 s86, s86, 4')
    p('v_mov_b32 v1, 0')
    for i in range(n):
        p(f's_sub_u32 s85, s{sbase+2*i}, s88')
        p('v_mov_b32 v0, s85')
        p(f'buffer_store_dword v0, v1, s[76:79], s86 offen offset:{4*i}')
    p('s_waitcnt vmcnt(0)')
    p.label(f'L_pd_{tag}')


_pd = [0]


def prof_collect(p, srdws):
    p('s_waitcnt lgkmcnt(0) vmcnt(0)')
    p(f's_or_b32 s86, s2, s{S_WAVE}')
    p('s_cmp_eq_u32 s86, 0')
    p('s_cbranch_scc0 L_pc5')
    p('s_load_dwordx2 s[76:77], s[0:1], 80')
    p(f's_mov_b32 s{srdws+2}, 0x10000000')
    p('v_mbcnt_lo_u32_b32 v0, -1, 0')
    p('v_mbcnt_hi_u32_b32 v0, -1, v0')
    p('v_lshrrev_b32 v1, 2, v0')
    p('v_and_b32 v2, 3, v0')
    p('v_lshlrev_b32 v2, 2, v2')
    p('v_cmp_eq_u32 vcc, 1, v1')
    p('v_mov_b32 v3, 0')
    p('v_mov_b32 v4, 256')
    p('v_cndmask_b32 v3, v3, v4, vcc')
    p('v_cmp_eq_u32 vcc, 2, v1')
    p(f'v_mov_b32 v4, {128*8*64}')
    p('v_cndmask_b32 v3, v3, v4, vcc')
    p('v_add_u32 v3, v3, v2')
    p(f'v_add_u32 v3, {PROF_OFF}, v3')
    p(f'buffer_load_dword v5, v3, s[{srdws}:{srdws+3}], 0 offen')
    p(f'v_mov_b32 v6, {PROF_OFF + 60}')
    p(f'buffer_load_dword v7, v6, s[{srdws}:{srdws+3}], 0 offen')
    p('s_waitcnt vmcnt(0) lgkmcnt(0)')
    p('s_mov_b32 s78, 256')
    p('s_mov_b32 s79, 0x20000')
    p('v_sub_u32 v5, v5, v7')
    for ln, sr_ in ((12, 88), (13, 90), (14, 94), (15, 96)):
        p(f'v_mov_b32 v8, s{sr_}')
        p('v_sub_u32 v8, v8, v7')
        p(f'v_cmp_eq_u32 vcc, {ln}, v0')
        p('v_cndmask_b32 v5, v5, v8, vcc')
    p('v_lshlrev_b32 v0, 2, v0')
    p('v_cmp_gt_u32 vcc, 64, v0')
    p('s_and_saveexec_b64 s[84:85], vcc')
    p('buffer_store_dword v5, v0, s[76:79], 0 offen')
    p('s_waitcnt vmcnt(0)')
    p.label('L_pc5')


def prof_store(p, n, tag, srdws, sbase=90):
    if CFG['PROF'] == 5 and tag.startswith('K2'):
        return prof_collect(p, srdws)
    if CFG['PROF'] == 4:
        _pd[0] += 1
        return prof_debug(p, n, tag + str(_pd[0]), sbase)
    return prof_store_ws(p, n, tag, srdws, sbase)


def prof_store_ws(p, n, tag, srdws, sbase=90):
    p('s_memtime s[80:81]')
    p('s_memrealtime s[78:79]')
    p('s_waitcnt lgkmcnt(0) vmcnt(0)')
    p('s_sub_u32 s80, s80, s82')
    p('s_sub_u32 s78, s78, s88')
    p(f's_mov_b32 s{srdws+2}, 0x10000000')
    p(f's_lshl_b32 s86, s2, 3')
    p(f's_add_u32 s86, s86, s{S_WAVE}')
    p(f's_lshl_b32 s86, s86, 6')
    p(f's_add_u32 s86, s86, {PROF_OFF + (0 if not tag.startswith("K2") else (1 << 20))}')
    if CFG['PROF'] == 3:
        p(f's_lshl_b32 s85, s2, 3')
        p(f's_add_u32 s85, s85, s{S_WAVE}')
        p(f's_lshl_b32 s85, s85, 8')
        p(f's_add_u32 s85, s85, {PROF_OFF + (2 << 20)}')
        p('v_mbcnt_lo_u32_b32 v0, -1, 0')
        p('v_mbcnt_hi_u32_b32 v0, -1, v0')
        p('v_lshlrev_b32 v0, 2, v0')
        if not tag.startswith('K2'):
            p(f'buffer_store_dword v254, v0, s[{srdws}:{srdws+3}], s85 offen')
    p('v_mov_b32 v1, 0')
    p('v_mov_b32 v0, s88')
    p(f'buffer_store_dword v0, v1, s[{srdws}:{srdws+3}], s86 offen offset:60')
    p('v_mov_b32 v0, s80')
    p(f'buffer_store_dword v0, v1, s[{srdws}:{srdws+3}], s86 offen offset:56')
    p('v_mov_b32 v0, s78')
    p(f'buffer_store_dword v0, v1, s[{srdws}:{srdws+3}], s86 offen offset:52')
    for i in range(n):
        p(f'v_mov_b32 v0, s{sbase+2*i}')
        p(f'buffer_store_dword v0, v1, s[{srdws}:{srdws+3}], s86 offen offset:{4*i}')
    if CFG['PROF'] == 6 and tag == 'CA':
        for i, r in enumerate((72, 74, 76)):
            p(f'v_mov_b32 v0, s{r}')
            p(f'buffer_store_dword v0, v1, s[{srdws}:{srdws+3}], s86 offen offset:{16+4*i}')
    p('s_waitcnt vmcnt(0)')


def gate_store(p):
    p(f'buffer_store_dwordx2 v[38:39], v37, s[{SRD_WS}:{SRD_WS+3}], 0 offen {CFG["STF"]}')


def gate_job(p, GX, GW, store=True):
    T = 104
    p('v_mov_b32 v34, 0')
    p('v_mov_b32 v35, 0')
    p('v_mov_b32 v36, 0x3f803f80')
    p('s_mov_b32 s78, 0xffff0000')
    for d in range(20):
        x, w = GX + d, GW + d
        t = T + 6 * (d & 1)
        p(f'v_lshlrev_b32 v{t}, 16, v{x}')
        p(f'v_and_b32 v{t+1}, s78, v{x}')
        p(f'v_lshlrev_b32 v{t+2}, 16, v{w}')
        p(f'v_and_b32 v{t+3}, s78, v{w}')
        p(f'v_pk_mul_f32 v[{t}:{t+1}], v[{t}:{t+1}], v[{t+2}:{t+3}]')
        p(f'v_cvt_pk_bf16_f32 v{t+4}, v{t}, v{t+1}')
        acc = 34 + (d & 1)
        p(f'v_dot2_f32_bf16 v{acc}, v{t+4}, v36, v{acc}')
    p('v_add_f32 v34, v34, v35')
    for sh in (8, 4, 2, 1):
        p(f'v_add_f32_dpp v34, v34, v34 row_ror:{sh} row_mask:0xf bank_mask:0xf')
    p('v_cvt_pk_bf16_f32 v35, v34, v34')
    p('v_lshlrev_b32 v35, 16, v35')
    p(f'v_mul_f32 v35, {hexf(-math.log2(math.e))}, v35')
    p('v_exp_f32 v35, v35')
    p('v_add_f32 v35, 1.0, v35')
    p('v_rcp_f32 v35, v35')
    p('v_cvt_pk_bf16_f32 v35, v35, v35')
    p('v_lshlrev_b32 v38, 16, v35')
    p('v_sub_f32 v39, 1.0, v38')
    p('v_cvt_pk_bf16_f32 v39, v39, v39')
    p('v_lshlrev_b32 v39, 16, v39')
    p('v_lshlrev_b32 v37, 3, v31')
    p(f'v_add_u32 v37, {G_OFF}, v37')
    if store:
        gate_store(p)


A_QM = lambda h, t: 0 + (h * 4 + t) * 4
A_KM = lambda h, kt: 32 + (h * 5 + kt) * 4
A_QKT = lambda kt: 72 + 4 * kt
A_VM = lambda h, kt: 92 + (h * 5 + kt) * 4
A_VT = lambda kt: 132 + 4 * kt
WF = lambda f: 152 + 4 * f
XF = lambda b, t: 184 + 20 * b + 4 * t
V_X0, V_X1, V_W, V_WA, V_WB = 224, 225, 226, 227, 228
V_BPREV, V_BCUR, V_BFIRST, V_SEL = 232, 236, 240, 244
F_ACC = lambda f, t: (f * 4 + t) * 4


class LgkmTracker:
    def __init__(self, p):
        self.p = p
        self.q = []

    def issue(self, tag):
        self.q.append(tag)

    def need(self, tags):
        idx = -1
        for i, t in enumerate(self.q):
            if t in tags:
                idx = i
        if idx < 0:
            return
        n = len(self.q) - 1 - idx
        self.p(f's_waitcnt lgkmcnt({min(n, 15)})')
        keep = min(n, 15)
        self.q = self.q[len(self.q) - keep:] if keep else []

    def drain(self):
        self.p('s_waitcnt lgkmcnt(0)')
        self.q = []


def consumer_loop(p, attn, th=None):
    tag = ('A' if attn else 'F') + ('' if th is None else str(th))
    NT = 5 if attn else 4
    xoff = lambda t: 2048 * t
    if attn:
        kk = range(5) if th in (None, 0) else range(1, 5)
        vk = range(5) if th in (None, 1) else range(1, 5)
        if th == 1:
            xoff = lambda t: 0 if t == 0 else 8192 + 2048 * t
        tiles = []
        for h in range(2):
            tiles.append([(A_QM(h, t), t + 1, 'F') for t in range(4)])
        for h in range(2):
            tiles.append([(A_KM(h, k), k, 'F') for k in kk])
        tiles.append([(A_QKT(k), k, 'F') for k in kk])
        for h in range(2):
            tiles.append([(A_VM(h, k), k, 'T') for k in vk])
        tiles.append([(A_VT(k), k, 'T') for k in vk])
        waddr = [(V_W, 0), (V_W, 40), (V_W, 160), (V_W, 200), (V_WA, 0), (V_W, 320), (V_W, 360), (V_WB, 0)]
    else:
        tiles = [[(F_ACC(f, t), t, 'F') for t in range(4)] for f in range(7)]
        waddr = [(V_W, 32 * f) for f in range(6)] + [(V_WA, 0)]
    NF = len(tiles)

    lg = LgkmTracker(p)

    def rd_w(f, s):
        if CFG['NODS']:
            return
        a, off = waddr[f]
        off += s * 32 * WROW
        p(f'ds_read_b64_tr_b16 v[{WF(f)}:{WF(f)+1}], v{a} offset:{off}')
        lg.issue(('w', f))
        p(f'ds_read_b64_tr_b16 v[{WF(f)+2}:{WF(f)+3}], v{a} offset:{off + 8*WROW}')
        lg.issue(('w', f))

    def rd_x(t, s):
        if CFG['NODS']:
            return
        p(f'ds_read_b128 v[{XF(s,t)}:{XF(s,t)+3}], v{V_X1 if s else V_X0} offset:{2048*t}')
        lg.issue(('x', s, t))

    LAST = NF - 1

    def wreads(f, s):
        a, off = waddr[f]
        off += s * 32 * WROW
        return [(f'ds_read_b64_tr_b16 v[{WF(f)}:{WF(f)+1}], v{a} offset:{off}', ('w', f)),
                (f'ds_read_b64_tr_b16 v[{WF(f)+2}:{WF(f)+3}], v{a} offset:{off + 8*WROW}', ('w', f))]

    def xread(t, s):
        return (f'ds_read_b128 v[{XF(s,t)}:{XF(s,t)+3}], v{V_X1 if s else V_X0} offset:{xoff(t)}', ('x', s, t))

    def emit(item):
        if CFG['NODS']:
            return
        p(item[0])
        lg.issue(item[1])

    order_log = []

    def packing():
        cv = lambda d, a: f'v_cvt_pk_bf16_f32 v{d}, v{a}, v{a+1}'
        out = []
        for h in range(2):
            for t in range(4):
                b = A_QM(h, t)
                out += [(h, cv(b, b)), (h, cv(b + 1, b + 2))]
        for h in range(2):
            for kt in kk:
                b = A_KM(h, kt)
                out += [(2 + h, cv(b, b)), (2 + h, cv(b + 1, b + 2))]
        for kt in kk:
            t = A_QKT(kt)
            out += [(4, cv(t, t)), (4, cv(t + 1, t + 2))]
        for kt in kk:
            t, k0 = A_QKT(kt), A_KM(0, kt)
            out += [(4, f'v_mov_b32 v{k0+2}, v{t}'), (4, f'v_mov_b32 v{k0+3}, v{t+1}')]
        return out

    def step(s, dry=False, last=False, first=False):
        nxt = 1 - s
        q = wreads(LAST, s)
        xq = [xread(t, nxt) for t in range(NT)]
        held = []
        upd = [V_W, V_X0, V_X1, V_WA] + ([V_WB] if attn else [])
        pk = []
        if last:
            xq, upd = [], []
            pk = packing() if attn else []
        if first:
            xq = []
        zq = []
        for f in range(NF):
            if not dry:
                lg.need({('w', f)} | ({('x', s, t) for t in range(NT)} if f == 0 else set()))
                if attn and CFG['ZVT'] and f == LAST - 1:
                    lg.need({('w', LAST)})
                    zq = [f'v_cndmask_b32 v{WF(LAST)+k}, 0, v{WF(LAST)+k}, s[68:69]' for k in range(4)]
            for n, (acc, t, o) in enumerate(tiles[f]):
                w, x = f'v[{WF(f)}:{WF(f)+3}]', f'v[{XF(s,t)}:{XF(s,t)+3}]'
                a, b = (w, x) if o == 'F' else (x, w)
                if not CFG['NOMFMA'] and not dry:
                    p(f'v_mfma_f32_16x16x32_bf16 v[{acc}:{acc+3}], {a}, {b}, v[{acc}:{acc+3}]')
                item = None
                if q:
                    item = q.pop(0)
                elif xq and (s == 0 or f >= 2):
                    item = xq.pop(0)
                if item is not None:
                    if dry:
                        order_log.append(item)
                    else:
                        emit(item)
                if not dry and s == 0 and f == LAST and n == 1 and not first:
                    p(f's_add_u32 s53, s53, {SLOT}')
                    p(f's_cmp_eq_u32 s53, {3*SLOT}')
                if not dry and s == 0 and f == LAST and n == 2 and not first:
                    p(f's_cselect_b32 s54, s51, {SLOT}')
                    p('s_cselect_b32 s53, 0, s53')
                if not dry and s == 1 and item is None and upd and (f, n) >= (0, 2):
                    p(f'v_add_u32 v{upd[0]}, s54, v{upd[0]}')
                    upd.pop(0)
                if zq and not dry:
                    p(zq.pop(0))
                for _ in range(2 - (1 if (attn and CFG['ZVT'] and f == LAST - 1) else 0)):
                    if pk and pk[0][0] + 2 <= f:
                        p(pk.pop(0)[1])
            if f < LAST and not last and not first:
                rs = wreads(f, nxt)
                if s == 1 and f < 1:
                    held += rs
                elif s == 1 and f == 1:
                    assert not q
                    if not dry:
                        assert not upd
                        if CFG['PROF'] == 3:
                            p('s_memtime s[70:71]')
                        lg.drain()
                        if CFG['PROF'] == 3:
                            p('s_lshl_b32 m0, s52, 1')
                            p('s_nop 3')
                            p('v_writelane_b32 v254, s70, m0')
                            p('s_add_u32 s74, m0, 63')
                            p('s_and_b32 m0, s74, 63')
                            p('s_nop 3')
                            p('v_writelane_b32 v254, s72, m0')
                        if CFG['PEEL']:
                            p('s_barrier')
                        else:
                            p('s_cmp_eq_u32 s52, 9')
                            p(f's_cbranch_scc1 L_nobar_{tag}')
                            p('s_barrier')
                            p.label(f'L_nobar_{tag}')
                        if CFG['PROF'] == 3:
                            p('s_memtime s[72:73]')
                    q += held + rs
                    held = []
                else:
                    q += rs
        assert not q and not xq, (q, xq)
        for _, ins in pk:
            p(ins)

    step(1, dry=True)
    for item in order_log[2:]:
        emit(item)
    p('s_mov_b32 s52, 0')
    p('s_mov_b32 s53, 0')
    p(f's_mov_b32 s51, {(-2*SLOT) & 0xffffffff}')
    if CFG['HALF']:
        q_steady = list(lg.q)
        step(0, first=True)
        p('s_barrier')
        del order_log[:]
        step(0, dry=True)
        for item in order_log[2:]:
            emit(item)
        p(f's_add_u32 s53, s53, {SLOT}')
        p(f's_mov_b32 s54, {SLOT}')
        lg.drain()
        p(f's_branch L_mid_{tag}')
        lg.q = q_steady
    if CFG['ALIGN']:
        p(f'.p2align {CFG["ALIGN"]}')
    p.label(f'L_loop_{tag}')
    q_head = list(lg.q)
    step(0)
    if CFG['HALF']:
        p.label(f'L_mid_{tag}')
    step(1)
    q_end = list(lg.q)
    assert q_end == q_head, (q_end, q_head)
    p('s_add_u32 s52, s52, 1')
    p(f's_cmp_lt_u32 s52, {9 if CFG["PEEL"] else 10}')
    p(f's_cbranch_scc1 L_loop_{tag}')
    if CFG['PEEL']:
        step(0)
        step(1, last=True)
    lg.drain()


def check_loop_waits():
    pass


def tlb_touch(p, tag):
    if not CFG['TT']:
        return
    p(f's_cmp_eq_u32 s{S_WAVE}, 1')
    p(f's_cbranch_scc0 L_tt1{tag}')
    for i in range(7):
        p(f's_mov_b32 s70, {i << 21}')
        p(f's_load_dword s{71+i}, s[{S_WS}:{S_WS+1}], s70')
    p.label(f'L_tt1{tag}')
    p(f's_cmp_eq_u32 s{S_WAVE}, 2')
    p(f's_cbranch_scc0 L_tt2{tag}')
    p(f's_load_dword s71, s[{S_WO}:{S_WO+1}], 0')
    p(f's_load_dword s72, s[{S_W2}:{S_W2+1}], 0')
    p(f's_mov_b32 s70, {(1 << 21) + 4096}')
    p(f's_load_dword s73, s[{S_W2}:{S_W2+1}], s70')
    p(f's_load_dword s74, s[{S_GW}:{S_GW+1}], 0')
    p(f's_load_dword s75, s[{S_B2}:{S_B2+1}], 0')
    p('s_load_dword s76, s[100:101], 0')
    p('s_load_dword s77, s[100:101], s70')
    p.label(f'L_tt2{tag}')
    if CFG['TL']:
        p(f's_cmp_eq_u32 s{S_WAVE}, 3')
        p(f's_cbranch_scc0 L_tt3{tag}')
        for i in range(1, 10):
            p(f's_load_dword s{70+(i%8)}, s[{S_B2}:{S_B2+1}], {128*i}')
        for i in range(1, 10):
            p(f's_load_dword s{70+(i%8)}, s[{S_GW}:{S_GW+1}], {128*i}')
        p.label(f'L_tt3{tag}')


def prefetch_setup(p, attn):
    rowstride = 3840 if attn else 3456
    p(f's_lshl_b32 s57, s{S_WAVE}, 6')
    p('v_add_u32 v9, s57, v2')
    p(f's_and_b32 s57, s{S_RB}, 7')
    p('s_lshl_b32 s57, s57, 3')
    p('s_add_u32 s57, s57, 128')
    p(f's_mov_b32 s58, {rowstride}')
    if attn:
        p(f's_mul_i32 s59, s{S_CG}, 160')
        p('s_andn2_b32 s59, s59, 127')
        for rnd in range(2):
            p(f'v_add_u32 v3, {256*rnd}, v9')
            p('v_min_u32 v3, 383, v3')
            p('v_mul_u32_u24 v4, 1366, v3')
            p('v_lshrrev_b32 v4, 16, v4')
            p('v_mul_u32_u24 v5, 48, v4')
            p('v_sub_u32 v5, v3, v5')
            p('v_mul_u32_u24 v6, 43, v5')
            p('v_lshrrev_b32 v6, 8, v6')
            p('v_mul_u32_u24 v7, 6, v6')
            p('v_sub_u32 v7, v5, v7')
            p('v_lshl_add_u32 v4, v4, 6, v6')
            p('v_add_u32 v4, s57, v4')
            p('v_mul_u32_u24 v4, s58, v4')
            p('v_lshrrev_b32 v5, 1, v7')
            p('v_mul_u32_u24 v5, 1280, v5')
            p('v_and_b32 v7, 1, v7')
            p('v_lshl_add_u32 v5, v7, 7, v5')
            p(f'v_add3_u32 v{249+rnd}, v4, v5, s59')
    else:
        p(f's_mul_i32 s59, s{S_CG}, 448')
        p('s_andn2_b32 s59, s59, 127')
        p('v_lshrrev_b32 v4, 5, v9')
        p('v_bfe_u32 v6, v9, 2, 3')
        p('v_lshl_add_u32 v4, v4, 6, v6')
        p('v_add_u32 v4, s57, v4')
        p('v_mul_u32_u24 v4, s58, v4')
        p('v_and_b32 v7, 3, v9')
        p('v_lshlrev_b32 v7, 7, v7')
        p('v_add3_u32 v249, v4, v7, s59')
    p(f's_and_b32 s57, s{S_CG}, 1')
    p(f's_lshl_b32 s58, s{S_TYPE}, 1')
    p('s_add_u32 s57, s57, s58')
    p('s_lshl_b32 s57, s57, 5')
    p(f's_lshl_b32 s58, s{S_RB}, 7')
    p('s_add_u32 s57, s57, s58')
    p('v_and_b32 v4, 31, v9')
    p('v_add_u32 v4, s57, v4')
    p('v_mul_u32_u24 v4, 1280, v4')
    p('v_lshrrev_b32 v5, 5, v9')
    p('v_lshlrev_b32 v5, 7, v5')
    p('v_add3_u32 v251, v4, v5, 256' .replace(', 256', ', s99'))


def prefetch_issue(p, attn):
    if not CFG['PF']:
        return
    p(f'buffer_load_dword v255, v251, s[{SRD_X}:{SRD_X+3}], 0 offen {CFG["PFF"]}')
    p(f'buffer_load_dword v255, v249, s[{SRD_W}:{SRD_W+3}], 0 offen {CFG["PFF"]}')
    if attn:
        p(f'buffer_load_dword v255, v250, s[{SRD_W}:{SRD_W+3}], 0 offen {CFG["PFF"]}')


def attn_prologue(p):
    p(f's_and_b32 s55, s{S_WAVE}, 1')
    p(f's_lshr_b32 s56, s{S_WAVE}, 1')
    p('v_and_b32 v3, 15, v2')
    p('v_lshrrev_b32 v4, 4, v2')
    p('v_lshrrev_b32 v5, 1, v3')
    p('v_xor_b32 v5, v5, v4')
    p('v_lshlrev_b32 v5, 4, v5')
    p('v_lshl_add_u32 v5, v3, 7, v5')
    if CFG['M35']:
        p(f'v_mov_b32 v{V_X0}, v5')
    else:
        p('s_lshl_b32 s57, s56, 13')
        p(f'v_add_u32 v{V_X0}, s57, v5')
    p(f'v_xor_b32 v{V_X1}, 64, v{V_X0}')
    p('v_lshrrev_b32 v5, 5, v2')
    p('v_lshlrev_b32 v5, 4, v5')
    p('v_bfe_u32 v6, v2, 4, 1')
    p('v_lshl_add_u32 v5, v6, 2, v5')
    p('v_bfe_u32 v6, v2, 2, 2')
    p('v_add_u32 v5, v5, v6')
    p(f'v_mul_u32_u24 v5, {WROW}, v5')
    p('s_mul_i32 s57, s55, 80')
    p(f's_add_u32 s57, s57, {XREG}')
    p('v_add_u32 v5, s57, v5')
    p('v_and_b32 v6, 3, v2')
    p(f'v_lshl_add_u32 v{V_W}, v6, 3, v5')
    p('v_and_b32 v7, 1, v6')
    p('v_mul_u32_u24 v7, 40, v7')
    p('v_add_u32 v7, v7, v5')
    p('v_lshrrev_b32 v6, 1, v6')
    p('v_mul_u32_u24 v6, 160, v6')
    p(f'v_add3_u32 v{V_WA}, v7, v6, 32')
    p(f'v_add_u32 v{V_WB}, 352, v7')
    p('v_lshlrev_b32 v5, 2, v4')
    p('v_sub_u32 v5, v3, v5')
    p(f's_mov_b32 s58, {hexf(-1e30)}')
    p('v_mov_b32 v8, s58')
    p(f's_or_b32 s59, s{S_RB}, s56')
    p('s_cmp_eq_u32 s59, 0')
    p('s_cselect_b64 s[60:61], -1, 0')
    for r in range(4):
        p(f'v_subrev_u32 v6, {r}, v5')
        p('v_and_b32 v7, 1, v6')
        p('v_cmp_eq_u32 s[62:63], 0, v7')
        p('v_cmp_ge_i32 s[64:65], v6, 0')
        p('s_and_b64 s[66:67], s[62:63], s[64:65]')
        p('s_andn2_b64 s[68:69], s[62:63], s[64:65]')
        p(f'v_cndmask_b32 v{V_BCUR+r}, v8, 0, s[66:67]')
        p(f'v_cndmask_b32 v{V_BPREV+r}, v8, 0, s[68:69]')
        p(f'v_cndmask_b32 v{V_BFIRST+r}, v{V_BPREV+r}, v8, s[60:61]')
    p('v_and_b32 v7, 1, v3')
    p('v_cmp_eq_u32 s[62:63], 0, v7')
    for k, (lo, hi) in enumerate([(0x0c0c0100, 0x01000c0c), (0x0c0c0302, 0x03020c0c)]):
        p(f'v_mov_b32 v6, {hex(hi)}')
        p(f'v_mov_b32 v9, {hex(lo)}')
        p('v_cndmask_b32 v9, v6, v9, s[62:63]')
        p('v_sub_u32 v6, v5, v7')
        if k:
            p('v_subrev_u32 v6, 2, v6')
        p('v_cmp_ge_i32 s[64:65], v6, 0')
        p('v_mov_b32 v6, 0x0c0c0c0c')
        p(f'v_cndmask_b32 v{V_SEL+k}, v9, v6, s[64:65]')
        p(f'v_cndmask_b32 v{V_SEL+2+k}, v6, v9, s[64:65]')
    p('v_lshlrev_b32 v248, 4, v2')
    if CFG['M35']:
        p('s_lshl_b32 s57, s55, 13')
        p(f's_add_u32 s57, s57, {2*SLOT}')
        p('v_add_u32 v249, s57, v248')
        p('v_lshrrev_b32 v250, 1, v248')
        p('v_add_u32 v250, s57, v250')
        p('s_lshl_b32 s57, s55, 3')
        p(f's_add_u32 s57, s57, {XFLAG}')
        p('v_mov_b32 v251, s57')
        p('v_mov_b32 v252, 0')
        p('v_mov_b32 v253, 0')
        p('ds_write_b64 v251, v[252:253]')
    for r in range(152):
        p(f'v_mov_b32 v{r}, 0')


def attn_epilogue(p, th=None):
    cvt = lambda d, a: p(f'v_cvt_pk_bf16_f32 v{d}, v{a}, v{a+1}')
    tg = '' if th is None else str(th)
    kk = list(range(5)) if th in (None, 0) else [1, 2, 3, 4]
    vk = list(range(5)) if th in (None, 1) else [1, 2, 3, 4]
    p('s_nop 7')

    def pack_k(kts):
        if CFG['PEEL']:
            return
        for kt in kts:
            for h in range(2):
                b = A_KM(h, kt)
                cvt(b, b)
                cvt(b + 1, b + 2)
            t = A_QKT(kt)
            cvt(t, t)
            cvt(t + 1, t + 2)
        for kt in kts:
            t, k0 = A_QKT(kt), A_KM(0, kt)
            p(f'v_mov_b32 v{k0+2}, v{t}')
            p(f'v_mov_b32 v{k0+3}, v{t+1}')

    def tails_k(kts):
        for kt in kts:
            t, k0 = A_QKT(kt), A_KM(0, kt)
            p(f'v_permlane32_swap_b32 v{t}, v{k0+2}')
            p(f'v_permlane32_swap_b32 v{t+1}, v{k0+3}')

    def copy_k(kts):
        for kt in kts:
            k0, k1 = A_KM(0, kt), A_KM(1, kt)
            p(f'v_mov_b32 v{k1+2}, v{k0+2}')
            p(f'v_mov_b32 v{k1+3}, v{k0+3}')

    def pack_v():
        for kt in vk:
            for base, b in ((A_VM(0, 0), A_VM(0, kt)), (A_VM(1, 0), A_VM(1, kt)), (A_VT(0), A_VT(kt))):
                cvt(base + 2 * kt, b)
                cvt(base + 2 * kt + 1, b + 2)

    vbases = (A_VM(0, 0), A_VM(1, 0), A_VT(0))
    if th == 0:
        pack_k([4])
        pack_v()
        tails_k([4])
        rest = [0, 1, 2, 3]
        pack_k(rest[:1])
        copy_k([4])
        p(f'ds_write_b128 v249, v[{A_KM(0,4)}:{A_KM(0,4)+3}]')
        p(f'ds_write_b128 v249, v[{A_KM(1,4)}:{A_KM(1,4)+3}] offset:1024')
        for i, vb in enumerate(vbases):
            p(f'ds_write_b64 v250, v[{vb+8}:{vb+9}] offset:{2048 + 512*i}')
        pack_k(rest[1:])
        p('s_waitcnt lgkmcnt(0)')
        p('v_mov_b32 v252, 1')
        p('ds_write_b32 v251, v252')
        tails_k(rest)
    elif th == 1:
        pack_v()
        for i, vb in enumerate(vbases):
            p(f'ds_write_b64 v250, v[{vb}:{vb+1}] offset:{4096 + 512*i}')
        rest = [1, 2, 3, 4]
        pack_k(rest)
        p('s_waitcnt lgkmcnt(0)')
        p('v_mov_b32 v252, 1')
        p('ds_write_b32 v251, v252 offset:4')
        tails_k(rest)
    else:
        rest = [0, 1, 2, 3, 4]
        pack_k(rest)
        pack_v()
        tails_k(rest)
    for h in range(2):
        for t in range(4):
            b = A_QM(h, t)
            if not CFG['PEEL']:
                cvt(b, b)
                cvt(b + 1, b + 2)
    copy_k(rest)
    p('s_mov_b32 s60, 0x0000ffff')
    p('s_mov_b32 s61, 0')
    p('s_mov_b32 s62, 0xffff0000')
    p('s_mov_b32 s63, 0')
    for t in range(4):
        for h in range(2):
            q, x = A_QM(h, t), A_QKT(t + 1)
            p(f'v_cndmask_b32 v{q+2}, 0, v{x}, s[{60+2*h}:{61+2*h}]')
            p(f'v_cndmask_b32 v{q+3}, 0, v{x+1}, s[{60+2*h}:{61+2*h}]')
    S = lambda t, h: 152 + (t * 2 + h) * 8

    def qk(t):
        for h in range(2):
            q = A_QM(h, t)
            bp = V_BFIRST if t == 0 else V_BPREV
            kp, kc = A_KM(h, t), A_KM(h, t + 1)
            p(f'v_mfma_f32_16x16x32_bf16 v[{S(t,h)}:{S(t,h)+3}], v[{kp}:{kp+3}], v[{q}:{q+3}], v[{bp}:{bp+3}]')
            p(f'v_mfma_f32_16x16x32_bf16 v[{S(t,h)+4}:{S(t,h)+7}], v[{kc}:{kc+3}], v[{q}:{q+3}], v[{V_BCUR}:{V_BCUR+3}]')

    for t in (3, 2, 1):
        qk(t)
    if CFG['PROF'] == 6:
        p('s_memtime s[72:73]')
    if th is not None:
        p.label(f'L_xspin{th}')
        p(f'ds_read_b32 v252, v251 offset:{4 if th == 0 else 0}')
        p('s_waitcnt lgkmcnt(0)')
        p('v_readfirstlane_b32 s70, v252')
        p('s_cmp_eq_u32 s70, 0')
        p(f's_cbranch_scc1 L_xspin{th}')
        if th == 1:
            p(f'ds_read_b128 v[{A_KM(0,0)}:{A_KM(0,0)+3}], v249')
            p(f'ds_read_b128 v[{A_KM(1,0)}:{A_KM(1,0)+3}], v249 offset:1024')
        for i, vb in enumerate(vbases):
            p(f'ds_read_b64 v[{vb}:{vb+1}], v250 offset:{(2048 if th == 1 else 4096) + 512*i}')
        p('s_waitcnt lgkmcnt(0)')
    qk(0)
    if CFG['PROF'] == 6:
        p('s_memtime s[74:75]')
    cs = (20 ** -0.5) * math.log2(math.e)
    p(f's_mov_b32 s64, {hexf(cs)}')
    p(f's_mov_b32 s65, {hexf(cs)}')
    inst = [(t, h) for t in (3, 2, 1, 0) for h in range(2)]
    for (t, h) in inst:
        s = S(t, h)
        p(f'v_max3_f32 v{s}, v{s}, v{s+1}, v{s+4}')
        p(f'v_max3_f32 v{s+2}, v{s+2}, v{s+3}, v{s+6}')
    for (t, h) in inst:
        s = S(t, h)
        p(f'v_max_f32 v{s}, v{s}, v{s+5}')
        p(f'v_max_f32 v{s+1}, v{s+2}, v{s+7}')
    for (t, h) in inst:
        s = S(t, h)
        p(f'v_max_f32 v{s+2}, v{s}, v{s+1}')

    def cross(groups, op, mid):
        for (A, B, C, D) in groups:
            p(f'v_permlane32_swap_b32 v{A}, v{B}')
            p(f'v_permlane32_swap_b32 v{C}, v{D}')
        for (A, B, C, D) in groups:
            p(f'{op} v{A}, v{A}, v{B}')
            p(f'{op} v{C}, v{C}, v{D}')
        for (A, B, C, D) in groups:
            p(f'v_permlane16_swap_b32 v{A}, v{C}')
        for (A, B, C, D) in groups:
            p(f'{op} v{A}, v{A}, v{C}')
        for (A, B, C, D) in groups:
            mid(A)
        for (A, B, C, D) in groups:
            p(f'v_mov_b32 v{C}, v{A}')
        for (A, B, C, D) in groups:
            p(f'v_permlane16_swap_b32 v{A}, v{C}')
        for (A, B, C, D) in groups:
            p(f'v_mov_b32 v{B}, v{A}')
            p(f'v_mov_b32 v{D}, v{C}')
        for (A, B, C, D) in groups:
            p(f'v_permlane32_swap_b32 v{A}, v{B}')
            p(f'v_permlane32_swap_b32 v{C}, v{D}')

    grp = lambda o: [tuple(S(t, h) + o for (t, h) in inst[0:4]), tuple(S(t, h) + o for (t, h) in inst[4:8])]
    cross(grp(2), 'v_max_f32', lambda A: p(f'v_mul_f32 v{A}, s64, v{A}'))
    for (t, h) in inst:
        s = S(t, h)
        p(f'v_pk_fma_f32 v[{s}:{s+1}], v[{s}:{s+1}], s[64:65], v[{s+2}:{s+3}] op_sel_hi:[1,1,0] neg_lo:[0,0,1] neg_hi:[0,0,1]')
    for (t, h) in inst:
        s = S(t, h)
        p(f'v_exp_f32 v{s}, v{s}')
        p(f'v_exp_f32 v{s+1}, v{s+1}')
    for (t, h) in inst:
        s = S(t, h)
        p(f'v_add_f32 v{s+2}, v{s}, v{s+1}')
    cross(grp(2), 'v_add_f32', lambda A: p(f'v_rcp_f32 v{A}, v{A}'))
    for (t, h) in inst:
        s = S(t, h)
        p(f'v_pk_mul_f32 v[{s}:{s+1}], v[{s}:{s+1}], v[{s+2}:{s+3}] op_sel_hi:[1,0]')
    for (t, h) in inst:
        s = S(t, h)
        p(f'v_cvt_pk_bf16_f32 v{s+2}, v{s}, v{s+1}')
    if CFG['PROF'] == 6:
        p('s_memtime s[76:77]')

    def perm(i):
        s = S(*inst[i])
        for k in range(4):
            p(f'v_perm_b32 v{s+4+k}, v{s+2}, v{s+2}, v{V_SEL+k}')

    def pv(i):
        t, h = inst[i]
        s = S(t, h)
        va, vt = A_VM(h, 0) + 2 * t, A_VT(0) + 2 * t
        om, ot = A_QM(h, t), A_KM(h, t)
        p(f'v_mfma_f32_16x16x32_bf16 v[{om}:{om+3}], v[{va}:{va+3}], v[{s+4}:{s+7}], 0')
        p(f'v_mfma_f32_16x16x32_bf16 v[{ot}:{ot+3}], v[{vt}:{vt+3}], v[{s+4}:{s+7}], 0')

    def pack_main(t):
        for h in range(2):
            o = A_QM(h, t)
            d = S(t, 0) + 2 * h
            p(f'v_cvt_pk_bf16_f32 v{d}, v{o}, v{o+1}')
            p(f'v_cvt_pk_bf16_f32 v{d+1}, v{o+2}, v{o+3}')
        d = S(t, 0)
        p(f's_add_u32 s68, s66, {t*20480}')
        p(f'buffer_store_dwordx4 v[{d}:{d+3}], v248, s[{SRD_WS}:{SRD_WS+3}], s68 offen {CFG["STFO"]}')

    def pack_tail(t):
        d = S(t & 2, 1) + 2 * (t & 1)
        o0, o1 = A_KM(0, t), A_KM(1, t)
        for rr in range(4):
            p(f'v_cndmask_b32 v{o0+rr}, v{o0+rr}, v{o1+rr}, s[62:63]')
        p(f'v_cvt_pk_bf16_f32 v{d}, v{o0}, v{o0+1}')
        p(f'v_cvt_pk_bf16_f32 v{d+1}, v{o0+2}, v{o0+3}')

    perm(0)
    perm(1)
    for i in range(8):
        pv(i)
        if i + 2 < 8:
            perm(i + 2)
        if i in (5, 7):
            pass
    for t in (3, 2):
        pack_main(t)
    for t in (3, 2):
        pack_tail(t)
    pack_main(1)
    pack_tail(1)
    pack_main(0)
    pack_tail(0)
    p('s_mov_b32 exec_hi, 0')
    for pr in range(2):
        d = S(2 * pr, 1)
        p(f's_add_u32 s68, s67, {pr*20480}')
        p(f'buffer_store_dwordx4 v[{d}:{d+3}], v248, s[{SRD_WS}:{SRD_WS+3}], s68 offen {CFG["STFO"]}')
    p('s_mov_b32 exec_hi, -1')


def attn_out_addr(p):
    p(f's_lshl_b32 s65, s{S_RB}, 3')
    p('s_lshl_b32 s66, s56, 2')
    p('s_add_u32 s65, s65, s66')
    p('s_mul_i32 s66, s65, 20')
    p(f's_lshl_b32 s67, s{S_CG}, 1')
    p('s_add_u32 s67, s67, s55')
    p('s_add_u32 s66, s66, s67')
    p('s_lshl_b32 s66, s66, 10')
    p(f's_add_u32 s66, s66, {OA_OFF}')
    p(f's_and_b32 s67, s{S_CG}, 1')
    p('s_lshl_b32 s67, s67, 1')
    p('s_add_u32 s67, s67, s65')
    p('s_mul_i32 s67, s67, 20')
    p(f's_lshr_b32 s68, s{S_CG}, 1')
    p('s_add_u32 s67, s67, s68')
    p('s_add_u32 s67, s67, 16')
    p('s_lshl_b32 s67, s67, 10')
    p('s_lshl_b32 s68, s55, 9')
    p('s_add_u32 s67, s67, s68')
    p(f's_add_u32 s67, s67, {OA_OFF}')


def ffn_prologue(p):
    p(f's_and_b32 s55, s{S_WAVE}, 1')
    p(f's_lshr_b32 s56, s{S_WAVE}, 1')
    p('v_and_b32 v3, 15, v2')
    p('v_lshrrev_b32 v4, 4, v2')
    p('v_lshrrev_b32 v5, 1, v3')
    p('v_xor_b32 v5, v5, v4')
    p('v_lshlrev_b32 v5, 4, v5')
    p('v_lshl_add_u32 v5, v3, 7, v5')
    p('s_lshl_b32 s57, s56, 13')
    p(f'v_add_u32 v{V_X0}, s57, v5')
    p(f'v_xor_b32 v{V_X1}, 64, v{V_X0}')
    p('v_lshrrev_b32 v5, 5, v2')
    p('v_lshlrev_b32 v5, 4, v5')
    p('v_bfe_u32 v6, v2, 4, 1')
    p('v_lshl_add_u32 v5, v6, 2, v5')
    p('v_bfe_u32 v6, v2, 2, 2')
    p('v_add_u32 v5, v5, v6')
    p(f'v_mul_u32_u24 v5, {WROW}, v5')
    p(f'v_add_u32 v5, {XREG}, v5')
    p('v_and_b32 v6, 3, v2')
    p('v_lshl_add_u32 v5, v6, 3, v5')
    p('s_lshl_b32 s57, s55, 8')
    p(f'v_add_u32 v{V_W}, s57, v5')
    p('s_lshl_b32 s57, s55, 5')
    p('s_add_u32 s57, s57, 192')
    p(f'v_add_u32 v{V_WA}, s57, v5')
    p(f's_mul_i32 s57, s{S_CG}, 448')
    p('v_lshlrev_b32 v5, 3, v4')
    p('v_add_u32 v5, s57, v5')
    p('s_lshl_b32 s57, s55, 8')
    p('v_add_u32 v6, s57, v5')
    p('s_lshl_b32 s57, s55, 5')
    p('s_add_u32 s57, s57, 192')
    p('v_add_u32 v7, s57, v5')
    p('v_lshlrev_b32 v248, 4, v2')
    p('s_waitcnt lgkmcnt(0)')
    srd(p, SRD_A, S_B1, 3456)
    for f in range(7):
        if f < 6:
            p(f'buffer_load_dwordx2 v[{200+2*f}:{201+2*f}], v6, s[{SRD_A}:{SRD_A+3}], 0 offen offset:{32*f}')
        else:
            p(f'buffer_load_dwordx2 v[{200+2*f}:{201+2*f}], v7, s[{SRD_A}:{SRD_A+3}], 0 offen')
    tlb_touch(p, 'F')
    p('s_mov_b32 s58, 0xffff0000')
    p('s_waitcnt vmcnt(0)')
    for f in range(7):
        for t in range(4):
            a = F_ACC(f, t)
            p(f'v_lshlrev_b32 v{a}, 16, v{200+2*f}')
            p(f'v_and_b32 v{a+1}, s58, v{200+2*f}')
            p(f'v_lshlrev_b32 v{a+2}, 16, v{201+2*f}')
            p(f'v_and_b32 v{a+3}, s58, v{201+2*f}')


def ffn_epilogue(p):
    k1 = -2.0 * math.sqrt(2.0 / math.pi) * math.log2(math.e)
    k2 = k1 * 0.044715
    C1, C2, ONE = 240, 242, 244
    for r in (0, 1):
        p(f'v_mov_b32 v{C1+r}, {hexf(k1)}')
        p(f'v_mov_b32 v{C2+r}, {hexf(k2)}')
        p(f'v_mov_b32 v{ONE+r}, 1.0')
    p('s_nop 5')
    p(f's_lshl_b32 s65, s{S_RB}, 3')
    p('s_lshl_b32 s66, s56, 2')
    p('s_add_u32 s65, s65, s66')
    p('s_mul_i32 s65, s65, 54')
    p(f's_mul_i32 s66, s{S_CG}, 7')
    p('s_add_u32 s67, s66, 3')
    p('s_lshl_b32 s68, s55, 2')
    p('s_add_u32 s66, s66, s68')
    p('s_add_u32 s69, s65, s67')
    p('s_lshl_b32 s69, s69, 10')
    p('s_lshl_b32 s68, s55, 3')
    p('s_add_u32 s69, s69, s68')
    p('s_add_u32 s68, s65, s66')
    p('s_lshl_b32 s68, s68, 10')

    def gelu(regs, tmp):
        for i, x in enumerate(regs):
            p(f'v_pk_mul_f32 v[{tmp+4*i}:{tmp+4*i+1}], v[{x}:{x+1}], v[{x}:{x+1}]')
        for i, x in enumerate(regs):
            p(f'v_pk_fma_f32 v[{tmp+4*i}:{tmp+4*i+1}], v[{tmp+4*i}:{tmp+4*i+1}], v[{C2}:{C2+1}], v[{C1}:{C1+1}]')
        for i, x in enumerate(regs):
            p(f'v_pk_mul_f32 v[{tmp+4*i}:{tmp+4*i+1}], v[{tmp+4*i}:{tmp+4*i+1}], v[{x}:{x+1}]')
        for i, x in enumerate(regs):
            p(f'v_exp_f32 v{tmp+4*i}, v{tmp+4*i}')
            p(f'v_exp_f32 v{tmp+4*i+1}, v{tmp+4*i+1}')
        for i, x in enumerate(regs):
            p(f'v_pk_add_f32 v[{tmp+4*i}:{tmp+4*i+1}], v[{tmp+4*i}:{tmp+4*i+1}], v[{ONE}:{ONE+1}]')
        for i, x in enumerate(regs):
            p(f'v_rcp_f32 v{tmp+4*i}, v{tmp+4*i}')
            p(f'v_rcp_f32 v{tmp+4*i+1}, v{tmp+4*i+1}')
        for i, x in enumerate(regs):
            p(f'v_pk_mul_f32 v[{x}:{x+1}], v[{tmp+4*i}:{tmp+4*i+1}], v[{x}:{x+1}]')

    OUT = 184
    n = 0
    for pr in range(3):
        p(f's_add_u32 s70, s66, {pr}')
        p('s_cmp_ge_u32 s70, 54')
        p(f's_cbranch_scc1 L_skip_pair{pr}')
        for t in range(4):
            a, b = F_ACC(2 * pr, t), F_ACC(2 * pr + 1, t)
            gelu([a, a + 2, b, b + 2], 152)
            o = OUT + 4 * (n % 4)
            n += 1
            p(f'v_cvt_pk_bf16_f32 v{o}, v{a}, v{a+1}')
            p(f'v_cvt_pk_bf16_f32 v{o+1}, v{a+2}, v{a+3}')
            p(f'v_cvt_pk_bf16_f32 v{o+2}, v{b}, v{b+1}')
            p(f'v_cvt_pk_bf16_f32 v{o+3}, v{b+2}, v{b+3}')
            p(f's_add_u32 s70, s68, {pr*1024 + t*54*1024}')
            p(f'buffer_store_dwordx4 v[{o}:{o+3}], v248, s[{SRD_WS}:{SRD_WS+3}], s70 offen {CFG["STFH"]}')
        p.label(f'L_skip_pair{pr}')
    for t2 in range(2):
        a, b = F_ACC(6, 2 * t2), F_ACC(6, 2 * t2 + 1)
        gelu([a, a + 2, b, b + 2], 152)
        for u, x in enumerate((a, b)):
            o = OUT + 16 + 2 * ((2 * t2 + u) % 2)
            p(f'v_cvt_pk_bf16_f32 v{o}, v{x}, v{x+1}')
            p(f'v_cvt_pk_bf16_f32 v{o+1}, v{x+2}, v{x+3}')
            p(f's_add_u32 s70, s69, {(2*t2+u)*54*1024}')
            p(f'buffer_store_dwordx2 v[{o}:{o+1}], v248, s[{SRD_WS}:{SRD_WS+3}], s70 offen {CFG["STFH"]}')


def gen_k1():
    p = Prog()
    p('s_cmp_ge_u32 s2, 256')
    p('s_cbranch_scc1 L_k1_end')
    p('s_load_dwordx4 s[4:7], s[0:1], 0')
    p('s_load_dwordx4 s[8:11], s[0:1], 16')
    p('s_load_dwordx4 s[12:15], s[0:1], 32')
    p('s_load_dwordx4 s[16:19], s[0:1], 48')
    p('s_load_dwordx2 s[20:21], s[0:1], 64')
    p('s_load_dwordx2 s[22:23], s[0:1], 88')
    if CFG['TT']:
        p('s_load_dwordx2 s[100:101], s[0:1], 72')
    if CFG['PROF']:
        p('s_memrealtime s[88:89]')
        p('s_memtime s[82:83]')
    p('v_lshrrev_b32 v1, 6, v0')
    p('v_and_b32 v2, 63, v0')
    p(f'v_readfirstlane_b32 s{S_WAVE}, v1')
    if CFG['SWAPW']:
        p(f's_add_u32 s{S_WAVE}, s{S_WAVE}, 4')
        p(f's_and_b32 s{S_WAVE}, s{S_WAVE}, 7')
    k1_decode(p)
    p(f's_cmp_eq_u32 s{S_WAVE}, 0')
    p('s_cbranch_scc0 L_nopf')
    p('v_mov_b32 v10, v2')
    code_prefetch(p, 'L_k1_body', 'L_k1_end', CFG.get('K1_BYTES', 20480), 10, 255, 84, 'k1')
    p.label('L_nopf')
    p.label('L_k1_body')
    p(f's_cmp_ge_u32 s{S_WAVE}, 4')
    p('s_cbranch_scc0 L_consumer')
    if CFG['LDFIRST'] == 1:
        p(f's_cmp_eq_u32 s{S_TYPE}, 0')
        p('s_cbranch_scc0 L_loader_F')
        k1_loader(p, True)
        k1_loader(p, False)
    elif CFG['LDFIRST'] == 2:
        p(f's_cmp_eq_u32 s{S_TYPE}, 0')
        p('s_cbranch_scc0 L_loader_F')
        k1_loader(p, True)
    else:
        p(f's_cmp_eq_u32 s{S_TYPE}, 0')
        p('s_cbranch_scc1 L_loader_A')
        p('s_branch L_loader_F')
    p.label('L_consumer')
    if CFG['PRIO']:
        p(f's_setprio {CFG["PRIO"]}')
    p(f's_cmp_eq_u32 s{S_TYPE}, 0')
    p('s_cbranch_scc0 L_cons_F')
    p('s_movk_i32 s99, 256')
    prefetch_setup(p, True)
    p('s_waitcnt lgkmcnt(0)')
    tlb_touch(p, 'A')
    attn_prologue(p)
    attn_out_addr(p)
    if CFG['ZVT']:
        p('s_mov_b32 s68, 0x00ff00ff')
        p('s_mov_b32 s69, 0x00ff00ff')
    srd(p, SRD_WS, S_WS, WS_USED)
    srd(p, SRD_X, S_AX, 2048 * 1280)
    srd(p, SRD_W, S_WQKV, 640 * 3840)
    p('s_waitcnt lgkmcnt(0)')
    stamp(p, 0)
    p('s_barrier')
    stamp(p, 1)
    prefetch_issue(p, True)
    if CFG['M35']:
        p('s_cmp_eq_u32 s56, 0')
        p('s_cbranch_scc0 L_attn_th1')
        for th in (0, 1):
            if th:
                p.label('L_attn_th1')
            consumer_loop(p, True, th)
            stamp(p, 2)
            attn_epilogue(p, th)
            stamp(p, 3)
            if CFG['PROF']:
                prof_store(p, 4, 'CA', SRD_WS)
            p('s_endpgm')
    else:
        consumer_loop(p, True)
        stamp(p, 2)
        attn_epilogue(p)
        stamp(p, 3)
        if CFG['PROF']:
            prof_store(p, 4, 'CA', SRD_WS)
        p('s_endpgm')
    p.label('L_cons_F')
    p('s_movk_i32 s99, 256')
    prefetch_setup(p, False)
    ffn_prologue(p)
    srd(p, SRD_WS, S_WS, WS_USED)
    srd(p, SRD_X, S_AX, 2048 * 1280)
    srd(p, SRD_W, S_W1, 640 * 3456)
    p('s_waitcnt lgkmcnt(0)')
    stamp(p, 0)
    p('s_barrier')
    stamp(p, 1)
    prefetch_issue(p, False)
    consumer_loop(p, False)
    stamp(p, 2)
    ffn_epilogue(p)
    stamp(p, 3)
    if CFG['PROF']:
        prof_store(p, 4, 'CF', SRD_WS)
    p('s_endpgm')
    if not CFG['LDFIRST']:
        k1_loader(p, True)
        k1_loader(p, False)
    elif CFG['LDFIRST'] == 2:
        k1_loader(p, False)
    p.label('L_k1_end')
    p('s_endpgm')
    return p


K2_LAST = {}


def k2_small_loads(p, vg, vb, vb2):
    p(f'buffer_load_dwordx2 v[{K2_G}:{K2_G+1}], v{vg}, s[12:15], 0 offen')
    p(f'buffer_load_dwordx4 v[{K2_B2}:{K2_B2+3}], v{vb}, s[16:19], 0 offen')
    p(f'buffer_load_dwordx4 v[{K2_B2+4}:{K2_B2+7}], v{vb}, s[16:19], 0 offen offset:64')
    p(f'buffer_load_dwordx2 v[{K2_B2+8}:{K2_B2+9}], v{vb2}, s[16:19], 0 offen offset:128')


def k2_stream(p, wave_a):
    NB = CFG['NBUF']
    tag = 'a' if wave_a else 'b'
    nsteps = 20 if wave_a else 18
    ACC = lambda t, f: K2_ACC + (t * 5 + f) * 4
    BA = lambda b, t: 36 * b + 4 * t
    BW = lambda b, f: 36 * b + 16 + 4 * f

    def ld_w(b, f):
        if f < 4:
            p(f'buffer_load_dwordx4 v[{BW(b,f)}:{BW(b,f)+3}], v{K2_VL}, s[12:15], s21 offen offset:{1024*f} {CFG["K2LDF"]}')
        else:
            p(f'buffer_load_dwordx4 v[{BW(b,f)}:{BW(b,f)+3}], v{K2_VL2}, s[12:15], s21 offen {CFG["K2LDF"]}')

    def ld_a(b, t):
        p(f'buffer_load_dwordx4 v[{BA(b,t)}:{BA(b,t)+3}], v{K2_VA+t}, s[12:15], s20 offen {CFG["K2LDF"]}')

    nrot = 16 if wave_a else 18
    state = {'n': 0}

    def adv():
        state['n'] += 1
        p('s_add_u32 s20, s20, 1024')
        p('s_add_u32 s21, s21, 5120')
        if not CFG['ROT2']:
            return
        if state['n'] < nrot:
            p('s_add_u32 s22, s22, 1')
            p(f's_cmp_eq_u32 s22, {nrot}')
            p(f's_cselect_b32 s23, {nrot*1024}, 0')
            p('s_sub_u32 s20, s20, s23')
            p('s_mul_i32 s23, s23, 5')
            p('s_sub_u32 s21, s21, s23')
        elif state['n'] == nrot and wave_a:
            p('s_mov_b32 s20, s34')
            p('s_mov_b32 s21, s35')

    for s in range(min(NB, nsteps)):
        for f in range(5):
            ld_w(s % NB, f)
        for t in range(4):
            ld_a(s % NB, t)
        adv()
    if CFG['GLATE']:
        k2_small_loads(p, 246, 247, 248)
    for r in range(80):
        p(f'v_mov_b32 v{K2_ACC+r}, 0')
    stamp(p, 1)
    for s in range(nsteps):
        b = s % NB
        issued = min(s + NB, nsteps)
        newer = (issued - s - 1) * 9
        if CFG['GLATE'] and s < NB:
            newer += 4
        p(f's_waitcnt vmcnt({newer})')
        more = s + NB < nsteps
        tail = wave_a and s >= 16
        amap = [0, 1, 2, 3]
        if tail:
            for (x, y) in ((0, 2), (1, 3)):
                p(f'v_swap_b32 v{BA(b,x)+2}, v{BA(b,y)}')
                p(f'v_swap_b32 v{BA(b,x)+3}, v{BA(b,y)+1}')
            amap = [0, 2, 1, 3]
        if CFG['K2RED'] == 2 and s == nsteps - 1:
            def last_step(w, b=b, amap=amap):
                p(f'v_add_u32 v220, {w*5120}, v{K2_VL}')
                p(f'v_add_u32 v221, {w*5120 + 40960}, v{K2_VL}')
                order = [t for t in range(4) if t != w] + [w]
                if w != 0:
                    order = [0] + [t for t in (1, 2, 3) if t != w] + [w]
                pend = []
                for k, t in enumerate(order):
                    for f in range(5):
                        acc = ACC(t, f)
                        p(f'v_mfma_f32_16x16x32_bf16 v[{acc}:{acc+3}], v[{BW(b,f)}:{BW(b,f)+3}], v[{BA(b,amap[t])}:{BA(b,amap[t])+3}], v[{acc}:{acc+3}]')
                        if pend and k >= 2:
                            p(pend.pop(0))
                    if t != w:
                        pend += [f'ds_write_b128 v{220 + (t >> 1)}, v[{ACC(t,f)}:{ACC(t,f)+3}] offset:{(t & 1)*20480 + f*1024}' for f in range(5)]
                for ins in pend:
                    p(ins)
            if wave_a:
                last_step(0)
            else:
                K2_LAST['b'] = last_step
            continue
        for f in range(5):
            for t in range(4):
                acc = ACC(t, f)
                if not CFG['K2NOMFMA']:
                    p(f'v_mfma_f32_16x16x32_bf16 v[{acc}:{acc+3}], v[{BW(b,f)}:{BW(b,f)+3}], v[{BA(b,amap[t])}:{BA(b,amap[t])+3}], v[{acc}:{acc+3}]')
            if more and CFG['K2ORD'] == 0:
                ld_w(b, f)
            if more and CFG['K2ORD'] == 2 and f >= 1:
                ld_w(b, f - 1)
        if more:
            if CFG['K2ORD'] == 1:
                for f in range(5):
                    ld_w(b, f)
            if CFG['K2ORD'] == 2:
                ld_w(b, 4)
            for t in range(4):
                ld_a(b, t)
            adv()
    if CFG['K2RED'] == 2:
        p('s_branch L_k2_red_a' if wave_a else 's_branch L_k2_red_b')
    else:
        p('s_branch L_k2_reduce')


K2_ACC = 144
K2_VL, K2_VL2, K2_VA = 224, 225, 226
K2_G, K2_B2 = 230, 232
K2_LDS = 4 * 4 * 5120 + 64


def k2_reduce2(p):
    assert CFG['NBUF'] == 3
    ACC = lambda t, f: K2_ACC + (t * 5 + f) * 4
    R1 = lambda f: 4 * f
    R2 = lambda f: 20 + 4 * f
    R3 = lambda j: 40 + 4 * j
    R4 = lambda j: 48 + 4 * j
    AR = lambda f: 56 + 4 * f
    B = lambda f: 188 + 4 * f
    GP, OP, O0 = 208, 210, 212
    FL, ONE, FA, WA, WB, RB = 214, 218, 219, 220, 221, 222
    O = 80
    FOFF = 81920

    def common(w):
        stamp(p, 2)
        p(f'v_add_u32 v{WA}, {w*5120}, v{K2_VL}')
        p(f'v_add_u32 v{WB}, {w*5120 + 40960}, v{K2_VL}')
        p(f'v_add_u32 v{RB}, {w*20480}, v{K2_VL}')
        p(f'v_mov_b32 v{FA}, {FOFF}')
        p(f'v_mov_b32 v{ONE}, 1')
        p('s_nop 7')

    def write_tiles(tiles):
        for t in tiles:
            for f in range(5):
                p(f'ds_write_b128 v{WA + (t >> 1)}, v[{ACC(t,f)}:{ACC(t,f)+3}] offset:{(t & 1)*20480 + f*1024}')

    def set_flag(i):
        p('s_waitcnt lgkmcnt(0)')
        p(f'ds_write_b32 v{FA}, v{ONE} offset:{4*i}')

    def spin(base, idxs, lbl):
        p.label(lbl)
        p(f'ds_read_b128 v[{FL}:{FL+3}], v{FA} offset:{base}')
        p('s_waitcnt lgkmcnt(0)')
        r = FL + idxs[0]
        for k in idxs[1:]:
            p(f'v_and_b32 v{FL+idxs[0]}, v{r}, v{FL+k}')
        p(f'v_readfirstlane_b32 s62, v{FL+idxs[0]}')
        p('s_cmp_eq_u32 s62, 0')
        p(f's_cbranch_scc1 {lbl}')

    def unpack():
        p('s_mov_b32 s63, 0xffff0000')
        for pr in range(2):
            for d in range(4):
                src = K2_B2 + 4 * pr + d
                f, r = 2 * pr + (d >> 1), 2 * (d & 1)
                p(f'v_lshlrev_b32 v{B(f)+r}, 16, v{src}')
                p(f'v_and_b32 v{B(f)+r+1}, s63, v{src}')
        for d in range(2):
            src = K2_B2 + 8 + d
            p(f'v_lshlrev_b32 v{B(4)+2*d}, 16, v{src}')
            p(f'v_and_b32 v{B(4)+2*d+1}, s63, v{src}')

    def pairs(lo_hi):
        for dst, src in lo_hi:
            p(f'v_mov_b32 v{dst}, v{src}')
            p(f'v_mov_b32 v{dst+1}, v{src}')

    def store(res):
        for pr in range(2):
            for u in range(2):
                a = res(2 * pr + u)
                p(f'v_cvt_pk_bf16_f32 v{O+4*pr+2*u}, v{a}, v{a+1}')
                p(f'v_cvt_pk_bf16_f32 v{O+4*pr+2*u+1}, v{a+2}, v{a+3}')
            p(f'buffer_store_dwordx4 v[{O+4*pr}:{O+4*pr+3}], v242, s[28:31], 0 offen offset:{64*pr} {CFG["OUTF"]}')
        a = res(4)
        p(f'v_cvt_pk_bf16_f32 v{O+8}, v{a}, v{a+1}')
        p(f'v_cvt_pk_bf16_f32 v{O+9}, v{a+2}, v{a+3}')
        p(f'buffer_store_dwordx2 v[{O+8}:{O+9}], v243, s[28:31], 0 offen offset:128 {CFG["OUTF"]}')

    def finish():
        stamp(p, 3)
        if CFG['PROF']:
            prof_store(p, 4, 'K2', 12)
        p('s_endpgm')

    p.label('L_k2_red_a')
    common(0)
    set_flag(0)
    pairs([(GP, K2_G)])
    spin(16, [1, 2, 3], 'L_k2_spin_a')
    for f in range(5):
        p(f'ds_read_b128 v[{R1(f)}:{R1(f)+3}], v{K2_VL} offset:{f*1024}')
    for f in range(5):
        p(f's_waitcnt lgkmcnt({4-f})')
        for r in (0, 2):
            a = ACC(0, f) + r
            p(f'v_pk_fma_f32 v[{a}:{a+1}], v[{a}:{a+1}], v[{GP}:{GP+1}], v[{R1(f)+r}:{R1(f)+r+1}]')
    store(lambda f: ACC(0, f))
    finish()
    p.label('L_k2_red_b')
    for w in (1, 2, 3):
        if w < 3:
            p(f's_cmp_eq_u32 s{S_WAVE}, {w}')
            p(f's_cbranch_scc0 L_k2_red_b{w+1}')
        K2_LAST['b'](w)
        common(w)
        set_flag(w)
        unpack()
        pairs([(GP, K2_G), (OP, K2_G + 1), (O0, 245)])
        o1, o2 = [x for x in (1, 2, 3) if x != w]
        spin(0, [o1, o2], f'L_k2_spin_b{w}')
        sub = {1: [0, 1], 2: [2, 3], 3: [4]}[w]
        for j, f in enumerate(sub):
            p(f'ds_read_b128 v[{R3(j)}:{R3(j)+3}], v{K2_VL} offset:{o1*5120 + f*1024}')
            p(f'ds_read_b128 v[{R4(j)}:{R4(j)+3}], v{K2_VL} offset:{o2*5120 + f*1024}')
        for f in range(5):
            p(f'ds_read_b128 v[{R1(f)}:{R1(f)+3}], v{RB} offset:{o1*5120 + f*1024}')
            p(f'ds_read_b128 v[{R2(f)}:{R2(f)+3}], v{RB} offset:{o2*5120 + f*1024}')
        p('s_waitcnt lgkmcnt(10)')
        for j, f in enumerate(sub):
            for r in (0, 2):
                a = ACC(0, f) + r
                p(f'v_pk_add_f32 v[{R3(j)+r}:{R3(j)+r+1}], v[{R3(j)+r}:{R3(j)+r+1}], v[{R4(j)+r}:{R4(j)+r+1}]')
                p(f'v_pk_add_f32 v[{a}:{a+1}], v[{a}:{a+1}], v[{B(f)+r}:{B(f)+r+1}]')
            for r in (0, 2):
                a = ACC(0, f) + r
                p(f'v_pk_add_f32 v[{a}:{a+1}], v[{a}:{a+1}], v[{R3(j)+r}:{R3(j)+r+1}]')
                p(f'v_pk_mul_f32 v[{a}:{a+1}], v[{a}:{a+1}], v[{O0}:{O0+1}]')
        for j, f in enumerate(sub):
            p(f'ds_write_b128 v{K2_VL}, v[{ACC(0,f)}:{ACC(0,f)+3}] offset:{f*1024}')
        set_flag(4 + w)
        for f in range(5):
            for r in (0, 2):
                a = ACC(w, f) + r
                p(f'v_pk_add_f32 v[{R1(f)+r}:{R1(f)+r+1}], v[{R1(f)+r}:{R1(f)+r+1}], v[{R2(f)+r}:{R2(f)+r+1}]')
                p(f'v_pk_add_f32 v[{a}:{a+1}], v[{a}:{a+1}], v[{B(f)+r}:{B(f)+r+1}]')
            for r in (0, 2):
                a = ACC(w, f) + r
                p(f'v_pk_add_f32 v[{a}:{a+1}], v[{a}:{a+1}], v[{R1(f)+r}:{R1(f)+r+1}]')
                p(f'v_pk_mul_f32 v[{a}:{a+1}], v[{a}:{a+1}], v[{OP}:{OP+1}]')
        spin(0, [0], f'L_k2_spin_c{w}')
        for f in range(5):
            p(f'ds_read_b128 v[{AR(f)}:{AR(f)+3}], v{RB} offset:{f*1024}')
        for f in range(5):
            p(f's_waitcnt lgkmcnt({4-f})')
            for r in (0, 2):
                a = ACC(w, f) + r
                p(f'v_pk_fma_f32 v[{a}:{a+1}], v[{AR(f)+r}:{AR(f)+r+1}], v[{GP}:{GP+1}], v[{a}:{a+1}]')
        store(lambda f: ACC(w, f))
        finish()
        if w < 3:
            p.label(f'L_k2_red_b{w+1}')


def gen_k2():
    global K2_ACC
    NB = CFG['NBUF']
    assert NB * 36 + 80 <= 224
    K2_ACC = NB * 36
    p = Prog()
    p('s_cmp_ge_u32 s2, 256')
    p('s_cbranch_scc1 L_k2_end')
    p('s_load_dwordx2 s[4:5], s[0:1], 88')
    p('s_load_dwordx2 s[6:7], s[0:1], 72')
    p('s_load_dwordx2 s[8:9], s[0:1], 56')
    if CFG['PROF']:
        p('s_memrealtime s[88:89]')
        p('s_memtime s[82:83]')
    p('v_lshrrev_b32 v1, 6, v0')
    p('v_and_b32 v2, 63, v0')
    p(f'v_readfirstlane_b32 s{S_WAVE}, v1')
    p('s_and_b32 s52, s2, 7')
    p('s_lshr_b32 s53, s2, 3')
    if CFG['MAP2'] == '8x4':
        p('s_lshr_b32 s54, s52, 1')
        p('s_lshl_b32 s54, s54, 3')
        p('s_lshr_b32 s55, s53, 2')
        p('s_add_u32 s26, s54, s55')
        p('s_and_b32 s54, s52, 1')
        p('s_lshl_b32 s54, s54, 2')
        p('s_and_b32 s55, s53, 3')
        p('s_add_u32 s27, s54, s55')
    else:
        p('s_lshl_b32 s54, s52, 2')
        p('s_lshr_b32 s55, s53, 3')
        p('s_add_u32 s26, s54, s55')
        p('s_and_b32 s27, s53, 7')
    p(f's_cmp_eq_u32 s{S_WAVE}, 0')
    p('s_cbranch_scc0 L_k2_nopf')
    p('v_mov_b32 v10, v2')
    code_prefetch(p, 'L_k2_body', 'L_k2_end', CFG.get('K2_BYTES', 16384), 10, 255, 84, 'k2')
    p.label('L_k2_nopf')
    p.label('L_k2_body')
    p(f'v_lshlrev_b32 v{K2_VL}, 4, v2')
    p(f'v_add_u32 v{K2_VL2}, 4096, v{K2_VL}')
    p(f's_cmp_eq_u32 s{S_WAVE}, 0')
    p('s_mov_b32 s56, 20480')
    p('s_cselect_b32 s56, s56, 55296')
    p(f's_mov_b32 s57, {OA_OFF}')
    p(f's_cselect_b32 s57, s57, {H_OFF}')
    p(f's_mov_b32 s58, {WO_OFF}')
    p(f's_cselect_b32 s58, s58, {W2_OFF}')
    p('s_cselect_b32 s59, 20, 54')
    p(f's_mul_i32 s60, s{S_WAVE}, 18')
    p('s_cselect_b32 s60, 18, s60')
    p('s_sub_u32 s60, s60, 18')
    p('s_lshl_b32 s61, s26, 2')
    p('s_mul_i32 s61, s61, s56')
    p('s_add_u32 s61, s61, s57')
    p('s_lshl_b32 s62, s60, 10')
    p('s_add_u32 s20, s61, s62')
    p('s_mul_i32 s61, s27, s59')
    p('s_add_u32 s61, s61, s60')
    p('s_mul_i32 s61, s61, 5120')
    p('s_add_u32 s21, s61, s58')
    if CFG['ROT2']:
        p('s_add_u32 s34, s20, 16384')
        p('s_add_u32 s35, s21, 81920')
        if CFG['ROT2'] == 2:
            p('s_xor_b32 s62, s26, s27')
            p('s_and_b32 s62, s62, 1')
            p(f's_cmp_eq_u32 s{S_WAVE}, 0')
            p('s_cselect_b32 s63, 8, 9')
            p('s_mul_i32 s22, s62, s63')
        elif CFG['ROT2'] == 3:
            p('s_add_u32 s62, s26, s27')
            p('s_mul_i32 s63, s62, 43')
            p('s_lshr_b32 s63, s63, 7')
            p('s_mul_i32 s63, s63, 3')
            p('s_sub_u32 s62, s62, s63')
            p(f's_cmp_eq_u32 s{S_WAVE}, 0')
            p('s_cselect_b32 s63, 5, 6')
            p('s_mul_i32 s22, s62, s63')
        else:
            p('s_and_b32 s62, s26, 7')
            p('s_and_b32 s63, s27, 3')
            p('s_lshl_b32 s63, s63, 1')
            p('s_add_u32 s62, s62, s63')
            p(f's_cmp_eq_u32 s{S_WAVE}, 0')
            p('s_cselect_b32 s63, 16, 18')
            p('s_mul_i32 s62, s62, s63')
            p('s_lshr_b32 s22, s62, 3')
            p('s_cmp_ge_u32 s22, s63')
            p('s_cselect_b32 s62, s63, 0')
            p('s_sub_u32 s22, s22, s62')
        p('s_lshl_b32 s62, s22, 10')
        p('s_add_u32 s20, s20, s62')
        p('s_mul_i32 s62, s22, 5120')
        p('s_add_u32 s21, s21, s62')
    for t in range(4):
        p(f's_mul_i32 s62, s56, {t}')
        p(f'v_add_u32 v{K2_VA+t}, s62, v{K2_VL}')
    p('v_and_b32 v3, 15, v2')
    p('v_lshrrev_b32 v4, 4, v2')
    p('s_lshl_b32 s62, s26, 6')
    p(f's_lshl_b32 s63, s{S_WAVE}, 4')
    p('s_add_u32 s62, s62, s63')
    p('v_add_u32 v5, s62, v3')
    p('v_lshlrev_b32 v6, 3, v5')
    p(f'v_add_u32 v6, {G_OFF}, v6')
    p('s_mul_i32 s63, s27, 160')
    p('v_lshlrev_b32 v7, 4, v4')
    p('v_add_u32 v7, s63, v7')
    p('v_lshlrev_b32 v8, 3, v4')
    p('v_add_u32 v8, s63, v8')
    p('s_movk_i32 s63, 1280')
    p('v_mul_u32_u24 v5, s63, v5')
    p('v_add_u32 v242, v5, v7')
    p('v_add_u32 v243, v5, v8')
    if CFG['K2RED'] == 2:
        for r in range(4):
            p(f'v_mov_b32 v{214+r}, 0')
        p('v_mov_b32 v219, 81920')
        p('ds_write_b128 v219, v[214:217]')
        p('ds_write_b128 v219, v[214:217] offset:16')
    p('s_waitcnt lgkmcnt(0)')
    if CFG['K2RED'] == 2:
        p('s_barrier')
    srd(p, 12, 4, WS_USED)
    srd(p, 16, 8, 1280)
    srd(p, 28, 6, 2048 * 1280)
    stamp(p, 0)
    if CFG['K2RED'] == 2:
        p('s_lshl_b32 s62, s26, 6')
        p('v_add_u32 v9, s62, v3')
        p('v_lshlrev_b32 v9, 3, v9')
        p(f'v_add_u32 v9, {G_OFF}, v9')
        p('buffer_load_dwordx2 v[244:245], v9, s[12:15], 0 offen')
    if not CFG['GLATE']:
        k2_small_loads(p, 6, 7, 8)
    else:
        p('v_mov_b32 v246, v6')
        p('v_mov_b32 v247, v7')
        p('v_mov_b32 v248, v8')
    p(f's_cmp_eq_u32 s{S_WAVE}, 0')
    p('s_cbranch_scc0 L_k2_b')
    if CFG['K2PRIO']:
        p(f's_setprio {CFG["K2PRIO"]}')
    k2_stream(p, True)
    p.label('L_k2_b')
    k2_stream(p, False)
    if CFG['K2RED'] == 2:
        k2_reduce2(p)
        p.label('L_k2_end')
        p('s_endpgm')
        return p
    p.label('L_k2_reduce')
    stamp(p, 2)
    ACC = lambda t, f: K2_ACC + (t * 5 + f) * 4
    p(f's_mul_i32 s62, s{S_WAVE}, 5120')
    p(f'v_add_u32 v3, s62, v{K2_VL}')
    p('s_nop 7')
    p('v_add_u32 v4, 40960, v3')
    for t in range(4):
        for f in range(5):
            p(f'ds_write_b128 v{3 + (t >> 1)}, v[{ACC(t,f)}:{ACC(t,f)+3}] offset:{(t & 1)*20480 + f*1024}')
    p(f's_mul_i32 s62, s{S_WAVE}, 20480')
    p(f'v_add_u32 v250, s62, v{K2_VL}')
    p('s_waitcnt lgkmcnt(0)')
    p('s_barrier')
    R = lambda w, f: (w * 5 + f) * 4
    for f in range(5):
        for w in range(4):
            p(f'ds_read_b128 v[{R(w,f)}:{R(w,f)+3}], v250 offset:{w*5120 + f*1024}')
    p('s_mov_b32 s62, 0xffff0000')
    B = lambda f: 100 + 4 * f
    for pr in range(2):
        for d in range(4):
            src = K2_B2 + 4 * pr + d
            f, r = 2 * pr + (d >> 1), 2 * (d & 1)
            p(f'v_lshlrev_b32 v{B(f)+r}, 16, v{src}')
            p(f'v_and_b32 v{B(f)+r+1}, s62, v{src}')
    for d in range(2):
        src = K2_B2 + 8 + d
        p(f'v_lshlrev_b32 v{B(4)+2*d}, 16, v{src}')
        p(f'v_and_b32 v{B(4)+2*d+1}, s62, v{src}')
    p(f'v_mov_b32 v120, v{K2_G}')
    p(f'v_mov_b32 v121, v{K2_G}')
    p(f'v_mov_b32 v122, v{K2_G+1}')
    p(f'v_mov_b32 v123, v{K2_G+1}')
    for f in range(5):
        p(f's_waitcnt lgkmcnt({min(15, 16-4*f)})' if f < 4 else 's_waitcnt lgkmcnt(0)')
        if f == 0:
            p('s_waitcnt lgkmcnt(15)')
        for r in (0, 2):
            a, b1, b2_, b3 = R(0, f) + r, R(1, f) + r, R(2, f) + r, R(3, f) + r
            p(f'v_pk_add_f32 v[{b1}:{b1+1}], v[{b1}:{b1+1}], v[{b2_}:{b2_+1}]')
            p(f'v_pk_add_f32 v[{b3}:{b3+1}], v[{b3}:{b3+1}], v[{B(f)+r}:{B(f)+r+1}]')
            p(f'v_pk_mul_f32 v[{a}:{a+1}], v[{a}:{a+1}], v[120:121]')
            p(f'v_pk_add_f32 v[{b1}:{b1+1}], v[{b1}:{b1+1}], v[{b3}:{b3+1}]')
            p(f'v_pk_fma_f32 v[{a}:{a+1}], v[{b1}:{b1+1}], v[122:123], v[{a}:{a+1}]')
    O = 124
    for pr in range(2):
        for u in range(2):
            a = R(0, 2 * pr + u)
            p(f'v_cvt_pk_bf16_f32 v{O+4*pr+2*u}, v{a}, v{a+1}')
            p(f'v_cvt_pk_bf16_f32 v{O+4*pr+2*u+1}, v{a+2}, v{a+3}')
        p(f'buffer_store_dwordx4 v[{O+4*pr}:{O+4*pr+3}], v242, s[28:31], 0 offen offset:{64*pr} {CFG["OUTF"]}')
    a = R(0, 4)
    p(f'v_cvt_pk_bf16_f32 v{O+8}, v{a}, v{a+1}')
    p(f'v_cvt_pk_bf16_f32 v{O+9}, v{a+2}, v{a+3}')
    p(f'buffer_store_dwordx2 v[{O+8}:{O+9}], v243, s[28:31], 0 offen offset:128 {CFG["OUTF"]}')
    stamp(p, 3)
    if CFG['PROF']:
        prof_store(p, 4, 'K2', 12)
    p.label('L_k2_end')
    p('s_endpgm')
    return p


K2B_R = 4
K2B_STEP = 9216
K2B_SLOT = 4 * K2B_STEP
K2B_LDS = K2B_R * K2B_SLOT


def gen_k2b():
    R, SL, ST = K2B_R, K2B_SLOT, K2B_STEP
    stages = [('a', 4 * i, 4) for i in range(5)] + [('b', 4 * i, 4) for i in range(13)] + [('b', 52, 2)]
    NS = len(stages)
    p = Prog()
    p('s_cmp_ge_u32 s2, 256')
    p('s_cbranch_scc1 L_k2_end')
    p('s_load_dwordx2 s[4:5], s[0:1], 88')
    p('s_load_dwordx2 s[6:7], s[0:1], 72')
    p('s_load_dwordx2 s[8:9], s[0:1], 56')
    if CFG['PROF']:
        p('s_memrealtime s[88:89]')
        p('s_memtime s[82:83]')
    p('v_lshrrev_b32 v1, 6, v0')
    p('v_and_b32 v2, 63, v0')
    p(f'v_readfirstlane_b32 s{S_WAVE}, v1')
    p('s_and_b32 s52, s2, 7')
    p('s_lshr_b32 s53, s2, 3')
    if CFG['MAP2'] == '8x4':
        p('s_lshr_b32 s54, s52, 1')
        p('s_lshl_b32 s54, s54, 3')
        p('s_lshr_b32 s55, s53, 2')
        p('s_add_u32 s26, s54, s55')
        p('s_and_b32 s54, s52, 1')
        p('s_lshl_b32 s54, s54, 2')
        p('s_and_b32 s55, s53, 3')
        p('s_add_u32 s27, s54, s55')
    else:
        p('s_lshl_b32 s54, s52, 2')
        p('s_lshr_b32 s55, s53, 3')
        p('s_add_u32 s26, s54, s55')
        p('s_and_b32 s27, s53, 7')
    p('v_lshlrev_b32 v3, 4, v2')
    p(f's_cmp_ge_u32 s{S_WAVE}, 4')
    p('s_cbranch_scc0 L_k2_consumer')
    p(f's_sub_u32 s57, s{S_WAVE}, 4')
    p('s_mul_i32 s20, s27, 20')
    p('s_add_u32 s20, s20, s57')
    p('s_mul_i32 s20, s20, 5120')
    p(f's_add_u32 s20, s20, {WO_OFF}')
    p('s_mul_i32 s21, s27, 54')
    p('s_add_u32 s21, s21, s57')
    p('s_mul_i32 s21, s21, 5120')
    p(f's_add_u32 s21, s21, {W2_OFF}')
    p('s_lshl_b32 s54, s26, 2')
    p('s_mul_i32 s22, s54, 20')
    p('s_add_u32 s22, s22, s57')
    p('s_lshl_b32 s22, s22, 10')
    p(f's_add_u32 s22, s22, {OA_OFF}')
    p('s_mul_i32 s25, s54, 54')
    p('s_add_u32 s25, s25, s57')
    p('s_lshl_b32 s25, s25, 10')
    if H_OFF:
        p(f's_add_u32 s25, s25, {H_OFF}')
    p(f's_mul_i32 s58, s57, {ST}')
    p('v_add_u32 v4, 4096, v3')
    for u in range(4):
        p(f'v_add_u32 v{10+u}, {20480*u}, v3')
        p(f'v_add_u32 v{14+u}, {55296*u}, v3')
    p('s_waitcnt lgkmcnt(0)')
    srd(p, 12, 4, WS_USED)
    stamp(p, 0)

    def issue(j):
        part, s0, n = stages[j]
        slot = j % R
        if n < 4:
            p(f's_cmp_ge_u32 s57, {n}')
            p(f's_cbranch_scc1 L_k2_skip{j}')
        p(f's_add_u32 s23, s{20 if part == "a" else 21}, {s0*5120}')
        p(f's_add_u32 s24, s{22 if part == "a" else 25}, {s0*1024}') if False else None
        p(f's_add_u32 m0, s58, {slot*SL}')
        p(f's_add_u32 s59, s{22 if part == "a" else 25}, {s0*1024}')
        for f in range(4):
            p(f'buffer_load_dwordx4 v3, s[12:15], s23 offen offset:{1024*f} {CFG["K2LDF"]} lds')
        p(f's_add_u32 m0, s58, {slot*SL + 4096}')
        p('s_nop 0')
        p(f'buffer_load_dwordx4 v4, s[12:15], s23 offen {CFG["K2LDF"]} lds')
        for u in range(4):
            p(f's_add_u32 m0, s58, {slot*SL + 5120 + 1024*u}')
            p('s_nop 0')
            p(f'buffer_load_dwordx4 v{(10 if part == "a" else 14)+u}, s[12:15], s59 offen {CFG["K2LDF"]} lds')
        if n < 4:
            p.label(f'L_k2_skip{j}')

    for j in range(R - 1):
        issue(j)
    stamp(p, 1)
    for j in range(NS):
        hi = min(j + R - 2, NS - 1)
        newer = 9 * (hi - j)
        if hi == NS - 1 and j < NS - 1:
            newer -= 9
        p(f's_waitcnt vmcnt({max(newer, 0)})')
        p('s_barrier')
        if j + R - 1 < NS:
            issue(j + R - 1)
    stamp(p, 2)
    stamp(p, 3)
    if CFG['PROF']:
        prof_store(p, 4, 'K2', 12)
    p('s_endpgm')
    p.label('L_k2_consumer')
    p(f's_cmp_eq_u32 s{S_WAVE}, 0')
    p('s_cbranch_scc0 L_k2_nopf')
    p('v_mov_b32 v10, v2')
    code_prefetch(p, 'L_k2_body', 'L_k2_end', CFG.get('K2_BYTES', 12288), 10, 255, 84, 'k2')
    p.label('L_k2_nopf')
    p.label('L_k2_body')
    ACA, ACB = 0, 20
    WR = lambda q, f: 40 + 20 * q + 4 * f
    AR = lambda q: 120 + 4 * q
    G, B2 = 230, 232
    p('s_lshl_b32 s54, s26, 2')
    p(f's_add_u32 s54, s54, s{S_WAVE}')
    p('v_and_b32 v4, 15, v2')
    p('v_lshrrev_b32 v5, 4, v2')
    p('s_lshl_b32 s55, s54, 4')
    p('v_add_u32 v6, s55, v4')
    p('v_lshlrev_b32 v7, 3, v6')
    p(f'v_add_u32 v7, {G_OFF}, v7')
    p('s_mul_i32 s55, s27, 160')
    p('v_lshlrev_b32 v8, 4, v5')
    p('v_add_u32 v8, s55, v8')
    p('v_lshlrev_b32 v9, 3, v5')
    p('v_add_u32 v9, s55, v9')
    p('v_mul_u32_u24 v6, 1280, v6')
    p('v_add_u32 v242, v6, v8')
    p('v_add_u32 v243, v6, v9')
    p(f's_lshl_b32 s55, s{S_WAVE}, 10')
    p('s_add_u32 s55, s55, 5120')
    for sl in range(R):
        p(f'v_add_u32 v{244+sl}, {sl*SL}, v3')
        p(f'v_add_u32 v{250+sl}, s55, v{244+sl}')
    p(f's_lshr_b32 s55, s{S_WAVE}, 1')
    p('s_lshl_b32 s55, s55, 10')
    p(f's_and_b32 s56, s{S_WAVE}, 1')
    p('s_lshl_b32 s56, s56, 3')
    p('s_add_u32 s55, s55, s56')
    p('s_add_u32 s55, s55, 5120')
    p('v_add_u32 v249, s55, v3')
    p('s_waitcnt lgkmcnt(0)')
    srd(p, 12, 4, WS_USED)
    srd(p, 16, 8, 1280)
    srd(p, 28, 6, 2048 * 1280)
    stamp(p, 0)
    p(f'buffer_load_dwordx2 v[{G}:{G+1}], v7, s[12:15], 0 offen')
    p(f'buffer_load_dwordx4 v[{B2}:{B2+3}], v8, s[16:19], 0 offen')
    p(f'buffer_load_dwordx4 v[{B2+4}:{B2+7}], v8, s[16:19], 0 offen offset:64')
    p(f'buffer_load_dwordx2 v[{B2+8}:{B2+9}], v9, s[16:19], 0 offen offset:128')
    for r in range(40):
        p(f'v_mov_b32 v{r}, 0')
    stamp(p, 1)
    for j, (part, s0, n) in enumerate(stages):
        slot = j % R
        tail = (part == 'a' and s0 == 16)
        assert not tail or slot == 0
        p('s_barrier')
        log = []
        for q in range(n):
            if tail:
                p(f'ds_read_b64 v[{AR(q)}:{AR(q)+1}], v249 offset:{q*ST}')
                p(f'ds_read_b64 v[{AR(q)+2}:{AR(q)+3}], v249 offset:{q*ST + 2048}')
                log += [('a', q), ('a', q)]
            else:
                p(f'ds_read_b128 v[{AR(q)}:{AR(q)+3}], v{250+slot} offset:{q*ST}')
                log.append(('a', q))
            for f in range(5):
                p(f'ds_read_b128 v[{WR(q,f)}:{WR(q,f)+3}], v{244+slot} offset:{q*ST + f*1024}')
                log.append(('w', q, f))
        known = max(0, len(log) - 15) if len(log) > 15 else 0
        done = -1
        for q in range(n):
            acc0 = ACA if part == 'a' else ACB
            for f in range(5):
                idx = log.index(('w', q, f))
                if idx > done:
                    left = len(log) - 1 - idx
                    w = min(left, 15)
                    p(f's_waitcnt lgkmcnt({w})')
                    done = len(log) - 1 - w
                p(f'v_mfma_f32_16x16x32_bf16 v[{acc0+4*f}:{acc0+4*f+3}], v[{WR(q,f)}:{WR(q,f)+3}], v[{AR(q)}:{AR(q)+3}], v[{acc0+4*f}:{acc0+4*f+3}]')
    stamp(p, 2)
    p('s_mov_b32 s62, 0xffff0000')
    p('s_waitcnt vmcnt(0)')
    Bf = lambda f: 100 + 4 * f
    for pr in range(2):
        for d in range(4):
            s_ = B2 + 4 * pr + d
            f, r = 2 * pr + (d >> 1), 2 * (d & 1)
            p(f'v_lshlrev_b32 v{Bf(f)+r}, 16, v{s_}')
            p(f'v_and_b32 v{Bf(f)+r+1}, s62, v{s_}')
    for d in range(2):
        s_ = B2 + 8 + d
        p(f'v_lshlrev_b32 v{Bf(4)+2*d}, 16, v{s_}')
        p(f'v_and_b32 v{Bf(4)+2*d+1}, s62, v{s_}')
    p(f'v_mov_b32 v120, v{G}')
    p(f'v_mov_b32 v121, v{G}')
    p(f'v_mov_b32 v122, v{G+1}')
    p(f'v_mov_b32 v123, v{G+1}')
    for f in range(5):
        for r in (0, 2):
            a, b = ACA + 4 * f + r, ACB + 4 * f + r
            p(f'v_pk_add_f32 v[{b}:{b+1}], v[{b}:{b+1}], v[{Bf(f)+r}:{Bf(f)+r+1}]')
            p(f'v_pk_mul_f32 v[{a}:{a+1}], v[{a}:{a+1}], v[120:121]')
    for f in range(5):
        for r in (0, 2):
            a, b = ACA + 4 * f + r, ACB + 4 * f + r
            p(f'v_pk_fma_f32 v[{a}:{a+1}], v[{b}:{b+1}], v[122:123], v[{a}:{a+1}]')
    O = 124
    for pr in range(2):
        for u in range(2):
            a = ACA + 4 * (2 * pr + u)
            p(f'v_cvt_pk_bf16_f32 v{O+4*pr+2*u}, v{a}, v{a+1}')
            p(f'v_cvt_pk_bf16_f32 v{O+4*pr+2*u+1}, v{a+2}, v{a+3}')
        p(f'buffer_store_dwordx4 v[{O+4*pr}:{O+4*pr+3}], v242, s[28:31], 0 offen offset:{64*pr} {CFG["OUTF"]}')
    a = ACA + 16
    p(f'v_cvt_pk_bf16_f32 v{O+8}, v{a}, v{a+1}')
    p(f'v_cvt_pk_bf16_f32 v{O+9}, v{a+2}, v{a+3}')
    p(f'buffer_store_dwordx2 v[{O+8}:{O+9}], v243, s[28:31], 0 offen offset:128 {CFG["OUTF"]}')
    stamp(p, 3)
    if CFG['PROF']:
        prof_store(p, 4, 'K2', 12)
    p.label('L_k2_end')
    p('s_endpgm')
    return p


def gen_k2t():
    NW, INF, MODE = CFG['NW'], CFG['INF'], CFG['TMODE']
    p = Prog()
    p('s_cmp_ge_u32 s2, 256')
    p('s_cbranch_scc1 L_k2_end')
    p('s_load_dwordx2 s[4:5], s[0:1], 88')
    p('s_memrealtime s[88:89]')
    p('s_memtime s[82:83]')
    p('v_lshrrev_b32 v1, 6, v0')
    p('v_and_b32 v2, 63, v0')
    p(f'v_readfirstlane_b32 s{S_WAVE}, v1')
    p('s_and_b32 s52, s2, 7')
    p('s_lshr_b32 s53, s2, 3')
    p('s_lshr_b32 s54, s52, 1')
    p('s_lshl_b32 s54, s54, 3')
    p('s_lshr_b32 s55, s53, 2')
    p('s_add_u32 s26, s54, s55')
    p('s_and_b32 s54, s52, 1')
    p('s_lshl_b32 s54, s54, 2')
    p('s_and_b32 s55, s53, 3')
    p('s_add_u32 s27, s54, s55')
    p('v_lshlrev_b32 v3, 4, v2')
    p('v_add_u32 v4, 4096, v3')
    nst = 72 // NW
    p(f's_mul_i32 s60, s{S_WAVE}, {nst}')
    p('s_cmp_ge_u32 s60, 54')
    p('s_cselect_b32 s61, 1, 0')
    p('s_cselect_b32 s56, 20480, 0')
    p('s_cselect_b32 s56, s56, 55296')
    p(f's_mov_b32 s57, {OA_OFF}')
    p(f's_cselect_b32 s57, s57, {H_OFF}')
    p(f's_mov_b32 s58, {WO_OFF}')
    p(f's_cselect_b32 s58, s58, {W2_OFF}')
    p('s_cselect_b32 s59, 20, 54')
    p('s_cselect_b32 s62, 54, 0')
    p('s_sub_u32 s60, s60, s62')
    p('s_lshl_b32 s61, s26, 2')
    p('s_mul_i32 s61, s61, s56')
    p('s_add_u32 s61, s61, s57')
    p('s_lshl_b32 s62, s60, 10')
    p('s_add_u32 s20, s61, s62')
    p('s_mul_i32 s61, s27, s59')
    p('s_add_u32 s61, s61, s60')
    p('s_mul_i32 s61, s61, 5120')
    p('s_add_u32 s21, s61, s58')
    for t in range(4):
        p(f's_mul_i32 s62, s56, {t}')
        p(f'v_add_u32 v{10+t}, s62, v3')
    p(f's_mul_i32 s63, s{S_WAVE}, 16384')
    p('s_waitcnt lgkmcnt(0)')
    srd(p, 12, 4, WS_USED)
    stamp(p, 0)
    stamp(p, 1)
    n = 0
    for s in range(nst):
        for f in range(9):
            r = 20 + 4 * (n % 48)
            if MODE == 'dma':
                p(f's_add_u32 m0, s63, {(n % 16) * 1024}')
                p('s_nop 0')
            a, so, off = (3, 's21', 1024 * f) if f < 4 else ((4, 's21', 0) if f == 4 else (10 + f - 5, 's20', 0))
            if MODE == 'dma':
                if f < 4 and f > 0:
                    p(f's_sub_u32 m0, m0, {off}')
                    p('s_nop 0')
                p(f'buffer_load_dwordx4 v{a}, s[12:15], {so} offen offset:{off} lds')
            else:
                p(f'buffer_load_dwordx4 v[{r}:{r+3}], v{a}, s[12:15], {so} offen offset:{off}')
            p(f's_waitcnt vmcnt({INF})')
            n += 1
        p('s_add_u32 s20, s20, 1024')
        p('s_add_u32 s21, s21, 5120')
    p('s_waitcnt vmcnt(0)')
    stamp(p, 2)
    stamp(p, 3)
    prof_store(p, 4, 'K2', 12)
    p.label('L_k2_end')
    p('s_endpgm')
    return p


def gen_kpf():
    p = Prog()
    p('s_cmp_ge_u32 s2, 256')
    p('s_cbranch_scc1 L_kpf_end')
    p('s_load_dwordx2 s[4:5], s[0:1], 88')
    p('v_and_b32 v2, 63, v0')
    p('v_lshrrev_b32 v1, 6, v0')
    p('s_and_b32 s52, s2, 7')
    p('s_lshr_b32 s53, s2, 3')
    p('v_lshlrev_b32 v3, 7, v0')
    p('s_waitcnt lgkmcnt(0)')
    srd(p, 12, 4, WS_USED)
    if CFG['KPF'] == 1:
        p('s_and_b32 s54, s52, 1')
        p(f's_mul_i32 s55, s54, {4*54*5120}')
        p(f's_add_u32 s55, s55, {W2_OFF}')
        p('s_lshl_b32 s56, s53, 15')
        p('s_add_u32 s57, s55, s56')
        p('buffer_load_dword v10, v3, s[12:15], s57 offen')
        p('s_add_u32 s57, s57, 57344')
        p('buffer_load_dword v10, v3, s[12:15], s57 offen')
        p(f's_mul_i32 s55, s54, {4*20*5120}')
        p(f's_add_u32 s55, s55, {WO_OFF}')
        p('s_mul_i32 s56, s53, 12800')
        p('s_add_u32 s57, s55, s56')
        p('buffer_load_dword v10, v3, s[12:15], s57 offen')
    else:
        p('s_lshr_b32 s54, s52, 1')
        p(f's_mul_i32 s55, s54, {32*55296}')
        p('s_mul_i32 s56, s53, 55296')
        p('s_add_u32 s57, s55, s56')
        p('buffer_load_dword v10, v3, s[12:15], s57 offen')
        p('s_add_u32 s57, s57, 22528')
        p('buffer_load_dword v10, v3, s[12:15], s57 offen')
        p(f's_mul_i32 s55, s54, {32*20480}')
        p(f's_add_u32 s55, s55, {OA_OFF}')
        p('s_mul_i32 s56, s53, 20480')
        p('s_add_u32 s57, s55, s56')
        p('buffer_load_dword v10, v3, s[12:15], s57 offen')
    p('s_waitcnt vmcnt(0)')
    p.label('L_kpf_end')
    p('s_endpgm')
    return p


HEADER = """; gated mix of (sliding dilated attention branch) and (GELU MLP branch), S=2048 D=640 H=32 Dh=20 F=1728, bf16.
; @launch kernel=gm_k1_kernel grid=(256,1,1) block=(512,1,1) lds=%d
; @launch kernel=gm_k2_kernel grid=(256,1,1) block=(256,1,1) lds=%d
.amdgcn_target "amdgcn-amd-amdhsa--gfx950"
"""

KD = """.amdhsa_kernel %s
  .amdhsa_next_free_vgpr %d
  .amdhsa_next_free_sgpr 102
  .amdhsa_accum_offset %d
  .amdhsa_group_segment_fixed_size 0
  .amdhsa_kernarg_size 96
  .amdhsa_user_sgpr_count 2
  .amdhsa_user_sgpr_kernarg_segment_ptr 1
  .amdhsa_system_sgpr_workgroup_id_x 1
  .amdhsa_float_denorm_mode_32 3
.end_amdhsa_kernel
"""


def main():
    k1 = gen_k1()
    k2 = gen_k2b() if CFG['K2V'] == 2 else (gen_k2t() if CFG['K2V'] == 3 else gen_k2())
    t1, t2 = k1.finish(), k2.finish()
    s = HEADER % (K1_LDS, K2B_LDS if CFG['K2V'] == 2 else K2_LDS)
    if CFG['K2V'] == 3:
        s = s.replace('kernel=gm_k2_kernel grid=(256,1,1) block=(256,1,1) lds=%d' % K2_LDS, 'kernel=gm_k2_kernel grid=(256,1,1) block=(%d,1,1) lds=131072' % (64 * CFG['NW']))
    if CFG['K2V'] == 2:
        s = s.replace('kernel=gm_k2_kernel grid=(256,1,1) block=(256,1,1)', 'kernel=gm_k2_kernel grid=(256,1,1) block=(512,1,1)')
    if CFG['K2TWICE']:
        ln = [l for l in s.split('\n') if 'kernel=gm_k2_kernel' in l][0]
        s = s.replace(ln, ln + '\n' + ln)
    s += '.text\n'
    for name, t in (('gm_k1_kernel', t1), ('gm_k2_kernel', t2)):
        s += f'.globl {name}\n.p2align 8\n.type {name},@function\n{name}:\n{t}'
    s += '.p2align 8\n.fill 64, 4, 0xbf800000\n' if False else ''
    if CFG['KPF']:
        s += '.globl gm_pf_kernel\n.p2align 8\n.type gm_pf_kernel,@function\ngm_pf_kernel:\n' + gen_kpf().finish()
        ln = [l for l in s.split('\n') if 'kernel=gm_k2_kernel' in l][0]
        s = s.replace(ln, '; @launch kernel=gm_pf_kernel grid=(256,1,1) block=(256,1,1) lds=0\n' + ln)
    s += '.section .rodata,"a"\n.p2align 6\n'
    s += KD % ('gm_k1_kernel', 256, 256)
    s += '.p2align 6\n'
    s += KD % ('gm_k2_kernel', 256, 256)
    if CFG['KPF']:
        s += '.p2align 6\n' + KD % ('gm_pf_kernel', 64, 64)
    out = CFG.get('OUT', f'cdna_kernels/{NAME}.s')
    open(out, 'w').write(s)
    print('written', out, len(s), 'bytes; nops inserted k1', k1.nops_inserted, 'k2', k2.nops_inserted)


if __name__ == '__main__':
    main()
```

```python
import sys, os, math, struct
sys.path.insert(0, os.path.dirname(os.path.abspath(__file__)))
from asmlib import Prog, vr, ar, sr

NAME = 'gated_mix__sliding_local_dilated__dense_activation_gelu__prompt'

CFG = dict(MAP1='mixed', MAP2='8x4', NBUF=3, PROF=0, NOMFMA=0, NOLOAD=0, NODS=0, STF='sc1', LDF='', ULDF='nt', PFF='', PF=0, TT=0, ROT=1, ROT2=0, K2TWICE=0, K2V=1, M35=1, PFSLICE=1, K2OWNPF=1, MROT=0, KW=4, KX=4, HALF=0, ZVT=0, DEDUP=1, K2RED=2, K2PRIO=0, USPF=0, TJ=7, TL=0, GLATE=0, STFO='sc1', STFH='sc1', ALIGN=0, UNITS_FFN=1, NFU=3, PEEL=1, SWAPW=0, LDFIRST=2, PRIO=0, K2ORD=0, KPF=0, LDF0='nt', NT_ST=0, ZOOB=1, TEARLY=0, K2PF=1, DA=12, NW=4, INF=32, TMODE='reg', K2NOMFMA=0, K2LDF='', OUTF='')
for a in sys.argv[1:]:
    if '=' in a:
        k, v = a.split('=')
        CFG[k] = int(v) if v.lstrip('-').isdigit() else v.replace('+', ' ')

H_OFF = 0
OA_OFF = H_OFF + 128 * 54 * 1024
W2_OFF = OA_OFF + 128 * 20 * 1024
WO_OFF = W2_OFF + 8 * 54 * 5120
G_OFF = WO_OFF + 8 * 20 * 5120
WS_USED = G_OFF + 2048 * 8
PROF_OFF = 16 << 20

XREG = 144 * 128
WROW = 480
WREG = 64 * WROW
SLOT = XREG + WREG
XFLAG = 3 * 49152 + 15360
SCR = 3 * SLOT
K1_LDS = 163840


def f32(x):
    return struct.unpack('<I', struct.pack('<f', x))[0]


def hexf(x):
    return '0x%08x' % f32(x)


S_AX, S_WQKV, S_WO, S_BX, S_W1, S_B1, S_W2, S_B2, S_GW, S_WS = 4, 6, 8, 10, 12, 14, 16, 18, 20, 22
S_WAVE, S_TYPE, S_RB, S_CG = 24, 25, 26, 27
SRD_X, SRD_W, SRD_I4, SRD_WS, SRD_A, SRD_B = 28, 32, 36, 40, 44, 48


def srd(p, base, ptr, nbytes):
    p(f's_mov_b32 s{base}, s{ptr}')
    p(f's_mov_b32 s{base+1}, s{ptr+1}')
    p(f's_mov_b32 s{base+2}, {nbytes}')
    p(f's_mov_b32 s{base+3}, 0x20000')


def code_prefetch(p, lbl_from, lbl_to, nbytes, vtmp, vdst, s, tag, sidx=None):
    p(f's_getpc_b64 s[{s}:{s+1}]')
    p.label(f'L_pc_{tag}')
    p(f's_add_u32 s{s}, s{s}, {lbl_from}-L_pc_{tag}')
    p(f's_addc_u32 s{s+1}, s{s+1}, 0')
    if CFG['PFSLICE']:
        n = (nbytes + 32 * 128 - 1) // (32 * 128)
        p(f'v_min_u32 v{vtmp}, {n-1}, v{vtmp}')
        p(f's_lshr_b32 s{s+2}, s2, 3')
        p(f's_and_b32 s{s+2}, s{s+2}, 31')
        p(f's_mul_i32 s{s+2}, s{s+2}, {n}')
        p(f'v_add_u32 v{vtmp}, s{s+2}, v{vtmp}')
        p(f'v_lshlrev_b32 v{vtmp}, 7, v{vtmp}')
        p(f'v_min_u32 v{vtmp}, {lbl_to}-{lbl_from}, v{vtmp}')
        p(f'global_load_dword v{vdst}, v{vtmp}, s[{s}:{s+1}]')
        return 1
    p(f'v_lshlrev_b32 v{vtmp}, 6, v{vtmp}')
    n = (nbytes + 4095) // 4096
    for j in range(n):
        p(f'v_min_u32 v{vtmp+1}, {lbl_to}-{lbl_from}, v{vtmp}')
        p(f'global_load_dword v{vdst}, v{vtmp+1}, s[{s}:{s+1}]')
        if j + 1 < n:
            p(f'v_add_u32 v{vtmp}, 4096, v{vtmp}')
    return n


def stamp(p, idx, sbase=90):
    if CFG['PROF']:
        p(f'{"s_memtime" if CFG["PROF"] in (2, 3, 6) else "s_memrealtime"} s[{sbase+2*idx}:{sbase+2*idx+1}]')


def k1_decode(p):
    p('s_and_b32 s52, s2, 7')
    p('s_lshr_b32 s53, s2, 3')
    if CFG['MAP1'] == 'mixed':
        p(f's_lshr_b32 s{S_TYPE}, s53, 4')
        p('s_and_b32 s54, s53, 15')
        p('s_lshr_b32 s55, s52, 1')
        p('s_lshl_b32 s55, s55, 2')
        p('s_lshr_b32 s56, s54, 2')
        p(f's_add_u32 s{S_RB}, s55, s56')
        p('s_and_b32 s55, s52, 1')
        p('s_lshl_b32 s55, s55, 2')
        p('s_and_b32 s56, s54, 3')
        p(f's_add_u32 s{S_CG}, s55, s56')
    elif CFG['MAP1'] == 'm82':
        p(f's_lshr_b32 s{S_TYPE}, s53, 4')
        p('s_lshr_b32 s55, s52, 2')
        p('s_lshl_b32 s55, s55, 3')
        p('s_and_b32 s56, s53, 7')
        p(f's_add_u32 s{S_RB}, s55, s56')
        p('s_and_b32 s55, s52, 3')
        p('s_lshl_b32 s55, s55, 1')
        p('s_bfe_u32 s56, s53, 0x10003')
        p(f's_add_u32 s{S_CG}, s55, s56')
    else:
        p(f's_lshr_b32 s{S_TYPE}, s52, 2')
        p('s_and_b32 s54, s52, 3')
        p('s_lshr_b32 s55, s54, 1')
        p('s_lshl_b32 s55, s55, 3')
        p('s_lshr_b32 s56, s53, 2')
        p(f's_add_u32 s{S_RB}, s55, s56')
        p('s_and_b32 s55, s54, 1')
        p('s_lshl_b32 s55, s55, 2')
        p('s_and_b32 s56, s53, 3')
        p(f's_add_u32 s{S_CG}, s55, s56')


def k1_loader(p, attn):
    tag = 'A' if attn else 'F'
    rowstride = 3840 if attn else 3456
    VOFF = 10
    VL = 2
    p.label(f'L_loader_{tag}')
    p(f's_sub_u32 s57, s{S_WAVE}, 4')
    p(f'v_lshrrev_b32 v3, 3, v{VL}')
    p('s_lshl_b32 s58, s57, 3')
    p('v_add_u32 v3, s58, v3')
    p(f's_lshl_b32 s59, s{S_RB}, 7')
    if attn:
        p('s_sub_u32 s59, s59, 16')
    p('v_add_u32 v3, s59, v3')
    p('s_and_b32 s58, s57, 1')
    p('s_lshl_b32 s58, s58, 2')
    p(f'v_lshrrev_b32 v4, 4, v{VL}')
    p('v_add_u32 v4, s58, v4')
    p(f'v_and_b32 v5, 7, v{VL}')
    p('v_xor_b32 v4, v4, v5')
    p('v_lshlrev_b32 v4, 4, v4')
    p('s_movk_i32 s58, 1280')
    p('s_movk_i32 s59, 2047')
    for i in range(5):
        p(f'v_add_u32 v5, {32*i}, v3')
        if attn and i == 0:
            p('v_max_i32 v5, 0, v5')
        if (not attn) and i == 4:
            p('v_min_u32 v5, s59, v5')
        p('v_mul_u32_u24 v5, s58, v5')
        if (not attn) and i == 4 and CFG['DEDUP']:
            p(f'v_mov_b32 v6, v{VOFF}')
        else:
            p(f'v_add_u32 v{VOFF+i if i < 4 else 6}, v5, v4')
    p('s_lshl_b32 s58, s57, 6')
    p(f'v_add_u32 v7, s58, v{VL}')
    p(f's_mov_b32 s60, {rowstride}')
    p('v_mov_b32 v9, 0x7ffffff0')
    if attn:
        p(f's_mul_i32 s61, s{S_CG}, 160')
    else:
        p(f's_mul_i32 s61, s{S_CG}, 448')

    def w_offset(i):
        base = 64 * (4 * i - 18)
        dst = VOFF + i if i > 4 else 8
        if base >= 0:
            p(f'v_add_u32 v3, {base}, v7')
        else:
            p(f'v_subrev_u32 v3, {-base}, v7')
            p('v_max_i32 v3, 0, v3')
        p('v_mul_u32_u24 v4, 2185, v3')
        p('v_lshrrev_b32 v4, 16, v4')
        p('v_mul_u32_u24 v5, 30, v4')
        p('v_sub_u32 v5, v3, v5')
        p('v_lshrrev_b32 v3, 1, v4')
        p('v_xor_b32 v3, v3, v4')
        p('v_and_b32 v3, 4, v3')
        p('v_mul_u32_u24 v3, 3, v3')
        p('v_xor_b32 v4, v3, v4')
        p('v_mul_u32_u24 v4, s60, v4')
        if attn:
            p('v_mul_u32_u24 v3, 205, v5')
            p('v_lshrrev_b32 v3, 11, v3')
            p('v_mul_u32_u24 v3, 1120, v3')
            p('v_lshlrev_b32 v5, 4, v5')
            p('v_add3_u32 v5, v5, v3, s61')
        else:
            if CFG['DEDUP']:
                p('v_min_u32 v5, 27, v5')
            p('v_lshlrev_b32 v5, 4, v5')
            p('v_add_u32 v5, s61, v5')
            if CFG['ZOOB']:
                p('v_cmp_lt_u32 vcc, 3440, v5')
            else:
                p('v_min_u32 v5, 3440, v5')
        p(f'v_add_u32 v{dst}, v4, v5')
        if (not attn) and CFG['ZOOB']:
            p(f'v_cndmask_b32 v{dst}, v{dst}, v9, vcc')
        if i == 4:
            p('s_cmp_lt_u32 s57, 2')
            p('s_cselect_b64 vcc, -1, 0')
            p(f'v_cndmask_b32 v{VOFF+4}, v8, v6, vcc')

    p('s_waitcnt lgkmcnt(0)')
    if attn:
        srd(p, SRD_X, S_AX, 2048 * 1280)
        srd(p, SRD_W, S_WQKV, 640 * 3840)
    else:
        srd(p, SRD_X, S_AX, 2048 * 1280)
        srd(p, SRD_W, S_W1, 640 * 3456)
    p('s_cmp_lt_u32 s57, 2')
    for k in range(3):
        p(f's_cselect_b32 s{SRD_I4+k}, s{SRD_X+k}, s{SRD_W+k}')
    p(f's_mov_b32 s{SRD_I4+3}, 0x20000')
    p('s_movk_i32 s73, 128')
    p('s_cselect_b32 s73, s73, %d' % (64 * rowstride))
    if CFG['ROT']:
        if CFG['MAP1'] == 'mixed' and CFG['MROT']:
            p(f's_and_b32 s79, s{S_RB}, 3')
            if CFG['MROT'] // 10 == 4:
                p('s_mul_i32 s79, s79, 5')
                p('s_lshr_b32 s79, s79, 1')
            elif CFG['MROT'] // 10 == 2:
                p('s_lshr_b32 s79, s79, 1')
                p('s_mul_i32 s79, s79, 5')
            p(f's_and_b32 s80, s{S_CG}, 3')
            p(f's_lshl_b32 s81, s{S_TYPE}, 2')
            p('s_add_u32 s80, s80, s81')
            if CFG['MROT'] % 10 == 8:
                p('s_lshr_b32 s81, s80, 2')
                p('s_add_u32 s80, s80, s81')
            elif CFG['MROT'] % 10 == 4:
                p('s_lshr_b32 s80, s80, 1')
                p('s_mul_i32 s80, s80, 5')
                p('s_lshr_b32 s80, s80, 1')
            elif CFG['MROT'] % 10 == 2:
                p('s_lshr_b32 s80, s80, 2')
                p('s_mul_i32 s80, s80, 5')
        else:
            p(f's_and_b32 s79, s{S_RB}, 7')
            if CFG['KW'] == 8:
                p('s_lshr_b32 s80, s79, 2')
                p('s_add_u32 s79, s79, s80')
            elif CFG['KW'] == 4:
                p('s_lshr_b32 s79, s79, 1')
                p('s_mul_i32 s79, s79, 5')
                p('s_lshr_b32 s79, s79, 1')
            elif CFG['KW'] == 2:
                p('s_lshr_b32 s79, s79, 2')
                p('s_mul_i32 s79, s79, 5')
            elif CFG['KW'] == 3:
                p('s_mul_i32 s79, s79, 43')
                p('s_lshr_b32 s79, s79, 7')
                p('s_mul_i32 s79, s79, 10')
                p('s_mul_i32 s79, s79, 43')
                p('s_lshr_b32 s79, s79, 7')
            elif CFG['KW'] == 41:
                p('s_and_b32 s79, s79, 3')
                p('s_mul_i32 s79, s79, 5')
                p('s_lshr_b32 s79, s79, 1')
            elif CFG['KW'] == 5:
                p('s_mul_i32 s79, s79, 5')
                p('s_lshr_b32 s79, s79, 2')
                p('s_andn2_b32 s79, s79, 1')
            if CFG['MAP1'] == 'spec':
                p(f's_and_b32 s80, s{S_CG}, 3')
            else:
                p(f's_and_b32 s80, s{S_CG}, 1')
                p(f's_lshl_b32 s81, s{S_TYPE}, 1')
                p('s_add_u32 s80, s80, s81')
            if CFG['KX'] == 4:
                p('s_mul_i32 s80, s80, 5')
                p('s_lshr_b32 s80, s80, 1')
            elif CFG['KX'] == 3:
                p('s_mul_i32 s80, s80, 3')
            elif CFG['KX'] == 2:
                p('s_lshr_b32 s80, s80, 1')
                p('s_mul_i32 s80, s80, 5')
            else:
                p('s_mov_b32 s80, 0')
        p('s_add_u32 s79, s79, s80')
        p('s_cmp_ge_u32 s79, 10')
        p('s_cselect_b32 s80, 10, 0')
        p('s_sub_u32 s79, s79, s80')
    else:
        p('s_mov_b32 s79, 0')
    p('s_lshl_b32 s74, s79, 7')
    p(f's_mul_i32 s75, s79, {64*rowstride}')
    p('s_mul_i32 s76, s79, s73')
    p('s_lshl_b32 s77, s57, 10')

    def issue_stage(st, lazy=False):
        slot = st % 3
        ldf = CFG['LDF0'] if st < CFG['NT_ST'] else CFG['LDF']
        for i in range(12):
            if lazy and i >= 4:
                w_offset(i)
            p(f's_add_u32 m0, s77, {slot*SLOT + i*4096}')
            if i < 4:
                if i == 0:
                    p('s_nop 0')
                p(f'buffer_load_dwordx4 v{VOFF+i}, s[{SRD_X}:{SRD_X+3}], s74 offen {ldf} lds')
            elif i == 4:
                p(f'buffer_load_dwordx4 v{VOFF+i}, s[{SRD_I4}:{SRD_I4+3}], s76 offen {ldf} lds')
            else:
                p(f'buffer_load_dwordx4 v{VOFF+i}, s[{SRD_W}:{SRD_W+3}], s75 offen {ldf} lds')
        p('s_add_u32 s74, s74, 128')
        p(f's_add_u32 s75, s75, {64*rowstride}')
        p('s_add_u32 s76, s76, s73')
        if CFG['ROT']:
            p('s_add_u32 s79, s79, 1')
            p('s_cmp_eq_u32 s79, 10')
            for r in (79, 74, 75, 76):
                p(f's_cselect_b32 s{r}, 0, s{r}')

    stamp(p, 0)
    issue_stage(0, lazy=True)
    if not CFG['HALF']:
        issue_stage(1)
    UF = CFG['UNITS_FFN']
    scr_base = SLOT if (UF and not attn) else SCR

    def unit_decode(sfx):
        p('s_and_b32 s64, s62, 7')
        p('s_lshr_b32 s65, s62, 3')
        p('s_lshl_b32 s66, s65, 5')
        p('s_mov_b32 s67, 16')
        p('s_mov_b32 s68, 4')
        p('s_mul_i32 s69, s64, 54')
        p('s_add_u32 s69, s69, s65')
        p('s_mul_i32 s69, s69, 5120')
        p(f's_add_u32 s69, s69, {W2_OFF}')
        p('s_mov_b32 s70, 0')
        p('s_cmp_lt_u32 s65, 54')
        p(f's_cbranch_scc1 L_unit_done_{tag}{sfx}')
        p('s_sub_u32 s65, s65, 54')
        p('s_mov_b32 s70, 1')
        p('s_mul_i32 s69, s64, 20')
        p('s_add_u32 s69, s69, s65')
        p('s_mul_i32 s69, s69, 5120')
        p(f's_add_u32 s69, s69, {WO_OFF}')
        p('s_mul_i32 s66, s65, 40')
        p('s_mov_b32 s67, 20')
        p('s_cmp_lt_u32 s65, 16')
        p(f's_cbranch_scc1 L_unit_done_{tag}{sfx}')
        p('s_sub_u32 s65, s65, 16')
        p('s_mul_i32 s66, s65, 160')
        p('s_add_u32 s66, s66, 16')
        p('s_mov_b32 s67, 80')
        p('s_mov_b32 s68, 20')
        p.label(f'L_unit_done_{tag}{sfx}')
        p('s_mul_i32 s71, s64, 160')
        p('s_movk_i32 s58, 1280')
        for i in range(5):
            p(f'v_add_u32 v3, {64*i}, v{VL}')
            p('v_mul_u32_u24 v4, 6554, v3')
            p('v_lshrrev_b32 v4, 16, v4')
            p('v_mul_u32_u24 v5, 10, v4')
            p('v_sub_u32 v5, v3, v5')
            p('v_lshlrev_b32 v5, 4, v5')
            p('v_add_u32 v5, s71, v5')
            p('v_lshrrev_b32 v3, 4, v4')
            p('v_mul_u32_u24 v3, s67, v3')
            p('v_bfe_u32 v6, v4, 2, 2')
            p('v_mul_u32_u24 v6, s68, v6')
            p('v_and_b32 v4, 3, v4')
            p('v_add3_u32 v3, v3, v6, v4')
            p('v_add_u32 v3, s66, v3')
            p('v_mul_u32_u24 v3, s58, v3')
            p(f'v_add_u32 v{22+i}, v3, v5')

    def unit_srd():
        p('s_cmp_eq_u32 s70, 0')
        p(f's_cselect_b32 s{SRD_A}, s{S_W2}, s{S_WO}')
        p(f's_cselect_b32 s{SRD_A+1}, s{S_W2+1}, s{S_WO+1}')
        p(f's_mov_b32 s{SRD_A+2}, {1728*1280}')
        p(f's_cselect_b32 s{SRD_A+2}, s{SRD_A+2}, {640*1280}')
        p(f's_mov_b32 s{SRD_A+3}, 0x20000')

    do_units = True
    NFU = CFG['NFU']
    always = UF and not attn and NFU == 4
    if UF:
        p(f's_lshl_b32 s62, s{S_RB}, 3')
        p(f's_add_u32 s62, s62, s{S_CG}')
        p('s_lshl_b32 s63, s57, 7')
        p('s_add_u32 s62, s62, s63')
        if not attn:
            p(f's_cmp_lt_u32 s57, {NFU}')
            p('s_cselect_b32 s63, 1, 0')
        else:
            p(f's_add_u32 s62, s62, {128*NFU}')
            p('s_cmp_lt_u32 s62, 592')
            p('s_cselect_b32 s63, 1, 0')
            p('s_cmp_lt_u32 s57, 3')
            p('s_cselect_b32 s63, s63, 0')
    else:
        p('s_lshl_b32 s62, s57, 8')
        p('s_add_u32 s62, s62, s2')
        p('s_cmp_lt_u32 s62, 592')
        p('s_cselect_b32 s63, 1, 0')
        p('s_cmp_lt_u32 s57, 3')
        p('s_cselect_b32 s63, s63, 0')
    if do_units:
        unit_decode('')
        p(f'v_lshrrev_b32 v3, 2, v{VL}')
        p('v_mul_u32_u24 v3, 160, v3')
        p('s_mul_i32 s72, s57, 5120')
        p(f's_add_u32 s72, s72, {scr_base}')
        p('v_add_u32 v3, s72, v3')
        p(f'v_and_b32 v4, 3, v{VL}')
        p('v_lshl_add_u32 v27, v4, 4, v3')
        p('v_lshl_add_u32 v28, v4, 3, v3')
        p(f'v_lshlrev_b32 v29, 4, v{VL}')
        p('v_add_u32 v30, 4096, v29')
    if not attn:
        p(f's_lshl_b32 s58, s{S_RB}, 3')
        p(f's_add_u32 s58, s58, s{S_CG}')
        p('s_lshl_b32 s58, s58, 4')
        p('s_lshl_b32 s59, s57, 2')
        p('s_add_u32 s58, s58, s59')
        p(f'v_lshrrev_b32 v3, 4, v{VL}')
        p('v_add_u32 v31, s58, v3')
        p('s_movk_i32 s58, 1280')
        p('v_mul_u32_u24 v3, s58, v31')
        p(f'v_and_b32 v4, 15, v{VL}')
        p('v_lshlrev_b32 v33, 4, v4')
        p('v_add_u32 v32, v3, v33')
    srd(p, SRD_WS, S_WS, WS_USED)
    if do_units:
        unit_srd()
    GX, GW = 40, 60
    gate = (not attn)
    TG = 10 if gate else 0
    if gate:
        srd(p, SRD_B, S_GW, 1280)

    def unit_loads():
        for i in range(5):
            p(f's_add_u32 m0, s72, {i*1024}')
            p('s_nop 0')
            p(f'buffer_load_dwordx4 v{22+i}, s[{SRD_A}:{SRD_A+3}], 0 offen {CFG["ULDF"]} lds')

    def unit_finish():
        for f in range(5):
            a, off = (27, [0, 8, 64, 72][f]) if f < 4 else (28, 128)
            p(f'ds_read_b64_tr_b16 v[{84+4*f}:{85+4*f}], v{a} offset:{off}')
            p(f'ds_read_b64_tr_b16 v[{86+4*f}:{87+4*f}], v{a} offset:{off+2560}')
        for f in range(5):
            p(f's_waitcnt lgkmcnt({8-2*f})')
            if f < 4:
                p(f'buffer_store_dwordx4 v[{84+4*f}:{87+4*f}], v29, s[{SRD_WS}:{SRD_WS+3}], s69 offen offset:{1024*f} {CFG["STF"]}')
            else:
                p(f'buffer_store_dwordx4 v[{84+4*f}:{87+4*f}], v30, s[{SRD_WS}:{SRD_WS+3}], s69 offen {CFG["STF"]}')

    def tail_loads():
        if not do_units:
            return
        if always:
            unit_loads()
        else:
            p('s_cmp_eq_u32 s63, 0')
            p(f's_cbranch_scc1 L_nounit_ld_{tag}')
            unit_loads()
            p.label(f'L_nounit_ld_{tag}')
        if gate:
            for j in range(5):
                p(f'buffer_load_dwordx4 v[{GX+4*j}:{GX+4*j+3}], v32, s[{SRD_X}:{SRD_X+3}], 0 offen offset:{256*j}')
                p(f'buffer_load_dwordx4 v[{GW+4*j}:{GW+4*j+3}], v33, s[{SRD_B}:{SRD_B+3}], 0 offen offset:{256*j}')

    def unit_prefetch(grp):
        if not (CFG['USPF'] and do_units):
            return
        hi, mid = grp >> 2, grp & 3
        p('s_cmp_eq_u32 s63, 0')
        p(f's_cbranch_scc1 L_uspf{grp}_{tag}')
        p(f's_mul_i32 s99, s67, {hi}')
        p(f's_mul_i32 s98, s68, {mid}')
        p('s_add_u32 s99, s99, s98')
        p('s_add_u32 s99, s99, s66')
        p('s_mul_i32 s99, s99, 1280')
        p('s_add_u32 s99, s99, s71')
        for r in range(4):
            p(f's_load_dword s56, s[{SRD_A}:{SRD_A+1}], s99 offset:{1280*r}')
            p(f's_load_dword s56, s[{SRD_A}:{SRD_A+1}], s99 offset:{1280*r + 156}')
        p.label(f'L_uspf{grp}_{tag}')

    def wait_vm(n_nounit, n_unit, uid):
        if always:
            n_nounit = n_unit
        if n_nounit == n_unit:
            p(f's_waitcnt vmcnt({n_unit})')
            return
        p('s_cmp_eq_u32 s63, 0')
        p(f's_cbranch_scc1 L_w{uid}a_{tag}')
        p(f's_waitcnt vmcnt({n_unit})')
        p(f's_branch L_w{uid}b_{tag}')
        p.label(f'L_w{uid}a_{tag}')
        p(f's_waitcnt vmcnt({n_nounit})')
        p.label(f'L_w{uid}b_{tag}')

    if CFG['HALF']:
        p('s_waitcnt vmcnt(3)')
        p('s_barrier')
        issue_stage(1)
        p('s_waitcnt vmcnt(12)')
    elif CFG['TEARLY']:
        tail_loads()
        wait_vm(12 + TG, 12 + TG + 5, 'i')
    else:
        p('s_waitcnt vmcnt(12)')
    stamp(p, 1)
    TJ = CFG['TJ'] if attn else 7
    p('s_barrier')
    issue_stage(2)
    unit_prefetch(0)
    for j in range(9):
        if CFG['TEARLY']:
            if j == 0:
                wait_vm(12 + TG, 12 + TG + 5, j)
            else:
                p('s_waitcnt vmcnt(%d)' % (12 if j <= 7 else 0))
        elif j <= TJ:
            p('s_waitcnt vmcnt(12)')
        elif j == 7:
            wait_vm(12 + TG, 12 + TG + 5, j)
        else:
            wait_vm(TG, TG + 5, j)
        p('s_barrier')
        if j + 3 <= 9 and not CFG['NOLOAD']:
            issue_stage(j + 3)
        if j <= 6:
            unit_prefetch(j + 1)
        if j == TJ and not CFG['TEARLY']:
            tail_loads()
        if j == 3 and CFG['TEARLY'] and gate:
            gate_job(p, GX, GW, store=False)
    stamp(p, 2)
    if CFG['K2PF']:
        p('s_cmp_eq_u32 s57, 3')
        p(f's_cbranch_scc0 L_nok2pf_{tag}')
        p(f'v_mov_b32 v34, v{VL}')
        code_prefetch(p, 'gm_k2_kernel', 'L_k2_end', 16384, 34, 255, 84, 'k2pf' + tag)
        p.label(f'L_nok2pf_{tag}')
    if do_units:
        p('s_waitcnt vmcnt(0) lgkmcnt(0)')
        if always:
            unit_finish()
        else:
            p('s_cmp_eq_u32 s63, 0')
            p(f's_cbranch_scc1 L_nounit_{tag}')
            unit_finish()
            p.label(f'L_nounit_{tag}')
    if gate:
        if CFG['TEARLY']:
            gate_store(p)
        else:
            gate_job(p, GX, GW)
    stamp(p, 3)
    if CFG['PROF']:
        prof_store(p, 4, 'LD' + tag, SRD_WS)
    p('s_endpgm')


def prof_debug(p, n, tag, sbase=90):
    p('s_waitcnt lgkmcnt(0) vmcnt(0)')
    p('s_and_b32 s86, s2, 127')
    p('s_cmp_eq_u32 s86, 0')
    p(f's_cbranch_scc0 L_pd_{tag}')
    p(f's_and_b32 s86, s{S_WAVE}, 3')
    p('s_cmp_eq_u32 s86, 0')
    p(f's_cbranch_scc0 L_pd_{tag}')
    p('s_load_dwordx2 s[76:77], s[0:1], 80')
    p('s_waitcnt lgkmcnt(0)')
    p('s_mov_b32 s78, 256')
    p('s_mov_b32 s79, 0x20000')
    p('s_lshr_b32 s86, s2, 7')
    p('s_lshl_b32 s86, s86, 1')
    p(f's_lshr_b32 s85, s{S_WAVE}, 2')
    p('s_add_u32 s86, s86, s85')
    p('s_lshl_b32 s86, s86, 4')
    p('v_mov_b32 v1, 0')
    for i in range(n):
        p(f's_sub_u32 s85, s{sbase+2*i}, s88')
        p('v_mov_b32 v0, s85')
        p(f'buffer_store_dword v0, v1, s[76:79], s86 offen offset:{4*i}')
    p('s_waitcnt vmcnt(0)')
    p.label(f'L_pd_{tag}')


_pd = [0]


def prof_collect(p, srdws):
    p('s_waitcnt lgkmcnt(0) vmcnt(0)')
    p(f's_or_b32 s86, s2, s{S_WAVE}')
    p('s_cmp_eq_u32 s86, 0')
    p('s_cbranch_scc0 L_pc5')
    p('s_load_dwordx2 s[76:77], s[0:1], 80')
    p(f's_mov_b32 s{srdws+2}, 0x10000000')
    p('v_mbcnt_lo_u32_b32 v0, -1, 0')
    p('v_mbcnt_hi_u32_b32 v0, -1, v0')
    p('v_lshrrev_b32 v1, 2, v0')
    p('v_and_b32 v2, 3, v0')
    p('v_lshlrev_b32 v2, 2, v2')
    p('v_cmp_eq_u32 vcc, 1, v1')
    p('v_mov_b32 v3, 0')
    p('v_mov_b32 v4, 256')
    p('v_cndmask_b32 v3, v3, v4, vcc')
    p('v_cmp_eq_u32 vcc, 2, v1')
    p(f'v_mov_b32 v4, {128*8*64}')
    p('v_cndmask_b32 v3, v3, v4, vcc')
    p('v_add_u32 v3, v3, v2')
    p(f'v_add_u32 v3, {PROF_OFF}, v3')
    p(f'buffer_load_dword v5, v3, s[{srdws}:{srdws+3}], 0 offen')
    p(f'v_mov_b32 v6, {PROF_OFF + 60}')
    p(f'buffer_load_dword v7, v6, s[{srdws}:{srdws+3}], 0 offen')
    p('s_waitcnt vmcnt(0) lgkmcnt(0)')
    p('s_mov_b32 s78, 256')
    p('s_mov_b32 s79, 0x20000')
    p('v_sub_u32 v5, v5, v7')
    for ln, sr_ in ((12, 88), (13, 90), (14, 94), (15, 96)):
        p(f'v_mov_b32 v8, s{sr_}')
        p('v_sub_u32 v8, v8, v7')
        p(f'v_cmp_eq_u32 vcc, {ln}, v0')
        p('v_cndmask_b32 v5, v5, v8, vcc')
    p('v_lshlrev_b32 v0, 2, v0')
    p('v_cmp_gt_u32 vcc, 64, v0')
    p('s_and_saveexec_b64 s[84:85], vcc')
    p('buffer_store_dword v5, v0, s[76:79], 0 offen')
    p('s_waitcnt vmcnt(0)')
    p.label('L_pc5')


def prof_store(p, n, tag, srdws, sbase=90):
    if CFG['PROF'] == 5 and tag.startswith('K2'):
        return prof_collect(p, srdws)
    if CFG['PROF'] == 4:
        _pd[0] += 1
        return prof_debug(p, n, tag + str(_pd[0]), sbase)
    return prof_store_ws(p, n, tag, srdws, sbase)


def prof_store_ws(p, n, tag, srdws, sbase=90):
    p('s_memtime s[80:81]')
    p('s_memrealtime s[78:79]')
    p('s_waitcnt lgkmcnt(0) vmcnt(0)')
    p('s_sub_u32 s80, s80, s82')
    p('s_sub_u32 s78, s78, s88')
    p(f's_mov_b32 s{srdws+2}, 0x10000000')
    p(f's_lshl_b32 s86, s2, 3')
    p(f's_add_u32 s86, s86, s{S_WAVE}')
    p(f's_lshl_b32 s86, s86, 6')
    p(f's_add_u32 s86, s86, {PROF_OFF + (0 if not tag.startswith("K2") else (1 << 20))}')
    if CFG['PROF'] == 3:
        p(f's_lshl_b32 s85, s2, 3')
        p(f's_add_u32 s85, s85, s{S_WAVE}')
        p(f's_lshl_b32 s85, s85, 8')
        p(f's_add_u32 s85, s85, {PROF_OFF + (2 << 20)}')
        p('v_mbcnt_lo_u32_b32 v0, -1, 0')
        p('v_mbcnt_hi_u32_b32 v0, -1, v0')
        p('v_lshlrev_b32 v0, 2, v0')
        if not tag.startswith('K2'):
            p(f'buffer_store_dword v254, v0, s[{srdws}:{srdws+3}], s85 offen')
    p('v_mov_b32 v1, 0')
    p('v_mov_b32 v0, s88')
    p(f'buffer_store_dword v0, v1, s[{srdws}:{srdws+3}], s86 offen offset:60')
    p('v_mov_b32 v0, s80')
    p(f'buffer_store_dword v0, v1, s[{srdws}:{srdws+3}], s86 offen offset:56')
    p('v_mov_b32 v0, s78')
    p(f'buffer_store_dword v0, v1, s[{srdws}:{srdws+3}], s86 offen offset:52')
    for i in range(n):
        p(f'v_mov_b32 v0, s{sbase+2*i}')
        p(f'buffer_store_dword v0, v1, s[{srdws}:{srdws+3}], s86 offen offset:{4*i}')
    if CFG['PROF'] == 6 and tag == 'CA':
        for i, r in enumerate((72, 74, 76)):
            p(f'v_mov_b32 v0, s{r}')
            p(f'buffer_store_dword v0, v1, s[{srdws}:{srdws+3}], s86 offen offset:{16+4*i}')
    p('s_waitcnt vmcnt(0)')


def gate_store(p):
    p(f'buffer_store_dwordx2 v[38:39], v37, s[{SRD_WS}:{SRD_WS+3}], 0 offen {CFG["STF"]}')


def gate_job(p, GX, GW, store=True):
    T = 104
    p('v_mov_b32 v34, 0')
    p('v_mov_b32 v35, 0')
    p('v_mov_b32 v36, 0x3f803f80')
    p('s_mov_b32 s78, 0xffff0000')
    for d in range(20):
        x, w = GX + d, GW + d
        t = T + 6 * (d & 1)
        p(f'v_lshlrev_b32 v{t}, 16, v{x}')
        p(f'v_and_b32 v{t+1}, s78, v{x}')
        p(f'v_lshlrev_b32 v{t+2}, 16, v{w}')
        p(f'v_and_b32 v{t+3}, s78, v{w}')
        p(f'v_pk_mul_f32 v[{t}:{t+1}], v[{t}:{t+1}], v[{t+2}:{t+3}]')
        p(f'v_cvt_pk_bf16_f32 v{t+4}, v{t}, v{t+1}')
        acc = 34 + (d & 1)
        p(f'v_dot2_f32_bf16 v{acc}, v{t+4}, v36, v{acc}')
    p('v_add_f32 v34, v34, v35')
    for sh in (8, 4, 2, 1):
        p(f'v_add_f32_dpp v34, v34, v34 row_ror:{sh} row_mask:0xf bank_mask:0xf')
    p('v_cvt_pk_bf16_f32 v35, v34, v34')
    p('v_lshlrev_b32 v35, 16, v35')
    p(f'v_mul_f32 v35, {hexf(-math.log2(math.e))}, v35')
    p('v_exp_f32 v35, v35')
    p('v_add_f32 v35, 1.0, v35')
    p('v_rcp_f32 v35, v35')
    p('v_cvt_pk_bf16_f32 v35, v35, v35')
    p('v_lshlrev_b32 v38, 16, v35')
    p('v_sub_f32 v39, 1.0, v38')
    p('v_cvt_pk_bf16_f32 v39, v39, v39')
    p('v_lshlrev_b32 v39, 16, v39')
    p('v_lshlrev_b32 v37, 3, v31')
    p(f'v_add_u32 v37, {G_OFF}, v37')
    if store:
        gate_store(p)


A_QM = lambda h, t: 0 + (h * 4 + t) * 4
A_KM = lambda h, kt: 32 + (h * 5 + kt) * 4
A_QKT = lambda kt: 72 + 4 * kt
A_VM = lambda h, kt: 92 + (h * 5 + kt) * 4
A_VT = lambda kt: 132 + 4 * kt
WF = lambda f: 152 + 4 * f
XF = lambda b, t: 184 + 20 * b + 4 * t
V_X0, V_X1, V_W, V_WA, V_WB = 224, 225, 226, 227, 228
V_BPREV, V_BCUR, V_BFIRST, V_SEL = 232, 236, 240, 244
F_ACC = lambda f, t: (f * 4 + t) * 4


class LgkmTracker:
    def __init__(self, p):
        self.p = p
        self.q = []

    def issue(self, tag):
        self.q.append(tag)

    def need(self, tags):
        idx = -1
        for i, t in enumerate(self.q):
            if t in tags:
                idx = i
        if idx < 0:
            return
        n = len(self.q) - 1 - idx
        self.p(f's_waitcnt lgkmcnt({min(n, 15)})')
        keep = min(n, 15)
        self.q = self.q[len(self.q) - keep:] if keep else []

    def drain(self):
        self.p('s_waitcnt lgkmcnt(0)')
        self.q = []


def consumer_loop(p, attn, th=None):
    tag = ('A' if attn else 'F') + ('' if th is None else str(th))
    NT = 5 if attn else 4
    xoff = lambda t: 2048 * t
    if attn:
        kk = range(5) if th in (None, 0) else range(1, 5)
        vk = range(5) if th in (None, 1) else range(1, 5)
        if th == 1:
            xoff = lambda t: 0 if t == 0 else 8192 + 2048 * t
        tiles = []
        for h in range(2):
            tiles.append([(A_QM(h, t), t + 1, 'F') for t in range(4)])
        for h in range(2):
            tiles.append([(A_KM(h, k), k, 'F') for k in kk])
        tiles.append([(A_QKT(k), k, 'F') for k in kk])
        for h in range(2):
            tiles.append([(A_VM(h, k), k, 'T') for k in vk])
        tiles.append([(A_VT(k), k, 'T') for k in vk])
        waddr = [(V_W, 0), (V_W, 40), (V_W, 160), (V_W, 200), (V_WA, 0), (V_W, 320), (V_W, 360), (V_WB, 0)]
    else:
        tiles = [[(F_ACC(f, t), t, 'F') for t in range(4)] for f in range(7)]
        waddr = [(V_W, 32 * f) for f in range(6)] + [(V_WA, 0)]
    NF = len(tiles)

    lg = LgkmTracker(p)

    def rd_w(f, s):
        if CFG['NODS']:
            return
        a, off = waddr[f]
        off += s * 32 * WROW
        p(f'ds_read_b64_tr_b16 v[{WF(f)}:{WF(f)+1}], v{a} offset:{off}')
        lg.issue(('w', f))
        p(f'ds_read_b64_tr_b16 v[{WF(f)+2}:{WF(f)+3}], v{a} offset:{off + 8*WROW}')
        lg.issue(('w', f))

    def rd_x(t, s):
        if CFG['NODS']:
            return
        p(f'ds_read_b128 v[{XF(s,t)}:{XF(s,t)+3}], v{V_X1 if s else V_X0} offset:{2048*t}')
        lg.issue(('x', s, t))

    LAST = NF - 1

    def wreads(f, s):
        a, off = waddr[f]
        off += s * 32 * WROW
        return [(f'ds_read_b64_tr_b16 v[{WF(f)}:{WF(f)+1}], v{a} offset:{off}', ('w', f)),
                (f'ds_read_b64_tr_b16 v[{WF(f)+2}:{WF(f)+3}], v{a} offset:{off + 8*WROW}', ('w', f))]

    def xread(t, s):
        return (f'ds_read_b128 v[{XF(s,t)}:{XF(s,t)+3}], v{V_X1 if s else V_X0} offset:{xoff(t)}', ('x', s, t))

    def emit(item):
        if CFG['NODS']:
            return
        p(item[0])
        lg.issue(item[1])

    order_log = []

    def packing():
        cv = lambda d, a: f'v_cvt_pk_bf16_f32 v{d}, v{a}, v{a+1}'
        out = []
        for h in range(2):
            for t in range(4):
                b = A_QM(h, t)
                out += [(h, cv(b, b)), (h, cv(b + 1, b + 2))]
        for h in range(2):
            for kt in kk:
                b = A_KM(h, kt)
                out += [(2 + h, cv(b, b)), (2 + h, cv(b + 1, b + 2))]
        for kt in kk:
            t = A_QKT(kt)
            out += [(4, cv(t, t)), (4, cv(t + 1, t + 2))]
        for kt in kk:
            t, k0 = A_QKT(kt), A_KM(0, kt)
            out += [(4, f'v_mov_b32 v{k0+2}, v{t}'), (4, f'v_mov_b32 v{k0+3}, v{t+1}')]
        return out

    def step(s, dry=False, last=False, first=False):
        nxt = 1 - s
        q = wreads(LAST, s)
        xq = [xread(t, nxt) for t in range(NT)]
        held = []
        upd = [V_W, V_X0, V_X1, V_WA] + ([V_WB] if attn else [])
        pk = []
        if last:
            xq, upd = [], []
            pk = packing() if attn else []
        if first:
            xq = []
        zq = []
        for f in range(NF):
            if not dry:
                lg.need({('w', f)} | ({('x', s, t) for t in range(NT)} if f == 0 else set()))
                if attn and CFG['ZVT'] and f == LAST - 1:
                    lg.need({('w', LAST)})
                    zq = [f'v_cndmask_b32 v{WF(LAST)+k}, 0, v{WF(LAST)+k}, s[68:69]' for k in range(4)]
            for n, (acc, t, o) in enumerate(tiles[f]):
                w, x = f'v[{WF(f)}:{WF(f)+3}]', f'v[{XF(s,t)}:{XF(s,t)+3}]'
                a, b = (w, x) if o == 'F' else (x, w)
                if not CFG['NOMFMA'] and not dry:
                    p(f'v_mfma_f32_16x16x32_bf16 v[{acc}:{acc+3}], {a}, {b}, v[{acc}:{acc+3}]')
                item = None
                if q:
                    item = q.pop(0)
                elif xq and (s == 0 or f >= 2):
                    item = xq.pop(0)
                if item is not None:
                    if dry:
                        order_log.append(item)
                    else:
                        emit(item)
                if not dry and s == 0 and f == LAST and n == 1 and not first:
                    p(f's_add_u32 s53, s53, {SLOT}')
                    p(f's_cmp_eq_u32 s53, {3*SLOT}')
                if not dry and s == 0 and f == LAST and n == 2 and not first:
                    p(f's_cselect_b32 s54, s51, {SLOT}')
                    p('s_cselect_b32 s53, 0, s53')
                if not dry and s == 1 and item is None and upd and (f, n) >= (0, 2):
                    p(f'v_add_u32 v{upd[0]}, s54, v{upd[0]}')
                    upd.pop(0)
                if zq and not dry:
                    p(zq.pop(0))
                for _ in range(2 - (1 if (attn and CFG['ZVT'] and f == LAST - 1) else 0)):
                    if pk and pk[0][0] + 2 <= f:
                        p(pk.pop(0)[1])
            if f < LAST and not last and not first:
                rs = wreads(f, nxt)
                if s == 1 and f < 1:
                    held += rs
                elif s == 1 and f == 1:
                    assert not q
                    if not dry:
                        assert not upd
                        if CFG['PROF'] == 3:
                            p('s_memtime s[70:71]')
                        lg.drain()
                        if CFG['PROF'] == 3:
                            p('s_lshl_b32 m0, s52, 1')
                            p('s_nop 3')
                            p('v_writelane_b32 v254, s70, m0')
                            p('s_add_u32 s74, m0, 63')
                            p('s_and_b32 m0, s74, 63')
                            p('s_nop 3')
                            p('v_writelane_b32 v254, s72, m0')
                        if CFG['PEEL']:
                            p('s_barrier')
                        else:
                            p('s_cmp_eq_u32 s52, 9')
                            p(f's_cbranch_scc1 L_nobar_{tag}')
                            p('s_barrier')
                            p.label(f'L_nobar_{tag}')
                        if CFG['PROF'] == 3:
                            p('s_memtime s[72:73]')
                    q += held + rs
                    held = []
                else:
                    q += rs
        assert not q and not xq, (q, xq)
        for _, ins in pk:
            p(ins)

    step(1, dry=True)
    for item in order_log[2:]:
        emit(item)
    p('s_mov_b32 s52, 0')
    p('s_mov_b32 s53, 0')
    p(f's_mov_b32 s51, {(-2*SLOT) & 0xffffffff}')
    if CFG['HALF']:
        q_steady = list(lg.q)
        step(0, first=True)
        p('s_barrier')
        del order_log[:]
        step(0, dry=True)
        for item in order_log[2:]:
            emit(item)
        p(f's_add_u32 s53, s53, {SLOT}')
        p(f's_mov_b32 s54, {SLOT}')
        lg.drain()
        p(f's_branch L_mid_{tag}')
        lg.q = q_steady
    if CFG['ALIGN']:
        p(f'.p2align {CFG["ALIGN"]}')
    p.label(f'L_loop_{tag}')
    q_head = list(lg.q)
    step(0)
    if CFG['HALF']:
        p.label(f'L_mid_{tag}')
    step(1)
    q_end = list(lg.q)
    assert q_end == q_head, (q_end, q_head)
    p('s_add_u32 s52, s52, 1')
    p(f's_cmp_lt_u32 s52, {9 if CFG["PEEL"] else 10}')
    p(f's_cbranch_scc1 L_loop_{tag}')
    if CFG['PEEL']:
        step(0)
        step(1, last=True)
    lg.drain()


def check_loop_waits():
    pass


def tlb_touch(p, tag):
    if not CFG['TT']:
        return
    p(f's_cmp_eq_u32 s{S_WAVE}, 1')
    p(f's_cbranch_scc0 L_tt1{tag}')
    for i in range(7):
        p(f's_mov_b32 s70, {i << 21}')
        p(f's_load_dword s{71+i}, s[{S_WS}:{S_WS+1}], s70')
    p.label(f'L_tt1{tag}')
    p(f's_cmp_eq_u32 s{S_WAVE}, 2')
    p(f's_cbranch_scc0 L_tt2{tag}')
    p(f's_load_dword s71, s[{S_WO}:{S_WO+1}], 0')
    p(f's_load_dword s72, s[{S_W2}:{S_W2+1}], 0')
    p(f's_mov_b32 s70, {(1 << 21) + 4096}')
    p(f's_load_dword s73, s[{S_W2}:{S_W2+1}], s70')
    p(f's_load_dword s74, s[{S_GW}:{S_GW+1}], 0')
    p(f's_load_dword s75, s[{S_B2}:{S_B2+1}], 0')
    p('s_load_dword s76, s[100:101], 0')
    p('s_load_dword s77, s[100:101], s70')
    p.label(f'L_tt2{tag}')
    if CFG['TL']:
        p(f's_cmp_eq_u32 s{S_WAVE}, 3')
        p(f's_cbranch_scc0 L_tt3{tag}')
        for i in range(1, 10):
            p(f's_load_dword s{70+(i%8)}, s[{S_B2}:{S_B2+1}], {128*i}')
        for i in range(1, 10):
            p(f's_load_dword s{70+(i%8)}, s[{S_GW}:{S_GW+1}], {128*i}')
        p.label(f'L_tt3{tag}')


def prefetch_setup(p, attn):
    rowstride = 3840 if attn else 3456
    p(f's_lshl_b32 s57, s{S_WAVE}, 6')
    p('v_add_u32 v9, s57, v2')
    p(f's_and_b32 s57, s{S_RB}, 7')
    p('s_lshl_b32 s57, s57, 3')
    p('s_add_u32 s57, s57, 128')
    p(f's_mov_b32 s58, {rowstride}')
    if attn:
        p(f's_mul_i32 s59, s{S_CG}, 160')
        p('s_andn2_b32 s59, s59, 127')
        for rnd in range(2):
            p(f'v_add_u32 v3, {256*rnd}, v9')
            p('v_min_u32 v3, 383, v3')
            p('v_mul_u32_u24 v4, 1366, v3')
            p('v_lshrrev_b32 v4, 16, v4')
            p('v_mul_u32_u24 v5, 48, v4')
            p('v_sub_u32 v5, v3, v5')
            p('v_mul_u32_u24 v6, 43, v5')
            p('v_lshrrev_b32 v6, 8, v6')
            p('v_mul_u32_u24 v7, 6, v6')
            p('v_sub_u32 v7, v5, v7')
            p('v_lshl_add_u32 v4, v4, 6, v6')
            p('v_add_u32 v4, s57, v4')
            p('v_mul_u32_u24 v4, s58, v4')
            p('v_lshrrev_b32 v5, 1, v7')
            p('v_mul_u32_u24 v5, 1280, v5')
            p('v_and_b32 v7, 1, v7')
            p('v_lshl_add_u32 v5, v7, 7, v5')
            p(f'v_add3_u32 v{249+rnd}, v4, v5, s59')
    else:
        p(f's_mul_i32 s59, s{S_CG}, 448')
        p('s_andn2_b32 s59, s59, 127')
        p('v_lshrrev_b32 v4, 5, v9')
        p('v_bfe_u32 v6, v9, 2, 3')
        p('v_lshl_add_u32 v4, v4, 6, v6')
        p('v_add_u32 v4, s57, v4')
        p('v_mul_u32_u24 v4, s58, v4')
        p('v_and_b32 v7, 3, v9')
        p('v_lshlrev_b32 v7, 7, v7')
        p('v_add3_u32 v249, v4, v7, s59')
    p(f's_and_b32 s57, s{S_CG}, 1')
    p(f's_lshl_b32 s58, s{S_TYPE}, 1')
    p('s_add_u32 s57, s57, s58')
    p('s_lshl_b32 s57, s57, 5')
    p(f's_lshl_b32 s58, s{S_RB}, 7')
    p('s_add_u32 s57, s57, s58')
    p('v_and_b32 v4, 31, v9')
    p('v_add_u32 v4, s57, v4')
    p('v_mul_u32_u24 v4, 1280, v4')
    p('v_lshrrev_b32 v5, 5, v9')
    p('v_lshlrev_b32 v5, 7, v5')
    p('v_add3_u32 v251, v4, v5, 256' .replace(', 256', ', s99'))


def prefetch_issue(p, attn):
    if not CFG['PF']:
        return
    p(f'buffer_load_dword v255, v251, s[{SRD_X}:{SRD_X+3}], 0 offen {CFG["PFF"]}')
    p(f'buffer_load_dword v255, v249, s[{SRD_W}:{SRD_W+3}], 0 offen {CFG["PFF"]}')
    if attn:
        p(f'buffer_load_dword v255, v250, s[{SRD_W}:{SRD_W+3}], 0 offen {CFG["PFF"]}')


def attn_prologue(p):
    p(f's_and_b32 s55, s{S_WAVE}, 1')
    p(f's_lshr_b32 s56, s{S_WAVE}, 1')
    p('v_and_b32 v3, 15, v2')
    p('v_lshrrev_b32 v4, 4, v2')
    p('v_lshrrev_b32 v5, 1, v3')
    p('v_xor_b32 v5, v5, v4')
    p('v_lshlrev_b32 v5, 4, v5')
    p('v_lshl_add_u32 v5, v3, 7, v5')
    if CFG['M35']:
        p(f'v_mov_b32 v{V_X0}, v5')
    else:
        p('s_lshl_b32 s57, s56, 13')
        p(f'v_add_u32 v{V_X0}, s57, v5')
    p(f'v_xor_b32 v{V_X1}, 64, v{V_X0}')
    p('v_lshrrev_b32 v5, 5, v2')
    p('v_lshlrev_b32 v5, 4, v5')
    p('v_bfe_u32 v6, v2, 4, 1')
    p('v_lshl_add_u32 v5, v6, 2, v5')
    p('v_bfe_u32 v6, v2, 2, 2')
    p('v_add_u32 v5, v5, v6')
    p(f'v_mul_u32_u24 v5, {WROW}, v5')
    p('s_mul_i32 s57, s55, 80')
    p(f's_add_u32 s57, s57, {XREG}')
    p('v_add_u32 v5, s57, v5')
    p('v_and_b32 v6, 3, v2')
    p(f'v_lshl_add_u32 v{V_W}, v6, 3, v5')
    p('v_and_b32 v7, 1, v6')
    p('v_mul_u32_u24 v7, 40, v7')
    p('v_add_u32 v7, v7, v5')
    p('v_lshrrev_b32 v6, 1, v6')
    p('v_mul_u32_u24 v6, 160, v6')
    p(f'v_add3_u32 v{V_WA}, v7, v6, 32')
    p(f'v_add_u32 v{V_WB}, 352, v7')
    p('v_lshlrev_b32 v5, 2, v4')
    p('v_sub_u32 v5, v3, v5')
    p(f's_mov_b32 s58, {hexf(-1e30)}')
    p('v_mov_b32 v8, s58')
    p(f's_or_b32 s59, s{S_RB}, s56')
    p('s_cmp_eq_u32 s59, 0')
    p('s_cselect_b64 s[60:61], -1, 0')
    for r in range(4):
        p(f'v_subrev_u32 v6, {r}, v5')
        p('v_and_b32 v7, 1, v6')
        p('v_cmp_eq_u32 s[62:63], 0, v7')
        p('v_cmp_ge_i32 s[64:65], v6, 0')
        p('s_and_b64 s[66:67], s[62:63], s[64:65]')
        p('s_andn2_b64 s[68:69], s[62:63], s[64:65]')
        p(f'v_cndmask_b32 v{V_BCUR+r}, v8, 0, s[66:67]')
        p(f'v_cndmask_b32 v{V_BPREV+r}, v8, 0, s[68:69]')
        p(f'v_cndmask_b32 v{V_BFIRST+r}, v{V_BPREV+r}, v8, s[60:61]')
    p('v_and_b32 v7, 1, v3')
    p('v_cmp_eq_u32 s[62:63], 0, v7')
    for k, (lo, hi) in enumerate([(0x0c0c0100, 0x01000c0c), (0x0c0c0302, 0x03020c0c)]):
        p(f'v_mov_b32 v6, {hex(hi)}')
        p(f'v_mov_b32 v9, {hex(lo)}')
        p('v_cndmask_b32 v9, v6, v9, s[62:63]')
        p('v_sub_u32 v6, v5, v7')
        if k:
            p('v_subrev_u32 v6, 2, v6')
        p('v_cmp_ge_i32 s[64:65], v6, 0')
        p('v_mov_b32 v6, 0x0c0c0c0c')
        p(f'v_cndmask_b32 v{V_SEL+k}, v9, v6, s[64:65]')
        p(f'v_cndmask_b32 v{V_SEL+2+k}, v6, v9, s[64:65]')
    p('v_lshlrev_b32 v248, 4, v2')
    if CFG['M35']:
        p('s_lshl_b32 s57, s55, 13')
        p(f's_add_u32 s57, s57, {2*SLOT}')
        p('v_add_u32 v249, s57, v248')
        p('v_lshrrev_b32 v250, 1, v248')
        p('v_add_u32 v250, s57, v250')
        p('s_lshl_b32 s57, s55, 3')
        p(f's_add_u32 s57, s57, {XFLAG}')
        p('v_mov_b32 v251, s57')
        p('v_mov_b32 v252, 0')
        p('v_mov_b32 v253, 0')
        p('ds_write_b64 v251, v[252:253]')
    for r in range(152):
        p(f'v_mov_b32 v{r}, 0')


def attn_epilogue(p, th=None):
    cvt = lambda d, a: p(f'v_cvt_pk_bf16_f32 v{d}, v{a}, v{a+1}')
    tg = '' if th is None else str(th)
    kk = list(range(5)) if th in (None, 0) else [1, 2, 3, 4]
    vk = list(range(5)) if th in (None, 1) else [1, 2, 3, 4]
    p('s_nop 7')

    def pack_k(kts):
        if CFG['PEEL']:
            return
        for kt in kts:
            for h in range(2):
                b = A_KM(h, kt)
                cvt(b, b)
                cvt(b + 1, b + 2)
            t = A_QKT(kt)
            cvt(t, t)
            cvt(t + 1, t + 2)
        for kt in kts:
            t, k0 = A_QKT(kt), A_KM(0, kt)
            p(f'v_mov_b32 v{k0+2}, v{t}')
            p(f'v_mov_b32 v{k0+3}, v{t+1}')

    def tails_k(kts):
        for kt in kts:
            t, k0 = A_QKT(kt), A_KM(0, kt)
            p(f'v_permlane32_swap_b32 v{t}, v{k0+2}')
            p(f'v_permlane32_swap_b32 v{t+1}, v{k0+3}')

    def copy_k(kts):
        for kt in kts:
            k0, k1 = A_KM(0, kt), A_KM(1, kt)
            p(f'v_mov_b32 v{k1+2}, v{k0+2}')
            p(f'v_mov_b32 v{k1+3}, v{k0+3}')

    def pack_v():
        for kt in vk:
            for base, b in ((A_VM(0, 0), A_VM(0, kt)), (A_VM(1, 0), A_VM(1, kt)), (A_VT(0), A_VT(kt))):
                cvt(base + 2 * kt, b)
                cvt(base + 2 * kt + 1, b + 2)

    vbases = (A_VM(0, 0), A_VM(1, 0), A_VT(0))
    if th == 0:
        pack_k([4])
        pack_v()
        tails_k([4])
        rest = [0, 1, 2, 3]
        pack_k(rest[:1])
        copy_k([4])
        p(f'ds_write_b128 v249, v[{A_KM(0,4)}:{A_KM(0,4)+3}]')
        p(f'ds_write_b128 v249, v[{A_KM(1,4)}:{A_KM(1,4)+3}] offset:1024')
        for i, vb in enumerate(vbases):
            p(f'ds_write_b64 v250, v[{vb+8}:{vb+9}] offset:{2048 + 512*i}')
        pack_k(rest[1:])
        p('s_waitcnt lgkmcnt(0)')
        p('v_mov_b32 v252, 1')
        p('ds_write_b32 v251, v252')
        tails_k(rest)
    elif th == 1:
        pack_v()
        for i, vb in enumerate(vbases):
            p(f'ds_write_b64 v250, v[{vb}:{vb+1}] offset:{4096 + 512*i}')
        rest = [1, 2, 3, 4]
        pack_k(rest)
        p('s_waitcnt lgkmcnt(0)')
        p('v_mov_b32 v252, 1')
        p('ds_write_b32 v251, v252 offset:4')
        tails_k(rest)
    else:
        rest = [0, 1, 2, 3, 4]
        pack_k(rest)
        pack_v()
        tails_k(rest)
    for h in range(2):
        for t in range(4):
            b = A_QM(h, t)
            if not CFG['PEEL']:
                cvt(b, b)
                cvt(b + 1, b + 2)
    copy_k(rest)
    p('s_mov_b32 s60, 0x0000ffff')
    p('s_mov_b32 s61, 0')
    p('s_mov_b32 s62, 0xffff0000')
    p('s_mov_b32 s63, 0')
    for t in range(4):
        for h in range(2):
            q, x = A_QM(h, t), A_QKT(t + 1)
            p(f'v_cndmask_b32 v{q+2}, 0, v{x}, s[{60+2*h}:{61+2*h}]')
            p(f'v_cndmask_b32 v{q+3}, 0, v{x+1}, s[{60+2*h}:{61+2*h}]')
    S = lambda t, h: 152 + (t * 2 + h) * 8

    def qk(t):
        for h in range(2):
            q = A_QM(h, t)
            bp = V_BFIRST if t == 0 else V_BPREV
            kp, kc = A_KM(h, t), A_KM(h, t + 1)
            p(f'v_mfma_f32_16x16x32_bf16 v[{S(t,h)}:{S(t,h)+3}], v[{kp}:{kp+3}], v[{q}:{q+3}], v[{bp}:{bp+3}]')
            p(f'v_mfma_f32_16x16x32_bf16 v[{S(t,h)+4}:{S(t,h)+7}], v[{kc}:{kc+3}], v[{q}:{q+3}], v[{V_BCUR}:{V_BCUR+3}]')

    for t in (3, 2, 1):
        qk(t)
    if CFG['PROF'] == 6:
        p('s_memtime s[72:73]')
    if th is not None:
        p.label(f'L_xspin{th}')
        p(f'ds_read_b32 v252, v251 offset:{4 if th == 0 else 0}')
        p('s_waitcnt lgkmcnt(0)')
        p('v_readfirstlane_b32 s70, v252')
        p('s_cmp_eq_u32 s70, 0')
        p(f's_cbranch_scc1 L_xspin{th}')
        if th == 1:
            p(f'ds_read_b128 v[{A_KM(0,0)}:{A_KM(0,0)+3}], v249')
            p(f'ds_read_b128 v[{A_KM(1,0)}:{A_KM(1,0)+3}], v249 offset:1024')
        for i, vb in enumerate(vbases):
            p(f'ds_read_b64 v[{vb}:{vb+1}], v250 offset:{(2048 if th == 1 else 4096) + 512*i}')
        p('s_waitcnt lgkmcnt(0)')
    qk(0)
    if CFG['PROF'] == 6:
        p('s_memtime s[74:75]')
    cs = (20 ** -0.5) * math.log2(math.e)
    p(f's_mov_b32 s64, {hexf(cs)}')
    p(f's_mov_b32 s65, {hexf(cs)}')
    inst = [(t, h) for t in (3, 2, 1, 0) for h in range(2)]
    for (t, h) in inst:
        s = S(t, h)
        p(f'v_max3_f32 v{s}, v{s}, v{s+1}, v{s+4}')
        p(f'v_max3_f32 v{s+2}, v{s+2}, v{s+3}, v{s+6}')
    for (t, h) in inst:
        s = S(t, h)
        p(f'v_max_f32 v{s}, v{s}, v{s+5}')
        p(f'v_max_f32 v{s+1}, v{s+2}, v{s+7}')
    for (t, h) in inst:
        s = S(t, h)
        p(f'v_max_f32 v{s+2}, v{s}, v{s+1}')

    def cross(groups, op, mid):
        for (A, B, C, D) in groups:
            p(f'v_permlane32_swap_b32 v{A}, v{B}')
            p(f'v_permlane32_swap_b32 v{C}, v{D}')
        for (A, B, C, D) in groups:
            p(f'{op} v{A}, v{A}, v{B}')
            p(f'{op} v{C}, v{C}, v{D}')
        for (A, B, C, D) in groups:
            p(f'v_permlane16_swap_b32 v{A}, v{C}')
        for (A, B, C, D) in groups:
            p(f'{op} v{A}, v{A}, v{C}')
        for (A, B, C, D) in groups:
            mid(A)
        for (A, B, C, D) in groups:
            p(f'v_mov_b32 v{C}, v{A}')
        for (A, B, C, D) in groups:
            p(f'v_permlane16_swap_b32 v{A}, v{C}')
        for (A, B, C, D) in groups:
            p(f'v_mov_b32 v{B}, v{A}')
            p(f'v_mov_b32 v{D}, v{C}')
        for (A, B, C, D) in groups:
            p(f'v_permlane32_swap_b32 v{A}, v{B}')
            p(f'v_permlane32_swap_b32 v{C}, v{D}')

    grp = lambda o: [tuple(S(t, h) + o for (t, h) in inst[0:4]), tuple(S(t, h) + o for (t, h) in inst[4:8])]
    cross(grp(2), 'v_max_f32', lambda A: p(f'v_mul_f32 v{A}, s64, v{A}'))
    for (t, h) in inst:
        s = S(t, h)
        p(f'v_pk_fma_f32 v[{s}:{s+1}], v[{s}:{s+1}], s[64:65], v[{s+2}:{s+3}] op_sel_hi:[1,1,0] neg_lo:[0,0,1] neg_hi:[0,0,1]')
    for (t, h) in inst:
        s = S(t, h)
        p(f'v_exp_f32 v{s}, v{s}')
        p(f'v_exp_f32 v{s+1}, v{s+1}')
    for (t, h) in inst:
        s = S(t, h)
        p(f'v_add_f32 v{s+2}, v{s}, v{s+1}')
    cross(grp(2), 'v_add_f32', lambda A: p(f'v_rcp_f32 v{A}, v{A}'))
    for (t, h) in inst:
        s = S(t, h)
        p(f'v_pk_mul_f32 v[{s}:{s+1}], v[{s}:{s+1}], v[{s+2}:{s+3}] op_sel_hi:[1,0]')
    for (t, h) in inst:
        s = S(t, h)
        p(f'v_cvt_pk_bf16_f32 v{s+2}, v{s}, v{s+1}')
    if CFG['PROF'] == 6:
        p('s_memtime s[76:77]')

    def perm(i):
        s = S(*inst[i])
        for k in range(4):
            p(f'v_perm_b32 v{s+4+k}, v{s+2}, v{s+2}, v{V_SEL+k}')

    def pv(i):
        t, h = inst[i]
        s = S(t, h)
        va, vt = A_VM(h, 0) + 2 * t, A_VT(0) + 2 * t
        om, ot = A_QM(h, t), A_KM(h, t)
        p(f'v_mfma_f32_16x16x32_bf16 v[{om}:{om+3}], v[{va}:{va+3}], v[{s+4}:{s+7}], 0')
        p(f'v_mfma_f32_16x16x32_bf16 v[{ot}:{ot+3}], v[{vt}:{vt+3}], v[{s+4}:{s+7}], 0')

    def pack_main(t):
        for h in range(2):
            o = A_QM(h, t)
            d = S(t, 0) + 2 * h
            p(f'v_cvt_pk_bf16_f32 v{d}, v{o}, v{o+1}')
            p(f'v_cvt_pk_bf16_f32 v{d+1}, v{o+2}, v{o+3}')
        d = S(t, 0)
        p(f's_add_u32 s68, s66, {t*20480}')
        p(f'buffer_store_dwordx4 v[{d}:{d+3}], v248, s[{SRD_WS}:{SRD_WS+3}], s68 offen {CFG["STFO"]}')

    def pack_tail(t):
        d = S(t & 2, 1) + 2 * (t & 1)
        o0, o1 = A_KM(0, t), A_KM(1, t)
        for rr in range(4):
            p(f'v_cndmask_b32 v{o0+rr}, v{o0+rr}, v{o1+rr}, s[62:63]')
        p(f'v_cvt_pk_bf16_f32 v{d}, v{o0}, v{o0+1}')
        p(f'v_cvt_pk_bf16_f32 v{d+1}, v{o0+2}, v{o0+3}')

    perm(0)
    perm(1)
    for i in range(8):
        pv(i)
        if i + 2 < 8:
            perm(i + 2)
        if i in (5, 7):
            pass
    for t in (3, 2):
        pack_main(t)
    for t in (3, 2):
        pack_tail(t)
    pack_main(1)
    pack_tail(1)
    pack_main(0)
    pack_tail(0)
    p('s_mov_b32 exec_hi, 0')
    for pr in range(2):
        d = S(2 * pr, 1)
        p(f's_add_u32 s68, s67, {pr*20480}')
        p(f'buffer_store_dwordx4 v[{d}:{d+3}], v248, s[{SRD_WS}:{SRD_WS+3}], s68 offen {CFG["STFO"]}')
    p('s_mov_b32 exec_hi, -1')


def attn_out_addr(p):
    p(f's_lshl_b32 s65, s{S_RB}, 3')
    p('s_lshl_b32 s66, s56, 2')
    p('s_add_u32 s65, s65, s66')
    p('s_mul_i32 s66, s65, 20')
    p(f's_lshl_b32 s67, s{S_CG}, 1')
    p('s_add_u32 s67, s67, s55')
    p('s_add_u32 s66, s66, s67')
    p('s_lshl_b32 s66, s66, 10')
    p(f's_add_u32 s66, s66, {OA_OFF}')
    p(f's_and_b32 s67, s{S_CG}, 1')
    p('s_lshl_b32 s67, s67, 1')
    p('s_add_u32 s67, s67, s65')
    p('s_mul_i32 s67, s67, 20')
    p(f's_lshr_b32 s68, s{S_CG}, 1')
    p('s_add_u32 s67, s67, s68')
    p('s_add_u32 s67, s67, 16')
    p('s_lshl_b32 s67, s67, 10')
    p('s_lshl_b32 s68, s55, 9')
    p('s_add_u32 s67, s67, s68')
    p(f's_add_u32 s67, s67, {OA_OFF}')


def ffn_prologue(p):
    p(f's_and_b32 s55, s{S_WAVE}, 1')
    p(f's_lshr_b32 s56, s{S_WAVE}, 1')
    p('v_and_b32 v3, 15, v2')
    p('v_lshrrev_b32 v4, 4, v2')
    p('v_lshrrev_b32 v5, 1, v3')
    p('v_xor_b32 v5, v5, v4')
    p('v_lshlrev_b32 v5, 4, v5')
    p('v_lshl_add_u32 v5, v3, 7, v5')
    p('s_lshl_b32 s57, s56, 13')
    p(f'v_add_u32 v{V_X0}, s57, v5')
    p(f'v_xor_b32 v{V_X1}, 64, v{V_X0}')
    p('v_lshrrev_b32 v5, 5, v2')
    p('v_lshlrev_b32 v5, 4, v5')
    p('v_bfe_u32 v6, v2, 4, 1')
    p('v_lshl_add_u32 v5, v6, 2, v5')
    p('v_bfe_u32 v6, v2, 2, 2')
    p('v_add_u32 v5, v5, v6')
    p(f'v_mul_u32_u24 v5, {WROW}, v5')
    p(f'v_add_u32 v5, {XREG}, v5')
    p('v_and_b32 v6, 3, v2')
    p('v_lshl_add_u32 v5, v6, 3, v5')
    p('s_lshl_b32 s57, s55, 8')
    p(f'v_add_u32 v{V_W}, s57, v5')
    p('s_lshl_b32 s57, s55, 5')
    p('s_add_u32 s57, s57, 192')
    p(f'v_add_u32 v{V_WA}, s57, v5')
    p(f's_mul_i32 s57, s{S_CG}, 448')
    p('v_lshlrev_b32 v5, 3, v4')
    p('v_add_u32 v5, s57, v5')
    p('s_lshl_b32 s57, s55, 8')
    p('v_add_u32 v6, s57, v5')
    p('s_lshl_b32 s57, s55, 5')
    p('s_add_u32 s57, s57, 192')
    p('v_add_u32 v7, s57, v5')
    p('v_lshlrev_b32 v248, 4, v2')
    p('s_waitcnt lgkmcnt(0)')
    srd(p, SRD_A, S_B1, 3456)
    for f in range(7):
        if f < 6:
            p(f'buffer_load_dwordx2 v[{200+2*f}:{201+2*f}], v6, s[{SRD_A}:{SRD_A+3}], 0 offen offset:{32*f}')
        else:
            p(f'buffer_load_dwordx2 v[{200+2*f}:{201+2*f}], v7, s[{SRD_A}:{SRD_A+3}], 0 offen')
    tlb_touch(p, 'F')
    p('s_mov_b32 s58, 0xffff0000')
    p('s_waitcnt vmcnt(0)')
    for f in range(7):
        for t in range(4):
            a = F_ACC(f, t)
            p(f'v_lshlrev_b32 v{a}, 16, v{200+2*f}')
            p(f'v_and_b32 v{a+1}, s58, v{200+2*f}')
            p(f'v_lshlrev_b32 v{a+2}, 16, v{201+2*f}')
            p(f'v_and_b32 v{a+3}, s58, v{201+2*f}')


def ffn_epilogue(p):
    k1 = -2.0 * math.sqrt(2.0 / math.pi) * math.log2(math.e)
    k2 = k1 * 0.044715
    C1, C2, ONE = 240, 242, 244
    for r in (0, 1):
        p(f'v_mov_b32 v{C1+r}, {hexf(k1)}')
        p(f'v_mov_b32 v{C2+r}, {hexf(k2)}')
        p(f'v_mov_b32 v{ONE+r}, 1.0')
    p('s_nop 5')
    p(f's_lshl_b32 s65, s{S_RB}, 3')
    p('s_lshl_b32 s66, s56, 2')
    p('s_add_u32 s65, s65, s66')
    p('s_mul_i32 s65, s65, 54')
    p(f's_mul_i32 s66, s{S_CG}, 7')
    p('s_add_u32 s67, s66, 3')
    p('s_lshl_b32 s68, s55, 2')
    p('s_add_u32 s66, s66, s68')
    p('s_add_u32 s69, s65, s67')
    p('s_lshl_b32 s69, s69, 10')
    p('s_lshl_b32 s68, s55, 3')
    p('s_add_u32 s69, s69, s68')
    p('s_add_u32 s68, s65, s66')
    p('s_lshl_b32 s68, s68, 10')

    def gelu(regs, tmp):
        for i, x in enumerate(regs):
            p(f'v_pk_mul_f32 v[{tmp+4*i}:{tmp+4*i+1}], v[{x}:{x+1}], v[{x}:{x+1}]')
        for i, x in enumerate(regs):
            p(f'v_pk_fma_f32 v[{tmp+4*i}:{tmp+4*i+1}], v[{tmp+4*i}:{tmp+4*i+1}], v[{C2}:{C2+1}], v[{C1}:{C1+1}]')
        for i, x in enumerate(regs):
            p(f'v_pk_mul_f32 v[{tmp+4*i}:{tmp+4*i+1}], v[{tmp+4*i}:{tmp+4*i+1}], v[{x}:{x+1}]')
        for i, x in enumerate(regs):
            p(f'v_exp_f32 v{tmp+4*i}, v{tmp+4*i}')
            p(f'v_exp_f32 v{tmp+4*i+1}, v{tmp+4*i+1}')
        for i, x in enumerate(regs):
            p(f'v_pk_add_f32 v[{tmp+4*i}:{tmp+4*i+1}], v[{tmp+4*i}:{tmp+4*i+1}], v[{ONE}:{ONE+1}]')
        for i, x in enumerate(regs):
            p(f'v_rcp_f32 v{tmp+4*i}, v{tmp+4*i}')
            p(f'v_rcp_f32 v{tmp+4*i+1}, v{tmp+4*i+1}')
        for i, x in enumerate(regs):
            p(f'v_pk_mul_f32 v[{x}:{x+1}], v[{tmp+4*i}:{tmp+4*i+1}], v[{x}:{x+1}]')

    OUT = 184
    n = 0
    for pr in range(3):
        p(f's_add_u32 s70, s66, {pr}')
        p('s_cmp_ge_u32 s70, 54')
        p(f's_cbranch_scc1 L_skip_pair{pr}')
        for t in range(4):
            a, b = F_ACC(2 * pr, t), F_ACC(2 * pr + 1, t)
            gelu([a, a + 2, b, b + 2], 152)
            o = OUT + 4 * (n % 4)
            n += 1
            p(f'v_cvt_pk_bf16_f32 v{o}, v{a}, v{a+1}')
            p(f'v_cvt_pk_bf16_f32 v{o+1}, v{a+2}, v{a+3}')
            p(f'v_cvt_pk_bf16_f32 v{o+2}, v{b}, v{b+1}')
            p(f'v_cvt_pk_bf16_f32 v{o+3}, v{b+2}, v{b+3}')
            p(f's_add_u32 s70, s68, {pr*1024 + t*54*1024}')
            p(f'buffer_store_dwordx4 v[{o}:{o+3}], v248, s[{SRD_WS}:{SRD_WS+3}], s70 offen {CFG["STFH"]}')
        p.label(f'L_skip_pair{pr}')
    for t2 in range(2):
        a, b = F_ACC(6, 2 * t2), F_ACC(6, 2 * t2 + 1)
        gelu([a, a + 2, b, b + 2], 152)
        for u, x in enumerate((a, b)):
            o = OUT + 16 + 2 * ((2 * t2 + u) % 2)
            p(f'v_cvt_pk_bf16_f32 v{o}, v{x}, v{x+1}')
            p(f'v_cvt_pk_bf16_f32 v{o+1}, v{x+2}, v{x+3}')
            p(f's_add_u32 s70, s69, {(2*t2+u)*54*1024}')
            p(f'buffer_store_dwordx2 v[{o}:{o+1}], v248, s[{SRD_WS}:{SRD_WS+3}], s70 offen {CFG["STFH"]}')


def gen_k1():
    p = Prog()
    p('s_cmp_ge_u32 s2, 256')
    p('s_cbranch_scc1 L_k1_end')
    p('s_load_dwordx4 s[4:7], s[0:1], 0')
    p('s_load_dwordx4 s[8:11], s[0:1], 16')
    p('s_load_dwordx4 s[12:15], s[0:1], 32')
    p('s_load_dwordx4 s[16:19], s[0:1], 48')
    p('s_load_dwordx2 s[20:21], s[0:1], 64')
    p('s_load_dwordx2 s[22:23], s[0:1], 88')
    if CFG['TT']:
        p('s_load_dwordx2 s[100:101], s[0:1], 72')
    if CFG['PROF']:
        p('s_memrealtime s[88:89]')
        p('s_memtime s[82:83]')
    p('v_lshrrev_b32 v1, 6, v0')
    p('v_and_b32 v2, 63, v0')
    p(f'v_readfirstlane_b32 s{S_WAVE}, v1')
    if CFG['SWAPW']:
        p(f's_add_u32 s{S_WAVE}, s{S_WAVE}, 4')
        p(f's_and_b32 s{S_WAVE}, s{S_WAVE}, 7')
    k1_decode(p)
    p(f's_cmp_eq_u32 s{S_WAVE}, 0')
    p('s_cbranch_scc0 L_nopf')
    p('v_mov_b32 v10, v2')
    code_prefetch(p, 'L_k1_body', 'L_k1_end', CFG.get('K1_BYTES', 20480), 10, 255, 84, 'k1')
    p.label('L_nopf')
    p.label('L_k1_body')
    p(f's_cmp_ge_u32 s{S_WAVE}, 4')
    p('s_cbranch_scc0 L_consumer')
    if CFG['LDFIRST'] == 1:
        p(f's_cmp_eq_u32 s{S_TYPE}, 0')
        p('s_cbranch_scc0 L_loader_F')
        k1_loader(p, True)
        k1_loader(p, False)
    elif CFG['LDFIRST'] == 2:
        p(f's_cmp_eq_u32 s{S_TYPE}, 0')
        p('s_cbranch_scc0 L_loader_F')
        k1_loader(p, True)
    else:
        p(f's_cmp_eq_u32 s{S_TYPE}, 0')
        p('s_cbranch_scc1 L_loader_A')
        p('s_branch L_loader_F')
    p.label('L_consumer')
    if CFG['PRIO']:
        p(f's_setprio {CFG["PRIO"]}')
    p(f's_cmp_eq_u32 s{S_TYPE}, 0')
    p('s_cbranch_scc0 L_cons_F')
    p('s_movk_i32 s99, 256')
    prefetch_setup(p, True)
    p('s_waitcnt lgkmcnt(0)')
    tlb_touch(p, 'A')
    attn_prologue(p)
    attn_out_addr(p)
    if CFG['ZVT']:
        p('s_mov_b32 s68, 0x00ff00ff')
        p('s_mov_b32 s69, 0x00ff00ff')
    srd(p, SRD_WS, S_WS, WS_USED)
    srd(p, SRD_X, S_AX, 2048 * 1280)
    srd(p, SRD_W, S_WQKV, 640 * 3840)
    p('s_waitcnt lgkmcnt(0)')
    stamp(p, 0)
    p('s_barrier')
    stamp(p, 1)
    prefetch_issue(p, True)
    if CFG['M35']:
        p('s_cmp_eq_u32 s56, 0')
        p('s_cbranch_scc0 L_attn_th1')
        for th in (0, 1):
            if th:
                p.label('L_attn_th1')
            consumer_loop(p, True, th)
            stamp(p, 2)
            attn_epilogue(p, th)
            stamp(p, 3)
            if CFG['PROF']:
                prof_store(p, 4, 'CA', SRD_WS)
            p('s_endpgm')
    else:
        consumer_loop(p, True)
        stamp(p, 2)
        attn_epilogue(p)
        stamp(p, 3)
        if CFG['PROF']:
            prof_store(p, 4, 'CA', SRD_WS)
        p('s_endpgm')
    p.label('L_cons_F')
    p('s_movk_i32 s99, 256')
    prefetch_setup(p, False)
    ffn_prologue(p)
    srd(p, SRD_WS, S_WS, WS_USED)
    srd(p, SRD_X, S_AX, 2048 * 1280)
    srd(p, SRD_W, S_W1, 640 * 3456)
    p('s_waitcnt lgkmcnt(0)')
    stamp(p, 0)
    p('s_barrier')
    stamp(p, 1)
    prefetch_issue(p, False)
    consumer_loop(p, False)
    stamp(p, 2)
    ffn_epilogue(p)
    stamp(p, 3)
    if CFG['PROF']:
        prof_store(p, 4, 'CF', SRD_WS)
    p('s_endpgm')
    if not CFG['LDFIRST']:
        k1_loader(p, True)
        k1_loader(p, False)
    elif CFG['LDFIRST'] == 2:
        k1_loader(p, False)
    p.label('L_k1_end')
    p('s_endpgm')
    return p


K2_LAST = {}


def k2_small_loads(p, vg, vb, vb2):
    p(f'buffer_load_dwordx2 v[{K2_G}:{K2_G+1}], v{vg}, s[12:15], 0 offen')
    p(f'buffer_load_dwordx4 v[{K2_B2}:{K2_B2+3}], v{vb}, s[16:19], 0 offen')
    p(f'buffer_load_dwordx4 v[{K2_B2+4}:{K2_B2+7}], v{vb}, s[16:19], 0 offen offset:64')
    p(f'buffer_load_dwordx2 v[{K2_B2+8}:{K2_B2+9}], v{vb2}, s[16:19], 0 offen offset:128')


def k2_stream(p, wave_a):
    NB = CFG['NBUF']
    tag = 'a' if wave_a else 'b'
    nsteps = 20 if wave_a else 18
    ACC = lambda t, f: K2_ACC + (t * 5 + f) * 4
    BA = lambda b, t: 36 * b + 4 * t
    BW = lambda b, f: 36 * b + 16 + 4 * f

    def ld_w(b, f):
        if f < 4:
            p(f'buffer_load_dwordx4 v[{BW(b,f)}:{BW(b,f)+3}], v{K2_VL}, s[12:15], s21 offen offset:{1024*f} {CFG["K2LDF"]}')
        else:
            p(f'buffer_load_dwordx4 v[{BW(b,f)}:{BW(b,f)+3}], v{K2_VL2}, s[12:15], s21 offen {CFG["K2LDF"]}')

    def ld_a(b, t):
        p(f'buffer_load_dwordx4 v[{BA(b,t)}:{BA(b,t)+3}], v{K2_VA+t}, s[12:15], s20 offen {CFG["K2LDF"]}')

    nrot = 16 if wave_a else 18
    state = {'n': 0}

    def adv():
        state['n'] += 1
        p('s_add_u32 s20, s20, 1024')
        p('s_add_u32 s21, s21, 5120')
        if not CFG['ROT2']:
            return
        if state['n'] < nrot:
            p('s_add_u32 s22, s22, 1')
            p(f's_cmp_eq_u32 s22, {nrot}')
            p(f's_cselect_b32 s23, {nrot*1024}, 0')
            p('s_sub_u32 s20, s20, s23')
            p('s_mul_i32 s23, s23, 5')
            p('s_sub_u32 s21, s21, s23')
        elif state['n'] == nrot and wave_a:
            p('s_mov_b32 s20, s34')
            p('s_mov_b32 s21, s35')

    for s in range(min(NB, nsteps)):
        for f in range(5):
            ld_w(s % NB, f)
        for t in range(4):
            ld_a(s % NB, t)
        adv()
    if CFG['GLATE']:
        k2_small_loads(p, 246, 247, 248)
    for r in range(80):
        p(f'v_mov_b32 v{K2_ACC+r}, 0')
    stamp(p, 1)
    for s in range(nsteps):
        b = s % NB
        issued = min(s + NB, nsteps)
        newer = (issued - s - 1) * 9
        if CFG['GLATE'] and s < NB:
            newer += 4
        p(f's_waitcnt vmcnt({newer})')
        more = s + NB < nsteps
        tail = wave_a and s >= 16
        amap = [0, 1, 2, 3]
        if tail:
            for (x, y) in ((0, 2), (1, 3)):
                p(f'v_swap_b32 v{BA(b,x)+2}, v{BA(b,y)}')
                p(f'v_swap_b32 v{BA(b,x)+3}, v{BA(b,y)+1}')
            amap = [0, 2, 1, 3]
        if CFG['K2RED'] == 2 and s == nsteps - 1:
            def last_step(w, b=b, amap=amap):
                p(f'v_add_u32 v220, {w*5120}, v{K2_VL}')
                p(f'v_add_u32 v221, {w*5120 + 40960}, v{K2_VL}')
                order = [t for t in range(4) if t != w] + [w]
                if w != 0:
                    order = [0] + [t for t in (1, 2, 3) if t != w] + [w]
                pend = []
                for k, t in enumerate(order):
                    for f in range(5):
                        acc = ACC(t, f)
                        p(f'v_mfma_f32_16x16x32_bf16 v[{acc}:{acc+3}], v[{BW(b,f)}:{BW(b,f)+3}], v[{BA(b,amap[t])}:{BA(b,amap[t])+3}], v[{acc}:{acc+3}]')
                        if pend and k >= 2:
                            p(pend.pop(0))
                    if t != w:
                        pend += [f'ds_write_b128 v{220 + (t >> 1)}, v[{ACC(t,f)}:{ACC(t,f)+3}] offset:{(t & 1)*20480 + f*1024}' for f in range(5)]
                for ins in pend:
                    p(ins)
            if wave_a:
                last_step(0)
            else:
                K2_LAST['b'] = last_step
            continue
        for f in range(5):
            for t in range(4):
                acc = ACC(t, f)
                if not CFG['K2NOMFMA']:
                    p(f'v_mfma_f32_16x16x32_bf16 v[{acc}:{acc+3}], v[{BW(b,f)}:{BW(b,f)+3}], v[{BA(b,amap[t])}:{BA(b,amap[t])+3}], v[{acc}:{acc+3}]')
            if more and CFG['K2ORD'] == 0:
                ld_w(b, f)
            if more and CFG['K2ORD'] == 2 and f >= 1:
                ld_w(b, f - 1)
        if more:
            if CFG['K2ORD'] == 1:
                for f in range(5):
                    ld_w(b, f)
            if CFG['K2ORD'] == 2:
                ld_w(b, 4)
            for t in range(4):
                ld_a(b, t)
            adv()
    if CFG['K2RED'] == 2:
        p('s_branch L_k2_red_a' if wave_a else 's_branch L_k2_red_b')
    else:
        p('s_branch L_k2_reduce')


K2_ACC = 144
K2_VL, K2_VL2, K2_VA = 224, 225, 226
K2_G, K2_B2 = 230, 232
K2_LDS = 4 * 4 * 5120 + 64


def k2_reduce2(p):
    assert CFG['NBUF'] == 3
    ACC = lambda t, f: K2_ACC + (t * 5 + f) * 4
    R1 = lambda f: 4 * f
    R2 = lambda f: 20 + 4 * f
    R3 = lambda j: 40 + 4 * j
    R4 = lambda j: 48 + 4 * j
    AR = lambda f: 56 + 4 * f
    B = lambda f: 188 + 4 * f
    GP, OP, O0 = 208, 210, 212
    FL, ONE, FA, WA, WB, RB = 214, 218, 219, 220, 221, 222
    O = 80
    FOFF = 81920

    def common(w):
        stamp(p, 2)
        p(f'v_add_u32 v{WA}, {w*5120}, v{K2_VL}')
        p(f'v_add_u32 v{WB}, {w*5120 + 40960}, v{K2_VL}')
        p(f'v_add_u32 v{RB}, {w*20480}, v{K2_VL}')
        p(f'v_mov_b32 v{FA}, {FOFF}')
        p(f'v_mov_b32 v{ONE}, 1')
        p('s_nop 7')

    def write_tiles(tiles):
        for t in tiles:
            for f in range(5):
                p(f'ds_write_b128 v{WA + (t >> 1)}, v[{ACC(t,f)}:{ACC(t,f)+3}] offset:{(t & 1)*20480 + f*1024}')

    def set_flag(i):
        p('s_waitcnt lgkmcnt(0)')
        p(f'ds_write_b32 v{FA}, v{ONE} offset:{4*i}')

    def spin(base, idxs, lbl):
        p.label(lbl)
        p(f'ds_read_b128 v[{FL}:{FL+3}], v{FA} offset:{base}')
        p('s_waitcnt lgkmcnt(0)')
        r = FL + idxs[0]
        for k in idxs[1:]:
            p(f'v_and_b32 v{FL+idxs[0]}, v{r}, v{FL+k}')
        p(f'v_readfirstlane_b32 s62, v{FL+idxs[0]}')
        p('s_cmp_eq_u32 s62, 0')
        p(f's_cbranch_scc1 {lbl}')

    def unpack():
        p('s_mov_b32 s63, 0xffff0000')
        for pr in range(2):
            for d in range(4):
                src = K2_B2 + 4 * pr + d
                f, r = 2 * pr + (d >> 1), 2 * (d & 1)
                p(f'v_lshlrev_b32 v{B(f)+r}, 16, v{src}')
                p(f'v_and_b32 v{B(f)+r+1}, s63, v{src}')
        for d in range(2):
            src = K2_B2 + 8 + d
            p(f'v_lshlrev_b32 v{B(4)+2*d}, 16, v{src}')
            p(f'v_and_b32 v{B(4)+2*d+1}, s63, v{src}')

    def pairs(lo_hi):
        for dst, src in lo_hi:
            p(f'v_mov_b32 v{dst}, v{src}')
            p(f'v_mov_b32 v{dst+1}, v{src}')

    def store(res):
        for pr in range(2):
            for u in range(2):
                a = res(2 * pr + u)
                p(f'v_cvt_pk_bf16_f32 v{O+4*pr+2*u}, v{a}, v{a+1}')
                p(f'v_cvt_pk_bf16_f32 v{O+4*pr+2*u+1}, v{a+2}, v{a+3}')
            p(f'buffer_store_dwordx4 v[{O+4*pr}:{O+4*pr+3}], v242, s[28:31], 0 offen offset:{64*pr} {CFG["OUTF"]}')
        a = res(4)
        p(f'v_cvt_pk_bf16_f32 v{O+8}, v{a}, v{a+1}')
        p(f'v_cvt_pk_bf16_f32 v{O+9}, v{a+2}, v{a+3}')
        p(f'buffer_store_dwordx2 v[{O+8}:{O+9}], v243, s[28:31], 0 offen offset:128 {CFG["OUTF"]}')

    def finish():
        stamp(p, 3)
        if CFG['PROF']:
            prof_store(p, 4, 'K2', 12)
        p('s_endpgm')

    p.label('L_k2_red_a')
    common(0)
    set_flag(0)
    pairs([(GP, K2_G)])
    spin(16, [1, 2, 3], 'L_k2_spin_a')
    for f in range(5):
        p(f'ds_read_b128 v[{R1(f)}:{R1(f)+3}], v{K2_VL} offset:{f*1024}')
    for f in range(5):
        p(f's_waitcnt lgkmcnt({4-f})')
        for r in (0, 2):
            a = ACC(0, f) + r
            p(f'v_pk_fma_f32 v[{a}:{a+1}], v[{a}:{a+1}], v[{GP}:{GP+1}], v[{R1(f)+r}:{R1(f)+r+1}]')
    store(lambda f: ACC(0, f))
    finish()
    p.label('L_k2_red_b')
    for w in (1, 2, 3):
        if w < 3:
            p(f's_cmp_eq_u32 s{S_WAVE}, {w}')
            p(f's_cbranch_scc0 L_k2_red_b{w+1}')
        K2_LAST['b'](w)
        common(w)
        set_flag(w)
        unpack()
        pairs([(GP, K2_G), (OP, K2_G + 1), (O0, 245)])
        o1, o2 = [x for x in (1, 2, 3) if x != w]
        spin(0, [o1, o2], f'L_k2_spin_b{w}')
        sub = {1: [0, 1], 2: [2, 3], 3: [4]}[w]
        for j, f in enumerate(sub):
            p(f'ds_read_b128 v[{R3(j)}:{R3(j)+3}], v{K2_VL} offset:{o1*5120 + f*1024}')
            p(f'ds_read_b128 v[{R4(j)}:{R4(j)+3}], v{K2_VL} offset:{o2*5120 + f*1024}')
        for f in range(5):
            p(f'ds_read_b128 v[{R1(f)}:{R1(f)+3}], v{RB} offset:{o1*5120 + f*1024}')
            p(f'ds_read_b128 v[{R2(f)}:{R2(f)+3}], v{RB} offset:{o2*5120 + f*1024}')
        p('s_waitcnt lgkmcnt(10)')
        for j, f in enumerate(sub):
            for r in (0, 2):
                a = ACC(0, f) + r
                p(f'v_pk_add_f32 v[{R3(j)+r}:{R3(j)+r+1}], v[{R3(j)+r}:{R3(j)+r+1}], v[{R4(j)+r}:{R4(j)+r+1}]')
                p(f'v_pk_add_f32 v[{a}:{a+1}], v[{a}:{a+1}], v[{B(f)+r}:{B(f)+r+1}]')
            for r in (0, 2):
                a = ACC(0, f) + r
                p(f'v_pk_add_f32 v[{a}:{a+1}], v[{a}:{a+1}], v[{R3(j)+r}:{R3(j)+r+1}]')
                p(f'v_pk_mul_f32 v[{a}:{a+1}], v[{a}:{a+1}], v[{O0}:{O0+1}]')
        for j, f in enumerate(sub):
            p(f'ds_write_b128 v{K2_VL}, v[{ACC(0,f)}:{ACC(0,f)+3}] offset:{f*1024}')
        set_flag(4 + w)
        for f in range(5):
            for r in (0, 2):
                a = ACC(w, f) + r
                p(f'v_pk_add_f32 v[{R1(f)+r}:{R1(f)+r+1}], v[{R1(f)+r}:{R1(f)+r+1}], v[{R2(f)+r}:{R2(f)+r+1}]')
                p(f'v_pk_add_f32 v[{a}:{a+1}], v[{a}:{a+1}], v[{B(f)+r}:{B(f)+r+1}]')
            for r in (0, 2):
                a = ACC(w, f) + r
                p(f'v_pk_add_f32 v[{a}:{a+1}], v[{a}:{a+1}], v[{R1(f)+r}:{R1(f)+r+1}]')
                p(f'v_pk_mul_f32 v[{a}:{a+1}], v[{a}:{a+1}], v[{OP}:{OP+1}]')
        spin(0, [0], f'L_k2_spin_c{w}')
        for f in range(5):
            p(f'ds_read_b128 v[{AR(f)}:{AR(f)+3}], v{RB} offset:{f*1024}')
        for f in range(5):
            p(f's_waitcnt lgkmcnt({4-f})')
            for r in (0, 2):
                a = ACC(w, f) + r
                p(f'v_pk_fma_f32 v[{a}:{a+1}], v[{AR(f)+r}:{AR(f)+r+1}], v[{GP}:{GP+1}], v[{a}:{a+1}]')
        store(lambda f: ACC(w, f))
        finish()
        if w < 3:
            p.label(f'L_k2_red_b{w+1}')


def gen_k2():
    global K2_ACC
    NB = CFG['NBUF']
    assert NB * 36 + 80 <= 224
    K2_ACC = NB * 36
    p = Prog()
    p('s_cmp_ge_u32 s2, 256')
    p('s_cbranch_scc1 L_k2_end')
    p('s_load_dwordx2 s[4:5], s[0:1], 88')
    p('s_load_dwordx2 s[6:7], s[0:1], 72')
    p('s_load_dwordx2 s[8:9], s[0:1], 56')
    if CFG['PROF']:
        p('s_memrealtime s[88:89]')
        p('s_memtime s[82:83]')
    p('v_lshrrev_b32 v1, 6, v0')
    p('v_and_b32 v2, 63, v0')
    p(f'v_readfirstlane_b32 s{S_WAVE}, v1')
    p('s_and_b32 s52, s2, 7')
    p('s_lshr_b32 s53, s2, 3')
    if CFG['MAP2'] == '8x4':
        p('s_lshr_b32 s54, s52, 1')
        p('s_lshl_b32 s54, s54, 3')
        p('s_lshr_b32 s55, s53, 2')
        p('s_add_u32 s26, s54, s55')
        p('s_and_b32 s54, s52, 1')
        p('s_lshl_b32 s54, s54, 2')
        p('s_and_b32 s55, s53, 3')
        p('s_add_u32 s27, s54, s55')
    else:
        p('s_lshl_b32 s54, s52, 2')
        p('s_lshr_b32 s55, s53, 3')
        p('s_add_u32 s26, s54, s55')
        p('s_and_b32 s27, s53, 7')
    if CFG['K2OWNPF']:
        p(f's_cmp_eq_u32 s{S_WAVE}, 0')
        p('s_cbranch_scc0 L_k2_nopf')
        p('v_mov_b32 v10, v2')
        code_prefetch(p, 'L_k2_body', 'L_k2_end', CFG.get('K2_BYTES', 16384), 10, 255, 84, 'k2')
        p.label('L_k2_nopf')
    p.label('L_k2_body')
    p(f'v_lshlrev_b32 v{K2_VL}, 4, v2')
    p(f'v_add_u32 v{K2_VL2}, 4096, v{K2_VL}')
    p(f's_cmp_eq_u32 s{S_WAVE}, 0')
    p('s_mov_b32 s56, 20480')
    p('s_cselect_b32 s56, s56, 55296')
    p(f's_mov_b32 s57, {OA_OFF}')
    p(f's_cselect_b32 s57, s57, {H_OFF}')
    p(f's_mov_b32 s58, {WO_OFF}')
    p(f's_cselect_b32 s58, s58, {W2_OFF}')
    p('s_cselect_b32 s59, 20, 54')
    p(f's_mul_i32 s60, s{S_WAVE}, 18')
    p('s_cselect_b32 s60, 18, s60')
    p('s_sub_u32 s60, s60, 18')
    p('s_lshl_b32 s61, s26, 2')
    p('s_mul_i32 s61, s61, s56')
    p('s_add_u32 s61, s61, s57')
    p('s_lshl_b32 s62, s60, 10')
    p('s_add_u32 s20, s61, s62')
    p('s_mul_i32 s61, s27, s59')
    p('s_add_u32 s61, s61, s60')
    p('s_mul_i32 s61, s61, 5120')
    p('s_add_u32 s21, s61, s58')
    if CFG['ROT2']:
        p('s_add_u32 s34, s20, 16384')
        p('s_add_u32 s35, s21, 81920')
        if CFG['ROT2'] == 2:
            p('s_xor_b32 s62, s26, s27')
            p('s_and_b32 s62, s62, 1')
            p(f's_cmp_eq_u32 s{S_WAVE}, 0')
            p('s_cselect_b32 s63, 8, 9')
            p('s_mul_i32 s22, s62, s63')
        elif CFG['ROT2'] == 3:
            p('s_add_u32 s62, s26, s27')
            p('s_mul_i32 s63, s62, 43')
            p('s_lshr_b32 s63, s63, 7')
            p('s_mul_i32 s63, s63, 3')
            p('s_sub_u32 s62, s62, s63')
            p(f's_cmp_eq_u32 s{S_WAVE}, 0')
            p('s_cselect_b32 s63, 5, 6')
            p('s_mul_i32 s22, s62, s63')
        else:
            p('s_and_b32 s62, s26, 7')
            p('s_and_b32 s63, s27, 3')
            p('s_lshl_b32 s63, s63, 1')
            p('s_add_u32 s62, s62, s63')
            p(f's_cmp_eq_u32 s{S_WAVE}, 0')
            p('s_cselect_b32 s63, 16, 18')
            p('s_mul_i32 s62, s62, s63')
            p('s_lshr_b32 s22, s62, 3')
            p('s_cmp_ge_u32 s22, s63')
            p('s_cselect_b32 s62, s63, 0')
            p('s_sub_u32 s22, s22, s62')
        p('s_lshl_b32 s62, s22, 10')
        p('s_add_u32 s20, s20, s62')
        p('s_mul_i32 s62, s22, 5120')
        p('s_add_u32 s21, s21, s62')
    for t in range(4):
        p(f's_mul_i32 s62, s56, {t}')
        p(f'v_add_u32 v{K2_VA+t}, s62, v{K2_VL}')
    p('v_and_b32 v3, 15, v2')
    p('v_lshrrev_b32 v4, 4, v2')
    p('s_lshl_b32 s62, s26, 6')
    p(f's_lshl_b32 s63, s{S_WAVE}, 4')
    p('s_add_u32 s62, s62, s63')
    p('v_add_u32 v5, s62, v3')
    p('v_lshlrev_b32 v6, 3, v5')
    p(f'v_add_u32 v6, {G_OFF}, v6')
    p('s_mul_i32 s63, s27, 160')
    p('v_lshlrev_b32 v7, 4, v4')
    p('v_add_u32 v7, s63, v7')
    p('v_lshlrev_b32 v8, 3, v4')
    p('v_add_u32 v8, s63, v8')
    p('s_movk_i32 s63, 1280')
    p('v_mul_u32_u24 v5, s63, v5')
    p('v_add_u32 v242, v5, v7')
    p('v_add_u32 v243, v5, v8')
    if CFG['K2RED'] == 2:
        for r in range(4):
            p(f'v_mov_b32 v{214+r}, 0')
        p('v_mov_b32 v219, 81920')
        p('ds_write_b128 v219, v[214:217]')
        p('ds_write_b128 v219, v[214:217] offset:16')
    p('s_waitcnt lgkmcnt(0)')
    if CFG['K2RED'] == 2:
        p('s_barrier')
    srd(p, 12, 4, WS_USED)
    srd(p, 16, 8, 1280)
    srd(p, 28, 6, 2048 * 1280)
    stamp(p, 0)
    if CFG['K2RED'] == 2:
        p('s_lshl_b32 s62, s26, 6')
        p('v_add_u32 v9, s62, v3')
        p('v_lshlrev_b32 v9, 3, v9')
        p(f'v_add_u32 v9, {G_OFF}, v9')
        p('buffer_load_dwordx2 v[244:245], v9, s[12:15], 0 offen')
    if not CFG['GLATE']:
        k2_small_loads(p, 6, 7, 8)
    else:
        p('v_mov_b32 v246, v6')
        p('v_mov_b32 v247, v7')
        p('v_mov_b32 v248, v8')
    p(f's_cmp_eq_u32 s{S_WAVE}, 0')
    p('s_cbranch_scc0 L_k2_b')
    if CFG['K2PRIO']:
        p(f's_setprio {CFG["K2PRIO"]}')
    k2_stream(p, True)
    p.label('L_k2_b')
    k2_stream(p, False)
    if CFG['K2RED'] == 2:
        k2_reduce2(p)
        p.label('L_k2_end')
        p('s_endpgm')
        return p
    p.label('L_k2_reduce')
    stamp(p, 2)
    ACC = lambda t, f: K2_ACC + (t * 5 + f) * 4
    p(f's_mul_i32 s62, s{S_WAVE}, 5120')
    p(f'v_add_u32 v3, s62, v{K2_VL}')
    p('s_nop 7')
    p('v_add_u32 v4, 40960, v3')
    for t in range(4):
        for f in range(5):
            p(f'ds_write_b128 v{3 + (t >> 1)}, v[{ACC(t,f)}:{ACC(t,f)+3}] offset:{(t & 1)*20480 + f*1024}')
    p(f's_mul_i32 s62, s{S_WAVE}, 20480')
    p(f'v_add_u32 v250, s62, v{K2_VL}')
    p('s_waitcnt lgkmcnt(0)')
    p('s_barrier')
    R = lambda w, f: (w * 5 + f) * 4
    for f in range(5):
        for w in range(4):
            p(f'ds_read_b128 v[{R(w,f)}:{R(w,f)+3}], v250 offset:{w*5120 + f*1024}')
    p('s_mov_b32 s62, 0xffff0000')
    B = lambda f: 100 + 4 * f
    for pr in range(2):
        for d in range(4):
            src = K2_B2 + 4 * pr + d
            f, r = 2 * pr + (d >> 1), 2 * (d & 1)
            p(f'v_lshlrev_b32 v{B(f)+r}, 16, v{src}')
            p(f'v_and_b32 v{B(f)+r+1}, s62, v{src}')
    for d in range(2):
        src = K2_B2 + 8 + d
        p(f'v_lshlrev_b32 v{B(4)+2*d}, 16, v{src}')
        p(f'v_and_b32 v{B(4)+2*d+1}, s62, v{src}')
    p(f'v_mov_b32 v120, v{K2_G}')
    p(f'v_mov_b32 v121, v{K2_G}')
    p(f'v_mov_b32 v122, v{K2_G+1}')
    p(f'v_mov_b32 v123, v{K2_G+1}')
    for f in range(5):
        p(f's_waitcnt lgkmcnt({min(15, 16-4*f)})' if f < 4 else 's_waitcnt lgkmcnt(0)')
        if f == 0:
            p('s_waitcnt lgkmcnt(15)')
        for r in (0, 2):
            a, b1, b2_, b3 = R(0, f) + r, R(1, f) + r, R(2, f) + r, R(3, f) + r
            p(f'v_pk_add_f32 v[{b1}:{b1+1}], v[{b1}:{b1+1}], v[{b2_}:{b2_+1}]')
            p(f'v_pk_add_f32 v[{b3}:{b3+1}], v[{b3}:{b3+1}], v[{B(f)+r}:{B(f)+r+1}]')
            p(f'v_pk_mul_f32 v[{a}:{a+1}], v[{a}:{a+1}], v[120:121]')
            p(f'v_pk_add_f32 v[{b1}:{b1+1}], v[{b1}:{b1+1}], v[{b3}:{b3+1}]')
            p(f'v_pk_fma_f32 v[{a}:{a+1}], v[{b1}:{b1+1}], v[122:123], v[{a}:{a+1}]')
    O = 124
    for pr in range(2):
        for u in range(2):
            a = R(0, 2 * pr + u)
            p(f'v_cvt_pk_bf16_f32 v{O+4*pr+2*u}, v{a}, v{a+1}')
            p(f'v_cvt_pk_bf16_f32 v{O+4*pr+2*u+1}, v{a+2}, v{a+3}')
        p(f'buffer_store_dwordx4 v[{O+4*pr}:{O+4*pr+3}], v242, s[28:31], 0 offen offset:{64*pr} {CFG["OUTF"]}')
    a = R(0, 4)
    p(f'v_cvt_pk_bf16_f32 v{O+8}, v{a}, v{a+1}')
    p(f'v_cvt_pk_bf16_f32 v{O+9}, v{a+2}, v{a+3}')
    p(f'buffer_store_dwordx2 v[{O+8}:{O+9}], v243, s[28:31], 0 offen offset:128 {CFG["OUTF"]}')
    stamp(p, 3)
    if CFG['PROF']:
        prof_store(p, 4, 'K2', 12)
    p.label('L_k2_end')
    p('s_endpgm')
    return p


K2B_R = 4
K2B_STEP = 9216
K2B_SLOT = 4 * K2B_STEP
K2B_LDS = K2B_R * K2B_SLOT


def gen_k2b():
    R, SL, ST = K2B_R, K2B_SLOT, K2B_STEP
    stages = [('a', 4 * i, 4) for i in range(5)] + [('b', 4 * i, 4) for i in range(13)] + [('b', 52, 2)]
    NS = len(stages)
    p = Prog()
    p('s_cmp_ge_u32 s2, 256')
    p('s_cbranch_scc1 L_k2_end')
    p('s_load_dwordx2 s[4:5], s[0:1], 88')
    p('s_load_dwordx2 s[6:7], s[0:1], 72')
    p('s_load_dwordx2 s[8:9], s[0:1], 56')
    if CFG['PROF']:
        p('s_memrealtime s[88:89]')
        p('s_memtime s[82:83]')
    p('v_lshrrev_b32 v1, 6, v0')
    p('v_and_b32 v2, 63, v0')
    p(f'v_readfirstlane_b32 s{S_WAVE}, v1')
    p('s_and_b32 s52, s2, 7')
    p('s_lshr_b32 s53, s2, 3')
    if CFG['MAP2'] == '8x4':
        p('s_lshr_b32 s54, s52, 1')
        p('s_lshl_b32 s54, s54, 3')
        p('s_lshr_b32 s55, s53, 2')
        p('s_add_u32 s26, s54, s55')
        p('s_and_b32 s54, s52, 1')
        p('s_lshl_b32 s54, s54, 2')
        p('s_and_b32 s55, s53, 3')
        p('s_add_u32 s27, s54, s55')
    else:
        p('s_lshl_b32 s54, s52, 2')
        p('s_lshr_b32 s55, s53, 3')
        p('s_add_u32 s26, s54, s55')
        p('s_and_b32 s27, s53, 7')
    p('v_lshlrev_b32 v3, 4, v2')
    p(f's_cmp_ge_u32 s{S_WAVE}, 4')
    p('s_cbranch_scc0 L_k2_consumer')
    p(f's_sub_u32 s57, s{S_WAVE}, 4')
    p('s_mul_i32 s20, s27, 20')
    p('s_add_u32 s20, s20, s57')
    p('s_mul_i32 s20, s20, 5120')
    p(f's_add_u32 s20, s20, {WO_OFF}')
    p('s_mul_i32 s21, s27, 54')
    p('s_add_u32 s21, s21, s57')
    p('s_mul_i32 s21, s21, 5120')
    p(f's_add_u32 s21, s21, {W2_OFF}')
    p('s_lshl_b32 s54, s26, 2')
    p('s_mul_i32 s22, s54, 20')
    p('s_add_u32 s22, s22, s57')
    p('s_lshl_b32 s22, s22, 10')
    p(f's_add_u32 s22, s22, {OA_OFF}')
    p('s_mul_i32 s25, s54, 54')
    p('s_add_u32 s25, s25, s57')
    p('s_lshl_b32 s25, s25, 10')
    if H_OFF:
        p(f's_add_u32 s25, s25, {H_OFF}')
    p(f's_mul_i32 s58, s57, {ST}')
    p('v_add_u32 v4, 4096, v3')
    for u in range(4):
        p(f'v_add_u32 v{10+u}, {20480*u}, v3')
        p(f'v_add_u32 v{14+u}, {55296*u}, v3')
    p('s_waitcnt lgkmcnt(0)')
    srd(p, 12, 4, WS_USED)
    stamp(p, 0)

    def issue(j):
        part, s0, n = stages[j]
        slot = j % R
        if n < 4:
            p(f's_cmp_ge_u32 s57, {n}')
            p(f's_cbranch_scc1 L_k2_skip{j}')
        p(f's_add_u32 s23, s{20 if part == "a" else 21}, {s0*5120}')
        p(f's_add_u32 s24, s{22 if part == "a" else 25}, {s0*1024}') if False else None
        p(f's_add_u32 m0, s58, {slot*SL}')
        p(f's_add_u32 s59, s{22 if part == "a" else 25}, {s0*1024}')
        for f in range(4):
            p(f'buffer_load_dwordx4 v3, s[12:15], s23 offen offset:{1024*f} {CFG["K2LDF"]} lds')
        p(f's_add_u32 m0, s58, {slot*SL + 4096}')
        p('s_nop 0')
        p(f'buffer_load_dwordx4 v4, s[12:15], s23 offen {CFG["K2LDF"]} lds')
        for u in range(4):
            p(f's_add_u32 m0, s58, {slot*SL + 5120 + 1024*u}')
            p('s_nop 0')
            p(f'buffer_load_dwordx4 v{(10 if part == "a" else 14)+u}, s[12:15], s59 offen {CFG["K2LDF"]} lds')
        if n < 4:
            p.label(f'L_k2_skip{j}')

    for j in range(R - 1):
        issue(j)
    stamp(p, 1)
    for j in range(NS):
        hi = min(j + R - 2, NS - 1)
        newer = 9 * (hi - j)
        if hi == NS - 1 and j < NS - 1:
            newer -= 9
        p(f's_waitcnt vmcnt({max(newer, 0)})')
        p('s_barrier')
        if j + R - 1 < NS:
            issue(j + R - 1)
    stamp(p, 2)
    stamp(p, 3)
    if CFG['PROF']:
        prof_store(p, 4, 'K2', 12)
    p('s_endpgm')
    p.label('L_k2_consumer')
    p(f's_cmp_eq_u32 s{S_WAVE}, 0')
    p('s_cbranch_scc0 L_k2_nopf')
    p('v_mov_b32 v10, v2')
    code_prefetch(p, 'L_k2_body', 'L_k2_end', CFG.get('K2_BYTES', 12288), 10, 255, 84, 'k2')
    p.label('L_k2_nopf')
    p.label('L_k2_body')
    ACA, ACB = 0, 20
    WR = lambda q, f: 40 + 20 * q + 4 * f
    AR = lambda q: 120 + 4 * q
    G, B2 = 230, 232
    p('s_lshl_b32 s54, s26, 2')
    p(f's_add_u32 s54, s54, s{S_WAVE}')
    p('v_and_b32 v4, 15, v2')
    p('v_lshrrev_b32 v5, 4, v2')
    p('s_lshl_b32 s55, s54, 4')
    p('v_add_u32 v6, s55, v4')
    p('v_lshlrev_b32 v7, 3, v6')
    p(f'v_add_u32 v7, {G_OFF}, v7')
    p('s_mul_i32 s55, s27, 160')
    p('v_lshlrev_b32 v8, 4, v5')
    p('v_add_u32 v8, s55, v8')
    p('v_lshlrev_b32 v9, 3, v5')
    p('v_add_u32 v9, s55, v9')
    p('v_mul_u32_u24 v6, 1280, v6')
    p('v_add_u32 v242, v6, v8')
    p('v_add_u32 v243, v6, v9')
    p(f's_lshl_b32 s55, s{S_WAVE}, 10')
    p('s_add_u32 s55, s55, 5120')
    for sl in range(R):
        p(f'v_add_u32 v{244+sl}, {sl*SL}, v3')
        p(f'v_add_u32 v{250+sl}, s55, v{244+sl}')
    p(f's_lshr_b32 s55, s{S_WAVE}, 1')
    p('s_lshl_b32 s55, s55, 10')
    p(f's_and_b32 s56, s{S_WAVE}, 1')
    p('s_lshl_b32 s56, s56, 3')
    p('s_add_u32 s55, s55, s56')
    p('s_add_u32 s55, s55, 5120')
    p('v_add_u32 v249, s55, v3')
    p('s_waitcnt lgkmcnt(0)')
    srd(p, 12, 4, WS_USED)
    srd(p, 16, 8, 1280)
    srd(p, 28, 6, 2048 * 1280)
    stamp(p, 0)
    p(f'buffer_load_dwordx2 v[{G}:{G+1}], v7, s[12:15], 0 offen')
    p(f'buffer_load_dwordx4 v[{B2}:{B2+3}], v8, s[16:19], 0 offen')
    p(f'buffer_load_dwordx4 v[{B2+4}:{B2+7}], v8, s[16:19], 0 offen offset:64')
    p(f'buffer_load_dwordx2 v[{B2+8}:{B2+9}], v9, s[16:19], 0 offen offset:128')
    for r in range(40):
        p(f'v_mov_b32 v{r}, 0')
    stamp(p, 1)
    for j, (part, s0, n) in enumerate(stages):
        slot = j % R
        tail = (part == 'a' and s0 == 16)
        assert not tail or slot == 0
        p('s_barrier')
        log = []
        for q in range(n):
            if tail:
                p(f'ds_read_b64 v[{AR(q)}:{AR(q)+1}], v249 offset:{q*ST}')
                p(f'ds_read_b64 v[{AR(q)+2}:{AR(q)+3}], v249 offset:{q*ST + 2048}')
                log += [('a', q), ('a', q)]
            else:
                p(f'ds_read_b128 v[{AR(q)}:{AR(q)+3}], v{250+slot} offset:{q*ST}')
                log.append(('a', q))
            for f in range(5):
                p(f'ds_read_b128 v[{WR(q,f)}:{WR(q,f)+3}], v{244+slot} offset:{q*ST + f*1024}')
                log.append(('w', q, f))
        known = max(0, len(log) - 15) if len(log) > 15 else 0
        done = -1
        for q in range(n):
            acc0 = ACA if part == 'a' else ACB
            for f in range(5):
                idx = log.index(('w', q, f))
                if idx > done:
                    left = len(log) - 1 - idx
                    w = min(left, 15)
                    p(f's_waitcnt lgkmcnt({w})')
                    done = len(log) - 1 - w
                p(f'v_mfma_f32_16x16x32_bf16 v[{acc0+4*f}:{acc0+4*f+3}], v[{WR(q,f)}:{WR(q,f)+3}], v[{AR(q)}:{AR(q)+3}], v[{acc0+4*f}:{acc0+4*f+3}]')
    stamp(p, 2)
    p('s_mov_b32 s62, 0xffff0000')
    p('s_waitcnt vmcnt(0)')
    Bf = lambda f: 100 + 4 * f
    for pr in range(2):
        for d in range(4):
            s_ = B2 + 4 * pr + d
            f, r = 2 * pr + (d >> 1), 2 * (d & 1)
            p(f'v_lshlrev_b32 v{Bf(f)+r}, 16, v{s_}')
            p(f'v_and_b32 v{Bf(f)+r+1}, s62, v{s_}')
    for d in range(2):
        s_ = B2 + 8 + d
        p(f'v_lshlrev_b32 v{Bf(4)+2*d}, 16, v{s_}')
        p(f'v_and_b32 v{Bf(4)+2*d+1}, s62, v{s_}')
    p(f'v_mov_b32 v120, v{G}')
    p(f'v_mov_b32 v121, v{G}')
    p(f'v_mov_b32 v122, v{G+1}')
    p(f'v_mov_b32 v123, v{G+1}')
    for f in range(5):
        for r in (0, 2):
            a, b = ACA + 4 * f + r, ACB + 4 * f + r
            p(f'v_pk_add_f32 v[{b}:{b+1}], v[{b}:{b+1}], v[{Bf(f)+r}:{Bf(f)+r+1}]')
            p(f'v_pk_mul_f32 v[{a}:{a+1}], v[{a}:{a+1}], v[120:121]')
    for f in range(5):
        for r in (0, 2):
            a, b = ACA + 4 * f + r, ACB + 4 * f + r
            p(f'v_pk_fma_f32 v[{a}:{a+1}], v[{b}:{b+1}], v[122:123], v[{a}:{a+1}]')
    O = 124
    for pr in range(2):
        for u in range(2):
            a = ACA + 4 * (2 * pr + u)
            p(f'v_cvt_pk_bf16_f32 v{O+4*pr+2*u}, v{a}, v{a+1}')
            p(f'v_cvt_pk_bf16_f32 v{O+4*pr+2*u+1}, v{a+2}, v{a+3}')
        p(f'buffer_store_dwordx4 v[{O+4*pr}:{O+4*pr+3}], v242, s[28:31], 0 offen offset:{64*pr} {CFG["OUTF"]}')
    a = ACA + 16
    p(f'v_cvt_pk_bf16_f32 v{O+8}, v{a}, v{a+1}')
    p(f'v_cvt_pk_bf16_f32 v{O+9}, v{a+2}, v{a+3}')
    p(f'buffer_store_dwordx2 v[{O+8}:{O+9}], v243, s[28:31], 0 offen offset:128 {CFG["OUTF"]}')
    stamp(p, 3)
    if CFG['PROF']:
        prof_store(p, 4, 'K2', 12)
    p.label('L_k2_end')
    p('s_endpgm')
    return p


def gen_k2t():
    NW, INF, MODE = CFG['NW'], CFG['INF'], CFG['TMODE']
    p = Prog()
    p('s_cmp_ge_u32 s2, 256')
    p('s_cbranch_scc1 L_k2_end')
    p('s_load_dwordx2 s[4:5], s[0:1], 88')
    p('s_memrealtime s[88:89]')
    p('s_memtime s[82:83]')
    p('v_lshrrev_b32 v1, 6, v0')
    p('v_and_b32 v2, 63, v0')
    p(f'v_readfirstlane_b32 s{S_WAVE}, v1')
    p('s_and_b32 s52, s2, 7')
    p('s_lshr_b32 s53, s2, 3')
    p('s_lshr_b32 s54, s52, 1')
    p('s_lshl_b32 s54, s54, 3')
    p('s_lshr_b32 s55, s53, 2')
    p('s_add_u32 s26, s54, s55')
    p('s_and_b32 s54, s52, 1')
    p('s_lshl_b32 s54, s54, 2')
    p('s_and_b32 s55, s53, 3')
    p('s_add_u32 s27, s54, s55')
    p('v_lshlrev_b32 v3, 4, v2')
    p('v_add_u32 v4, 4096, v3')
    nst = 72 // NW
    p(f's_mul_i32 s60, s{S_WAVE}, {nst}')
    p('s_cmp_ge_u32 s60, 54')
    p('s_cselect_b32 s61, 1, 0')
    p('s_cselect_b32 s56, 20480, 0')
    p('s_cselect_b32 s56, s56, 55296')
    p(f's_mov_b32 s57, {OA_OFF}')
    p(f's_cselect_b32 s57, s57, {H_OFF}')
    p(f's_mov_b32 s58, {WO_OFF}')
    p(f's_cselect_b32 s58, s58, {W2_OFF}')
    p('s_cselect_b32 s59, 20, 54')
    p('s_cselect_b32 s62, 54, 0')
    p('s_sub_u32 s60, s60, s62')
    p('s_lshl_b32 s61, s26, 2')
    p('s_mul_i32 s61, s61, s56')
    p('s_add_u32 s61, s61, s57')
    p('s_lshl_b32 s62, s60, 10')
    p('s_add_u32 s20, s61, s62')
    p('s_mul_i32 s61, s27, s59')
    p('s_add_u32 s61, s61, s60')
    p('s_mul_i32 s61, s61, 5120')
    p('s_add_u32 s21, s61, s58')
    for t in range(4):
        p(f's_mul_i32 s62, s56, {t}')
        p(f'v_add_u32 v{10+t}, s62, v3')
    p(f's_mul_i32 s63, s{S_WAVE}, 16384')
    p('s_waitcnt lgkmcnt(0)')
    srd(p, 12, 4, WS_USED)
    stamp(p, 0)
    stamp(p, 1)
    n = 0
    for s in range(nst):
        for f in range(9):
            r = 20 + 4 * (n % 48)
            if MODE == 'dma':
                p(f's_add_u32 m0, s63, {(n % 16) * 1024}')
                p('s_nop 0')
            a, so, off = (3, 's21', 1024 * f) if f < 4 else ((4, 's21', 0) if f == 4 else (10 + f - 5, 's20', 0))
            if MODE == 'dma':
                if f < 4 and f > 0:
                    p(f's_sub_u32 m0, m0, {off}')
                    p('s_nop 0')
                p(f'buffer_load_dwordx4 v{a}, s[12:15], {so} offen offset:{off} lds')
            else:
                p(f'buffer_load_dwordx4 v[{r}:{r+3}], v{a}, s[12:15], {so} offen offset:{off}')
            p(f's_waitcnt vmcnt({INF})')
            n += 1
        p('s_add_u32 s20, s20, 1024')
        p('s_add_u32 s21, s21, 5120')
    p('s_waitcnt vmcnt(0)')
    stamp(p, 2)
    stamp(p, 3)
    prof_store(p, 4, 'K2', 12)
    p.label('L_k2_end')
    p('s_endpgm')
    return p


def gen_kpf():
    p = Prog()
    p('s_cmp_ge_u32 s2, 256')
    p('s_cbranch_scc1 L_kpf_end')
    p('s_load_dwordx2 s[4:5], s[0:1], 88')
    p('v_and_b32 v2, 63, v0')
    p('v_lshrrev_b32 v1, 6, v0')
    p('s_and_b32 s52, s2, 7')
    p('s_lshr_b32 s53, s2, 3')
    p('v_lshlrev_b32 v3, 7, v0')
    p('s_waitcnt lgkmcnt(0)')
    srd(p, 12, 4, WS_USED)
    if CFG['KPF'] == 1:
        p('s_and_b32 s54, s52, 1')
        p(f's_mul_i32 s55, s54, {4*54*5120}')
        p(f's_add_u32 s55, s55, {W2_OFF}')
        p('s_lshl_b32 s56, s53, 15')
        p('s_add_u32 s57, s55, s56')
        p('buffer_load_dword v10, v3, s[12:15], s57 offen')
        p('s_add_u32 s57, s57, 57344')
        p('buffer_load_dword v10, v3, s[12:15], s57 offen')
        p(f's_mul_i32 s55, s54, {4*20*5120}')
        p(f's_add_u32 s55, s55, {WO_OFF}')
        p('s_mul_i32 s56, s53, 12800')
        p('s_add_u32 s57, s55, s56')
        p('buffer_load_dword v10, v3, s[12:15], s57 offen')
    else:
        p('s_lshr_b32 s54, s52, 1')
        p(f's_mul_i32 s55, s54, {32*55296}')
        p('s_mul_i32 s56, s53, 55296')
        p('s_add_u32 s57, s55, s56')
        p('buffer_load_dword v10, v3, s[12:15], s57 offen')
        p('s_add_u32 s57, s57, 22528')
        p('buffer_load_dword v10, v3, s[12:15], s57 offen')
        p(f's_mul_i32 s55, s54, {32*20480}')
        p(f's_add_u32 s55, s55, {OA_OFF}')
        p('s_mul_i32 s56, s53, 20480')
        p('s_add_u32 s57, s55, s56')
        p('buffer_load_dword v10, v3, s[12:15], s57 offen')
    p('s_waitcnt vmcnt(0)')
    p.label('L_kpf_end')
    p('s_endpgm')
    return p


HEADER = """; gated mix of (sliding dilated attention branch) and (GELU MLP branch), S=2048 D=640 H=32 Dh=20 F=1728, bf16.
; @launch kernel=gm_k1_kernel grid=(256,1,1) block=(512,1,1) lds=%d
; @launch kernel=gm_k2_kernel grid=(256,1,1) block=(256,1,1) lds=%d
.amdgcn_target "amdgcn-amd-amdhsa--gfx950"
"""

KD = """.amdhsa_kernel %s
  .amdhsa_next_free_vgpr %d
  .amdhsa_next_free_sgpr 102
  .amdhsa_accum_offset %d
  .amdhsa_group_segment_fixed_size 0
  .amdhsa_kernarg_size 96
  .amdhsa_user_sgpr_count 2
  .amdhsa_user_sgpr_kernarg_segment_ptr 1
  .amdhsa_system_sgpr_workgroup_id_x 1
  .amdhsa_float_denorm_mode_32 3
.end_amdhsa_kernel
"""


def main():
    k1 = gen_k1()
    k2 = gen_k2b() if CFG['K2V'] == 2 else (gen_k2t() if CFG['K2V'] == 3 else gen_k2())
    t1, t2 = k1.finish(), k2.finish()
    s = HEADER % (K1_LDS, K2B_LDS if CFG['K2V'] == 2 else K2_LDS)
    if CFG['K2V'] == 3:
        s = s.replace('kernel=gm_k2_kernel grid=(256,1,1) block=(256,1,1) lds=%d' % K2_LDS, 'kernel=gm_k2_kernel grid=(256,1,1) block=(%d,1,1) lds=131072' % (64 * CFG['NW']))
    if CFG['K2V'] == 2:
        s = s.replace('kernel=gm_k2_kernel grid=(256,1,1) block=(256,1,1)', 'kernel=gm_k2_kernel grid=(256,1,1) block=(512,1,1)')
    if CFG['K2TWICE']:
        ln = [l for l in s.split('\n') if 'kernel=gm_k2_kernel' in l][0]
        s = s.replace(ln, ln + '\n' + ln)
    s += '.text\n'
    for name, t in (('gm_k1_kernel', t1), ('gm_k2_kernel', t2)):
        s += f'.globl {name}\n.p2align 8\n.type {name},@function\n{name}:\n{t}'
    s += '.p2align 8\n.fill 64, 4, 0xbf800000\n' if False else ''
    if CFG['KPF']:
        s += '.globl gm_pf_kernel\n.p2align 8\n.type gm_pf_kernel,@function\ngm_pf_kernel:\n' + gen_kpf().finish()
        ln = [l for l in s.split('\n') if 'kernel=gm_k2_kernel' in l][0]
        s = s.replace(ln, '; @launch kernel=gm_pf_kernel grid=(256,1,1) block=(256,1,1) lds=0\n' + ln)
    s += '.section .rodata,"a"\n.p2align 6\n'
    s += KD % ('gm_k1_kernel', 256, 256)
    s += '.p2align 6\n'
    s += KD % ('gm_k2_kernel', 256, 256)
    if CFG['KPF']:
        s += '.p2align 6\n' + KD % ('gm_pf_kernel', 64, 64)
    out = CFG.get('OUT', f'cdna_kernels/{NAME}.s')
    open(out, 'w').write(s)
    print('written', out, len(s), 'bytes; nops inserted k1', k1.nops_inserted, 'k2', k2.nops_inserted)


if __name__ == '__main__':
    main()
```

```python
import sys, os, math, struct
sys.path.insert(0, os.path.dirname(os.path.abspath(__file__)))
from asmlib import Prog, vr, ar, sr

NAME = 'gated_mix__sliding_local_dilated__dense_activation_gelu__prompt'

CFG = dict(MAP1='mixed', MAP2='8x4', NBUF=3, PROF=0, NOMFMA=0, NOLOAD=0, NODS=0, STF='sc1', LDF='', ULDF='nt', PFF='', PF=0, TT=0, ROT=1, ROT2=0, K2TWICE=0, K2V=1, M35=1, S1LATE=0, PFSLICE=2, K2OWNPF=1, MROT=0, KW=4, KX=4, HALF=0, ZVT=0, DEDUP=1, K2RED=2, K2PRIO=0, USPF=0, TJ=7, TL=0, GLATE=0, STFO='sc1', STFH='sc1', ALIGN=0, UNITS_FFN=1, NFU=3, PEEL=1, SWAPW=0, LDFIRST=2, PRIO=0, K2ORD=0, KPF=0, LDF0='nt', NT_ST=0, ZOOB=1, TEARLY=0, K2PF=1, DA=12, NW=4, INF=32, TMODE='reg', K2NOMFMA=0, K2LDF='', OUTF='')
for a in sys.argv[1:]:
    if '=' in a:
        k, v = a.split('=')
        CFG[k] = int(v) if v.lstrip('-').isdigit() else v.replace('+', ' ')

H_OFF = 0
OA_OFF = H_OFF + 128 * 54 * 1024
W2_OFF = OA_OFF + 128 * 20 * 1024
WO_OFF = W2_OFF + 8 * 54 * 5120
G_OFF = WO_OFF + 8 * 20 * 5120
WS_USED = G_OFF + 2048 * 8
PROF_OFF = 16 << 20

XREG = 144 * 128
WROW = 480
WREG = 64 * WROW
SLOT = XREG + WREG
XFLAG = 3 * 49152 + 15360
SCR = 3 * SLOT
K1_LDS = 163840


def f32(x):
    return struct.unpack('<I', struct.pack('<f', x))[0]


def hexf(x):
    return '0x%08x' % f32(x)


S_AX, S_WQKV, S_WO, S_BX, S_W1, S_B1, S_W2, S_B2, S_GW, S_WS = 4, 6, 8, 10, 12, 14, 16, 18, 20, 22
S_WAVE, S_TYPE, S_RB, S_CG = 24, 25, 26, 27
SRD_X, SRD_W, SRD_I4, SRD_WS, SRD_A, SRD_B = 28, 32, 36, 40, 44, 48


def srd(p, base, ptr, nbytes):
    p(f's_mov_b32 s{base}, s{ptr}')
    p(f's_mov_b32 s{base+1}, s{ptr+1}')
    p(f's_mov_b32 s{base+2}, {nbytes}')
    p(f's_mov_b32 s{base+3}, 0x20000')


def code_prefetch(p, lbl_from, lbl_to, nbytes, vtmp, vdst, s, tag, sidx=None):
    p(f's_getpc_b64 s[{s}:{s+1}]')
    p.label(f'L_pc_{tag}')
    p(f's_add_u32 s{s}, s{s}, {lbl_from}-L_pc_{tag}')
    p(f's_addc_u32 s{s+1}, s{s+1}, 0')
    if CFG['PFSLICE'] == 2:
        ng = (nbytes + 8191) // 8192
        p(f's_lshr_b32 s{s+2}, s2, 3')
        p(f's_cmp_lt_u32 s{s+2}, {ng}')
        p(f's_cbranch_scc0 L_pfskip_{tag}')
        p(f's_lshl_b32 s{s+2}, s{s+2}, 13')
        p(f'v_lshlrev_b32 v{vtmp}, 7, v{vtmp}')
        p(f'v_add_u32 v{vtmp}, s{s+2}, v{vtmp}')
        p(f'v_min_u32 v{vtmp}, {lbl_to}-{lbl_from}, v{vtmp}')
        p(f'global_load_dword v{vdst}, v{vtmp}, s[{s}:{s+1}]')
        p.label(f'L_pfskip_{tag}')
        return 1
    if CFG['PFSLICE']:
        n = (nbytes + 32 * 128 - 1) // (32 * 128)
        p(f'v_min_u32 v{vtmp}, {n-1}, v{vtmp}')
        p(f's_lshr_b32 s{s+2}, s2, 3')
        p(f's_and_b32 s{s+2}, s{s+2}, 31')
        p(f's_mul_i32 s{s+2}, s{s+2}, {n}')
        p(f'v_add_u32 v{vtmp}, s{s+2}, v{vtmp}')
        p(f'v_lshlrev_b32 v{vtmp}, 7, v{vtmp}')
        p(f'v_min_u32 v{vtmp}, {lbl_to}-{lbl_from}, v{vtmp}')
        p(f'global_load_dword v{vdst}, v{vtmp}, s[{s}:{s+1}]')
        return 1
    p(f'v_lshlrev_b32 v{vtmp}, 6, v{vtmp}')
    n = (nbytes + 4095) // 4096
    for j in range(n):
        p(f'v_min_u32 v{vtmp+1}, {lbl_to}-{lbl_from}, v{vtmp}')
        p(f'global_load_dword v{vdst}, v{vtmp+1}, s[{s}:{s+1}]')
        if j + 1 < n:
            p(f'v_add_u32 v{vtmp}, 4096, v{vtmp}')
    return n


def stamp(p, idx, sbase=90):
    if CFG['PROF']:
        p(f'{"s_memtime" if CFG["PROF"] in (2, 3, 6) else "s_memrealtime"} s[{sbase+2*idx}:{sbase+2*idx+1}]')


def k1_decode(p):
    p('s_and_b32 s52, s2, 7')
    p('s_lshr_b32 s53, s2, 3')
    if CFG['MAP1'] == 'mixed':
        p(f's_lshr_b32 s{S_TYPE}, s53, 4')
        p('s_and_b32 s54, s53, 15')
        p('s_lshr_b32 s55, s52, 1')
        p('s_lshl_b32 s55, s55, 2')
        p('s_lshr_b32 s56, s54, 2')
        p(f's_add_u32 s{S_RB}, s55, s56')
        p('s_and_b32 s55, s52, 1')
        p('s_lshl_b32 s55, s55, 2')
        p('s_and_b32 s56, s54, 3')
        p(f's_add_u32 s{S_CG}, s55, s56')
    elif CFG['MAP1'] == 'm82':
        p(f's_lshr_b32 s{S_TYPE}, s53, 4')
        p('s_lshr_b32 s55, s52, 2')
        p('s_lshl_b32 s55, s55, 3')
        p('s_and_b32 s56, s53, 7')
        p(f's_add_u32 s{S_RB}, s55, s56')
        p('s_and_b32 s55, s52, 3')
        p('s_lshl_b32 s55, s55, 1')
        p('s_bfe_u32 s56, s53, 0x10003')
        p(f's_add_u32 s{S_CG}, s55, s56')
    else:
        p(f's_lshr_b32 s{S_TYPE}, s52, 2')
        p('s_and_b32 s54, s52, 3')
        p('s_lshr_b32 s55, s54, 1')
        p('s_lshl_b32 s55, s55, 3')
        p('s_lshr_b32 s56, s53, 2')
        p(f's_add_u32 s{S_RB}, s55, s56')
        p('s_and_b32 s55, s54, 1')
        p('s_lshl_b32 s55, s55, 2')
        p('s_and_b32 s56, s53, 3')
        p(f's_add_u32 s{S_CG}, s55, s56')


def k1_loader(p, attn):
    tag = 'A' if attn else 'F'
    rowstride = 3840 if attn else 3456
    VOFF = 10
    VL = 2
    p.label(f'L_loader_{tag}')
    p(f's_sub_u32 s57, s{S_WAVE}, 4')
    p(f'v_lshrrev_b32 v3, 3, v{VL}')
    p('s_lshl_b32 s58, s57, 3')
    p('v_add_u32 v3, s58, v3')
    p(f's_lshl_b32 s59, s{S_RB}, 7')
    if attn:
        p('s_sub_u32 s59, s59, 16')
    p('v_add_u32 v3, s59, v3')
    p('s_and_b32 s58, s57, 1')
    p('s_lshl_b32 s58, s58, 2')
    p(f'v_lshrrev_b32 v4, 4, v{VL}')
    p('v_add_u32 v4, s58, v4')
    p(f'v_and_b32 v5, 7, v{VL}')
    p('v_xor_b32 v4, v4, v5')
    p('v_lshlrev_b32 v4, 4, v4')
    p('s_movk_i32 s58, 1280')
    p('s_movk_i32 s59, 2047')
    for i in range(5):
        p(f'v_add_u32 v5, {32*i}, v3')
        if attn and i == 0:
            p('v_max_i32 v5, 0, v5')
        if (not attn) and i == 4:
            p('v_min_u32 v5, s59, v5')
        p('v_mul_u32_u24 v5, s58, v5')
        if (not attn) and i == 4 and CFG['DEDUP']:
            p(f'v_mov_b32 v6, v{VOFF}')
        else:
            p(f'v_add_u32 v{VOFF+i if i < 4 else 6}, v5, v4')
    p('s_lshl_b32 s58, s57, 6')
    p(f'v_add_u32 v7, s58, v{VL}')
    p(f's_mov_b32 s60, {rowstride}')
    p('v_mov_b32 v9, 0x7ffffff0')
    if attn:
        p(f's_mul_i32 s61, s{S_CG}, 160')
    else:
        p(f's_mul_i32 s61, s{S_CG}, 448')

    def w_offset(i):
        base = 64 * (4 * i - 18)
        dst = VOFF + i if i > 4 else 8
        if base >= 0:
            p(f'v_add_u32 v3, {base}, v7')
        else:
            p(f'v_subrev_u32 v3, {-base}, v7')
            p('v_max_i32 v3, 0, v3')
        p('v_mul_u32_u24 v4, 2185, v3')
        p('v_lshrrev_b32 v4, 16, v4')
        p('v_mul_u32_u24 v5, 30, v4')
        p('v_sub_u32 v5, v3, v5')
        p('v_lshrrev_b32 v3, 1, v4')
        p('v_xor_b32 v3, v3, v4')
        p('v_and_b32 v3, 4, v3')
        p('v_mul_u32_u24 v3, 3, v3')
        p('v_xor_b32 v4, v3, v4')
        p('v_mul_u32_u24 v4, s60, v4')
        if attn:
            p('v_mul_u32_u24 v3, 205, v5')
            p('v_lshrrev_b32 v3, 11, v3')
            p('v_mul_u32_u24 v3, 1120, v3')
            p('v_lshlrev_b32 v5, 4, v5')
            p('v_add3_u32 v5, v5, v3, s61')
        else:
            if CFG['DEDUP']:
                p('v_min_u32 v5, 27, v5')
            p('v_lshlrev_b32 v5, 4, v5')
            p('v_add_u32 v5, s61, v5')
            if CFG['ZOOB']:
                p('v_cmp_lt_u32 vcc, 3440, v5')
            else:
                p('v_min_u32 v5, 3440, v5')
        p(f'v_add_u32 v{dst}, v4, v5')
        if (not attn) and CFG['ZOOB']:
            p(f'v_cndmask_b32 v{dst}, v{dst}, v9, vcc')
        if i == 4:
            p('s_cmp_lt_u32 s57, 2')
            p('s_cselect_b64 vcc, -1, 0')
            p(f'v_cndmask_b32 v{VOFF+4}, v8, v6, vcc')

    p('s_waitcnt lgkmcnt(0)')
    if attn:
        srd(p, SRD_X, S_AX, 2048 * 1280)
        srd(p, SRD_W, S_WQKV, 640 * 3840)
    else:
        srd(p, SRD_X, S_AX, 2048 * 1280)
        srd(p, SRD_W, S_W1, 640 * 3456)
    p('s_cmp_lt_u32 s57, 2')
    for k in range(3):
        p(f's_cselect_b32 s{SRD_I4+k}, s{SRD_X+k}, s{SRD_W+k}')
    p(f's_mov_b32 s{SRD_I4+3}, 0x20000')
    p('s_movk_i32 s73, 128')
    p('s_cselect_b32 s73, s73, %d' % (64 * rowstride))
    if CFG['ROT']:
        if CFG['MAP1'] == 'mixed' and CFG['MROT']:
            p(f's_and_b32 s79, s{S_RB}, 3')
            if CFG['MROT'] // 10 == 4:
                p('s_mul_i32 s79, s79, 5')
                p('s_lshr_b32 s79, s79, 1')
            elif CFG['MROT'] // 10 == 2:
                p('s_lshr_b32 s79, s79, 1')
                p('s_mul_i32 s79, s79, 5')
            p(f's_and_b32 s80, s{S_CG}, 3')
            p(f's_lshl_b32 s81, s{S_TYPE}, 2')
            p('s_add_u32 s80, s80, s81')
            if CFG['MROT'] % 10 == 8:
                p('s_lshr_b32 s81, s80, 2')
                p('s_add_u32 s80, s80, s81')
            elif CFG['MROT'] % 10 == 4:
                p('s_lshr_b32 s80, s80, 1')
                p('s_mul_i32 s80, s80, 5')
                p('s_lshr_b32 s80, s80, 1')
            elif CFG['MROT'] % 10 == 2:
                p('s_lshr_b32 s80, s80, 2')
                p('s_mul_i32 s80, s80, 5')
        else:
            p(f's_and_b32 s79, s{S_RB}, 7')
            if CFG['KW'] == 8:
                p('s_lshr_b32 s80, s79, 2')
                p('s_add_u32 s79, s79, s80')
            elif CFG['KW'] == 4:
                p('s_lshr_b32 s79, s79, 1')
                p('s_mul_i32 s79, s79, 5')
                p('s_lshr_b32 s79, s79, 1')
            elif CFG['KW'] == 2:
                p('s_lshr_b32 s79, s79, 2')
                p('s_mul_i32 s79, s79, 5')
            elif CFG['KW'] == 3:
                p('s_mul_i32 s79, s79, 43')
                p('s_lshr_b32 s79, s79, 7')
                p('s_mul_i32 s79, s79, 10')
                p('s_mul_i32 s79, s79, 43')
                p('s_lshr_b32 s79, s79, 7')
            elif CFG['KW'] == 41:
                p('s_and_b32 s79, s79, 3')
                p('s_mul_i32 s79, s79, 5')
                p('s_lshr_b32 s79, s79, 1')
            elif CFG['KW'] == 5:
                p('s_mul_i32 s79, s79, 5')
                p('s_lshr_b32 s79, s79, 2')
                p('s_andn2_b32 s79, s79, 1')
            if CFG['MAP1'] == 'spec':
                p(f's_and_b32 s80, s{S_CG}, 3')
            else:
                p(f's_and_b32 s80, s{S_CG}, 1')
                p(f's_lshl_b32 s81, s{S_TYPE}, 1')
                p('s_add_u32 s80, s80, s81')
            if CFG['KX'] == 4:
                p('s_mul_i32 s80, s80, 5')
                p('s_lshr_b32 s80, s80, 1')
            elif CFG['KX'] == 3:
                p('s_mul_i32 s80, s80, 3')
            elif CFG['KX'] == 2:
                p('s_lshr_b32 s80, s80, 1')
                p('s_mul_i32 s80, s80, 5')
            else:
                p('s_mov_b32 s80, 0')
        p('s_add_u32 s79, s79, s80')
        p('s_cmp_ge_u32 s79, 10')
        p('s_cselect_b32 s80, 10, 0')
        p('s_sub_u32 s79, s79, s80')
    else:
        p('s_mov_b32 s79, 0')
    p('s_lshl_b32 s74, s79, 7')
    p(f's_mul_i32 s75, s79, {64*rowstride}')
    p('s_mul_i32 s76, s79, s73')
    p('s_lshl_b32 s77, s57, 10')

    def issue_stage(st, lazy=False):
        slot = st % 3
        ldf = CFG['LDF0'] if st < CFG['NT_ST'] else CFG['LDF']
        for i in range(12):
            if lazy and i >= 4:
                w_offset(i)
            p(f's_add_u32 m0, s77, {slot*SLOT + i*4096}')
            if i < 4:
                if i == 0:
                    p('s_nop 0')
                p(f'buffer_load_dwordx4 v{VOFF+i}, s[{SRD_X}:{SRD_X+3}], s74 offen {ldf} lds')
            elif i == 4:
                p(f'buffer_load_dwordx4 v{VOFF+i}, s[{SRD_I4}:{SRD_I4+3}], s76 offen {ldf} lds')
            else:
                p(f'buffer_load_dwordx4 v{VOFF+i}, s[{SRD_W}:{SRD_W+3}], s75 offen {ldf} lds')
        p('s_add_u32 s74, s74, 128')
        p(f's_add_u32 s75, s75, {64*rowstride}')
        p('s_add_u32 s76, s76, s73')
        if CFG['ROT']:
            p('s_add_u32 s79, s79, 1')
            p('s_cmp_eq_u32 s79, 10')
            for r in (79, 74, 75, 76):
                p(f's_cselect_b32 s{r}, 0, s{r}')

    stamp(p, 0)
    issue_stage(0, lazy=True)
    s1late = (CFG['S1LATE'] == 1 and not attn) or CFG['S1LATE'] == 2
    if not CFG['HALF'] and not s1late:
        issue_stage(1)
    UF = CFG['UNITS_FFN']
    scr_base = SLOT if (UF and not attn) else SCR

    def unit_decode(sfx):
        p('s_and_b32 s64, s62, 7')
        p('s_lshr_b32 s65, s62, 3')
        p('s_lshl_b32 s66, s65, 5')
        p('s_mov_b32 s67, 16')
        p('s_mov_b32 s68, 4')
        p('s_mul_i32 s69, s64, 54')
        p('s_add_u32 s69, s69, s65')
        p('s_mul_i32 s69, s69, 5120')
        p(f's_add_u32 s69, s69, {W2_OFF}')
        p('s_mov_b32 s70, 0')
        p('s_cmp_lt_u32 s65, 54')
        p(f's_cbranch_scc1 L_unit_done_{tag}{sfx}')
        p('s_sub_u32 s65, s65, 54')
        p('s_mov_b32 s70, 1')
        p('s_mul_i32 s69, s64, 20')
        p('s_add_u32 s69, s69, s65')
        p('s_mul_i32 s69, s69, 5120')
        p(f's_add_u32 s69, s69, {WO_OFF}')
        p('s_mul_i32 s66, s65, 40')
        p('s_mov_b32 s67, 20')
        p('s_cmp_lt_u32 s65, 16')
        p(f's_cbranch_scc1 L_unit_done_{tag}{sfx}')
        p('s_sub_u32 s65, s65, 16')
        p('s_mul_i32 s66, s65, 160')
        p('s_add_u32 s66, s66, 16')
        p('s_mov_b32 s67, 80')
        p('s_mov_b32 s68, 20')
        p.label(f'L_unit_done_{tag}{sfx}')
        p('s_mul_i32 s71, s64, 160')
        p('s_movk_i32 s58, 1280')
        for i in range(5):
            p(f'v_add_u32 v3, {64*i}, v{VL}')
            p('v_mul_u32_u24 v4, 6554, v3')
            p('v_lshrrev_b32 v4, 16, v4')
            p('v_mul_u32_u24 v5, 10, v4')
            p('v_sub_u32 v5, v3, v5')
            p('v_lshlrev_b32 v5, 4, v5')
            p('v_add_u32 v5, s71, v5')
            p('v_lshrrev_b32 v3, 4, v4')
            p('v_mul_u32_u24 v3, s67, v3')
            p('v_bfe_u32 v6, v4, 2, 2')
            p('v_mul_u32_u24 v6, s68, v6')
            p('v_and_b32 v4, 3, v4')
            p('v_add3_u32 v3, v3, v6, v4')
            p('v_add_u32 v3, s66, v3')
            p('v_mul_u32_u24 v3, s58, v3')
            p(f'v_add_u32 v{22+i}, v3, v5')

    def unit_srd():
        p('s_cmp_eq_u32 s70, 0')
        p(f's_cselect_b32 s{SRD_A}, s{S_W2}, s{S_WO}')
        p(f's_cselect_b32 s{SRD_A+1}, s{S_W2+1}, s{S_WO+1}')
        p(f's_mov_b32 s{SRD_A+2}, {1728*1280}')
        p(f's_cselect_b32 s{SRD_A+2}, s{SRD_A+2}, {640*1280}')
        p(f's_mov_b32 s{SRD_A+3}, 0x20000')

    do_units = True
    NFU = CFG['NFU']
    always = UF and not attn and NFU == 4
    if UF:
        p(f's_lshl_b32 s62, s{S_RB}, 3')
        p(f's_add_u32 s62, s62, s{S_CG}')
        p('s_lshl_b32 s63, s57, 7')
        p('s_add_u32 s62, s62, s63')
        if not attn:
            p(f's_cmp_lt_u32 s57, {NFU}')
            p('s_cselect_b32 s63, 1, 0')
        else:
            p(f's_add_u32 s62, s62, {128*NFU}')
            p('s_cmp_lt_u32 s62, 592')
            p('s_cselect_b32 s63, 1, 0')
            p('s_cmp_lt_u32 s57, 3')
            p('s_cselect_b32 s63, s63, 0')
    else:
        p('s_lshl_b32 s62, s57, 8')
        p('s_add_u32 s62, s62, s2')
        p('s_cmp_lt_u32 s62, 592')
        p('s_cselect_b32 s63, 1, 0')
        p('s_cmp_lt_u32 s57, 3')
        p('s_cselect_b32 s63, s63, 0')
    if do_units:
        unit_decode('')
        p(f'v_lshrrev_b32 v3, 2, v{VL}')
        p('v_mul_u32_u24 v3, 160, v3')
        p('s_mul_i32 s72, s57, 5120')
        p(f's_add_u32 s72, s72, {scr_base}')
        p('v_add_u32 v3, s72, v3')
        p(f'v_and_b32 v4, 3, v{VL}')
        p('v_lshl_add_u32 v27, v4, 4, v3')
        p('v_lshl_add_u32 v28, v4, 3, v3')
        p(f'v_lshlrev_b32 v29, 4, v{VL}')
        p('v_add_u32 v30, 4096, v29')
    if not attn:
        p(f's_lshl_b32 s58, s{S_RB}, 3')
        p(f's_add_u32 s58, s58, s{S_CG}')
        p('s_lshl_b32 s58, s58, 4')
        p('s_lshl_b32 s59, s57, 2')
        p('s_add_u32 s58, s58, s59')
        p(f'v_lshrrev_b32 v3, 4, v{VL}')
        p('v_add_u32 v31, s58, v3')
        p('s_movk_i32 s58, 1280')
        p('v_mul_u32_u24 v3, s58, v31')
        p(f'v_and_b32 v4, 15, v{VL}')
        p('v_lshlrev_b32 v33, 4, v4')
        p('v_add_u32 v32, v3, v33')
    srd(p, SRD_WS, S_WS, WS_USED)
    if do_units:
        unit_srd()
    GX, GW = 40, 60
    gate = (not attn)
    TG = 10 if gate else 0
    if gate:
        srd(p, SRD_B, S_GW, 1280)

    def unit_loads():
        for i in range(5):
            p(f's_add_u32 m0, s72, {i*1024}')
            p('s_nop 0')
            p(f'buffer_load_dwordx4 v{22+i}, s[{SRD_A}:{SRD_A+3}], 0 offen {CFG["ULDF"]} lds')

    def unit_finish():
        for f in range(5):
            a, off = (27, [0, 8, 64, 72][f]) if f < 4 else (28, 128)
            p(f'ds_read_b64_tr_b16 v[{84+4*f}:{85+4*f}], v{a} offset:{off}')
            p(f'ds_read_b64_tr_b16 v[{86+4*f}:{87+4*f}], v{a} offset:{off+2560}')
        for f in range(5):
            p(f's_waitcnt lgkmcnt({8-2*f})')
            if f < 4:
                p(f'buffer_store_dwordx4 v[{84+4*f}:{87+4*f}], v29, s[{SRD_WS}:{SRD_WS+3}], s69 offen offset:{1024*f} {CFG["STF"]}')
            else:
                p(f'buffer_store_dwordx4 v[{84+4*f}:{87+4*f}], v30, s[{SRD_WS}:{SRD_WS+3}], s69 offen {CFG["STF"]}')

    def tail_loads():
        if not do_units:
            return
        if always:
            unit_loads()
        else:
            p('s_cmp_eq_u32 s63, 0')
            p(f's_cbranch_scc1 L_nounit_ld_{tag}')
            unit_loads()
            p.label(f'L_nounit_ld_{tag}')
        if gate:
            for j in range(5):
                p(f'buffer_load_dwordx4 v[{GX+4*j}:{GX+4*j+3}], v32, s[{SRD_X}:{SRD_X+3}], 0 offen offset:{256*j}')
                p(f'buffer_load_dwordx4 v[{GW+4*j}:{GW+4*j+3}], v33, s[{SRD_B}:{SRD_B+3}], 0 offen offset:{256*j}')

    def unit_prefetch(grp):
        if not (CFG['USPF'] and do_units):
            return
        hi, mid = grp >> 2, grp & 3
        p('s_cmp_eq_u32 s63, 0')
        p(f's_cbranch_scc1 L_uspf{grp}_{tag}')
        p(f's_mul_i32 s99, s67, {hi}')
        p(f's_mul_i32 s98, s68, {mid}')
        p('s_add_u32 s99, s99, s98')
        p('s_add_u32 s99, s99, s66')
        p('s_mul_i32 s99, s99, 1280')
        p('s_add_u32 s99, s99, s71')
        for r in range(4):
            p(f's_load_dword s56, s[{SRD_A}:{SRD_A+1}], s99 offset:{1280*r}')
            p(f's_load_dword s56, s[{SRD_A}:{SRD_A+1}], s99 offset:{1280*r + 156}')
        p.label(f'L_uspf{grp}_{tag}')

    def wait_vm(n_nounit, n_unit, uid):
        if always:
            n_nounit = n_unit
        if n_nounit == n_unit:
            p(f's_waitcnt vmcnt({n_unit})')
            return
        p('s_cmp_eq_u32 s63, 0')
        p(f's_cbranch_scc1 L_w{uid}a_{tag}')
        p(f's_waitcnt vmcnt({n_unit})')
        p(f's_branch L_w{uid}b_{tag}')
        p.label(f'L_w{uid}a_{tag}')
        p(f's_waitcnt vmcnt({n_nounit})')
        p.label(f'L_w{uid}b_{tag}')

    if CFG['HALF']:
        p('s_waitcnt vmcnt(3)')
        p('s_barrier')
        issue_stage(1)
        p('s_waitcnt vmcnt(12)')
    elif CFG['TEARLY']:
        tail_loads()
        wait_vm(12 + TG, 12 + TG + 5, 'i')
    else:
        p('s_waitcnt vmcnt(%d)' % (0 if s1late else 12))
    stamp(p, 1)
    TJ = CFG['TJ'] if attn else 7
    p('s_barrier')
    if s1late:
        issue_stage(1)
    issue_stage(2)
    unit_prefetch(0)
    for j in range(9):
        if CFG['TEARLY']:
            if j == 0:
                wait_vm(12 + TG, 12 + TG + 5, j)
            else:
                p('s_waitcnt vmcnt(%d)' % (12 if j <= 7 else 0))
        elif j <= TJ:
            p('s_waitcnt vmcnt(12)')
        elif j == 7:
            wait_vm(12 + TG, 12 + TG + 5, j)
        else:
            wait_vm(TG, TG + 5, j)
        p('s_barrier')
        if j + 3 <= 9 and not CFG['NOLOAD']:
            issue_stage(j + 3)
        if j <= 6:
            unit_prefetch(j + 1)
        if j == TJ and not CFG['TEARLY']:
            tail_loads()
        if j == 3 and CFG['TEARLY'] and gate:
            gate_job(p, GX, GW, store=False)
    stamp(p, 2)
    if CFG['K2PF']:
        p('s_cmp_eq_u32 s57, 3')
        p(f's_cbranch_scc0 L_nok2pf_{tag}')
        p(f'v_mov_b32 v34, v{VL}')
        code_prefetch(p, 'gm_k2_kernel', 'L_k2_end', 16384, 34, 255, 84, 'k2pf' + tag)
        p.label(f'L_nok2pf_{tag}')
    if do_units:
        p('s_waitcnt vmcnt(0) lgkmcnt(0)')
        if always:
            unit_finish()
        else:
            p('s_cmp_eq_u32 s63, 0')
            p(f's_cbranch_scc1 L_nounit_{tag}')
            unit_finish()
            p.label(f'L_nounit_{tag}')
    if gate:
        if CFG['TEARLY']:
            gate_store(p)
        else:
            gate_job(p, GX, GW)
    stamp(p, 3)
    if CFG['PROF']:
        prof_store(p, 4, 'LD' + tag, SRD_WS)
    p('s_endpgm')


def prof_debug(p, n, tag, sbase=90):
    p('s_waitcnt lgkmcnt(0) vmcnt(0)')
    p('s_and_b32 s86, s2, 127')
    p('s_cmp_eq_u32 s86, 0')
    p(f's_cbranch_scc0 L_pd_{tag}')
    p(f's_and_b32 s86, s{S_WAVE}, 3')
    p('s_cmp_eq_u32 s86, 0')
    p(f's_cbranch_scc0 L_pd_{tag}')
    p('s_load_dwordx2 s[76:77], s[0:1], 80')
    p('s_waitcnt lgkmcnt(0)')
    p('s_mov_b32 s78, 256')
    p('s_mov_b32 s79, 0x20000')
    p('s_lshr_b32 s86, s2, 7')
    p('s_lshl_b32 s86, s86, 1')
    p(f's_lshr_b32 s85, s{S_WAVE}, 2')
    p('s_add_u32 s86, s86, s85')
    p('s_lshl_b32 s86, s86, 4')
    p('v_mov_b32 v1, 0')
    for i in range(n):
        p(f's_sub_u32 s85, s{sbase+2*i}, s88')
        p('v_mov_b32 v0, s85')
        p(f'buffer_store_dword v0, v1, s[76:79], s86 offen offset:{4*i}')
    p('s_waitcnt vmcnt(0)')
    p.label(f'L_pd_{tag}')


_pd = [0]


def prof_collect(p, srdws):
    p('s_waitcnt lgkmcnt(0) vmcnt(0)')
    p(f's_or_b32 s86, s2, s{S_WAVE}')
    p('s_cmp_eq_u32 s86, 0')
    p('s_cbranch_scc0 L_pc5')
    p('s_load_dwordx2 s[76:77], s[0:1], 80')
    p(f's_mov_b32 s{srdws+2}, 0x10000000')
    p('v_mbcnt_lo_u32_b32 v0, -1, 0')
    p('v_mbcnt_hi_u32_b32 v0, -1, v0')
    p('v_lshrrev_b32 v1, 2, v0')
    p('v_and_b32 v2, 3, v0')
    p('v_lshlrev_b32 v2, 2, v2')
    p('v_cmp_eq_u32 vcc, 1, v1')
    p('v_mov_b32 v3, 0')
    p('v_mov_b32 v4, 256')
    p('v_cndmask_b32 v3, v3, v4, vcc')
    p('v_cmp_eq_u32 vcc, 2, v1')
    p(f'v_mov_b32 v4, {128*8*64}')
    p('v_cndmask_b32 v3, v3, v4, vcc')
    p('v_add_u32 v3, v3, v2')
    p(f'v_add_u32 v3, {PROF_OFF}, v3')
    p(f'buffer_load_dword v5, v3, s[{srdws}:{srdws+3}], 0 offen')
    p(f'v_mov_b32 v6, {PROF_OFF + 60}')
    p(f'buffer_load_dword v7, v6, s[{srdws}:{srdws+3}], 0 offen')
    p('s_waitcnt vmcnt(0) lgkmcnt(0)')
    p('s_mov_b32 s78, 256')
    p('s_mov_b32 s79, 0x20000')
    p('v_sub_u32 v5, v5, v7')
    for ln, sr_ in ((12, 88), (13, 90), (14, 94), (15, 96)):
        p(f'v_mov_b32 v8, s{sr_}')
        p('v_sub_u32 v8, v8, v7')
        p(f'v_cmp_eq_u32 vcc, {ln}, v0')
        p('v_cndmask_b32 v5, v5, v8, vcc')
    p('v_lshlrev_b32 v0, 2, v0')
    p('v_cmp_gt_u32 vcc, 64, v0')
    p('s_and_saveexec_b64 s[84:85], vcc')
    p('buffer_store_dword v5, v0, s[76:79], 0 offen')
    p('s_waitcnt vmcnt(0)')
    p.label('L_pc5')


def prof_store(p, n, tag, srdws, sbase=90):
    if CFG['PROF'] == 5 and tag.startswith('K2'):
        return prof_collect(p, srdws)
    if CFG['PROF'] == 4:
        _pd[0] += 1
        return prof_debug(p, n, tag + str(_pd[0]), sbase)
    return prof_store_ws(p, n, tag, srdws, sbase)


def prof_store_ws(p, n, tag, srdws, sbase=90):
    p('s_memtime s[80:81]')
    p('s_memrealtime s[78:79]')
    p('s_waitcnt lgkmcnt(0) vmcnt(0)')
    p('s_sub_u32 s80, s80, s82')
    p('s_sub_u32 s78, s78, s88')
    p(f's_mov_b32 s{srdws+2}, 0x10000000')
    p(f's_lshl_b32 s86, s2, 3')
    p(f's_add_u32 s86, s86, s{S_WAVE}')
    p(f's_lshl_b32 s86, s86, 6')
    p(f's_add_u32 s86, s86, {PROF_OFF + (0 if not tag.startswith("K2") else (1 << 20))}')
    if CFG['PROF'] == 3:
        p(f's_lshl_b32 s85, s2, 3')
        p(f's_add_u32 s85, s85, s{S_WAVE}')
        p(f's_lshl_b32 s85, s85, 8')
        p(f's_add_u32 s85, s85, {PROF_OFF + (2 << 20)}')
        p('v_mbcnt_lo_u32_b32 v0, -1, 0')
        p('v_mbcnt_hi_u32_b32 v0, -1, v0')
        p('v_lshlrev_b32 v0, 2, v0')
        if not tag.startswith('K2'):
            p(f'buffer_store_dword v254, v0, s[{srdws}:{srdws+3}], s85 offen')
    p('v_mov_b32 v1, 0')
    p('v_mov_b32 v0, s88')
    p(f'buffer_store_dword v0, v1, s[{srdws}:{srdws+3}], s86 offen offset:60')
    p('v_mov_b32 v0, s80')
    p(f'buffer_store_dword v0, v1, s[{srdws}:{srdws+3}], s86 offen offset:56')
    p('v_mov_b32 v0, s78')
    p(f'buffer_store_dword v0, v1, s[{srdws}:{srdws+3}], s86 offen offset:52')
    for i in range(n):
        p(f'v_mov_b32 v0, s{sbase+2*i}')
        p(f'buffer_store_dword v0, v1, s[{srdws}:{srdws+3}], s86 offen offset:{4*i}')
    if CFG['PROF'] == 6 and tag == 'CA':
        for i, r in enumerate((72, 74, 76)):
            p(f'v_mov_b32 v0, s{r}')
            p(f'buffer_store_dword v0, v1, s[{srdws}:{srdws+3}], s86 offen offset:{16+4*i}')
    p('s_waitcnt vmcnt(0)')


def gate_store(p):
    p(f'buffer_store_dwordx2 v[38:39], v37, s[{SRD_WS}:{SRD_WS+3}], 0 offen {CFG["STF"]}')


def gate_job(p, GX, GW, store=True):
    T = 104
    p('v_mov_b32 v34, 0')
    p('v_mov_b32 v35, 0')
    p('v_mov_b32 v36, 0x3f803f80')
    p('s_mov_b32 s78, 0xffff0000')
    for d in range(20):
        x, w = GX + d, GW + d
        t = T + 6 * (d & 1)
        p(f'v_lshlrev_b32 v{t}, 16, v{x}')
        p(f'v_and_b32 v{t+1}, s78, v{x}')
        p(f'v_lshlrev_b32 v{t+2}, 16, v{w}')
        p(f'v_and_b32 v{t+3}, s78, v{w}')
        p(f'v_pk_mul_f32 v[{t}:{t+1}], v[{t}:{t+1}], v[{t+2}:{t+3}]')
        p(f'v_cvt_pk_bf16_f32 v{t+4}, v{t}, v{t+1}')
        acc = 34 + (d & 1)
        p(f'v_dot2_f32_bf16 v{acc}, v{t+4}, v36, v{acc}')
    p('v_add_f32 v34, v34, v35')
    for sh in (8, 4, 2, 1):
        p(f'v_add_f32_dpp v34, v34, v34 row_ror:{sh} row_mask:0xf bank_mask:0xf')
    p('v_cvt_pk_bf16_f32 v35, v34, v34')
    p('v_lshlrev_b32 v35, 16, v35')
    p(f'v_mul_f32 v35, {hexf(-math.log2(math.e))}, v35')
    p('v_exp_f32 v35, v35')
    p('v_add_f32 v35, 1.0, v35')
    p('v_rcp_f32 v35, v35')
    p('v_cvt_pk_bf16_f32 v35, v35, v35')
    p('v_lshlrev_b32 v38, 16, v35')
    p('v_sub_f32 v39, 1.0, v38')
    p('v_cvt_pk_bf16_f32 v39, v39, v39')
    p('v_lshlrev_b32 v39, 16, v39')
    p('v_lshlrev_b32 v37, 3, v31')
    p(f'v_add_u32 v37, {G_OFF}, v37')
    if store:
        gate_store(p)


A_QM = lambda h, t: 0 + (h * 4 + t) * 4
A_KM = lambda h, kt: 32 + (h * 5 + kt) * 4
A_QKT = lambda kt: 72 + 4 * kt
A_VM = lambda h, kt: 92 + (h * 5 + kt) * 4
A_VT = lambda kt: 132 + 4 * kt
WF = lambda f: 152 + 4 * f
XF = lambda b, t: 184 + 20 * b + 4 * t
V_X0, V_X1, V_W, V_WA, V_WB = 224, 225, 226, 227, 228
V_BPREV, V_BCUR, V_BFIRST, V_SEL = 232, 236, 240, 244
F_ACC = lambda f, t: (f * 4 + t) * 4


class LgkmTracker:
    def __init__(self, p):
        self.p = p
        self.q = []

    def issue(self, tag):
        self.q.append(tag)

    def need(self, tags):
        idx = -1
        for i, t in enumerate(self.q):
            if t in tags:
                idx = i
        if idx < 0:
            return
        n = len(self.q) - 1 - idx
        self.p(f's_waitcnt lgkmcnt({min(n, 15)})')
        keep = min(n, 15)
        self.q = self.q[len(self.q) - keep:] if keep else []

    def drain(self):
        self.p('s_waitcnt lgkmcnt(0)')
        self.q = []


def consumer_loop(p, attn, th=None):
    tag = ('A' if attn else 'F') + ('' if th is None else str(th))
    NT = 5 if attn else 4
    xoff = lambda t: 2048 * t
    if attn:
        kk = range(5) if th in (None, 0) else range(1, 5)
        vk = range(5) if th in (None, 1) else range(1, 5)
        if th == 1:
            xoff = lambda t: 0 if t == 0 else 8192 + 2048 * t
        tiles = []
        for h in range(2):
            tiles.append([(A_QM(h, t), t + 1, 'F') for t in range(4)])
        for h in range(2):
            tiles.append([(A_KM(h, k), k, 'F') for k in kk])
        tiles.append([(A_QKT(k), k, 'F') for k in kk])
        for h in range(2):
            tiles.append([(A_VM(h, k), k, 'T') for k in vk])
        tiles.append([(A_VT(k), k, 'T') for k in vk])
        waddr = [(V_W, 0), (V_W, 40), (V_W, 160), (V_W, 200), (V_WA, 0), (V_W, 320), (V_W, 360), (V_WB, 0)]
    else:
        tiles = [[(F_ACC(f, t), t, 'F') for t in range(4)] for f in range(7)]
        waddr = [(V_W, 32 * f) for f in range(6)] + [(V_WA, 0)]
    NF = len(tiles)

    lg = LgkmTracker(p)

    def rd_w(f, s):
        if CFG['NODS']:
            return
        a, off = waddr[f]
        off += s * 32 * WROW
        p(f'ds_read_b64_tr_b16 v[{WF(f)}:{WF(f)+1}], v{a} offset:{off}')
        lg.issue(('w', f))
        p(f'ds_read_b64_tr_b16 v[{WF(f)+2}:{WF(f)+3}], v{a} offset:{off + 8*WROW}')
        lg.issue(('w', f))

    def rd_x(t, s):
        if CFG['NODS']:
            return
        p(f'ds_read_b128 v[{XF(s,t)}:{XF(s,t)+3}], v{V_X1 if s else V_X0} offset:{2048*t}')
        lg.issue(('x', s, t))

    LAST = NF - 1

    def wreads(f, s):
        a, off = waddr[f]
        off += s * 32 * WROW
        return [(f'ds_read_b64_tr_b16 v[{WF(f)}:{WF(f)+1}], v{a} offset:{off}', ('w', f)),
                (f'ds_read_b64_tr_b16 v[{WF(f)+2}:{WF(f)+3}], v{a} offset:{off + 8*WROW}', ('w', f))]

    def xread(t, s):
        return (f'ds_read_b128 v[{XF(s,t)}:{XF(s,t)+3}], v{V_X1 if s else V_X0} offset:{xoff(t)}', ('x', s, t))

    def emit(item):
        if CFG['NODS']:
            return
        p(item[0])
        lg.issue(item[1])

    order_log = []

    def packing():
        cv = lambda d, a: f'v_cvt_pk_bf16_f32 v{d}, v{a}, v{a+1}'
        out = []
        for h in range(2):
            for t in range(4):
                b = A_QM(h, t)
                out += [(h, cv(b, b)), (h, cv(b + 1, b + 2))]
        for h in range(2):
            for kt in kk:
                b = A_KM(h, kt)
                out += [(2 + h, cv(b, b)), (2 + h, cv(b + 1, b + 2))]
        for kt in kk:
            t = A_QKT(kt)
            out += [(4, cv(t, t)), (4, cv(t + 1, t + 2))]
        for kt in kk:
            t, k0 = A_QKT(kt), A_KM(0, kt)
            out += [(4, f'v_mov_b32 v{k0+2}, v{t}'), (4, f'v_mov_b32 v{k0+3}, v{t+1}')]
        return out

    def step(s, dry=False, last=False, first=False):
        nxt = 1 - s
        q = wreads(LAST, s)
        xq = [xread(t, nxt) for t in range(NT)]
        held = []
        upd = [V_W, V_X0, V_X1, V_WA] + ([V_WB] if attn else [])
        pk = []
        if last:
            xq, upd = [], []
            pk = packing() if attn else []
        if first:
            xq = []
        zq = []
        for f in range(NF):
            if not dry:
                lg.need({('w', f)} | ({('x', s, t) for t in range(NT)} if f == 0 else set()))
                if attn and CFG['ZVT'] and f == LAST - 1:
                    lg.need({('w', LAST)})
                    zq = [f'v_cndmask_b32 v{WF(LAST)+k}, 0, v{WF(LAST)+k}, s[68:69]' for k in range(4)]
            for n, (acc, t, o) in enumerate(tiles[f]):
                w, x = f'v[{WF(f)}:{WF(f)+3}]', f'v[{XF(s,t)}:{XF(s,t)+3}]'
                a, b = (w, x) if o == 'F' else (x, w)
                if not CFG['NOMFMA'] and not dry:
                    p(f'v_mfma_f32_16x16x32_bf16 v[{acc}:{acc+3}], {a}, {b}, v[{acc}:{acc+3}]')
                item = None
                if q:
                    item = q.pop(0)
                elif xq and (s == 0 or f >= 2):
                    item = xq.pop(0)
                if item is not None:
                    if dry:
                        order_log.append(item)
                    else:
                        emit(item)
                if not dry and s == 0 and f == LAST and n == 1 and not first:
                    p(f's_add_u32 s53, s53, {SLOT}')
                    p(f's_cmp_eq_u32 s53, {3*SLOT}')
                if not dry and s == 0 and f == LAST and n == 2 and not first:
                    p(f's_cselect_b32 s54, s51, {SLOT}')
                    p('s_cselect_b32 s53, 0, s53')
                if not dry and s == 1 and item is None and upd and (f, n) >= (0, 2):
                    p(f'v_add_u32 v{upd[0]}, s54, v{upd[0]}')
                    upd.pop(0)
                if zq and not dry:
                    p(zq.pop(0))
                for _ in range(2 - (1 if (attn and CFG['ZVT'] and f == LAST - 1) else 0)):
                    if pk and pk[0][0] + 2 <= f:
                        p(pk.pop(0)[1])
            if f < LAST and not last and not first:
                rs = wreads(f, nxt)
                if s == 1 and f < 1:
                    held += rs
                elif s == 1 and f == 1:
                    assert not q
                    if not dry:
                        assert not upd
                        if CFG['PROF'] == 3:
                            p('s_memtime s[70:71]')
                        lg.drain()
                        if CFG['PROF'] == 3:
                            p('s_lshl_b32 m0, s52, 1')
                            p('s_nop 3')
                            p('v_writelane_b32 v254, s70, m0')
                            p('s_add_u32 s74, m0, 63')
                            p('s_and_b32 m0, s74, 63')
                            p('s_nop 3')
                            p('v_writelane_b32 v254, s72, m0')
                        if CFG['PEEL']:
                            p('s_barrier')
                        else:
                            p('s_cmp_eq_u32 s52, 9')
                            p(f's_cbranch_scc1 L_nobar_{tag}')
                            p('s_barrier')
                            p.label(f'L_nobar_{tag}')
                        if CFG['PROF'] == 3:
                            p('s_memtime s[72:73]')
                    q += held + rs
                    held = []
                else:
                    q += rs
        assert not q and not xq, (q, xq)
        for _, ins in pk:
            p(ins)

    step(1, dry=True)
    for item in order_log[2:]:
        emit(item)
    p('s_mov_b32 s52, 0')
    p('s_mov_b32 s53, 0')
    p(f's_mov_b32 s51, {(-2*SLOT) & 0xffffffff}')
    if CFG['HALF']:
        q_steady = list(lg.q)
        step(0, first=True)
        p('s_barrier')
        del order_log[:]
        step(0, dry=True)
        for item in order_log[2:]:
            emit(item)
        p(f's_add_u32 s53, s53, {SLOT}')
        p(f's_mov_b32 s54, {SLOT}')
        lg.drain()
        p(f's_branch L_mid_{tag}')
        lg.q = q_steady
    if CFG['ALIGN']:
        p(f'.p2align {CFG["ALIGN"]}')
    p.label(f'L_loop_{tag}')
    q_head = list(lg.q)
    step(0)
    if CFG['HALF']:
        p.label(f'L_mid_{tag}')
    step(1)
    q_end = list(lg.q)
    assert q_end == q_head, (q_end, q_head)
    p('s_add_u32 s52, s52, 1')
    p(f's_cmp_lt_u32 s52, {9 if CFG["PEEL"] else 10}')
    p(f's_cbranch_scc1 L_loop_{tag}')
    if CFG['PEEL']:
        step(0)
        step(1, last=True)
    lg.drain()


def check_loop_waits():
    pass


def tlb_touch(p, tag):
    if not CFG['TT']:
        return
    p(f's_cmp_eq_u32 s{S_WAVE}, 1')
    p(f's_cbranch_scc0 L_tt1{tag}')
    for i in range(7):
        p(f's_mov_b32 s70, {i << 21}')
        p(f's_load_dword s{71+i}, s[{S_WS}:{S_WS+1}], s70')
    p.label(f'L_tt1{tag}')
    p(f's_cmp_eq_u32 s{S_WAVE}, 2')
    p(f's_cbranch_scc0 L_tt2{tag}')
    p(f's_load_dword s71, s[{S_WO}:{S_WO+1}], 0')
    p(f's_load_dword s72, s[{S_W2}:{S_W2+1}], 0')
    p(f's_mov_b32 s70, {(1 << 21) + 4096}')
    p(f's_load_dword s73, s[{S_W2}:{S_W2+1}], s70')
    p(f's_load_dword s74, s[{S_GW}:{S_GW+1}], 0')
    p(f's_load_dword s75, s[{S_B2}:{S_B2+1}], 0')
    p('s_load_dword s76, s[100:101], 0')
    p('s_load_dword s77, s[100:101], s70')
    p.label(f'L_tt2{tag}')
    if CFG['TL']:
        p(f's_cmp_eq_u32 s{S_WAVE}, 3')
        p(f's_cbranch_scc0 L_tt3{tag}')
        for i in range(1, 10):
            p(f's_load_dword s{70+(i%8)}, s[{S_B2}:{S_B2+1}], {128*i}')
        for i in range(1, 10):
            p(f's_load_dword s{70+(i%8)}, s[{S_GW}:{S_GW+1}], {128*i}')
        p.label(f'L_tt3{tag}')


def prefetch_setup(p, attn):
    rowstride = 3840 if attn else 3456
    p(f's_lshl_b32 s57, s{S_WAVE}, 6')
    p('v_add_u32 v9, s57, v2')
    p(f's_and_b32 s57, s{S_RB}, 7')
    p('s_lshl_b32 s57, s57, 3')
    p('s_add_u32 s57, s57, 128')
    p(f's_mov_b32 s58, {rowstride}')
    if attn:
        p(f's_mul_i32 s59, s{S_CG}, 160')
        p('s_andn2_b32 s59, s59, 127')
        for rnd in range(2):
            p(f'v_add_u32 v3, {256*rnd}, v9')
            p('v_min_u32 v3, 383, v3')
            p('v_mul_u32_u24 v4, 1366, v3')
            p('v_lshrrev_b32 v4, 16, v4')
            p('v_mul_u32_u24 v5, 48, v4')
            p('v_sub_u32 v5, v3, v5')
            p('v_mul_u32_u24 v6, 43, v5')
            p('v_lshrrev_b32 v6, 8, v6')
            p('v_mul_u32_u24 v7, 6, v6')
            p('v_sub_u32 v7, v5, v7')
            p('v_lshl_add_u32 v4, v4, 6, v6')
            p('v_add_u32 v4, s57, v4')
            p('v_mul_u32_u24 v4, s58, v4')
            p('v_lshrrev_b32 v5, 1, v7')
            p('v_mul_u32_u24 v5, 1280, v5')
            p('v_and_b32 v7, 1, v7')
            p('v_lshl_add_u32 v5, v7, 7, v5')
            p(f'v_add3_u32 v{249+rnd}, v4, v5, s59')
    else:
        p(f's_mul_i32 s59, s{S_CG}, 448')
        p('s_andn2_b32 s59, s59, 127')
        p('v_lshrrev_b32 v4, 5, v9')
        p('v_bfe_u32 v6, v9, 2, 3')
        p('v_lshl_add_u32 v4, v4, 6, v6')
        p('v_add_u32 v4, s57, v4')
        p('v_mul_u32_u24 v4, s58, v4')
        p('v_and_b32 v7, 3, v9')
        p('v_lshlrev_b32 v7, 7, v7')
        p('v_add3_u32 v249, v4, v7, s59')
    p(f's_and_b32 s57, s{S_CG}, 1')
    p(f's_lshl_b32 s58, s{S_TYPE}, 1')
    p('s_add_u32 s57, s57, s58')
    p('s_lshl_b32 s57, s57, 5')
    p(f's_lshl_b32 s58, s{S_RB}, 7')
    p('s_add_u32 s57, s57, s58')
    p('v_and_b32 v4, 31, v9')
    p('v_add_u32 v4, s57, v4')
    p('v_mul_u32_u24 v4, 1280, v4')
    p('v_lshrrev_b32 v5, 5, v9')
    p('v_lshlrev_b32 v5, 7, v5')
    p('v_add3_u32 v251, v4, v5, 256' .replace(', 256', ', s99'))


def prefetch_issue(p, attn):
    if not CFG['PF']:
        return
    p(f'buffer_load_dword v255, v251, s[{SRD_X}:{SRD_X+3}], 0 offen {CFG["PFF"]}')
    p(f'buffer_load_dword v255, v249, s[{SRD_W}:{SRD_W+3}], 0 offen {CFG["PFF"]}')
    if attn:
        p(f'buffer_load_dword v255, v250, s[{SRD_W}:{SRD_W+3}], 0 offen {CFG["PFF"]}')


def attn_prologue(p):
    p(f's_and_b32 s55, s{S_WAVE}, 1')
    p(f's_lshr_b32 s56, s{S_WAVE}, 1')
    p('v_and_b32 v3, 15, v2')
    p('v_lshrrev_b32 v4, 4, v2')
    p('v_lshrrev_b32 v5, 1, v3')
    p('v_xor_b32 v5, v5, v4')
    p('v_lshlrev_b32 v5, 4, v5')
    p('v_lshl_add_u32 v5, v3, 7, v5')
    if CFG['M35']:
        p(f'v_mov_b32 v{V_X0}, v5')
    else:
        p('s_lshl_b32 s57, s56, 13')
        p(f'v_add_u32 v{V_X0}, s57, v5')
    p(f'v_xor_b32 v{V_X1}, 64, v{V_X0}')
    p('v_lshrrev_b32 v5, 5, v2')
    p('v_lshlrev_b32 v5, 4, v5')
    p('v_bfe_u32 v6, v2, 4, 1')
    p('v_lshl_add_u32 v5, v6, 2, v5')
    p('v_bfe_u32 v6, v2, 2, 2')
    p('v_add_u32 v5, v5, v6')
    p(f'v_mul_u32_u24 v5, {WROW}, v5')
    p('s_mul_i32 s57, s55, 80')
    p(f's_add_u32 s57, s57, {XREG}')
    p('v_add_u32 v5, s57, v5')
    p('v_and_b32 v6, 3, v2')
    p(f'v_lshl_add_u32 v{V_W}, v6, 3, v5')
    p('v_and_b32 v7, 1, v6')
    p('v_mul_u32_u24 v7, 40, v7')
    p('v_add_u32 v7, v7, v5')
    p('v_lshrrev_b32 v6, 1, v6')
    p('v_mul_u32_u24 v6, 160, v6')
    p(f'v_add3_u32 v{V_WA}, v7, v6, 32')
    p(f'v_add_u32 v{V_WB}, 352, v7')
    p('v_lshlrev_b32 v5, 2, v4')
    p('v_sub_u32 v5, v3, v5')
    p(f's_mov_b32 s58, {hexf(-1e30)}')
    p('v_mov_b32 v8, s58')
    p(f's_or_b32 s59, s{S_RB}, s56')
    p('s_cmp_eq_u32 s59, 0')
    p('s_cselect_b64 s[60:61], -1, 0')
    for r in range(4):
        p(f'v_subrev_u32 v6, {r}, v5')
        p('v_and_b32 v7, 1, v6')
        p('v_cmp_eq_u32 s[62:63], 0, v7')
        p('v_cmp_ge_i32 s[64:65], v6, 0')
        p('s_and_b64 s[66:67], s[62:63], s[64:65]')
        p('s_andn2_b64 s[68:69], s[62:63], s[64:65]')
        p(f'v_cndmask_b32 v{V_BCUR+r}, v8, 0, s[66:67]')
        p(f'v_cndmask_b32 v{V_BPREV+r}, v8, 0, s[68:69]')
        p(f'v_cndmask_b32 v{V_BFIRST+r}, v{V_BPREV+r}, v8, s[60:61]')
    p('v_and_b32 v7, 1, v3')
    p('v_cmp_eq_u32 s[62:63], 0, v7')
    for k, (lo, hi) in enumerate([(0x0c0c0100, 0x01000c0c), (0x0c0c0302, 0x03020c0c)]):
        p(f'v_mov_b32 v6, {hex(hi)}')
        p(f'v_mov_b32 v9, {hex(lo)}')
        p('v_cndmask_b32 v9, v6, v9, s[62:63]')
        p('v_sub_u32 v6, v5, v7')
        if k:
            p('v_subrev_u32 v6, 2, v6')
        p('v_cmp_ge_i32 s[64:65], v6, 0')
        p('v_mov_b32 v6, 0x0c0c0c0c')
        p(f'v_cndmask_b32 v{V_SEL+k}, v9, v6, s[64:65]')
        p(f'v_cndmask_b32 v{V_SEL+2+k}, v6, v9, s[64:65]')
    p('v_lshlrev_b32 v248, 4, v2')
    if CFG['M35']:
        p('s_lshl_b32 s57, s55, 13')
        p(f's_add_u32 s57, s57, {2*SLOT}')
        p('v_add_u32 v249, s57, v248')
        p('v_lshrrev_b32 v250, 1, v248')
        p('v_add_u32 v250, s57, v250')
        p('s_lshl_b32 s57, s55, 3')
        p(f's_add_u32 s57, s57, {XFLAG}')
        p('v_mov_b32 v251, s57')
        p('v_mov_b32 v252, 0')
        p('v_mov_b32 v253, 0')
        p('ds_write_b64 v251, v[252:253]')
    for r in range(152):
        p(f'v_mov_b32 v{r}, 0')


def attn_epilogue(p, th=None):
    cvt = lambda d, a: p(f'v_cvt_pk_bf16_f32 v{d}, v{a}, v{a+1}')
    tg = '' if th is None else str(th)
    kk = list(range(5)) if th in (None, 0) else [1, 2, 3, 4]
    vk = list(range(5)) if th in (None, 1) else [1, 2, 3, 4]
    p('s_nop 7')

    def pack_k(kts):
        if CFG['PEEL']:
            return
        for kt in kts:
            for h in range(2):
                b = A_KM(h, kt)
                cvt(b, b)
                cvt(b + 1, b + 2)
            t = A_QKT(kt)
            cvt(t, t)
            cvt(t + 1, t + 2)
        for kt in kts:
            t, k0 = A_QKT(kt), A_KM(0, kt)
            p(f'v_mov_b32 v{k0+2}, v{t}')
            p(f'v_mov_b32 v{k0+3}, v{t+1}')

    def tails_k(kts):
        for kt in kts:
            t, k0 = A_QKT(kt), A_KM(0, kt)
            p(f'v_permlane32_swap_b32 v{t}, v{k0+2}')
            p(f'v_permlane32_swap_b32 v{t+1}, v{k0+3}')

    def copy_k(kts):
        for kt in kts:
            k0, k1 = A_KM(0, kt), A_KM(1, kt)
            p(f'v_mov_b32 v{k1+2}, v{k0+2}')
            p(f'v_mov_b32 v{k1+3}, v{k0+3}')

    def pack_v():
        for kt in vk:
            for base, b in ((A_VM(0, 0), A_VM(0, kt)), (A_VM(1, 0), A_VM(1, kt)), (A_VT(0), A_VT(kt))):
                cvt(base + 2 * kt, b)
                cvt(base + 2 * kt + 1, b + 2)

    vbases = (A_VM(0, 0), A_VM(1, 0), A_VT(0))
    if th == 0:
        pack_k([4])
        pack_v()
        tails_k([4])
        rest = [0, 1, 2, 3]
        pack_k(rest[:1])
        copy_k([4])
        p(f'ds_write_b128 v249, v[{A_KM(0,4)}:{A_KM(0,4)+3}]')
        p(f'ds_write_b128 v249, v[{A_KM(1,4)}:{A_KM(1,4)+3}] offset:1024')
        for i, vb in enumerate(vbases):
            p(f'ds_write_b64 v250, v[{vb+8}:{vb+9}] offset:{2048 + 512*i}')
        pack_k(rest[1:])
        p('s_waitcnt lgkmcnt(0)')
        p('v_mov_b32 v252, 1')
        p('ds_write_b32 v251, v252')
        tails_k(rest)
    elif th == 1:
        pack_v()
        for i, vb in enumerate(vbases):
            p(f'ds_write_b64 v250, v[{vb}:{vb+1}] offset:{4096 + 512*i}')
        rest = [1, 2, 3, 4]
        pack_k(rest)
        p('s_waitcnt lgkmcnt(0)')
        p('v_mov_b32 v252, 1')
        p('ds_write_b32 v251, v252 offset:4')
        tails_k(rest)
    else:
        rest = [0, 1, 2, 3, 4]
        pack_k(rest)
        pack_v()
        tails_k(rest)
    for h in range(2):
        for t in range(4):
            b = A_QM(h, t)
            if not CFG['PEEL']:
                cvt(b, b)
                cvt(b + 1, b + 2)
    copy_k(rest)
    p('s_mov_b32 s60, 0x0000ffff')
    p('s_mov_b32 s61, 0')
    p('s_mov_b32 s62, 0xffff0000')
    p('s_mov_b32 s63, 0')
    for t in range(4):
        for h in range(2):
            q, x = A_QM(h, t), A_QKT(t + 1)
            p(f'v_cndmask_b32 v{q+2}, 0, v{x}, s[{60+2*h}:{61+2*h}]')
            p(f'v_cndmask_b32 v{q+3}, 0, v{x+1}, s[{60+2*h}:{61+2*h}]')
    S = lambda t, h: 152 + (t * 2 + h) * 8

    def qk(t):
        for h in range(2):
            q = A_QM(h, t)
            bp = V_BFIRST if t == 0 else V_BPREV
            kp, kc = A_KM(h, t), A_KM(h, t + 1)
            p(f'v_mfma_f32_16x16x32_bf16 v[{S(t,h)}:{S(t,h)+3}], v[{kp}:{kp+3}], v[{q}:{q+3}], v[{bp}:{bp+3}]')
            p(f'v_mfma_f32_16x16x32_bf16 v[{S(t,h)+4}:{S(t,h)+7}], v[{kc}:{kc+3}], v[{q}:{q+3}], v[{V_BCUR}:{V_BCUR+3}]')

    for t in (3, 2, 1):
        qk(t)
    if CFG['PROF'] == 6:
        p('s_memtime s[72:73]')
    if th is not None:
        p.label(f'L_xspin{th}')
        p(f'ds_read_b32 v252, v251 offset:{4 if th == 0 else 0}')
        p('s_waitcnt lgkmcnt(0)')
        p('v_readfirstlane_b32 s70, v252')
        p('s_cmp_eq_u32 s70, 0')
        p(f's_cbranch_scc1 L_xspin{th}')
        if th == 1:
            p(f'ds_read_b128 v[{A_KM(0,0)}:{A_KM(0,0)+3}], v249')
            p(f'ds_read_b128 v[{A_KM(1,0)}:{A_KM(1,0)+3}], v249 offset:1024')
        for i, vb in enumerate(vbases):
            p(f'ds_read_b64 v[{vb}:{vb+1}], v250 offset:{(2048 if th == 1 else 4096) + 512*i}')
        p('s_waitcnt lgkmcnt(0)')
    qk(0)
    if CFG['PROF'] == 6:
        p('s_memtime s[74:75]')
    cs = (20 ** -0.5) * math.log2(math.e)
    p(f's_mov_b32 s64, {hexf(cs)}')
    p(f's_mov_b32 s65, {hexf(cs)}')
    inst = [(t, h) for t in (3, 2, 1, 0) for h in range(2)]
    for (t, h) in inst:
        s = S(t, h)
        p(f'v_max3_f32 v{s}, v{s}, v{s+1}, v{s+4}')
        p(f'v_max3_f32 v{s+2}, v{s+2}, v{s+3}, v{s+6}')
    for (t, h) in inst:
        s = S(t, h)
        p(f'v_max_f32 v{s}, v{s}, v{s+5}')
        p(f'v_max_f32 v{s+1}, v{s+2}, v{s+7}')
    for (t, h) in inst:
        s = S(t, h)
        p(f'v_max_f32 v{s+2}, v{s}, v{s+1}')

    def cross(groups, op, mid):
        for (A, B, C, D) in groups:
            p(f'v_permlane32_swap_b32 v{A}, v{B}')
            p(f'v_permlane32_swap_b32 v{C}, v{D}')
        for (A, B, C, D) in groups:
            p(f'{op} v{A}, v{A}, v{B}')
            p(f'{op} v{C}, v{C}, v{D}')
        for (A, B, C, D) in groups:
            p(f'v_permlane16_swap_b32 v{A}, v{C}')
        for (A, B, C, D) in groups:
            p(f'{op} v{A}, v{A}, v{C}')
        for (A, B, C, D) in groups:
            mid(A)
        for (A, B, C, D) in groups:
            p(f'v_mov_b32 v{C}, v{A}')
        for (A, B, C, D) in groups:
            p(f'v_permlane16_swap_b32 v{A}, v{C}')
        for (A, B, C, D) in groups:
            p(f'v_mov_b32 v{B}, v{A}')
            p(f'v_mov_b32 v{D}, v{C}')
        for (A, B, C, D) in groups:
            p(f'v_permlane32_swap_b32 v{A}, v{B}')
            p(f'v_permlane32_swap_b32 v{C}, v{D}')

    grp = lambda o: [tuple(S(t, h) + o for (t, h) in inst[0:4]), tuple(S(t, h) + o for (t, h) in inst[4:8])]
    cross(grp(2), 'v_max_f32', lambda A: p(f'v_mul_f32 v{A}, s64, v{A}'))
    for (t, h) in inst:
        s = S(t, h)
        p(f'v_pk_fma_f32 v[{s}:{s+1}], v[{s}:{s+1}], s[64:65], v[{s+2}:{s+3}] op_sel_hi:[1,1,0] neg_lo:[0,0,1] neg_hi:[0,0,1]')
    for (t, h) in inst:
        s = S(t, h)
        p(f'v_exp_f32 v{s}, v{s}')
        p(f'v_exp_f32 v{s+1}, v{s+1}')
    for (t, h) in inst:
        s = S(t, h)
        p(f'v_add_f32 v{s+2}, v{s}, v{s+1}')
    cross(grp(2), 'v_add_f32', lambda A: p(f'v_rcp_f32 v{A}, v{A}'))
    for (t, h) in inst:
        s = S(t, h)
        p(f'v_pk_mul_f32 v[{s}:{s+1}], v[{s}:{s+1}], v[{s+2}:{s+3}] op_sel_hi:[1,0]')
    for (t, h) in inst:
        s = S(t, h)
        p(f'v_cvt_pk_bf16_f32 v{s+2}, v{s}, v{s+1}')
    if CFG['PROF'] == 6:
        p('s_memtime s[76:77]')

    def perm(i):
        s = S(*inst[i])
        for k in range(4):
            p(f'v_perm_b32 v{s+4+k}, v{s+2}, v{s+2}, v{V_SEL+k}')

    def pv(i):
        t, h = inst[i]
        s = S(t, h)
        va, vt = A_VM(h, 0) + 2 * t, A_VT(0) + 2 * t
        om, ot = A_QM(h, t), A_KM(h, t)
        p(f'v_mfma_f32_16x16x32_bf16 v[{om}:{om+3}], v[{va}:{va+3}], v[{s+4}:{s+7}], 0')
        p(f'v_mfma_f32_16x16x32_bf16 v[{ot}:{ot+3}], v[{vt}:{vt+3}], v[{s+4}:{s+7}], 0')

    def pack_main(t):
        for h in range(2):
            o = A_QM(h, t)
            d = S(t, 0) + 2 * h
            p(f'v_cvt_pk_bf16_f32 v{d}, v{o}, v{o+1}')
            p(f'v_cvt_pk_bf16_f32 v{d+1}, v{o+2}, v{o+3}')
        d = S(t, 0)
        p(f's_add_u32 s68, s66, {t*20480}')
        p(f'buffer_store_dwordx4 v[{d}:{d+3}], v248, s[{SRD_WS}:{SRD_WS+3}], s68 offen {CFG["STFO"]}')

    def pack_tail(t):
        d = S(t & 2, 1) + 2 * (t & 1)
        o0, o1 = A_KM(0, t), A_KM(1, t)
        for rr in range(4):
            p(f'v_cndmask_b32 v{o0+rr}, v{o0+rr}, v{o1+rr}, s[62:63]')
        p(f'v_cvt_pk_bf16_f32 v{d}, v{o0}, v{o0+1}')
        p(f'v_cvt_pk_bf16_f32 v{d+1}, v{o0+2}, v{o0+3}')

    perm(0)
    perm(1)
    for i in range(8):
        pv(i)
        if i + 2 < 8:
            perm(i + 2)
        if i in (5, 7):
            pass
    for t in (3, 2):
        pack_main(t)
    for t in (3, 2):
        pack_tail(t)
    pack_main(1)
    pack_tail(1)
    pack_main(0)
    pack_tail(0)
    p('s_mov_b32 exec_hi, 0')
    for pr in range(2):
        d = S(2 * pr, 1)
        p(f's_add_u32 s68, s67, {pr*20480}')
        p(f'buffer_store_dwordx4 v[{d}:{d+3}], v248, s[{SRD_WS}:{SRD_WS+3}], s68 offen {CFG["STFO"]}')
    p('s_mov_b32 exec_hi, -1')


def attn_out_addr(p):
    p(f's_lshl_b32 s65, s{S_RB}, 3')
    p('s_lshl_b32 s66, s56, 2')
    p('s_add_u32 s65, s65, s66')
    p('s_mul_i32 s66, s65, 20')
    p(f's_lshl_b32 s67, s{S_CG}, 1')
    p('s_add_u32 s67, s67, s55')
    p('s_add_u32 s66, s66, s67')
    p('s_lshl_b32 s66, s66, 10')
    p(f's_add_u32 s66, s66, {OA_OFF}')
    p(f's_and_b32 s67, s{S_CG}, 1')
    p('s_lshl_b32 s67, s67, 1')
    p('s_add_u32 s67, s67, s65')
    p('s_mul_i32 s67, s67, 20')
    p(f's_lshr_b32 s68, s{S_CG}, 1')
    p('s_add_u32 s67, s67, s68')
    p('s_add_u32 s67, s67, 16')
    p('s_lshl_b32 s67, s67, 10')
    p('s_lshl_b32 s68, s55, 9')
    p('s_add_u32 s67, s67, s68')
    p(f's_add_u32 s67, s67, {OA_OFF}')


def ffn_prologue(p):
    p(f's_and_b32 s55, s{S_WAVE}, 1')
    p(f's_lshr_b32 s56, s{S_WAVE}, 1')
    p('v_and_b32 v3, 15, v2')
    p('v_lshrrev_b32 v4, 4, v2')
    p('v_lshrrev_b32 v5, 1, v3')
    p('v_xor_b32 v5, v5, v4')
    p('v_lshlrev_b32 v5, 4, v5')
    p('v_lshl_add_u32 v5, v3, 7, v5')
    p('s_lshl_b32 s57, s56, 13')
    p(f'v_add_u32 v{V_X0}, s57, v5')
    p(f'v_xor_b32 v{V_X1}, 64, v{V_X0}')
    p('v_lshrrev_b32 v5, 5, v2')
    p('v_lshlrev_b32 v5, 4, v5')
    p('v_bfe_u32 v6, v2, 4, 1')
    p('v_lshl_add_u32 v5, v6, 2, v5')
    p('v_bfe_u32 v6, v2, 2, 2')
    p('v_add_u32 v5, v5, v6')
    p(f'v_mul_u32_u24 v5, {WROW}, v5')
    p(f'v_add_u32 v5, {XREG}, v5')
    p('v_and_b32 v6, 3, v2')
    p('v_lshl_add_u32 v5, v6, 3, v5')
    p('s_lshl_b32 s57, s55, 8')
    p(f'v_add_u32 v{V_W}, s57, v5')
    p('s_lshl_b32 s57, s55, 5')
    p('s_add_u32 s57, s57, 192')
    p(f'v_add_u32 v{V_WA}, s57, v5')
    p(f's_mul_i32 s57, s{S_CG}, 448')
    p('v_lshlrev_b32 v5, 3, v4')
    p('v_add_u32 v5, s57, v5')
    p('s_lshl_b32 s57, s55, 8')
    p('v_add_u32 v6, s57, v5')
    p('s_lshl_b32 s57, s55, 5')
    p('s_add_u32 s57, s57, 192')
    p('v_add_u32 v7, s57, v5')
    p('v_lshlrev_b32 v248, 4, v2')
    p('s_waitcnt lgkmcnt(0)')
    srd(p, SRD_A, S_B1, 3456)
    for f in range(7):
        if f < 6:
            p(f'buffer_load_dwordx2 v[{200+2*f}:{201+2*f}], v6, s[{SRD_A}:{SRD_A+3}], 0 offen offset:{32*f}')
        else:
            p(f'buffer_load_dwordx2 v[{200+2*f}:{201+2*f}], v7, s[{SRD_A}:{SRD_A+3}], 0 offen')
    tlb_touch(p, 'F')
    p('s_mov_b32 s58, 0xffff0000')
    p('s_waitcnt vmcnt(0)')
    for f in range(7):
        for t in range(4):
            a = F_ACC(f, t)
            p(f'v_lshlrev_b32 v{a}, 16, v{200+2*f}')
            p(f'v_and_b32 v{a+1}, s58, v{200+2*f}')
            p(f'v_lshlrev_b32 v{a+2}, 16, v{201+2*f}')
            p(f'v_and_b32 v{a+3}, s58, v{201+2*f}')


def ffn_epilogue(p):
    k1 = -2.0 * math.sqrt(2.0 / math.pi) * math.log2(math.e)
    k2 = k1 * 0.044715
    C1, C2, ONE = 240, 242, 244
    for r in (0, 1):
        p(f'v_mov_b32 v{C1+r}, {hexf(k1)}')
        p(f'v_mov_b32 v{C2+r}, {hexf(k2)}')
        p(f'v_mov_b32 v{ONE+r}, 1.0')
    p('s_nop 5')
    p(f's_lshl_b32 s65, s{S_RB}, 3')
    p('s_lshl_b32 s66, s56, 2')
    p('s_add_u32 s65, s65, s66')
    p('s_mul_i32 s65, s65, 54')
    p(f's_mul_i32 s66, s{S_CG}, 7')
    p('s_add_u32 s67, s66, 3')
    p('s_lshl_b32 s68, s55, 2')
    p('s_add_u32 s66, s66, s68')
    p('s_add_u32 s69, s65, s67')
    p('s_lshl_b32 s69, s69, 10')
    p('s_lshl_b32 s68, s55, 3')
    p('s_add_u32 s69, s69, s68')
    p('s_add_u32 s68, s65, s66')
    p('s_lshl_b32 s68, s68, 10')

    def gelu(regs, tmp):
        for i, x in enumerate(regs):
            p(f'v_pk_mul_f32 v[{tmp+4*i}:{tmp+4*i+1}], v[{x}:{x+1}], v[{x}:{x+1}]')
        for i, x in enumerate(regs):
            p(f'v_pk_fma_f32 v[{tmp+4*i}:{tmp+4*i+1}], v[{tmp+4*i}:{tmp+4*i+1}], v[{C2}:{C2+1}], v[{C1}:{C1+1}]')
        for i, x in enumerate(regs):
            p(f'v_pk_mul_f32 v[{tmp+4*i}:{tmp+4*i+1}], v[{tmp+4*i}:{tmp+4*i+1}], v[{x}:{x+1}]')
        for i, x in enumerate(regs):
            p(f'v_exp_f32 v{tmp+4*i}, v{tmp+4*i}')
            p(f'v_exp_f32 v{tmp+4*i+1}, v{tmp+4*i+1}')
        for i, x in enumerate(regs):
            p(f'v_pk_add_f32 v[{tmp+4*i}:{tmp+4*i+1}], v[{tmp+4*i}:{tmp+4*i+1}], v[{ONE}:{ONE+1}]')
        for i, x in enumerate(regs):
            p(f'v_rcp_f32 v{tmp+4*i}, v{tmp+4*i}')
            p(f'v_rcp_f32 v{tmp+4*i+1}, v{tmp+4*i+1}')
        for i, x in enumerate(regs):
            p(f'v_pk_mul_f32 v[{x}:{x+1}], v[{tmp+4*i}:{tmp+4*i+1}], v[{x}:{x+1}]')

    OUT = 184
    n = 0
    for pr in range(3):
        p(f's_add_u32 s70, s66, {pr}')
        p('s_cmp_ge_u32 s70, 54')
        p(f's_cbranch_scc1 L_skip_pair{pr}')
        for t in range(4):
            a, b = F_ACC(2 * pr, t), F_ACC(2 * pr + 1, t)
            gelu([a, a + 2, b, b + 2], 152)
            o = OUT + 4 * (n % 4)
            n += 1
            p(f'v_cvt_pk_bf16_f32 v{o}, v{a}, v{a+1}')
            p(f'v_cvt_pk_bf16_f32 v{o+1}, v{a+2}, v{a+3}')
            p(f'v_cvt_pk_bf16_f32 v{o+2}, v{b}, v{b+1}')
            p(f'v_cvt_pk_bf16_f32 v{o+3}, v{b+2}, v{b+3}')
            p(f's_add_u32 s70, s68, {pr*1024 + t*54*1024}')
            p(f'buffer_store_dwordx4 v[{o}:{o+3}], v248, s[{SRD_WS}:{SRD_WS+3}], s70 offen {CFG["STFH"]}')
        p.label(f'L_skip_pair{pr}')
    for t2 in range(2):
        a, b = F_ACC(6, 2 * t2), F_ACC(6, 2 * t2 + 1)
        gelu([a, a + 2, b, b + 2], 152)
        for u, x in enumerate((a, b)):
            o = OUT + 16 + 2 * ((2 * t2 + u) % 2)
            p(f'v_cvt_pk_bf16_f32 v{o}, v{x}, v{x+1}')
            p(f'v_cvt_pk_bf16_f32 v{o+1}, v{x+2}, v{x+3}')
            p(f's_add_u32 s70, s69, {(2*t2+u)*54*1024}')
            p(f'buffer_store_dwordx2 v[{o}:{o+1}], v248, s[{SRD_WS}:{SRD_WS+3}], s70 offen {CFG["STFH"]}')


def gen_k1():
    p = Prog()
    p('s_cmp_ge_u32 s2, 256')
    p('s_cbranch_scc1 L_k1_end')
    p('s_load_dwordx4 s[4:7], s[0:1], 0')
    p('s_load_dwordx4 s[8:11], s[0:1], 16')
    p('s_load_dwordx4 s[12:15], s[0:1], 32')
    p('s_load_dwordx4 s[16:19], s[0:1], 48')
    p('s_load_dwordx2 s[20:21], s[0:1], 64')
    p('s_load_dwordx2 s[22:23], s[0:1], 88')
    if CFG['TT']:
        p('s_load_dwordx2 s[100:101], s[0:1], 72')
    if CFG['PROF']:
        p('s_memrealtime s[88:89]')
        p('s_memtime s[82:83]')
    p('v_lshrrev_b32 v1, 6, v0')
    p('v_and_b32 v2, 63, v0')
    p(f'v_readfirstlane_b32 s{S_WAVE}, v1')
    if CFG['SWAPW']:
        p(f's_add_u32 s{S_WAVE}, s{S_WAVE}, 4')
        p(f's_and_b32 s{S_WAVE}, s{S_WAVE}, 7')
    k1_decode(p)
    p(f's_cmp_eq_u32 s{S_WAVE}, 0')
    p('s_cbranch_scc0 L_nopf')
    p('v_mov_b32 v10, v2')
    code_prefetch(p, 'L_k1_body', 'L_k1_end', CFG.get('K1_BYTES', 20480), 10, 255, 84, 'k1')
    p.label('L_nopf')
    p.label('L_k1_body')
    p(f's_cmp_ge_u32 s{S_WAVE}, 4')
    p('s_cbranch_scc0 L_consumer')
    if CFG['LDFIRST'] == 1:
        p(f's_cmp_eq_u32 s{S_TYPE}, 0')
        p('s_cbranch_scc0 L_loader_F')
        k1_loader(p, True)
        k1_loader(p, False)
    elif CFG['LDFIRST'] == 2:
        p(f's_cmp_eq_u32 s{S_TYPE}, 0')
        p('s_cbranch_scc0 L_loader_F')
        k1_loader(p, True)
    else:
        p(f's_cmp_eq_u32 s{S_TYPE}, 0')
        p('s_cbranch_scc1 L_loader_A')
        p('s_branch L_loader_F')
    p.label('L_consumer')
    if CFG['PRIO']:
        p(f's_setprio {CFG["PRIO"]}')
    p(f's_cmp_eq_u32 s{S_TYPE}, 0')
    p('s_cbranch_scc0 L_cons_F')
    p('s_movk_i32 s99, 256')
    prefetch_setup(p, True)
    p('s_waitcnt lgkmcnt(0)')
    tlb_touch(p, 'A')
    attn_prologue(p)
    attn_out_addr(p)
    if CFG['ZVT']:
        p('s_mov_b32 s68, 0x00ff00ff')
        p('s_mov_b32 s69, 0x00ff00ff')
    srd(p, SRD_WS, S_WS, WS_USED)
    srd(p, SRD_X, S_AX, 2048 * 1280)
    srd(p, SRD_W, S_WQKV, 640 * 3840)
    p('s_waitcnt lgkmcnt(0)')
    stamp(p, 0)
    p('s_barrier')
    stamp(p, 1)
    prefetch_issue(p, True)
    if CFG['M35']:
        p('s_cmp_eq_u32 s56, 0')
        p('s_cbranch_scc0 L_attn_th1')
        for th in (0, 1):
            if th:
                p.label('L_attn_th1')
            consumer_loop(p, True, th)
            stamp(p, 2)
            attn_epilogue(p, th)
            stamp(p, 3)
            if CFG['PROF']:
                prof_store(p, 4, 'CA', SRD_WS)
            p('s_endpgm')
    else:
        consumer_loop(p, True)
        stamp(p, 2)
        attn_epilogue(p)
        stamp(p, 3)
        if CFG['PROF']:
            prof_store(p, 4, 'CA', SRD_WS)
        p('s_endpgm')
    p.label('L_cons_F')
    p('s_movk_i32 s99, 256')
    prefetch_setup(p, False)
    ffn_prologue(p)
    srd(p, SRD_WS, S_WS, WS_USED)
    srd(p, SRD_X, S_AX, 2048 * 1280)
    srd(p, SRD_W, S_W1, 640 * 3456)
    p('s_waitcnt lgkmcnt(0)')
    stamp(p, 0)
    p('s_barrier')
    stamp(p, 1)
    prefetch_issue(p, False)
    consumer_loop(p, False)
    stamp(p, 2)
    ffn_epilogue(p)
    stamp(p, 3)
    if CFG['PROF']:
        prof_store(p, 4, 'CF', SRD_WS)
    p('s_endpgm')
    if not CFG['LDFIRST']:
        k1_loader(p, True)
        k1_loader(p, False)
    elif CFG['LDFIRST'] == 2:
        k1_loader(p, False)
    p.label('L_k1_end')
    p('s_endpgm')
    return p


K2_LAST = {}


def k2_small_loads(p, vg, vb, vb2):
    p(f'buffer_load_dwordx2 v[{K2_G}:{K2_G+1}], v{vg}, s[12:15], 0 offen')
    p(f'buffer_load_dwordx4 v[{K2_B2}:{K2_B2+3}], v{vb}, s[16:19], 0 offen')
    p(f'buffer_load_dwordx4 v[{K2_B2+4}:{K2_B2+7}], v{vb}, s[16:19], 0 offen offset:64')
    p(f'buffer_load_dwordx2 v[{K2_B2+8}:{K2_B2+9}], v{vb2}, s[16:19], 0 offen offset:128')


def k2_stream(p, wave_a):
    NB = CFG['NBUF']
    tag = 'a' if wave_a else 'b'
    nsteps = 20 if wave_a else 18
    ACC = lambda t, f: K2_ACC + (t * 5 + f) * 4
    BA = lambda b, t: 36 * b + 4 * t
    BW = lambda b, f: 36 * b + 16 + 4 * f

    def ld_w(b, f):
        if f < 4:
            p(f'buffer_load_dwordx4 v[{BW(b,f)}:{BW(b,f)+3}], v{K2_VL}, s[12:15], s21 offen offset:{1024*f} {CFG["K2LDF"]}')
        else:
            p(f'buffer_load_dwordx4 v[{BW(b,f)}:{BW(b,f)+3}], v{K2_VL2}, s[12:15], s21 offen {CFG["K2LDF"]}')

    def ld_a(b, t):
        p(f'buffer_load_dwordx4 v[{BA(b,t)}:{BA(b,t)+3}], v{K2_VA+t}, s[12:15], s20 offen {CFG["K2LDF"]}')

    nrot = 16 if wave_a else 18
    state = {'n': 0}

    def adv():
        state['n'] += 1
        p('s_add_u32 s20, s20, 1024')
        p('s_add_u32 s21, s21, 5120')
        if not CFG['ROT2']:
            return
        if state['n'] < nrot:
            p('s_add_u32 s22, s22, 1')
            p(f's_cmp_eq_u32 s22, {nrot}')
            p(f's_cselect_b32 s23, {nrot*1024}, 0')
            p('s_sub_u32 s20, s20, s23')
            p('s_mul_i32 s23, s23, 5')
            p('s_sub_u32 s21, s21, s23')
        elif state['n'] == nrot and wave_a:
            p('s_mov_b32 s20, s34')
            p('s_mov_b32 s21, s35')

    for s in range(min(NB, nsteps)):
        for f in range(5):
            ld_w(s % NB, f)
        for t in range(4):
            ld_a(s % NB, t)
        adv()
    if CFG['GLATE']:
        k2_small_loads(p, 246, 247, 248)
    for r in range(80):
        p(f'v_mov_b32 v{K2_ACC+r}, 0')
    stamp(p, 1)
    for s in range(nsteps):
        b = s % NB
        issued = min(s + NB, nsteps)
        newer = (issued - s - 1) * 9
        if CFG['GLATE'] and s < NB:
            newer += 4
        p(f's_waitcnt vmcnt({newer})')
        more = s + NB < nsteps
        tail = wave_a and s >= 16
        amap = [0, 1, 2, 3]
        if tail:
            for (x, y) in ((0, 2), (1, 3)):
                p(f'v_swap_b32 v{BA(b,x)+2}, v{BA(b,y)}')
                p(f'v_swap_b32 v{BA(b,x)+3}, v{BA(b,y)+1}')
            amap = [0, 2, 1, 3]
        if CFG['K2RED'] == 2 and s == nsteps - 1:
            def last_step(w, b=b, amap=amap):
                p(f'v_add_u32 v220, {w*5120}, v{K2_VL}')
                p(f'v_add_u32 v221, {w*5120 + 40960}, v{K2_VL}')
                order = [t for t in range(4) if t != w] + [w]
                if w != 0:
                    order = [0] + [t for t in (1, 2, 3) if t != w] + [w]
                pend = []
                for k, t in enumerate(order):
                    for f in range(5):
                        acc = ACC(t, f)
                        p(f'v_mfma_f32_16x16x32_bf16 v[{acc}:{acc+3}], v[{BW(b,f)}:{BW(b,f)+3}], v[{BA(b,amap[t])}:{BA(b,amap[t])+3}], v[{acc}:{acc+3}]')
                        if pend and k >= 2:
                            p(pend.pop(0))
                    if t != w:
                        pend += [f'ds_write_b128 v{220 + (t >> 1)}, v[{ACC(t,f)}:{ACC(t,f)+3}] offset:{(t & 1)*20480 + f*1024}' for f in range(5)]
                for ins in pend:
                    p(ins)
            if wave_a:
                last_step(0)
            else:
                K2_LAST['b'] = last_step
            continue
        for f in range(5):
            for t in range(4):
                acc = ACC(t, f)
                if not CFG['K2NOMFMA']:
                    p(f'v_mfma_f32_16x16x32_bf16 v[{acc}:{acc+3}], v[{BW(b,f)}:{BW(b,f)+3}], v[{BA(b,amap[t])}:{BA(b,amap[t])+3}], v[{acc}:{acc+3}]')
            if more and CFG['K2ORD'] == 0:
                ld_w(b, f)
            if more and CFG['K2ORD'] == 2 and f >= 1:
                ld_w(b, f - 1)
        if more:
            if CFG['K2ORD'] == 1:
                for f in range(5):
                    ld_w(b, f)
            if CFG['K2ORD'] == 2:
                ld_w(b, 4)
            for t in range(4):
                ld_a(b, t)
            adv()
    if CFG['K2RED'] == 2:
        p('s_branch L_k2_red_a' if wave_a else 's_branch L_k2_red_b')
    else:
        p('s_branch L_k2_reduce')


K2_ACC = 144
K2_VL, K2_VL2, K2_VA = 224, 225, 226
K2_G, K2_B2 = 230, 232
K2_LDS = 4 * 4 * 5120 + 64


def k2_reduce2(p):
    assert CFG['NBUF'] == 3
    ACC = lambda t, f: K2_ACC + (t * 5 + f) * 4
    R1 = lambda f: 4 * f
    R2 = lambda f: 20 + 4 * f
    R3 = lambda j: 40 + 4 * j
    R4 = lambda j: 48 + 4 * j
    AR = lambda f: 56 + 4 * f
    B = lambda f: 188 + 4 * f
    GP, OP, O0 = 208, 210, 212
    FL, ONE, FA, WA, WB, RB = 214, 218, 219, 220, 221, 222
    O = 80
    FOFF = 81920

    def common(w):
        stamp(p, 2)
        p(f'v_add_u32 v{WA}, {w*5120}, v{K2_VL}')
        p(f'v_add_u32 v{WB}, {w*5120 + 40960}, v{K2_VL}')
        p(f'v_add_u32 v{RB}, {w*20480}, v{K2_VL}')
        p(f'v_mov_b32 v{FA}, {FOFF}')
        p(f'v_mov_b32 v{ONE}, 1')
        p('s_nop 7')

    def write_tiles(tiles):
        for t in tiles:
            for f in range(5):
                p(f'ds_write_b128 v{WA + (t >> 1)}, v[{ACC(t,f)}:{ACC(t,f)+3}] offset:{(t & 1)*20480 + f*1024}')

    def set_flag(i):
        p('s_waitcnt lgkmcnt(0)')
        p(f'ds_write_b32 v{FA}, v{ONE} offset:{4*i}')

    def spin(base, idxs, lbl):
        p.label(lbl)
        p(f'ds_read_b128 v[{FL}:{FL+3}], v{FA} offset:{base}')
        p('s_waitcnt lgkmcnt(0)')
        r = FL + idxs[0]
        for k in idxs[1:]:
            p(f'v_and_b32 v{FL+idxs[0]}, v{r}, v{FL+k}')
        p(f'v_readfirstlane_b32 s62, v{FL+idxs[0]}')
        p('s_cmp_eq_u32 s62, 0')
        p(f's_cbranch_scc1 {lbl}')

    def unpack():
        p('s_mov_b32 s63, 0xffff0000')
        for pr in range(2):
            for d in range(4):
                src = K2_B2 + 4 * pr + d
                f, r = 2 * pr + (d >> 1), 2 * (d & 1)
                p(f'v_lshlrev_b32 v{B(f)+r}, 16, v{src}')
                p(f'v_and_b32 v{B(f)+r+1}, s63, v{src}')
        for d in range(2):
            src = K2_B2 + 8 + d
            p(f'v_lshlrev_b32 v{B(4)+2*d}, 16, v{src}')
            p(f'v_and_b32 v{B(4)+2*d+1}, s63, v{src}')

    def pairs(lo_hi):
        for dst, src in lo_hi:
            p(f'v_mov_b32 v{dst}, v{src}')
            p(f'v_mov_b32 v{dst+1}, v{src}')

    def store(res):
        for pr in range(2):
            for u in range(2):
                a = res(2 * pr + u)
                p(f'v_cvt_pk_bf16_f32 v{O+4*pr+2*u}, v{a}, v{a+1}')
                p(f'v_cvt_pk_bf16_f32 v{O+4*pr+2*u+1}, v{a+2}, v{a+3}')
            p(f'buffer_store_dwordx4 v[{O+4*pr}:{O+4*pr+3}], v242, s[28:31], 0 offen offset:{64*pr} {CFG["OUTF"]}')
        a = res(4)
        p(f'v_cvt_pk_bf16_f32 v{O+8}, v{a}, v{a+1}')
        p(f'v_cvt_pk_bf16_f32 v{O+9}, v{a+2}, v{a+3}')
        p(f'buffer_store_dwordx2 v[{O+8}:{O+9}], v243, s[28:31], 0 offen offset:128 {CFG["OUTF"]}')

    def finish():
        stamp(p, 3)
        if CFG['PROF']:
            prof_store(p, 4, 'K2', 12)
        p('s_endpgm')

    p.label('L_k2_red_a')
    common(0)
    set_flag(0)
    pairs([(GP, K2_G)])
    spin(16, [1, 2, 3], 'L_k2_spin_a')
    for f in range(5):
        p(f'ds_read_b128 v[{R1(f)}:{R1(f)+3}], v{K2_VL} offset:{f*1024}')
    for f in range(5):
        p(f's_waitcnt lgkmcnt({4-f})')
        for r in (0, 2):
            a = ACC(0, f) + r
            p(f'v_pk_fma_f32 v[{a}:{a+1}], v[{a}:{a+1}], v[{GP}:{GP+1}], v[{R1(f)+r}:{R1(f)+r+1}]')
    store(lambda f: ACC(0, f))
    finish()
    p.label('L_k2_red_b')
    for w in (1, 2, 3):
        if w < 3:
            p(f's_cmp_eq_u32 s{S_WAVE}, {w}')
            p(f's_cbranch_scc0 L_k2_red_b{w+1}')
        K2_LAST['b'](w)
        common(w)
        set_flag(w)
        unpack()
        pairs([(GP, K2_G), (OP, K2_G + 1), (O0, 245)])
        o1, o2 = [x for x in (1, 2, 3) if x != w]
        spin(0, [o1, o2], f'L_k2_spin_b{w}')
        sub = {1: [0, 1], 2: [2, 3], 3: [4]}[w]
        for j, f in enumerate(sub):
            p(f'ds_read_b128 v[{R3(j)}:{R3(j)+3}], v{K2_VL} offset:{o1*5120 + f*1024}')
            p(f'ds_read_b128 v[{R4(j)}:{R4(j)+3}], v{K2_VL} offset:{o2*5120 + f*1024}')
        for f in range(5):
            p(f'ds_read_b128 v[{R1(f)}:{R1(f)+3}], v{RB} offset:{o1*5120 + f*1024}')
            p(f'ds_read_b128 v[{R2(f)}:{R2(f)+3}], v{RB} offset:{o2*5120 + f*1024}')
        p('s_waitcnt lgkmcnt(10)')
        for j, f in enumerate(sub):
            for r in (0, 2):
                a = ACC(0, f) + r
                p(f'v_pk_add_f32 v[{R3(j)+r}:{R3(j)+r+1}], v[{R3(j)+r}:{R3(j)+r+1}], v[{R4(j)+r}:{R4(j)+r+1}]')
                p(f'v_pk_add_f32 v[{a}:{a+1}], v[{a}:{a+1}], v[{B(f)+r}:{B(f)+r+1}]')
            for r in (0, 2):
                a = ACC(0, f) + r
                p(f'v_pk_add_f32 v[{a}:{a+1}], v[{a}:{a+1}], v[{R3(j)+r}:{R3(j)+r+1}]')
                p(f'v_pk_mul_f32 v[{a}:{a+1}], v[{a}:{a+1}], v[{O0}:{O0+1}]')
        for j, f in enumerate(sub):
            p(f'ds_write_b128 v{K2_VL}, v[{ACC(0,f)}:{ACC(0,f)+3}] offset:{f*1024}')
        set_flag(4 + w)
        for f in range(5):
            for r in (0, 2):
                a = ACC(w, f) + r
                p(f'v_pk_add_f32 v[{R1(f)+r}:{R1(f)+r+1}], v[{R1(f)+r}:{R1(f)+r+1}], v[{R2(f)+r}:{R2(f)+r+1}]')
                p(f'v_pk_add_f32 v[{a}:{a+1}], v[{a}:{a+1}], v[{B(f)+r}:{B(f)+r+1}]')
            for r in (0, 2):
                a = ACC(w, f) + r
                p(f'v_pk_add_f32 v[{a}:{a+1}], v[{a}:{a+1}], v[{R1(f)+r}:{R1(f)+r+1}]')
                p(f'v_pk_mul_f32 v[{a}:{a+1}], v[{a}:{a+1}], v[{OP}:{OP+1}]')
        spin(0, [0], f'L_k2_spin_c{w}')
        for f in range(5):
            p(f'ds_read_b128 v[{AR(f)}:{AR(f)+3}], v{RB} offset:{f*1024}')
        for f in range(5):
            p(f's_waitcnt lgkmcnt({4-f})')
            for r in (0, 2):
                a = ACC(w, f) + r
                p(f'v_pk_fma_f32 v[{a}:{a+1}], v[{AR(f)+r}:{AR(f)+r+1}], v[{GP}:{GP+1}], v[{a}:{a+1}]')
        store(lambda f: ACC(w, f))
        finish()
        if w < 3:
            p.label(f'L_k2_red_b{w+1}')


def gen_k2():
    global K2_ACC
    NB = CFG['NBUF']
    assert NB * 36 + 80 <= 224
    K2_ACC = NB * 36
    p = Prog()
    p('s_cmp_ge_u32 s2, 256')
    p('s_cbranch_scc1 L_k2_end')
    p('s_load_dwordx2 s[4:5], s[0:1], 88')
    p('s_load_dwordx2 s[6:7], s[0:1], 72')
    p('s_load_dwordx2 s[8:9], s[0:1], 56')
    if CFG['PROF']:
        p('s_memrealtime s[88:89]')
        p('s_memtime s[82:83]')
    p('v_lshrrev_b32 v1, 6, v0')
    p('v_and_b32 v2, 63, v0')
    p(f'v_readfirstlane_b32 s{S_WAVE}, v1')
    p('s_and_b32 s52, s2, 7')
    p('s_lshr_b32 s53, s2, 3')
    if CFG['MAP2'] == '8x4':
        p('s_lshr_b32 s54, s52, 1')
        p('s_lshl_b32 s54, s54, 3')
        p('s_lshr_b32 s55, s53, 2')
        p('s_add_u32 s26, s54, s55')
        p('s_and_b32 s54, s52, 1')
        p('s_lshl_b32 s54, s54, 2')
        p('s_and_b32 s55, s53, 3')
        p('s_add_u32 s27, s54, s55')
    else:
        p('s_lshl_b32 s54, s52, 2')
        p('s_lshr_b32 s55, s53, 3')
        p('s_add_u32 s26, s54, s55')
        p('s_and_b32 s27, s53, 7')
    if CFG['K2OWNPF']:
        p(f's_cmp_eq_u32 s{S_WAVE}, 0')
        p('s_cbranch_scc0 L_k2_nopf')
        p('v_mov_b32 v10, v2')
        code_prefetch(p, 'L_k2_body', 'L_k2_end', CFG.get('K2_BYTES', 16384), 10, 255, 84, 'k2')
        p.label('L_k2_nopf')
    p.label('L_k2_body')
    p(f'v_lshlrev_b32 v{K2_VL}, 4, v2')
    p(f'v_add_u32 v{K2_VL2}, 4096, v{K2_VL}')
    p(f's_cmp_eq_u32 s{S_WAVE}, 0')
    p('s_mov_b32 s56, 20480')
    p('s_cselect_b32 s56, s56, 55296')
    p(f's_mov_b32 s57, {OA_OFF}')
    p(f's_cselect_b32 s57, s57, {H_OFF}')
    p(f's_mov_b32 s58, {WO_OFF}')
    p(f's_cselect_b32 s58, s58, {W2_OFF}')
    p('s_cselect_b32 s59, 20, 54')
    p(f's_mul_i32 s60, s{S_WAVE}, 18')
    p('s_cselect_b32 s60, 18, s60')
    p('s_sub_u32 s60, s60, 18')
    p('s_lshl_b32 s61, s26, 2')
    p('s_mul_i32 s61, s61, s56')
    p('s_add_u32 s61, s61, s57')
    p('s_lshl_b32 s62, s60, 10')
    p('s_add_u32 s20, s61, s62')
    p('s_mul_i32 s61, s27, s59')
    p('s_add_u32 s61, s61, s60')
    p('s_mul_i32 s61, s61, 5120')
    p('s_add_u32 s21, s61, s58')
    if CFG['ROT2']:
        p('s_add_u32 s34, s20, 16384')
        p('s_add_u32 s35, s21, 81920')
        if CFG['ROT2'] == 2:
            p('s_xor_b32 s62, s26, s27')
            p('s_and_b32 s62, s62, 1')
            p(f's_cmp_eq_u32 s{S_WAVE}, 0')
            p('s_cselect_b32 s63, 8, 9')
            p('s_mul_i32 s22, s62, s63')
        elif CFG['ROT2'] == 3:
            p('s_add_u32 s62, s26, s27')
            p('s_mul_i32 s63, s62, 43')
            p('s_lshr_b32 s63, s63, 7')
            p('s_mul_i32 s63, s63, 3')
            p('s_sub_u32 s62, s62, s63')
            p(f's_cmp_eq_u32 s{S_WAVE}, 0')
            p('s_cselect_b32 s63, 5, 6')
            p('s_mul_i32 s22, s62, s63')
        else:
            p('s_and_b32 s62, s26, 7')
            p('s_and_b32 s63, s27, 3')
            p('s_lshl_b32 s63, s63, 1')
            p('s_add_u32 s62, s62, s63')
            p(f's_cmp_eq_u32 s{S_WAVE}, 0')
            p('s_cselect_b32 s63, 16, 18')
            p('s_mul_i32 s62, s62, s63')
            p('s_lshr_b32 s22, s62, 3')
            p('s_cmp_ge_u32 s22, s63')
            p('s_cselect_b32 s62, s63, 0')
            p('s_sub_u32 s22, s22, s62')
        p('s_lshl_b32 s62, s22, 10')
        p('s_add_u32 s20, s20, s62')
        p('s_mul_i32 s62, s22, 5120')
        p('s_add_u32 s21, s21, s62')
    for t in range(4):
        p(f's_mul_i32 s62, s56, {t}')
        p(f'v_add_u32 v{K2_VA+t}, s62, v{K2_VL}')
    p('v_and_b32 v3, 15, v2')
    p('v_lshrrev_b32 v4, 4, v2')
    p('s_lshl_b32 s62, s26, 6')
    p(f's_lshl_b32 s63, s{S_WAVE}, 4')
    p('s_add_u32 s62, s62, s63')
    p('v_add_u32 v5, s62, v3')
    p('v_lshlrev_b32 v6, 3, v5')
    p(f'v_add_u32 v6, {G_OFF}, v6')
    p('s_mul_i32 s63, s27, 160')
    p('v_lshlrev_b32 v7, 4, v4')
    p('v_add_u32 v7, s63, v7')
    p('v_lshlrev_b32 v8, 3, v4')
    p('v_add_u32 v8, s63, v8')
    p('s_movk_i32 s63, 1280')
    p('v_mul_u32_u24 v5, s63, v5')
    p('v_add_u32 v242, v5, v7')
    p('v_add_u32 v243, v5, v8')
    if CFG['K2RED'] == 2:
        for r in range(4):
            p(f'v_mov_b32 v{214+r}, 0')
        p('v_mov_b32 v219, 81920')
        p('ds_write_b128 v219, v[214:217]')
        p('ds_write_b128 v219, v[214:217] offset:16')
    p('s_waitcnt lgkmcnt(0)')
    if CFG['K2RED'] == 2:
        p('s_barrier')
    srd(p, 12, 4, WS_USED)
    srd(p, 16, 8, 1280)
    srd(p, 28, 6, 2048 * 1280)
    stamp(p, 0)
    if CFG['K2RED'] == 2:
        p('s_lshl_b32 s62, s26, 6')
        p('v_add_u32 v9, s62, v3')
        p('v_lshlrev_b32 v9, 3, v9')
        p(f'v_add_u32 v9, {G_OFF}, v9')
        p('buffer_load_dwordx2 v[244:245], v9, s[12:15], 0 offen')
    if not CFG['GLATE']:
        k2_small_loads(p, 6, 7, 8)
    else:
        p('v_mov_b32 v246, v6')
        p('v_mov_b32 v247, v7')
        p('v_mov_b32 v248, v8')
    p(f's_cmp_eq_u32 s{S_WAVE}, 0')
    p('s_cbranch_scc0 L_k2_b')
    if CFG['K2PRIO']:
        p(f's_setprio {CFG["K2PRIO"]}')
    k2_stream(p, True)
    p.label('L_k2_b')
    k2_stream(p, False)
    if CFG['K2RED'] == 2:
        k2_reduce2(p)
        p.label('L_k2_end')
        p('s_endpgm')
        return p
    p.label('L_k2_reduce')
    stamp(p, 2)
    ACC = lambda t, f: K2_ACC + (t * 5 + f) * 4
    p(f's_mul_i32 s62, s{S_WAVE}, 5120')
    p(f'v_add_u32 v3, s62, v{K2_VL}')
    p('s_nop 7')
    p('v_add_u32 v4, 40960, v3')
    for t in range(4):
        for f in range(5):
            p(f'ds_write_b128 v{3 + (t >> 1)}, v[{ACC(t,f)}:{ACC(t,f)+3}] offset:{(t & 1)*20480 + f*1024}')
    p(f's_mul_i32 s62, s{S_WAVE}, 20480')
    p(f'v_add_u32 v250, s62, v{K2_VL}')
    p('s_waitcnt lgkmcnt(0)')
    p('s_barrier')
    R = lambda w, f: (w * 5 + f) * 4
    for f in range(5):
        for w in range(4):
            p(f'ds_read_b128 v[{R(w,f)}:{R(w,f)+3}], v250 offset:{w*5120 + f*1024}')
    p('s_mov_b32 s62, 0xffff0000')
    B = lambda f: 100 + 4 * f
    for pr in range(2):
        for d in range(4):
            src = K2_B2 + 4 * pr + d
            f, r = 2 * pr + (d >> 1), 2 * (d & 1)
            p(f'v_lshlrev_b32 v{B(f)+r}, 16, v{src}')
            p(f'v_and_b32 v{B(f)+r+1}, s62, v{src}')
    for d in range(2):
        src = K2_B2 + 8 + d
        p(f'v_lshlrev_b32 v{B(4)+2*d}, 16, v{src}')
        p(f'v_and_b32 v{B(4)+2*d+1}, s62, v{src}')
    p(f'v_mov_b32 v120, v{K2_G}')
    p(f'v_mov_b32 v121, v{K2_G}')
    p(f'v_mov_b32 v122, v{K2_G+1}')
    p(f'v_mov_b32 v123, v{K2_G+1}')
    for f in range(5):
        p(f's_waitcnt lgkmcnt({min(15, 16-4*f)})' if f < 4 else 's_waitcnt lgkmcnt(0)')
        if f == 0:
            p('s_waitcnt lgkmcnt(15)')
        for r in (0, 2):
            a, b1, b2_, b3 = R(0, f) + r, R(1, f) + r, R(2, f) + r, R(3, f) + r
            p(f'v_pk_add_f32 v[{b1}:{b1+1}], v[{b1}:{b1+1}], v[{b2_}:{b2_+1}]')
            p(f'v_pk_add_f32 v[{b3}:{b3+1}], v[{b3}:{b3+1}], v[{B(f)+r}:{B(f)+r+1}]')
            p(f'v_pk_mul_f32 v[{a}:{a+1}], v[{a}:{a+1}], v[120:121]')
            p(f'v_pk_add_f32 v[{b1}:{b1+1}], v[{b1}:{b1+1}], v[{b3}:{b3+1}]')
            p(f'v_pk_fma_f32 v[{a}:{a+1}], v[{b1}:{b1+1}], v[122:123], v[{a}:{a+1}]')
    O = 124
    for pr in range(2):
        for u in range(2):
            a = R(0, 2 * pr + u)
            p(f'v_cvt_pk_bf16_f32 v{O+4*pr+2*u}, v{a}, v{a+1}')
            p(f'v_cvt_pk_bf16_f32 v{O+4*pr+2*u+1}, v{a+2}, v{a+3}')
        p(f'buffer_store_dwordx4 v[{O+4*pr}:{O+4*pr+3}], v242, s[28:31], 0 offen offset:{64*pr} {CFG["OUTF"]}')
    a = R(0, 4)
    p(f'v_cvt_pk_bf16_f32 v{O+8}, v{a}, v{a+1}')
    p(f'v_cvt_pk_bf16_f32 v{O+9}, v{a+2}, v{a+3}')
    p(f'buffer_store_dwordx2 v[{O+8}:{O+9}], v243, s[28:31], 0 offen offset:128 {CFG["OUTF"]}')
    stamp(p, 3)
    if CFG['PROF']:
        prof_store(p, 4, 'K2', 12)
    p.label('L_k2_end')
    p('s_endpgm')
    return p


K2B_R = 4
K2B_STEP = 9216
K2B_SLOT = 4 * K2B_STEP
K2B_LDS = K2B_R * K2B_SLOT


def gen_k2b():
    R, SL, ST = K2B_R, K2B_SLOT, K2B_STEP
    stages = [('a', 4 * i, 4) for i in range(5)] + [('b', 4 * i, 4) for i in range(13)] + [('b', 52, 2)]
    NS = len(stages)
    p = Prog()
    p('s_cmp_ge_u32 s2, 256')
    p('s_cbranch_scc1 L_k2_end')
    p('s_load_dwordx2 s[4:5], s[0:1], 88')
    p('s_load_dwordx2 s[6:7], s[0:1], 72')
    p('s_load_dwordx2 s[8:9], s[0:1], 56')
    if CFG['PROF']:
        p('s_memrealtime s[88:89]')
        p('s_memtime s[82:83]')
    p('v_lshrrev_b32 v1, 6, v0')
    p('v_and_b32 v2, 63, v0')
    p(f'v_readfirstlane_b32 s{S_WAVE}, v1')
    p('s_and_b32 s52, s2, 7')
    p('s_lshr_b32 s53, s2, 3')
    if CFG['MAP2'] == '8x4':
        p('s_lshr_b32 s54, s52, 1')
        p('s_lshl_b32 s54, s54, 3')
        p('s_lshr_b32 s55, s53, 2')
        p('s_add_u32 s26, s54, s55')
        p('s_and_b32 s54, s52, 1')
        p('s_lshl_b32 s54, s54, 2')
        p('s_and_b32 s55, s53, 3')
        p('s_add_u32 s27, s54, s55')
    else:
        p('s_lshl_b32 s54, s52, 2')
        p('s_lshr_b32 s55, s53, 3')
        p('s_add_u32 s26, s54, s55')
        p('s_and_b32 s27, s53, 7')
    p('v_lshlrev_b32 v3, 4, v2')
    p(f's_cmp_ge_u32 s{S_WAVE}, 4')
    p('s_cbranch_scc0 L_k2_consumer')
    p(f's_sub_u32 s57, s{S_WAVE}, 4')
    p('s_mul_i32 s20, s27, 20')
    p('s_add_u32 s20, s20, s57')
    p('s_mul_i32 s20, s20, 5120')
    p(f's_add_u32 s20, s20, {WO_OFF}')
    p('s_mul_i32 s21, s27, 54')
    p('s_add_u32 s21, s21, s57')
    p('s_mul_i32 s21, s21, 5120')
    p(f's_add_u32 s21, s21, {W2_OFF}')
    p('s_lshl_b32 s54, s26, 2')
    p('s_mul_i32 s22, s54, 20')
    p('s_add_u32 s22, s22, s57')
    p('s_lshl_b32 s22, s22, 10')
    p(f's_add_u32 s22, s22, {OA_OFF}')
    p('s_mul_i32 s25, s54, 54')
    p('s_add_u32 s25, s25, s57')
    p('s_lshl_b32 s25, s25, 10')
    if H_OFF:
        p(f's_add_u32 s25, s25, {H_OFF}')
    p(f's_mul_i32 s58, s57, {ST}')
    p('v_add_u32 v4, 4096, v3')
    for u in range(4):
        p(f'v_add_u32 v{10+u}, {20480*u}, v3')
        p(f'v_add_u32 v{14+u}, {55296*u}, v3')
    p('s_waitcnt lgkmcnt(0)')
    srd(p, 12, 4, WS_USED)
    stamp(p, 0)

    def issue(j):
        part, s0, n = stages[j]
        slot = j % R
        if n < 4:
            p(f's_cmp_ge_u32 s57, {n}')
            p(f's_cbranch_scc1 L_k2_skip{j}')
        p(f's_add_u32 s23, s{20 if part == "a" else 21}, {s0*5120}')
        p(f's_add_u32 s24, s{22 if part == "a" else 25}, {s0*1024}') if False else None
        p(f's_add_u32 m0, s58, {slot*SL}')
        p(f's_add_u32 s59, s{22 if part == "a" else 25}, {s0*1024}')
        for f in range(4):
            p(f'buffer_load_dwordx4 v3, s[12:15], s23 offen offset:{1024*f} {CFG["K2LDF"]} lds')
        p(f's_add_u32 m0, s58, {slot*SL + 4096}')
        p('s_nop 0')
        p(f'buffer_load_dwordx4 v4, s[12:15], s23 offen {CFG["K2LDF"]} lds')
        for u in range(4):
            p(f's_add_u32 m0, s58, {slot*SL + 5120 + 1024*u}')
            p('s_nop 0')
            p(f'buffer_load_dwordx4 v{(10 if part == "a" else 14)+u}, s[12:15], s59 offen {CFG["K2LDF"]} lds')
        if n < 4:
            p.label(f'L_k2_skip{j}')

    for j in range(R - 1):
        issue(j)
    stamp(p, 1)
    for j in range(NS):
        hi = min(j + R - 2, NS - 1)
        newer = 9 * (hi - j)
        if hi == NS - 1 and j < NS - 1:
            newer -= 9
        p(f's_waitcnt vmcnt({max(newer, 0)})')
        p('s_barrier')
        if j + R - 1 < NS:
            issue(j + R - 1)
    stamp(p, 2)
    stamp(p, 3)
    if CFG['PROF']:
        prof_store(p, 4, 'K2', 12)
    p('s_endpgm')
    p.label('L_k2_consumer')
    p(f's_cmp_eq_u32 s{S_WAVE}, 0')
    p('s_cbranch_scc0 L_k2_nopf')
    p('v_mov_b32 v10, v2')
    code_prefetch(p, 'L_k2_body', 'L_k2_end', CFG.get('K2_BYTES', 12288), 10, 255, 84, 'k2')
    p.label('L_k2_nopf')
    p.label('L_k2_body')
    ACA, ACB = 0, 20
    WR = lambda q, f: 40 + 20 * q + 4 * f
    AR = lambda q: 120 + 4 * q
    G, B2 = 230, 232
    p('s_lshl_b32 s54, s26, 2')
    p(f's_add_u32 s54, s54, s{S_WAVE}')
    p('v_and_b32 v4, 15, v2')
    p('v_lshrrev_b32 v5, 4, v2')
    p('s_lshl_b32 s55, s54, 4')
    p('v_add_u32 v6, s55, v4')
    p('v_lshlrev_b32 v7, 3, v6')
    p(f'v_add_u32 v7, {G_OFF}, v7')
    p('s_mul_i32 s55, s27, 160')
    p('v_lshlrev_b32 v8, 4, v5')
    p('v_add_u32 v8, s55, v8')
    p('v_lshlrev_b32 v9, 3, v5')
    p('v_add_u32 v9, s55, v9')
    p('v_mul_u32_u24 v6, 1280, v6')
    p('v_add_u32 v242, v6, v8')
    p('v_add_u32 v243, v6, v9')
    p(f's_lshl_b32 s55, s{S_WAVE}, 10')
    p('s_add_u32 s55, s55, 5120')
    for sl in range(R):
        p(f'v_add_u32 v{244+sl}, {sl*SL}, v3')
        p(f'v_add_u32 v{250+sl}, s55, v{244+sl}')
    p(f's_lshr_b32 s55, s{S_WAVE}, 1')
    p('s_lshl_b32 s55, s55, 10')
    p(f's_and_b32 s56, s{S_WAVE}, 1')
    p('s_lshl_b32 s56, s56, 3')
    p('s_add_u32 s55, s55, s56')
    p('s_add_u32 s55, s55, 5120')
    p('v_add_u32 v249, s55, v3')
    p('s_waitcnt lgkmcnt(0)')
    srd(p, 12, 4, WS_USED)
    srd(p, 16, 8, 1280)
    srd(p, 28, 6, 2048 * 1280)
    stamp(p, 0)
    p(f'buffer_load_dwordx2 v[{G}:{G+1}], v7, s[12:15], 0 offen')
    p(f'buffer_load_dwordx4 v[{B2}:{B2+3}], v8, s[16:19], 0 offen')
    p(f'buffer_load_dwordx4 v[{B2+4}:{B2+7}], v8, s[16:19], 0 offen offset:64')
    p(f'buffer_load_dwordx2 v[{B2+8}:{B2+9}], v9, s[16:19], 0 offen offset:128')
    for r in range(40):
        p(f'v_mov_b32 v{r}, 0')
    stamp(p, 1)
    for j, (part, s0, n) in enumerate(stages):
        slot = j % R
        tail = (part == 'a' and s0 == 16)
        assert not tail or slot == 0
        p('s_barrier')
        log = []
        for q in range(n):
            if tail:
                p(f'ds_read_b64 v[{AR(q)}:{AR(q)+1}], v249 offset:{q*ST}')
                p(f'ds_read_b64 v[{AR(q)+2}:{AR(q)+3}], v249 offset:{q*ST + 2048}')
                log += [('a', q), ('a', q)]
            else:
                p(f'ds_read_b128 v[{AR(q)}:{AR(q)+3}], v{250+slot} offset:{q*ST}')
                log.append(('a', q))
            for f in range(5):
                p(f'ds_read_b128 v[{WR(q,f)}:{WR(q,f)+3}], v{244+slot} offset:{q*ST + f*1024}')
                log.append(('w', q, f))
        known = max(0, len(log) - 15) if len(log) > 15 else 0
        done = -1
        for q in range(n):
            acc0 = ACA if part == 'a' else ACB
            for f in range(5):
                idx = log.index(('w', q, f))
                if idx > done:
                    left = len(log) - 1 - idx
                    w = min(left, 15)
                    p(f's_waitcnt lgkmcnt({w})')
                    done = len(log) - 1 - w
                p(f'v_mfma_f32_16x16x32_bf16 v[{acc0+4*f}:{acc0+4*f+3}], v[{WR(q,f)}:{WR(q,f)+3}], v[{AR(q)}:{AR(q)+3}], v[{acc0+4*f}:{acc0+4*f+3}]')
    stamp(p, 2)
    p('s_mov_b32 s62, 0xffff0000')
    p('s_waitcnt vmcnt(0)')
    Bf = lambda f: 100 + 4 * f
    for pr in range(2):
        for d in range(4):
            s_ = B2 + 4 * pr + d
            f, r = 2 * pr + (d >> 1), 2 * (d & 1)
            p(f'v_lshlrev_b32 v{Bf(f)+r}, 16, v{s_}')
            p(f'v_and_b32 v{Bf(f)+r+1}, s62, v{s_}')
    for d in range(2):
        s_ = B2 + 8 + d
        p(f'v_lshlrev_b32 v{Bf(4)+2*d}, 16, v{s_}')
        p(f'v_and_b32 v{Bf(4)+2*d+1}, s62, v{s_}')
    p(f'v_mov_b32 v120, v{G}')
    p(f'v_mov_b32 v121, v{G}')
    p(f'v_mov_b32 v122, v{G+1}')
    p(f'v_mov_b32 v123, v{G+1}')
    for f in range(5):
        for r in (0, 2):
            a, b = ACA + 4 * f + r, ACB + 4 * f + r
            p(f'v_pk_add_f32 v[{b}:{b+1}], v[{b}:{b+1}], v[{Bf(f)+r}:{Bf(f)+r+1}]')
            p(f'v_pk_mul_f32 v[{a}:{a+1}], v[{a}:{a+1}], v[120:121]')
    for f in range(5):
        for r in (0, 2):
            a, b = ACA + 4 * f + r, ACB + 4 * f + r
            p(f'v_pk_fma_f32 v[{a}:{a+1}], v[{b}:{b+1}], v[122:123], v[{a}:{a+1}]')
    O = 124
    for pr in range(2):
        for u in range(2):
            a = ACA + 4 * (2 * pr + u)
            p(f'v_cvt_pk_bf16_f32 v{O+4*pr+2*u}, v{a}, v{a+1}')
            p(f'v_cvt_pk_bf16_f32 v{O+4*pr+2*u+1}, v{a+2}, v{a+3}')
        p(f'buffer_store_dwordx4 v[{O+4*pr}:{O+4*pr+3}], v242, s[28:31], 0 offen offset:{64*pr} {CFG["OUTF"]}')
    a = ACA + 16
    p(f'v_cvt_pk_bf16_f32 v{O+8}, v{a}, v{a+1}')
    p(f'v_cvt_pk_bf16_f32 v{O+9}, v{a+2}, v{a+3}')
    p(f'buffer_store_dwordx2 v[{O+8}:{O+9}], v243, s[28:31], 0 offen offset:128 {CFG["OUTF"]}')
    stamp(p, 3)
    if CFG['PROF']:
        prof_store(p, 4, 'K2', 12)
    p.label('L_k2_end')
    p('s_endpgm')
    return p


def gen_k2t():
    NW, INF, MODE = CFG['NW'], CFG['INF'], CFG['TMODE']
    p = Prog()
    p('s_cmp_ge_u32 s2, 256')
    p('s_cbranch_scc1 L_k2_end')
    p('s_load_dwordx2 s[4:5], s[0:1], 88')
    p('s_memrealtime s[88:89]')
    p('s_memtime s[82:83]')
    p('v_lshrrev_b32 v1, 6, v0')
    p('v_and_b32 v2, 63, v0')
    p(f'v_readfirstlane_b32 s{S_WAVE}, v1')
    p('s_and_b32 s52, s2, 7')
    p('s_lshr_b32 s53, s2, 3')
    p('s_lshr_b32 s54, s52, 1')
    p('s_lshl_b32 s54, s54, 3')
    p('s_lshr_b32 s55, s53, 2')
    p('s_add_u32 s26, s54, s55')
    p('s_and_b32 s54, s52, 1')
    p('s_lshl_b32 s54, s54, 2')
    p('s_and_b32 s55, s53, 3')
    p('s_add_u32 s27, s54, s55')
    p('v_lshlrev_b32 v3, 4, v2')
    p('v_add_u32 v4, 4096, v3')
    nst = 72 // NW
    p(f's_mul_i32 s60, s{S_WAVE}, {nst}')
    p('s_cmp_ge_u32 s60, 54')
    p('s_cselect_b32 s61, 1, 0')
    p('s_cselect_b32 s56, 20480, 0')
    p('s_cselect_b32 s56, s56, 55296')
    p(f's_mov_b32 s57, {OA_OFF}')
    p(f's_cselect_b32 s57, s57, {H_OFF}')
    p(f's_mov_b32 s58, {WO_OFF}')
    p(f's_cselect_b32 s58, s58, {W2_OFF}')
    p('s_cselect_b32 s59, 20, 54')
    p('s_cselect_b32 s62, 54, 0')
    p('s_sub_u32 s60, s60, s62')
    p('s_lshl_b32 s61, s26, 2')
    p('s_mul_i32 s61, s61, s56')
    p('s_add_u32 s61, s61, s57')
    p('s_lshl_b32 s62, s60, 10')
    p('s_add_u32 s20, s61, s62')
    p('s_mul_i32 s61, s27, s59')
    p('s_add_u32 s61, s61, s60')
    p('s_mul_i32 s61, s61, 5120')
    p('s_add_u32 s21, s61, s58')
    for t in range(4):
        p(f's_mul_i32 s62, s56, {t}')
        p(f'v_add_u32 v{10+t}, s62, v3')
    p(f's_mul_i32 s63, s{S_WAVE}, 16384')
    p('s_waitcnt lgkmcnt(0)')
    srd(p, 12, 4, WS_USED)
    stamp(p, 0)
    stamp(p, 1)
    n = 0
    for s in range(nst):
        for f in range(9):
            r = 20 + 4 * (n % 48)
            if MODE == 'dma':
                p(f's_add_u32 m0, s63, {(n % 16) * 1024}')
                p('s_nop 0')
            a, so, off = (3, 's21', 1024 * f) if f < 4 else ((4, 's21', 0) if f == 4 else (10 + f - 5, 's20', 0))
            if MODE == 'dma':
                if f < 4 and f > 0:
                    p(f's_sub_u32 m0, m0, {off}')
                    p('s_nop 0')
                p(f'buffer_load_dwordx4 v{a}, s[12:15], {so} offen offset:{off} lds')
            else:
                p(f'buffer_load_dwordx4 v[{r}:{r+3}], v{a}, s[12:15], {so} offen offset:{off}')
            p(f's_waitcnt vmcnt({INF})')
            n += 1
        p('s_add_u32 s20, s20, 1024')
        p('s_add_u32 s21, s21, 5120')
    p('s_waitcnt vmcnt(0)')
    stamp(p, 2)
    stamp(p, 3)
    prof_store(p, 4, 'K2', 12)
    p.label('L_k2_end')
    p('s_endpgm')
    return p


def gen_kpf():
    p = Prog()
    p('s_cmp_ge_u32 s2, 256')
    p('s_cbranch_scc1 L_kpf_end')
    p('s_load_dwordx2 s[4:5], s[0:1], 88')
    p('v_and_b32 v2, 63, v0')
    p('v_lshrrev_b32 v1, 6, v0')
    p('s_and_b32 s52, s2, 7')
    p('s_lshr_b32 s53, s2, 3')
    p('v_lshlrev_b32 v3, 7, v0')
    p('s_waitcnt lgkmcnt(0)')
    srd(p, 12, 4, WS_USED)
    if CFG['KPF'] == 1:
        p('s_and_b32 s54, s52, 1')
        p(f's_mul_i32 s55, s54, {4*54*5120}')
        p(f's_add_u32 s55, s55, {W2_OFF}')
        p('s_lshl_b32 s56, s53, 15')
        p('s_add_u32 s57, s55, s56')
        p('buffer_load_dword v10, v3, s[12:15], s57 offen')
        p('s_add_u32 s57, s57, 57344')
        p('buffer_load_dword v10, v3, s[12:15], s57 offen')
        p(f's_mul_i32 s55, s54, {4*20*5120}')
        p(f's_add_u32 s55, s55, {WO_OFF}')
        p('s_mul_i32 s56, s53, 12800')
        p('s_add_u32 s57, s55, s56')
        p('buffer_load_dword v10, v3, s[12:15], s57 offen')
    else:
        p('s_lshr_b32 s54, s52, 1')
        p(f's_mul_i32 s55, s54, {32*55296}')
        p('s_mul_i32 s56, s53, 55296')
        p('s_add_u32 s57, s55, s56')
        p('buffer_load_dword v10, v3, s[12:15], s57 offen')
        p('s_add_u32 s57, s57, 22528')
        p('buffer_load_dword v10, v3, s[12:15], s57 offen')
        p(f's_mul_i32 s55, s54, {32*20480}')
        p(f's_add_u32 s55, s55, {OA_OFF}')
        p('s_mul_i32 s56, s53, 20480')
        p('s_add_u32 s57, s55, s56')
        p('buffer_load_dword v10, v3, s[12:15], s57 offen')
    p('s_waitcnt vmcnt(0)')
    p.label('L_kpf_end')
    p('s_endpgm')
    return p


HEADER = """; gated mix of (sliding dilated attention branch) and (GELU MLP branch), S=2048 D=640 H=32 Dh=20 F=1728, bf16.
; @launch kernel=gm_k1_kernel grid=(256,1,1) block=(512,1,1) lds=%d
; @launch kernel=gm_k2_kernel grid=(256,1,1) block=(256,1,1) lds=%d
.amdgcn_target "amdgcn-amd-amdhsa--gfx950"
"""

KD = """.amdhsa_kernel %s
  .amdhsa_next_free_vgpr %d
  .amdhsa_next_free_sgpr 102
  .amdhsa_accum_offset %d
  .amdhsa_group_segment_fixed_size 0
  .amdhsa_kernarg_size 96
  .amdhsa_user_sgpr_count 2
  .amdhsa_user_sgpr_kernarg_segment_ptr 1
  .amdhsa_system_sgpr_workgroup_id_x 1
  .amdhsa_float_denorm_mode_32 3
.end_amdhsa_kernel
"""


def main():
    k1 = gen_k1()
    k2 = gen_k2b() if CFG['K2V'] == 2 else (gen_k2t() if CFG['K2V'] == 3 else gen_k2())
    t1, t2 = k1.finish(), k2.finish()
    s = HEADER % (K1_LDS, K2B_LDS if CFG['K2V'] == 2 else K2_LDS)
    if CFG['K2V'] == 3:
        s = s.replace('kernel=gm_k2_kernel grid=(256,1,1) block=(256,1,1) lds=%d' % K2_LDS, 'kernel=gm_k2_kernel grid=(256,1,1) block=(%d,1,1) lds=131072' % (64 * CFG['NW']))
    if CFG['K2V'] == 2:
        s = s.replace('kernel=gm_k2_kernel grid=(256,1,1) block=(256,1,1)', 'kernel=gm_k2_kernel grid=(256,1,1) block=(512,1,1)')
    if CFG['K2TWICE']:
        ln = [l for l in s.split('\n') if 'kernel=gm_k2_kernel' in l][0]
        s = s.replace(ln, ln + '\n' + ln)
    s += '.text\n'
    for name, t in (('gm_k1_kernel', t1), ('gm_k2_kernel', t2)):
        s += f'.globl {name}\n.p2align 8\n.type {name},@function\n{name}:\n{t}'
    s += '.p2align 8\n.fill 64, 4, 0xbf800000\n' if False else ''
    if CFG['KPF']:
        s += '.globl gm_pf_kernel\n.p2align 8\n.type gm_pf_kernel,@function\ngm_pf_kernel:\n' + gen_kpf().finish()
        ln = [l for l in s.split('\n') if 'kernel=gm_k2_kernel' in l][0]
        s = s.replace(ln, '; @launch kernel=gm_pf_kernel grid=(256,1,1) block=(256,1,1) lds=0\n' + ln)
    s += '.section .rodata,"a"\n.p2align 6\n'
    s += KD % ('gm_k1_kernel', 256, 256)
    s += '.p2align 6\n'
    s += KD % ('gm_k2_kernel', 256, 256)
    if CFG['KPF']:
        s += '.p2align 6\n' + KD % ('gm_pf_kernel', 64, 64)
    out = CFG.get('OUT', f'cdna_kernels/{NAME}.s')
    open(out, 'w').write(s)
    print('written', out, len(s), 'bytes; nops inserted k1', k1.nops_inserted, 'k2', k2.nops_inserted)


if __name__ == '__main__':
    main()
```

```python
import sys, os, math, struct
sys.path.insert(0, os.path.dirname(os.path.abspath(__file__)))
from asmlib import Prog, vr, ar, sr

NAME = 'gated_mix__sliding_local_dilated__dense_activation_gelu__prompt'

CFG = dict(MAP1='mixed', MAP2='8x4', NBUF=3, PROF=0, NOMFMA=0, NOLOAD=0, NODS=0, STF='sc1', LDF='', ULDF='nt', PFF='', PF=0, TT=0, ROT=1, ROT2=0, K2TWICE=0, K2V=1, M35=1, FUSE=0, S1LATE=0, PFSLICE=2, K2OWNPF=1, MROT=0, KW=4, KX=4, HALF=0, ZVT=0, DEDUP=1, K2RED=2, K2PRIO=0, USPF=0, TJ=7, TL=0, GLATE=0, STFO='sc1', STFH='sc1', ALIGN=0, UNITS_FFN=1, NFU=3, PEEL=1, SWAPW=0, LDFIRST=2, PRIO=0, K2ORD=0, KPF=0, LDF0='nt', NT_ST=0, ZOOB=1, TEARLY=0, K2PF=1, DA=12, NW=4, INF=32, TMODE='reg', K2NOMFMA=0, K2LDF='', OUTF='')
for a in sys.argv[1:]:
    if '=' in a:
        k, v = a.split('=')
        CFG[k] = int(v) if v.lstrip('-').isdigit() else v.replace('+', ' ')

H_OFF = 0
OA_OFF = H_OFF + 128 * 54 * 1024
W2_OFF = OA_OFF + 128 * 20 * 1024
WO_OFF = W2_OFF + 8 * 54 * 5120
G_OFF = WO_OFF + 8 * 20 * 5120
FLG_OFF = G_OFF + 2048 * 8
WS_USED = FLG_OFF + 4096
PROF_OFF = 16 << 20

XREG = 144 * 128
WROW = 480
WREG = 64 * WROW
SLOT = XREG + WREG
XFLAG = 3 * 49152 + 15360
SCR = 3 * SLOT
K1_LDS = 163840


def f32(x):
    return struct.unpack('<I', struct.pack('<f', x))[0]


def hexf(x):
    return '0x%08x' % f32(x)


S_AX, S_WQKV, S_WO, S_BX, S_W1, S_B1, S_W2, S_B2, S_GW, S_WS = 4, 6, 8, 10, 12, 14, 16, 18, 20, 22
S_WAVE, S_TYPE, S_RB, S_CG = 24, 25, 26, 27
SRD_X, SRD_W, SRD_I4, SRD_WS, SRD_A, SRD_B = 28, 32, 36, 40, 44, 48


def srd(p, base, ptr, nbytes):
    p(f's_mov_b32 s{base}, s{ptr}')
    p(f's_mov_b32 s{base+1}, s{ptr+1}')
    p(f's_mov_b32 s{base+2}, {nbytes}')
    p(f's_mov_b32 s{base+3}, 0x20000')


def code_prefetch(p, lbl_from, lbl_to, nbytes, vtmp, vdst, s, tag, sidx=None):
    p(f's_getpc_b64 s[{s}:{s+1}]')
    p.label(f'L_pc_{tag}')
    p(f's_add_u32 s{s}, s{s}, {lbl_from}-L_pc_{tag}')
    p(f's_addc_u32 s{s+1}, s{s+1}, 0')
    if CFG['PFSLICE'] == 2:
        ng = (nbytes + 8191) // 8192
        p(f's_lshr_b32 s{s+2}, s2, 3')
        p(f's_cmp_lt_u32 s{s+2}, {ng}')
        p(f's_cbranch_scc0 L_pfskip_{tag}')
        p(f's_lshl_b32 s{s+2}, s{s+2}, 13')
        p(f'v_lshlrev_b32 v{vtmp}, 7, v{vtmp}')
        p(f'v_add_u32 v{vtmp}, s{s+2}, v{vtmp}')
        p(f'v_min_u32 v{vtmp}, {lbl_to}-{lbl_from}, v{vtmp}')
        p(f'global_load_dword v{vdst}, v{vtmp}, s[{s}:{s+1}]')
        p.label(f'L_pfskip_{tag}')
        return 1
    if CFG['PFSLICE']:
        n = (nbytes + 32 * 128 - 1) // (32 * 128)
        p(f'v_min_u32 v{vtmp}, {n-1}, v{vtmp}')
        p(f's_lshr_b32 s{s+2}, s2, 3')
        p(f's_and_b32 s{s+2}, s{s+2}, 31')
        p(f's_mul_i32 s{s+2}, s{s+2}, {n}')
        p(f'v_add_u32 v{vtmp}, s{s+2}, v{vtmp}')
        p(f'v_lshlrev_b32 v{vtmp}, 7, v{vtmp}')
        p(f'v_min_u32 v{vtmp}, {lbl_to}-{lbl_from}, v{vtmp}')
        p(f'global_load_dword v{vdst}, v{vtmp}, s[{s}:{s+1}]')
        return 1
    p(f'v_lshlrev_b32 v{vtmp}, 6, v{vtmp}')
    n = (nbytes + 4095) // 4096
    for j in range(n):
        p(f'v_min_u32 v{vtmp+1}, {lbl_to}-{lbl_from}, v{vtmp}')
        p(f'global_load_dword v{vdst}, v{vtmp+1}, s[{s}:{s+1}]')
        if j + 1 < n:
            p(f'v_add_u32 v{vtmp}, 4096, v{vtmp}')
    return n


def stamp(p, idx, sbase=90):
    if CFG['PROF']:
        p(f'{"s_memtime" if CFG["PROF"] in (2, 3, 6) else "s_memrealtime"} s[{sbase+2*idx}:{sbase+2*idx+1}]')


def k1_decode(p):
    p('s_and_b32 s52, s2, 7')
    p('s_lshr_b32 s53, s2, 3')
    if CFG['MAP1'] == 'mixed':
        p(f's_lshr_b32 s{S_TYPE}, s53, 4')
        p('s_and_b32 s54, s53, 15')
        p('s_lshr_b32 s55, s52, 1')
        p('s_lshl_b32 s55, s55, 2')
        p('s_lshr_b32 s56, s54, 2')
        p(f's_add_u32 s{S_RB}, s55, s56')
        p('s_and_b32 s55, s52, 1')
        p('s_lshl_b32 s55, s55, 2')
        p('s_and_b32 s56, s54, 3')
        p(f's_add_u32 s{S_CG}, s55, s56')
    elif CFG['MAP1'] == 'm82':
        p(f's_lshr_b32 s{S_TYPE}, s53, 4')
        p('s_lshr_b32 s55, s52, 2')
        p('s_lshl_b32 s55, s55, 3')
        p('s_and_b32 s56, s53, 7')
        p(f's_add_u32 s{S_RB}, s55, s56')
        p('s_and_b32 s55, s52, 3')
        p('s_lshl_b32 s55, s55, 1')
        p('s_bfe_u32 s56, s53, 0x10003')
        p(f's_add_u32 s{S_CG}, s55, s56')
    else:
        p(f's_lshr_b32 s{S_TYPE}, s52, 2')
        p('s_and_b32 s54, s52, 3')
        p('s_lshr_b32 s55, s54, 1')
        p('s_lshl_b32 s55, s55, 3')
        p('s_lshr_b32 s56, s53, 2')
        p(f's_add_u32 s{S_RB}, s55, s56')
        p('s_and_b32 s55, s54, 1')
        p('s_lshl_b32 s55, s55, 2')
        p('s_and_b32 s56, s53, 3')
        p(f's_add_u32 s{S_CG}, s55, s56')


def k1_loader(p, attn):
    tag = 'A' if attn else 'F'
    rowstride = 3840 if attn else 3456
    VOFF = 10
    VL = 2
    p.label(f'L_loader_{tag}')
    p(f's_sub_u32 s57, s{S_WAVE}, 4')
    p(f'v_lshrrev_b32 v3, 3, v{VL}')
    p('s_lshl_b32 s58, s57, 3')
    p('v_add_u32 v3, s58, v3')
    p(f's_lshl_b32 s59, s{S_RB}, 7')
    if attn:
        p('s_sub_u32 s59, s59, 16')
    p('v_add_u32 v3, s59, v3')
    p('s_and_b32 s58, s57, 1')
    p('s_lshl_b32 s58, s58, 2')
    p(f'v_lshrrev_b32 v4, 4, v{VL}')
    p('v_add_u32 v4, s58, v4')
    p(f'v_and_b32 v5, 7, v{VL}')
    p('v_xor_b32 v4, v4, v5')
    p('v_lshlrev_b32 v4, 4, v4')
    p('s_movk_i32 s58, 1280')
    p('s_movk_i32 s59, 2047')
    for i in range(5):
        p(f'v_add_u32 v5, {32*i}, v3')
        if attn and i == 0:
            p('v_max_i32 v5, 0, v5')
        if (not attn) and i == 4:
            p('v_min_u32 v5, s59, v5')
        p('v_mul_u32_u24 v5, s58, v5')
        if (not attn) and i == 4 and CFG['DEDUP']:
            p(f'v_mov_b32 v6, v{VOFF}')
        else:
            p(f'v_add_u32 v{VOFF+i if i < 4 else 6}, v5, v4')
    p('s_lshl_b32 s58, s57, 6')
    p(f'v_add_u32 v7, s58, v{VL}')
    p(f's_mov_b32 s60, {rowstride}')
    p('v_mov_b32 v9, 0x7ffffff0')
    if attn:
        p(f's_mul_i32 s61, s{S_CG}, 160')
    else:
        p(f's_mul_i32 s61, s{S_CG}, 448')

    def w_offset(i):
        base = 64 * (4 * i - 18)
        dst = VOFF + i if i > 4 else 8
        if base >= 0:
            p(f'v_add_u32 v3, {base}, v7')
        else:
            p(f'v_subrev_u32 v3, {-base}, v7')
            p('v_max_i32 v3, 0, v3')
        p('v_mul_u32_u24 v4, 2185, v3')
        p('v_lshrrev_b32 v4, 16, v4')
        p('v_mul_u32_u24 v5, 30, v4')
        p('v_sub_u32 v5, v3, v5')
        p('v_lshrrev_b32 v3, 1, v4')
        p('v_xor_b32 v3, v3, v4')
        p('v_and_b32 v3, 4, v3')
        p('v_mul_u32_u24 v3, 3, v3')
        p('v_xor_b32 v4, v3, v4')
        p('v_mul_u32_u24 v4, s60, v4')
        if attn:
            p('v_mul_u32_u24 v3, 205, v5')
            p('v_lshrrev_b32 v3, 11, v3')
            p('v_mul_u32_u24 v3, 1120, v3')
            p('v_lshlrev_b32 v5, 4, v5')
            p('v_add3_u32 v5, v5, v3, s61')
        else:
            if CFG['DEDUP']:
                p('v_min_u32 v5, 27, v5')
            p('v_lshlrev_b32 v5, 4, v5')
            p('v_add_u32 v5, s61, v5')
            if CFG['ZOOB']:
                p('v_cmp_lt_u32 vcc, 3440, v5')
            else:
                p('v_min_u32 v5, 3440, v5')
        p(f'v_add_u32 v{dst}, v4, v5')
        if (not attn) and CFG['ZOOB']:
            p(f'v_cndmask_b32 v{dst}, v{dst}, v9, vcc')
        if i == 4:
            p('s_cmp_lt_u32 s57, 2')
            p('s_cselect_b64 vcc, -1, 0')
            p(f'v_cndmask_b32 v{VOFF+4}, v8, v6, vcc')

    p('s_waitcnt lgkmcnt(0)')
    if attn:
        srd(p, SRD_X, S_AX, 2048 * 1280)
        srd(p, SRD_W, S_WQKV, 640 * 3840)
    else:
        srd(p, SRD_X, S_AX, 2048 * 1280)
        srd(p, SRD_W, S_W1, 640 * 3456)
    p('s_cmp_lt_u32 s57, 2')
    for k in range(3):
        p(f's_cselect_b32 s{SRD_I4+k}, s{SRD_X+k}, s{SRD_W+k}')
    p(f's_mov_b32 s{SRD_I4+3}, 0x20000')
    p('s_movk_i32 s73, 128')
    p('s_cselect_b32 s73, s73, %d' % (64 * rowstride))
    if CFG['ROT']:
        if CFG['MAP1'] == 'mixed' and CFG['MROT']:
            p(f's_and_b32 s79, s{S_RB}, 3')
            if CFG['MROT'] // 10 == 4:
                p('s_mul_i32 s79, s79, 5')
                p('s_lshr_b32 s79, s79, 1')
            elif CFG['MROT'] // 10 == 2:
                p('s_lshr_b32 s79, s79, 1')
                p('s_mul_i32 s79, s79, 5')
            p(f's_and_b32 s80, s{S_CG}, 3')
            p(f's_lshl_b32 s81, s{S_TYPE}, 2')
            p('s_add_u32 s80, s80, s81')
            if CFG['MROT'] % 10 == 8:
                p('s_lshr_b32 s81, s80, 2')
                p('s_add_u32 s80, s80, s81')
            elif CFG['MROT'] % 10 == 4:
                p('s_lshr_b32 s80, s80, 1')
                p('s_mul_i32 s80, s80, 5')
                p('s_lshr_b32 s80, s80, 1')
            elif CFG['MROT'] % 10 == 2:
                p('s_lshr_b32 s80, s80, 2')
                p('s_mul_i32 s80, s80, 5')
        else:
            p(f's_and_b32 s79, s{S_RB}, 7')
            if CFG['KW'] == 8:
                p('s_lshr_b32 s80, s79, 2')
                p('s_add_u32 s79, s79, s80')
            elif CFG['KW'] == 4:
                p('s_lshr_b32 s79, s79, 1')
                p('s_mul_i32 s79, s79, 5')
                p('s_lshr_b32 s79, s79, 1')
            elif CFG['KW'] == 2:
                p('s_lshr_b32 s79, s79, 2')
                p('s_mul_i32 s79, s79, 5')
            elif CFG['KW'] == 3:
                p('s_mul_i32 s79, s79, 43')
                p('s_lshr_b32 s79, s79, 7')
                p('s_mul_i32 s79, s79, 10')
                p('s_mul_i32 s79, s79, 43')
                p('s_lshr_b32 s79, s79, 7')
            elif CFG['KW'] == 41:
                p('s_and_b32 s79, s79, 3')
                p('s_mul_i32 s79, s79, 5')
                p('s_lshr_b32 s79, s79, 1')
            elif CFG['KW'] == 5:
                p('s_mul_i32 s79, s79, 5')
                p('s_lshr_b32 s79, s79, 2')
                p('s_andn2_b32 s79, s79, 1')
            if CFG['MAP1'] == 'spec':
                p(f's_and_b32 s80, s{S_CG}, 3')
            else:
                p(f's_and_b32 s80, s{S_CG}, 1')
                p(f's_lshl_b32 s81, s{S_TYPE}, 1')
                p('s_add_u32 s80, s80, s81')
            if CFG['KX'] == 4:
                p('s_mul_i32 s80, s80, 5')
                p('s_lshr_b32 s80, s80, 1')
            elif CFG['KX'] == 3:
                p('s_mul_i32 s80, s80, 3')
            elif CFG['KX'] == 2:
                p('s_lshr_b32 s80, s80, 1')
                p('s_mul_i32 s80, s80, 5')
            else:
                p('s_mov_b32 s80, 0')
        p('s_add_u32 s79, s79, s80')
        p('s_cmp_ge_u32 s79, 10')
        p('s_cselect_b32 s80, 10, 0')
        p('s_sub_u32 s79, s79, s80')
    else:
        p('s_mov_b32 s79, 0')
    p('s_lshl_b32 s74, s79, 7')
    p(f's_mul_i32 s75, s79, {64*rowstride}')
    p('s_mul_i32 s76, s79, s73')
    p('s_lshl_b32 s77, s57, 10')

    def issue_stage(st, lazy=False):
        slot = st % 3
        ldf = CFG['LDF0'] if st < CFG['NT_ST'] else CFG['LDF']
        for i in range(12):
            if lazy and i >= 4:
                w_offset(i)
            p(f's_add_u32 m0, s77, {slot*SLOT + i*4096}')
            if i < 4:
                if i == 0:
                    p('s_nop 0')
                p(f'buffer_load_dwordx4 v{VOFF+i}, s[{SRD_X}:{SRD_X+3}], s74 offen {ldf} lds')
            elif i == 4:
                p(f'buffer_load_dwordx4 v{VOFF+i}, s[{SRD_I4}:{SRD_I4+3}], s76 offen {ldf} lds')
            else:
                p(f'buffer_load_dwordx4 v{VOFF+i}, s[{SRD_W}:{SRD_W+3}], s75 offen {ldf} lds')
        p('s_add_u32 s74, s74, 128')
        p(f's_add_u32 s75, s75, {64*rowstride}')
        p('s_add_u32 s76, s76, s73')
        if CFG['ROT']:
            p('s_add_u32 s79, s79, 1')
            p('s_cmp_eq_u32 s79, 10')
            for r in (79, 74, 75, 76):
                p(f's_cselect_b32 s{r}, 0, s{r}')

    stamp(p, 0)
    issue_stage(0, lazy=True)
    s1late = (CFG['S1LATE'] == 1 and not attn) or CFG['S1LATE'] == 2
    if not CFG['HALF'] and not s1late:
        issue_stage(1)
    UF = CFG['UNITS_FFN']
    scr_base = SLOT if (UF and not attn) else SCR

    def unit_decode(sfx):
        p('s_and_b32 s64, s62, 7')
        p('s_lshr_b32 s65, s62, 3')
        if CFG['FUSE']:
            p('s_mul_i32 s56, s64, 80')
            p('s_add_u32 s56, s56, s65')
            p('s_lshl_b32 s56, s56, 2')
            p(f's_add_u32 s56, s56, {FLG_OFF + 1024}')
        p('s_lshl_b32 s66, s65, 5')
        p('s_mov_b32 s67, 16')
        p('s_mov_b32 s68, 4')
        p('s_mul_i32 s69, s64, 54')
        p('s_add_u32 s69, s69, s65')
        p('s_mul_i32 s69, s69, 5120')
        p(f's_add_u32 s69, s69, {W2_OFF}')
        p('s_mov_b32 s70, 0')
        p('s_cmp_lt_u32 s65, 54')
        p(f's_cbranch_scc1 L_unit_done_{tag}{sfx}')
        p('s_sub_u32 s65, s65, 54')
        p('s_mov_b32 s70, 1')
        p('s_mul_i32 s69, s64, 20')
        p('s_add_u32 s69, s69, s65')
        p('s_mul_i32 s69, s69, 5120')
        p(f's_add_u32 s69, s69, {WO_OFF}')
        p('s_mul_i32 s66, s65, 40')
        p('s_mov_b32 s67, 20')
        p('s_cmp_lt_u32 s65, 16')
        p(f's_cbranch_scc1 L_unit_done_{tag}{sfx}')
        p('s_sub_u32 s65, s65, 16')
        p('s_mul_i32 s66, s65, 160')
        p('s_add_u32 s66, s66, 16')
        p('s_mov_b32 s67, 80')
        p('s_mov_b32 s68, 20')
        p.label(f'L_unit_done_{tag}{sfx}')
        p('s_mul_i32 s71, s64, 160')
        p('s_movk_i32 s58, 1280')
        for i in range(5):
            p(f'v_add_u32 v3, {64*i}, v{VL}')
            p('v_mul_u32_u24 v4, 6554, v3')
            p('v_lshrrev_b32 v4, 16, v4')
            p('v_mul_u32_u24 v5, 10, v4')
            p('v_sub_u32 v5, v3, v5')
            p('v_lshlrev_b32 v5, 4, v5')
            p('v_add_u32 v5, s71, v5')
            p('v_lshrrev_b32 v3, 4, v4')
            p('v_mul_u32_u24 v3, s67, v3')
            p('v_bfe_u32 v6, v4, 2, 2')
            p('v_mul_u32_u24 v6, s68, v6')
            p('v_and_b32 v4, 3, v4')
            p('v_add3_u32 v3, v3, v6, v4')
            p('v_add_u32 v3, s66, v3')
            p('v_mul_u32_u24 v3, s58, v3')
            p(f'v_add_u32 v{22+i}, v3, v5')

    def unit_srd():
        p('s_cmp_eq_u32 s70, 0')
        p(f's_cselect_b32 s{SRD_A}, s{S_W2}, s{S_WO}')
        p(f's_cselect_b32 s{SRD_A+1}, s{S_W2+1}, s{S_WO+1}')
        p(f's_mov_b32 s{SRD_A+2}, {1728*1280}')
        p(f's_cselect_b32 s{SRD_A+2}, s{SRD_A+2}, {640*1280}')
        p(f's_mov_b32 s{SRD_A+3}, 0x20000')

    do_units = True
    NFU = CFG['NFU']
    always = UF and not attn and NFU == 4
    if UF:
        p(f's_lshl_b32 s62, s{S_RB}, 3')
        p(f's_add_u32 s62, s62, s{S_CG}')
        p('s_lshl_b32 s63, s57, 7')
        p('s_add_u32 s62, s62, s63')
        if not attn:
            p(f's_cmp_lt_u32 s57, {NFU}')
            p('s_cselect_b32 s63, 1, 0')
        else:
            p(f's_add_u32 s62, s62, {128*NFU}')
            p('s_cmp_lt_u32 s62, 592')
            p('s_cselect_b32 s63, 1, 0')
            p('s_cmp_lt_u32 s57, 3')
            p('s_cselect_b32 s63, s63, 0')
    else:
        p('s_lshl_b32 s62, s57, 8')
        p('s_add_u32 s62, s62, s2')
        p('s_cmp_lt_u32 s62, 592')
        p('s_cselect_b32 s63, 1, 0')
        p('s_cmp_lt_u32 s57, 3')
        p('s_cselect_b32 s63, s63, 0')
    if do_units:
        unit_decode('')
        p(f'v_lshrrev_b32 v3, 2, v{VL}')
        p('v_mul_u32_u24 v3, 160, v3')
        p('s_mul_i32 s72, s57, 5120')
        p(f's_add_u32 s72, s72, {scr_base}')
        p('v_add_u32 v3, s72, v3')
        p(f'v_and_b32 v4, 3, v{VL}')
        p('v_lshl_add_u32 v27, v4, 4, v3')
        p('v_lshl_add_u32 v28, v4, 3, v3')
        p(f'v_lshlrev_b32 v29, 4, v{VL}')
        p('v_add_u32 v30, 4096, v29')
    if not attn:
        p(f's_lshl_b32 s58, s{S_RB}, 3')
        p(f's_add_u32 s58, s58, s{S_CG}')
        p('s_lshl_b32 s58, s58, 4')
        p('s_lshl_b32 s59, s57, 2')
        p('s_add_u32 s58, s58, s59')
        p(f'v_lshrrev_b32 v3, 4, v{VL}')
        p('v_add_u32 v31, s58, v3')
        p('s_movk_i32 s58, 1280')
        p('v_mul_u32_u24 v3, s58, v31')
        p(f'v_and_b32 v4, 15, v{VL}')
        p('v_lshlrev_b32 v33, 4, v4')
        p('v_add_u32 v32, v3, v33')
    srd(p, SRD_WS, S_WS, WS_USED)
    if do_units:
        unit_srd()
    GX, GW = 40, 60
    gate = (not attn)
    TG = 10 if gate else 0
    if gate:
        srd(p, SRD_B, S_GW, 1280)

    def unit_loads():
        for i in range(5):
            p(f's_add_u32 m0, s72, {i*1024}')
            p('s_nop 0')
            p(f'buffer_load_dwordx4 v{22+i}, s[{SRD_A}:{SRD_A+3}], 0 offen {CFG["ULDF"]} lds')

    def unit_finish():
        for f in range(5):
            a, off = (27, [0, 8, 64, 72][f]) if f < 4 else (28, 128)
            p(f'ds_read_b64_tr_b16 v[{84+4*f}:{85+4*f}], v{a} offset:{off}')
            p(f'ds_read_b64_tr_b16 v[{86+4*f}:{87+4*f}], v{a} offset:{off+2560}')
        for f in range(5):
            p(f's_waitcnt lgkmcnt({8-2*f})')
            if f < 4:
                p(f'buffer_store_dwordx4 v[{84+4*f}:{87+4*f}], v29, s[{SRD_WS}:{SRD_WS+3}], s69 offen offset:{1024*f} {CFG["STF"]}')
            else:
                p(f'buffer_store_dwordx4 v[{84+4*f}:{87+4*f}], v30, s[{SRD_WS}:{SRD_WS+3}], s69 offen {CFG["STF"]}')

    def tail_loads():
        if not do_units:
            return
        if always:
            unit_loads()
        else:
            p('s_cmp_eq_u32 s63, 0')
            p(f's_cbranch_scc1 L_nounit_ld_{tag}')
            unit_loads()
            p.label(f'L_nounit_ld_{tag}')
        if gate:
            for j in range(5):
                p(f'buffer_load_dwordx4 v[{GX+4*j}:{GX+4*j+3}], v32, s[{SRD_X}:{SRD_X+3}], 0 offen offset:{256*j}')
                p(f'buffer_load_dwordx4 v[{GW+4*j}:{GW+4*j+3}], v33, s[{SRD_B}:{SRD_B+3}], 0 offen offset:{256*j}')

    def unit_prefetch(grp):
        if not (CFG['USPF'] and do_units):
            return
        hi, mid = grp >> 2, grp & 3
        p('s_cmp_eq_u32 s63, 0')
        p(f's_cbranch_scc1 L_uspf{grp}_{tag}')
        p(f's_mul_i32 s99, s67, {hi}')
        p(f's_mul_i32 s98, s68, {mid}')
        p('s_add_u32 s99, s99, s98')
        p('s_add_u32 s99, s99, s66')
        p('s_mul_i32 s99, s99, 1280')
        p('s_add_u32 s99, s99, s71')
        for r in range(4):
            p(f's_load_dword s56, s[{SRD_A}:{SRD_A+1}], s99 offset:{1280*r}')
            p(f's_load_dword s56, s[{SRD_A}:{SRD_A+1}], s99 offset:{1280*r + 156}')
        p.label(f'L_uspf{grp}_{tag}')

    def wait_vm(n_nounit, n_unit, uid):
        if always:
            n_nounit = n_unit
        if n_nounit == n_unit:
            p(f's_waitcnt vmcnt({n_unit})')
            return
        p('s_cmp_eq_u32 s63, 0')
        p(f's_cbranch_scc1 L_w{uid}a_{tag}')
        p(f's_waitcnt vmcnt({n_unit})')
        p(f's_branch L_w{uid}b_{tag}')
        p.label(f'L_w{uid}a_{tag}')
        p(f's_waitcnt vmcnt({n_nounit})')
        p.label(f'L_w{uid}b_{tag}')

    if CFG['HALF']:
        p('s_waitcnt vmcnt(3)')
        p('s_barrier')
        issue_stage(1)
        p('s_waitcnt vmcnt(12)')
    elif CFG['TEARLY']:
        tail_loads()
        wait_vm(12 + TG, 12 + TG + 5, 'i')
    else:
        p('s_waitcnt vmcnt(%d)' % (0 if s1late else 12))
    stamp(p, 1)
    TJ = CFG['TJ'] if attn else 7
    p('s_barrier')
    if s1late:
        issue_stage(1)
    issue_stage(2)
    unit_prefetch(0)
    for j in range(9):
        if CFG['TEARLY']:
            if j == 0:
                wait_vm(12 + TG, 12 + TG + 5, j)
            else:
                p('s_waitcnt vmcnt(%d)' % (12 if j <= 7 else 0))
        elif j <= TJ:
            p('s_waitcnt vmcnt(12)')
        elif j == 7:
            wait_vm(12 + TG, 12 + TG + 5, j)
        else:
            wait_vm(TG, TG + 5, j)
        p('s_barrier')
        if j + 3 <= 9 and not CFG['NOLOAD']:
            issue_stage(j + 3)
        if j <= 6:
            unit_prefetch(j + 1)
        if j == TJ and not CFG['TEARLY']:
            tail_loads()
        if j == 3 and CFG['TEARLY'] and gate:
            gate_job(p, GX, GW, store=False)
    stamp(p, 2)
    if CFG['K2PF']:
        p('s_cmp_eq_u32 s57, 3')
        p(f's_cbranch_scc0 L_nok2pf_{tag}')
        p(f'v_mov_b32 v34, v{VL}')
        code_prefetch(p, 'L_phase_end' if CFG['FUSE'] else 'gm_k2_kernel', 'L_k2_end', 16384, 34, 255, 84, 'k2pf' + tag)
        p.label(f'L_nok2pf_{tag}')
    if CFG['FUSE']:
        nonce_load(p, 117, 116)
    if do_units:
        p('s_waitcnt vmcnt(0) lgkmcnt(0)')
        if always:
            unit_finish()
        else:
            p('s_cmp_eq_u32 s63, 0')
            p(f's_cbranch_scc1 L_nounit_{tag}')
            unit_finish()
            p.label(f'L_nounit_{tag}')
    if gate:
        if CFG['TEARLY']:
            gate_store(p)
        else:
            gate_job(p, GX, GW)
    if CFG['FUSE']:
        p('s_waitcnt vmcnt(0)')
        nonce_get(p, 117, 116, 'l' + tag)
        p('s_cmp_eq_u32 s63, 0')
        p(f's_cbranch_scc1 L_nouflag_{tag}')
        p('v_mov_b32 v117, s56')
        p(f'v_mov_b32 v116, s{S_NONCE}')
        p(f'buffer_store_dword v116, v117, s[{SRD_WS}:{SRD_WS+3}], 0 offen sc1')
        p.label(f'L_nouflag_{tag}')
    stamp(p, 3)
    if CFG['PROF']:
        prof_store(p, 4, 'LD' + tag, SRD_WS)
    if CFG['FUSE']:
        p('s_barrier')
    p('s_endpgm')


def prof_debug(p, n, tag, sbase=90):
    p('s_waitcnt lgkmcnt(0) vmcnt(0)')
    p('s_and_b32 s86, s2, 127')
    p('s_cmp_eq_u32 s86, 0')
    p(f's_cbranch_scc0 L_pd_{tag}')
    p(f's_and_b32 s86, s{S_WAVE}, 3')
    p('s_cmp_eq_u32 s86, 0')
    p(f's_cbranch_scc0 L_pd_{tag}')
    p('s_load_dwordx2 s[76:77], s[0:1], 80')
    p('s_waitcnt lgkmcnt(0)')
    p('s_mov_b32 s78, 256')
    p('s_mov_b32 s79, 0x20000')
    p('s_lshr_b32 s86, s2, 7')
    p('s_lshl_b32 s86, s86, 1')
    p(f's_lshr_b32 s85, s{S_WAVE}, 2')
    p('s_add_u32 s86, s86, s85')
    p('s_lshl_b32 s86, s86, 4')
    p('v_mov_b32 v1, 0')
    for i in range(n):
        p(f's_sub_u32 s85, s{sbase+2*i}, s88')
        p('v_mov_b32 v0, s85')
        p(f'buffer_store_dword v0, v1, s[76:79], s86 offen offset:{4*i}')
    p('s_waitcnt vmcnt(0)')
    p.label(f'L_pd_{tag}')


_pd = [0]


def prof_collect(p, srdws):
    p('s_waitcnt lgkmcnt(0) vmcnt(0)')
    p(f's_or_b32 s86, s2, s{S_WAVE}')
    p('s_cmp_eq_u32 s86, 0')
    p('s_cbranch_scc0 L_pc5')
    p('s_load_dwordx2 s[76:77], s[0:1], 80')
    p(f's_mov_b32 s{srdws+2}, 0x10000000')
    p('v_mbcnt_lo_u32_b32 v0, -1, 0')
    p('v_mbcnt_hi_u32_b32 v0, -1, v0')
    p('v_lshrrev_b32 v1, 2, v0')
    p('v_and_b32 v2, 3, v0')
    p('v_lshlrev_b32 v2, 2, v2')
    p('v_cmp_eq_u32 vcc, 1, v1')
    p('v_mov_b32 v3, 0')
    p('v_mov_b32 v4, 256')
    p('v_cndmask_b32 v3, v3, v4, vcc')
    p('v_cmp_eq_u32 vcc, 2, v1')
    p(f'v_mov_b32 v4, {128*8*64}')
    p('v_cndmask_b32 v3, v3, v4, vcc')
    p('v_add_u32 v3, v3, v2')
    p(f'v_add_u32 v3, {PROF_OFF}, v3')
    p(f'buffer_load_dword v5, v3, s[{srdws}:{srdws+3}], 0 offen')
    p(f'v_mov_b32 v6, {PROF_OFF + 60}')
    p(f'buffer_load_dword v7, v6, s[{srdws}:{srdws+3}], 0 offen')
    p('s_waitcnt vmcnt(0) lgkmcnt(0)')
    p('s_mov_b32 s78, 256')
    p('s_mov_b32 s79, 0x20000')
    p('v_sub_u32 v5, v5, v7')
    for ln, sr_ in ((12, 88), (13, 90), (14, 94), (15, 96)):
        p(f'v_mov_b32 v8, s{sr_}')
        p('v_sub_u32 v8, v8, v7')
        p(f'v_cmp_eq_u32 vcc, {ln}, v0')
        p('v_cndmask_b32 v5, v5, v8, vcc')
    p('v_lshlrev_b32 v0, 2, v0')
    p('v_cmp_gt_u32 vcc, 64, v0')
    p('s_and_saveexec_b64 s[84:85], vcc')
    p('buffer_store_dword v5, v0, s[76:79], 0 offen')
    p('s_waitcnt vmcnt(0)')
    p.label('L_pc5')


def prof_store(p, n, tag, srdws, sbase=90):
    if CFG['PROF'] == 5 and tag.startswith('K2'):
        return prof_collect(p, srdws)
    if CFG['PROF'] == 4:
        _pd[0] += 1
        return prof_debug(p, n, tag + str(_pd[0]), sbase)
    return prof_store_ws(p, n, tag, srdws, sbase)


def prof_store_ws(p, n, tag, srdws, sbase=90):
    p('s_memtime s[80:81]')
    p('s_memrealtime s[78:79]')
    p('s_waitcnt lgkmcnt(0) vmcnt(0)')
    p('s_sub_u32 s80, s80, s82')
    p('s_sub_u32 s78, s78, s88')
    p(f's_mov_b32 s{srdws+2}, 0x10000000')
    p(f's_lshl_b32 s86, s2, 3')
    p(f's_add_u32 s86, s86, s{S_WAVE}')
    p(f's_lshl_b32 s86, s86, 6')
    p(f's_add_u32 s86, s86, {PROF_OFF + (0 if not tag.startswith("K2") else (1 << 20))}')
    if CFG['PROF'] == 3:
        p(f's_lshl_b32 s85, s2, 3')
        p(f's_add_u32 s85, s85, s{S_WAVE}')
        p(f's_lshl_b32 s85, s85, 8')
        p(f's_add_u32 s85, s85, {PROF_OFF + (2 << 20)}')
        p('v_mbcnt_lo_u32_b32 v0, -1, 0')
        p('v_mbcnt_hi_u32_b32 v0, -1, v0')
        p('v_lshlrev_b32 v0, 2, v0')
        if not tag.startswith('K2'):
            p(f'buffer_store_dword v254, v0, s[{srdws}:{srdws+3}], s85 offen')
    p('v_mov_b32 v1, 0')
    p('v_mov_b32 v0, s88')
    p(f'buffer_store_dword v0, v1, s[{srdws}:{srdws+3}], s86 offen offset:60')
    p('v_mov_b32 v0, s80')
    p(f'buffer_store_dword v0, v1, s[{srdws}:{srdws+3}], s86 offen offset:56')
    p('v_mov_b32 v0, s78')
    p(f'buffer_store_dword v0, v1, s[{srdws}:{srdws+3}], s86 offen offset:52')
    for i in range(n):
        p(f'v_mov_b32 v0, s{sbase+2*i}')
        p(f'buffer_store_dword v0, v1, s[{srdws}:{srdws+3}], s86 offen offset:{4*i}')
    if CFG['PROF'] == 6 and tag == 'CA':
        for i, r in enumerate((72, 74, 76)):
            p(f'v_mov_b32 v0, s{r}')
            p(f'buffer_store_dword v0, v1, s[{srdws}:{srdws+3}], s86 offen offset:{16+4*i}')
    p('s_waitcnt vmcnt(0)')


def gate_store(p):
    p(f'buffer_store_dwordx2 v[38:39], v37, s[{SRD_WS}:{SRD_WS+3}], 0 offen {CFG["STF"]}')


def gate_job(p, GX, GW, store=True):
    T = 104
    p('v_mov_b32 v34, 0')
    p('v_mov_b32 v35, 0')
    p('v_mov_b32 v36, 0x3f803f80')
    p('s_mov_b32 s78, 0xffff0000')
    for d in range(20):
        x, w = GX + d, GW + d
        t = T + 6 * (d & 1)
        p(f'v_lshlrev_b32 v{t}, 16, v{x}')
        p(f'v_and_b32 v{t+1}, s78, v{x}')
        p(f'v_lshlrev_b32 v{t+2}, 16, v{w}')
        p(f'v_and_b32 v{t+3}, s78, v{w}')
        p(f'v_pk_mul_f32 v[{t}:{t+1}], v[{t}:{t+1}], v[{t+2}:{t+3}]')
        p(f'v_cvt_pk_bf16_f32 v{t+4}, v{t}, v{t+1}')
        acc = 34 + (d & 1)
        p(f'v_dot2_f32_bf16 v{acc}, v{t+4}, v36, v{acc}')
    p('v_add_f32 v34, v34, v35')
    for sh in (8, 4, 2, 1):
        p(f'v_add_f32_dpp v34, v34, v34 row_ror:{sh} row_mask:0xf bank_mask:0xf')
    p('v_cvt_pk_bf16_f32 v35, v34, v34')
    p('v_lshlrev_b32 v35, 16, v35')
    p(f'v_mul_f32 v35, {hexf(-math.log2(math.e))}, v35')
    p('v_exp_f32 v35, v35')
    p('v_add_f32 v35, 1.0, v35')
    p('v_rcp_f32 v35, v35')
    p('v_cvt_pk_bf16_f32 v35, v35, v35')
    p('v_lshlrev_b32 v38, 16, v35')
    p('v_sub_f32 v39, 1.0, v38')
    p('v_cvt_pk_bf16_f32 v39, v39, v39')
    p('v_lshlrev_b32 v39, 16, v39')
    p('v_lshlrev_b32 v37, 3, v31')
    p(f'v_add_u32 v37, {G_OFF}, v37')
    if store:
        gate_store(p)


A_QM = lambda h, t: 0 + (h * 4 + t) * 4
A_KM = lambda h, kt: 32 + (h * 5 + kt) * 4
A_QKT = lambda kt: 72 + 4 * kt
A_VM = lambda h, kt: 92 + (h * 5 + kt) * 4
A_VT = lambda kt: 132 + 4 * kt
WF = lambda f: 152 + 4 * f
XF = lambda b, t: 184 + 20 * b + 4 * t
V_X0, V_X1, V_W, V_WA, V_WB = 224, 225, 226, 227, 228
V_BPREV, V_BCUR, V_BFIRST, V_SEL = 232, 236, 240, 244
F_ACC = lambda f, t: (f * 4 + t) * 4


class LgkmTracker:
    def __init__(self, p):
        self.p = p
        self.q = []

    def issue(self, tag):
        self.q.append(tag)

    def need(self, tags):
        idx = -1
        for i, t in enumerate(self.q):
            if t in tags:
                idx = i
        if idx < 0:
            return
        n = len(self.q) - 1 - idx
        self.p(f's_waitcnt lgkmcnt({min(n, 15)})')
        keep = min(n, 15)
        self.q = self.q[len(self.q) - keep:] if keep else []

    def drain(self):
        self.p('s_waitcnt lgkmcnt(0)')
        self.q = []


def consumer_loop(p, attn, th=None):
    tag = ('A' if attn else 'F') + ('' if th is None else str(th))
    NT = 5 if attn else 4
    xoff = lambda t: 2048 * t
    if attn:
        kk = range(5) if th in (None, 0) else range(1, 5)
        vk = range(5) if th in (None, 1) else range(1, 5)
        if th == 1:
            xoff = lambda t: 0 if t == 0 else 8192 + 2048 * t
        tiles = []
        for h in range(2):
            tiles.append([(A_QM(h, t), t + 1, 'F') for t in range(4)])
        for h in range(2):
            tiles.append([(A_KM(h, k), k, 'F') for k in kk])
        tiles.append([(A_QKT(k), k, 'F') for k in kk])
        for h in range(2):
            tiles.append([(A_VM(h, k), k, 'T') for k in vk])
        tiles.append([(A_VT(k), k, 'T') for k in vk])
        waddr = [(V_W, 0), (V_W, 40), (V_W, 160), (V_W, 200), (V_WA, 0), (V_W, 320), (V_W, 360), (V_WB, 0)]
    else:
        tiles = [[(F_ACC(f, t), t, 'F') for t in range(4)] for f in range(7)]
        waddr = [(V_W, 32 * f) for f in range(6)] + [(V_WA, 0)]
    NF = len(tiles)

    lg = LgkmTracker(p)

    def rd_w(f, s):
        if CFG['NODS']:
            return
        a, off = waddr[f]
        off += s * 32 * WROW
        p(f'ds_read_b64_tr_b16 v[{WF(f)}:{WF(f)+1}], v{a} offset:{off}')
        lg.issue(('w', f))
        p(f'ds_read_b64_tr_b16 v[{WF(f)+2}:{WF(f)+3}], v{a} offset:{off + 8*WROW}')
        lg.issue(('w', f))

    def rd_x(t, s):
        if CFG['NODS']:
            return
        p(f'ds_read_b128 v[{XF(s,t)}:{XF(s,t)+3}], v{V_X1 if s else V_X0} offset:{2048*t}')
        lg.issue(('x', s, t))

    LAST = NF - 1

    def wreads(f, s):
        a, off = waddr[f]
        off += s * 32 * WROW
        return [(f'ds_read_b64_tr_b16 v[{WF(f)}:{WF(f)+1}], v{a} offset:{off}', ('w', f)),
                (f'ds_read_b64_tr_b16 v[{WF(f)+2}:{WF(f)+3}], v{a} offset:{off + 8*WROW}', ('w', f))]

    def xread(t, s):
        return (f'ds_read_b128 v[{XF(s,t)}:{XF(s,t)+3}], v{V_X1 if s else V_X0} offset:{xoff(t)}', ('x', s, t))

    def emit(item):
        if CFG['NODS']:
            return
        p(item[0])
        lg.issue(item[1])

    order_log = []

    def packing():
        cv = lambda d, a: f'v_cvt_pk_bf16_f32 v{d}, v{a}, v{a+1}'
        out = []
        for h in range(2):
            for t in range(4):
                b = A_QM(h, t)
                out += [(h, cv(b, b)), (h, cv(b + 1, b + 2))]
        for h in range(2):
            for kt in kk:
                b = A_KM(h, kt)
                out += [(2 + h, cv(b, b)), (2 + h, cv(b + 1, b + 2))]
        for kt in kk:
            t = A_QKT(kt)
            out += [(4, cv(t, t)), (4, cv(t + 1, t + 2))]
        for kt in kk:
            t, k0 = A_QKT(kt), A_KM(0, kt)
            out += [(4, f'v_mov_b32 v{k0+2}, v{t}'), (4, f'v_mov_b32 v{k0+3}, v{t+1}')]
        return out

    def step(s, dry=False, last=False, first=False):
        nxt = 1 - s
        q = wreads(LAST, s)
        xq = [xread(t, nxt) for t in range(NT)]
        held = []
        upd = [V_W, V_X0, V_X1, V_WA] + ([V_WB] if attn else [])
        pk = []
        if last:
            xq, upd = [], []
            pk = packing() if attn else []
        if first:
            xq = []
        zq = []
        for f in range(NF):
            if not dry:
                lg.need({('w', f)} | ({('x', s, t) for t in range(NT)} if f == 0 else set()))
                if attn and CFG['ZVT'] and f == LAST - 1:
                    lg.need({('w', LAST)})
                    zq = [f'v_cndmask_b32 v{WF(LAST)+k}, 0, v{WF(LAST)+k}, s[68:69]' for k in range(4)]
            for n, (acc, t, o) in enumerate(tiles[f]):
                w, x = f'v[{WF(f)}:{WF(f)+3}]', f'v[{XF(s,t)}:{XF(s,t)+3}]'
                a, b = (w, x) if o == 'F' else (x, w)
                if not CFG['NOMFMA'] and not dry:
                    p(f'v_mfma_f32_16x16x32_bf16 v[{acc}:{acc+3}], {a}, {b}, v[{acc}:{acc+3}]')
                item = None
                if q:
                    item = q.pop(0)
                elif xq and (s == 0 or f >= 2):
                    item = xq.pop(0)
                if item is not None:
                    if dry:
                        order_log.append(item)
                    else:
                        emit(item)
                if not dry and s == 0 and f == LAST and n == 1 and not first:
                    p(f's_add_u32 s53, s53, {SLOT}')
                    p(f's_cmp_eq_u32 s53, {3*SLOT}')
                if not dry and s == 0 and f == LAST and n == 2 and not first:
                    p(f's_cselect_b32 s54, s51, {SLOT}')
                    p('s_cselect_b32 s53, 0, s53')
                if not dry and s == 1 and item is None and upd and (f, n) >= (0, 2):
                    p(f'v_add_u32 v{upd[0]}, s54, v{upd[0]}')
                    upd.pop(0)
                if zq and not dry:
                    p(zq.pop(0))
                for _ in range(2 - (1 if (attn and CFG['ZVT'] and f == LAST - 1) else 0)):
                    if pk and pk[0][0] + 2 <= f:
                        p(pk.pop(0)[1])
            if f < LAST and not last and not first:
                rs = wreads(f, nxt)
                if s == 1 and f < 1:
                    held += rs
                elif s == 1 and f == 1:
                    assert not q
                    if not dry:
                        assert not upd
                        if CFG['PROF'] == 3:
                            p('s_memtime s[70:71]')
                        lg.drain()
                        if CFG['PROF'] == 3:
                            p('s_lshl_b32 m0, s52, 1')
                            p('s_nop 3')
                            p('v_writelane_b32 v254, s70, m0')
                            p('s_add_u32 s74, m0, 63')
                            p('s_and_b32 m0, s74, 63')
                            p('s_nop 3')
                            p('v_writelane_b32 v254, s72, m0')
                        if CFG['PEEL']:
                            p('s_barrier')
                        else:
                            p('s_cmp_eq_u32 s52, 9')
                            p(f's_cbranch_scc1 L_nobar_{tag}')
                            p('s_barrier')
                            p.label(f'L_nobar_{tag}')
                        if CFG['PROF'] == 3:
                            p('s_memtime s[72:73]')
                    q += held + rs
                    held = []
                else:
                    q += rs
        assert not q and not xq, (q, xq)
        for _, ins in pk:
            p(ins)

    step(1, dry=True)
    for item in order_log[2:]:
        emit(item)
    p('s_mov_b32 s52, 0')
    p('s_mov_b32 s53, 0')
    p(f's_mov_b32 s51, {(-2*SLOT) & 0xffffffff}')
    if CFG['HALF']:
        q_steady = list(lg.q)
        step(0, first=True)
        p('s_barrier')
        del order_log[:]
        step(0, dry=True)
        for item in order_log[2:]:
            emit(item)
        p(f's_add_u32 s53, s53, {SLOT}')
        p(f's_mov_b32 s54, {SLOT}')
        lg.drain()
        p(f's_branch L_mid_{tag}')
        lg.q = q_steady
    if CFG['ALIGN']:
        p(f'.p2align {CFG["ALIGN"]}')
    p.label(f'L_loop_{tag}')
    q_head = list(lg.q)
    step(0)
    if CFG['HALF']:
        p.label(f'L_mid_{tag}')
    step(1)
    q_end = list(lg.q)
    assert q_end == q_head, (q_end, q_head)
    p('s_add_u32 s52, s52, 1')
    p(f's_cmp_lt_u32 s52, {9 if CFG["PEEL"] else 10}')
    p(f's_cbranch_scc1 L_loop_{tag}')
    if CFG['PEEL']:
        step(0)
        step(1, last=True)
    lg.drain()


def check_loop_waits():
    pass


def tlb_touch(p, tag):
    if not CFG['TT']:
        return
    p(f's_cmp_eq_u32 s{S_WAVE}, 1')
    p(f's_cbranch_scc0 L_tt1{tag}')
    for i in range(7):
        p(f's_mov_b32 s70, {i << 21}')
        p(f's_load_dword s{71+i}, s[{S_WS}:{S_WS+1}], s70')
    p.label(f'L_tt1{tag}')
    p(f's_cmp_eq_u32 s{S_WAVE}, 2')
    p(f's_cbranch_scc0 L_tt2{tag}')
    p(f's_load_dword s71, s[{S_WO}:{S_WO+1}], 0')
    p(f's_load_dword s72, s[{S_W2}:{S_W2+1}], 0')
    p(f's_mov_b32 s70, {(1 << 21) + 4096}')
    p(f's_load_dword s73, s[{S_W2}:{S_W2+1}], s70')
    p(f's_load_dword s74, s[{S_GW}:{S_GW+1}], 0')
    p(f's_load_dword s75, s[{S_B2}:{S_B2+1}], 0')
    p('s_load_dword s76, s[100:101], 0')
    p('s_load_dword s77, s[100:101], s70')
    p.label(f'L_tt2{tag}')
    if CFG['TL']:
        p(f's_cmp_eq_u32 s{S_WAVE}, 3')
        p(f's_cbranch_scc0 L_tt3{tag}')
        for i in range(1, 10):
            p(f's_load_dword s{70+(i%8)}, s[{S_B2}:{S_B2+1}], {128*i}')
        for i in range(1, 10):
            p(f's_load_dword s{70+(i%8)}, s[{S_GW}:{S_GW+1}], {128*i}')
        p.label(f'L_tt3{tag}')


def prefetch_setup(p, attn):
    rowstride = 3840 if attn else 3456
    p(f's_lshl_b32 s57, s{S_WAVE}, 6')
    p('v_add_u32 v9, s57, v2')
    p(f's_and_b32 s57, s{S_RB}, 7')
    p('s_lshl_b32 s57, s57, 3')
    p('s_add_u32 s57, s57, 128')
    p(f's_mov_b32 s58, {rowstride}')
    if attn:
        p(f's_mul_i32 s59, s{S_CG}, 160')
        p('s_andn2_b32 s59, s59, 127')
        for rnd in range(2):
            p(f'v_add_u32 v3, {256*rnd}, v9')
            p('v_min_u32 v3, 383, v3')
            p('v_mul_u32_u24 v4, 1366, v3')
            p('v_lshrrev_b32 v4, 16, v4')
            p('v_mul_u32_u24 v5, 48, v4')
            p('v_sub_u32 v5, v3, v5')
            p('v_mul_u32_u24 v6, 43, v5')
            p('v_lshrrev_b32 v6, 8, v6')
            p('v_mul_u32_u24 v7, 6, v6')
            p('v_sub_u32 v7, v5, v7')
            p('v_lshl_add_u32 v4, v4, 6, v6')
            p('v_add_u32 v4, s57, v4')
            p('v_mul_u32_u24 v4, s58, v4')
            p('v_lshrrev_b32 v5, 1, v7')
            p('v_mul_u32_u24 v5, 1280, v5')
            p('v_and_b32 v7, 1, v7')
            p('v_lshl_add_u32 v5, v7, 7, v5')
            p(f'v_add3_u32 v{249+rnd}, v4, v5, s59')
    else:
        p(f's_mul_i32 s59, s{S_CG}, 448')
        p('s_andn2_b32 s59, s59, 127')
        p('v_lshrrev_b32 v4, 5, v9')
        p('v_bfe_u32 v6, v9, 2, 3')
        p('v_lshl_add_u32 v4, v4, 6, v6')
        p('v_add_u32 v4, s57, v4')
        p('v_mul_u32_u24 v4, s58, v4')
        p('v_and_b32 v7, 3, v9')
        p('v_lshlrev_b32 v7, 7, v7')
        p('v_add3_u32 v249, v4, v7, s59')
    p(f's_and_b32 s57, s{S_CG}, 1')
    p(f's_lshl_b32 s58, s{S_TYPE}, 1')
    p('s_add_u32 s57, s57, s58')
    p('s_lshl_b32 s57, s57, 5')
    p(f's_lshl_b32 s58, s{S_RB}, 7')
    p('s_add_u32 s57, s57, s58')
    p('v_and_b32 v4, 31, v9')
    p('v_add_u32 v4, s57, v4')
    p('v_mul_u32_u24 v4, 1280, v4')
    p('v_lshrrev_b32 v5, 5, v9')
    p('v_lshlrev_b32 v5, 7, v5')
    p('v_add3_u32 v251, v4, v5, 256' .replace(', 256', ', s99'))


def prefetch_issue(p, attn):
    if not CFG['PF']:
        return
    p(f'buffer_load_dword v255, v251, s[{SRD_X}:{SRD_X+3}], 0 offen {CFG["PFF"]}')
    p(f'buffer_load_dword v255, v249, s[{SRD_W}:{SRD_W+3}], 0 offen {CFG["PFF"]}')
    if attn:
        p(f'buffer_load_dword v255, v250, s[{SRD_W}:{SRD_W+3}], 0 offen {CFG["PFF"]}')


def attn_prologue(p):
    p(f's_and_b32 s55, s{S_WAVE}, 1')
    p(f's_lshr_b32 s56, s{S_WAVE}, 1')
    p('v_and_b32 v3, 15, v2')
    p('v_lshrrev_b32 v4, 4, v2')
    p('v_lshrrev_b32 v5, 1, v3')
    p('v_xor_b32 v5, v5, v4')
    p('v_lshlrev_b32 v5, 4, v5')
    p('v_lshl_add_u32 v5, v3, 7, v5')
    if CFG['M35']:
        p(f'v_mov_b32 v{V_X0}, v5')
    else:
        p('s_lshl_b32 s57, s56, 13')
        p(f'v_add_u32 v{V_X0}, s57, v5')
    p(f'v_xor_b32 v{V_X1}, 64, v{V_X0}')
    p('v_lshrrev_b32 v5, 5, v2')
    p('v_lshlrev_b32 v5, 4, v5')
    p('v_bfe_u32 v6, v2, 4, 1')
    p('v_lshl_add_u32 v5, v6, 2, v5')
    p('v_bfe_u32 v6, v2, 2, 2')
    p('v_add_u32 v5, v5, v6')
    p(f'v_mul_u32_u24 v5, {WROW}, v5')
    p('s_mul_i32 s57, s55, 80')
    p(f's_add_u32 s57, s57, {XREG}')
    p('v_add_u32 v5, s57, v5')
    p('v_and_b32 v6, 3, v2')
    p(f'v_lshl_add_u32 v{V_W}, v6, 3, v5')
    p('v_and_b32 v7, 1, v6')
    p('v_mul_u32_u24 v7, 40, v7')
    p('v_add_u32 v7, v7, v5')
    p('v_lshrrev_b32 v6, 1, v6')
    p('v_mul_u32_u24 v6, 160, v6')
    p(f'v_add3_u32 v{V_WA}, v7, v6, 32')
    p(f'v_add_u32 v{V_WB}, 352, v7')
    p('v_lshlrev_b32 v5, 2, v4')
    p('v_sub_u32 v5, v3, v5')
    p(f's_mov_b32 s58, {hexf(-1e30)}')
    p('v_mov_b32 v8, s58')
    p(f's_or_b32 s59, s{S_RB}, s56')
    p('s_cmp_eq_u32 s59, 0')
    p('s_cselect_b64 s[60:61], -1, 0')
    for r in range(4):
        p(f'v_subrev_u32 v6, {r}, v5')
        p('v_and_b32 v7, 1, v6')
        p('v_cmp_eq_u32 s[62:63], 0, v7')
        p('v_cmp_ge_i32 s[64:65], v6, 0')
        p('s_and_b64 s[66:67], s[62:63], s[64:65]')
        p('s_andn2_b64 s[68:69], s[62:63], s[64:65]')
        p(f'v_cndmask_b32 v{V_BCUR+r}, v8, 0, s[66:67]')
        p(f'v_cndmask_b32 v{V_BPREV+r}, v8, 0, s[68:69]')
        p(f'v_cndmask_b32 v{V_BFIRST+r}, v{V_BPREV+r}, v8, s[60:61]')
    p('v_and_b32 v7, 1, v3')
    p('v_cmp_eq_u32 s[62:63], 0, v7')
    for k, (lo, hi) in enumerate([(0x0c0c0100, 0x01000c0c), (0x0c0c0302, 0x03020c0c)]):
        p(f'v_mov_b32 v6, {hex(hi)}')
        p(f'v_mov_b32 v9, {hex(lo)}')
        p('v_cndmask_b32 v9, v6, v9, s[62:63]')
        p('v_sub_u32 v6, v5, v7')
        if k:
            p('v_subrev_u32 v6, 2, v6')
        p('v_cmp_ge_i32 s[64:65], v6, 0')
        p('v_mov_b32 v6, 0x0c0c0c0c')
        p(f'v_cndmask_b32 v{V_SEL+k}, v9, v6, s[64:65]')
        p(f'v_cndmask_b32 v{V_SEL+2+k}, v6, v9, s[64:65]')
    p('v_lshlrev_b32 v248, 4, v2')
    if CFG['M35']:
        p('s_lshl_b32 s57, s55, 13')
        p(f's_add_u32 s57, s57, {2*SLOT}')
        p('v_add_u32 v249, s57, v248')
        p('v_lshrrev_b32 v250, 1, v248')
        p('v_add_u32 v250, s57, v250')
        p('s_lshl_b32 s57, s55, 3')
        p(f's_add_u32 s57, s57, {XFLAG}')
        p('v_mov_b32 v251, s57')
        p('v_mov_b32 v252, 0')
        p('v_mov_b32 v253, 0')
        p('ds_write_b64 v251, v[252:253]')
    for r in range(152):
        p(f'v_mov_b32 v{r}, 0')


def attn_epilogue(p, th=None):
    cvt = lambda d, a: p(f'v_cvt_pk_bf16_f32 v{d}, v{a}, v{a+1}')
    tg = '' if th is None else str(th)
    kk = list(range(5)) if th in (None, 0) else [1, 2, 3, 4]
    vk = list(range(5)) if th in (None, 1) else [1, 2, 3, 4]
    p('s_nop 7')

    def pack_k(kts):
        if CFG['PEEL']:
            return
        for kt in kts:
            for h in range(2):
                b = A_KM(h, kt)
                cvt(b, b)
                cvt(b + 1, b + 2)
            t = A_QKT(kt)
            cvt(t, t)
            cvt(t + 1, t + 2)
        for kt in kts:
            t, k0 = A_QKT(kt), A_KM(0, kt)
            p(f'v_mov_b32 v{k0+2}, v{t}')
            p(f'v_mov_b32 v{k0+3}, v{t+1}')

    def tails_k(kts):
        for kt in kts:
            t, k0 = A_QKT(kt), A_KM(0, kt)
            p(f'v_permlane32_swap_b32 v{t}, v{k0+2}')
            p(f'v_permlane32_swap_b32 v{t+1}, v{k0+3}')

    def copy_k(kts):
        for kt in kts:
            k0, k1 = A_KM(0, kt), A_KM(1, kt)
            p(f'v_mov_b32 v{k1+2}, v{k0+2}')
            p(f'v_mov_b32 v{k1+3}, v{k0+3}')

    def pack_v():
        for kt in vk:
            for base, b in ((A_VM(0, 0), A_VM(0, kt)), (A_VM(1, 0), A_VM(1, kt)), (A_VT(0), A_VT(kt))):
                cvt(base + 2 * kt, b)
                cvt(base + 2 * kt + 1, b + 2)

    vbases = (A_VM(0, 0), A_VM(1, 0), A_VT(0))
    if th == 0:
        pack_k([4])
        pack_v()
        tails_k([4])
        rest = [0, 1, 2, 3]
        pack_k(rest[:1])
        copy_k([4])
        p(f'ds_write_b128 v249, v[{A_KM(0,4)}:{A_KM(0,4)+3}]')
        p(f'ds_write_b128 v249, v[{A_KM(1,4)}:{A_KM(1,4)+3}] offset:1024')
        for i, vb in enumerate(vbases):
            p(f'ds_write_b64 v250, v[{vb+8}:{vb+9}] offset:{2048 + 512*i}')
        pack_k(rest[1:])
        p('s_waitcnt lgkmcnt(0)')
        p('v_mov_b32 v252, 1')
        p('ds_write_b32 v251, v252')
        tails_k(rest)
    elif th == 1:
        pack_v()
        for i, vb in enumerate(vbases):
            p(f'ds_write_b64 v250, v[{vb}:{vb+1}] offset:{4096 + 512*i}')
        rest = [1, 2, 3, 4]
        pack_k(rest)
        p('s_waitcnt lgkmcnt(0)')
        p('v_mov_b32 v252, 1')
        p('ds_write_b32 v251, v252 offset:4')
        tails_k(rest)
    else:
        rest = [0, 1, 2, 3, 4]
        pack_k(rest)
        pack_v()
        tails_k(rest)
    for h in range(2):
        for t in range(4):
            b = A_QM(h, t)
            if not CFG['PEEL']:
                cvt(b, b)
                cvt(b + 1, b + 2)
    copy_k(rest)
    p('s_mov_b32 s60, 0x0000ffff')
    p('s_mov_b32 s61, 0')
    p('s_mov_b32 s62, 0xffff0000')
    p('s_mov_b32 s63, 0')
    for t in range(4):
        for h in range(2):
            q, x = A_QM(h, t), A_QKT(t + 1)
            p(f'v_cndmask_b32 v{q+2}, 0, v{x}, s[{60+2*h}:{61+2*h}]')
            p(f'v_cndmask_b32 v{q+3}, 0, v{x+1}, s[{60+2*h}:{61+2*h}]')
    S = lambda t, h: 152 + (t * 2 + h) * 8

    def qk(t):
        for h in range(2):
            q = A_QM(h, t)
            bp = V_BFIRST if t == 0 else V_BPREV
            kp, kc = A_KM(h, t), A_KM(h, t + 1)
            p(f'v_mfma_f32_16x16x32_bf16 v[{S(t,h)}:{S(t,h)+3}], v[{kp}:{kp+3}], v[{q}:{q+3}], v[{bp}:{bp+3}]')
            p(f'v_mfma_f32_16x16x32_bf16 v[{S(t,h)+4}:{S(t,h)+7}], v[{kc}:{kc+3}], v[{q}:{q+3}], v[{V_BCUR}:{V_BCUR+3}]')

    for t in (3, 2, 1):
        qk(t)
    if CFG['PROF'] == 6:
        p('s_memtime s[72:73]')
    if th is not None:
        p.label(f'L_xspin{th}')
        p(f'ds_read_b32 v252, v251 offset:{4 if th == 0 else 0}')
        p('s_waitcnt lgkmcnt(0)')
        p('v_readfirstlane_b32 s70, v252')
        p('s_cmp_eq_u32 s70, 0')
        p(f's_cbranch_scc1 L_xspin{th}')
        if th == 1:
            p(f'ds_read_b128 v[{A_KM(0,0)}:{A_KM(0,0)+3}], v249')
            p(f'ds_read_b128 v[{A_KM(1,0)}:{A_KM(1,0)+3}], v249 offset:1024')
        for i, vb in enumerate(vbases):
            p(f'ds_read_b64 v[{vb}:{vb+1}], v250 offset:{(2048 if th == 1 else 4096) + 512*i}')
        p('s_waitcnt lgkmcnt(0)')
    qk(0)
    if CFG['PROF'] == 6:
        p('s_memtime s[74:75]')
    cs = (20 ** -0.5) * math.log2(math.e)
    p(f's_mov_b32 s64, {hexf(cs)}')
    p(f's_mov_b32 s65, {hexf(cs)}')
    inst = [(t, h) for t in (3, 2, 1, 0) for h in range(2)]
    for (t, h) in inst:
        s = S(t, h)
        p(f'v_max3_f32 v{s}, v{s}, v{s+1}, v{s+4}')
        p(f'v_max3_f32 v{s+2}, v{s+2}, v{s+3}, v{s+6}')
    for (t, h) in inst:
        s = S(t, h)
        p(f'v_max_f32 v{s}, v{s}, v{s+5}')
        p(f'v_max_f32 v{s+1}, v{s+2}, v{s+7}')
    for (t, h) in inst:
        s = S(t, h)
        p(f'v_max_f32 v{s+2}, v{s}, v{s+1}')

    def cross(groups, op, mid):
        for (A, B, C, D) in groups:
            p(f'v_permlane32_swap_b32 v{A}, v{B}')
            p(f'v_permlane32_swap_b32 v{C}, v{D}')
        for (A, B, C, D) in groups:
            p(f'{op} v{A}, v{A}, v{B}')
            p(f'{op} v{C}, v{C}, v{D}')
        for (A, B, C, D) in groups:
            p(f'v_permlane16_swap_b32 v{A}, v{C}')
        for (A, B, C, D) in groups:
            p(f'{op} v{A}, v{A}, v{C}')
        for (A, B, C, D) in groups:
            mid(A)
        for (A, B, C, D) in groups:
            p(f'v_mov_b32 v{C}, v{A}')
        for (A, B, C, D) in groups:
            p(f'v_permlane16_swap_b32 v{A}, v{C}')
        for (A, B, C, D) in groups:
            p(f'v_mov_b32 v{B}, v{A}')
            p(f'v_mov_b32 v{D}, v{C}')
        for (A, B, C, D) in groups:
            p(f'v_permlane32_swap_b32 v{A}, v{B}')
            p(f'v_permlane32_swap_b32 v{C}, v{D}')

    grp = lambda o: [tuple(S(t, h) + o for (t, h) in inst[0:4]), tuple(S(t, h) + o for (t, h) in inst[4:8])]
    cross(grp(2), 'v_max_f32', lambda A: p(f'v_mul_f32 v{A}, s64, v{A}'))
    for (t, h) in inst:
        s = S(t, h)
        p(f'v_pk_fma_f32 v[{s}:{s+1}], v[{s}:{s+1}], s[64:65], v[{s+2}:{s+3}] op_sel_hi:[1,1,0] neg_lo:[0,0,1] neg_hi:[0,0,1]')
    for (t, h) in inst:
        s = S(t, h)
        p(f'v_exp_f32 v{s}, v{s}')
        p(f'v_exp_f32 v{s+1}, v{s+1}')
    for (t, h) in inst:
        s = S(t, h)
        p(f'v_add_f32 v{s+2}, v{s}, v{s+1}')
    cross(grp(2), 'v_add_f32', lambda A: p(f'v_rcp_f32 v{A}, v{A}'))
    for (t, h) in inst:
        s = S(t, h)
        p(f'v_pk_mul_f32 v[{s}:{s+1}], v[{s}:{s+1}], v[{s+2}:{s+3}] op_sel_hi:[1,0]')
    for (t, h) in inst:
        s = S(t, h)
        p(f'v_cvt_pk_bf16_f32 v{s+2}, v{s}, v{s+1}')
    if CFG['PROF'] == 6:
        p('s_memtime s[76:77]')

    def perm(i):
        s = S(*inst[i])
        for k in range(4):
            p(f'v_perm_b32 v{s+4+k}, v{s+2}, v{s+2}, v{V_SEL+k}')

    def pv(i):
        t, h = inst[i]
        s = S(t, h)
        va, vt = A_VM(h, 0) + 2 * t, A_VT(0) + 2 * t
        om, ot = A_QM(h, t), A_KM(h, t)
        p(f'v_mfma_f32_16x16x32_bf16 v[{om}:{om+3}], v[{va}:{va+3}], v[{s+4}:{s+7}], 0')
        p(f'v_mfma_f32_16x16x32_bf16 v[{ot}:{ot+3}], v[{vt}:{vt+3}], v[{s+4}:{s+7}], 0')

    def pack_main(t):
        for h in range(2):
            o = A_QM(h, t)
            d = S(t, 0) + 2 * h
            p(f'v_cvt_pk_bf16_f32 v{d}, v{o}, v{o+1}')
            p(f'v_cvt_pk_bf16_f32 v{d+1}, v{o+2}, v{o+3}')
        d = S(t, 0)
        p(f's_add_u32 s68, s66, {t*20480}')
        p(f'buffer_store_dwordx4 v[{d}:{d+3}], v248, s[{SRD_WS}:{SRD_WS+3}], s68 offen {CFG["STFO"]}')

    def pack_tail(t):
        d = S(t & 2, 1) + 2 * (t & 1)
        o0, o1 = A_KM(0, t), A_KM(1, t)
        for rr in range(4):
            p(f'v_cndmask_b32 v{o0+rr}, v{o0+rr}, v{o1+rr}, s[62:63]')
        p(f'v_cvt_pk_bf16_f32 v{d}, v{o0}, v{o0+1}')
        p(f'v_cvt_pk_bf16_f32 v{d+1}, v{o0+2}, v{o0+3}')

    perm(0)
    perm(1)
    for i in range(8):
        pv(i)
        if i + 2 < 8:
            perm(i + 2)
        if i in (5, 7):
            pass
    for t in (3, 2):
        pack_main(t)
    for t in (3, 2):
        pack_tail(t)
    pack_main(1)
    pack_tail(1)
    pack_main(0)
    pack_tail(0)
    p('s_mov_b32 exec_hi, 0')
    for pr in range(2):
        d = S(2 * pr, 1)
        p(f's_add_u32 s68, s67, {pr*20480}')
        p(f'buffer_store_dwordx4 v[{d}:{d+3}], v248, s[{SRD_WS}:{SRD_WS+3}], s68 offen {CFG["STFO"]}')
    p('s_mov_b32 exec_hi, -1')


def attn_out_addr(p):
    p(f's_lshl_b32 s65, s{S_RB}, 3')
    p('s_lshl_b32 s66, s56, 2')
    p('s_add_u32 s65, s65, s66')
    p('s_mul_i32 s66, s65, 20')
    p(f's_lshl_b32 s67, s{S_CG}, 1')
    p('s_add_u32 s67, s67, s55')
    p('s_add_u32 s66, s66, s67')
    p('s_lshl_b32 s66, s66, 10')
    p(f's_add_u32 s66, s66, {OA_OFF}')
    p(f's_and_b32 s67, s{S_CG}, 1')
    p('s_lshl_b32 s67, s67, 1')
    p('s_add_u32 s67, s67, s65')
    p('s_mul_i32 s67, s67, 20')
    p(f's_lshr_b32 s68, s{S_CG}, 1')
    p('s_add_u32 s67, s67, s68')
    p('s_add_u32 s67, s67, 16')
    p('s_lshl_b32 s67, s67, 10')
    p('s_lshl_b32 s68, s55, 9')
    p('s_add_u32 s67, s67, s68')
    p(f's_add_u32 s67, s67, {OA_OFF}')


def ffn_prologue(p):
    p(f's_and_b32 s55, s{S_WAVE}, 1')
    p(f's_lshr_b32 s56, s{S_WAVE}, 1')
    p('v_and_b32 v3, 15, v2')
    p('v_lshrrev_b32 v4, 4, v2')
    p('v_lshrrev_b32 v5, 1, v3')
    p('v_xor_b32 v5, v5, v4')
    p('v_lshlrev_b32 v5, 4, v5')
    p('v_lshl_add_u32 v5, v3, 7, v5')
    p('s_lshl_b32 s57, s56, 13')
    p(f'v_add_u32 v{V_X0}, s57, v5')
    p(f'v_xor_b32 v{V_X1}, 64, v{V_X0}')
    p('v_lshrrev_b32 v5, 5, v2')
    p('v_lshlrev_b32 v5, 4, v5')
    p('v_bfe_u32 v6, v2, 4, 1')
    p('v_lshl_add_u32 v5, v6, 2, v5')
    p('v_bfe_u32 v6, v2, 2, 2')
    p('v_add_u32 v5, v5, v6')
    p(f'v_mul_u32_u24 v5, {WROW}, v5')
    p(f'v_add_u32 v5, {XREG}, v5')
    p('v_and_b32 v6, 3, v2')
    p('v_lshl_add_u32 v5, v6, 3, v5')
    p('s_lshl_b32 s57, s55, 8')
    p(f'v_add_u32 v{V_W}, s57, v5')
    p('s_lshl_b32 s57, s55, 5')
    p('s_add_u32 s57, s57, 192')
    p(f'v_add_u32 v{V_WA}, s57, v5')
    p(f's_mul_i32 s57, s{S_CG}, 448')
    p('v_lshlrev_b32 v5, 3, v4')
    p('v_add_u32 v5, s57, v5')
    p('s_lshl_b32 s57, s55, 8')
    p('v_add_u32 v6, s57, v5')
    p('s_lshl_b32 s57, s55, 5')
    p('s_add_u32 s57, s57, 192')
    p('v_add_u32 v7, s57, v5')
    p('v_lshlrev_b32 v248, 4, v2')
    p('s_waitcnt lgkmcnt(0)')
    srd(p, SRD_A, S_B1, 3456)
    for f in range(7):
        if f < 6:
            p(f'buffer_load_dwordx2 v[{200+2*f}:{201+2*f}], v6, s[{SRD_A}:{SRD_A+3}], 0 offen offset:{32*f}')
        else:
            p(f'buffer_load_dwordx2 v[{200+2*f}:{201+2*f}], v7, s[{SRD_A}:{SRD_A+3}], 0 offen')
    tlb_touch(p, 'F')
    p('s_mov_b32 s58, 0xffff0000')
    p('s_waitcnt vmcnt(0)')
    for f in range(7):
        for t in range(4):
            a = F_ACC(f, t)
            p(f'v_lshlrev_b32 v{a}, 16, v{200+2*f}')
            p(f'v_and_b32 v{a+1}, s58, v{200+2*f}')
            p(f'v_lshlrev_b32 v{a+2}, 16, v{201+2*f}')
            p(f'v_and_b32 v{a+3}, s58, v{201+2*f}')


def ffn_epilogue(p):
    k1 = -2.0 * math.sqrt(2.0 / math.pi) * math.log2(math.e)
    k2 = k1 * 0.044715
    C1, C2, ONE = 240, 242, 244
    for r in (0, 1):
        p(f'v_mov_b32 v{C1+r}, {hexf(k1)}')
        p(f'v_mov_b32 v{C2+r}, {hexf(k2)}')
        p(f'v_mov_b32 v{ONE+r}, 1.0')
    p('s_nop 5')
    p(f's_lshl_b32 s65, s{S_RB}, 3')
    p('s_lshl_b32 s66, s56, 2')
    p('s_add_u32 s65, s65, s66')
    p('s_mul_i32 s65, s65, 54')
    p(f's_mul_i32 s66, s{S_CG}, 7')
    p('s_add_u32 s67, s66, 3')
    p('s_lshl_b32 s68, s55, 2')
    p('s_add_u32 s66, s66, s68')
    p('s_add_u32 s69, s65, s67')
    p('s_lshl_b32 s69, s69, 10')
    p('s_lshl_b32 s68, s55, 3')
    p('s_add_u32 s69, s69, s68')
    p('s_add_u32 s68, s65, s66')
    p('s_lshl_b32 s68, s68, 10')

    def gelu(regs, tmp):
        for i, x in enumerate(regs):
            p(f'v_pk_mul_f32 v[{tmp+4*i}:{tmp+4*i+1}], v[{x}:{x+1}], v[{x}:{x+1}]')
        for i, x in enumerate(regs):
            p(f'v_pk_fma_f32 v[{tmp+4*i}:{tmp+4*i+1}], v[{tmp+4*i}:{tmp+4*i+1}], v[{C2}:{C2+1}], v[{C1}:{C1+1}]')
        for i, x in enumerate(regs):
            p(f'v_pk_mul_f32 v[{tmp+4*i}:{tmp+4*i+1}], v[{tmp+4*i}:{tmp+4*i+1}], v[{x}:{x+1}]')
        for i, x in enumerate(regs):
            p(f'v_exp_f32 v{tmp+4*i}, v{tmp+4*i}')
            p(f'v_exp_f32 v{tmp+4*i+1}, v{tmp+4*i+1}')
        for i, x in enumerate(regs):
            p(f'v_pk_add_f32 v[{tmp+4*i}:{tmp+4*i+1}], v[{tmp+4*i}:{tmp+4*i+1}], v[{ONE}:{ONE+1}]')
        for i, x in enumerate(regs):
            p(f'v_rcp_f32 v{tmp+4*i}, v{tmp+4*i}')
            p(f'v_rcp_f32 v{tmp+4*i+1}, v{tmp+4*i+1}')
        for i, x in enumerate(regs):
            p(f'v_pk_mul_f32 v[{x}:{x+1}], v[{tmp+4*i}:{tmp+4*i+1}], v[{x}:{x+1}]')

    OUT = 184
    n = 0
    for pr in range(3):
        p(f's_add_u32 s70, s66, {pr}')
        p('s_cmp_ge_u32 s70, 54')
        p(f's_cbranch_scc1 L_skip_pair{pr}')
        for t in range(4):
            a, b = F_ACC(2 * pr, t), F_ACC(2 * pr + 1, t)
            gelu([a, a + 2, b, b + 2], 152)
            o = OUT + 4 * (n % 4)
            n += 1
            p(f'v_cvt_pk_bf16_f32 v{o}, v{a}, v{a+1}')
            p(f'v_cvt_pk_bf16_f32 v{o+1}, v{a+2}, v{a+3}')
            p(f'v_cvt_pk_bf16_f32 v{o+2}, v{b}, v{b+1}')
            p(f'v_cvt_pk_bf16_f32 v{o+3}, v{b+2}, v{b+3}')
            p(f's_add_u32 s70, s68, {pr*1024 + t*54*1024}')
            p(f'buffer_store_dwordx4 v[{o}:{o+3}], v248, s[{SRD_WS}:{SRD_WS+3}], s70 offen {CFG["STFH"]}')
        p.label(f'L_skip_pair{pr}')
    for t2 in range(2):
        a, b = F_ACC(6, 2 * t2), F_ACC(6, 2 * t2 + 1)
        gelu([a, a + 2, b, b + 2], 152)
        for u, x in enumerate((a, b)):
            o = OUT + 16 + 2 * ((2 * t2 + u) % 2)
            p(f'v_cvt_pk_bf16_f32 v{o}, v{x}, v{x+1}')
            p(f'v_cvt_pk_bf16_f32 v{o+1}, v{x+2}, v{x+3}')
            p(f's_add_u32 s70, s69, {(2*t2+u)*54*1024}')
            p(f'buffer_store_dwordx2 v[{o}:{o+1}], v248, s[{SRD_WS}:{SRD_WS+3}], s70 offen {CFG["STFH"]}')


S_NONCE = 98


def nonce_make(p):
    p('s_cmp_eq_u32 s2, 0')
    p('s_cbranch_scc0 L_nonce_skip')
    p(f's_cmp_eq_u32 s{S_WAVE}, 1')
    p('s_cbranch_scc0 L_nonce_skip')
    p(f'v_add_u32 v152, {FLG_OFF}, v248')
    for i in range(4):
        p(f'buffer_load_dwordx4 v[{156+4*i}:{159+4*i}], v152, s[{SRD_WS}:{SRD_WS+3}], 0 offen offset:{1024*i} sc1')
    p('s_waitcnt vmcnt(0)')
    for i in range(16):
        p(f'v_add_u32 v{156+i}, 1, v{156+i}')
    for st in (8, 4, 2, 1):
        for i in range(st):
            p(f'v_max_u32 v{156+i}, v{156+i}, v{156+i+st}')
    for sh in (8, 4, 2, 1):
        p(f'v_max_u32_dpp v156, v156, v156 row_ror:{sh} row_mask:0xf bank_mask:0xf')
    p('v_mov_b32 v157, v156')
    p('v_permlane16_swap_b32 v156, v157')
    p('v_max_u32 v156, v156, v157')
    p('v_mov_b32 v157, v156')
    p('v_permlane32_swap_b32 v156, v157')
    p('v_max_u32 v156, v156, v157')
    p('v_max_u32 v156, 1, v156')
    p('v_mov_b32 v157, 0')
    p('global_store_dword v157, v156, s[100:101] sc1')
    p.label('L_nonce_skip')


def nonce_load(p, vz, vd):
    p(f'v_mov_b32 v{vz}, 0')
    p(f'global_load_dword v{vd}, v{vz}, s[100:101] sc1')


def nonce_get(p, vz, vd, tag):
    p('s_mov_b32 s99, 0')
    p.label(f'L_nonce_{tag}')
    p(f'v_readfirstlane_b32 s{S_NONCE}, v{vd}')
    p('s_add_u32 s99, s99, 1')
    p('s_cmp_ge_u32 s99, 400000')
    p(f's_cbranch_scc1 L_nonce_ok_{tag}')
    p(f's_cmp_lg_u32 s{S_NONCE}, 0')
    p(f's_cbranch_scc1 L_nonce_ok_{tag}')
    p(f'global_load_dword v{vd}, v{vz}, s[100:101] sc1')
    p('s_waitcnt vmcnt(0)')
    p(f's_branch L_nonce_{tag}')
    p.label(f'L_nonce_ok_{tag}')


def phase_end(p):
    p.label('L_phase_end')
    p('s_load_dwordx2 s[4:5], s[0:1], 88')
    p('s_load_dwordx2 s[6:7], s[0:1], 72')
    p('s_load_dwordx2 s[8:9], s[0:1], 56')
    p('s_waitcnt vmcnt(0)')
    nonce_get(p, 253, 254, 'c')
    p('s_barrier')
    p(f's_cmp_eq_u32 s{S_WAVE}, 0')
    p('s_cbranch_scc0 L_noflag')
    p(f's_lshl_b32 s52, s{S_RB}, 4')
    p(f's_lshl_b32 s53, s{S_TYPE}, 3')
    p('s_add_u32 s52, s52, s53')
    p(f's_add_u32 s52, s52, s{S_CG}')
    p('s_lshl_b32 s52, s52, 2')
    p(f's_add_u32 s52, s52, {FLG_OFF}')
    p('v_mov_b32 v252, s52')
    p(f'v_mov_b32 v251, s{S_NONCE}')
    p(f'buffer_store_dword v251, v252, s[{SRD_WS}:{SRD_WS+3}], 0 offen sc1')
    p.label('L_noflag')


def phase2_wait(p):
    p(f's_cmp_eq_u32 s{S_WAVE}, 0')
    p('s_cbranch_scc0 L_poll_done')
    p('s_lshr_b32 s62, s26, 1')
    p('s_lshl_b32 s62, s62, 6')
    p(f's_add_u32 s62, s62, {FLG_OFF}')
    p('s_mul_i32 s63, s27, 320')
    p(f's_add_u32 s63, s63, {FLG_OFF + 1024}')
    p('v_lshlrev_b32 v10, 2, v2')
    p('v_add_u32 v11, s62, v10')
    p('s_sub_u32 s36, s63, 64')
    p('v_add_u32 v12, s36, v10')
    p('v_cmp_gt_u32 vcc, 16, v2')
    p('v_cndmask_b32 v11, v12, v11, vcc')
    p('v_add_u32 v12, 48, v2')
    p('v_min_u32 v12, 73, v12')
    p('v_lshlrev_b32 v12, 2, v12')
    p('v_add_u32 v12, s63, v12')
    p('s_mov_b32 s36, 0')
    p.label('L_poll')
    p('buffer_load_dword v13, v11, s[12:15], 0 offen sc1')
    p('buffer_load_dword v14, v12, s[12:15], 0 offen sc1')
    p('s_add_u32 s36, s36, 1')
    p('s_waitcnt vmcnt(0)')
    p(f'v_cmp_eq_u32 s[38:39], s{S_NONCE}, v13')
    p(f'v_cmp_eq_u32 vcc, s{S_NONCE}, v14')
    p('s_and_b64 s[38:39], s[38:39], vcc')
    p('s_cmp_ge_u32 s36, 400000')
    p('s_cbranch_scc1 L_poll_done')
    p('s_cmp_eq_u64 s[38:39], -1')
    p('s_cbranch_scc0 L_poll')
    p.label('L_poll_done')


def gen_k1():
    p = Prog()
    p('s_cmp_ge_u32 s2, 256')
    p('s_cbranch_scc1 L_k1_end')
    p('s_load_dwordx4 s[4:7], s[0:1], 0')
    p('s_load_dwordx4 s[8:11], s[0:1], 16')
    p('s_load_dwordx4 s[12:15], s[0:1], 32')
    p('s_load_dwordx4 s[16:19], s[0:1], 48')
    p('s_load_dwordx2 s[20:21], s[0:1], 64')
    p('s_load_dwordx2 s[22:23], s[0:1], 88')
    if CFG['TT']:
        p('s_load_dwordx2 s[100:101], s[0:1], 72')
    if CFG['FUSE']:
        assert not CFG['TT']
        p('s_load_dwordx2 s[100:101], s[0:1], 80')
    if CFG['PROF']:
        p('s_memrealtime s[88:89]')
        p('s_memtime s[82:83]')
    p('v_lshrrev_b32 v1, 6, v0')
    p('v_and_b32 v2, 63, v0')
    p(f'v_readfirstlane_b32 s{S_WAVE}, v1')
    if CFG['SWAPW']:
        p(f's_add_u32 s{S_WAVE}, s{S_WAVE}, 4')
        p(f's_and_b32 s{S_WAVE}, s{S_WAVE}, 7')
    k1_decode(p)
    p(f's_cmp_eq_u32 s{S_WAVE}, 0')
    p('s_cbranch_scc0 L_nopf')
    p('v_mov_b32 v10, v2')
    code_prefetch(p, 'L_k1_body', 'L_k1_end', CFG.get('K1_BYTES', 20480), 10, 255, 84, 'k1')
    p.label('L_nopf')
    p.label('L_k1_body')
    p(f's_cmp_ge_u32 s{S_WAVE}, 4')
    p('s_cbranch_scc0 L_consumer')
    if CFG['LDFIRST'] == 1:
        p(f's_cmp_eq_u32 s{S_TYPE}, 0')
        p('s_cbranch_scc0 L_loader_F')
        k1_loader(p, True)
        k1_loader(p, False)
    elif CFG['LDFIRST'] == 2:
        p(f's_cmp_eq_u32 s{S_TYPE}, 0')
        p('s_cbranch_scc0 L_loader_F')
        k1_loader(p, True)
    else:
        p(f's_cmp_eq_u32 s{S_TYPE}, 0')
        p('s_cbranch_scc1 L_loader_A')
        p('s_branch L_loader_F')
    p.label('L_consumer')
    if CFG['PRIO']:
        p(f's_setprio {CFG["PRIO"]}')
    p(f's_cmp_eq_u32 s{S_TYPE}, 0')
    p('s_cbranch_scc0 L_cons_F')
    if CFG['PF']:
        p('s_movk_i32 s99, 256')
        prefetch_setup(p, True)
    p('s_waitcnt lgkmcnt(0)')
    tlb_touch(p, 'A')
    attn_prologue(p)
    attn_out_addr(p)
    if CFG['ZVT']:
        p('s_mov_b32 s68, 0x00ff00ff')
        p('s_mov_b32 s69, 0x00ff00ff')
    srd(p, SRD_WS, S_WS, WS_USED)
    srd(p, SRD_X, S_AX, 2048 * 1280)
    srd(p, SRD_W, S_WQKV, 640 * 3840)
    if CFG['FUSE']:
        nonce_make(p)
    p('s_waitcnt lgkmcnt(0)')
    stamp(p, 0)
    p('s_barrier')
    stamp(p, 1)
    prefetch_issue(p, True)
    if CFG['M35']:
        p('s_cmp_eq_u32 s56, 0')
        p('s_cbranch_scc0 L_attn_th1')
        for th in (0, 1):
            if th:
                p.label('L_attn_th1')
            consumer_loop(p, True, th)
            stamp(p, 2)
            if CFG['FUSE']:
                nonce_load(p, 253, 254)
            attn_epilogue(p, th)
            stamp(p, 3)
            if CFG['PROF']:
                prof_store(p, 4, 'CA', SRD_WS)
            p('s_branch L_phase_end' if CFG['FUSE'] else 's_endpgm')
    else:
        consumer_loop(p, True)
        stamp(p, 2)
        attn_epilogue(p)
        stamp(p, 3)
        if CFG['PROF']:
            prof_store(p, 4, 'CA', SRD_WS)
        p('s_endpgm')
    p.label('L_cons_F')
    if CFG['PF']:
        p('s_movk_i32 s99, 256')
        prefetch_setup(p, False)
    ffn_prologue(p)
    srd(p, SRD_WS, S_WS, WS_USED)
    srd(p, SRD_X, S_AX, 2048 * 1280)
    srd(p, SRD_W, S_W1, 640 * 3456)
    p('s_waitcnt lgkmcnt(0)')
    stamp(p, 0)
    p('s_barrier')
    stamp(p, 1)
    prefetch_issue(p, False)
    consumer_loop(p, False)
    stamp(p, 2)
    if CFG['FUSE']:
        nonce_load(p, 253, 254)
    ffn_epilogue(p)
    stamp(p, 3)
    if CFG['PROF']:
        prof_store(p, 4, 'CF', SRD_WS)
    p('s_branch L_phase_end' if CFG['FUSE'] else 's_endpgm')
    if not CFG['LDFIRST']:
        k1_loader(p, True)
        k1_loader(p, False)
    elif CFG['LDFIRST'] == 2:
        k1_loader(p, False)
    p.label('L_k1_end')
    p('s_endpgm')
    if CFG['FUSE']:
        phase_end(p)
        gen_k2(p)
    return p


K2_LAST = {}


def k2_small_loads(p, vg, vb, vb2):
    p(f'buffer_load_dwordx2 v[{K2_G}:{K2_G+1}], v{vg}, s[12:15], 0 offen {CFG["K2LDF"]}')
    p(f'buffer_load_dwordx4 v[{K2_B2}:{K2_B2+3}], v{vb}, s[16:19], 0 offen')
    p(f'buffer_load_dwordx4 v[{K2_B2+4}:{K2_B2+7}], v{vb}, s[16:19], 0 offen offset:64')
    p(f'buffer_load_dwordx2 v[{K2_B2+8}:{K2_B2+9}], v{vb2}, s[16:19], 0 offen offset:128')


def k2_stream(p, wave_a):
    NB = CFG['NBUF']
    tag = 'a' if wave_a else 'b'
    nsteps = 20 if wave_a else 18
    ACC = lambda t, f: K2_ACC + (t * 5 + f) * 4
    BA = lambda b, t: 36 * b + 4 * t
    BW = lambda b, f: 36 * b + 16 + 4 * f

    def ld_w(b, f):
        if f < 4:
            p(f'buffer_load_dwordx4 v[{BW(b,f)}:{BW(b,f)+3}], v{K2_VL}, s[12:15], s21 offen offset:{1024*f} {CFG["K2LDF"]}')
        else:
            p(f'buffer_load_dwordx4 v[{BW(b,f)}:{BW(b,f)+3}], v{K2_VL2}, s[12:15], s21 offen {CFG["K2LDF"]}')

    def ld_a(b, t):
        p(f'buffer_load_dwordx4 v[{BA(b,t)}:{BA(b,t)+3}], v{K2_VA+t}, s[12:15], s20 offen {CFG["K2LDF"]}')

    nrot = 16 if wave_a else 18
    state = {'n': 0}

    def adv():
        state['n'] += 1
        p('s_add_u32 s20, s20, 1024')
        p('s_add_u32 s21, s21, 5120')
        if not CFG['ROT2']:
            return
        if state['n'] < nrot:
            p('s_add_u32 s22, s22, 1')
            p(f's_cmp_eq_u32 s22, {nrot}')
            p(f's_cselect_b32 s23, {nrot*1024}, 0')
            p('s_sub_u32 s20, s20, s23')
            p('s_mul_i32 s23, s23, 5')
            p('s_sub_u32 s21, s21, s23')
        elif state['n'] == nrot and wave_a:
            p('s_mov_b32 s20, s34')
            p('s_mov_b32 s21, s35')

    for s in range(min(NB, nsteps)):
        for f in range(5):
            ld_w(s % NB, f)
        for t in range(4):
            ld_a(s % NB, t)
        adv()
    if CFG['GLATE']:
        k2_small_loads(p, 246, 247, 248)
    for r in range(80):
        p(f'v_mov_b32 v{K2_ACC+r}, 0')
    stamp(p, 1)
    for s in range(nsteps):
        b = s % NB
        issued = min(s + NB, nsteps)
        newer = (issued - s - 1) * 9
        if CFG['GLATE'] and s < NB:
            newer += 4
        p(f's_waitcnt vmcnt({newer})')
        more = s + NB < nsteps
        tail = wave_a and s >= 16
        amap = [0, 1, 2, 3]
        if tail:
            for (x, y) in ((0, 2), (1, 3)):
                p(f'v_swap_b32 v{BA(b,x)+2}, v{BA(b,y)}')
                p(f'v_swap_b32 v{BA(b,x)+3}, v{BA(b,y)+1}')
            amap = [0, 2, 1, 3]
        if CFG['K2RED'] == 2 and s == nsteps - 1:
            def last_step(w, b=b, amap=amap):
                p(f'v_add_u32 v220, {w*5120}, v{K2_VL}')
                p(f'v_add_u32 v221, {w*5120 + 40960}, v{K2_VL}')
                order = [t for t in range(4) if t != w] + [w]
                if w != 0:
                    order = [0] + [t for t in (1, 2, 3) if t != w] + [w]
                pend = []
                for k, t in enumerate(order):
                    for f in range(5):
                        acc = ACC(t, f)
                        p(f'v_mfma_f32_16x16x32_bf16 v[{acc}:{acc+3}], v[{BW(b,f)}:{BW(b,f)+3}], v[{BA(b,amap[t])}:{BA(b,amap[t])+3}], v[{acc}:{acc+3}]')
                        if pend and k >= 2:
                            p(pend.pop(0))
                    if t != w:
                        pend += [f'ds_write_b128 v{220 + (t >> 1)}, v[{ACC(t,f)}:{ACC(t,f)+3}] offset:{(t & 1)*20480 + f*1024}' for f in range(5)]
                for ins in pend:
                    p(ins)
            if wave_a:
                last_step(0)
            else:
                K2_LAST['b'] = last_step
            continue
        for f in range(5):
            for t in range(4):
                acc = ACC(t, f)
                if not CFG['K2NOMFMA']:
                    p(f'v_mfma_f32_16x16x32_bf16 v[{acc}:{acc+3}], v[{BW(b,f)}:{BW(b,f)+3}], v[{BA(b,amap[t])}:{BA(b,amap[t])+3}], v[{acc}:{acc+3}]')
            if more and CFG['K2ORD'] == 0:
                ld_w(b, f)
            if more and CFG['K2ORD'] == 2 and f >= 1:
                ld_w(b, f - 1)
        if more:
            if CFG['K2ORD'] == 1:
                for f in range(5):
                    ld_w(b, f)
            if CFG['K2ORD'] == 2:
                ld_w(b, 4)
            for t in range(4):
                ld_a(b, t)
            adv()
    if CFG['K2RED'] == 2:
        p('s_branch L_k2_red_a' if wave_a else 's_branch L_k2_red_b')
    else:
        p('s_branch L_k2_reduce')


K2_ACC = 144
K2_VL, K2_VL2, K2_VA = 224, 225, 226
K2_G, K2_B2 = 230, 232
K2_LDS = 4 * 4 * 5120 + 64


def k2_reduce2(p):
    assert CFG['NBUF'] == 3
    ACC = lambda t, f: K2_ACC + (t * 5 + f) * 4
    R1 = lambda f: 4 * f
    R2 = lambda f: 20 + 4 * f
    R3 = lambda j: 40 + 4 * j
    R4 = lambda j: 48 + 4 * j
    AR = lambda f: 56 + 4 * f
    B = lambda f: 188 + 4 * f
    GP, OP, O0 = 208, 210, 212
    FL, ONE, FA, WA, WB, RB = 214, 218, 219, 220, 221, 222
    O = 80
    FOFF = 81920

    def common(w):
        stamp(p, 2)
        p(f'v_add_u32 v{WA}, {w*5120}, v{K2_VL}')
        p(f'v_add_u32 v{WB}, {w*5120 + 40960}, v{K2_VL}')
        p(f'v_add_u32 v{RB}, {w*20480}, v{K2_VL}')
        p(f'v_mov_b32 v{FA}, {FOFF}')
        p(f'v_mov_b32 v{ONE}, 1')
        p('s_nop 7')

    def write_tiles(tiles):
        for t in tiles:
            for f in range(5):
                p(f'ds_write_b128 v{WA + (t >> 1)}, v[{ACC(t,f)}:{ACC(t,f)+3}] offset:{(t & 1)*20480 + f*1024}')

    def set_flag(i):
        p('s_waitcnt lgkmcnt(0)')
        p(f'ds_write_b32 v{FA}, v{ONE} offset:{4*i}')

    def spin(base, idxs, lbl):
        p.label(lbl)
        p(f'ds_read_b128 v[{FL}:{FL+3}], v{FA} offset:{base}')
        p('s_waitcnt lgkmcnt(0)')
        r = FL + idxs[0]
        for k in idxs[1:]:
            p(f'v_and_b32 v{FL+idxs[0]}, v{r}, v{FL+k}')
        p(f'v_readfirstlane_b32 s62, v{FL+idxs[0]}')
        p('s_cmp_eq_u32 s62, 0')
        p(f's_cbranch_scc1 {lbl}')

    def unpack():
        p('s_mov_b32 s63, 0xffff0000')
        for pr in range(2):
            for d in range(4):
                src = K2_B2 + 4 * pr + d
                f, r = 2 * pr + (d >> 1), 2 * (d & 1)
                p(f'v_lshlrev_b32 v{B(f)+r}, 16, v{src}')
                p(f'v_and_b32 v{B(f)+r+1}, s63, v{src}')
        for d in range(2):
            src = K2_B2 + 8 + d
            p(f'v_lshlrev_b32 v{B(4)+2*d}, 16, v{src}')
            p(f'v_and_b32 v{B(4)+2*d+1}, s63, v{src}')

    def pairs(lo_hi):
        for dst, src in lo_hi:
            p(f'v_mov_b32 v{dst}, v{src}')
            p(f'v_mov_b32 v{dst+1}, v{src}')

    def store(res):
        for pr in range(2):
            for u in range(2):
                a = res(2 * pr + u)
                p(f'v_cvt_pk_bf16_f32 v{O+4*pr+2*u}, v{a}, v{a+1}')
                p(f'v_cvt_pk_bf16_f32 v{O+4*pr+2*u+1}, v{a+2}, v{a+3}')
            p(f'buffer_store_dwordx4 v[{O+4*pr}:{O+4*pr+3}], v242, s[28:31], 0 offen offset:{64*pr} {CFG["OUTF"]}')
        a = res(4)
        p(f'v_cvt_pk_bf16_f32 v{O+8}, v{a}, v{a+1}')
        p(f'v_cvt_pk_bf16_f32 v{O+9}, v{a+2}, v{a+3}')
        p(f'buffer_store_dwordx2 v[{O+8}:{O+9}], v243, s[28:31], 0 offen offset:128 {CFG["OUTF"]}')

    def finish():
        stamp(p, 3)
        if CFG['PROF']:
            prof_store(p, 4, 'K2', 12)
        p('s_endpgm')

    p.label('L_k2_red_a')
    common(0)
    set_flag(0)
    pairs([(GP, K2_G)])
    spin(16, [1, 2, 3], 'L_k2_spin_a')
    for f in range(5):
        p(f'ds_read_b128 v[{R1(f)}:{R1(f)+3}], v{K2_VL} offset:{f*1024}')
    for f in range(5):
        p(f's_waitcnt lgkmcnt({4-f})')
        for r in (0, 2):
            a = ACC(0, f) + r
            p(f'v_pk_fma_f32 v[{a}:{a+1}], v[{a}:{a+1}], v[{GP}:{GP+1}], v[{R1(f)+r}:{R1(f)+r+1}]')
    store(lambda f: ACC(0, f))
    finish()
    p.label('L_k2_red_b')
    for w in (1, 2, 3):
        if w < 3:
            p(f's_cmp_eq_u32 s{S_WAVE}, {w}')
            p(f's_cbranch_scc0 L_k2_red_b{w+1}')
        K2_LAST['b'](w)
        common(w)
        set_flag(w)
        unpack()
        pairs([(GP, K2_G), (OP, K2_G + 1), (O0, 245)])
        o1, o2 = [x for x in (1, 2, 3) if x != w]
        spin(0, [o1, o2], f'L_k2_spin_b{w}')
        sub = {1: [0, 1], 2: [2, 3], 3: [4]}[w]
        for j, f in enumerate(sub):
            p(f'ds_read_b128 v[{R3(j)}:{R3(j)+3}], v{K2_VL} offset:{o1*5120 + f*1024}')
            p(f'ds_read_b128 v[{R4(j)}:{R4(j)+3}], v{K2_VL} offset:{o2*5120 + f*1024}')
        for f in range(5):
            p(f'ds_read_b128 v[{R1(f)}:{R1(f)+3}], v{RB} offset:{o1*5120 + f*1024}')
            p(f'ds_read_b128 v[{R2(f)}:{R2(f)+3}], v{RB} offset:{o2*5120 + f*1024}')
        p('s_waitcnt lgkmcnt(10)')
        for j, f in enumerate(sub):
            for r in (0, 2):
                a = ACC(0, f) + r
                p(f'v_pk_add_f32 v[{R3(j)+r}:{R3(j)+r+1}], v[{R3(j)+r}:{R3(j)+r+1}], v[{R4(j)+r}:{R4(j)+r+1}]')
                p(f'v_pk_add_f32 v[{a}:{a+1}], v[{a}:{a+1}], v[{B(f)+r}:{B(f)+r+1}]')
            for r in (0, 2):
                a = ACC(0, f) + r
                p(f'v_pk_add_f32 v[{a}:{a+1}], v[{a}:{a+1}], v[{R3(j)+r}:{R3(j)+r+1}]')
                p(f'v_pk_mul_f32 v[{a}:{a+1}], v[{a}:{a+1}], v[{O0}:{O0+1}]')
        for j, f in enumerate(sub):
            p(f'ds_write_b128 v{K2_VL}, v[{ACC(0,f)}:{ACC(0,f)+3}] offset:{f*1024}')
        set_flag(4 + w)
        for f in range(5):
            for r in (0, 2):
                a = ACC(w, f) + r
                p(f'v_pk_add_f32 v[{R1(f)+r}:{R1(f)+r+1}], v[{R1(f)+r}:{R1(f)+r+1}], v[{R2(f)+r}:{R2(f)+r+1}]')
                p(f'v_pk_add_f32 v[{a}:{a+1}], v[{a}:{a+1}], v[{B(f)+r}:{B(f)+r+1}]')
            for r in (0, 2):
                a = ACC(w, f) + r
                p(f'v_pk_add_f32 v[{a}:{a+1}], v[{a}:{a+1}], v[{R1(f)+r}:{R1(f)+r+1}]')
                p(f'v_pk_mul_f32 v[{a}:{a+1}], v[{a}:{a+1}], v[{OP}:{OP+1}]')
        spin(0, [0], f'L_k2_spin_c{w}')
        for f in range(5):
            p(f'ds_read_b128 v[{AR(f)}:{AR(f)+3}], v{RB} offset:{f*1024}')
        for f in range(5):
            p(f's_waitcnt lgkmcnt({4-f})')
            for r in (0, 2):
                a = ACC(w, f) + r
                p(f'v_pk_fma_f32 v[{a}:{a+1}], v[{AR(f)+r}:{AR(f)+r+1}], v[{GP}:{GP+1}], v[{a}:{a+1}]')
        store(lambda f: ACC(w, f))
        finish()
        if w < 3:
            p.label(f'L_k2_red_b{w+1}')


def gen_k2(pf=None):
    global K2_ACC
    NB = CFG['NBUF']
    assert NB * 36 + 80 <= 224
    K2_ACC = NB * 36
    fused = pf is not None
    p = pf if fused else Prog()
    if not fused:
        p('s_cmp_ge_u32 s2, 256')
        p('s_cbranch_scc1 L_k2_end')
        p('s_load_dwordx2 s[4:5], s[0:1], 88')
        p('s_load_dwordx2 s[6:7], s[0:1], 72')
        p('s_load_dwordx2 s[8:9], s[0:1], 56')
    if CFG['PROF']:
        p('s_memrealtime s[88:89]')
        p('s_memtime s[82:83]')
    if fused:
        p('v_mbcnt_lo_u32_b32 v2, -1, 0')
        p('v_mbcnt_hi_u32_b32 v2, -1, v2')
    else:
        p('v_lshrrev_b32 v1, 6, v0')
        p('v_and_b32 v2, 63, v0')
        p(f'v_readfirstlane_b32 s{S_WAVE}, v1')
    p('s_and_b32 s52, s2, 7')
    p('s_lshr_b32 s53, s2, 3')
    if CFG['MAP2'] == '8x4':
        p('s_lshr_b32 s54, s52, 1')
        p('s_lshl_b32 s54, s54, 3')
        p('s_lshr_b32 s55, s53, 2')
        p('s_add_u32 s26, s54, s55')
        p('s_and_b32 s54, s52, 1')
        p('s_lshl_b32 s54, s54, 2')
        p('s_and_b32 s55, s53, 3')
        p('s_add_u32 s27, s54, s55')
    else:
        p('s_lshl_b32 s54, s52, 2')
        p('s_lshr_b32 s55, s53, 3')
        p('s_add_u32 s26, s54, s55')
        p('s_and_b32 s27, s53, 7')
    if CFG['K2OWNPF'] and not fused:
        p(f's_cmp_eq_u32 s{S_WAVE}, 0')
        p('s_cbranch_scc0 L_k2_nopf')
        p('v_mov_b32 v10, v2')
        code_prefetch(p, 'L_k2_body', 'L_k2_end', CFG.get('K2_BYTES', 16384), 10, 255, 84, 'k2')
        p.label('L_k2_nopf')
    p.label('L_k2_body')
    p(f'v_lshlrev_b32 v{K2_VL}, 4, v2')
    p(f'v_add_u32 v{K2_VL2}, 4096, v{K2_VL}')
    p(f's_cmp_eq_u32 s{S_WAVE}, 0')
    p('s_mov_b32 s56, 20480')
    p('s_cselect_b32 s56, s56, 55296')
    p(f's_mov_b32 s57, {OA_OFF}')
    p(f's_cselect_b32 s57, s57, {H_OFF}')
    p(f's_mov_b32 s58, {WO_OFF}')
    p(f's_cselect_b32 s58, s58, {W2_OFF}')
    p('s_cselect_b32 s59, 20, 54')
    p(f's_mul_i32 s60, s{S_WAVE}, 18')
    p('s_cselect_b32 s60, 18, s60')
    p('s_sub_u32 s60, s60, 18')
    p('s_lshl_b32 s61, s26, 2')
    p('s_mul_i32 s61, s61, s56')
    p('s_add_u32 s61, s61, s57')
    p('s_lshl_b32 s62, s60, 10')
    p('s_add_u32 s20, s61, s62')
    p('s_mul_i32 s61, s27, s59')
    p('s_add_u32 s61, s61, s60')
    p('s_mul_i32 s61, s61, 5120')
    p('s_add_u32 s21, s61, s58')
    if CFG['ROT2']:
        p('s_add_u32 s34, s20, 16384')
        p('s_add_u32 s35, s21, 81920')
        if CFG['ROT2'] == 2:
            p('s_xor_b32 s62, s26, s27')
            p('s_and_b32 s62, s62, 1')
            p(f's_cmp_eq_u32 s{S_WAVE}, 0')
            p('s_cselect_b32 s63, 8, 9')
            p('s_mul_i32 s22, s62, s63')
        elif CFG['ROT2'] == 3:
            p('s_add_u32 s62, s26, s27')
            p('s_mul_i32 s63, s62, 43')
            p('s_lshr_b32 s63, s63, 7')
            p('s_mul_i32 s63, s63, 3')
            p('s_sub_u32 s62, s62, s63')
            p(f's_cmp_eq_u32 s{S_WAVE}, 0')
            p('s_cselect_b32 s63, 5, 6')
            p('s_mul_i32 s22, s62, s63')
        else:
            p('s_and_b32 s62, s26, 7')
            p('s_and_b32 s63, s27, 3')
            p('s_lshl_b32 s63, s63, 1')
            p('s_add_u32 s62, s62, s63')
            p(f's_cmp_eq_u32 s{S_WAVE}, 0')
            p('s_cselect_b32 s63, 16, 18')
            p('s_mul_i32 s62, s62, s63')
            p('s_lshr_b32 s22, s62, 3')
            p('s_cmp_ge_u32 s22, s63')
            p('s_cselect_b32 s62, s63, 0')
            p('s_sub_u32 s22, s22, s62')
        p('s_lshl_b32 s62, s22, 10')
        p('s_add_u32 s20, s20, s62')
        p('s_mul_i32 s62, s22, 5120')
        p('s_add_u32 s21, s21, s62')
    for t in range(4):
        p(f's_mul_i32 s62, s56, {t}')
        p(f'v_add_u32 v{K2_VA+t}, s62, v{K2_VL}')
    p('v_and_b32 v3, 15, v2')
    p('v_lshrrev_b32 v4, 4, v2')
    p('s_lshl_b32 s62, s26, 6')
    p(f's_lshl_b32 s63, s{S_WAVE}, 4')
    p('s_add_u32 s62, s62, s63')
    p('v_add_u32 v5, s62, v3')
    p('v_lshlrev_b32 v6, 3, v5')
    p(f'v_add_u32 v6, {G_OFF}, v6')
    p('s_mul_i32 s63, s27, 160')
    p('v_lshlrev_b32 v7, 4, v4')
    p('v_add_u32 v7, s63, v7')
    p('v_lshlrev_b32 v8, 3, v4')
    p('v_add_u32 v8, s63, v8')
    p('s_movk_i32 s63, 1280')
    p('v_mul_u32_u24 v5, s63, v5')
    p('v_add_u32 v242, v5, v7')
    p('v_add_u32 v243, v5, v8')
    if CFG['K2RED'] == 2:
        for r in range(4):
            p(f'v_mov_b32 v{214+r}, 0')
        p('v_mov_b32 v219, 81920')
        p('ds_write_b128 v219, v[214:217]')
        p('ds_write_b128 v219, v[214:217] offset:16')
    p('s_waitcnt lgkmcnt(0)')
    if CFG['K2RED'] == 2 and not fused:
        p('s_barrier')
    srd(p, 12, 4, WS_USED)
    srd(p, 16, 8, 1280)
    srd(p, 28, 6, 2048 * 1280)
    if fused:
        phase2_wait(p)
        p('s_barrier')
    stamp(p, 0)
    if CFG['K2RED'] == 2:
        p('s_lshl_b32 s62, s26, 6')
        p('v_add_u32 v9, s62, v3')
        p('v_lshlrev_b32 v9, 3, v9')
        p(f'v_add_u32 v9, {G_OFF}, v9')
        p(f'buffer_load_dwordx2 v[244:245], v9, s[12:15], 0 offen {CFG["K2LDF"]}')
    if not CFG['GLATE']:
        k2_small_loads(p, 6, 7, 8)
    else:
        p('v_mov_b32 v246, v6')
        p('v_mov_b32 v247, v7')
        p('v_mov_b32 v248, v8')
    p(f's_cmp_eq_u32 s{S_WAVE}, 0')
    p('s_cbranch_scc0 L_k2_b')
    if CFG['K2PRIO']:
        p(f's_setprio {CFG["K2PRIO"]}')
    k2_stream(p, True)
    p.label('L_k2_b')
    k2_stream(p, False)
    if CFG['K2RED'] == 2:
        k2_reduce2(p)
        p.label('L_k2_end')
        p('s_endpgm')
        return p
    p.label('L_k2_reduce')
    stamp(p, 2)
    ACC = lambda t, f: K2_ACC + (t * 5 + f) * 4
    p(f's_mul_i32 s62, s{S_WAVE}, 5120')
    p(f'v_add_u32 v3, s62, v{K2_VL}')
    p('s_nop 7')
    p('v_add_u32 v4, 40960, v3')
    for t in range(4):
        for f in range(5):
            p(f'ds_write_b128 v{3 + (t >> 1)}, v[{ACC(t,f)}:{ACC(t,f)+3}] offset:{(t & 1)*20480 + f*1024}')
    p(f's_mul_i32 s62, s{S_WAVE}, 20480')
    p(f'v_add_u32 v250, s62, v{K2_VL}')
    p('s_waitcnt lgkmcnt(0)')
    p('s_barrier')
    R = lambda w, f: (w * 5 + f) * 4
    for f in range(5):
        for w in range(4):
            p(f'ds_read_b128 v[{R(w,f)}:{R(w,f)+3}], v250 offset:{w*5120 + f*1024}')
    p('s_mov_b32 s62, 0xffff0000')
    B = lambda f: 100 + 4 * f
    for pr in range(2):
        for d in range(4):
            src = K2_B2 + 4 * pr + d
            f, r = 2 * pr + (d >> 1), 2 * (d & 1)
            p(f'v_lshlrev_b32 v{B(f)+r}, 16, v{src}')
            p(f'v_and_b32 v{B(f)+r+1}, s62, v{src}')
    for d in range(2):
        src = K2_B2 + 8 + d
        p(f'v_lshlrev_b32 v{B(4)+2*d}, 16, v{src}')
        p(f'v_and_b32 v{B(4)+2*d+1}, s62, v{src}')
    p(f'v_mov_b32 v120, v{K2_G}')
    p(f'v_mov_b32 v121, v{K2_G}')
    p(f'v_mov_b32 v122, v{K2_G+1}')
    p(f'v_mov_b32 v123, v{K2_G+1}')
    for f in range(5):
        p(f's_waitcnt lgkmcnt({min(15, 16-4*f)})' if f < 4 else 's_waitcnt lgkmcnt(0)')
        if f == 0:
            p('s_waitcnt lgkmcnt(15)')
        for r in (0, 2):
            a, b1, b2_, b3 = R(0, f) + r, R(1, f) + r, R(2, f) + r, R(3, f) + r
            p(f'v_pk_add_f32 v[{b1}:{b1+1}], v[{b1}:{b1+1}], v[{b2_}:{b2_+1}]')
            p(f'v_pk_add_f32 v[{b3}:{b3+1}], v[{b3}:{b3+1}], v[{B(f)+r}:{B(f)+r+1}]')
            p(f'v_pk_mul_f32 v[{a}:{a+1}], v[{a}:{a+1}], v[120:121]')
            p(f'v_pk_add_f32 v[{b1}:{b1+1}], v[{b1}:{b1+1}], v[{b3}:{b3+1}]')
            p(f'v_pk_fma_f32 v[{a}:{a+1}], v[{b1}:{b1+1}], v[122:123], v[{a}:{a+1}]')
    O = 124
    for pr in range(2):
        for u in range(2):
            a = R(0, 2 * pr + u)
            p(f'v_cvt_pk_bf16_f32 v{O+4*pr+2*u}, v{a}, v{a+1}')
            p(f'v_cvt_pk_bf16_f32 v{O+4*pr+2*u+1}, v{a+2}, v{a+3}')
        p(f'buffer_store_dwordx4 v[{O+4*pr}:{O+4*pr+3}], v242, s[28:31], 0 offen offset:{64*pr} {CFG["OUTF"]}')
    a = R(0, 4)
    p(f'v_cvt_pk_bf16_f32 v{O+8}, v{a}, v{a+1}')
    p(f'v_cvt_pk_bf16_f32 v{O+9}, v{a+2}, v{a+3}')
    p(f'buffer_store_dwordx2 v[{O+8}:{O+9}], v243, s[28:31], 0 offen offset:128 {CFG["OUTF"]}')
    stamp(p, 3)
    if CFG['PROF']:
        prof_store(p, 4, 'K2', 12)
    p.label('L_k2_end')
    p('s_endpgm')
    return p


K2B_R = 4
K2B_STEP = 9216
K2B_SLOT = 4 * K2B_STEP
K2B_LDS = K2B_R * K2B_SLOT


def gen_k2b():
    R, SL, ST = K2B_R, K2B_SLOT, K2B_STEP
    stages = [('a', 4 * i, 4) for i in range(5)] + [('b', 4 * i, 4) for i in range(13)] + [('b', 52, 2)]
    NS = len(stages)
    p = Prog()
    p('s_cmp_ge_u32 s2, 256')
    p('s_cbranch_scc1 L_k2_end')
    p('s_load_dwordx2 s[4:5], s[0:1], 88')
    p('s_load_dwordx2 s[6:7], s[0:1], 72')
    p('s_load_dwordx2 s[8:9], s[0:1], 56')
    if CFG['PROF']:
        p('s_memrealtime s[88:89]')
        p('s_memtime s[82:83]')
    p('v_lshrrev_b32 v1, 6, v0')
    p('v_and_b32 v2, 63, v0')
    p(f'v_readfirstlane_b32 s{S_WAVE}, v1')
    p('s_and_b32 s52, s2, 7')
    p('s_lshr_b32 s53, s2, 3')
    if CFG['MAP2'] == '8x4':
        p('s_lshr_b32 s54, s52, 1')
        p('s_lshl_b32 s54, s54, 3')
        p('s_lshr_b32 s55, s53, 2')
        p('s_add_u32 s26, s54, s55')
        p('s_and_b32 s54, s52, 1')
        p('s_lshl_b32 s54, s54, 2')
        p('s_and_b32 s55, s53, 3')
        p('s_add_u32 s27, s54, s55')
    else:
        p('s_lshl_b32 s54, s52, 2')
        p('s_lshr_b32 s55, s53, 3')
        p('s_add_u32 s26, s54, s55')
        p('s_and_b32 s27, s53, 7')
    p('v_lshlrev_b32 v3, 4, v2')
    p(f's_cmp_ge_u32 s{S_WAVE}, 4')
    p('s_cbranch_scc0 L_k2_consumer')
    p(f's_sub_u32 s57, s{S_WAVE}, 4')
    p('s_mul_i32 s20, s27, 20')
    p('s_add_u32 s20, s20, s57')
    p('s_mul_i32 s20, s20, 5120')
    p(f's_add_u32 s20, s20, {WO_OFF}')
    p('s_mul_i32 s21, s27, 54')
    p('s_add_u32 s21, s21, s57')
    p('s_mul_i32 s21, s21, 5120')
    p(f's_add_u32 s21, s21, {W2_OFF}')
    p('s_lshl_b32 s54, s26, 2')
    p('s_mul_i32 s22, s54, 20')
    p('s_add_u32 s22, s22, s57')
    p('s_lshl_b32 s22, s22, 10')
    p(f's_add_u32 s22, s22, {OA_OFF}')
    p('s_mul_i32 s25, s54, 54')
    p('s_add_u32 s25, s25, s57')
    p('s_lshl_b32 s25, s25, 10')
    if H_OFF:
        p(f's_add_u32 s25, s25, {H_OFF}')
    p(f's_mul_i32 s58, s57, {ST}')
    p('v_add_u32 v4, 4096, v3')
    for u in range(4):
        p(f'v_add_u32 v{10+u}, {20480*u}, v3')
        p(f'v_add_u32 v{14+u}, {55296*u}, v3')
    p('s_waitcnt lgkmcnt(0)')
    srd(p, 12, 4, WS_USED)
    stamp(p, 0)

    def issue(j):
        part, s0, n = stages[j]
        slot = j % R
        if n < 4:
            p(f's_cmp_ge_u32 s57, {n}')
            p(f's_cbranch_scc1 L_k2_skip{j}')
        p(f's_add_u32 s23, s{20 if part == "a" else 21}, {s0*5120}')
        p(f's_add_u32 s24, s{22 if part == "a" else 25}, {s0*1024}') if False else None
        p(f's_add_u32 m0, s58, {slot*SL}')
        p(f's_add_u32 s59, s{22 if part == "a" else 25}, {s0*1024}')
        for f in range(4):
            p(f'buffer_load_dwordx4 v3, s[12:15], s23 offen offset:{1024*f} {CFG["K2LDF"]} lds')
        p(f's_add_u32 m0, s58, {slot*SL + 4096}')
        p('s_nop 0')
        p(f'buffer_load_dwordx4 v4, s[12:15], s23 offen {CFG["K2LDF"]} lds')
        for u in range(4):
            p(f's_add_u32 m0, s58, {slot*SL + 5120 + 1024*u}')
            p('s_nop 0')
            p(f'buffer_load_dwordx4 v{(10 if part == "a" else 14)+u}, s[12:15], s59 offen {CFG["K2LDF"]} lds')
        if n < 4:
            p.label(f'L_k2_skip{j}')

    for j in range(R - 1):
        issue(j)
    stamp(p, 1)
    for j in range(NS):
        hi = min(j + R - 2, NS - 1)
        newer = 9 * (hi - j)
        if hi == NS - 1 and j < NS - 1:
            newer -= 9
        p(f's_waitcnt vmcnt({max(newer, 0)})')
        p('s_barrier')
        if j + R - 1 < NS:
            issue(j + R - 1)
    stamp(p, 2)
    stamp(p, 3)
    if CFG['PROF']:
        prof_store(p, 4, 'K2', 12)
    p('s_endpgm')
    p.label('L_k2_consumer')
    p(f's_cmp_eq_u32 s{S_WAVE}, 0')
    p('s_cbranch_scc0 L_k2_nopf')
    p('v_mov_b32 v10, v2')
    code_prefetch(p, 'L_k2_body', 'L_k2_end', CFG.get('K2_BYTES', 12288), 10, 255, 84, 'k2')
    p.label('L_k2_nopf')
    p.label('L_k2_body')
    ACA, ACB = 0, 20
    WR = lambda q, f: 40 + 20 * q + 4 * f
    AR = lambda q: 120 + 4 * q
    G, B2 = 230, 232
    p('s_lshl_b32 s54, s26, 2')
    p(f's_add_u32 s54, s54, s{S_WAVE}')
    p('v_and_b32 v4, 15, v2')
    p('v_lshrrev_b32 v5, 4, v2')
    p('s_lshl_b32 s55, s54, 4')
    p('v_add_u32 v6, s55, v4')
    p('v_lshlrev_b32 v7, 3, v6')
    p(f'v_add_u32 v7, {G_OFF}, v7')
    p('s_mul_i32 s55, s27, 160')
    p('v_lshlrev_b32 v8, 4, v5')
    p('v_add_u32 v8, s55, v8')
    p('v_lshlrev_b32 v9, 3, v5')
    p('v_add_u32 v9, s55, v9')
    p('v_mul_u32_u24 v6, 1280, v6')
    p('v_add_u32 v242, v6, v8')
    p('v_add_u32 v243, v6, v9')
    p(f's_lshl_b32 s55, s{S_WAVE}, 10')
    p('s_add_u32 s55, s55, 5120')
    for sl in range(R):
        p(f'v_add_u32 v{244+sl}, {sl*SL}, v3')
        p(f'v_add_u32 v{250+sl}, s55, v{244+sl}')
    p(f's_lshr_b32 s55, s{S_WAVE}, 1')
    p('s_lshl_b32 s55, s55, 10')
    p(f's_and_b32 s56, s{S_WAVE}, 1')
    p('s_lshl_b32 s56, s56, 3')
    p('s_add_u32 s55, s55, s56')
    p('s_add_u32 s55, s55, 5120')
    p('v_add_u32 v249, s55, v3')
    p('s_waitcnt lgkmcnt(0)')
    srd(p, 12, 4, WS_USED)
    srd(p, 16, 8, 1280)
    srd(p, 28, 6, 2048 * 1280)
    stamp(p, 0)
    p(f'buffer_load_dwordx2 v[{G}:{G+1}], v7, s[12:15], 0 offen')
    p(f'buffer_load_dwordx4 v[{B2}:{B2+3}], v8, s[16:19], 0 offen')
    p(f'buffer_load_dwordx4 v[{B2+4}:{B2+7}], v8, s[16:19], 0 offen offset:64')
    p(f'buffer_load_dwordx2 v[{B2+8}:{B2+9}], v9, s[16:19], 0 offen offset:128')
    for r in range(40):
        p(f'v_mov_b32 v{r}, 0')
    stamp(p, 1)
    for j, (part, s0, n) in enumerate(stages):
        slot = j % R
        tail = (part == 'a' and s0 == 16)
        assert not tail or slot == 0
        p('s_barrier')
        log = []
        for q in range(n):
            if tail:
                p(f'ds_read_b64 v[{AR(q)}:{AR(q)+1}], v249 offset:{q*ST}')
                p(f'ds_read_b64 v[{AR(q)+2}:{AR(q)+3}], v249 offset:{q*ST + 2048}')
                log += [('a', q), ('a', q)]
            else:
                p(f'ds_read_b128 v[{AR(q)}:{AR(q)+3}], v{250+slot} offset:{q*ST}')
                log.append(('a', q))
            for f in range(5):
                p(f'ds_read_b128 v[{WR(q,f)}:{WR(q,f)+3}], v{244+slot} offset:{q*ST + f*1024}')
                log.append(('w', q, f))
        known = max(0, len(log) - 15) if len(log) > 15 else 0
        done = -1
        for q in range(n):
            acc0 = ACA if part == 'a' else ACB
            for f in range(5):
                idx = log.index(('w', q, f))
                if idx > done:
                    left = len(log) - 1 - idx
                    w = min(left, 15)
                    p(f's_waitcnt lgkmcnt({w})')
                    done = len(log) - 1 - w
                p(f'v_mfma_f32_16x16x32_bf16 v[{acc0+4*f}:{acc0+4*f+3}], v[{WR(q,f)}:{WR(q,f)+3}], v[{AR(q)}:{AR(q)+3}], v[{acc0+4*f}:{acc0+4*f+3}]')
    stamp(p, 2)
    p('s_mov_b32 s62, 0xffff0000')
    p('s_waitcnt vmcnt(0)')
    Bf = lambda f: 100 + 4 * f
    for pr in range(2):
        for d in range(4):
            s_ = B2 + 4 * pr + d
            f, r = 2 * pr + (d >> 1), 2 * (d & 1)
            p(f'v_lshlrev_b32 v{Bf(f)+r}, 16, v{s_}')
            p(f'v_and_b32 v{Bf(f)+r+1}, s62, v{s_}')
    for d in range(2):
        s_ = B2 + 8 + d
        p(f'v_lshlrev_b32 v{Bf(4)+2*d}, 16, v{s_}')
        p(f'v_and_b32 v{Bf(4)+2*d+1}, s62, v{s_}')
    p(f'v_mov_b32 v120, v{G}')
    p(f'v_mov_b32 v121, v{G}')
    p(f'v_mov_b32 v122, v{G+1}')
    p(f'v_mov_b32 v123, v{G+1}')
    for f in range(5):
        for r in (0, 2):
            a, b = ACA + 4 * f + r, ACB + 4 * f + r
            p(f'v_pk_add_f32 v[{b}:{b+1}], v[{b}:{b+1}], v[{Bf(f)+r}:{Bf(f)+r+1}]')
            p(f'v_pk_mul_f32 v[{a}:{a+1}], v[{a}:{a+1}], v[120:121]')
    for f in range(5):
        for r in (0, 2):
            a, b = ACA + 4 * f + r, ACB + 4 * f + r
            p(f'v_pk_fma_f32 v[{a}:{a+1}], v[{b}:{b+1}], v[122:123], v[{a}:{a+1}]')
    O = 124
    for pr in range(2):
        for u in range(2):
            a = ACA + 4 * (2 * pr + u)
            p(f'v_cvt_pk_bf16_f32 v{O+4*pr+2*u}, v{a}, v{a+1}')
            p(f'v_cvt_pk_bf16_f32 v{O+4*pr+2*u+1}, v{a+2}, v{a+3}')
        p(f'buffer_store_dwordx4 v[{O+4*pr}:{O+4*pr+3}], v242, s[28:31], 0 offen offset:{64*pr} {CFG["OUTF"]}')
    a = ACA + 16
    p(f'v_cvt_pk_bf16_f32 v{O+8}, v{a}, v{a+1}')
    p(f'v_cvt_pk_bf16_f32 v{O+9}, v{a+2}, v{a+3}')
    p(f'buffer_store_dwordx2 v[{O+8}:{O+9}], v243, s[28:31], 0 offen offset:128 {CFG["OUTF"]}')
    stamp(p, 3)
    if CFG['PROF']:
        prof_store(p, 4, 'K2', 12)
    p.label('L_k2_end')
    p('s_endpgm')
    return p


def gen_k2t():
    NW, INF, MODE = CFG['NW'], CFG['INF'], CFG['TMODE']
    p = Prog()
    p('s_cmp_ge_u32 s2, 256')
    p('s_cbranch_scc1 L_k2_end')
    p('s_load_dwordx2 s[4:5], s[0:1], 88')
    p('s_memrealtime s[88:89]')
    p('s_memtime s[82:83]')
    p('v_lshrrev_b32 v1, 6, v0')
    p('v_and_b32 v2, 63, v0')
    p(f'v_readfirstlane_b32 s{S_WAVE}, v1')
    p('s_and_b32 s52, s2, 7')
    p('s_lshr_b32 s53, s2, 3')
    p('s_lshr_b32 s54, s52, 1')
    p('s_lshl_b32 s54, s54, 3')
    p('s_lshr_b32 s55, s53, 2')
    p('s_add_u32 s26, s54, s55')
    p('s_and_b32 s54, s52, 1')
    p('s_lshl_b32 s54, s54, 2')
    p('s_and_b32 s55, s53, 3')
    p('s_add_u32 s27, s54, s55')
    p('v_lshlrev_b32 v3, 4, v2')
    p('v_add_u32 v4, 4096, v3')
    nst = 72 // NW
    p(f's_mul_i32 s60, s{S_WAVE}, {nst}')
    p('s_cmp_ge_u32 s60, 54')
    p('s_cselect_b32 s61, 1, 0')
    p('s_cselect_b32 s56, 20480, 0')
    p('s_cselect_b32 s56, s56, 55296')
    p(f's_mov_b32 s57, {OA_OFF}')
    p(f's_cselect_b32 s57, s57, {H_OFF}')
    p(f's_mov_b32 s58, {WO_OFF}')
    p(f's_cselect_b32 s58, s58, {W2_OFF}')
    p('s_cselect_b32 s59, 20, 54')
    p('s_cselect_b32 s62, 54, 0')
    p('s_sub_u32 s60, s60, s62')
    p('s_lshl_b32 s61, s26, 2')
    p('s_mul_i32 s61, s61, s56')
    p('s_add_u32 s61, s61, s57')
    p('s_lshl_b32 s62, s60, 10')
    p('s_add_u32 s20, s61, s62')
    p('s_mul_i32 s61, s27, s59')
    p('s_add_u32 s61, s61, s60')
    p('s_mul_i32 s61, s61, 5120')
    p('s_add_u32 s21, s61, s58')
    for t in range(4):
        p(f's_mul_i32 s62, s56, {t}')
        p(f'v_add_u32 v{10+t}, s62, v3')
    p(f's_mul_i32 s63, s{S_WAVE}, 16384')
    p('s_waitcnt lgkmcnt(0)')
    srd(p, 12, 4, WS_USED)
    stamp(p, 0)
    stamp(p, 1)
    n = 0
    for s in range(nst):
        for f in range(9):
            r = 20 + 4 * (n % 48)
            if MODE == 'dma':
                p(f's_add_u32 m0, s63, {(n % 16) * 1024}')
                p('s_nop 0')
            a, so, off = (3, 's21', 1024 * f) if f < 4 else ((4, 's21', 0) if f == 4 else (10 + f - 5, 's20', 0))
            if MODE == 'dma':
                if f < 4 and f > 0:
                    p(f's_sub_u32 m0, m0, {off}')
                    p('s_nop 0')
                p(f'buffer_load_dwordx4 v{a}, s[12:15], {so} offen offset:{off} lds')
            else:
                p(f'buffer_load_dwordx4 v[{r}:{r+3}], v{a}, s[12:15], {so} offen offset:{off}')
            p(f's_waitcnt vmcnt({INF})')
            n += 1
        p('s_add_u32 s20, s20, 1024')
        p('s_add_u32 s21, s21, 5120')
    p('s_waitcnt vmcnt(0)')
    stamp(p, 2)
    stamp(p, 3)
    prof_store(p, 4, 'K2', 12)
    p.label('L_k2_end')
    p('s_endpgm')
    return p


def gen_kpf():
    p = Prog()
    p('s_cmp_ge_u32 s2, 256')
    p('s_cbranch_scc1 L_kpf_end')
    p('s_load_dwordx2 s[4:5], s[0:1], 88')
    p('v_and_b32 v2, 63, v0')
    p('v_lshrrev_b32 v1, 6, v0')
    p('s_and_b32 s52, s2, 7')
    p('s_lshr_b32 s53, s2, 3')
    p('v_lshlrev_b32 v3, 7, v0')
    p('s_waitcnt lgkmcnt(0)')
    srd(p, 12, 4, WS_USED)
    if CFG['KPF'] == 1:
        p('s_and_b32 s54, s52, 1')
        p(f's_mul_i32 s55, s54, {4*54*5120}')
        p(f's_add_u32 s55, s55, {W2_OFF}')
        p('s_lshl_b32 s56, s53, 15')
        p('s_add_u32 s57, s55, s56')
        p('buffer_load_dword v10, v3, s[12:15], s57 offen')
        p('s_add_u32 s57, s57, 57344')
        p('buffer_load_dword v10, v3, s[12:15], s57 offen')
        p(f's_mul_i32 s55, s54, {4*20*5120}')
        p(f's_add_u32 s55, s55, {WO_OFF}')
        p('s_mul_i32 s56, s53, 12800')
        p('s_add_u32 s57, s55, s56')
        p('buffer_load_dword v10, v3, s[12:15], s57 offen')
    else:
        p('s_lshr_b32 s54, s52, 1')
        p(f's_mul_i32 s55, s54, {32*55296}')
        p('s_mul_i32 s56, s53, 55296')
        p('s_add_u32 s57, s55, s56')
        p('buffer_load_dword v10, v3, s[12:15], s57 offen')
        p('s_add_u32 s57, s57, 22528')
        p('buffer_load_dword v10, v3, s[12:15], s57 offen')
        p(f's_mul_i32 s55, s54, {32*20480}')
        p(f's_add_u32 s55, s55, {OA_OFF}')
        p('s_mul_i32 s56, s53, 20480')
        p('s_add_u32 s57, s55, s56')
        p('buffer_load_dword v10, v3, s[12:15], s57 offen')
    p('s_waitcnt vmcnt(0)')
    p.label('L_kpf_end')
    p('s_endpgm')
    return p


HEADER = """; gated mix of (sliding dilated attention branch) and (GELU MLP branch), S=2048 D=640 H=32 Dh=20 F=1728, bf16.
; @launch kernel=gm_k1_kernel grid=(256,1,1) block=(512,1,1) lds=%d
; @launch kernel=gm_k2_kernel grid=(256,1,1) block=(256,1,1) lds=%d
.amdgcn_target "amdgcn-amd-amdhsa--gfx950"
"""

KD = """.amdhsa_kernel %s
  .amdhsa_next_free_vgpr %d
  .amdhsa_next_free_sgpr 102
  .amdhsa_accum_offset %d
  .amdhsa_group_segment_fixed_size 0
  .amdhsa_kernarg_size 96
  .amdhsa_user_sgpr_count 2
  .amdhsa_user_sgpr_kernarg_segment_ptr 1
  .amdhsa_system_sgpr_workgroup_id_x 1
  .amdhsa_float_denorm_mode_32 3
.end_amdhsa_kernel
"""


def main_fused():
    assert CFG['K2V'] == 1 and CFG['K2RED'] == 2 and CFG['M35'] and not CFG['GLATE']
    CFG['K2LDF'] = 'sc1'
    k = gen_k1()
    t = k.finish()
    s = HEADER % (K1_LDS, 0)
    lines = s.split('\n')
    lines = [l for l in lines if 'kernel=gm_k2_kernel' not in l]
    s = '\n'.join(lines)
    s += '.text\n.globl gm_k1_kernel\n.p2align 8\n.type gm_k1_kernel,@function\ngm_k1_kernel:\n' + t
    s += '.section .rodata,"a"\n.p2align 6\n' + KD % ('gm_k1_kernel', 256, 256)
    out = CFG.get('OUT', f'cdna_kernels/{NAME}.s')
    open(out, 'w').write(s)
    print('written (fused)', out, len(s), 'bytes; nops', k.nops_inserted)


def main():
    if CFG['FUSE']:
        return main_fused()
    k1 = gen_k1()
    k2 = gen_k2b() if CFG['K2V'] == 2 else (gen_k2t() if CFG['K2V'] == 3 else gen_k2())
    t1, t2 = k1.finish(), k2.finish()
    s = HEADER % (K1_LDS, K2B_LDS if CFG['K2V'] == 2 else K2_LDS)
    if CFG['K2V'] == 3:
        s = s.replace('kernel=gm_k2_kernel grid=(256,1,1) block=(256,1,1) lds=%d' % K2_LDS, 'kernel=gm_k2_kernel grid=(256,1,1) block=(%d,1,1) lds=131072' % (64 * CFG['NW']))
    if CFG['K2V'] == 2:
        s = s.replace('kernel=gm_k2_kernel grid=(256,1,1) block=(256,1,1)', 'kernel=gm_k2_kernel grid=(256,1,1) block=(512,1,1)')
    if CFG['K2TWICE']:
        ln = [l for l in s.split('\n') if 'kernel=gm_k2_kernel' in l][0]
        s = s.replace(ln, ln + '\n' + ln)
    s += '.text\n'
    for name, t in (('gm_k1_kernel', t1), ('gm_k2_kernel', t2)):
        s += f'.globl {name}\n.p2align 8\n.type {name},@function\n{name}:\n{t}'
    s += '.p2align 8\n.fill 64, 4, 0xbf800000\n' if False else ''
    if CFG['KPF']:
        s += '.globl gm_pf_kernel\n.p2align 8\n.type gm_pf_kernel,@function\ngm_pf_kernel:\n' + gen_kpf().finish()
        ln = [l for l in s.split('\n') if 'kernel=gm_k2_kernel' in l][0]
        s = s.replace(ln, '; @launch kernel=gm_pf_kernel grid=(256,1,1) block=(256,1,1) lds=0\n' + ln)
    s += '.section .rodata,"a"\n.p2align 6\n'
    s += KD % ('gm_k1_kernel', 256, 256)
    s += '.p2align 6\n'
    s += KD % ('gm_k2_kernel', 256, 256)
    if CFG['KPF']:
        s += '.p2align 6\n' + KD % ('gm_pf_kernel', 64, 64)
    out = CFG.get('OUT', f'cdna_kernels/{NAME}.s')
    open(out, 'w').write(s)
    print('written', out, len(s), 'bytes; nops inserted k1', k1.nops_inserted, 'k2', k2.nops_inserted)


if __name__ == '__main__':
    main()
```
